```python
import torch

def _softmax(x, axis=-1):
    return torch.softmax(x, dim=axis)
def _gelu(x):
    return torch.nn.functional.gelu(x, approximate="tanh")
def _silu(x):
    return torch.nn.functional.silu(x)
def _sigmoid(x):
    return torch.sigmoid(x)
def _layernorm(x, axis=-1, eps=1e-5):
    m = x.mean(dim=axis, keepdim=True)
    v = x.var(dim=axis, keepdim=True, unbiased=False)
    return (x - m) / torch.sqrt(v + eps)
def _scatter_add(tgt, idx, src, axis=0):
    return tgt.clone().index_add_(axis, idx, src)
def _segment_sum(src, seg, n):
    out = torch.zeros((n,) + src.shape[1:], dtype=src.dtype)
    return out.index_add_(0, seg, src)
def _pad(x, pw):
    flat = tuple(v for pair in reversed(pw) for v in pair)
    return torch.nn.functional.pad(x, flat)

kernel_name = 'standalone__edge_featured_mpnn_egc__graph'

def setup_inputs():

    _w = (lambda a: (lambda t: t.to(torch.bfloat16) if t.is_floating_point() else t)(torch.as_tensor(a)))
    N, deg, D, De = 25000, 32, 64, max(0, 1)
    E = N * deg
    return {
        "x": _w((lambda *s: torch.randn(*s, dtype=torch.bfloat16) * 0.2)(N, D)),
        "e_attr": _w((lambda *s: torch.randn(*s, dtype=torch.bfloat16) * 0.2)(E, De)),
        "src": _w((lambda lo, hi, *s: torch.randint(lo, hi, s))(0, N, E).to(torch.int64)),
        "dst": _w((lambda lo, hi, *s: torch.randint(lo, hi, s))(0, N, E).to(torch.int64)),
        "u_w": _w((lambda *s: torch.randn(*s, dtype=torch.bfloat16) * 0.05)(D, D)),
        "v_w": _w((lambda *s: torch.randn(*s, dtype=torch.bfloat16) * 0.05)(D, D)),
        "g_w": _w((lambda *s: torch.randn(*s, dtype=torch.bfloat16) * 0.2)(2 * D + De, D)),
    }

def reference(x, e_attr, src, dst, u_w, v_w, g_w):
    N, D = x.shape
    g_in = torch.concatenate([x[dst], x[src], e_attr], axis=-1)
    eta = _sigmoid(g_in @ g_w)
    hv = x @ v_w
    msg = eta * hv[src]
    agg = _segment_sum(msg, dst, N)
    return _silu(x @ u_w + agg)
```

```python
import sys

N = 25000
E = 800000
NB = 250
NPB = 100
NC = 250
EPC = 3200
HALF = 12500

T_OFF = 0
REC_OFF = 0x700000
SEG_OFF = 0xE00000

LOG2E_NEG = 0xBFB8AA3B

K1 = "egc_part_kernel"
K2 = "standalone__edge_featured_mpnn_egc__graph_kernel"


class Asm:
    def __init__(self):
        self.lines = []

    def __call__(self, s=""):
        for ln in s.split("\n"):
            self.lines.append(ln if ln.strip().endswith(":") else "    " + ln.strip())

    def label(self, s):
        self.lines.append(s + ":")

    def text(self):
        return "\n".join(self.lines) + "\n"


def vr(a, n):
    return f"v[{a}:{a + n - 1}]"


def sr(a, n=2):
    return f"s[{a}:{a + n - 1}]"


def wave_scan(a, v):
    for sh in (1, 2, 4, 8):
        a("s_nop 1")
        a(f"v_add_u32_dpp v{v}, v{v}, v{v} row_shr:{sh} row_mask:0xf bank_mask:0xf bound_ctrl:0")
    a("s_nop 1")
    a(f"v_add_u32_dpp v{v}, v{v}, v{v} row_bcast:15 row_mask:0xa bank_mask:0xf")
    a("s_nop 1")
    a(f"v_add_u32_dpp v{v}, v{v}, v{v} row_bcast:31 row_mask:0xc bank_mask:0xf")
    a("s_nop 1")


def load_ptrs(a):
    a("s_load_dwordx16 s[4:19], s[0:1], 0")
    a("s_load_dwordx2 s[20:21], s[0:1], 72")


X, EA, SRC, DST, UW, VW, GW, OUT, WS = 4, 6, 8, 10, 12, 14, 16, 18, 20


def tr_weights(a, dst0, vaddr, base):
    for m in range(2):
        for ks in range(2):
            for hh in range(2):
                r = dst0 + (m * 2 + ks) * 4 + hh * 2
                a(f"ds_read_b64_tr_b16 {vr(r, 2)}, v{vaddr} offset:{base + m * 8192 + ks * 4096 + hh * 512}")


def gen_k1(a):
    WST, HIST, BASE, STG = 0, 16384, 17408, 18432
    LDS = STG + EPC * 8
    TID, LANE = 0, 1
    T0, T1, T2, T3 = 2, 3, 60, 61
    VD, VS, VE = 4, 8, 12
    VW_ = 16
    XA, XB = 20, 28
    AOP = 36
    DQ, DH = 52, 56
    PK = 62
    VB, VR, VH = 68, 72, 76
    TA, TB = 80, 81
    TRA = 82
    WAVE = 22

    a(f".globl {K1}")
    a(".p2align 8")
    a(f".type {K1},@function")
    a.label(K1)
    a(f"s_cmp_ge_u32 s2, {NC}")
    a("s_cbranch_scc1 L1_end")
    load_ptrs(a)
    a(f"v_and_b32 v{LANE}, 63, v{TID}")
    a(f"v_lshrrev_b32 v{T0}, 6, v{TID}")
    a(f"v_lshlrev_b32 v{T1}, 2, v{TID}")
    a(f"v_readfirstlane_b32 s{WAVE}, v{T0}")
    a(f"v_mov_b32 v{T0}, 0")
    a(f"s_cmp_lt_u32 s{WAVE}, 4")
    a("s_cbranch_scc0 L1_nozero")
    a(f"ds_write_b32 v{T1}, v{T0} offset:{HIST}")
    a.label("L1_nozero")
    a("s_waitcnt lgkmcnt(0)")
    a(f"s_cmp_gt_u32 s{WAVE}, 12")
    a("s_cbranch_scc1 L1_noedge0")
    a(f"s_mul_i32 s24, s2, {EPC * 4}")
    a(f"v_lshlrev_b32 v{T0}, 4, v{TID}")
    a(f"v_add_u32 v{T0}, s24, v{T0}")
    a(f"v_lshrrev_b32 v{T1}, 1, v{T0}")
    a(f"v_cmp_gt_u32 vcc, {EPC // 4}, v{TID}")
    a("s_and_saveexec_b64 s[32:33], vcc")
    a(f"global_load_dwordx4 {vr(VD, 4)}, v{T0}, {sr(DST)}")
    a(f"global_load_dwordx4 {vr(VS, 4)}, v{T0}, {sr(SRC)}")
    a(f"global_load_dwordx2 {vr(VE, 2)}, v{T1}, {sr(EA)}")
    a("s_mov_b64 exec, s[32:33]")
    a.label("L1_noedge0")
    a(f"s_cmp_lt_u32 s{WAVE}, 8")
    a(f"s_cselect_b32 s24, s{GW}, s{VW}")
    a(f"s_cselect_b32 s25, s{GW + 1}, s{VW + 1}")
    a("s_cselect_b32 s26, 8192, 0")
    a("s_add_u32 s24, s24, s26")
    a("s_addc_u32 s25, s25, 0")
    a(f"v_and_b32 v{T0}, 511, v{TID}")
    a(f"v_lshlrev_b32 v{T0}, 4, v{T0}")
    a(f"global_load_dwordx4 {vr(VW_, 4)}, v{T0}, s[24:25]")
    a(f"s_lshr_b32 s26, s{WAVE}, 2")
    a(f"s_and_b32 s27, s{WAVE}, 3")
    a(f"s_mul_i32 s28, s2, {NPB}")
    a(f"v_and_b32 v{T0}, 15, v{LANE}")
    a(f"v_lshrrev_b32 v{T1}, 4, v{LANE}")
    a("s_lshl_b32 s29, s26, 4")
    a(f"v_add_u32 v{T2}, s29, v{T0}")
    for (xt, to, add) in ((XA, TA, 0), (XB, TB, 64)):
        if add:
            a(f"v_add_u32 v{T2}, {add}, v{T2}")
        a(f"v_min_u32 v{T3}, {NPB - 1}, v{T2}")
        a(f"v_add_u32 v{T3}, s28, v{T3}")
        a(f"v_lshlrev_b32 v{PK}, 7, v{T3}")
        a(f"v_lshl_add_u32 v{PK}, v{T1}, 4, v{PK}")
        a(f"global_load_dwordx4 {vr(xt, 4)}, v{PK}, {sr(X)}")
        a(f"global_load_dwordx4 {vr(xt + 4, 4)}, v{PK}, {sr(X)} offset:64")
        a(f"v_lshlrev_b32 v{to}, 8, v{T3}")
        a(f"v_lshl_add_u32 v{to}, v{T1}, 4, v{to}")
        a("s_lshl_b32 s30, s27, 6")
        a(f"v_add_u32 v{to}, s30, v{to}")
        a(f"v_cmp_gt_u32 vcc, {NPB}, v{T2}")
        a("s_nop 1")
        a(f"v_cndmask_b32 v{to}, -1, v{to}, vcc")
    a(f"v_lshrrev_b32 v{T2}, 2, v{T0}")
    a(f"v_lshl_add_u32 v{T2}, v{T1}, 3, v{T2}")
    a(f"v_lshlrev_b32 v{T2}, 7, v{T2}")
    a(f"v_and_b32 v{T3}, 3, v{T0}")
    a(f"v_lshl_add_u32 v{T2}, v{T3}, 3, v{T2}")
    a("s_lshl_b32 s30, s27, 5")
    a(f"v_add_u32 v{TRA}, s30, v{T2}")
    a(f"v_lshlrev_b32 v{T0}, 4, v{TID}")
    a("s_waitcnt vmcnt(4)")
    a(f"ds_write_b128 v{T0}, {vr(VW_, 4)} offset:{WST}")
    a("s_waitcnt lgkmcnt(0)")
    a("s_barrier")
    a(f"s_cmp_gt_u32 s{WAVE}, 12")
    a("s_cbranch_scc1 L1_noedge1")
    a(f"v_cmp_gt_u32 vcc, {EPC // 4}, v{TID}")
    a("s_and_saveexec_b64 s[32:33], vcc")
    a(f"v_mov_b32 v{T1}, 1")
    a("s_movk_i32 s24, 100")
    a("s_mov_b32 s25, 0xffff0000")
    a(f"s_movk_i32 s30, {HALF}")
    for i in range(4):
        a(f"v_mul_u32_u24 v{T0}, 5243, v{VD + i}")
        a(f"v_lshrrev_b32 v{T0}, 19, v{T0}")
        a(f"v_mul_u32_u24 v{T2}, s24, v{T0}")
        a(f"v_sub_u32 v{T2}, v{VD + i}, v{T2}")
        a(f"v_cmp_le_u32 vcc, s30, v{VS + i}")
        a(f"v_add_u32 v{T3}, 100, v{T2}")
        a(f"v_lshlrev_b32 v{VB + i}, 2, v{T0}")
        a(f"v_cndmask_b32 v{T2}, v{T2}, v{T3}, vcc")
        a(f"ds_add_rtn_u32 v{VR + i}, v{VB + i}, v{T1} offset:{HIST}")
        if i % 2 == 0:
            a(f"v_lshl_or_b32 v{VH + i}, v{VE + i // 2}, 16, v{T2}")
        else:
            a(f"v_and_or_b32 v{VH + i}, v{VE + i // 2}, s25, v{T2}")
    a("s_mov_b64 exec, s[32:33]")
    a.label("L1_noedge1")

    def t_task(xt, to, tag):
        a(f"v_mfma_f32_16x16x32_bf16 {vr(DQ, 4)}, {vr(AOP, 4)}, {vr(xt, 4)}, 0")
        a(f"v_mfma_f32_16x16x32_bf16 {vr(DH, 4)}, {vr(AOP + 8, 4)}, {vr(xt, 4)}, 0")
        a(f"v_mfma_f32_16x16x32_bf16 {vr(DQ, 4)}, {vr(AOP + 4, 4)}, {vr(xt + 4, 4)}, {vr(DQ, 4)}")
        a(f"v_mfma_f32_16x16x32_bf16 {vr(DH, 4)}, {vr(AOP + 12, 4)}, {vr(xt + 4, 4)}, {vr(DH, 4)}")
        a(f"s_mov_b32 s24, {LOG2E_NEG:#x}")
        a("s_mov_b32 s25, 0x7fff0000")
        a("s_mov_b32 s30, 0x7fffffff")
        a("s_nop 7")
        for i in range(4):
            a(f"v_mul_f32 v{DQ + i}, s24, v{DQ + i}")
        a(f"v_cvt_pk_bf16_f32 v{PK}, v{DQ}, v{DQ + 1}")
        a(f"v_cvt_pk_bf16_f32 v{PK + 1}, v{DQ + 2}, v{DQ + 3}")
        for i in range(4):
            q = DQ + i
            if i % 2 == 0:
                a(f"v_and_b32 v{q}, 0xffff, v{PK + i // 2}")
            else:
                a(f"v_lshrrev_b32 v{q}, 16, v{PK + i // 2}")
        for i in range(4):
            q, h = DQ + i, DH + i
            a(f"v_and_b32 v{PK + 2}, s30, v{h}")
            a(f"v_sub_u32 v{PK + 2}, v{PK + 2}, v{q}")
            a(f"v_add_u32 v{PK + 2}, 0x8000, v{PK + 2}")
            a(f"v_max_i32 v{PK + 2}, 0, v{PK + 2}")
            a(f"v_and_b32 v{h}, 0x80000000, v{h}")
            a(f"v_or_b32 v{h}, v{h}, v{q}")
            a(f"v_and_or_b32 v{h}, v{PK + 2}, s25, v{h}")
        a(f"v_cmp_ne_u32 vcc, -1, v{to}")
        a("s_and_saveexec_b64 s[32:33], vcc")
        a(f"s_cbranch_execz L1_nost{tag}")
        a(f"global_store_dwordx4 v{to}, {vr(DH, 4)}, {sr(WS)}")
        a.label(f"L1_nost{tag}")
        a("s_mov_b64 exec, s[32:33]")

    tr_weights(a, AOP, TRA, WST)
    a("s_waitcnt vmcnt(0) lgkmcnt(0)")
    t_task(XA, TA, "A")
    a("s_barrier")
    a(f"s_cmp_eq_u32 s{WAVE}, 15")
    a("s_cbranch_scc1 L1_scan")
    a(f"s_cmp_gt_u32 s{WAVE}, 11")
    a("s_cbranch_scc1 L1_b3")
    t_task(XB, TB, "B")
    a("s_branch L1_b3")
    a.label("L1_scan")
    C0 = 20
    a(f"v_lshlrev_b32 v{T0}, 4, v{LANE}")
    a(f"ds_read_b128 {vr(C0, 4)}, v{T0} offset:{HIST}")
    a("s_waitcnt lgkmcnt(0)")
    P = 24
    a(f"v_add_u32 v{P + 2}, v{C0}, v{C0 + 1}")
    a(f"v_add_u32 v{P + 3}, v{P + 2}, v{C0 + 2}")
    a(f"v_add_u32 v28, v{P + 3}, v{C0 + 3}")
    a("v_mov_b32 v29, v28")
    wave_scan(a, 29)
    a(f"v_sub_u32 v{P}, v29, v28")
    a(f"v_add_u32 v{P + 1}, v{P}, v{C0}")
    a(f"v_add_u32 v{P + 2}, v{P}, v{P + 2}")
    a(f"v_add_u32 v{P + 3}, v{P}, v{P + 3}")
    a(f"ds_write_b128 v{T0}, {vr(P, 4)} offset:{BASE}")
    a(f"s_lshl_b32 s24, s2, 2")
    a(f"s_add_u32 s24, s24, {SEG_OFF}")
    a(f"v_lshlrev_b32 v{T1}, 12, v{LANE}")
    a(f"v_add_u32 v{T1}, s24, v{T1}")
    for i in range(4):
        a(f"v_lshl_or_b32 v{30 + i}, v{C0 + i}, 16, v{P + i}")
    for i in range(4):
        a(f"global_store_dword v{T1}, v{30 + i}, {sr(WS)} offset:{i * 1024}")
    a("s_cmp_lg_u32 s2, 0")
    a("s_cbranch_scc1 L1_b3")
    a(f"v_mov_b32 v{T2}, 0")
    a(f"v_lshlrev_b32 v{T3}, 2, v{LANE}")
    a(f"v_add_u32 v{T3}, {N * 256}, v{T3}")
    a(f"global_store_dword v{T3}, v{T2}, {sr(WS)}")
    a.label("L1_b3")
    a("s_waitcnt lgkmcnt(0)")
    a("s_barrier")
    a(f"s_cmp_gt_u32 s{WAVE}, 12")
    a("s_cbranch_scc1 L1_noedge2")
    a(f"v_cmp_gt_u32 vcc, {EPC // 4}, v{TID}")
    a("s_and_saveexec_b64 s[32:33], vcc")
    for i in range(4):
        a(f"ds_read_b32 v{VD + i}, v{VB + i} offset:{BASE}")
    for i in range(4):
        a("s_waitcnt lgkmcnt(3)")
        a(f"v_add_u32 v{VD + i}, v{VD + i}, v{VR + i}")
        a(f"v_lshlrev_b32 v{VD + i}, 3, v{VD + i}")
        a(f"v_add_u32 v{VD + i}, {STG}, v{VD + i}")
        a(f"ds_write2_b32 v{VD + i}, v{VS + i}, v{VH + i} offset0:0 offset1:1")
    a("s_mov_b64 exec, s[32:33]")
    a.label("L1_noedge2")
    a("s_waitcnt lgkmcnt(0)")
    a("s_barrier")
    a(f"v_lshlrev_b32 v{T0}, 4, v{TID}")
    a(f"ds_read_b128 {vr(4, 4)}, v{T0} offset:{STG}")
    a(f"s_mul_i32 s24, s2, {EPC * 8}")
    a(f"s_add_u32 s24, s24, {REC_OFF}")
    a(f"v_add_u32 v{T1}, s24, v{T0}")
    a(f"s_cmp_gt_u32 s{WAVE}, 8")
    a("s_cbranch_scc1 L1_one")
    a(f"ds_read_b128 {vr(8, 4)}, v{T0} offset:{STG + 16384}")
    a("s_waitcnt lgkmcnt(0)")
    a(f"v_add_u32 v{T2}, 16384, v{T1}")
    a(f"global_store_dwordx4 v{T2}, {vr(8, 4)}, {sr(WS)}")
    a.label("L1_one")
    a("s_waitcnt lgkmcnt(0)")
    a(f"global_store_dwordx4 v{T1}, {vr(4, 4)}, {sr(WS)}")
    a.label("L1_end")
    a("s_endpgm")
    return LDS, 96


def gen_k2(a):
    HIST = 0
    SLOTB = HIST + 1024
    HIST2 = SLOTB + 1024
    BASE2 = HIST2 + 1024
    WCNT = BASE2 + 1024
    WKEY = WCNT + 1024
    WEND = WKEY + 1024
    MISC = WEND + 256
    WST = MISC + 256
    PL = WST + 16384
    AGG = PL + 25600
    LIST = AGG + 25600
    QCAP = 1024
    QPAD = 32
    LISTB = (QCAP + QPAD) * 32
    LDS = LIST + LISTB
    assert AGG + 64 * 256 < 65536

    TID, LANE = 0, 1
    T0, T1, T2, T3 = 2, 3, 4, 5
    RB = 6
    REM = 7
    RECS = 16
    RANK = 32
    VW_ = 40
    XA, XB = 44, 52
    AOP = 60
    DP, DU = 76, 80
    PA, PB = 84, 85
    TRA, TRB = 86, 87
    CV = 88
    ONE = 92
    WAVE = 22
    MASK = 40

    a(f".globl {K2}")
    a(".p2align 8")
    a(f".type {K2},@function")
    a.label(K2)
    a(f"s_cmp_ge_u32 s2, {NB}")
    a("s_cbranch_scc1 L2_end")
    load_ptrs(a)
    a(f"v_and_b32 v{LANE}, 63, v{TID}")
    a(f"v_lshrrev_b32 v{T0}, 6, v{TID}")
    a(f"v_lshlrev_b32 v{T1}, 2, v{TID}")
    a(f"v_readfirstlane_b32 s{WAVE}, v{T0}")
    a(f"v_mov_b32 v{T0}, 0")
    a(f"s_cmp_lt_u32 s{WAVE}, 4")
    a("s_cbranch_scc0 L2_nozero")
    a(f"ds_write_b32 v{T1}, v{T0} offset:{HIST}")
    a(f"ds_write_b32 v{T1}, v{T0} offset:{HIST2}")
    a.label("L2_nozero")
    a(f"s_cmp_eq_u32 s{WAVE}, 4")
    a("s_cbranch_scc0 L2_nozero2")
    a(f"v_lshlrev_b32 v{T2}, 2, v{LANE}")
    a(f"v_cmp_gt_u32 vcc, 16, v{LANE}")
    a("s_and_saveexec_b64 s[32:33], vcc")
    a(f"ds_write_b32 v{T2}, v{T0} offset:{MISC}")
    a("s_mov_b64 exec, s[32:33]")
    a.label("L2_nozero2")
    a("s_waitcnt lgkmcnt(0)")
    a("s_lshl_b32 s24, s2, 10")
    a(f"s_add_u32 s24, s24, {SEG_OFF}")
    a(f"v_and_b32 v{T0}, 0xfffffffc, v{TID}")
    a(f"v_add_u32 v{T0}, s24, v{T0}")
    a(f"global_load_dword v{T3}, v{T0}, {sr(WS)}")
    a(f"s_cmp_lt_u32 s{WAVE}, 8")
    a(f"s_cselect_b32 s24, s{GW}, s{UW}")
    a(f"s_cselect_b32 s25, s{GW + 1}, s{UW + 1}")
    a(f"v_and_b32 v{T0}, 511, v{TID}")
    a(f"v_lshlrev_b32 v{T0}, 4, v{T0}")
    a(f"global_load_dwordx4 {vr(VW_, 4)}, v{T0}, s[24:25]")
    a(f"v_and_b32 v{T0}, 15, v{LANE}")
    a(f"v_lshlrev_b32 v{T2}, 3, v{T0}")
    a(f"v_add_u32 v{T2}, {128 * 128}, v{T2}")
    a(f"global_load_dwordx2 {vr(CV + 2, 2)}, v{T2}, {sr(GW)}")
    a(f"v_lshrrev_b32 v{T1}, 4, v{LANE}")
    a(f"s_mul_i32 s28, s2, {NPB}")
    for ti, (xt, po, tra) in enumerate(((XA, PA, TRA), (XB, PB, TRB))):
        a(f"s_add_i32 s26, s{WAVE}, {14 if ti else -1}")
        a("s_max_i32 s26, s26, 0")
        a("s_min_i32 s26, s26, 27")
        a("s_and_b32 s27, s26, 3")
        a("s_lshr_b32 s26, s26, 2")
        a("s_lshl_b32 s29, s26, 4")
        a(f"v_add_u32 v{T2}, s29, v{T0}")
        a(f"v_min_u32 v{RB}, {NPB - 1}, v{T2}")
        a(f"v_add_u32 v{REM}, s28, v{RB}")
        a(f"v_lshlrev_b32 v{REM}, 7, v{REM}")
        a(f"v_lshl_add_u32 v{REM}, v{T1}, 4, v{REM}")
        a(f"global_load_dwordx4 {vr(xt, 4)}, v{REM}, {sr(X)}")
        a(f"global_load_dwordx4 {vr(xt + 4, 4)}, v{REM}, {sr(X)} offset:64")
        a(f"v_lshlrev_b32 v{po}, 8, v{RB}")
        a(f"v_lshl_add_u32 v{po}, v{T1}, 4, v{po}")
        a("s_lshl_b32 s30, s27, 6")
        a(f"v_add_u32 v{po}, s30, v{po}")
        a(f"v_cmp_gt_u32 vcc, {NPB}, v{T2}")
        a("s_nop 1")
        a(f"v_cndmask_b32 v{po}, -1, v{po}, vcc")
        a(f"v_lshrrev_b32 v{RB}, 2, v{T0}")
        a(f"v_lshl_add_u32 v{RB}, v{T1}, 3, v{RB}")
        a(f"v_lshlrev_b32 v{RB}, 7, v{RB}")
        a(f"v_and_b32 v{REM}, 3, v{T0}")
        a(f"v_lshl_add_u32 v{RB}, v{REM}, 3, v{RB}")
        a("s_lshl_b32 s30, s27, 5")
        a(f"v_add_u32 v{tra}, s30, v{RB}")
    a(f"v_mov_b32 v8, {N}")
    a("v_mov_b32 v9, 0")
    a(f"v_mov_b32 v10, {N}")
    a("v_mov_b32 v11, 0")
    a(f"v_lshlrev_b32 v{T2}, 4, v{TID}")
    a(f"v_add_u32 v{T2}, {LIST}, v{T2}")
    a(f"ds_write_b128 v{T2}, v[8:11]")
    a(f"ds_write_b128 v{T2}, v[8:11] offset:16384")
    assert LISTB == 32768 + 1024
    a(f"s_cmp_eq_u32 s{WAVE}, 0")
    a("s_cbranch_scc0 L2_nofill")
    a(f"ds_write_b128 v{T2}, v[8:11] offset:32768")
    a.label("L2_nofill")
    a("s_waitcnt vmcnt(6)")
    a(f"v_cmp_gt_u32 vcc, {NC * 4}, v{TID}")
    a("s_nop 1")
    a(f"v_cndmask_b32 v{T3}, 0, v{T3}, vcc")
    a(f"v_lshrrev_b32 v{REM}, 16, v{T3}")
    a(f"v_and_b32 v{T3}, 0xffff, v{T3}")
    a(f"v_cmp_lt_u32 s[56:57], 32, v{REM}")
    a(f"v_lshrrev_b32 v{RB}, 2, v{TID}")
    a(f"v_mul_u32_u24 v{RB}, {EPC}, v{RB}")
    a(f"v_add_u32 v{RB}, v{RB}, v{T3}")
    a(f"v_and_b32 v{T3}, 3, v{TID}")
    a(f"v_lshlrev_b32 v{T3}, 1, v{T3}")
    a(f"v_add_u32 v{RB}, v{RB}, v{T3}")
    a(f"v_lshlrev_b32 v{RB}, 3, v{RB}")
    a(f"v_add_u32 v{RB}, {REC_OFF}, v{RB}")
    a(f"v_sub_u32 v{REM}, v{REM}, v{T3}")
    for r in range(4):
        for s in range(2):
            m = MASK + 2 * (2 * r + s)
            a(f"v_cmp_gt_i32 {sr(m)}, v{REM}, {8 * r + s}")
    a("s_nop 4")
    for r in range(4):
        m = MASK + 4 * r
        a(f"s_mov_b64 exec, {sr(m)}")
        a(f"s_cbranch_execz L2_norec{r}")
        a(f"global_load_dwordx4 {vr(RECS + 4 * r, 4)}, v{RB}, {sr(WS)} offset:{64 * r}")
        a.label(f"L2_norec{r}")
    a("s_mov_b64 exec, -1")
    a(f"v_lshlrev_b32 v{T0}, 4, v{TID}")
    return dict(locals())


def gen_k2_rest(a, L):
    globals_ = L
    (PL, AGG, LIST, QCAP, WST, HIST, SLOTB, HIST2, BASE2, WCNT, WKEY, WEND, MISC, LDS) = (
        L[k] for k in "PL AGG LIST QCAP WST HIST SLOTB HIST2 BASE2 WCNT WKEY WEND MISC LDS".split())
    (TID, LANE, T0, T1, T2, T3, RB, REM, RECS, RANK, VW_, XA, XB, AOP, DP, DU, PA, PB, TRA, TRB, CV, ONE,
     WAVE, MASK) = (L[k] for k in
                    "TID LANE T0 T1 T2 T3 RB REM RECS RANK VW_ XA XB AOP DP DU PA PB TRA TRB CV ONE WAVE MASK".split())
    a("s_waitcnt vmcnt(0)")
    a(f"ds_write_b128 v{T0}, {vr(VW_, 4)} offset:{WST}")
    a("s_waitcnt lgkmcnt(0)")
    a("s_barrier")
    a("s_cmp_eq_u64 s[56:57], 0")
    a("s_cbranch_scc1 L2_noflag")
    a(f"v_mov_b32 v{T1}, 1")
    a(f"v_mov_b32 v{T2}, 0")
    a(f"ds_write_b32 v{T2}, v{T1} offset:{MISC}")
    a.label("L2_noflag")
    a(f"v_mov_b32 v{ONE}, 1")
    for r in range(4):
        for s in range(2):
            k = 2 * r + s
            m = MASK + 2 * k
            hi = RECS + 4 * r + 2 * s + 1
            a(f"s_mov_b64 exec, {sr(m)}")
            a(f"v_and_b32 v{T1}, 0xff, v{hi}")
            a(f"v_lshlrev_b32 v{T1}, 2, v{T1}")
            a(f"ds_add_rtn_u32 v{RANK + k}, v{T1}, v{ONE} offset:{HIST}")
    a("s_mov_b64 exec, -1")
    a(f"s_mov_b32 s24, {LOG2E_NEG:#x}")
    a(f"v_lshlrev_b32 v{CV}, 16, v{CV + 2}")
    a(f"v_and_b32 v{CV + 1}, 0xffff0000, v{CV + 2}")
    a(f"v_lshlrev_b32 v{CV + 2}, 16, v{CV + 3}")
    a(f"v_and_b32 v{CV + 3}, 0xffff0000, v{CV + 3}")
    for i in range(4):
        a(f"v_mul_f32 v{CV + i}, s24, v{CV + i}")
    a("s_waitcnt lgkmcnt(0)")
    a("s_barrier")
    a(f"s_cmp_eq_u32 s{WAVE}, 0")
    a("s_cbranch_scc1 L2_order")

    def pu_task(xt, po, tra, tag):
        tr_weights(a, AOP, tra, WST)
        a("s_waitcnt lgkmcnt(0)")
        a(f"v_mfma_f32_16x16x32_bf16 {vr(DP, 4)}, {vr(AOP, 4)}, {vr(xt, 4)}, 0")
        a(f"v_mfma_f32_16x16x32_bf16 {vr(DU, 4)}, {vr(AOP + 8, 4)}, {vr(xt, 4)}, 0")
        a(f"v_mfma_f32_16x16x32_bf16 {vr(DP, 4)}, {vr(AOP + 4, 4)}, {vr(xt + 4, 4)}, {vr(DP, 4)}")
        a(f"v_mfma_f32_16x16x32_bf16 {vr(DU, 4)}, {vr(AOP + 12, 4)}, {vr(xt + 4, 4)}, {vr(DU, 4)}")
        a(f"s_mov_b32 s24, {LOG2E_NEG:#x}")
        a(f"v_cmp_ne_u32 vcc, -1, v{po}")
        a("s_nop 7")
        for i in range(4):
            a(f"v_mul_f32 v{DP + i}, s24, v{DP + i}")
        a("s_and_saveexec_b64 s[32:33], vcc")
        a(f"ds_write_b128 v{po}, {vr(DP, 4)} offset:{PL}")
        a(f"ds_write_b128 v{po}, {vr(DU, 4)} offset:{AGG}")
        a("s_mov_b64 exec, s[32:33]")

    pu_task(XA, PA, TRA, "A")
    a(f"s_cmp_gt_u32 s{WAVE}, 13")
    a("s_cbranch_scc1 L2_b3")
    pu_task(XB, PB, TRB, "B")
    a("s_branch L2_b3")

    a.label("L2_order")
    CN, BN, RK = 16 + 80, 16 + 84, 16 + 88
    S0 = 108
    a(f"v_lshlrev_b32 v{T0}, 4, v{LANE}")
    a(f"ds_read_b128 {vr(CN, 4)}, v{T0} offset:{HIST}")
    a(f"v_mov_b32 v{T1}, 0")
    a(f"v_cmp_lt_u32 vcc, 24, v{LANE}")
    a("s_nop 1")
    a(f"v_addc_co_u32 v{T1}, vcc, 0, v{T1}, vcc")
    a(f"v_cmp_lt_u32 vcc, 49, v{LANE}")
    a("s_nop 1")
    a(f"v_addc_co_u32 v{T1}, vcc, 0, v{T1}, vcc")
    a(f"v_lshlrev_b32 v{T2}, 8, v{T1}")
    a(f"v_mov_b32 v{T3}, 1")
    a("s_waitcnt lgkmcnt(0)")
    for i in range(4):
        a(f"v_min_u32 v{BN + i}, 63, v{CN + i}")
        a(f"v_lshl_add_u32 v{BN + i}, v{BN + i}, 2, v{T2}")
        a(f"ds_add_rtn_u32 v{RK + i}, v{BN + i}, v{T3} offset:{HIST2}")
    a("s_waitcnt lgkmcnt(0)")
    a(f"ds_read_b128 {vr(S0, 4)}, v{T0} offset:{HIST2}")
    a("s_waitcnt lgkmcnt(0)")
    a(f"v_add_u32 v{S0 + 5}, v{S0}, v{S0 + 1}")
    a(f"v_add_u32 v{S0 + 6}, v{S0 + 5}, v{S0 + 2}")
    a(f"v_add_u32 v{S0 + 7}, v{S0 + 6}, v{S0 + 3}")
    a(f"v_mov_b32 v{S0 + 3}, v{S0 + 7}")
    wave_scan(a, S0 + 3)
    a(f"v_sub_u32 v{S0 + 4}, v{S0 + 3}, v{S0 + 7}")
    a(f"v_add_u32 v{S0 + 7}, v{S0 + 4}, v{S0 + 6}")
    a(f"v_add_u32 v{S0 + 6}, v{S0 + 4}, v{S0 + 5}")
    a(f"v_add_u32 v{S0 + 5}, v{S0 + 4}, v{S0}")
    a(f"ds_write_b128 v{T0}, {vr(S0 + 4, 4)} offset:{BASE2}")
    a("s_waitcnt lgkmcnt(0)")
    for i in range(4):
        a(f"ds_read_b32 v{S0 + i}, v{BN + i} offset:{BASE2}")
    a(f"v_lshlrev_b32 v{T2}, 2, v{LANE}")
    a(f"v_mul_u32_u24 v{T3}, 100, v{T1}")
    a(f"v_sub_u32 v{T2}, v{T2}, v{T3}")
    a(f"v_cmp_gt_u32 vcc, 2, v{T1}")
    a("s_nop 1")
    a(f"v_cndmask_b32 v{T2}, 0, v{T2}, vcc")
    a(f"v_lshlrev_b32 v{T2}, 8, v{T2}")
    a("s_waitcnt lgkmcnt(0)")
    for i in range(4):
        a(f"v_add_u32 v{RK + i}, v{RK + i}, v{S0 + i}")
        a(f"v_lshlrev_b32 v{S0 + i}, 2, v{RK + i}")
        a(f"v_add_u32 v{S0 + 4}, {256 * i}, v{T2}")
        a(f"ds_write_b32 v{S0 + i}, v{CN + i} offset:{WCNT}")
        a(f"ds_write_b32 v{S0 + i}, v{S0 + 4} offset:{WKEY}")
    a("s_waitcnt lgkmcnt(0)")
    a(f"ds_read_b128 {vr(S0, 4)}, v{T0} offset:{WCNT}")
    a("s_waitcnt lgkmcnt(0)")
    a(f"v_max3_u32 v{S0 + 4}, v{S0}, v{S0 + 1}, v{S0 + 2}")
    a(f"v_max_u32 v{S0 + 4}, v{S0 + 4}, v{S0 + 3}")
    a(f"v_mov_b32 v{S0 + 5}, v{S0 + 4}")
    wave_scan(a, S0 + 5)
    a(f"v_sub_u32 v{S0 + 6}, v{S0 + 5}, v{S0 + 4}")
    a(f"v_lshlrev_b32 v{T3}, 2, v{LANE}")
    a(f"ds_write_b32 v{T3}, v{S0 + 5} offset:{WEND}")
    a(f"v_readlane_b32 s24, v{S0 + 5}, 63")
    for i in range(4):
        a(f"v_and_b32 v{S0 + i}, 0xfffffffc, v{RK + i}")
        a(f"ds_bpermute_b32 v{CN + i}, v{S0 + i}, v{S0 + 6}")
    a(f"v_mov_b32 v{T3}, s24")
    a(f"v_mov_b32 v{T2}, 4")
    a(f"ds_write_b32 v{T2}, v{T3} offset:{MISC}")
    a("s_waitcnt lgkmcnt(0)")
    for i in range(4):
        a(f"v_and_b32 v{RK + i}, 3, v{RK + i}")
        a(f"v_lshlrev_b32 v{RK + i}, 3, v{RK + i}")
        a(f"v_lshl_add_u32 v{CN + i}, v{CN + i}, 5, v{RK + i}")
        a(f"v_add_u32 v{CN + i}, {LIST}, v{CN + i}")
    a(f"ds_write_b128 v{T0}, {vr(CN, 4)} offset:{SLOTB}")
    a.label("L2_b3")
    a("s_waitcnt lgkmcnt(0)")
    a("s_barrier")
    a(f"s_mov_b32 s36, s{WS}")
    a(f"s_and_b32 s37, s{WS + 1}, 0xffff")
    a("s_or_b32 s37, s37, 0x1000000")
    a(f"s_mov_b32 s38, {N + 1}")
    a("s_mov_b32 s39, 0x20000")
    a(f"v_mov_b32 v{T0}, 0")
    a(f"ds_read_b64 {vr(T2, 2)}, v{T0} offset:{MISC}")
    a("s_waitcnt lgkmcnt(0)")
    a(f"v_readfirstlane_b32 s24, v{T2}")
    a(f"v_readfirstlane_b32 s60, v{T3}")
    a("s_nop 3")
    a("s_cmp_lg_u32 s24, 0")
    a("s_cbranch_scc1 L2_slow")
    a(f"s_cmp_gt_u32 s60, {QCAP}")
    a("s_cbranch_scc1 L2_slow")
    for r in range(4):
        for s in range(2):
            k = 2 * r + s
            m = MASK + 2 * k
            lo = RECS + 4 * r + 2 * s
            hi = lo + 1
            a(f"s_mov_b64 exec, {sr(m)}")
            a(f"v_and_b32 v{T1}, 0xff, v{hi}")
            a(f"v_lshlrev_b32 v{T1}, 2, v{T1}")
            a(f"ds_read_b32 v{AOP + k}, v{T1} offset:{SLOTB}")
            a(f"v_and_b32 v{hi}, 0xffff0000, v{hi}")
    a("s_waitcnt lgkmcnt(0)")
    for r in range(4):
        for s in range(2):
            k = 2 * r + s
            m = MASK + 2 * k
            lo = RECS + 4 * r + 2 * s
            hi = lo + 1
            a(f"s_mov_b64 exec, {sr(m)}")
            a(f"v_lshl_add_u32 v{AOP + k}, v{RANK + k}, 5, v{AOP + k}")
            a(f"ds_write_b64 v{AOP + k}, {vr(lo, 2)}")
    a("s_mov_b64 exec, -1")
    a("s_waitcnt lgkmcnt(0)")
    a("s_barrier")

    ASEL = 8
    PR = 12
    ACC = 16
    D = 20
    VB = 24
    IX = 40
    EV = 48
    VL = 52
    VN = 53
    VWE = 54
    VG4 = 55
    VJ = 56
    SQ, SQ1, SNX, SWE = 61, 62, 63, 64
    a(f"v_and_b32 v{T0}, 15, v{LANE}")
    a(f"v_lshrrev_b32 v{T1}, 4, v{LANE}")
    a(f"v_lshlrev_b32 v{VJ}, 4, v{T0}")
    for k in range(4):
        a(f"v_mov_b32 v{IX + 2 * k + 1}, v{VJ}")
    a(f"v_lshlrev_b32 v{VG4}, 2, v{T1}")
    a(f"v_lshrrev_b32 v{T2}, 2, v{T0}")
    a(f"v_cmp_eq_u32 vcc, v{T2}, v{T1}")
    a(f"v_mov_b32 v{T3}, 0x3f80")
    a("s_nop 0")
    a(f"v_cndmask_b32 v{T3}, 0, v{T3}, vcc")
    a(f"v_and_b32 v{T2}, 3, v{T0}")
    for q in range(4):
        a(f"v_cmp_eq_u32 vcc, {q}, v{T2}")
        a("s_nop 1")
        a(f"v_cndmask_b32 v{ASEL + q}, 0, v{T3}, vcc")
    a(f"s_mul_i32 s24, s60, s{WAVE}")
    a(f"s_lshr_b32 s{SQ}, s24, 4")
    a("s_add_u32 s24, s24, s60")
    a(f"s_lshr_b32 s{SQ1}, s24, 4")
    a(f"s_cmp_ge_u32 s{SQ}, s{SQ1}")
    a("s_cbranch_scc1 L2_done")
    a(f"v_lshlrev_b32 v{T2}, 2, v{LANE}")
    a(f"ds_read_b32 v{VWE}, v{T2} offset:{WEND}")
    a(f"s_lshl_b32 s24, s{SQ}, 5")
    a(f"s_add_u32 s24, s24, {LIST}")
    a(f"v_lshl_add_u32 v{VL}, v{T1}, 3, s24")
    for k in range(4):
        a(f"ds_read_b32 v{IX + 2 * k}, v{VL} offset:{32 * k}")
        a(f"ds_read_b32 v{EV + k}, v{VL} offset:{32 * k + 4}")
    a("s_mov_b32 s66, 1.0")
    a("s_mov_b32 s67, 1.0")
    a("s_waitcnt lgkmcnt(0)")
    for k in range(4):
        a(f"buffer_load_dwordx4 {vr(VB + 4 * k, 4)}, {vr(IX + 2 * k, 2)}, s[36:39], 0 idxen offen")

    def new_window():
        a(f"v_cmp_lt_u32 vcc, s{SQ}, v{VWE}")
        a("s_nop 1")
        a("s_ff1_i32_b64 s24, vcc")
        a("s_nop 0")
        a(f"v_readlane_b32 s{SWE}, v{VWE}, s24")
        a("s_lshl_b32 s25, s24, 4")
        a(f"v_add_u32 v{T2}, s25, v{VG4}")
        a(f"ds_read_b32 v{VN}, v{T2} offset:{WKEY}")
        for i in range(4):
            a(f"v_mov_b32 v{ACC + i}, 0")
        a(f"s_min_u32 s{SNX}, s{SWE}, s{SQ1}")
        a("s_waitcnt lgkmcnt(0)")
        a(f"v_add_u32 v{VN}, v{VN}, v{VJ}")
        a(f"ds_read_b128 {vr(PR, 4)}, v{VN} offset:{PL}")
        a("s_waitcnt lgkmcnt(0)")

    def flush():
        for i in range(4):
            a(f"ds_add_f32 v{VN}, v{ACC + i} offset:{AGG + 4 * i}")

    new_window()
    a.label("L2_loop")
    for k in range(4):
        vb = VB + 4 * k
        ix = IX + 2 * k
        ev = EV + k
        epair = EV + (k & ~1)
        osel = "op_sel:[1,0,0] op_sel_hi:[1,1,1]" if k & 1 else "op_sel_hi:[0,1,1]"
        a(f"s_cmp_ge_u32 s{SQ}, s{SNX}")
        a(f"s_cbranch_scc1 L2_bound{k}")
        a.label(f"L2_cont{k}")
        a("s_waitcnt vmcnt(3)")
        a(f"v_mfma_f32_16x16x32_bf16 {vr(D, 4)}, {vr(ASEL, 4)}, {vr(vb, 4)}, {vr(PR, 4)}")
        a(f"ds_read_b32 v{ix}, v{VL} offset:{128 + 32 * k}")
        a(f"s_add_u32 s{SQ}, s{SQ}, 1")
        a("s_nop 6")
        a(f"v_pk_fma_f32 {vr(D, 2)}, {vr(epair, 2)}, {vr(CV, 2)}, {vr(D, 2)} {osel}")
        a(f"v_pk_fma_f32 {vr(D + 2, 2)}, {vr(epair, 2)}, {vr(CV + 2, 2)}, {vr(D + 2, 2)} {osel}")
        a(f"ds_read_b32 v{ev}, v{VL} offset:{128 + 32 * k + 4}")
        for i in range(4):
            a(f"v_exp_f32 v{D + i}, v{D + i}")
        a(f"v_pk_add_f32 {vr(D, 2)}, {vr(D, 2)}, s[66:67]")
        a(f"v_pk_add_f32 {vr(D + 2, 2)}, {vr(D + 2, 2)}, s[66:67]")
        for i in range(4):
            a(f"v_rcp_f32 v{D + i}, v{D + i}")
        a(f"v_pk_fma_f32 {vr(ACC, 2)}, {vr(D, 2)}, {vr(vb, 2)}, {vr(ACC, 2)}")
        a(f"v_pk_fma_f32 {vr(ACC + 2, 2)}, {vr(D + 2, 2)}, {vr(vb + 2, 2)}, {vr(ACC + 2, 2)}")
        a("s_waitcnt lgkmcnt(1)")
        a(f"buffer_load_dwordx4 {vr(vb, 4)}, {vr(ix, 2)}, s[36:39], 0 idxen offen")
        if k == 3:
            a(f"v_add_u32 v{VL}, 128, v{VL}")
            a("s_branch L2_loop")
    for k in range(4):
        a.label(f"L2_bound{k}")
        flush()
        a(f"s_cmp_ge_u32 s{SQ}, s{SQ1}")
        a("s_cbranch_scc1 L2_done")
        new_window()
        a(f"s_branch L2_cont{k}")

    a.label("L2_slow")
    SC, SCN, SI = 61, 62, 63
    a(f"v_lshlrev_b32 v{T0}, 2, v{LANE}")
    a(f"v_lshlrev_b32 v{T1}, 1, v{LANE}")
    a(f"v_add_u32 v{T1}, {128 * 128}, v{T1}")
    a(f"global_load_ushort v{T2}, v{T1}, {sr(GW)}")
    a(f"s_mov_b32 s24, {LOG2E_NEG:#x}")
    a("s_waitcnt vmcnt(0)")
    a(f"v_lshlrev_b32 v{T2}, 16, v{T2}")
    a(f"v_mul_f32 v8, s24, v{T2}")
    a(f"s_mov_b32 s{SC}, s{WAVE}")
    a.label("L2_slow_seg")
    a(f"s_cmp_ge_u32 s{SC}, {NC}")
    a("s_cbranch_scc1 L2_done")
    a("s_lshl_b32 s24, s2, 8")
    a(f"s_add_u32 s24, s24, s{SC}")
    a("s_lshl_b32 s24, s24, 2")
    a(f"s_add_u32 s24, s24, {SEG_OFF}")
    a(f"v_mov_b32 v{T1}, s24")
    a(f"global_load_dword v{T2}, v{T1}, {sr(WS)}")
    a("s_waitcnt vmcnt(0)")
    a(f"v_readfirstlane_b32 s25, v{T2}")
    a("s_nop 3")
    a(f"s_lshr_b32 s{SCN}, s25, 16")
    a("s_and_b32 s25, s25, 0xffff")
    a(f"s_mul_i32 s26, s{SC}, {EPC}")
    a("s_add_u32 s26, s26, s25")
    a("s_lshl_b32 s26, s26, 3")
    a(f"s_add_u32 s{SI}, s26, {REC_OFF}")
    a.label("L2_slow_rec")
    a(f"s_cmp_eq_u32 s{SCN}, 0")
    a("s_cbranch_scc1 L2_slow_next")
    a(f"v_mov_b32 v{T1}, s{SI}")
    a(f"global_load_dwordx2 v[10:11], v{T1}, {sr(WS)}")
    a("s_waitcnt vmcnt(0)")
    a("v_mov_b32 v18, v10")
    a(f"v_mov_b32 v19, v{T0}")
    a("buffer_load_dword v13, v[18:19], s[36:39], 0 idxen offen")
    a("v_and_b32 v14, 0xff, v11")
    a("v_subrev_u32 v15, 100, v14")
    a("v_cmp_le_u32 vcc, 100, v14")
    a("s_nop 1")
    a("v_cndmask_b32 v14, v14, v15, vcc")
    a(f"v_lshl_add_u32 v14, v14, 8, v{T0}")
    a(f"ds_read_b32 v15, v14 offset:{PL}")
    a("v_and_b32 v11, 0xffff0000, v11")
    a("s_waitcnt vmcnt(0) lgkmcnt(0)")
    a("v_lshlrev_b32 v16, 16, v13")
    a("v_add_f32 v16, v16, v15")
    a("v_fmac_f32 v16, v11, v8")
    a("v_exp_f32 v16, v16")
    a("s_nop 0")
    a("v_add_f32 v16, 1.0, v16")
    a("v_rcp_f32 v16, v16")
    a("s_nop 0")
    a("v_mul_f32 v16, v16, v13")
    a(f"ds_add_f32 v14, v16 offset:{AGG}")
    a(f"s_add_u32 s{SI}, s{SI}, 8")
    a(f"s_sub_u32 s{SCN}, s{SCN}, 1")
    a("s_branch L2_slow_rec")
    a.label("L2_slow_next")
    a(f"s_add_u32 s{SC}, s{SC}, 16")
    a("s_branch L2_slow_seg")

    a.label("L2_done")
    a("s_waitcnt vmcnt(0) lgkmcnt(0)")
    a("s_barrier")
    a(f"v_lshrrev_b32 v{T0}, 4, v{TID}")
    a(f"v_and_b32 v{T1}, 15, v{TID}")
    a(f"v_lshlrev_b32 v{T2}, 8, v{T0}")
    a(f"v_lshl_add_u32 v{T2}, v{T1}, 4, v{T2}")
    a(f"s_mul_i32 s24, s2, {NPB * 128}")
    a(f"v_lshlrev_b32 v{T3}, 7, v{T0}")
    a(f"v_lshl_add_u32 v{T3}, v{T1}, 3, v{T3}")
    a(f"v_add_u32 v{T3}, s24, v{T3}")
    a(f"s_mov_b32 s24, {LOG2E_NEG:#x}")

    def silu_store(src, off, tag):
        for i in range(4):
            a(f"v_mul_f32 v{src + 4 + i}, s24, v{src + i}")
        for i in range(4):
            a(f"v_exp_f32 v{src + 4 + i}, v{src + 4 + i}")
        a("s_nop 0")
        for i in range(4):
            a(f"v_add_f32 v{src + 4 + i}, 1.0, v{src + 4 + i}")
        for i in range(4):
            a(f"v_rcp_f32 v{src + 4 + i}, v{src + 4 + i}")
        a("s_nop 0")
        for i in range(4):
            a(f"v_mul_f32 v{src + i}, v{src + i}, v{src + 4 + i}")
        a(f"v_cvt_pk_bf16_f32 v{src + 4}, v{src}, v{src + 1}")
        a(f"v_cvt_pk_bf16_f32 v{src + 5}, v{src + 2}, v{src + 3}")
        a(f"global_store_dwordx2 v{off}, {vr(src + 4, 2)}, {sr(OUT)}")

    a(f"ds_read_b128 v[8:11], v{T2} offset:{AGG}")
    a(f"s_cmp_lt_u32 s{WAVE}, 9")
    a("s_cbranch_scc0 L2_ep1")
    a(f"ds_read_b128 v[16:19], v{T2} offset:{AGG + 64 * 256}")
    a("s_waitcnt lgkmcnt(0)")
    a(f"v_add_u32 v6, {64 * 128}, v{T3}")
    silu_store(16, 6, "b")
    a.label("L2_ep1")
    a("s_waitcnt lgkmcnt(0)")
    silu_store(8, T3, "a")
    a.label("L2_end")
    a("s_endpgm")
    return LDS, 128


def descriptor(a, name, vgprs, sgprs=80):
    a(f".amdhsa_kernel {name}")
    a(f"  .amdhsa_next_free_vgpr {vgprs}")
    a(f"  .amdhsa_next_free_sgpr {sgprs}")
    a(f"  .amdhsa_accum_offset {vgprs}")
    a("  .amdhsa_group_segment_fixed_size 0")
    a("  .amdhsa_kernarg_size 80")
    a("  .amdhsa_user_sgpr_count 2")
    a("  .amdhsa_user_sgpr_kernarg_segment_ptr 1")
    a("  .amdhsa_system_sgpr_workgroup_id_x 1")
    a("  .amdhsa_float_denorm_mode_32 3")
    a(".end_amdhsa_kernel")


def main():
    body = Asm()
    body(".amdgcn_target \"amdgcn-amd-amdhsa--gfx950\"")
    body(".text")
    lds1, v1 = gen_k1(body)
    L = gen_k2(body)
    lds2, v2 = gen_k2_rest(body, L)
    body(".section .rodata,\"a\"")
    body(".p2align 6")
    descriptor(body, K1, v1)
    body(".p2align 6")
    descriptor(body, K2, v2)
    head = [
        "; Edge-gated MPNN layer in two launches (generated by a hand-written generator script).",
        "; launch 1: partitions the edges by destination bucket and builds the per-node source table",
        "; launch 2: per bucket of 100 nodes: sorts its edges, gated aggregation, SiLU epilogue",
        f"; @launch kernel={K1} grid=({NC},1,1) block=(1024,1,1) lds={lds1}",
        f"; @launch kernel={K2} grid=({NB},1,1) block=(1024,1,1) lds={lds2}",
    ]
    out = "\n".join(head) + "\n" + body.text()
    path = sys.argv[1] if len(sys.argv) > 1 else "standalone__edge_featured_mpnn_egc__graph.s"
    open(path, "w").write(out)
    print("wrote", path, "lds", lds1, lds2)


if __name__ == "__main__":
    main()
```

```python
import os
import sys

N = 25000
E = 800000
NB = 250
NPB = 100
NC = 250
EPC = 3200
HALF = 12500

T_OFF = 0
REC_OFF = 0x700000
SEG_OFF = 0xE00000

LOG2E_NEG = 0xBFB8AA3B
ROW = 272
XROW = 144

K1 = "egc_part_kernel"
K2 = "standalone__edge_featured_mpnn_egc__graph_kernel"

OPT = set(os.environ.get("OPT", "").split(","))
STAMPS = False
STAMP_OFF = 0x1000000
SV = 127

X, EA, SRC, DST, UW, VW, GW, OUT, WS = 4, 6, 8, 10, 12, 14, 16, 18, 20
WAVE = 22


def stamp(a, i, real=False):
    if not STAMPS:
        return
    a(f"s_mem{'real' if real else ''}time s[70:71]")
    a("s_waitcnt lgkmcnt(0)")
    a(f"v_writelane_b32 v{SV}, s70, {i}")


def stamp_flush(a, which):
    if not STAMPS:
        return
    a("s_lshl_b32 s72, s2, 4")
    a(f"s_add_u32 s72, s72, s{WAVE}")
    a("s_lshl_b32 s72, s72, 8")
    a(f"s_add_u32 s72, s72, {STAMP_OFF + which * 0x200000}")
    a("v_and_b32 v126, 63, v0")
    a("v_lshlrev_b32 v126, 2, v126")
    a("v_add_u32 v126, s72, v126")
    a(f"global_store_dword v126, v{SV}, s[20:21]")


class Asm:
    def __init__(self):
        self.lines = []

    def __call__(self, s=""):
        for ln in s.split("\n"):
            self.lines.append(ln if ln.strip().endswith(":") else "    " + ln.strip())

    def label(self, s):
        self.lines.append(s + ":")

    def text(self):
        return "\n".join(self.lines) + "\n"


def vr(a, n):
    return f"v[{a}:{a + n - 1}]"


def sr(a, n=2):
    return f"s[{a}:{a + n - 1}]"


def wave_scan(a, v):
    for sh in (1, 2, 4, 8):
        a("s_nop 1")
        a(f"v_add_u32_dpp v{v}, v{v}, v{v} row_shr:{sh} row_mask:0xf bank_mask:0xf bound_ctrl:0")
    a("s_nop 1")
    a(f"v_add_u32_dpp v{v}, v{v}, v{v} row_bcast:15 row_mask:0xa bank_mask:0xf")
    a("s_nop 1")
    a(f"v_add_u32_dpp v{v}, v{v}, v{v} row_bcast:31 row_mask:0xc bank_mask:0xf")
    a("s_nop 1")


WSBASE = int(os.environ.get("WSBASE", "0"), 0)


def load_ptrs(a):
    a("s_load_dwordx16 s[4:19], s[0:1], 0")
    a("s_load_dwordx2 s[20:21], s[0:1], 72")


def fix_ws(a):
    if WSBASE:
        a(f"s_add_u32 s20, s20, {WSBASE}")
        a("s_addc_u32 s21, s21, 0")


ST = ""
STT = ""
STR_ = ""


class Node:
    def __init__(self, a, WST, XST, tid, lane, vw, vx, t):
        self.a, self.WST, self.XST = a, WST, XST
        self.tid, self.lane, self.vw, self.vx, self.t = tid, lane, vw, vx, t

    def issue_loads(self, p0, off0, p1):
        a, t = self.a, self.t
        a(f"s_cmp_lt_u32 s{WAVE}, 8")
        a(f"s_cselect_b32 s24, s{p0}, s{p1}")
        a(f"s_cselect_b32 s25, s{p0 + 1}, s{p1 + 1}")
        if off0:
            a(f"s_cselect_b32 s26, {off0}, 0")
            a("s_add_u32 s24, s24, s26")
            a("s_addc_u32 s25, s25, 0")
        a(f"v_and_b32 v{t}, 511, v{self.tid}")
        a(f"v_lshlrev_b32 v{t}, 4, v{t}")
        a(f"global_load_dwordx4 {vr(self.vw, 4)}, v{t}, s[24:25]")
        a(f"v_min_u32 v{t}, {NPB * 8 - 1}, v{self.tid}")
        a(f"v_lshlrev_b32 v{t}, 4, v{t}")
        a(f"s_mul_i32 s26, s2, {NPB * 128}")
        a(f"v_add_u32 v{t}, s26, v{t}")
        a(f"global_load_dwordx4 {vr(self.vx, 4)}, v{t}, {sr(X)}")

    def stage(self):
        a, t, tid = self.a, self.t, self.tid
        a(f"v_bfe_u32 v{t}, v{tid}, 4, 1")
        a(f"v_bfe_u32 v{t + 1}, v{tid}, 6, 1")
        a(f"v_lshl_or_b32 v{t}, v{t + 1}, 1, v{t}")
        a(f"v_lshlrev_b32 v{t}, 5, v{t}")
        a(f"v_lshlrev_b32 v{t + 1}, 4, v{tid}")
        a(f"v_xor_b32 v{t}, v{t}, v{t + 1}")
        a(f"v_add_u32 v{t}, {self.WST}, v{t}")
        a(f"ds_write_b128 v{t}, {vr(self.vw, 4)}")
        a(f"v_lshrrev_b32 v{t}, 3, v{tid}")
        a(f"v_mul_u32_u24 v{t}, {XROW}, v{t}")
        a(f"v_and_b32 v{t + 1}, 7, v{tid}")
        a(f"v_lshl_add_u32 v{t}, v{t + 1}, 4, v{t}")
        a(f"v_add_u32 v{t}, {self.XST}, v{t}")
        a(f"v_cmp_gt_u32 vcc, {NPB * 8}, v{tid}")
        a("s_and_saveexec_b64 s[32:33], vcc")
        a(f"ds_write_b128 v{t}, {vr(self.vx, 4)}")
        a("s_mov_b64 exec, s[32:33]")

    def pair_reads(self, aop, xop, vloc):
        a, t, lane = self.a, self.t, self.lane
        a(f"s_and_b32 s27, s{WAVE}, 1")
        a("s_lshl_b32 s27, s27, 1")
        a(f"s_lshr_b32 s26, s{WAVE}, 1")
        a(f"v_and_b32 v{t}, 15, v{lane}")
        a(f"v_lshrrev_b32 v{t + 1}, 4, v{lane}")
        a("s_lshl_b32 s26, s26, 4")
        a(f"v_add_u32 v{vloc}, s26, v{t}")
        a(f"v_mul_u32_u24 v{t + 2}, {XROW}, v{vloc}")
        a(f"v_lshl_add_u32 v{t + 2}, v{t + 1}, 4, v{t + 2}")
        a(f"v_add_u32 v{t + 2}, {self.XST}, v{t + 2}")
        a(f"ds_read_b128 {vr(xop, 4)}, v{t + 2}")
        a(f"ds_read_b128 {vr(xop + 4, 4)}, v{t + 2} offset:64")
        a(f"v_lshrrev_b32 v{t + 2}, 3, v{t}")
        a(f"v_and_b32 v{xop + 8}, 1, v{t + 1}")
        a(f"v_lshl_or_b32 v{t + 2}, v{xop + 8}, 1, v{t + 2}")
        a(f"v_xor_b32 v{t + 2}, s27, v{t + 2}")
        a(f"v_lshlrev_b32 v{t + 2}, 5, v{t + 2}")
        a(f"v_lshrrev_b32 v{xop + 8}, 2, v{t}")
        a(f"v_lshl_add_u32 v{xop + 8}, v{t + 1}, 3, v{xop + 8}")
        a(f"v_lshl_add_u32 v{t + 2}, v{xop + 8}, 7, v{t + 2}")
        a(f"v_and_b32 v{xop + 8}, 3, v{t}")
        a(f"v_lshl_add_u32 v{t + 2}, v{xop + 8}, 3, v{t + 2}")
        a(f"v_add_u32 v{t + 2}, {self.WST}, v{t + 2}")
        assert self.WST % 128 == 0
        for c in range(2):
            if c:
                a(f"v_xor_b32 v{t + 2}, 32, v{t + 2}")
            for m in range(2):
                for ks in range(2):
                    for hh in range(2):
                        r = aop + c * 16 + (m * 2 + ks) * 4 + hh * 2
                        a(f"ds_read_b64_tr_b16 {vr(r, 2)}, v{t + 2} offset:{m * 8192 + ks * 4096 + hh * 512}")

    def pair_mfma(self, aop, xop, dd):
        a = self.a
        for ks in range(2):
            for c in range(2):
                for m in range(2):
                    d = dd + (c * 2 + m) * 4
                    cop = "0" if ks == 0 else vr(d, 4)
                    a(f"v_mfma_f32_16x16x32_bf16 {vr(d, 4)}, {vr(aop + c * 16 + (m * 2 + ks) * 4, 4)}, {vr(xop + 4 * ks, 4)}, {cop}")


def copy_out(a, lds_addr_fn, goff_sgpr, t0, t1, d0, d1, tag):
    ST = STT if tag == "t" else STR_
    lds_addr_fn(0, t1)
    a(f"ds_read_b128 {vr(d0, 4)}, v{t1}")
    a(f"v_lshlrev_b32 v{t0}, 4, v0")
    a(f"v_add_u32 v{t0}, s{goff_sgpr}, v{t0}")
    a(f"s_cmp_gt_u32 s{WAVE}, 8")
    a(f"s_cbranch_scc1 L1_one{tag}")
    a(f"v_add_u32 v{t1}, 1024, v0")
    lds_addr_fn(t1, t1)
    a(f"ds_read_b128 {vr(d1, 4)}, v{t1}")
    a(f"v_add_u32 v{t1}, 16384, v{t0}")
    a("s_waitcnt lgkmcnt(0)")
    a(f"global_store_dwordx4 v{t1}, {vr(d1, 4)}, {sr(WS)}{ST}")
    a.label(f"L1_one{tag}")
    a("s_waitcnt lgkmcnt(0)")
    a(f"global_store_dwordx4 v{t0}, {vr(d0, 4)}, {sr(WS)}{ST}")


def gen_k1(a):
    HIST, BASE = 0, 1024
    WST = 2048
    XST = WST + 16384
    TST = XST + 112 * XROW
    STG = TST + NPB * ROW
    LDS = STG + EPC * 8
    TID, LANE = 0, 1
    T0, T1, T2, T3 = 2, 3, 14, 15
    VD, VS, VE = 4, 8, 12
    VW_, VX_ = 16, 20
    XOP = 24
    AOP = 36
    DD = 68
    PK = 84
    VLOC = 87
    VB, VR, VH = 88, 92, 96
    NT = 100
    nd = Node(a, WST, XST, TID, LANE, VW_, VX_, NT)

    a(f".globl {K1}")
    a(".p2align 8")
    a(f".type {K1},@function")
    a.label(K1)
    a(f"s_cmp_ge_u32 s2, {NC}")
    a("s_cbranch_scc1 L1_end")
    stamp(a, 0)
    stamp(a, 20, True)
    load_ptrs(a)
    a(f"v_and_b32 v{LANE}, 63, v{TID}")
    a(f"v_lshrrev_b32 v{T0}, 6, v{TID}")
    a(f"v_lshlrev_b32 v{T1}, 2, v{TID}")
    a(f"v_readfirstlane_b32 s{WAVE}, v{T0}")
    a(f"v_mov_b32 v{T0}, 0")
    a(f"s_cmp_lt_u32 s{WAVE}, 4")
    a("s_cbranch_scc0 L1_nozero")
    a(f"ds_write_b32 v{T1}, v{T0} offset:{HIST}")
    a.label("L1_nozero")
    a("s_waitcnt lgkmcnt(0)")
    fix_ws(a)
    stamp(a, 1)
    nd.issue_loads(GW, 8192, VW)
    a("s_barrier")
    a(f"s_cmp_gt_u32 s{WAVE}, 12")
    a("s_cbranch_scc1 L1_noedge0")
    a(f"s_mul_i32 s24, s2, {EPC * 4}")
    a(f"v_lshlrev_b32 v{T0}, 4, v{TID}")
    a(f"v_add_u32 v{T0}, s24, v{T0}")
    a(f"v_lshrrev_b32 v{T1}, 1, v{T0}")
    a(f"v_cmp_gt_u32 vcc, {EPC // 4}, v{TID}")
    a("s_and_saveexec_b64 s[32:33], vcc")
    a(f"global_load_dwordx4 {vr(VD, 4)}, v{T0}, {sr(DST)}")
    a(f"global_load_dwordx4 {vr(VS, 4)}, v{T0}, {sr(SRC)}")
    a(f"global_load_dwordx2 {vr(VE, 2)}, v{T1}, {sr(EA)}")
    a("s_mov_b64 exec, s[32:33]")
    a("s_waitcnt vmcnt(3)")
    a("s_branch L1_wx")
    a.label("L1_noedge0")
    a("s_waitcnt vmcnt(0)")
    a.label("L1_wx")
    stamp(a, 2)
    nd.stage()
    a("s_waitcnt lgkmcnt(0)")
    a("s_barrier")
    stamp(a, 3)
    a(f"s_cmp_gt_u32 s{WAVE}, 13")
    a("s_cbranch_scc1 L1_notask")
    nd.pair_reads(AOP, XOP, VLOC)
    a(f"v_mul_u32_u24 v{T0}, {ROW}, v{VLOC}")
    a(f"v_lshrrev_b32 v{T1}, 4, v{LANE}")
    a(f"v_lshl_add_u32 v{T0}, v{T1}, 4, v{T0}")
    a("s_lshl_b32 s30, s27, 6")
    a(f"s_add_u32 s30, s30, {TST}")
    a(f"v_add_u32 v{T0}, s30, v{T0}")
    a(f"s_mov_b32 s24, {LOG2E_NEG:#x}")
    a("s_mov_b32 s25, 0x7fff0000")
    a("s_mov_b32 s30, 0x7fffffff")
    a(f"v_cmp_gt_u32 vcc, {NPB}, v{VLOC}")
    a("s_waitcnt lgkmcnt(0)")
    nd.pair_mfma(AOP, XOP, DD)
    a("s_nop 5")
    for c in range(2):
        DQ, DH = DD + c * 8, DD + c * 8 + 4
        if c == 1:
            pass
        for i in range(4):
            a(f"v_mul_f32 v{DQ + i}, s24, v{DQ + i}")
        a(f"v_cvt_pk_bf16_f32 v{PK}, v{DQ}, v{DQ + 1}")
        a(f"v_cvt_pk_bf16_f32 v{PK + 1}, v{DQ + 2}, v{DQ + 3}")
        for i in range(4):
            q = DQ + i
            if i % 2 == 0:
                a(f"v_and_b32 v{q}, 0xffff, v{PK + i // 2}")
            else:
                a(f"v_lshrrev_b32 v{q}, 16, v{PK + i // 2}")
        for i in range(4):
            q, h = DQ + i, DH + i
            a(f"v_and_b32 v{PK + 2}, s30, v{h}")
            a(f"v_sub_u32 v{PK + 2}, v{PK + 2}, v{q}")
            a(f"v_add_u32 v{PK + 2}, 0x8000, v{PK + 2}")
            a(f"v_max_i32 v{PK + 2}, 0, v{PK + 2}")
            a(f"v_and_b32 v{h}, 0x80000000, v{h}")
            a(f"v_or_b32 v{h}, v{h}, v{q}")
            a(f"v_and_or_b32 v{h}, v{PK + 2}, s25, v{h}")
        a("s_and_saveexec_b64 s[32:33], vcc")
        a(f"ds_write_b128 v{T0}, {vr(DH, 4)} offset:{c * 64}")
        a("s_mov_b64 exec, s[32:33]")
    a.label("L1_notask")
    a("s_waitcnt lgkmcnt(0)")
    stamp(a, 4)
    a("s_barrier")

    a(f"s_sub_u32 s24, s{WAVE}, 13")
    a("s_cmp_lt_u32 s24, 2")
    a("s_cbranch_scc0 L1_not")
    a(f"v_lshrrev_b32 v{T0}, 4, v{LANE}")
    a(f"v_mul_u32_u24 v{T0}, {ROW}, v{T0}")
    a(f"v_and_b32 v{T1}, 15, v{LANE}")
    a(f"v_lshl_add_u32 v{T0}, v{T1}, 4, v{T0}")
    a(f"s_mul_i32 s25, s24, {13 * 4 * ROW}")
    a(f"s_add_u32 s25, s25, {TST}")
    a(f"v_add_u32 v{T0}, s25, v{T0}")
    a(f"s_mul_i32 s26, s2, {NPB * 256}")
    a(f"s_mul_i32 s25, s24, {13 * 1024}")
    a("s_add_u32 s26, s26, s25")
    a(f"v_lshlrev_b32 v{T1}, 4, v{LANE}")
    a(f"v_add_u32 v{T1}, s26, v{T1}")
    for n in range(12):
        a(f"ds_read_b128 {vr(16 + 4 * n, 4)}, v{T0} offset:{n * 4 * ROW}")
    a("s_cmp_eq_u32 s24, 0")
    a("s_cbranch_scc0 L1_t12")
    a(f"ds_read_b128 {vr(64, 4)}, v{T0} offset:{12 * 4 * ROW}")
    a(f"v_add_u32 v{T2}, {12 * 1024}, v{T1}")
    a("s_waitcnt lgkmcnt(0)")
    a(f"global_store_dwordx4 v{T2}, {vr(64, 4)}, {sr(WS)}{STT}")
    a.label("L1_t12")
    for n in range(12):
        a(f"s_waitcnt lgkmcnt({max(0, 11 - n)})")
        a(f"global_store_dwordx4 v{T1}, {vr(16 + 4 * n, 4)}, {sr(WS)} offset:{(n % 4) * 1024}{STT}")
        if n % 4 == 3:
            a(f"v_add_u32 v{T1}, 4096, v{T1}")
    stamp(a, 5)
    if STAMPS:
        a("s_waitcnt vmcnt(0)")
    stamp(a, 11)
    stamp(a, 21, True)
    stamp_flush(a, 0)
    a("s_endpgm")
    a.label("L1_not")
    stamp(a, 5)
    a(f"s_cmp_gt_u32 s{WAVE}, 12")
    a("s_cbranch_scc1 L1_noedge1")
    a(f"v_cmp_gt_u32 vcc, {EPC // 4}, v{TID}")
    a("s_and_saveexec_b64 s[32:33], vcc")
    a(f"v_mov_b32 v{T1}, 1")
    a("s_movk_i32 s24, -100")
    a("s_mov_b32 s25, 0xffff0000")
    a("s_movk_i32 s30, 128")
    a("s_waitcnt vmcnt(0)")
    for i in range(4):
        a(f"v_mul_u32_u24 v{T0}, 5243, v{VD + i}")
        a(f"v_lshrrev_b32 v{T0}, 19, v{T0}")
        a(f"v_lshlrev_b32 v{VB + i}, 2, v{T0}")
        a(f"ds_add_rtn_u32 v{VR + i}, v{VB + i}, v{T1} offset:{HIST}")
        a(f"v_mad_i32_i24 v{T2}, v{T0}, s24, v{VD + i}")
        a(f"v_lshrrev_b32 v{T3}, 5, v{VS + i}")
        a(f"v_and_or_b32 v{VH + i}, v{T3}, s30, v{T2}")
        if i % 2 == 0:
            a(f"v_lshl_or_b32 v{VS + i}, v{VE + i // 2}, 16, v{VS + i}")
        else:
            a(f"v_and_or_b32 v{VS + i}, v{VE + i // 2}, s25, v{VS + i}")
    a("s_mov_b64 exec, s[32:33]")
    a.label("L1_noedge1")
    a("s_waitcnt lgkmcnt(0)")
    stamp(a, 6)
    a("s_barrier")
    stamp(a, 7)
    a(f"s_cmp_eq_u32 s{WAVE}, 15")
    a("s_cbranch_scc0 L1_b2")
    C0 = 24
    a(f"v_lshlrev_b32 v{T0}, 4, v{LANE}")
    a(f"ds_read_b128 {vr(C0, 4)}, v{T0} offset:{HIST}")
    a("s_waitcnt lgkmcnt(0)")
    P = 28
    a(f"v_add_u32 v{P + 2}, v{C0}, v{C0 + 1}")
    a(f"v_add_u32 v{P + 3}, v{P + 2}, v{C0 + 2}")
    a(f"v_add_u32 v32, v{P + 3}, v{C0 + 3}")
    a("v_mov_b32 v33, v32")
    wave_scan(a, 33)
    a(f"v_sub_u32 v{P}, v33, v32")
    a(f"v_add_u32 v{P + 1}, v{P}, v{C0}")
    a(f"v_add_u32 v{P + 2}, v{P}, v{P + 2}")
    a(f"v_add_u32 v{P + 3}, v{P}, v{P + 3}")
    a(f"ds_write_b128 v{T0}, {vr(P, 4)} offset:{BASE}")
    a("s_lshl_b32 s24, s2, 10")
    a(f"s_add_u32 s24, s24, {SEG_OFF}")
    a(f"v_add_u32 v{T1}, s24, v{T0}")
    for i in range(4):
        a(f"v_lshl_or_b32 v{36 + i}, v{C0 + i}, 16, v{P + i}")
    a(f"global_store_dwordx4 v{T1}, v[36:39], {sr(WS)}{ST}")
    a("s_cmp_lg_u32 s2, 0")
    a("s_cbranch_scc1 L1_b2")
    a(f"v_mov_b32 v{T2}, 0")
    a(f"v_lshlrev_b32 v{T3}, 2, v{LANE}")
    a(f"v_add_u32 v{T3}, {N * 256}, v{T3}")
    a(f"global_store_dword v{T3}, v{T2}, {sr(WS)}{ST}")
    a.label("L1_b2")
    a("s_waitcnt lgkmcnt(0)")
    stamp(a, 8)
    a("s_barrier")
    a(f"s_cmp_gt_u32 s{WAVE}, 12")
    a("s_cbranch_scc1 L1_noedge2")
    a(f"v_cmp_gt_u32 vcc, {EPC // 4}, v{TID}")
    a("s_and_saveexec_b64 s[32:33], vcc")
    for i in range(4):
        a(f"ds_read_b32 v{VD + i}, v{VB + i} offset:{BASE}")
    a(f"s_mov_b32 s24, {STG}")
    for i in range(4):
        a("s_waitcnt lgkmcnt(3)")
        a(f"v_add_u32 v{VD + i}, v{VD + i}, v{VR + i}")
        a(f"v_lshl_add_u32 v{VD + i}, v{VD + i}, 3, s24")
        a(f"ds_write2_b32 v{VD + i}, v{VS + i}, v{VH + i} offset0:0 offset1:1")
    a("s_mov_b64 exec, s[32:33]")
    a.label("L1_noedge2")
    a("s_waitcnt lgkmcnt(0)")
    stamp(a, 9)
    a("s_barrier")

    a(f"s_min_u32 s25, s{WAVE}, 13")
    a("s_lshl_b32 s25, s25, 10")
    a(f"v_lshlrev_b32 v{T0}, 4, v{LANE}")
    a(f"v_add_u32 v{T0}, s25, v{T0}")
    a(f"v_add_u32 v{T1}, {STG}, v{T0}")
    a(f"ds_read_b128 v[24:27], v{T1}")
    a(f"s_mul_i32 s24, s2, {EPC * 8}")
    a(f"s_add_u32 s24, s24, {REC_OFF}")
    a(f"v_add_u32 v{T0}, s24, v{T0}")
    a(f"s_cmp_gt_u32 s{WAVE}, 10")
    a("s_cbranch_scc1 L1_oner")
    a(f"ds_read_b128 v[28:31], v{T1} offset:{14 * 1024}")
    a(f"v_add_u32 v{T1}, {14 * 1024}, v{T0}")
    a("s_waitcnt lgkmcnt(0)")
    a(f"global_store_dwordx4 v{T1}, v[28:31], {sr(WS)}{STR_}")
    a.label("L1_oner")
    a("s_waitcnt lgkmcnt(0)")
    a(f"global_store_dwordx4 v{T0}, v[24:27], {sr(WS)}{STR_}")
    stamp(a, 10)
    if STAMPS:
        a("s_waitcnt vmcnt(0)")
    stamp(a, 11)
    stamp(a, 21, True)
    stamp_flush(a, 0)
    a.label("L1_end")
    a("s_endpgm")
    return LDS, 104


def gen_k2(a):
    HIST = 0
    HIST2 = HIST + 1024
    BASE2 = HIST2 + 1024
    WCNT = BASE2 + 1024
    WKEY = WCNT + 1024
    MISC = WKEY + 1024
    SCR = MISC + 256
    ZERO = SCR + 256
    PL = ZERO + 256
    PART0 = PL + NPB * ROW
    PART1 = PART0 + NPB * ROW
    WST = (PART1 + NPB * ROW + 127) // 128 * 128
    XST = WST + 16384
    LIST = XST + NPB * XROW
    CAPK = 48
    COL = CAPK * 4
    LISTB = 228 * COL
    LDS = LIST + LISTB + 64
    assert PART1 < 65536 and PART0 + 64 * ROW < 65536 and LDS <= 163840, LDS
    NWIN = 50
    DUMMY_COL = 100 * COL

    TID, LANE = 0, 1
    T0, T1, T2, T3 = 2, 3, 4, 5
    RB = 6
    REM = 7
    RECS = 8
    RANK = 24
    VW_, VX_ = 32, 36
    XOP = 40
    AOP = 52
    DD = 84
    VLOC = 49
    NT = 100
    VLB = 103
    ASEL = 112
    VJ, VG4, VQ, VONE = 116, 117, 118, 119
    CV = 120
    VZ = 124
    MASK = 40
    nd = Node(a, WST, XST, TID, LANE, VW_, VX_, NT)

    a(f".globl {K2}")
    a(".p2align 8")
    a(f".type {K2},@function")
    a.label(K2)
    a(f"s_cmp_ge_u32 s2, {NB}")
    a("s_cbranch_scc1 L2_end")
    stamp(a, 0)
    stamp(a, 20, True)
    load_ptrs(a)
    a(f"v_and_b32 v{LANE}, 63, v{TID}")
    a(f"v_lshrrev_b32 v{T0}, 6, v{TID}")
    a(f"v_lshlrev_b32 v{T1}, 2, v{TID}")
    a(f"v_readfirstlane_b32 s{WAVE}, v{T0}")
    a(f"v_lshrrev_b32 v{RB}, 2, v{TID}")
    a(f"v_lshlrev_b32 v{RB}, 10, v{RB}")
    a("s_lshl_b32 s24, s2, 2")
    a(f"s_add_u32 s24, s24, {SEG_OFF}")
    a(f"v_add_u32 v{RB}, s24, v{RB}")
    a("s_waitcnt lgkmcnt(0)")
    fix_ws(a)
    stamp(a, 1)
    a(f"global_load_dword v{REM}, v{RB}, {sr(WS)}")
    if "nobq" not in OPT:
        a("s_barrier")
    nd.issue_loads(GW, 0, UW)
    a(f"v_and_b32 v{T0}, 15, v{LANE}")
    a(f"v_lshlrev_b32 v{VJ}, 4, v{T0}")
    a(f"v_lshrrev_b32 v{T2}, 1, v{VJ}")
    a(f"v_add_u32 v{T2}, {128 * 128}, v{T2}")
    a(f"global_load_dwordx2 {vr(CV + 2, 2)}, v{T2}, {sr(GW)}")
    a(f"v_mov_b32 v{T0}, 0")
    a(f"s_cmp_lt_u32 s{WAVE}, 4")
    a("s_cbranch_scc0 L2_nozero")
    a(f"ds_write_b32 v{T1}, v{T0} offset:{HIST}")
    a(f"ds_write_b32 v{T1}, v{T0} offset:{HIST2}")
    a.label("L2_nozero")
    a(f"s_cmp_eq_u32 s{WAVE}, 4")
    a("s_cbranch_scc0 L2_nozero2")
    a(f"v_lshlrev_b32 v{T2}, 2, v{LANE}")
    a(f"v_cmp_eq_u32 vcc, 2, v{LANE}")
    a("s_nop 1")
    a(f"v_cndmask_b32 v{T3}, 0, 16, vcc")
    a(f"ds_write_b32 v{T2}, v{T3} offset:{MISC}")
    a(f"ds_write_b32 v{T2}, v{T0} offset:{ZERO}")
    a.label("L2_nozero2")
    a(f"v_lshrrev_b32 v{RB}, 2, v{TID}")
    a(f"v_mul_u32_u24 v{RB}, {EPC}, v{RB}")
    a(f"v_and_b32 v{T3}, 3, v{TID}")
    a(f"v_lshlrev_b32 v{T3}, 1, v{T3}")
    a(f"v_add_u32 v{RB}, v{RB}, v{T3}")
    a(f"v_cmp_gt_u32 vcc, {NC * 4}, v{TID}")
    a("s_waitcnt vmcnt(3)")
    stamp(a, 2)
    a(f"v_cndmask_b32 v{REM}, 0, v{REM}, vcc")
    a(f"v_and_b32 v{T2}, 0xffff, v{REM}")
    a(f"v_lshrrev_b32 v{REM}, 16, v{REM}")
    a(f"v_add_u32 v{RB}, v{RB}, v{T2}")
    a(f"v_lshlrev_b32 v{RB}, 3, v{RB}")
    a(f"v_add_u32 v{RB}, {REC_OFF}, v{RB}")
    a(f"v_cmp_lt_u32 s[56:57], 32, v{REM}")
    a(f"v_sub_u32 v{REM}, v{REM}, v{T3}")
    for r in range(4):
        for s_ in range(2):
            m = MASK + 2 * (2 * r + s_)
            a(f"v_cmp_gt_i32 {sr(m)}, v{REM}, {8 * r + s_}")
    a("s_nop 2")
    a("s_mov_b32 s58, 0")
    for r in range(4):
        m = MASK + 4 * r
        a(f"s_mov_b64 exec, {sr(m)}")
        a("s_cbranch_execz L2_recs_done")
        a(f"global_load_dwordx4 {vr(RECS + 4 * r, 4)}, v{RB}, {sr(WS)} offset:{64 * r}")
        a(f"s_mov_b32 s58, {r + 1}")
    a.label("L2_recs_done")
    a("s_mov_b64 exec, -1")
    for i in range(4):
        a(f"v_mov_b32 v{XOP + i}, {N}")
    a(f"v_lshlrev_b32 v{T2}, 4, v{TID}")
    a(f"v_add_u32 v{T2}, {LIST}, v{T2}")
    a(f"ds_write_b128 v{T2}, {vr(XOP, 4)}")
    a(f"ds_write_b128 v{T2}, {vr(XOP, 4)} offset:16384")
    nlast = LISTB // 16 - 2048
    a(f"v_cmp_gt_u32 vcc, {nlast}, v{TID}")
    a("s_and_saveexec_b64 s[32:33], vcc")
    a(f"ds_write_b128 v{T2}, {vr(XOP, 4)} offset:32768")
    a("s_mov_b64 exec, s[32:33]")
    a(f"v_and_b32 v{T0}, 15, v{LANE}")
    a(f"v_lshrrev_b32 v{T1}, 4, v{LANE}")
    a(f"v_lshlrev_b32 v{VG4}, 2, v{T1}")
    a(f"v_add_u32 v{VZ}, {ZERO}, v{VJ}")
    a(f"v_mov_b32 v{VONE}, 1")
    a(f"v_mov_b32 v{VLB}, {LIST}")
    a(f"v_lshlrev_b32 v{VQ}, 2, v{LANE}")
    a(f"v_add_u32 v{VQ}, {SCR}, v{VQ}")
    a(f"v_cmp_eq_u32 vcc, 0, v{LANE}")
    a(f"v_mov_b32 v{T3}, {MISC + 8}")
    a(f"v_lshrrev_b32 v{T2}, 2, v{T0}")
    a(f"v_cndmask_b32 v{VQ}, v{VQ}, v{T3}, vcc")
    a(f"v_cmp_eq_u32 vcc, v{T2}, v{T1}")
    a(f"v_mov_b32 v{T3}, 0x3f80")
    a(f"v_and_b32 v{T2}, 3, v{T0}")
    a(f"v_cndmask_b32 v{T3}, 0, v{T3}, vcc")
    for q in range(4):
        a(f"v_cmp_eq_u32 vcc, {q}, v{T2}")
        a("s_nop 1")
        a(f"v_cndmask_b32 v{ASEL + q}, 0, v{T3}, vcc")
    for n in range(4, -1, -1):
        if n:
            a(f"s_cmp_lg_u32 s58, {n}")
            a(f"s_cbranch_scc1 L2_wx{n}")
        a(f"s_waitcnt vmcnt({n})")
        if n:
            a("s_branch L2_wxdone")
            a.label(f"L2_wx{n}")
    a.label("L2_wxdone")
    stamp(a, 3)
    nd.stage()
    a(f"s_mov_b32 s24, {LOG2E_NEG:#x}")
    a(f"v_lshlrev_b32 v{CV}, 16, v{CV + 2}")
    a(f"v_and_b32 v{CV + 1}, 0xffff0000, v{CV + 2}")
    a(f"v_lshlrev_b32 v{CV + 2}, 16, v{CV + 3}")
    a(f"v_and_b32 v{CV + 3}, 0xffff0000, v{CV + 3}")
    for i in range(4):
        a(f"v_mul_f32 v{CV + i}, s24, v{CV + i}")
    a("s_waitcnt lgkmcnt(0)")
    a("s_barrier")
    stamp(a, 4)
    a("s_cmp_eq_u64 s[56:57], 0")
    a("s_cbranch_scc1 L2_noflag")
    a(f"v_mov_b32 v{T2}, 0")
    a(f"ds_write_b32 v{T2}, v{VONE} offset:{MISC}")
    a.label("L2_noflag")
    a(f"s_cmp_gt_u32 s{WAVE}, 13")
    a("s_cbranch_scc1 L2_notask")
    nd.pair_reads(AOP, XOP, VLOC)
    a(f"v_mul_u32_u24 v{T0}, {ROW}, v{VLOC}")
    a(f"v_lshrrev_b32 v{T1}, 4, v{LANE}")
    a(f"v_lshl_add_u32 v{T0}, v{T1}, 4, v{T0}")
    a("s_lshl_b32 s30, s27, 6")
    a(f"v_add_u32 v{T0}, s30, v{T0}")
    a(f"s_mov_b32 s24, {LOG2E_NEG:#x}")
    a(f"v_cmp_gt_u32 vcc, {NPB}, v{VLOC}")
    a("s_waitcnt lgkmcnt(0)")
    nd.pair_mfma(AOP, XOP, DD)
    a("s_nop 5")
    for c in range(2):
        for i in range(4):
            a(f"v_mul_f32 v{DD + c * 8 + i}, s24, v{DD + c * 8 + i}")
    a("s_and_saveexec_b64 s[32:33], vcc")
    for c in range(2):
        a(f"ds_write_b128 v{T0}, {vr(DD + c * 8, 4)} offset:{PL + c * 64}")
        a(f"ds_write_b128 v{T0}, {vr(DD + c * 8 + 4, 4)} offset:{PART0 + c * 64}")
    a("s_mov_b64 exec, s[32:33]")
    a.label("L2_notask")
    a("s_waitcnt vmcnt(0)")
    stamp(a, 5)
    for r in range(4):
        if r >= 2:
            a(f"s_cmp_eq_u64 {sr(MASK + 4 * r)}, 0")
            a(f"s_cbranch_scc1 L2_h{r}")
        for s_ in range(2):
            k = 2 * r + s_
            hi = RECS + 4 * r + 2 * s_ + 1
            a(f"s_mov_b64 exec, {sr(MASK + 2 * k)}")
            a(f"v_lshlrev_b32 v{T1}, 2, v{hi}")
            a(f"ds_add_rtn_u32 v{RANK + k}, v{T1}, v{VONE} offset:{HIST}")
            a(f"v_mul_u32_u24 v{hi}, {COL}, v{hi}")
            a(f"v_add_u32 v{hi}, v{VLB}, v{hi}")
        if r >= 2:
            a.label(f"L2_h{r}")
    a("s_mov_b64 exec, -1")
    a("s_waitcnt lgkmcnt(0)")
    for r in range(4):
        if r >= 2:
            a(f"s_cmp_eq_u64 {sr(MASK + 4 * r)}, 0")
            a(f"s_cbranch_scc1 L2_s{r}")
        for s_ in range(2):
            k = 2 * r + s_
            lo = RECS + 4 * r + 2 * s_
            hi = lo + 1
            a(f"s_mov_b64 exec, {sr(MASK + 2 * k)}")
            a(f"v_min_u32 v{RANK + k}, 63, v{RANK + k}")
            a(f"v_lshl_add_u32 v{hi}, v{RANK + k}, 2, v{hi}")
            a(f"ds_write_b32 v{hi}, v{lo}")
        if r >= 2:
            a.label(f"L2_s{r}")
    a("s_mov_b64 exec, -1")
    a("s_waitcnt lgkmcnt(0)")
    stamp(a, 6)
    a("s_barrier")
    a(f"s_cmp_eq_u32 s{WAVE}, 15")
    a("s_cbranch_scc0 L2_b2")

    a("s_setprio 3")
    CN, BN, RK = 100, 104, 108
    S0 = 84
    a(f"v_lshlrev_b32 v{T0}, 4, v{LANE}")
    a(f"ds_read_b128 {vr(CN, 4)}, v{T0} offset:{HIST}")
    a(f"v_lshrrev_b32 v{T1}, 5, v{LANE}")
    a(f"v_and_b32 v{T2}, 31, v{LANE}")
    a(f"v_cmp_gt_u32 vcc, 25, v{T2}")
    a(f"v_lshlrev_b32 v{T3}, 8, v{T1}")
    a(f"v_add_u32 v{T3}, {63 * 4}, v{T3}")
    a(f"v_mov_b32 v{S0}, {(128 + 63) * 4}")
    a(f"v_cndmask_b32 v{T3}, v{S0}, v{T3}, vcc")
    a(f"v_mul_u32_u24 v{T2}, {4 * ROW}, v{T2}")
    a(f"v_mul_u32_u24 v{T1}, {4 * COL}, v{LANE}")
    a(f"v_lshl_or_b32 v{T1}, v{T1}, 16, v{T2}")
    a("s_waitcnt lgkmcnt(0)")
    a(f"v_max3_u32 v{S0 + 1}, v{CN}, v{CN + 1}, v{CN + 2}")
    a(f"v_max_u32 v{S0 + 1}, v{S0 + 1}, v{CN + 3}")
    for i in range(4):
        a(f"v_min_u32 v{BN + i}, 63, v{CN + i}")
        a(f"v_lshlrev_b32 v{BN + i}, 2, v{BN + i}")
        a(f"v_sub_u32 v{BN + i}, v{T3}, v{BN + i}")
        a(f"ds_add_rtn_u32 v{RK + i}, v{BN + i}, v{VONE} offset:{HIST2}")
    a(f"ds_read_b128 {vr(S0 + 4, 4)}, v{T0} offset:{HIST2}")
    a(f"v_cmp_lt_u32 vcc, {CAPK}, v{S0 + 1}")
    a("s_cbranch_vccz L2_nocap")
    a(f"v_mov_b32 v{S0}, 0")
    a(f"ds_write_b32 v{S0}, v{VONE} offset:{MISC}")
    a.label("L2_nocap")
    a("s_waitcnt lgkmcnt(0)")
    a(f"v_add_u32 v{S0 + 1}, v{S0 + 4}, v{S0 + 5}")
    a(f"v_add_u32 v{S0 + 2}, v{S0 + 1}, v{S0 + 6}")
    a(f"v_add_u32 v{S0 + 3}, v{S0 + 2}, v{S0 + 7}")
    a(f"v_mov_b32 v{S0}, v{S0 + 3}")
    wave_scan(a, S0)
    a(f"v_sub_u32 v{S0}, v{S0}, v{S0 + 3}")
    a(f"v_add_u32 v{S0 + 3}, v{S0}, v{S0 + 2}")
    a(f"v_add_u32 v{S0 + 2}, v{S0}, v{S0 + 1}")
    a(f"v_add_u32 v{S0 + 1}, v{S0}, v{S0 + 4}")
    a(f"ds_write_b128 v{T0}, {vr(S0, 4)} offset:{BASE2}")
    for i in range(4):
        a(f"ds_read_b32 v{S0 + 4 + i}, v{BN + i} offset:{BASE2}")
    a("s_waitcnt lgkmcnt(0)")
    for i in range(4):
        a(f"v_add_u32 v{RK + i}, v{RK + i}, v{S0 + 4 + i}")
        a(f"v_lshlrev_b32 v{RK + i}, 2, v{RK + i}")
        a(f"v_add_u32 v{S0}, {i * ((COL << 16) + ROW)}, v{T1}")
        a(f"ds_write_b32 v{RK + i}, v{CN + i} offset:{WCNT}")
        a(f"ds_write_b32 v{RK + i}, v{S0} offset:{WKEY}")
    a("s_setprio 0")
    a.label("L2_b2")
    a("s_waitcnt lgkmcnt(0)")
    stamp(a, 7)
    a("s_barrier")
    stamp(a, 8)
    NR = 8
    LA = 7
    RA = 8
    PR = 8
    ACC = 12
    DA = 16
    VB = 24
    IX = 56
    EV = 72
    VL = 80
    VFL = 81
    VFN = 82
    VRN = 83
    VIN = 84
    VWL = 85
    SC, SNL, SI = 61, 62, 63
    STR = 64
    a(f"s_mov_b32 s36, s{WS}")
    a(f"s_and_b32 s37, s{WS + 1}, 0xffff")
    a("s_or_b32 s37, s37, 0x1000000")
    a(f"s_mov_b32 s38, {N + 1}")
    a("s_mov_b32 s39, 0x20000")
    a(f"v_mov_b32 v{T0}, 0")
    a(f"ds_read_b32 v{T1}, v{T0} offset:{MISC}")
    a(f"v_lshlrev_b32 v{T2}, 4, v{LANE}")
    a(f"ds_read_b32 v{VWL}, v{T2} offset:{WCNT}")
    a(f"s_lshl_b32 s26, s{WAVE}, 4")
    a(f"v_add_u32 v{T2}, s26, v{VG4}")
    a(f"ds_read_b32 v{T3}, v{T2} offset:{WKEY}")
    for k in range(NR):
        a(f"v_mov_b32 v{IX + 2 * k + 1}, v{VJ}")
        a(f"v_mov_b32 v{EV + k}, 0")
    a("s_mov_b32 s66, 1.0")
    a("s_mov_b32 s67, 1.0")
    a(f"s_mov_b32 s68, {PART0}")
    a(f"s_mov_b32 s69, {PART1}")
    a("s_waitcnt lgkmcnt(0)")
    a(f"v_readfirstlane_b32 s24, v{T1}")
    a(f"v_max_u32 v{VWL}, {RA}, v{VWL}")
    a(f"v_lshrrev_b32 v{VL}, 16, v{T3}")
    a(f"v_add_u32 v{VL}, {LIST}, v{VL}")
    a("s_cmp_lg_u32 s24, 0")
    a("s_cbranch_scc1 L2_slow")
    for k in range(RA):
        a(f"ds_read_u16 v{IX + 2 * k}, v{VL} offset:{4 * k}")
    a(f"v_and_b32 v{VRN}, 0xffff, v{T3}")
    a(f"v_add_u32 v{VRN}, v{VRN}, v{VJ}")
    a(f"v_add_u32 v{VFL}, {PART0}, v{VRN}")
    a(f"v_readlane_b32 s{SC}, v{VWL}, s{WAVE}")
    a(f"s_mov_b32 s{STR}, {RA}")
    a(f"s_mov_b32 s{SI}, s{WAVE}")
    if "noprio" not in OPT:
        a("s_setprio 3")
    a("s_waitcnt lgkmcnt(0)")
    for k in range(LA):
        a(f"buffer_load_dwordx4 {vr(VB + 4 * k, 4)}, {vr(IX + 2 * k, 2)}, s[36:39], 0 idxen offen")
    for k in range(RA):
        a(f"ds_read_u16_d16_hi v{EV + k}, v{VL} offset:{4 * k + 2}")
    a(f"ds_read_b128 {vr(PR, 4)}, v{VRN} offset:{PL}")
    a(f"ds_read_b128 {vr(ACC, 4)}, v{VRN} offset:{PART0}")
    a("s_waitcnt lgkmcnt(0)")
    stamp(a, 9)

    def mfma(k):
        d = DA + 4 * (k & 1)
        a(f"v_mfma_f32_16x16x32_bf16 {vr(d, 4)}, {vr(ASEL, 4)}, {vr(VB + 4 * k, 4)}, {vr(PR, 4)}")

    def tail(k):
        d = DA + 4 * (k & 1)
        vb = VB + 4 * k
        for i in range(4):
            a(f"v_rcp_f32 v{d + i}, v{d + i}")
        a(f"v_pk_fma_f32 {vr(ACC, 2)}, {vr(d, 2)}, {vr(vb, 2)}, {vr(ACC, 2)}")
        a(f"v_pk_fma_f32 {vr(ACC + 2, 2)}, {vr(d + 2, 2)}, {vr(vb + 2, 2)}, {vr(ACC + 2, 2)}")

    def read_idx(k):
        a(f"ds_read_u16 v{IX + 2 * k}, v{VL} offset:{4 * (RA + k)}")

    def read_e(k):
        a(f"ds_read_u16_d16_hi v{EV + k}, v{VL} offset:{4 * (RA + k) + 2}")

    def gather(k):
        p = (k + LA) % NR
        if "nogather" not in OPT:
            a(f"buffer_load_dwordx4 {vr(VB + 4 * p, 4)}, {vr(IX + 2 * p, 2)}, s[36:39], 0 idxen offen")

    def front(k):
        d = DA + 4 * (k & 1)
        epair = EV + (k & ~1)
        osel = "op_sel:[1,0,0] op_sel_hi:[1,1,1]" if k & 1 else "op_sel_hi:[0,1,1]"
        a(f"v_pk_fma_f32 {vr(d, 2)}, {vr(epair, 2)}, {vr(CV, 2)}, {vr(d, 2)} {osel}")
        a(f"v_pk_fma_f32 {vr(d + 2, 2)}, {vr(epair, 2)}, {vr(CV + 2, 2)}, {vr(d + 2, 2)} {osel}")
        read_e(k)
        for i in range(4):
            a(f"v_exp_f32 v{d + i}, v{d + i}")
        a(f"v_pk_add_f32 {vr(d, 2)}, {vr(d, 2)}, s[66:67]")
        a(f"v_pk_add_f32 {vr(d + 2, 2)}, {vr(d + 2, 2)}, s[66:67]")

    a(f"s_cmp_eq_u32 s{SC}, s{STR}")
    a("s_cbranch_scc0 L2_e0")
    a(f"s_mov_b32 s59, 0")
    a("s_branch L2_pop_first")
    a.label("L2_e0")
    a.label("L2_first_cont")
    if "nogather" not in OPT:
        a(f"s_waitcnt vmcnt({LA - 1})")
    mfma(0)
    read_idx(0)
    a("s_nop 5")
    gather(0)
    a("s_branch L2_mid0")

    a.label("L2_loop")
    for k in range(NR):
        pk = (k - 1) % NR
        a(f"s_cmp_eq_u32 s{SC}, s{STR}")
        a(f"s_cbranch_scc1 L2_ev{k}")
        a.label(f"L2_cont{k}")
        if "nogather" not in OPT:
            a(f"s_waitcnt vmcnt({LA - 1})")
        mfma(k)
        read_idx(k)
        tail(pk)
        a("s_waitcnt lgkmcnt(2)")
        gather(k)
        a.label(f"L2_mid{k}")
        front(k)
        a(f"s_sub_u32 s{SC}, s{SC}, 1")
        if k == NR - 1:
            a(f"v_add_u32 v{VL}, {4 * NR}, v{VL}")
            a("s_branch L2_loop")

    def pop(k, tag, cont):
        a(f"ds_add_rtn_u32 v{T2}, v{VQ}, v{VONE}")
        a(f"s_mov_b32 s{STR}, 0")
        a("s_waitcnt lgkmcnt(0)")
        a(f"v_readfirstlane_b32 s{SI}, v{T2}")
        a(f"s_mov_b32 s{SNL}, 0")
        a(f"v_mov_b32 v{VL}, {LIST + DUMMY_COL - 4 * (RA + k)}")
        a("s_nop 1")
        a(f"s_cmp_lt_u32 s{SI}, {NWIN}")
        a(f"s_cbranch_scc0 {cont}")
        a(f"s_lshl_b32 s26, s{SI}, 4")
        a(f"v_add_u32 v{T2}, s26, v{VG4}")
        a(f"ds_read_b32 v{T3}, v{T2} offset:{WKEY}")
        a(f"v_readlane_b32 s{SNL}, v{VWL}, s{SI}")
        a(f"s_cmp_lt_u32 s{SI}, {NWIN // 2}")
        a("s_cselect_b32 s26, s68, s69")
        a("s_waitcnt lgkmcnt(0)")
        a(f"v_and_b32 v{VRN}, 0xffff, v{T3}")
        a(f"v_lshrrev_b32 v{VL}, 16, v{T3}")
        a(f"v_add_u32 v{VRN}, v{VRN}, v{VJ}")
        a(f"v_add_u32 v{VL}, {LIST - 4 * (RA + k)}, v{VL}")
        a(f"v_add_u32 v{VFN}, s26, v{VRN}")
        a(f"v_mov_b32 v{VIN}, v{VFN}")
        a(f"s_cbranch_scc1 {cont}")
        a(f"v_mov_b32 v{VIN}, v{VZ}")
        a(f"s_branch {cont}")

    a.label("L2_pop_first")
    pop(0, "f", "L2_first_cont")
    for k in range(NR):
        pk = (k - 1) % NR
        a.label(f"L2_ev{k}")
        a(f"s_cmp_eq_u32 s{STR}, 0")
        a(f"s_cbranch_scc1 L2_sw{k}")
        pop(k, f"k{k}", f"L2_cont{k}")
        a.label(f"L2_sw{k}")
        tail(pk)
        a(f"ds_write_b128 v{VFL}, {vr(ACC, 4)}")
        a(f"s_cmp_eq_u32 s{SNL}, 0")
        a("s_cbranch_scc1 L2_done")
        a(f"ds_read_b128 {vr(PR, 4)}, v{VRN} offset:{PL}")
        a(f"ds_read_b128 {vr(ACC, 4)}, v{VIN}")
        a(f"v_mov_b32 v{VFL}, v{VFN}")
        a(f"s_mov_b32 s{SC}, s{SNL}")
        a(f"s_mov_b32 s{STR}, {RA}")
        if "noprio" not in OPT:
            a(f"s_cmp_lt_u32 s{SI}, 40")
            a(f"s_cbranch_scc1 L2_p1_{k}")
            a("s_setprio 0")
            a(f"s_branch L2_pd_{k}")
            a.label(f"L2_p1_{k}")
            a(f"s_cmp_lt_u32 s{SI}, 32")
            a(f"s_cbranch_scc1 L2_p2_{k}")
            a("s_setprio 1")
            a(f"s_branch L2_pd_{k}")
            a.label(f"L2_p2_{k}")
            a(f"s_cmp_lt_u32 s{SI}, 25")
            a(f"s_cbranch_scc1 L2_pd_{k}")
            a("s_setprio 2")
            a.label(f"L2_pd_{k}")
        a(f"s_cmp_eq_u32 s{SC}, {RA}")
        a(f"s_cbranch_scc0 L2_sw2_{k}")
        save = f"L2_sw2_{k}"
        pop(k, f"s{k}", save)
        a.label(save)
        if "nogather" not in OPT:
            a(f"s_waitcnt vmcnt({LA - 1}) lgkmcnt(0)")
        else:
            a("s_waitcnt lgkmcnt(0)")
        mfma(k)
        read_idx(k)
        a("s_nop 5")
        gather(k)
        a(f"s_branch L2_mid{k}")

    a.label("L2_slow")
    SSC, SCN, SRI = 61, 62, 63
    a(f"v_lshlrev_b32 v{T0}, 2, v{LANE}")
    a(f"v_lshlrev_b32 v{T1}, 1, v{LANE}")
    a(f"v_add_u32 v{T1}, {128 * 128}, v{T1}")
    a(f"global_load_ushort v{T2}, v{T1}, {sr(GW)}")
    a(f"s_mov_b32 s24, {LOG2E_NEG:#x}")
    a(f"s_mov_b32 s25, s{WAVE}")
    a("v_mov_b32 v9, 0")
    a.label("L2_slow_z")
    a(f"s_mul_i32 s26, s25, {ROW}")
    a(f"v_add_u32 v10, s26, v{T0}")
    a(f"ds_write_b32 v10, v9 offset:{PART1}")
    a("s_add_u32 s25, s25, 16")
    a(f"s_cmp_lt_u32 s25, {NPB}")
    a("s_cbranch_scc1 L2_slow_z")
    a("s_waitcnt vmcnt(0) lgkmcnt(0)")
    a(f"v_lshlrev_b32 v{T2}, 16, v{T2}")
    a(f"v_mul_f32 v8, s24, v{T2}")
    a(f"s_mov_b32 s{SSC}, 0")
    a.label("L2_slow_seg")
    a(f"s_cmp_ge_u32 s{SSC}, {NC}")
    a("s_cbranch_scc1 L2_done")
    a(f"s_lshl_b32 s24, s{SSC}, 8")
    a("s_add_u32 s24, s24, s2")
    a("s_lshl_b32 s24, s24, 2")
    a(f"s_add_u32 s24, s24, {SEG_OFF}")
    a(f"v_mov_b32 v{T1}, s24")
    a(f"global_load_dword v{T2}, v{T1}, {sr(WS)}")
    a("s_waitcnt vmcnt(0)")
    a(f"v_readfirstlane_b32 s25, v{T2}")
    a("s_nop 3")
    a(f"s_lshr_b32 s{SCN}, s25, 16")
    a("s_and_b32 s25, s25, 0xffff")
    a(f"s_mul_i32 s26, s{SSC}, {EPC}")
    a("s_add_u32 s26, s26, s25")
    a("s_lshl_b32 s26, s26, 3")
    a(f"s_add_u32 s{SRI}, s26, {REC_OFF}")
    a.label("L2_slow_rec")
    a(f"s_cmp_eq_u32 s{SCN}, 0")
    a("s_cbranch_scc1 L2_slow_next")
    a(f"v_mov_b32 v{T1}, s{SRI}")
    a(f"global_load_dwordx2 v[10:11], v{T1}, {sr(WS)}")
    a(f"s_add_u32 s{SRI}, s{SRI}, 8")
    a(f"s_sub_u32 s{SCN}, s{SCN}, 1")
    a("s_waitcnt vmcnt(0)")
    a("v_and_b32 v14, 127, v11")
    a("v_and_b32 v15, 15, v14")
    a("s_nop 0")
    a("v_readfirstlane_b32 s25, v15")
    a("s_nop 3")
    a(f"s_cmp_lg_u32 s25, s{WAVE}")
    a("s_cbranch_scc1 L2_slow_rec")
    a("v_and_b32 v18, 0xffff, v10")
    a(f"v_mov_b32 v19, v{T0}")
    a("buffer_load_dword v13, v[18:19], s[36:39], 0 idxen offen")
    a(f"v_mul_u32_u24 v14, {ROW}, v14")
    a(f"v_add_u32 v14, v14, v{T0}")
    a(f"ds_read_b32 v15, v14 offset:{PL}")
    a(f"ds_read_b32 v17, v14 offset:{PART1}")
    a("v_and_b32 v11, 0xffff0000, v10")
    a("s_waitcnt vmcnt(0) lgkmcnt(0)")
    a("v_lshlrev_b32 v16, 16, v13")
    a("v_add_f32 v16, v16, v15")
    a("v_fmac_f32 v16, v11, v8")
    a("v_exp_f32 v16, v16")
    a("s_nop 0")
    a("v_add_f32 v16, 1.0, v16")
    a("v_rcp_f32 v16, v16")
    a("s_nop 0")
    a("v_fmac_f32 v17, v16, v13")
    a(f"ds_write_b32 v14, v17 offset:{PART1}")
    a("s_waitcnt lgkmcnt(0)")
    a("s_branch L2_slow_rec")
    a.label("L2_slow_next")
    a(f"s_add_u32 s{SSC}, s{SSC}, 1")
    a("s_branch L2_slow_seg")

    a.label("L2_done")
    stamp(a, 10)
    a("s_setprio 0")
    a("s_waitcnt vmcnt(0) lgkmcnt(0)")
    a("s_barrier")
    stamp(a, 11)
    a(f"v_lshrrev_b32 v{T0}, 4, v{TID}")
    a(f"v_and_b32 v{T1}, 15, v{TID}")
    a(f"v_mul_u32_u24 v{T2}, {ROW}, v{T0}")
    a(f"v_lshl_add_u32 v{T2}, v{T1}, 4, v{T2}")
    a(f"s_mul_i32 s24, s2, {NPB * 128}")
    a(f"v_lshlrev_b32 v{T3}, 7, v{T0}")
    a(f"v_lshl_add_u32 v{T3}, v{T1}, 3, v{T3}")
    a(f"v_add_u32 v{T3}, s24, v{T3}")
    a(f"s_mov_b32 s24, {LOG2E_NEG:#x}")

    def silu_store(src, off):
        for i in range(4):
            a(f"v_add_f32 v{src + i}, v{src + i}, v{src + 4 + i}")
        for i in range(4):
            a(f"v_mul_f32 v{src + 4 + i}, s24, v{src + i}")
        for i in range(4):
            a(f"v_exp_f32 v{src + 4 + i}, v{src + 4 + i}")
        a("s_nop 0")
        for i in range(4):
            a(f"v_add_f32 v{src + 4 + i}, 1.0, v{src + 4 + i}")
        for i in range(4):
            a(f"v_rcp_f32 v{src + 4 + i}, v{src + 4 + i}")
        a("s_nop 0")
        for i in range(4):
            a(f"v_mul_f32 v{src + i}, v{src + i}, v{src + 4 + i}")
        a(f"v_cvt_pk_bf16_f32 v{src + 4}, v{src}, v{src + 1}")
        a(f"v_cvt_pk_bf16_f32 v{src + 5}, v{src + 2}, v{src + 3}")
        a(f"global_store_dwordx2 v{off}, {vr(src + 4, 2)}, {sr(OUT)}")

    a(f"ds_read_b128 v[8:11], v{T2} offset:{PART0}")
    a(f"ds_read_b128 v[12:15], v{T2} offset:{PART1}")
    a(f"s_cmp_lt_u32 s{WAVE}, 9")
    a("s_cbranch_scc0 L2_ep1")
    a(f"v_add_u32 v7, {64 * ROW}, v{T2}")
    a(f"ds_read_b128 v[16:19], v7 offset:{PART0}")
    a(f"ds_read_b128 v[20:23], v7 offset:{PART1}")
    a("s_waitcnt lgkmcnt(0)")
    a(f"v_add_u32 v6, {64 * 128}, v{T3}")
    silu_store(16, 6)
    a.label("L2_ep1")
    a("s_waitcnt lgkmcnt(0)")
    silu_store(8, T3)
    stamp(a, 12)
    if STAMPS:
        a("s_waitcnt vmcnt(0)")
    stamp(a, 13)
    stamp(a, 21, True)
    stamp_flush(a, 1)
    a.label("L2_end")
    a("s_endpgm")
    return LDS, 128


def descriptor(a, name, vgprs, sgprs=80):
    a(f".amdhsa_kernel {name}")
    a(f"  .amdhsa_next_free_vgpr {vgprs}")
    a(f"  .amdhsa_next_free_sgpr {sgprs}")
    a(f"  .amdhsa_accum_offset {vgprs}")
    a("  .amdhsa_group_segment_fixed_size 0")
    a("  .amdhsa_kernarg_size 80")
    a("  .amdhsa_user_sgpr_count 2")
    a("  .amdhsa_user_sgpr_kernarg_segment_ptr 1")
    a("  .amdhsa_system_sgpr_workgroup_id_x 1")
    a("  .amdhsa_float_denorm_mode_32 3")
    a(".end_amdhsa_kernel")


def main():
    global STAMPS, ST, STT, STR_
    if "--stamps" in sys.argv:
        STAMPS = True
        sys.argv.remove("--stamps")
    for o in OPT:
        if o.startswith("st="):
            ST = STT = STR_ = " " + o[3:].replace("+", " ")
        if o.startswith("stt="):
            STT = " " + o[4:].replace("+", " ")
        if o.startswith("str="):
            STR_ = " " + o[4:].replace("+", " ")
    body = Asm()
    body(".amdgcn_target \"amdgcn-amd-amdhsa--gfx950\"")
    body(".text")
    lds1, v1 = gen_k1(body)
    lds2, v2 = gen_k2(body)
    body(".section .rodata,\"a\"")
    body(".p2align 6")
    descriptor(body, K1, 128 if STAMPS else v1)
    body(".p2align 6")
    descriptor(body, K2, v2)
    head = [
        "; Edge-gated MPNN layer in two launches (generated by a hand-written generator script).",
        "; launch 1: partitions the edges by destination bucket and builds the per-node source table",
        "; launch 2: per bucket of 100 nodes: sorts its edges, gated aggregation, SiLU epilogue",
        f"; @launch kernel={K1} grid=({NC},1,1) block=(1024,1,1) lds={lds1}",
        f"; @launch kernel={K2} grid=({NB},1,1) block=(1024,1,1) lds={lds2}",
    ]
    out = "\n".join(head) + "\n" + body.text()
    path = sys.argv[1] if len(sys.argv) > 1 else "standalone__edge_featured_mpnn_egc__graph.s"
    open(path, "w").write(out)
    print("wrote", path, "lds", lds1, lds2)


if __name__ == "__main__":
    main()
```

```python
import os
import sys

N = 25000
E = 800000
NB = 250
NPB = 100
NC = 250
EPC = 3200
HALF = 12500

T_OFF = 0
REC_OFF = 0x700000
SEG_OFF = 0xE00000

LOG2E_NEG = 0xBFB8AA3B
ROW = 272
XROW = 144

K1 = "egc_part_kernel"
K2 = "standalone__edge_featured_mpnn_egc__graph_kernel"

OPT = set(os.environ.get("OPT", "").split(","))
STAMPS = False
STAMP_OFF = 0x1000000
SV = 127

X, EA, SRC, DST, UW, VW, GW, OUT, WS = 4, 6, 8, 10, 12, 14, 16, 18, 20
WAVE = 22


def stamp(a, i, real=False):
    if not STAMPS:
        return
    a(f"s_mem{'real' if real else ''}time s[70:71]")
    a("s_waitcnt lgkmcnt(0)")
    a(f"v_writelane_b32 v{SV}, s70, {i}")


def stamp_flush(a, which):
    if not STAMPS:
        return
    a("s_lshl_b32 s72, s2, 4")
    a(f"s_add_u32 s72, s72, s{WAVE}")
    a("s_lshl_b32 s72, s72, 8")
    a(f"s_add_u32 s72, s72, {STAMP_OFF + which * 0x200000}")
    a("v_and_b32 v126, 63, v0")
    a("v_lshlrev_b32 v126, 2, v126")
    a("v_add_u32 v126, s72, v126")
    a(f"global_store_dword v126, v{SV}, s[20:21]")


class Asm:
    def __init__(self):
        self.lines = []

    def __call__(self, s=""):
        for ln in s.split("\n"):
            self.lines.append(ln if ln.strip().endswith(":") else "    " + ln.strip())

    def label(self, s):
        self.lines.append(s + ":")

    def text(self):
        return "\n".join(self.lines) + "\n"


def vr(a, n):
    return f"v[{a}:{a + n - 1}]"


def sr(a, n=2):
    return f"s[{a}:{a + n - 1}]"


def wave_scan(a, v):
    for sh in (1, 2, 4, 8):
        a("s_nop 1")
        a(f"v_add_u32_dpp v{v}, v{v}, v{v} row_shr:{sh} row_mask:0xf bank_mask:0xf bound_ctrl:0")
    a("s_nop 1")
    a(f"v_add_u32_dpp v{v}, v{v}, v{v} row_bcast:15 row_mask:0xa bank_mask:0xf")
    a("s_nop 1")
    a(f"v_add_u32_dpp v{v}, v{v}, v{v} row_bcast:31 row_mask:0xc bank_mask:0xf")
    a("s_nop 1")


WSBASE = int(os.environ.get("WSBASE", "0"), 0)


def load_ptrs(a):
    a("s_load_dwordx16 s[4:19], s[0:1], 0")
    a("s_load_dwordx2 s[20:21], s[0:1], 72")


def fix_ws(a):
    if WSBASE:
        a(f"s_add_u32 s20, s20, {WSBASE}")
        a("s_addc_u32 s21, s21, 0")


ST = ""
STT = ""
STR_ = ""


class Node:
    def __init__(self, a, WST, XST, tid, lane, vw, vx, t):
        self.a, self.WST, self.XST = a, WST, XST
        self.tid, self.lane, self.vw, self.vx, self.t = tid, lane, vw, vx, t

    def issue_loads(self, p0, off0, p1):
        a, t = self.a, self.t
        a(f"s_cmp_lt_u32 s{WAVE}, 8")
        a(f"s_cselect_b32 s24, s{p0}, s{p1}")
        a(f"s_cselect_b32 s25, s{p0 + 1}, s{p1 + 1}")
        if off0:
            a(f"s_cselect_b32 s26, {off0}, 0")
            a("s_add_u32 s24, s24, s26")
            a("s_addc_u32 s25, s25, 0")
        a(f"v_and_b32 v{t}, 511, v{self.tid}")
        a(f"v_lshlrev_b32 v{t}, 4, v{t}")
        a(f"global_load_dwordx4 {vr(self.vw, 4)}, v{t}, s[24:25]")
        a(f"v_min_u32 v{t}, {NPB * 8 - 1}, v{self.tid}")
        a(f"v_lshlrev_b32 v{t}, 4, v{t}")
        a(f"s_mul_i32 s26, s2, {NPB * 128}")
        a(f"v_add_u32 v{t}, s26, v{t}")
        a(f"global_load_dwordx4 {vr(self.vx, 4)}, v{t}, {sr(X)}")

    def stage(self):
        a, t, tid = self.a, self.t, self.tid
        a(f"v_bfe_u32 v{t}, v{tid}, 4, 1")
        a(f"v_bfe_u32 v{t + 1}, v{tid}, 6, 1")
        a(f"v_lshl_or_b32 v{t}, v{t + 1}, 1, v{t}")
        a(f"v_lshlrev_b32 v{t}, 5, v{t}")
        a(f"v_lshlrev_b32 v{t + 1}, 4, v{tid}")
        a(f"v_xor_b32 v{t}, v{t}, v{t + 1}")
        a(f"v_add_u32 v{t}, {self.WST}, v{t}")
        a(f"ds_write_b128 v{t}, {vr(self.vw, 4)}")
        a(f"v_lshrrev_b32 v{t}, 3, v{tid}")
        a(f"v_mul_u32_u24 v{t}, {XROW}, v{t}")
        a(f"v_and_b32 v{t + 1}, 7, v{tid}")
        a(f"v_lshl_add_u32 v{t}, v{t + 1}, 4, v{t}")
        a(f"v_add_u32 v{t}, {self.XST}, v{t}")
        a(f"v_cmp_gt_u32 vcc, {NPB * 8}, v{tid}")
        a("s_and_saveexec_b64 s[32:33], vcc")
        a(f"ds_write_b128 v{t}, {vr(self.vx, 4)}")
        a("s_mov_b64 exec, s[32:33]")

    def pair_reads(self, aop, xop, vloc):
        a, t, lane = self.a, self.t, self.lane
        a(f"s_and_b32 s27, s{WAVE}, 1")
        a("s_lshl_b32 s27, s27, 1")
        a(f"s_lshr_b32 s26, s{WAVE}, 1")
        a(f"v_and_b32 v{t}, 15, v{lane}")
        a(f"v_lshrrev_b32 v{t + 1}, 4, v{lane}")
        a("s_lshl_b32 s26, s26, 4")
        a(f"v_add_u32 v{vloc}, s26, v{t}")
        a(f"v_mul_u32_u24 v{t + 2}, {XROW}, v{vloc}")
        a(f"v_lshl_add_u32 v{t + 2}, v{t + 1}, 4, v{t + 2}")
        a(f"v_add_u32 v{t + 2}, {self.XST}, v{t + 2}")
        a(f"ds_read_b128 {vr(xop, 4)}, v{t + 2}")
        a(f"ds_read_b128 {vr(xop + 4, 4)}, v{t + 2} offset:64")
        a(f"v_lshrrev_b32 v{t + 2}, 3, v{t}")
        a(f"v_and_b32 v{xop + 8}, 1, v{t + 1}")
        a(f"v_lshl_or_b32 v{t + 2}, v{xop + 8}, 1, v{t + 2}")
        a(f"v_xor_b32 v{t + 2}, s27, v{t + 2}")
        a(f"v_lshlrev_b32 v{t + 2}, 5, v{t + 2}")
        a(f"v_lshrrev_b32 v{xop + 8}, 2, v{t}")
        a(f"v_lshl_add_u32 v{xop + 8}, v{t + 1}, 3, v{xop + 8}")
        a(f"v_lshl_add_u32 v{t + 2}, v{xop + 8}, 7, v{t + 2}")
        a(f"v_and_b32 v{xop + 8}, 3, v{t}")
        a(f"v_lshl_add_u32 v{t + 2}, v{xop + 8}, 3, v{t + 2}")
        a(f"v_add_u32 v{t + 2}, {self.WST}, v{t + 2}")
        assert self.WST % 128 == 0
        for c in range(2):
            if c:
                a(f"v_xor_b32 v{t + 2}, 32, v{t + 2}")
            for m in range(2):
                for ks in range(2):
                    for hh in range(2):
                        r = aop + c * 16 + (m * 2 + ks) * 4 + hh * 2
                        a(f"ds_read_b64_tr_b16 {vr(r, 2)}, v{t + 2} offset:{m * 8192 + ks * 4096 + hh * 512}")

    def pair_mfma(self, aop, xop, dd):
        a = self.a
        for ks in range(2):
            for c in range(2):
                for m in range(2):
                    d = dd + (c * 2 + m) * 4
                    cop = "0" if ks == 0 else vr(d, 4)
                    a(f"v_mfma_f32_16x16x32_bf16 {vr(d, 4)}, {vr(aop + c * 16 + (m * 2 + ks) * 4, 4)}, {vr(xop + 4 * ks, 4)}, {cop}")


def copy_out(a, lds_addr_fn, goff_sgpr, t0, t1, d0, d1, tag):
    ST = STT if tag == "t" else STR_
    lds_addr_fn(0, t1)
    a(f"ds_read_b128 {vr(d0, 4)}, v{t1}")
    a(f"v_lshlrev_b32 v{t0}, 4, v0")
    a(f"v_add_u32 v{t0}, s{goff_sgpr}, v{t0}")
    a(f"s_cmp_gt_u32 s{WAVE}, 8")
    a(f"s_cbranch_scc1 L1_one{tag}")
    a(f"v_add_u32 v{t1}, 1024, v0")
    lds_addr_fn(t1, t1)
    a(f"ds_read_b128 {vr(d1, 4)}, v{t1}")
    a(f"v_add_u32 v{t1}, 16384, v{t0}")
    a("s_waitcnt lgkmcnt(0)")
    a(f"global_store_dwordx4 v{t1}, {vr(d1, 4)}, {sr(WS)}{ST}")
    a.label(f"L1_one{tag}")
    a("s_waitcnt lgkmcnt(0)")
    a(f"global_store_dwordx4 v{t0}, {vr(d0, 4)}, {sr(WS)}{ST}")


def gen_k1(a):
    HIST, BASE = 0, 1024
    WST = 2048
    XST = WST + 16384
    TST = XST + 112 * XROW
    STG = TST + NPB * ROW
    LDS = STG + EPC * 8
    TID, LANE = 0, 1
    T0, T1, T2, T3 = 2, 3, 14, 15
    VD, VS, VE = 4, 8, 12
    VW_, VX_ = 16, 20
    XOP = 24
    AOP = 36
    DD = 68
    PK = 84
    VLOC = 87
    VB, VR, VH = 88, 92, 96
    NT = 100
    nd = Node(a, WST, XST, TID, LANE, VW_, VX_, NT)

    a(f".globl {K1}")
    a(".p2align 8")
    a(f".type {K1},@function")
    a.label(K1)
    a(f"s_cmp_ge_u32 s2, {NC}")
    a("s_cbranch_scc1 L1_end")
    stamp(a, 0)
    stamp(a, 20, True)
    load_ptrs(a)
    a(f"v_and_b32 v{LANE}, 63, v{TID}")
    a(f"v_lshrrev_b32 v{T0}, 6, v{TID}")
    a(f"v_lshlrev_b32 v{T1}, 2, v{TID}")
    a(f"v_readfirstlane_b32 s{WAVE}, v{T0}")
    a(f"v_mov_b32 v{T0}, 0")
    a(f"s_cmp_lt_u32 s{WAVE}, 4")
    a("s_cbranch_scc0 L1_nozero")
    a(f"ds_write_b32 v{T1}, v{T0} offset:{HIST}")
    a.label("L1_nozero")
    a("s_waitcnt lgkmcnt(0)")
    fix_ws(a)
    stamp(a, 1)
    nd.issue_loads(GW, 8192, VW)
    a("s_barrier")
    a(f"s_cmp_gt_u32 s{WAVE}, 12")
    a("s_cbranch_scc1 L1_noedge0")
    a(f"s_mul_i32 s24, s2, {EPC * 4}")
    a(f"v_lshlrev_b32 v{T0}, 4, v{TID}")
    a(f"v_add_u32 v{T0}, s24, v{T0}")
    a(f"v_lshrrev_b32 v{T1}, 1, v{T0}")
    a(f"v_cmp_gt_u32 vcc, {EPC // 4}, v{TID}")
    a("s_and_saveexec_b64 s[32:33], vcc")
    a(f"global_load_dwordx4 {vr(VD, 4)}, v{T0}, {sr(DST)}")
    a(f"global_load_dwordx4 {vr(VS, 4)}, v{T0}, {sr(SRC)}")
    a(f"global_load_dwordx2 {vr(VE, 2)}, v{T1}, {sr(EA)}")
    a("s_mov_b64 exec, s[32:33]")
    a("s_waitcnt vmcnt(3)")
    a("s_branch L1_wx")
    a.label("L1_noedge0")
    a("s_waitcnt vmcnt(0)")
    a.label("L1_wx")
    stamp(a, 2)
    nd.stage()
    a("s_waitcnt lgkmcnt(0)")
    a("s_barrier")
    stamp(a, 3)
    a(f"s_cmp_gt_u32 s{WAVE}, 13")
    a("s_cbranch_scc1 L1_notask")
    nd.pair_reads(AOP, XOP, VLOC)
    a(f"v_mul_u32_u24 v{T0}, {ROW}, v{VLOC}")
    a(f"v_lshrrev_b32 v{T1}, 4, v{LANE}")
    a(f"v_lshl_add_u32 v{T0}, v{T1}, 4, v{T0}")
    a("s_lshl_b32 s30, s27, 6")
    a(f"s_add_u32 s30, s30, {TST}")
    a(f"v_add_u32 v{T0}, s30, v{T0}")
    a(f"s_mov_b32 s24, {LOG2E_NEG:#x}")
    a("s_mov_b32 s25, 0x7fff0000")
    a("s_mov_b32 s30, 0x7fffffff")
    a(f"v_cmp_gt_u32 vcc, {NPB}, v{VLOC}")
    a("s_waitcnt lgkmcnt(0)")
    nd.pair_mfma(AOP, XOP, DD)
    a("s_nop 5")
    for c in range(2):
        DQ, DH = DD + c * 8, DD + c * 8 + 4
        if c == 1:
            pass
        for i in range(4):
            a(f"v_mul_f32 v{DQ + i}, s24, v{DQ + i}")
        a(f"v_cvt_pk_bf16_f32 v{PK}, v{DQ}, v{DQ + 1}")
        a(f"v_cvt_pk_bf16_f32 v{PK + 1}, v{DQ + 2}, v{DQ + 3}")
        for i in range(4):
            q = DQ + i
            if i % 2 == 0:
                a(f"v_and_b32 v{q}, 0xffff, v{PK + i // 2}")
            else:
                a(f"v_lshrrev_b32 v{q}, 16, v{PK + i // 2}")
        for i in range(4):
            q, h = DQ + i, DH + i
            a(f"v_and_b32 v{PK + 2}, s30, v{h}")
            a(f"v_sub_u32 v{PK + 2}, v{PK + 2}, v{q}")
            a(f"v_add_u32 v{PK + 2}, 0x8000, v{PK + 2}")
            a(f"v_max_i32 v{PK + 2}, 0, v{PK + 2}")
            a(f"v_and_b32 v{h}, 0x80000000, v{h}")
            a(f"v_or_b32 v{h}, v{h}, v{q}")
            a(f"v_and_or_b32 v{h}, v{PK + 2}, s25, v{h}")
        a("s_and_saveexec_b64 s[32:33], vcc")
        a(f"ds_write_b128 v{T0}, {vr(DH, 4)} offset:{c * 64}")
        a("s_mov_b64 exec, s[32:33]")
    a.label("L1_notask")
    a("s_waitcnt lgkmcnt(0)")
    stamp(a, 4)
    a("s_barrier")

    a(f"s_sub_u32 s24, s{WAVE}, 13")
    a("s_cmp_lt_u32 s24, 2")
    a("s_cbranch_scc0 L1_not")
    a(f"v_lshrrev_b32 v{T0}, 4, v{LANE}")
    a(f"v_mul_u32_u24 v{T0}, {ROW}, v{T0}")
    a(f"v_and_b32 v{T1}, 15, v{LANE}")
    a(f"v_lshl_add_u32 v{T0}, v{T1}, 4, v{T0}")
    a(f"s_mul_i32 s25, s24, {13 * 4 * ROW}")
    a(f"s_add_u32 s25, s25, {TST}")
    a(f"v_add_u32 v{T0}, s25, v{T0}")
    a(f"s_mul_i32 s26, s2, {NPB * 256}")
    a(f"s_mul_i32 s25, s24, {13 * 1024}")
    a("s_add_u32 s26, s26, s25")
    a(f"v_lshlrev_b32 v{T1}, 4, v{LANE}")
    a(f"v_add_u32 v{T1}, s26, v{T1}")
    for n in range(12):
        a(f"ds_read_b128 {vr(16 + 4 * n, 4)}, v{T0} offset:{n * 4 * ROW}")
    a("s_cmp_eq_u32 s24, 0")
    a("s_cbranch_scc0 L1_t12")
    a(f"ds_read_b128 {vr(64, 4)}, v{T0} offset:{12 * 4 * ROW}")
    a(f"v_add_u32 v{T2}, {12 * 1024}, v{T1}")
    a("s_waitcnt lgkmcnt(0)")
    a(f"global_store_dwordx4 v{T2}, {vr(64, 4)}, {sr(WS)}{STT}")
    a.label("L1_t12")
    for n in range(12):
        a(f"s_waitcnt lgkmcnt({max(0, 11 - n)})")
        a(f"global_store_dwordx4 v{T1}, {vr(16 + 4 * n, 4)}, {sr(WS)} offset:{(n % 4) * 1024}{STT}")
        if n % 4 == 3:
            a(f"v_add_u32 v{T1}, 4096, v{T1}")
    stamp(a, 5)
    if STAMPS:
        a("s_waitcnt vmcnt(0)")
    stamp(a, 11)
    stamp(a, 21, True)
    stamp_flush(a, 0)
    a("s_endpgm")
    a.label("L1_not")
    stamp(a, 5)
    a(f"s_cmp_gt_u32 s{WAVE}, 12")
    a("s_cbranch_scc1 L1_noedge1")
    a(f"v_cmp_gt_u32 vcc, {EPC // 4}, v{TID}")
    a("s_and_saveexec_b64 s[32:33], vcc")
    a(f"v_mov_b32 v{T1}, 1")
    a("s_movk_i32 s24, -100")
    a("s_mov_b32 s25, 0xffff0000")
    a("s_movk_i32 s30, 128")
    a("s_waitcnt vmcnt(0)")
    for i in range(4):
        a(f"v_mul_u32_u24 v{T0}, 5243, v{VD + i}")
        a(f"v_lshrrev_b32 v{T0}, 19, v{T0}")
        a(f"v_lshlrev_b32 v{VB + i}, 2, v{T0}")
        a(f"ds_add_rtn_u32 v{VR + i}, v{VB + i}, v{T1} offset:{HIST}")
        a(f"v_mad_i32_i24 v{T2}, v{T0}, s24, v{VD + i}")
        a(f"v_lshrrev_b32 v{T3}, 5, v{VS + i}")
        a(f"v_and_or_b32 v{VH + i}, v{T3}, s30, v{T2}")
        if i % 2 == 0:
            a(f"v_lshl_or_b32 v{VS + i}, v{VE + i // 2}, 16, v{VS + i}")
        else:
            a(f"v_and_or_b32 v{VS + i}, v{VE + i // 2}, s25, v{VS + i}")
    a("s_mov_b64 exec, s[32:33]")
    a.label("L1_noedge1")
    a("s_waitcnt lgkmcnt(0)")
    stamp(a, 6)
    a("s_barrier")
    stamp(a, 7)
    a(f"s_cmp_eq_u32 s{WAVE}, 15")
    a("s_cbranch_scc0 L1_b2")
    C0 = 24
    a(f"v_lshlrev_b32 v{T0}, 4, v{LANE}")
    a(f"ds_read_b128 {vr(C0, 4)}, v{T0} offset:{HIST}")
    a("s_waitcnt lgkmcnt(0)")
    P = 28
    a(f"v_add_u32 v{P + 2}, v{C0}, v{C0 + 1}")
    a(f"v_add_u32 v{P + 3}, v{P + 2}, v{C0 + 2}")
    a(f"v_add_u32 v32, v{P + 3}, v{C0 + 3}")
    a("v_mov_b32 v33, v32")
    wave_scan(a, 33)
    a(f"v_sub_u32 v{P}, v33, v32")
    a(f"v_add_u32 v{P + 1}, v{P}, v{C0}")
    a(f"v_add_u32 v{P + 2}, v{P}, v{P + 2}")
    a(f"v_add_u32 v{P + 3}, v{P}, v{P + 3}")
    a(f"ds_write_b128 v{T0}, {vr(P, 4)} offset:{BASE}")
    a("s_lshl_b32 s24, s2, 10")
    a(f"s_add_u32 s24, s24, {SEG_OFF}")
    a(f"v_add_u32 v{T1}, s24, v{T0}")
    for i in range(4):
        a(f"v_lshl_or_b32 v{36 + i}, v{C0 + i}, 16, v{P + i}")
    a(f"global_store_dwordx4 v{T1}, v[36:39], {sr(WS)}{ST}")
    a("s_cmp_lg_u32 s2, 0")
    a("s_cbranch_scc1 L1_b2")
    a(f"v_mov_b32 v{T2}, 0")
    a(f"v_lshlrev_b32 v{T3}, 2, v{LANE}")
    a(f"v_add_u32 v{T3}, {N * 256}, v{T3}")
    a(f"global_store_dword v{T3}, v{T2}, {sr(WS)}{ST}")
    a.label("L1_b2")
    a("s_waitcnt lgkmcnt(0)")
    stamp(a, 8)
    a("s_barrier")
    a(f"s_cmp_gt_u32 s{WAVE}, 12")
    a("s_cbranch_scc1 L1_noedge2")
    a(f"v_cmp_gt_u32 vcc, {EPC // 4}, v{TID}")
    a("s_and_saveexec_b64 s[32:33], vcc")
    for i in range(4):
        a(f"ds_read_b32 v{VD + i}, v{VB + i} offset:{BASE}")
    a(f"s_mov_b32 s24, {STG}")
    for i in range(4):
        a("s_waitcnt lgkmcnt(3)")
        a(f"v_add_u32 v{VD + i}, v{VD + i}, v{VR + i}")
        a(f"v_lshl_add_u32 v{VD + i}, v{VD + i}, 3, s24")
        a(f"ds_write2_b32 v{VD + i}, v{VS + i}, v{VH + i} offset0:0 offset1:1")
    a("s_mov_b64 exec, s[32:33]")
    a.label("L1_noedge2")
    a("s_waitcnt lgkmcnt(0)")
    stamp(a, 9)
    a("s_barrier")

    a(f"s_min_u32 s25, s{WAVE}, 13")
    a("s_lshl_b32 s25, s25, 10")
    a(f"v_lshlrev_b32 v{T0}, 4, v{LANE}")
    a(f"v_add_u32 v{T0}, s25, v{T0}")
    a(f"v_add_u32 v{T1}, {STG}, v{T0}")
    a(f"ds_read_b128 v[24:27], v{T1}")
    a(f"s_mul_i32 s24, s2, {EPC * 8}")
    a(f"s_add_u32 s24, s24, {REC_OFF}")
    a(f"v_add_u32 v{T0}, s24, v{T0}")
    a(f"s_cmp_gt_u32 s{WAVE}, 10")
    a("s_cbranch_scc1 L1_oner")
    a(f"ds_read_b128 v[28:31], v{T1} offset:{14 * 1024}")
    a(f"v_add_u32 v{T1}, {14 * 1024}, v{T0}")
    a("s_waitcnt lgkmcnt(0)")
    a(f"global_store_dwordx4 v{T1}, v[28:31], {sr(WS)}{STR_}")
    a.label("L1_oner")
    a("s_waitcnt lgkmcnt(0)")
    a(f"global_store_dwordx4 v{T0}, v[24:27], {sr(WS)}{STR_}")
    for o in OPT:
        if o.startswith("delay="):
            n = int(o[6:])
            a(f"s_movk_i32 s24, {n}")
            a.label("L1_dly")
            a("s_sleep 16")
            a("s_sub_u32 s24, s24, 1")
            a("s_cmp_lg_u32 s24, 0")
            a("s_cbranch_scc1 L1_dly")
    stamp(a, 10)
    if STAMPS:
        a("s_waitcnt vmcnt(0)")
    stamp(a, 11)
    stamp(a, 21, True)
    stamp_flush(a, 0)
    a.label("L1_end")
    a("s_endpgm")
    return LDS, 104


def gen_k2(a):
    HIST = 0
    HIST2 = HIST + 1024
    BASE2 = HIST2 + 1024
    WCNT = BASE2 + 1024
    WKEY = WCNT + 1024
    MISC = WKEY + 1024
    SCR = MISC + 256
    ZERO = SCR + 256
    PL = ZERO + 256
    PART0 = PL + NPB * ROW
    PART1 = PART0 + NPB * ROW
    WST = (PART1 + NPB * ROW + 127) // 128 * 128
    XST = WST + 16384
    LIST = XST + NPB * XROW
    CAPK = 48
    COL = CAPK * 4
    LISTB = 228 * COL
    LDS = LIST + LISTB + 64
    assert PART1 < 65536 and PART0 + 64 * ROW < 65536 and LDS <= 163840, LDS
    NWIN = 50
    DUMMY_COL = 100 * COL

    TID, LANE = 0, 1
    T0, T1, T2, T3 = 2, 3, 4, 5
    RB = 6
    REM = 7
    RECS = 8
    RANK = 24
    VW_, VX_ = 32, 36
    XOP = 40
    AOP = 52
    DD = 84
    VLOC = 49
    NT = 100
    VLB = 103
    ASEL = 112
    VJ, VG4, VQ, VONE = 116, 117, 118, 119
    CV = 120
    VZ = 124
    MASK = 40
    nd = Node(a, WST, XST, TID, LANE, VW_, VX_, NT)

    a(f".globl {K2}")
    a(".p2align 8")
    a(f".type {K2},@function")
    a.label(K2)
    a(f"s_cmp_ge_u32 s2, {NB}")
    a("s_cbranch_scc1 L2_end")
    stamp(a, 0)
    stamp(a, 20, True)
    load_ptrs(a)
    a(f"v_and_b32 v{LANE}, 63, v{TID}")
    a(f"v_lshrrev_b32 v{T0}, 6, v{TID}")
    a(f"v_lshlrev_b32 v{T1}, 2, v{TID}")
    a(f"v_readfirstlane_b32 s{WAVE}, v{T0}")
    a(f"v_lshrrev_b32 v{RB}, 2, v{TID}")
    a(f"v_lshlrev_b32 v{RB}, 10, v{RB}")
    a("s_lshl_b32 s24, s2, 2")
    a(f"s_add_u32 s24, s24, {SEG_OFF}")
    a(f"v_add_u32 v{RB}, s24, v{RB}")
    a("s_waitcnt lgkmcnt(0)")
    fix_ws(a)
    stamp(a, 1)
    a(f"global_load_dword v{REM}, v{RB}, {sr(WS)}")
    if "nobq" not in OPT:
        a("s_barrier")
    nd.issue_loads(GW, 0, UW)
    a(f"v_and_b32 v{T0}, 15, v{LANE}")
    a(f"v_lshlrev_b32 v{VJ}, 4, v{T0}")
    a(f"v_lshrrev_b32 v{T2}, 1, v{VJ}")
    a(f"v_add_u32 v{T2}, {128 * 128}, v{T2}")
    a(f"global_load_dwordx2 {vr(CV + 2, 2)}, v{T2}, {sr(GW)}")
    a(f"v_mov_b32 v{T0}, 0")
    a(f"s_cmp_lt_u32 s{WAVE}, 4")
    a("s_cbranch_scc0 L2_nozero")
    a(f"ds_write_b32 v{T1}, v{T0} offset:{HIST}")
    a(f"ds_write_b32 v{T1}, v{T0} offset:{HIST2}")
    a.label("L2_nozero")
    a(f"s_cmp_eq_u32 s{WAVE}, 4")
    a("s_cbranch_scc0 L2_nozero2")
    a(f"v_lshlrev_b32 v{T2}, 2, v{LANE}")
    a(f"v_cmp_eq_u32 vcc, 2, v{LANE}")
    a("s_nop 1")
    a(f"v_cndmask_b32 v{T3}, 0, 16, vcc")
    a(f"ds_write_b32 v{T2}, v{T3} offset:{MISC}")
    a(f"ds_write_b32 v{T2}, v{T0} offset:{ZERO}")
    a.label("L2_nozero2")
    a(f"v_lshrrev_b32 v{RB}, 2, v{TID}")
    a(f"v_mul_u32_u24 v{RB}, {EPC}, v{RB}")
    a(f"v_and_b32 v{T3}, 3, v{TID}")
    a(f"v_lshlrev_b32 v{T3}, 1, v{T3}")
    a(f"v_add_u32 v{RB}, v{RB}, v{T3}")
    a(f"v_cmp_gt_u32 vcc, {NC * 4}, v{TID}")
    a("s_waitcnt vmcnt(3)")
    stamp(a, 2)
    a(f"v_cndmask_b32 v{REM}, 0, v{REM}, vcc")
    a(f"v_and_b32 v{T2}, 0xffff, v{REM}")
    a(f"v_lshrrev_b32 v{REM}, 16, v{REM}")
    a(f"v_add_u32 v{RB}, v{RB}, v{T2}")
    a(f"v_lshlrev_b32 v{RB}, 3, v{RB}")
    a(f"v_add_u32 v{RB}, {REC_OFF}, v{RB}")
    a(f"v_cmp_lt_u32 s[56:57], 32, v{REM}")
    a(f"v_sub_u32 v{REM}, v{REM}, v{T3}")
    for r in range(4):
        for s_ in range(2):
            m = MASK + 2 * (2 * r + s_)
            a(f"v_cmp_gt_i32 {sr(m)}, v{REM}, {8 * r + s_}")
    a("s_nop 2")
    a("s_mov_b32 s58, 0")
    for r in range(4):
        m = MASK + 4 * r
        a(f"s_mov_b64 exec, {sr(m)}")
        a("s_cbranch_execz L2_recs_done")
        a(f"global_load_dwordx4 {vr(RECS + 4 * r, 4)}, v{RB}, {sr(WS)} offset:{64 * r}")
        a(f"s_mov_b32 s58, {r + 1}")
    a.label("L2_recs_done")
    a("s_mov_b64 exec, -1")
    for i in range(4):
        a(f"v_mov_b32 v{XOP + i}, {N}")
    a(f"v_lshlrev_b32 v{T2}, 4, v{TID}")
    a(f"v_add_u32 v{T2}, {LIST}, v{T2}")
    a(f"ds_write_b128 v{T2}, {vr(XOP, 4)}")
    a(f"ds_write_b128 v{T2}, {vr(XOP, 4)} offset:16384")
    nlast = LISTB // 16 - 2048
    a(f"v_cmp_gt_u32 vcc, {nlast}, v{TID}")
    a("s_and_saveexec_b64 s[32:33], vcc")
    a(f"ds_write_b128 v{T2}, {vr(XOP, 4)} offset:32768")
    a("s_mov_b64 exec, s[32:33]")
    a(f"v_and_b32 v{T0}, 15, v{LANE}")
    a(f"v_lshrrev_b32 v{T1}, 4, v{LANE}")
    a(f"v_lshlrev_b32 v{VG4}, 2, v{T1}")
    a(f"v_add_u32 v{VZ}, {ZERO}, v{VJ}")
    a(f"v_mov_b32 v{VONE}, 1")
    a(f"v_mov_b32 v{VLB}, {LIST}")
    a(f"v_lshlrev_b32 v{VQ}, 2, v{LANE}")
    a(f"v_add_u32 v{VQ}, {SCR}, v{VQ}")
    a(f"v_cmp_eq_u32 vcc, 0, v{LANE}")
    a(f"v_mov_b32 v{T3}, {MISC + 8}")
    a(f"v_lshrrev_b32 v{T2}, 2, v{T0}")
    a(f"v_cndmask_b32 v{VQ}, v{VQ}, v{T3}, vcc")
    a(f"v_cmp_eq_u32 vcc, v{T2}, v{T1}")
    a(f"v_mov_b32 v{T3}, 0x3f80")
    a(f"v_and_b32 v{T2}, 3, v{T0}")
    a(f"v_cndmask_b32 v{T3}, 0, v{T3}, vcc")
    for q in range(4):
        a(f"v_cmp_eq_u32 vcc, {q}, v{T2}")
        a("s_nop 1")
        a(f"v_cndmask_b32 v{ASEL + q}, 0, v{T3}, vcc")
    for n in range(4, -1, -1):
        if n:
            a(f"s_cmp_lg_u32 s58, {n}")
            a(f"s_cbranch_scc1 L2_wx{n}")
        a(f"s_waitcnt vmcnt({n})")
        if n:
            a("s_branch L2_wxdone")
            a.label(f"L2_wx{n}")
    a.label("L2_wxdone")
    stamp(a, 3)
    nd.stage()
    a(f"s_mov_b32 s24, {LOG2E_NEG:#x}")
    a(f"v_lshlrev_b32 v{CV}, 16, v{CV + 2}")
    a(f"v_and_b32 v{CV + 1}, 0xffff0000, v{CV + 2}")
    a(f"v_lshlrev_b32 v{CV + 2}, 16, v{CV + 3}")
    a(f"v_and_b32 v{CV + 3}, 0xffff0000, v{CV + 3}")
    for i in range(4):
        a(f"v_mul_f32 v{CV + i}, s24, v{CV + i}")
    a("s_waitcnt lgkmcnt(0)")
    a("s_barrier")
    stamp(a, 4)
    a("s_cmp_eq_u64 s[56:57], 0")
    a("s_cbranch_scc1 L2_noflag")
    a(f"v_mov_b32 v{T2}, 0")
    a(f"ds_write_b32 v{T2}, v{VONE} offset:{MISC}")
    a.label("L2_noflag")
    a(f"s_cmp_gt_u32 s{WAVE}, 13")
    a("s_cbranch_scc1 L2_notask")
    nd.pair_reads(AOP, XOP, VLOC)
    a(f"v_mul_u32_u24 v{T0}, {ROW}, v{VLOC}")
    a(f"v_lshrrev_b32 v{T1}, 4, v{LANE}")
    a(f"v_lshl_add_u32 v{T0}, v{T1}, 4, v{T0}")
    a("s_lshl_b32 s30, s27, 6")
    a(f"v_add_u32 v{T0}, s30, v{T0}")
    a(f"s_mov_b32 s24, {LOG2E_NEG:#x}")
    a(f"v_cmp_gt_u32 vcc, {NPB}, v{VLOC}")
    a("s_waitcnt lgkmcnt(0)")
    nd.pair_mfma(AOP, XOP, DD)
    a("s_nop 5")
    for c in range(2):
        for i in range(4):
            a(f"v_mul_f32 v{DD + c * 8 + i}, s24, v{DD + c * 8 + i}")
    a("s_and_saveexec_b64 s[32:33], vcc")
    for c in range(2):
        a(f"ds_write_b128 v{T0}, {vr(DD + c * 8, 4)} offset:{PL + c * 64}")
        a(f"ds_write_b128 v{T0}, {vr(DD + c * 8 + 4, 4)} offset:{PART0 + c * 64}")
    a("s_mov_b64 exec, s[32:33]")
    a.label("L2_notask")
    a("s_waitcnt vmcnt(0)")
    stamp(a, 5)
    for r in range(4):
        if r >= 2:
            a(f"s_cmp_eq_u64 {sr(MASK + 4 * r)}, 0")
            a(f"s_cbranch_scc1 L2_h{r}")
        for s_ in range(2):
            k = 2 * r + s_
            hi = RECS + 4 * r + 2 * s_ + 1
            a(f"s_mov_b64 exec, {sr(MASK + 2 * k)}")
            a(f"v_lshlrev_b32 v{T1}, 2, v{hi}")
            a(f"ds_add_rtn_u32 v{RANK + k}, v{T1}, v{VONE} offset:{HIST}")
            a(f"v_mul_u32_u24 v{hi}, {COL}, v{hi}")
            a(f"v_add_u32 v{hi}, v{VLB}, v{hi}")
        if r >= 2:
            a.label(f"L2_h{r}")
    a("s_mov_b64 exec, -1")
    a("s_waitcnt lgkmcnt(0)")
    for r in range(4):
        if r >= 2:
            a(f"s_cmp_eq_u64 {sr(MASK + 4 * r)}, 0")
            a(f"s_cbranch_scc1 L2_s{r}")
        for s_ in range(2):
            k = 2 * r + s_
            lo = RECS + 4 * r + 2 * s_
            hi = lo + 1
            a(f"s_mov_b64 exec, {sr(MASK + 2 * k)}")
            a(f"v_min_u32 v{RANK + k}, 63, v{RANK + k}")
            a(f"v_lshl_add_u32 v{hi}, v{RANK + k}, 2, v{hi}")
            a(f"ds_write_b32 v{hi}, v{lo}")
        if r >= 2:
            a.label(f"L2_s{r}")
    a("s_mov_b64 exec, -1")
    a("s_waitcnt lgkmcnt(0)")
    stamp(a, 6)
    a("s_barrier")
    a(f"s_cmp_eq_u32 s{WAVE}, 15")
    a("s_cbranch_scc0 L2_b2")

    a("s_setprio 3")
    CN, BN, RK = 100, 104, 108
    S0 = 84
    a(f"v_lshlrev_b32 v{T0}, 4, v{LANE}")
    a(f"ds_read_b128 {vr(CN, 4)}, v{T0} offset:{HIST}")
    a(f"v_lshrrev_b32 v{T1}, 5, v{LANE}")
    a(f"v_and_b32 v{T2}, 31, v{LANE}")
    a(f"v_cmp_gt_u32 vcc, 25, v{T2}")
    a(f"v_lshlrev_b32 v{T3}, 8, v{T1}")
    a(f"v_add_u32 v{T3}, {63 * 4}, v{T3}")
    a(f"v_mov_b32 v{S0}, {(128 + 63) * 4}")
    a(f"v_cndmask_b32 v{T3}, v{S0}, v{T3}, vcc")
    a(f"v_mul_u32_u24 v{T2}, {4 * ROW}, v{T2}")
    a(f"v_mul_u32_u24 v{T1}, {4 * COL}, v{LANE}")
    a(f"v_lshl_or_b32 v{T1}, v{T1}, 16, v{T2}")
    a("s_waitcnt lgkmcnt(0)")
    a(f"v_max3_u32 v{S0 + 1}, v{CN}, v{CN + 1}, v{CN + 2}")
    a(f"v_max_u32 v{S0 + 1}, v{S0 + 1}, v{CN + 3}")
    for i in range(4):
        a(f"v_min_u32 v{BN + i}, 63, v{CN + i}")
        a(f"v_lshlrev_b32 v{BN + i}, 2, v{BN + i}")
        a(f"v_sub_u32 v{BN + i}, v{T3}, v{BN + i}")
        a(f"ds_add_rtn_u32 v{RK + i}, v{BN + i}, v{VONE} offset:{HIST2}")
    a(f"ds_read_b128 {vr(S0 + 4, 4)}, v{T0} offset:{HIST2}")
    a(f"v_cmp_lt_u32 vcc, {CAPK}, v{S0 + 1}")
    a("s_cbranch_vccz L2_nocap")
    a(f"v_mov_b32 v{S0}, 0")
    a(f"ds_write_b32 v{S0}, v{VONE} offset:{MISC}")
    a.label("L2_nocap")
    a("s_waitcnt lgkmcnt(0)")
    a(f"v_add_u32 v{S0 + 1}, v{S0 + 4}, v{S0 + 5}")
    a(f"v_add_u32 v{S0 + 2}, v{S0 + 1}, v{S0 + 6}")
    a(f"v_add_u32 v{S0 + 3}, v{S0 + 2}, v{S0 + 7}")
    a(f"v_mov_b32 v{S0}, v{S0 + 3}")
    wave_scan(a, S0)
    a(f"v_sub_u32 v{S0}, v{S0}, v{S0 + 3}")
    a(f"v_add_u32 v{S0 + 3}, v{S0}, v{S0 + 2}")
    a(f"v_add_u32 v{S0 + 2}, v{S0}, v{S0 + 1}")
    a(f"v_add_u32 v{S0 + 1}, v{S0}, v{S0 + 4}")
    a(f"ds_write_b128 v{T0}, {vr(S0, 4)} offset:{BASE2}")
    for i in range(4):
        a(f"ds_read_b32 v{S0 + 4 + i}, v{BN + i} offset:{BASE2}")
    a("s_waitcnt lgkmcnt(0)")
    for i in range(4):
        a(f"v_add_u32 v{RK + i}, v{RK + i}, v{S0 + 4 + i}")
        a(f"v_lshlrev_b32 v{RK + i}, 2, v{RK + i}")
        a(f"v_add_u32 v{S0}, {i * ((COL << 16) + ROW)}, v{T1}")
        a(f"ds_write_b32 v{RK + i}, v{CN + i} offset:{WCNT}")
        a(f"ds_write_b32 v{RK + i}, v{S0} offset:{WKEY}")
    a("s_setprio 0")
    a.label("L2_b2")
    a("s_waitcnt lgkmcnt(0)")
    stamp(a, 7)
    a("s_barrier")
    stamp(a, 8)
    NR = 8
    LA = 7
    RA = 8
    PR = 8
    ACC = 12
    DA = 16
    VB = 24
    IX = 56
    EV = 72
    VL = 80
    VFL = 81
    VFN = 82
    VRN = 83
    VIN = 84
    VWL = 85
    SC, SNL, SI = 61, 62, 63
    STR = 64
    a(f"s_mov_b32 s36, s{WS}")
    a(f"s_and_b32 s37, s{WS + 1}, 0xffff")
    a("s_or_b32 s37, s37, 0x1000000")
    a(f"s_mov_b32 s38, {N + 1}")
    a("s_mov_b32 s39, 0x20000")
    a(f"v_mov_b32 v{T0}, 0")
    a(f"ds_read_b32 v{T1}, v{T0} offset:{MISC}")
    a(f"v_lshlrev_b32 v{T2}, 4, v{LANE}")
    a(f"ds_read_b32 v{VWL}, v{T2} offset:{WCNT}")
    a(f"s_lshl_b32 s26, s{WAVE}, 4")
    a(f"v_add_u32 v{T2}, s26, v{VG4}")
    a(f"ds_read_b32 v{T3}, v{T2} offset:{WKEY}")
    for k in range(NR):
        a(f"v_mov_b32 v{IX + 2 * k + 1}, v{VJ}")
        a(f"v_mov_b32 v{EV + k}, 0")
    a("s_mov_b32 s66, 1.0")
    a("s_mov_b32 s67, 1.0")
    a(f"s_mov_b32 s68, {PART0}")
    a(f"s_mov_b32 s69, {PART1}")
    a("s_waitcnt lgkmcnt(0)")
    a(f"v_readfirstlane_b32 s24, v{T1}")
    a(f"v_max_u32 v{VWL}, {RA}, v{VWL}")
    a(f"v_lshrrev_b32 v{VL}, 16, v{T3}")
    a(f"v_add_u32 v{VL}, {LIST}, v{VL}")
    a("s_cmp_lg_u32 s24, 0")
    a("s_cbranch_scc1 L2_slow")
    for k in range(RA):
        a(f"ds_read_u16 v{IX + 2 * k}, v{VL} offset:{4 * k}")
    a(f"v_and_b32 v{VRN}, 0xffff, v{T3}")
    a(f"v_add_u32 v{VRN}, v{VRN}, v{VJ}")
    a(f"v_add_u32 v{VFL}, {PART0}, v{VRN}")
    a(f"v_readlane_b32 s{SC}, v{VWL}, s{WAVE}")
    a(f"s_mov_b32 s{STR}, {RA}")
    a(f"s_mov_b32 s{SI}, s{WAVE}")
    if "noprio" not in OPT:
        a("s_setprio 3")
    a("s_waitcnt lgkmcnt(0)")
    for k in range(LA):
        a(f"buffer_load_dwordx4 {vr(VB + 4 * k, 4)}, {vr(IX + 2 * k, 2)}, s[36:39], 0 idxen offen")
    for k in range(RA):
        a(f"ds_read_u16_d16_hi v{EV + k}, v{VL} offset:{4 * k + 2}")
    a(f"ds_read_b128 {vr(PR, 4)}, v{VRN} offset:{PL}")
    a(f"ds_read_b128 {vr(ACC, 4)}, v{VRN} offset:{PART0}")
    a("s_waitcnt lgkmcnt(0)")
    stamp(a, 9)

    def mfma(k):
        d = DA + 4 * (k & 1)
        a(f"v_mfma_f32_16x16x32_bf16 {vr(d, 4)}, {vr(ASEL, 4)}, {vr(VB + 4 * k, 4)}, {vr(PR, 4)}")

    def tail(k):
        d = DA + 4 * (k & 1)
        vb = VB + 4 * k
        for i in range(4):
            a(f"v_rcp_f32 v{d + i}, v{d + i}")
        a(f"v_pk_fma_f32 {vr(ACC, 2)}, {vr(d, 2)}, {vr(vb, 2)}, {vr(ACC, 2)}")
        a(f"v_pk_fma_f32 {vr(ACC + 2, 2)}, {vr(d + 2, 2)}, {vr(vb + 2, 2)}, {vr(ACC + 2, 2)}")

    def read_idx(k):
        a(f"ds_read_u16 v{IX + 2 * k}, v{VL} offset:{4 * (RA + k)}")

    def read_e(k):
        a(f"ds_read_u16_d16_hi v{EV + k}, v{VL} offset:{4 * (RA + k) + 2}")

    def gather(k):
        p = (k + LA) % NR
        if "nogather" not in OPT:
            a(f"buffer_load_dwordx4 {vr(VB + 4 * p, 4)}, {vr(IX + 2 * p, 2)}, s[36:39], 0 idxen offen")

    def front(k):
        d = DA + 4 * (k & 1)
        epair = EV + (k & ~1)
        osel = "op_sel:[1,0,0] op_sel_hi:[1,1,1]" if k & 1 else "op_sel_hi:[0,1,1]"
        a(f"v_pk_fma_f32 {vr(d, 2)}, {vr(epair, 2)}, {vr(CV, 2)}, {vr(d, 2)} {osel}")
        a(f"v_pk_fma_f32 {vr(d + 2, 2)}, {vr(epair, 2)}, {vr(CV + 2, 2)}, {vr(d + 2, 2)} {osel}")
        read_e(k)
        for i in range(4):
            a(f"v_exp_f32 v{d + i}, v{d + i}")
        a(f"v_pk_add_f32 {vr(d, 2)}, {vr(d, 2)}, s[66:67]")
        a(f"v_pk_add_f32 {vr(d + 2, 2)}, {vr(d + 2, 2)}, s[66:67]")

    a(f"s_cmp_eq_u32 s{SC}, s{STR}")
    a("s_cbranch_scc0 L2_e0")
    a(f"s_mov_b32 s59, 0")
    a("s_branch L2_pop_first")
    a.label("L2_e0")
    a.label("L2_first_cont")
    if "nogather" not in OPT:
        a(f"s_waitcnt vmcnt({LA - 1})")
    mfma(0)
    read_idx(0)
    a("s_nop 5")
    gather(0)
    a("s_branch L2_mid0")

    a.label("L2_loop")
    for k in range(NR):
        pk = (k - 1) % NR
        a(f"s_cmp_eq_u32 s{SC}, s{STR}")
        a(f"s_cbranch_scc1 L2_ev{k}")
        a.label(f"L2_cont{k}")
        if "nogather" not in OPT:
            a(f"s_waitcnt vmcnt({LA - 1})")
        mfma(k)
        read_idx(k)
        tail(pk)
        a("s_waitcnt lgkmcnt(2)")
        gather(k)
        a.label(f"L2_mid{k}")
        front(k)
        a(f"s_sub_u32 s{SC}, s{SC}, 1")
        if k == NR - 1:
            a(f"v_add_u32 v{VL}, {4 * NR}, v{VL}")
            a("s_branch L2_loop")

    def pop(k, tag, cont):
        a(f"ds_add_rtn_u32 v{T2}, v{VQ}, v{VONE}")
        a(f"s_mov_b32 s{STR}, 0")
        a("s_waitcnt lgkmcnt(0)")
        a(f"v_readfirstlane_b32 s{SI}, v{T2}")
        a(f"s_mov_b32 s{SNL}, 0")
        a(f"v_mov_b32 v{VL}, {LIST + DUMMY_COL - 4 * (RA + k)}")
        a("s_nop 1")
        a(f"s_cmp_lt_u32 s{SI}, {NWIN}")
        a(f"s_cbranch_scc0 {cont}")
        a(f"s_lshl_b32 s26, s{SI}, 4")
        a(f"v_add_u32 v{T2}, s26, v{VG4}")
        a(f"ds_read_b32 v{T3}, v{T2} offset:{WKEY}")
        a(f"v_readlane_b32 s{SNL}, v{VWL}, s{SI}")
        a(f"s_cmp_lt_u32 s{SI}, {NWIN // 2}")
        a("s_cselect_b32 s26, s68, s69")
        a("s_waitcnt lgkmcnt(0)")
        a(f"v_and_b32 v{VRN}, 0xffff, v{T3}")
        a(f"v_lshrrev_b32 v{VL}, 16, v{T3}")
        a(f"v_add_u32 v{VRN}, v{VRN}, v{VJ}")
        a(f"v_add_u32 v{VL}, {LIST - 4 * (RA + k)}, v{VL}")
        a(f"v_add_u32 v{VFN}, s26, v{VRN}")
        a(f"v_mov_b32 v{VIN}, v{VFN}")
        a(f"s_cbranch_scc1 {cont}")
        a(f"v_mov_b32 v{VIN}, v{VZ}")
        a(f"s_branch {cont}")

    a.label("L2_pop_first")
    pop(0, "f", "L2_first_cont")
    for k in range(NR):
        pk = (k - 1) % NR
        a.label(f"L2_ev{k}")
        a(f"s_cmp_eq_u32 s{STR}, 0")
        a(f"s_cbranch_scc1 L2_sw{k}")
        pop(k, f"k{k}", f"L2_cont{k}")
        a.label(f"L2_sw{k}")
        tail(pk)
        a(f"ds_write_b128 v{VFL}, {vr(ACC, 4)}")
        a(f"s_cmp_eq_u32 s{SNL}, 0")
        a("s_cbranch_scc1 L2_done")
        a(f"ds_read_b128 {vr(PR, 4)}, v{VRN} offset:{PL}")
        a(f"ds_read_b128 {vr(ACC, 4)}, v{VIN}")
        a(f"v_mov_b32 v{VFL}, v{VFN}")
        a(f"s_mov_b32 s{SC}, s{SNL}")
        a(f"s_mov_b32 s{STR}, {RA}")
        if "noprio" not in OPT:
            a(f"s_cmp_lt_u32 s{SI}, 40")
            a(f"s_cbranch_scc1 L2_p1_{k}")
            a("s_setprio 0")
            a(f"s_branch L2_pd_{k}")
            a.label(f"L2_p1_{k}")
            a(f"s_cmp_lt_u32 s{SI}, 32")
            a(f"s_cbranch_scc1 L2_p2_{k}")
            a("s_setprio 1")
            a(f"s_branch L2_pd_{k}")
            a.label(f"L2_p2_{k}")
            a(f"s_cmp_lt_u32 s{SI}, 25")
            a(f"s_cbranch_scc1 L2_pd_{k}")
            a("s_setprio 2")
            a.label(f"L2_pd_{k}")
        a(f"s_cmp_eq_u32 s{SC}, {RA}")
        a(f"s_cbranch_scc0 L2_sw2_{k}")
        save = f"L2_sw2_{k}"
        pop(k, f"s{k}", save)
        a.label(save)
        if "nogather" not in OPT:
            a(f"s_waitcnt vmcnt({LA - 1}) lgkmcnt(0)")
        else:
            a("s_waitcnt lgkmcnt(0)")
        mfma(k)
        read_idx(k)
        a("s_nop 5")
        gather(k)
        a(f"s_branch L2_mid{k}")

    a.label("L2_slow")
    SSC, SCN, SRI = 61, 62, 63
    a(f"v_lshlrev_b32 v{T0}, 2, v{LANE}")
    a(f"v_lshlrev_b32 v{T1}, 1, v{LANE}")
    a(f"v_add_u32 v{T1}, {128 * 128}, v{T1}")
    a(f"global_load_ushort v{T2}, v{T1}, {sr(GW)}")
    a(f"s_mov_b32 s24, {LOG2E_NEG:#x}")
    a(f"s_mov_b32 s25, s{WAVE}")
    a("v_mov_b32 v9, 0")
    a.label("L2_slow_z")
    a(f"s_mul_i32 s26, s25, {ROW}")
    a(f"v_add_u32 v10, s26, v{T0}")
    a(f"ds_write_b32 v10, v9 offset:{PART1}")
    a("s_add_u32 s25, s25, 16")
    a(f"s_cmp_lt_u32 s25, {NPB}")
    a("s_cbranch_scc1 L2_slow_z")
    a("s_waitcnt vmcnt(0) lgkmcnt(0)")
    a(f"v_lshlrev_b32 v{T2}, 16, v{T2}")
    a(f"v_mul_f32 v8, s24, v{T2}")
    a(f"s_mov_b32 s{SSC}, 0")
    a.label("L2_slow_seg")
    a(f"s_cmp_ge_u32 s{SSC}, {NC}")
    a("s_cbranch_scc1 L2_done")
    a(f"s_lshl_b32 s24, s{SSC}, 8")
    a("s_add_u32 s24, s24, s2")
    a("s_lshl_b32 s24, s24, 2")
    a(f"s_add_u32 s24, s24, {SEG_OFF}")
    a(f"v_mov_b32 v{T1}, s24")
    a(f"global_load_dword v{T2}, v{T1}, {sr(WS)}")
    a("s_waitcnt vmcnt(0)")
    a(f"v_readfirstlane_b32 s25, v{T2}")
    a("s_nop 3")
    a(f"s_lshr_b32 s{SCN}, s25, 16")
    a("s_and_b32 s25, s25, 0xffff")
    a(f"s_mul_i32 s26, s{SSC}, {EPC}")
    a("s_add_u32 s26, s26, s25")
    a("s_lshl_b32 s26, s26, 3")
    a(f"s_add_u32 s{SRI}, s26, {REC_OFF}")
    a.label("L2_slow_rec")
    a(f"s_cmp_eq_u32 s{SCN}, 0")
    a("s_cbranch_scc1 L2_slow_next")
    a(f"v_mov_b32 v{T1}, s{SRI}")
    a(f"global_load_dwordx2 v[10:11], v{T1}, {sr(WS)}")
    a(f"s_add_u32 s{SRI}, s{SRI}, 8")
    a(f"s_sub_u32 s{SCN}, s{SCN}, 1")
    a("s_waitcnt vmcnt(0)")
    a("v_and_b32 v14, 127, v11")
    a("v_and_b32 v15, 15, v14")
    a("s_nop 0")
    a("v_readfirstlane_b32 s25, v15")
    a("s_nop 3")
    a(f"s_cmp_lg_u32 s25, s{WAVE}")
    a("s_cbranch_scc1 L2_slow_rec")
    a("v_and_b32 v18, 0xffff, v10")
    a(f"v_mov_b32 v19, v{T0}")
    a("buffer_load_dword v13, v[18:19], s[36:39], 0 idxen offen")
    a(f"v_mul_u32_u24 v14, {ROW}, v14")
    a(f"v_add_u32 v14, v14, v{T0}")
    a(f"ds_read_b32 v15, v14 offset:{PL}")
    a(f"ds_read_b32 v17, v14 offset:{PART1}")
    a("v_and_b32 v11, 0xffff0000, v10")
    a("s_waitcnt vmcnt(0) lgkmcnt(0)")
    a("v_lshlrev_b32 v16, 16, v13")
    a("v_add_f32 v16, v16, v15")
    a("v_fmac_f32 v16, v11, v8")
    a("v_exp_f32 v16, v16")
    a("s_nop 0")
    a("v_add_f32 v16, 1.0, v16")
    a("v_rcp_f32 v16, v16")
    a("s_nop 0")
    a("v_fmac_f32 v17, v16, v13")
    a(f"ds_write_b32 v14, v17 offset:{PART1}")
    a("s_waitcnt lgkmcnt(0)")
    a("s_branch L2_slow_rec")
    a.label("L2_slow_next")
    a(f"s_add_u32 s{SSC}, s{SSC}, 1")
    a("s_branch L2_slow_seg")

    a.label("L2_done")
    stamp(a, 10)
    a("s_setprio 0")
    a("s_waitcnt vmcnt(0) lgkmcnt(0)")
    a("s_barrier")
    stamp(a, 11)
    a(f"v_lshrrev_b32 v{T0}, 4, v{TID}")
    a(f"v_and_b32 v{T1}, 15, v{TID}")
    a(f"v_mul_u32_u24 v{T2}, {ROW}, v{T0}")
    a(f"v_lshl_add_u32 v{T2}, v{T1}, 4, v{T2}")
    a(f"s_mul_i32 s24, s2, {NPB * 128}")
    a(f"v_lshlrev_b32 v{T3}, 7, v{T0}")
    a(f"v_lshl_add_u32 v{T3}, v{T1}, 3, v{T3}")
    a(f"v_add_u32 v{T3}, s24, v{T3}")
    a(f"s_mov_b32 s24, {LOG2E_NEG:#x}")

    def silu_store(src, off):
        for i in range(4):
            a(f"v_add_f32 v{src + i}, v{src + i}, v{src + 4 + i}")
        for i in range(4):
            a(f"v_mul_f32 v{src + 4 + i}, s24, v{src + i}")
        for i in range(4):
            a(f"v_exp_f32 v{src + 4 + i}, v{src + 4 + i}")
        a("s_nop 0")
        for i in range(4):
            a(f"v_add_f32 v{src + 4 + i}, 1.0, v{src + 4 + i}")
        for i in range(4):
            a(f"v_rcp_f32 v{src + 4 + i}, v{src + 4 + i}")
        a("s_nop 0")
        for i in range(4):
            a(f"v_mul_f32 v{src + i}, v{src + i}, v{src + 4 + i}")
        a(f"v_cvt_pk_bf16_f32 v{src + 4}, v{src}, v{src + 1}")
        a(f"v_cvt_pk_bf16_f32 v{src + 5}, v{src + 2}, v{src + 3}")
        a(f"global_store_dwordx2 v{off}, {vr(src + 4, 2)}, {sr(OUT)}")

    a(f"ds_read_b128 v[8:11], v{T2} offset:{PART0}")
    a(f"ds_read_b128 v[12:15], v{T2} offset:{PART1}")
    a(f"s_cmp_lt_u32 s{WAVE}, 9")
    a("s_cbranch_scc0 L2_ep1")
    a(f"v_add_u32 v7, {64 * ROW}, v{T2}")
    a(f"ds_read_b128 v[16:19], v7 offset:{PART0}")
    a(f"ds_read_b128 v[20:23], v7 offset:{PART1}")
    a("s_waitcnt lgkmcnt(0)")
    a(f"v_add_u32 v6, {64 * 128}, v{T3}")
    silu_store(16, 6)
    a.label("L2_ep1")
    a("s_waitcnt lgkmcnt(0)")
    silu_store(8, T3)
    stamp(a, 12)
    if STAMPS:
        a("s_waitcnt vmcnt(0)")
    stamp(a, 13)
    stamp(a, 21, True)
    stamp_flush(a, 1)
    a.label("L2_end")
    a("s_endpgm")
    return LDS, 128


def descriptor(a, name, vgprs, sgprs=80):
    a(f".amdhsa_kernel {name}")
    a(f"  .amdhsa_next_free_vgpr {vgprs}")
    a(f"  .amdhsa_next_free_sgpr {sgprs}")
    a(f"  .amdhsa_accum_offset {vgprs}")
    a("  .amdhsa_group_segment_fixed_size 0")
    a("  .amdhsa_kernarg_size 80")
    a("  .amdhsa_user_sgpr_count 2")
    a("  .amdhsa_user_sgpr_kernarg_segment_ptr 1")
    a("  .amdhsa_system_sgpr_workgroup_id_x 1")
    a("  .amdhsa_float_denorm_mode_32 3")
    a(".end_amdhsa_kernel")


def main():
    global STAMPS, ST, STT, STR_
    if "--stamps" in sys.argv:
        STAMPS = True
        sys.argv.remove("--stamps")
    for o in OPT:
        if o.startswith("st="):
            ST = STT = STR_ = " " + o[3:].replace("+", " ")
        if o.startswith("stt="):
            STT = " " + o[4:].replace("+", " ")
        if o.startswith("str="):
            STR_ = " " + o[4:].replace("+", " ")
    body = Asm()
    body(".amdgcn_target \"amdgcn-amd-amdhsa--gfx950\"")
    body(".text")
    lds1, v1 = gen_k1(body)
    lds2, v2 = gen_k2(body)
    body(".section .rodata,\"a\"")
    body(".p2align 6")
    descriptor(body, K1, 128 if STAMPS else v1)
    body(".p2align 6")
    descriptor(body, K2, v2)
    head = [
        "; Edge-gated MPNN layer in two launches (generated by a hand-written generator script).",
        "; launch 1: partitions the edges by destination bucket and builds the per-node source table",
        "; launch 2: per bucket of 100 nodes: sorts its edges, gated aggregation, SiLU epilogue",
        f"; @launch kernel={K1} grid=({NC},1,1) block=(1024,1,1) lds={lds1}",
        f"; @launch kernel={K2} grid=({NB},1,1) block=(1024,1,1) lds={lds2}",
    ]
    out = "\n".join(head) + "\n" + body.text()
    path = sys.argv[1] if len(sys.argv) > 1 else "standalone__edge_featured_mpnn_egc__graph.s"
    open(path, "w").write(out)
    print("wrote", path, "lds", lds1, lds2)


if __name__ == "__main__":
    main()
```

```python
import os
import sys

N = 25000
E = 800000
NB = 250
NPB = 100
NC = 250
EPC = 3200
HALF = 12500

T_OFF = 0
REC_OFF = 0x700000
SEG_OFF = 0xE00000

LOG2E_NEG = 0xBFB8AA3B
ROW = 272
XROW = 144

K1 = "egc_part_kernel"
K2 = "standalone__edge_featured_mpnn_egc__graph_kernel"

OPT = set(os.environ.get("OPT", "").split(","))
STAMPS = False
STAMP_OFF = 0x1000000
SV = 127

X, EA, SRC, DST, UW, VW, GW, OUT, WS = 4, 6, 8, 10, 12, 14, 16, 18, 20
WAVE = 22


def stamp(a, i, real=False):
    if not STAMPS:
        return
    a(f"s_mem{'real' if real else ''}time s[70:71]")
    a("s_waitcnt lgkmcnt(0)")
    a(f"v_writelane_b32 v{SV}, s70, {i}")


def stamp_flush(a, which):
    if not STAMPS:
        return
    a("s_lshl_b32 s72, s2, 4")
    a(f"s_add_u32 s72, s72, s{WAVE}")
    a("s_lshl_b32 s72, s72, 8")
    a(f"s_add_u32 s72, s72, {STAMP_OFF + which * 0x200000}")
    a("v_and_b32 v126, 63, v0")
    a("v_lshlrev_b32 v126, 2, v126")
    a("v_add_u32 v126, s72, v126")
    a(f"global_store_dword v126, v{SV}, s[20:21]")


class Asm:
    def __init__(self):
        self.lines = []

    def __call__(self, s=""):
        for ln in s.split("\n"):
            self.lines.append(ln if ln.strip().endswith(":") else "    " + ln.strip())

    def label(self, s):
        self.lines.append(s + ":")

    def text(self):
        return "\n".join(self.lines) + "\n"


def vr(a, n):
    return f"v[{a}:{a + n - 1}]"


def sr(a, n=2):
    return f"s[{a}:{a + n - 1}]"


def wave_scan(a, v):
    for sh in (1, 2, 4, 8):
        a("s_nop 1")
        a(f"v_add_u32_dpp v{v}, v{v}, v{v} row_shr:{sh} row_mask:0xf bank_mask:0xf bound_ctrl:0")
    a("s_nop 1")
    a(f"v_add_u32_dpp v{v}, v{v}, v{v} row_bcast:15 row_mask:0xa bank_mask:0xf")
    a("s_nop 1")
    a(f"v_add_u32_dpp v{v}, v{v}, v{v} row_bcast:31 row_mask:0xc bank_mask:0xf")
    a("s_nop 1")


WSBASE = int(os.environ.get("WSBASE", "0"), 0)


def load_ptrs(a):
    a("s_load_dwordx16 s[4:19], s[0:1], 0")
    a("s_load_dwordx2 s[20:21], s[0:1], 72")


def fix_ws(a):
    if WSBASE:
        a(f"s_add_u32 s20, s20, {WSBASE}")
        a("s_addc_u32 s21, s21, 0")


ST = ""
STT = ""
STR_ = ""


class Node:
    def __init__(self, a, WST, XST, tid, lane, vw, vx, t):
        self.a, self.WST, self.XST = a, WST, XST
        self.tid, self.lane, self.vw, self.vx, self.t = tid, lane, vw, vx, t

    def issue_loads(self, p0, off0, p1):
        a, t = self.a, self.t
        a(f"s_cmp_lt_u32 s{WAVE}, 8")
        a(f"s_cselect_b32 s24, s{p0}, s{p1}")
        a(f"s_cselect_b32 s25, s{p0 + 1}, s{p1 + 1}")
        if off0:
            a(f"s_cselect_b32 s26, {off0}, 0")
            a("s_add_u32 s24, s24, s26")
            a("s_addc_u32 s25, s25, 0")
        a(f"v_and_b32 v{t}, 511, v{self.tid}")
        a(f"v_lshlrev_b32 v{t}, 4, v{t}")
        a(f"global_load_dwordx4 {vr(self.vw, 4)}, v{t}, s[24:25]")
        a(f"v_min_u32 v{t}, {NPB * 8 - 1}, v{self.tid}")
        a(f"v_lshlrev_b32 v{t}, 4, v{t}")
        a(f"s_mul_i32 s26, s2, {NPB * 128}")
        a(f"v_add_u32 v{t}, s26, v{t}")
        a(f"global_load_dwordx4 {vr(self.vx, 4)}, v{t}, {sr(X)}")

    def stage(self):
        a, t, tid = self.a, self.t, self.tid
        a(f"v_bfe_u32 v{t}, v{tid}, 4, 1")
        a(f"v_bfe_u32 v{t + 1}, v{tid}, 6, 1")
        a(f"v_lshl_or_b32 v{t}, v{t + 1}, 1, v{t}")
        a(f"v_lshlrev_b32 v{t}, 5, v{t}")
        a(f"v_lshlrev_b32 v{t + 1}, 4, v{tid}")
        a(f"v_xor_b32 v{t}, v{t}, v{t + 1}")
        a(f"v_add_u32 v{t}, {self.WST}, v{t}")
        a(f"ds_write_b128 v{t}, {vr(self.vw, 4)}")
        a(f"v_lshrrev_b32 v{t}, 3, v{tid}")
        a(f"v_mul_u32_u24 v{t}, {XROW}, v{t}")
        a(f"v_and_b32 v{t + 1}, 7, v{tid}")
        a(f"v_lshl_add_u32 v{t}, v{t + 1}, 4, v{t}")
        a(f"v_add_u32 v{t}, {self.XST}, v{t}")
        a(f"v_cmp_gt_u32 vcc, {NPB * 8}, v{tid}")
        a("s_and_saveexec_b64 s[32:33], vcc")
        a(f"ds_write_b128 v{t}, {vr(self.vx, 4)}")
        a("s_mov_b64 exec, s[32:33]")

    def pair_reads(self, aop, xop, vloc):
        a, t, lane = self.a, self.t, self.lane
        a(f"s_and_b32 s27, s{WAVE}, 1")
        a("s_lshl_b32 s27, s27, 1")
        a(f"s_lshr_b32 s26, s{WAVE}, 1")
        a(f"v_and_b32 v{t}, 15, v{lane}")
        a(f"v_lshrrev_b32 v{t + 1}, 4, v{lane}")
        a("s_lshl_b32 s26, s26, 4")
        a(f"v_add_u32 v{vloc}, s26, v{t}")
        a(f"v_mul_u32_u24 v{t + 2}, {XROW}, v{vloc}")
        a(f"v_lshl_add_u32 v{t + 2}, v{t + 1}, 4, v{t + 2}")
        a(f"v_add_u32 v{t + 2}, {self.XST}, v{t + 2}")
        a(f"ds_read_b128 {vr(xop, 4)}, v{t + 2}")
        a(f"ds_read_b128 {vr(xop + 4, 4)}, v{t + 2} offset:64")
        a(f"v_lshrrev_b32 v{t + 2}, 3, v{t}")
        a(f"v_and_b32 v{xop + 8}, 1, v{t + 1}")
        a(f"v_lshl_or_b32 v{t + 2}, v{xop + 8}, 1, v{t + 2}")
        a(f"v_xor_b32 v{t + 2}, s27, v{t + 2}")
        a(f"v_lshlrev_b32 v{t + 2}, 5, v{t + 2}")
        a(f"v_lshrrev_b32 v{xop + 8}, 2, v{t}")
        a(f"v_lshl_add_u32 v{xop + 8}, v{t + 1}, 3, v{xop + 8}")
        a(f"v_lshl_add_u32 v{t + 2}, v{xop + 8}, 7, v{t + 2}")
        a(f"v_and_b32 v{xop + 8}, 3, v{t}")
        a(f"v_lshl_add_u32 v{t + 2}, v{xop + 8}, 3, v{t + 2}")
        a(f"v_add_u32 v{t + 2}, {self.WST}, v{t + 2}")
        assert self.WST % 128 == 0
        for c in range(2):
            if c:
                a(f"v_xor_b32 v{t + 2}, 32, v{t + 2}")
            for m in range(2):
                for ks in range(2):
                    for hh in range(2):
                        r = aop + c * 16 + (m * 2 + ks) * 4 + hh * 2
                        a(f"ds_read_b64_tr_b16 {vr(r, 2)}, v{t + 2} offset:{m * 8192 + ks * 4096 + hh * 512}")

    def pair_mfma(self, aop, xop, dd):
        a = self.a
        for ks in range(2):
            for c in range(2):
                for m in range(2):
                    d = dd + (c * 2 + m) * 4
                    cop = "0" if ks == 0 else vr(d, 4)
                    a(f"v_mfma_f32_16x16x32_bf16 {vr(d, 4)}, {vr(aop + c * 16 + (m * 2 + ks) * 4, 4)}, {vr(xop + 4 * ks, 4)}, {cop}")


def copy_out(a, lds_addr_fn, goff_sgpr, t0, t1, d0, d1, tag):
    ST = STT if tag == "t" else STR_
    lds_addr_fn(0, t1)
    a(f"ds_read_b128 {vr(d0, 4)}, v{t1}")
    a(f"v_lshlrev_b32 v{t0}, 4, v0")
    a(f"v_add_u32 v{t0}, s{goff_sgpr}, v{t0}")
    a(f"s_cmp_gt_u32 s{WAVE}, 8")
    a(f"s_cbranch_scc1 L1_one{tag}")
    a(f"v_add_u32 v{t1}, 1024, v0")
    lds_addr_fn(t1, t1)
    a(f"ds_read_b128 {vr(d1, 4)}, v{t1}")
    a(f"v_add_u32 v{t1}, 16384, v{t0}")
    a("s_waitcnt lgkmcnt(0)")
    a(f"global_store_dwordx4 v{t1}, {vr(d1, 4)}, {sr(WS)}{ST}")
    a.label(f"L1_one{tag}")
    a("s_waitcnt lgkmcnt(0)")
    a(f"global_store_dwordx4 v{t0}, {vr(d0, 4)}, {sr(WS)}{ST}")


def gen_k1(a):
    HIST, BASE = 0, 1024
    WST = 2048
    XST = WST + 16384
    TST = XST + 112 * XROW
    STG = TST + NPB * ROW
    LDS = STG + EPC * 8
    TID, LANE = 0, 1
    T0, T1, T2, T3 = 2, 3, 14, 15
    VD, VS, VE = 4, 8, 12
    VW_, VX_ = 16, 20
    XOP = 24
    AOP = 36
    DD = 68
    PK = 84
    VLOC = 87
    VB, VR, VH = 88, 92, 96
    NT = 100
    nd = Node(a, WST, XST, TID, LANE, VW_, VX_, NT)

    a(f".globl {K1}")
    a(".p2align 8")
    a(f".type {K1},@function")
    a.label(K1)
    a(f"s_cmp_ge_u32 s2, {NC}")
    a("s_cbranch_scc1 L1_end")
    stamp(a, 0)
    stamp(a, 20, True)
    load_ptrs(a)
    a(f"v_and_b32 v{LANE}, 63, v{TID}")
    a(f"v_lshrrev_b32 v{T0}, 6, v{TID}")
    a(f"v_lshlrev_b32 v{T1}, 2, v{TID}")
    a(f"v_readfirstlane_b32 s{WAVE}, v{T0}")
    a(f"v_mov_b32 v{T0}, 0")
    a(f"s_cmp_lt_u32 s{WAVE}, 4")
    a("s_cbranch_scc0 L1_nozero")
    a(f"ds_write_b32 v{T1}, v{T0} offset:{HIST}")
    a.label("L1_nozero")
    a("s_waitcnt lgkmcnt(0)")
    fix_ws(a)
    stamp(a, 1)
    nd.issue_loads(GW, 8192, VW)
    a("s_barrier")
    a(f"s_cmp_gt_u32 s{WAVE}, 12")
    a("s_cbranch_scc1 L1_noedge0")
    a(f"s_mul_i32 s24, s2, {EPC * 4}")
    a(f"v_lshlrev_b32 v{T0}, 4, v{TID}")
    a(f"v_add_u32 v{T0}, s24, v{T0}")
    a(f"v_lshrrev_b32 v{T1}, 1, v{T0}")
    a(f"v_cmp_gt_u32 vcc, {EPC // 4}, v{TID}")
    a("s_and_saveexec_b64 s[32:33], vcc")
    a(f"global_load_dwordx4 {vr(VD, 4)}, v{T0}, {sr(DST)}")
    a(f"global_load_dwordx4 {vr(VS, 4)}, v{T0}, {sr(SRC)}")
    a(f"global_load_dwordx2 {vr(VE, 2)}, v{T1}, {sr(EA)}")
    a("s_mov_b64 exec, s[32:33]")
    a("s_waitcnt vmcnt(3)")
    a("s_branch L1_wx")
    a.label("L1_noedge0")
    a("s_waitcnt vmcnt(0)")
    a.label("L1_wx")
    stamp(a, 2)
    nd.stage()
    a("s_waitcnt lgkmcnt(0)")
    a("s_barrier")
    stamp(a, 3)
    a(f"s_cmp_gt_u32 s{WAVE}, 13")
    a("s_cbranch_scc1 L1_notask")
    nd.pair_reads(AOP, XOP, VLOC)
    a(f"v_mul_u32_u24 v{T0}, {ROW}, v{VLOC}")
    a(f"v_lshrrev_b32 v{T1}, 4, v{LANE}")
    a(f"v_lshl_add_u32 v{T0}, v{T1}, 4, v{T0}")
    a("s_lshl_b32 s30, s27, 6")
    a(f"s_add_u32 s30, s30, {TST}")
    a(f"v_add_u32 v{T0}, s30, v{T0}")
    a(f"s_mov_b32 s24, {LOG2E_NEG:#x}")
    a("s_mov_b32 s25, 0x7fff0000")
    a("s_mov_b32 s30, 0x7fffffff")
    a(f"v_cmp_gt_u32 vcc, {NPB}, v{VLOC}")
    a("s_waitcnt lgkmcnt(0)")
    nd.pair_mfma(AOP, XOP, DD)
    a("s_nop 5")
    for c in range(2):
        DQ, DH = DD + c * 8, DD + c * 8 + 4
        if c == 1:
            pass
        for i in range(4):
            a(f"v_mul_f32 v{DQ + i}, s24, v{DQ + i}")
        a(f"v_cvt_pk_bf16_f32 v{PK}, v{DQ}, v{DQ + 1}")
        a(f"v_cvt_pk_bf16_f32 v{PK + 1}, v{DQ + 2}, v{DQ + 3}")
        for i in range(4):
            q = DQ + i
            if i % 2 == 0:
                a(f"v_and_b32 v{q}, 0xffff, v{PK + i // 2}")
            else:
                a(f"v_lshrrev_b32 v{q}, 16, v{PK + i // 2}")
        for i in range(4):
            q, h = DQ + i, DH + i
            a(f"v_and_b32 v{PK + 2}, s30, v{h}")
            a(f"v_sub_u32 v{PK + 2}, v{PK + 2}, v{q}")
            a(f"v_add_u32 v{PK + 2}, 0x8000, v{PK + 2}")
            a(f"v_max_i32 v{PK + 2}, 0, v{PK + 2}")
            a(f"v_and_b32 v{h}, 0x80000000, v{h}")
            a(f"v_or_b32 v{h}, v{h}, v{q}")
            a(f"v_and_or_b32 v{h}, v{PK + 2}, s25, v{h}")
        a("s_and_saveexec_b64 s[32:33], vcc")
        a(f"ds_write_b128 v{T0}, {vr(DH, 4)} offset:{c * 64}")
        a("s_mov_b64 exec, s[32:33]")
    a.label("L1_notask")
    a("s_waitcnt lgkmcnt(0)")
    stamp(a, 4)
    a("s_barrier")

    a(f"s_sub_u32 s24, s{WAVE}, 13")
    a("s_cmp_lt_u32 s24, 2")
    a("s_cbranch_scc0 L1_not")
    a(f"v_lshrrev_b32 v{T0}, 4, v{LANE}")
    a(f"v_mul_u32_u24 v{T0}, {ROW}, v{T0}")
    a(f"v_and_b32 v{T1}, 15, v{LANE}")
    a(f"v_lshl_add_u32 v{T0}, v{T1}, 4, v{T0}")
    a(f"s_mul_i32 s25, s24, {13 * 4 * ROW}")
    a(f"s_add_u32 s25, s25, {TST}")
    a(f"v_add_u32 v{T0}, s25, v{T0}")
    a(f"s_mul_i32 s26, s2, {NPB * 256}")
    a(f"s_mul_i32 s25, s24, {13 * 1024}")
    a("s_add_u32 s26, s26, s25")
    a(f"v_lshlrev_b32 v{T1}, 4, v{LANE}")
    a(f"v_add_u32 v{T1}, s26, v{T1}")
    for n in range(12):
        a(f"ds_read_b128 {vr(16 + 4 * n, 4)}, v{T0} offset:{n * 4 * ROW}")
    a("s_cmp_eq_u32 s24, 0")
    a("s_cbranch_scc0 L1_t12")
    a(f"ds_read_b128 {vr(64, 4)}, v{T0} offset:{12 * 4 * ROW}")
    a(f"v_add_u32 v{T2}, {12 * 1024}, v{T1}")
    a("s_waitcnt lgkmcnt(0)")
    a(f"global_store_dwordx4 v{T2}, {vr(64, 4)}, {sr(WS)}{STT}")
    a.label("L1_t12")
    for n in range(12):
        a(f"s_waitcnt lgkmcnt({max(0, 11 - n)})")
        a(f"global_store_dwordx4 v{T1}, {vr(16 + 4 * n, 4)}, {sr(WS)} offset:{(n % 4) * 1024}{STT}")
        if n % 4 == 3:
            a(f"v_add_u32 v{T1}, 4096, v{T1}")
    stamp(a, 5)
    if STAMPS:
        a("s_waitcnt vmcnt(0)")
    stamp(a, 11)
    stamp(a, 21, True)
    stamp_flush(a, 0)
    a("s_endpgm")
    a.label("L1_not")
    stamp(a, 5)
    a(f"s_cmp_gt_u32 s{WAVE}, 12")
    a("s_cbranch_scc1 L1_noedge1")
    a(f"v_cmp_gt_u32 vcc, {EPC // 4}, v{TID}")
    a("s_and_saveexec_b64 s[32:33], vcc")
    a(f"v_mov_b32 v{T1}, 1")
    a("s_movk_i32 s24, -100")
    a("s_mov_b32 s25, 0xffff0000")
    a("s_movk_i32 s30, 128")
    a("s_waitcnt vmcnt(0)")
    for i in range(4):
        a(f"v_mul_u32_u24 v{T0}, 5243, v{VD + i}")
        a(f"v_lshrrev_b32 v{T0}, 19, v{T0}")
        a(f"v_lshlrev_b32 v{VB + i}, 2, v{T0}")
        a(f"ds_add_rtn_u32 v{VR + i}, v{VB + i}, v{T1} offset:{HIST}")
        a(f"v_mad_i32_i24 v{T2}, v{T0}, s24, v{VD + i}")
        a(f"v_lshrrev_b32 v{T3}, 5, v{VS + i}")
        a(f"v_and_or_b32 v{VH + i}, v{T3}, s30, v{T2}")
        if i % 2 == 0:
            a(f"v_lshl_or_b32 v{VS + i}, v{VE + i // 2}, 16, v{VS + i}")
        else:
            a(f"v_and_or_b32 v{VS + i}, v{VE + i // 2}, s25, v{VS + i}")
    a("s_mov_b64 exec, s[32:33]")
    a.label("L1_noedge1")
    a("s_waitcnt lgkmcnt(0)")
    stamp(a, 6)
    a("s_barrier")
    stamp(a, 7)
    a(f"s_cmp_eq_u32 s{WAVE}, 15")
    a("s_cbranch_scc0 L1_b2")
    C0 = 24
    a(f"v_lshlrev_b32 v{T0}, 4, v{LANE}")
    a(f"ds_read_b128 {vr(C0, 4)}, v{T0} offset:{HIST}")
    a("s_waitcnt lgkmcnt(0)")
    P = 28
    a(f"v_add_u32 v{P + 2}, v{C0}, v{C0 + 1}")
    a(f"v_add_u32 v{P + 3}, v{P + 2}, v{C0 + 2}")
    a(f"v_add_u32 v32, v{P + 3}, v{C0 + 3}")
    a("v_mov_b32 v33, v32")
    wave_scan(a, 33)
    a(f"v_sub_u32 v{P}, v33, v32")
    a(f"v_add_u32 v{P + 1}, v{P}, v{C0}")
    a(f"v_add_u32 v{P + 2}, v{P}, v{P + 2}")
    a(f"v_add_u32 v{P + 3}, v{P}, v{P + 3}")
    a(f"ds_write_b128 v{T0}, {vr(P, 4)} offset:{BASE}")
    a("s_lshl_b32 s24, s2, 10")
    a(f"s_add_u32 s24, s24, {SEG_OFF}")
    a(f"v_add_u32 v{T1}, s24, v{T0}")
    for i in range(4):
        a(f"v_lshl_or_b32 v{36 + i}, v{C0 + i}, 16, v{P + i}")
    a(f"global_store_dwordx4 v{T1}, v[36:39], {sr(WS)}{ST}")
    a("s_cmp_lg_u32 s2, 0")
    a("s_cbranch_scc1 L1_b2")
    a(f"v_mov_b32 v{T2}, 0")
    a(f"v_lshlrev_b32 v{T3}, 2, v{LANE}")
    a(f"v_add_u32 v{T3}, {N * 256}, v{T3}")
    a(f"global_store_dword v{T3}, v{T2}, {sr(WS)}{ST}")
    a.label("L1_b2")
    a("s_waitcnt lgkmcnt(0)")
    stamp(a, 8)
    a("s_barrier")
    a(f"s_cmp_gt_u32 s{WAVE}, 12")
    a("s_cbranch_scc1 L1_noedge2")
    a(f"v_cmp_gt_u32 vcc, {EPC // 4}, v{TID}")
    a("s_and_saveexec_b64 s[32:33], vcc")
    for i in range(4):
        a(f"ds_read_b32 v{VD + i}, v{VB + i} offset:{BASE}")
    a(f"s_mov_b32 s24, {STG}")
    for i in range(4):
        a("s_waitcnt lgkmcnt(3)")
        a(f"v_add_u32 v{VD + i}, v{VD + i}, v{VR + i}")
        a(f"v_lshl_add_u32 v{VD + i}, v{VD + i}, 3, s24")
        a(f"ds_write2_b32 v{VD + i}, v{VS + i}, v{VH + i} offset0:0 offset1:1")
    a("s_mov_b64 exec, s[32:33]")
    a.label("L1_noedge2")
    a("s_waitcnt lgkmcnt(0)")
    stamp(a, 9)
    a("s_barrier")

    a(f"s_min_u32 s25, s{WAVE}, 13")
    a("s_lshl_b32 s25, s25, 10")
    a(f"v_lshlrev_b32 v{T0}, 4, v{LANE}")
    a(f"v_add_u32 v{T0}, s25, v{T0}")
    a(f"v_add_u32 v{T1}, {STG}, v{T0}")
    a(f"ds_read_b128 v[24:27], v{T1}")
    a(f"s_mul_i32 s24, s2, {EPC * 8}")
    a(f"s_add_u32 s24, s24, {REC_OFF}")
    a(f"v_add_u32 v{T0}, s24, v{T0}")
    a(f"s_cmp_gt_u32 s{WAVE}, 10")
    a("s_cbranch_scc1 L1_oner")
    a(f"ds_read_b128 v[28:31], v{T1} offset:{14 * 1024}")
    a(f"v_add_u32 v{T1}, {14 * 1024}, v{T0}")
    a("s_waitcnt lgkmcnt(0)")
    a(f"global_store_dwordx4 v{T1}, v[28:31], {sr(WS)}{STR_}")
    a.label("L1_oner")
    a("s_waitcnt lgkmcnt(0)")
    a(f"global_store_dwordx4 v{T0}, v[24:27], {sr(WS)}{STR_}")
    for o in OPT:
        if o.startswith("delay="):
            n = int(o[6:])
            a(f"s_movk_i32 s24, {n}")
            a.label("L1_dly")
            a("s_sleep 16")
            a("s_sub_u32 s24, s24, 1")
            a("s_cmp_lg_u32 s24, 0")
            a("s_cbranch_scc1 L1_dly")
    stamp(a, 10)
    if STAMPS:
        a("s_waitcnt vmcnt(0)")
    stamp(a, 11)
    stamp(a, 21, True)
    stamp_flush(a, 0)
    a.label("L1_end")
    a("s_endpgm")
    return LDS, 104


def gen_k2(a):
    HIST = 0
    HIST2 = HIST + 1024
    BASE2 = HIST2 + 1024
    WCNT = BASE2 + 1024
    WKEY = WCNT + 1024
    MISC = WKEY + 1024
    SCR = MISC + 256
    ZERO = SCR + 256
    PL = ZERO + 256
    PART0 = PL + NPB * ROW
    PART1 = PART0 + NPB * ROW
    WST = (PART1 + NPB * ROW + 127) // 128 * 128
    XST = WST + 16384
    LIST = XST + NPB * XROW
    CAPK = 48
    COL = CAPK * 4
    LISTB = 228 * COL
    LDS = LIST + LISTB + 64
    assert PART1 < 65536 and PART0 + 64 * ROW < 65536 and LDS <= 163840, LDS
    NWIN = 50
    DUMMY_COL = 100 * COL

    TID, LANE = 0, 1
    T0, T1, T2, T3 = 2, 3, 4, 5
    RB = 6
    REM = 7
    RECS = 8
    RANK = 24
    VW_, VX_ = 32, 36
    XOP = 40
    AOP = 52
    DD = 84
    VLOC = 49
    NT = 100
    VLB = 103
    ASEL = 112
    VJ, VG4, VQ, VONE = 116, 117, 118, 119
    CV = 120
    VZ = 124
    MASK = 40
    nd = Node(a, WST, XST, TID, LANE, VW_, VX_, NT)

    a(f".globl {K2}")
    a(".p2align 8")
    a(f".type {K2},@function")
    a.label(K2)
    a(f"s_cmp_ge_u32 s2, {NB}")
    a("s_cbranch_scc1 L2_end")
    for o in OPT:
        if o.startswith("nops="):
            for _ in range(int(o[5:])):
                a("s_nop 0")
        if o.startswith("nopl="):
            a(f"s_movk_i32 s24, {int(o[5:]) // 16}")
            a.label("L2_nopl")
            for _ in range(13):
                a("s_nop 0")
            a("s_sub_u32 s24, s24, 1")
            a("s_cmp_lg_u32 s24, 0")
            a("s_cbranch_scc1 L2_nopl")
    stamp(a, 0)
    stamp(a, 20, True)
    load_ptrs(a)
    a(f"v_and_b32 v{LANE}, 63, v{TID}")
    a(f"v_lshrrev_b32 v{T0}, 6, v{TID}")
    a(f"v_lshlrev_b32 v{T1}, 2, v{TID}")
    a(f"v_readfirstlane_b32 s{WAVE}, v{T0}")
    a(f"v_lshrrev_b32 v{RB}, 2, v{TID}")
    a(f"v_lshlrev_b32 v{RB}, 10, v{RB}")
    a("s_lshl_b32 s24, s2, 2")
    a(f"s_add_u32 s24, s24, {SEG_OFF}")
    a(f"v_add_u32 v{RB}, s24, v{RB}")
    a("s_waitcnt lgkmcnt(0)")
    fix_ws(a)
    stamp(a, 1)
    a(f"global_load_dword v{REM}, v{RB}, {sr(WS)}")
    if "nobq" not in OPT:
        a("s_barrier")
    nd.issue_loads(GW, 0, UW)
    a(f"v_and_b32 v{T0}, 15, v{LANE}")
    a(f"v_lshlrev_b32 v{VJ}, 4, v{T0}")
    a(f"v_lshrrev_b32 v{T2}, 1, v{VJ}")
    a(f"v_add_u32 v{T2}, {128 * 128}, v{T2}")
    a(f"global_load_dwordx2 {vr(CV + 2, 2)}, v{T2}, {sr(GW)}")
    a(f"v_mov_b32 v{T0}, 0")
    a(f"s_cmp_lt_u32 s{WAVE}, 4")
    a("s_cbranch_scc0 L2_nozero")
    a(f"ds_write_b32 v{T1}, v{T0} offset:{HIST}")
    a(f"ds_write_b32 v{T1}, v{T0} offset:{HIST2}")
    a.label("L2_nozero")
    a(f"s_cmp_eq_u32 s{WAVE}, 4")
    a("s_cbranch_scc0 L2_nozero2")
    a(f"v_lshlrev_b32 v{T2}, 2, v{LANE}")
    a(f"v_cmp_eq_u32 vcc, 2, v{LANE}")
    a("s_nop 1")
    a(f"v_cndmask_b32 v{T3}, 0, 16, vcc")
    a(f"ds_write_b32 v{T2}, v{T3} offset:{MISC}")
    a(f"ds_write_b32 v{T2}, v{T0} offset:{ZERO}")
    a.label("L2_nozero2")
    a(f"v_lshrrev_b32 v{RB}, 2, v{TID}")
    a(f"v_mul_u32_u24 v{RB}, {EPC}, v{RB}")
    a(f"v_and_b32 v{T3}, 3, v{TID}")
    a(f"v_lshlrev_b32 v{T3}, 1, v{T3}")
    a(f"v_add_u32 v{RB}, v{RB}, v{T3}")
    a(f"v_cmp_gt_u32 vcc, {NC * 4}, v{TID}")
    a("s_waitcnt vmcnt(3)")
    stamp(a, 2)
    a(f"v_cndmask_b32 v{REM}, 0, v{REM}, vcc")
    a(f"v_and_b32 v{T2}, 0xffff, v{REM}")
    a(f"v_lshrrev_b32 v{REM}, 16, v{REM}")
    a(f"v_add_u32 v{RB}, v{RB}, v{T2}")
    a(f"v_lshlrev_b32 v{RB}, 3, v{RB}")
    a(f"v_add_u32 v{RB}, {REC_OFF}, v{RB}")
    a(f"v_cmp_lt_u32 s[56:57], 32, v{REM}")
    a(f"v_sub_u32 v{REM}, v{REM}, v{T3}")
    for r in range(4):
        for s_ in range(2):
            m = MASK + 2 * (2 * r + s_)
            a(f"v_cmp_gt_i32 {sr(m)}, v{REM}, {8 * r + s_}")
    a("s_nop 2")
    a("s_mov_b32 s58, 0")
    for r in range(4):
        m = MASK + 4 * r
        a(f"s_mov_b64 exec, {sr(m)}")
        a("s_cbranch_execz L2_recs_done")
        a(f"global_load_dwordx4 {vr(RECS + 4 * r, 4)}, v{RB}, {sr(WS)} offset:{64 * r}")
        a(f"s_mov_b32 s58, {r + 1}")
    a.label("L2_recs_done")
    a("s_mov_b64 exec, -1")
    for i in range(4):
        a(f"v_mov_b32 v{XOP + i}, {N}")
    a(f"v_lshlrev_b32 v{T2}, 4, v{TID}")
    a(f"v_add_u32 v{T2}, {LIST}, v{T2}")
    a(f"ds_write_b128 v{T2}, {vr(XOP, 4)}")
    a(f"ds_write_b128 v{T2}, {vr(XOP, 4)} offset:16384")
    nlast = LISTB // 16 - 2048
    a(f"v_cmp_gt_u32 vcc, {nlast}, v{TID}")
    a("s_and_saveexec_b64 s[32:33], vcc")
    a(f"ds_write_b128 v{T2}, {vr(XOP, 4)} offset:32768")
    a("s_mov_b64 exec, s[32:33]")
    a(f"v_and_b32 v{T0}, 15, v{LANE}")
    a(f"v_lshrrev_b32 v{T1}, 4, v{LANE}")
    a(f"v_lshlrev_b32 v{VG4}, 2, v{T1}")
    a(f"v_add_u32 v{VZ}, {ZERO}, v{VJ}")
    a(f"v_mov_b32 v{VONE}, 1")
    a(f"v_mov_b32 v{VLB}, {LIST}")
    a(f"v_lshlrev_b32 v{VQ}, 2, v{LANE}")
    a(f"v_add_u32 v{VQ}, {SCR}, v{VQ}")
    a(f"v_cmp_eq_u32 vcc, 0, v{LANE}")
    a(f"v_mov_b32 v{T3}, {MISC + 8}")
    a(f"v_lshrrev_b32 v{T2}, 2, v{T0}")
    a(f"v_cndmask_b32 v{VQ}, v{VQ}, v{T3}, vcc")
    a(f"v_cmp_eq_u32 vcc, v{T2}, v{T1}")
    a(f"v_mov_b32 v{T3}, 0x3f80")
    a(f"v_and_b32 v{T2}, 3, v{T0}")
    a(f"v_cndmask_b32 v{T3}, 0, v{T3}, vcc")
    for q in range(4):
        a(f"v_cmp_eq_u32 vcc, {q}, v{T2}")
        a("s_nop 1")
        a(f"v_cndmask_b32 v{ASEL + q}, 0, v{T3}, vcc")
    for n in range(4, -1, -1):
        if n:
            a(f"s_cmp_lg_u32 s58, {n}")
            a(f"s_cbranch_scc1 L2_wx{n}")
        a(f"s_waitcnt vmcnt({n})")
        if n:
            a("s_branch L2_wxdone")
            a.label(f"L2_wx{n}")
    a.label("L2_wxdone")
    stamp(a, 3)
    nd.stage()
    a(f"s_mov_b32 s24, {LOG2E_NEG:#x}")
    a(f"v_lshlrev_b32 v{CV}, 16, v{CV + 2}")
    a(f"v_and_b32 v{CV + 1}, 0xffff0000, v{CV + 2}")
    a(f"v_lshlrev_b32 v{CV + 2}, 16, v{CV + 3}")
    a(f"v_and_b32 v{CV + 3}, 0xffff0000, v{CV + 3}")
    for i in range(4):
        a(f"v_mul_f32 v{CV + i}, s24, v{CV + i}")
    a("s_waitcnt lgkmcnt(0)")
    a("s_barrier")
    stamp(a, 4)
    a("s_cmp_eq_u64 s[56:57], 0")
    a("s_cbranch_scc1 L2_noflag")
    a(f"v_mov_b32 v{T2}, 0")
    a(f"ds_write_b32 v{T2}, v{VONE} offset:{MISC}")
    a.label("L2_noflag")
    a(f"s_cmp_gt_u32 s{WAVE}, 13")
    a("s_cbranch_scc1 L2_notask")
    nd.pair_reads(AOP, XOP, VLOC)
    a(f"v_mul_u32_u24 v{T0}, {ROW}, v{VLOC}")
    a(f"v_lshrrev_b32 v{T1}, 4, v{LANE}")
    a(f"v_lshl_add_u32 v{T0}, v{T1}, 4, v{T0}")
    a("s_lshl_b32 s30, s27, 6")
    a(f"v_add_u32 v{T0}, s30, v{T0}")
    a(f"s_mov_b32 s24, {LOG2E_NEG:#x}")
    a(f"v_cmp_gt_u32 vcc, {NPB}, v{VLOC}")
    a("s_waitcnt lgkmcnt(0)")
    nd.pair_mfma(AOP, XOP, DD)
    a("s_nop 5")
    for c in range(2):
        for i in range(4):
            a(f"v_mul_f32 v{DD + c * 8 + i}, s24, v{DD + c * 8 + i}")
    a("s_and_saveexec_b64 s[32:33], vcc")
    for c in range(2):
        a(f"ds_write_b128 v{T0}, {vr(DD + c * 8, 4)} offset:{PL + c * 64}")
        a(f"ds_write_b128 v{T0}, {vr(DD + c * 8 + 4, 4)} offset:{PART0 + c * 64}")
    a("s_mov_b64 exec, s[32:33]")
    a.label("L2_notask")
    a("s_waitcnt vmcnt(0)")
    stamp(a, 5)
    for r in range(4):
        if r >= 2:
            a(f"s_cmp_eq_u64 {sr(MASK + 4 * r)}, 0")
            a(f"s_cbranch_scc1 L2_h{r}")
        for s_ in range(2):
            k = 2 * r + s_
            hi = RECS + 4 * r + 2 * s_ + 1
            a(f"s_mov_b64 exec, {sr(MASK + 2 * k)}")
            a(f"v_lshlrev_b32 v{T1}, 2, v{hi}")
            a(f"ds_add_rtn_u32 v{RANK + k}, v{T1}, v{VONE} offset:{HIST}")
            a(f"v_mul_u32_u24 v{hi}, {COL}, v{hi}")
            a(f"v_add_u32 v{hi}, v{VLB}, v{hi}")
        if r >= 2:
            a.label(f"L2_h{r}")
    a("s_mov_b64 exec, -1")
    a("s_waitcnt lgkmcnt(0)")
    for r in range(4):
        if r >= 2:
            a(f"s_cmp_eq_u64 {sr(MASK + 4 * r)}, 0")
            a(f"s_cbranch_scc1 L2_s{r}")
        for s_ in range(2):
            k = 2 * r + s_
            lo = RECS + 4 * r + 2 * s_
            hi = lo + 1
            a(f"s_mov_b64 exec, {sr(MASK + 2 * k)}")
            a(f"v_min_u32 v{RANK + k}, 63, v{RANK + k}")
            a(f"v_lshl_add_u32 v{hi}, v{RANK + k}, 2, v{hi}")
            a(f"ds_write_b32 v{hi}, v{lo}")
        if r >= 2:
            a.label(f"L2_s{r}")
    a("s_mov_b64 exec, -1")
    a("s_waitcnt lgkmcnt(0)")
    stamp(a, 6)
    a("s_barrier")
    a(f"s_cmp_eq_u32 s{WAVE}, 15")
    a("s_cbranch_scc0 L2_b2")

    a("s_setprio 3")
    CN, BN, RK = 100, 104, 108
    S0 = 84
    a(f"v_lshlrev_b32 v{T0}, 4, v{LANE}")
    a(f"ds_read_b128 {vr(CN, 4)}, v{T0} offset:{HIST}")
    a(f"v_lshrrev_b32 v{T1}, 5, v{LANE}")
    a(f"v_and_b32 v{T2}, 31, v{LANE}")
    a(f"v_cmp_gt_u32 vcc, 25, v{T2}")
    a(f"v_lshlrev_b32 v{T3}, 8, v{T1}")
    a(f"v_add_u32 v{T3}, {63 * 4}, v{T3}")
    a(f"v_mov_b32 v{S0}, {(128 + 63) * 4}")
    a(f"v_cndmask_b32 v{T3}, v{S0}, v{T3}, vcc")
    a(f"v_mul_u32_u24 v{T2}, {4 * ROW}, v{T2}")
    a(f"v_mul_u32_u24 v{T1}, {4 * COL}, v{LANE}")
    a(f"v_lshl_or_b32 v{T1}, v{T1}, 16, v{T2}")
    a("s_waitcnt lgkmcnt(0)")
    a(f"v_max3_u32 v{S0 + 1}, v{CN}, v{CN + 1}, v{CN + 2}")
    a(f"v_max_u32 v{S0 + 1}, v{S0 + 1}, v{CN + 3}")
    for i in range(4):
        a(f"v_min_u32 v{BN + i}, 63, v{CN + i}")
        a(f"v_lshlrev_b32 v{BN + i}, 2, v{BN + i}")
        a(f"v_sub_u32 v{BN + i}, v{T3}, v{BN + i}")
        a(f"ds_add_rtn_u32 v{RK + i}, v{BN + i}, v{VONE} offset:{HIST2}")
    a(f"ds_read_b128 {vr(S0 + 4, 4)}, v{T0} offset:{HIST2}")
    a(f"v_cmp_lt_u32 vcc, {CAPK}, v{S0 + 1}")
    a("s_cbranch_vccz L2_nocap")
    a(f"v_mov_b32 v{S0}, 0")
    a(f"ds_write_b32 v{S0}, v{VONE} offset:{MISC}")
    a.label("L2_nocap")
    a("s_waitcnt lgkmcnt(0)")
    a(f"v_add_u32 v{S0 + 1}, v{S0 + 4}, v{S0 + 5}")
    a(f"v_add_u32 v{S0 + 2}, v{S0 + 1}, v{S0 + 6}")
    a(f"v_add_u32 v{S0 + 3}, v{S0 + 2}, v{S0 + 7}")
    a(f"v_mov_b32 v{S0}, v{S0 + 3}")
    wave_scan(a, S0)
    a(f"v_sub_u32 v{S0}, v{S0}, v{S0 + 3}")
    a(f"v_add_u32 v{S0 + 3}, v{S0}, v{S0 + 2}")
    a(f"v_add_u32 v{S0 + 2}, v{S0}, v{S0 + 1}")
    a(f"v_add_u32 v{S0 + 1}, v{S0}, v{S0 + 4}")
    a(f"ds_write_b128 v{T0}, {vr(S0, 4)} offset:{BASE2}")
    for i in range(4):
        a(f"ds_read_b32 v{S0 + 4 + i}, v{BN + i} offset:{BASE2}")
    a("s_waitcnt lgkmcnt(0)")
    for i in range(4):
        a(f"v_add_u32 v{RK + i}, v{RK + i}, v{S0 + 4 + i}")
        a(f"v_lshlrev_b32 v{RK + i}, 2, v{RK + i}")
        a(f"v_add_u32 v{S0}, {i * ((COL << 16) + ROW)}, v{T1}")
        a(f"ds_write_b32 v{RK + i}, v{CN + i} offset:{WCNT}")
        a(f"ds_write_b32 v{RK + i}, v{S0} offset:{WKEY}")
    a("s_setprio 0")
    a.label("L2_b2")
    a("s_waitcnt lgkmcnt(0)")
    stamp(a, 7)
    a("s_barrier")
    stamp(a, 8)
    NR = 8
    LA = 7
    RA = 8
    PR = 8
    ACC = 12
    DA = 16
    VB = 24
    IX = 56
    EV = 72
    VL = 80
    VFL = 81
    VFN = 82
    VRN = 83
    VIN = 84
    VWL = 85
    SC, SNL, SI = 61, 62, 63
    STR = 64
    a(f"s_mov_b32 s36, s{WS}")
    a(f"s_and_b32 s37, s{WS + 1}, 0xffff")
    a("s_or_b32 s37, s37, 0x1000000")
    a(f"s_mov_b32 s38, {N + 1}")
    a("s_mov_b32 s39, 0x20000")
    a(f"v_mov_b32 v{T0}, 0")
    a(f"ds_read_b32 v{T1}, v{T0} offset:{MISC}")
    a(f"v_lshlrev_b32 v{T2}, 4, v{LANE}")
    a(f"ds_read_b32 v{VWL}, v{T2} offset:{WCNT}")
    a(f"s_lshl_b32 s26, s{WAVE}, 4")
    a(f"v_add_u32 v{T2}, s26, v{VG4}")
    a(f"ds_read_b32 v{T3}, v{T2} offset:{WKEY}")
    for k in range(NR):
        a(f"v_mov_b32 v{IX + 2 * k + 1}, v{VJ}")
        a(f"v_mov_b32 v{EV + k}, 0")
    a("s_mov_b32 s66, 1.0")
    a("s_mov_b32 s67, 1.0")
    a(f"s_mov_b32 s68, {PART0}")
    a(f"s_mov_b32 s69, {PART1}")
    a("s_waitcnt lgkmcnt(0)")
    a(f"v_readfirstlane_b32 s24, v{T1}")
    a(f"v_max_u32 v{VWL}, {RA}, v{VWL}")
    a(f"v_lshrrev_b32 v{VL}, 16, v{T3}")
    a(f"v_add_u32 v{VL}, {LIST}, v{VL}")
    a("s_cmp_lg_u32 s24, 0")
    a("s_cbranch_scc1 L2_slow")
    for k in range(RA):
        a(f"ds_read_u16 v{IX + 2 * k}, v{VL} offset:{4 * k}")
    a(f"v_and_b32 v{VRN}, 0xffff, v{T3}")
    a(f"v_add_u32 v{VRN}, v{VRN}, v{VJ}")
    a(f"v_add_u32 v{VFL}, {PART0}, v{VRN}")
    a(f"v_readlane_b32 s{SC}, v{VWL}, s{WAVE}")
    a(f"s_mov_b32 s{STR}, {RA}")
    a(f"s_mov_b32 s{SI}, s{WAVE}")
    if "noprio" not in OPT:
        a("s_setprio 3")
    a("s_waitcnt lgkmcnt(0)")
    for k in range(LA):
        a(f"buffer_load_dwordx4 {vr(VB + 4 * k, 4)}, {vr(IX + 2 * k, 2)}, s[36:39], 0 idxen offen")
    for k in range(RA):
        a(f"ds_read_u16_d16_hi v{EV + k}, v{VL} offset:{4 * k + 2}")
    a(f"ds_read_b128 {vr(PR, 4)}, v{VRN} offset:{PL}")
    a(f"ds_read_b128 {vr(ACC, 4)}, v{VRN} offset:{PART0}")
    a("s_waitcnt lgkmcnt(0)")
    stamp(a, 9)

    def mfma(k):
        d = DA + 4 * (k & 1)
        a(f"v_mfma_f32_16x16x32_bf16 {vr(d, 4)}, {vr(ASEL, 4)}, {vr(VB + 4 * k, 4)}, {vr(PR, 4)}")

    def tail(k):
        d = DA + 4 * (k & 1)
        vb = VB + 4 * k
        for i in range(4):
            a(f"v_rcp_f32 v{d + i}, v{d + i}")
        a(f"v_pk_fma_f32 {vr(ACC, 2)}, {vr(d, 2)}, {vr(vb, 2)}, {vr(ACC, 2)}")
        a(f"v_pk_fma_f32 {vr(ACC + 2, 2)}, {vr(d + 2, 2)}, {vr(vb + 2, 2)}, {vr(ACC + 2, 2)}")

    def read_idx(k):
        a(f"ds_read_u16 v{IX + 2 * k}, v{VL} offset:{4 * (RA + k)}")

    def read_e(k):
        a(f"ds_read_u16_d16_hi v{EV + k}, v{VL} offset:{4 * (RA + k) + 2}")

    def gather(k):
        p = (k + LA) % NR
        if "nogather" not in OPT:
            a(f"buffer_load_dwordx4 {vr(VB + 4 * p, 4)}, {vr(IX + 2 * p, 2)}, s[36:39], 0 idxen offen")

    def front(k):
        d = DA + 4 * (k & 1)
        epair = EV + (k & ~1)
        osel = "op_sel:[1,0,0] op_sel_hi:[1,1,1]" if k & 1 else "op_sel_hi:[0,1,1]"
        a(f"v_pk_fma_f32 {vr(d, 2)}, {vr(epair, 2)}, {vr(CV, 2)}, {vr(d, 2)} {osel}")
        a(f"v_pk_fma_f32 {vr(d + 2, 2)}, {vr(epair, 2)}, {vr(CV + 2, 2)}, {vr(d + 2, 2)} {osel}")
        read_e(k)
        for i in range(4):
            a(f"v_exp_f32 v{d + i}, v{d + i}")
        a(f"v_pk_add_f32 {vr(d, 2)}, {vr(d, 2)}, s[66:67]")
        a(f"v_pk_add_f32 {vr(d + 2, 2)}, {vr(d + 2, 2)}, s[66:67]")

    a(f"s_cmp_eq_u32 s{SC}, s{STR}")
    a("s_cbranch_scc0 L2_e0")
    a(f"s_mov_b32 s59, 0")
    a("s_branch L2_pop_first")
    a.label("L2_e0")
    a.label("L2_first_cont")
    if "nogather" not in OPT:
        a(f"s_waitcnt vmcnt({LA - 1})")
    mfma(0)
    read_idx(0)
    a("s_nop 5")
    gather(0)
    a("s_branch L2_mid0")

    a.label("L2_loop")
    for k in range(NR):
        pk = (k - 1) % NR
        a(f"s_cmp_eq_u32 s{SC}, s{STR}")
        a(f"s_cbranch_scc1 L2_ev{k}")
        a.label(f"L2_cont{k}")
        if "nogather" not in OPT:
            a(f"s_waitcnt vmcnt({LA - 1})")
        mfma(k)
        read_idx(k)
        tail(pk)
        a("s_waitcnt lgkmcnt(2)")
        gather(k)
        a.label(f"L2_mid{k}")
        front(k)
        a(f"s_sub_u32 s{SC}, s{SC}, 1")
        if k == NR - 1:
            a(f"v_add_u32 v{VL}, {4 * NR}, v{VL}")
            a("s_branch L2_loop")

    def pop(k, tag, cont):
        a(f"ds_add_rtn_u32 v{T2}, v{VQ}, v{VONE}")
        a(f"s_mov_b32 s{STR}, 0")
        a("s_waitcnt lgkmcnt(0)")
        a(f"v_readfirstlane_b32 s{SI}, v{T2}")
        a(f"s_mov_b32 s{SNL}, 0")
        a(f"v_mov_b32 v{VL}, {LIST + DUMMY_COL - 4 * (RA + k)}")
        a("s_nop 1")
        a(f"s_cmp_lt_u32 s{SI}, {NWIN}")
        a(f"s_cbranch_scc0 {cont}")
        a(f"s_lshl_b32 s26, s{SI}, 4")
        a(f"v_add_u32 v{T2}, s26, v{VG4}")
        a(f"ds_read_b32 v{T3}, v{T2} offset:{WKEY}")
        a(f"v_readlane_b32 s{SNL}, v{VWL}, s{SI}")
        a(f"s_cmp_lt_u32 s{SI}, {NWIN // 2}")
        a("s_cselect_b32 s26, s68, s69")
        a("s_waitcnt lgkmcnt(0)")
        a(f"v_and_b32 v{VRN}, 0xffff, v{T3}")
        a(f"v_lshrrev_b32 v{VL}, 16, v{T3}")
        a(f"v_add_u32 v{VRN}, v{VRN}, v{VJ}")
        a(f"v_add_u32 v{VL}, {LIST - 4 * (RA + k)}, v{VL}")
        a(f"v_add_u32 v{VFN}, s26, v{VRN}")
        a(f"v_mov_b32 v{VIN}, v{VFN}")
        a(f"s_cbranch_scc1 {cont}")
        a(f"v_mov_b32 v{VIN}, v{VZ}")
        a(f"s_branch {cont}")

    a.label("L2_pop_first")
    pop(0, "f", "L2_first_cont")
    for k in range(NR):
        pk = (k - 1) % NR
        a.label(f"L2_ev{k}")
        a(f"s_cmp_eq_u32 s{STR}, 0")
        a(f"s_cbranch_scc1 L2_sw{k}")
        pop(k, f"k{k}", f"L2_cont{k}")
        a.label(f"L2_sw{k}")
        tail(pk)
        a(f"ds_write_b128 v{VFL}, {vr(ACC, 4)}")
        a(f"s_cmp_eq_u32 s{SNL}, 0")
        a("s_cbranch_scc1 L2_done")
        a(f"ds_read_b128 {vr(PR, 4)}, v{VRN} offset:{PL}")
        a(f"ds_read_b128 {vr(ACC, 4)}, v{VIN}")
        a(f"v_mov_b32 v{VFL}, v{VFN}")
        a(f"s_mov_b32 s{SC}, s{SNL}")
        a(f"s_mov_b32 s{STR}, {RA}")
        if "noprio" not in OPT:
            a(f"s_cmp_lt_u32 s{SI}, 40")
            a(f"s_cbranch_scc1 L2_p1_{k}")
            a("s_setprio 0")
            a(f"s_branch L2_pd_{k}")
            a.label(f"L2_p1_{k}")
            a(f"s_cmp_lt_u32 s{SI}, 32")
            a(f"s_cbranch_scc1 L2_p2_{k}")
            a("s_setprio 1")
            a(f"s_branch L2_pd_{k}")
            a.label(f"L2_p2_{k}")
            a(f"s_cmp_lt_u32 s{SI}, 25")
            a(f"s_cbranch_scc1 L2_pd_{k}")
            a("s_setprio 2")
            a.label(f"L2_pd_{k}")
        a(f"s_cmp_eq_u32 s{SC}, {RA}")
        a(f"s_cbranch_scc0 L2_sw2_{k}")
        save = f"L2_sw2_{k}"
        pop(k, f"s{k}", save)
        a.label(save)
        if "nogather" not in OPT:
            a(f"s_waitcnt vmcnt({LA - 1}) lgkmcnt(0)")
        else:
            a("s_waitcnt lgkmcnt(0)")
        mfma(k)
        read_idx(k)
        a("s_nop 5")
        gather(k)
        a(f"s_branch L2_mid{k}")

    a.label("L2_slow")
    SSC, SCN, SRI = 61, 62, 63
    a(f"v_lshlrev_b32 v{T0}, 2, v{LANE}")
    a(f"v_lshlrev_b32 v{T1}, 1, v{LANE}")
    a(f"v_add_u32 v{T1}, {128 * 128}, v{T1}")
    a(f"global_load_ushort v{T2}, v{T1}, {sr(GW)}")
    a(f"s_mov_b32 s24, {LOG2E_NEG:#x}")
    a(f"s_mov_b32 s25, s{WAVE}")
    a("v_mov_b32 v9, 0")
    a.label("L2_slow_z")
    a(f"s_mul_i32 s26, s25, {ROW}")
    a(f"v_add_u32 v10, s26, v{T0}")
    a(f"ds_write_b32 v10, v9 offset:{PART1}")
    a("s_add_u32 s25, s25, 16")
    a(f"s_cmp_lt_u32 s25, {NPB}")
    a("s_cbranch_scc1 L2_slow_z")
    a("s_waitcnt vmcnt(0) lgkmcnt(0)")
    a(f"v_lshlrev_b32 v{T2}, 16, v{T2}")
    a(f"v_mul_f32 v8, s24, v{T2}")
    a(f"s_mov_b32 s{SSC}, 0")
    a.label("L2_slow_seg")
    a(f"s_cmp_ge_u32 s{SSC}, {NC}")
    a("s_cbranch_scc1 L2_done")
    a(f"s_lshl_b32 s24, s{SSC}, 8")
    a("s_add_u32 s24, s24, s2")
    a("s_lshl_b32 s24, s24, 2")
    a(f"s_add_u32 s24, s24, {SEG_OFF}")
    a(f"v_mov_b32 v{T1}, s24")
    a(f"global_load_dword v{T2}, v{T1}, {sr(WS)}")
    a("s_waitcnt vmcnt(0)")
    a(f"v_readfirstlane_b32 s25, v{T2}")
    a("s_nop 3")
    a(f"s_lshr_b32 s{SCN}, s25, 16")
    a("s_and_b32 s25, s25, 0xffff")
    a(f"s_mul_i32 s26, s{SSC}, {EPC}")
    a("s_add_u32 s26, s26, s25")
    a("s_lshl_b32 s26, s26, 3")
    a(f"s_add_u32 s{SRI}, s26, {REC_OFF}")
    a.label("L2_slow_rec")
    a(f"s_cmp_eq_u32 s{SCN}, 0")
    a("s_cbranch_scc1 L2_slow_next")
    a(f"v_mov_b32 v{T1}, s{SRI}")
    a(f"global_load_dwordx2 v[10:11], v{T1}, {sr(WS)}")
    a(f"s_add_u32 s{SRI}, s{SRI}, 8")
    a(f"s_sub_u32 s{SCN}, s{SCN}, 1")
    a("s_waitcnt vmcnt(0)")
    a("v_and_b32 v14, 127, v11")
    a("v_and_b32 v15, 15, v14")
    a("s_nop 0")
    a("v_readfirstlane_b32 s25, v15")
    a("s_nop 3")
    a(f"s_cmp_lg_u32 s25, s{WAVE}")
    a("s_cbranch_scc1 L2_slow_rec")
    a("v_and_b32 v18, 0xffff, v10")
    a(f"v_mov_b32 v19, v{T0}")
    a("buffer_load_dword v13, v[18:19], s[36:39], 0 idxen offen")
    a(f"v_mul_u32_u24 v14, {ROW}, v14")
    a(f"v_add_u32 v14, v14, v{T0}")
    a(f"ds_read_b32 v15, v14 offset:{PL}")
    a(f"ds_read_b32 v17, v14 offset:{PART1}")
    a("v_and_b32 v11, 0xffff0000, v10")
    a("s_waitcnt vmcnt(0) lgkmcnt(0)")
    a("v_lshlrev_b32 v16, 16, v13")
    a("v_add_f32 v16, v16, v15")
    a("v_fmac_f32 v16, v11, v8")
    a("v_exp_f32 v16, v16")
    a("s_nop 0")
    a("v_add_f32 v16, 1.0, v16")
    a("v_rcp_f32 v16, v16")
    a("s_nop 0")
    a("v_fmac_f32 v17, v16, v13")
    a(f"ds_write_b32 v14, v17 offset:{PART1}")
    a("s_waitcnt lgkmcnt(0)")
    a("s_branch L2_slow_rec")
    a.label("L2_slow_next")
    a(f"s_add_u32 s{SSC}, s{SSC}, 1")
    a("s_branch L2_slow_seg")

    a.label("L2_done")
    stamp(a, 10)
    a("s_setprio 0")
    a("s_waitcnt vmcnt(0) lgkmcnt(0)")
    a("s_barrier")
    stamp(a, 11)
    a(f"v_lshrrev_b32 v{T0}, 4, v{TID}")
    a(f"v_and_b32 v{T1}, 15, v{TID}")
    a(f"v_mul_u32_u24 v{T2}, {ROW}, v{T0}")
    a(f"v_lshl_add_u32 v{T2}, v{T1}, 4, v{T2}")
    a(f"s_mul_i32 s24, s2, {NPB * 128}")
    a(f"v_lshlrev_b32 v{T3}, 7, v{T0}")
    a(f"v_lshl_add_u32 v{T3}, v{T1}, 3, v{T3}")
    a(f"v_add_u32 v{T3}, s24, v{T3}")
    a(f"s_mov_b32 s24, {LOG2E_NEG:#x}")

    def silu_store(src, off):
        for i in range(4):
            a(f"v_add_f32 v{src + i}, v{src + i}, v{src + 4 + i}")
        for i in range(4):
            a(f"v_mul_f32 v{src + 4 + i}, s24, v{src + i}")
        for i in range(4):
            a(f"v_exp_f32 v{src + 4 + i}, v{src + 4 + i}")
        a("s_nop 0")
        for i in range(4):
            a(f"v_add_f32 v{src + 4 + i}, 1.0, v{src + 4 + i}")
        for i in range(4):
            a(f"v_rcp_f32 v{src + 4 + i}, v{src + 4 + i}")
        a("s_nop 0")
        for i in range(4):
            a(f"v_mul_f32 v{src + i}, v{src + i}, v{src + 4 + i}")
        a(f"v_cvt_pk_bf16_f32 v{src + 4}, v{src}, v{src + 1}")
        a(f"v_cvt_pk_bf16_f32 v{src + 5}, v{src + 2}, v{src + 3}")
        a(f"global_store_dwordx2 v{off}, {vr(src + 4, 2)}, {sr(OUT)}")

    a(f"ds_read_b128 v[8:11], v{T2} offset:{PART0}")
    a(f"ds_read_b128 v[12:15], v{T2} offset:{PART1}")
    a(f"s_cmp_lt_u32 s{WAVE}, 9")
    a("s_cbranch_scc0 L2_ep1")
    a(f"v_add_u32 v7, {64 * ROW}, v{T2}")
    a(f"ds_read_b128 v[16:19], v7 offset:{PART0}")
    a(f"ds_read_b128 v[20:23], v7 offset:{PART1}")
    a("s_waitcnt lgkmcnt(0)")
    a(f"v_add_u32 v6, {64 * 128}, v{T3}")
    silu_store(16, 6)
    a.label("L2_ep1")
    a("s_waitcnt lgkmcnt(0)")
    silu_store(8, T3)
    stamp(a, 12)
    if STAMPS:
        a("s_waitcnt vmcnt(0)")
    stamp(a, 13)
    stamp(a, 21, True)
    stamp_flush(a, 1)
    a.label("L2_end")
    a("s_endpgm")
    return LDS, 128


def descriptor(a, name, vgprs, sgprs=80):
    a(f".amdhsa_kernel {name}")
    a(f"  .amdhsa_next_free_vgpr {vgprs}")
    a(f"  .amdhsa_next_free_sgpr {sgprs}")
    a(f"  .amdhsa_accum_offset {vgprs}")
    a("  .amdhsa_group_segment_fixed_size 0")
    a("  .amdhsa_kernarg_size 80")
    a("  .amdhsa_user_sgpr_count 2")
    a("  .amdhsa_user_sgpr_kernarg_segment_ptr 1")
    a("  .amdhsa_system_sgpr_workgroup_id_x 1")
    a("  .amdhsa_float_denorm_mode_32 3")
    a(".end_amdhsa_kernel")


def main():
    global STAMPS, ST, STT, STR_
    if "--stamps" in sys.argv:
        STAMPS = True
        sys.argv.remove("--stamps")
    for o in OPT:
        if o.startswith("st="):
            ST = STT = STR_ = " " + o[3:].replace("+", " ")
        if o.startswith("stt="):
            STT = " " + o[4:].replace("+", " ")
        if o.startswith("str="):
            STR_ = " " + o[4:].replace("+", " ")
    body = Asm()
    body(".amdgcn_target \"amdgcn-amd-amdhsa--gfx950\"")
    body(".text")
    lds1, v1 = gen_k1(body)
    lds2, v2 = gen_k2(body)
    body(".section .rodata,\"a\"")
    body(".p2align 6")
    descriptor(body, K1, 128 if STAMPS else v1)
    body(".p2align 6")
    descriptor(body, K2, v2)
    head = [
        "; Edge-gated MPNN layer in two launches (generated by a hand-written generator script).",
        "; launch 1: partitions the edges by destination bucket and builds the per-node source table",
        "; launch 2: per bucket of 100 nodes: sorts its edges, gated aggregation, SiLU epilogue",
        f"; @launch kernel={K1} grid=({NC},1,1) block=(1024,1,1) lds={lds1}",
        f"; @launch kernel={K2} grid=({NB},1,1) block=(1024,1,1) lds={lds2}",
    ]
    out = "\n".join(head) + "\n" + body.text()
    path = sys.argv[1] if len(sys.argv) > 1 else "standalone__edge_featured_mpnn_egc__graph.s"
    open(path, "w").write(out)
    print("wrote", path, "lds", lds1, lds2)


if __name__ == "__main__":
    main()
```

```python
import os
import sys

N = 25000
E = 800000
NB = 250
NPB = 100
NC = 250
EPC = 3200
HALF = 12500

T_OFF = 0
REC_OFF = 0x700000
SEG_OFF = 0xE00000

LOG2E_NEG = 0xBFB8AA3B
SHIFT_NEG = 0xC2700000
TINY = 0x21800000
ROW = 272
XROW = 144

K1 = "egc_part_kernel"
K2 = "standalone__edge_featured_mpnn_egc__graph_kernel"

OPT = set(os.environ.get("OPT", "").split(","))
STAMPS = False
STAMP_OFF = 0x1000000
SV = 127

X, EA, SRC, DST, UW, VW, GW, OUT, WS = 4, 6, 8, 10, 12, 14, 16, 18, 20
WAVE = 22


def stamp(a, i, real=False):
    if not STAMPS:
        return
    a(f"s_mem{'real' if real else ''}time s[70:71]")
    a("s_waitcnt lgkmcnt(0)")
    a(f"v_writelane_b32 v{SV}, s70, {i}")


def stamp_flush(a, which):
    if not STAMPS:
        return
    a("s_lshl_b32 s72, s2, 4")
    a(f"s_add_u32 s72, s72, s{WAVE}")
    a("s_lshl_b32 s72, s72, 8")
    a(f"s_add_u32 s72, s72, {STAMP_OFF + which * 0x200000}")
    a("v_and_b32 v126, 63, v0")
    a("v_lshlrev_b32 v126, 2, v126")
    a("v_add_u32 v126, s72, v126")
    a(f"global_store_dword v126, v{SV}, s[20:21]")


class Asm:
    def __init__(self):
        self.lines = []

    def __call__(self, s=""):
        for ln in s.split("\n"):
            self.lines.append(ln if ln.strip().endswith(":") else "    " + ln.strip())

    def label(self, s):
        self.lines.append(s + ":")

    def text(self):
        return "\n".join(self.lines) + "\n"


def vr(a, n):
    return f"v[{a}:{a + n - 1}]"


def sr(a, n=2):
    return f"s[{a}:{a + n - 1}]"


def wave_scan(a, v):
    for sh in (1, 2, 4, 8):
        a("s_nop 1")
        a(f"v_add_u32_dpp v{v}, v{v}, v{v} row_shr:{sh} row_mask:0xf bank_mask:0xf bound_ctrl:0")
    a("s_nop 1")
    a(f"v_add_u32_dpp v{v}, v{v}, v{v} row_bcast:15 row_mask:0xa bank_mask:0xf")
    a("s_nop 1")
    a(f"v_add_u32_dpp v{v}, v{v}, v{v} row_bcast:31 row_mask:0xc bank_mask:0xf")
    a("s_nop 1")


WSBASE = int(os.environ.get("WSBASE", "0"), 0)


def load_ptrs(a):
    a("s_load_dwordx16 s[4:19], s[0:1], 0")
    a("s_load_dwordx2 s[20:21], s[0:1], 72")


def fix_ws(a):
    if WSBASE:
        a(f"s_add_u32 s20, s20, {WSBASE}")
        a("s_addc_u32 s21, s21, 0")


ST = ""
STT = ""
STR_ = ""


class Node:
    def __init__(self, a, WST, XST, tid, lane, vw, vx, t):
        self.a, self.WST, self.XST = a, WST, XST
        self.tid, self.lane, self.vw, self.vx, self.t = tid, lane, vw, vx, t

    def issue_loads(self, p0, off0, p1):
        a, t = self.a, self.t
        a(f"s_cmp_lt_u32 s{WAVE}, 8")
        a(f"s_cselect_b32 s24, s{p0}, s{p1}")
        a(f"s_cselect_b32 s25, s{p0 + 1}, s{p1 + 1}")
        if off0:
            a(f"s_cselect_b32 s26, {off0}, 0")
            a("s_add_u32 s24, s24, s26")
            a("s_addc_u32 s25, s25, 0")
        a(f"v_and_b32 v{t}, 511, v{self.tid}")
        a(f"v_lshlrev_b32 v{t}, 4, v{t}")
        a(f"global_load_dwordx4 {vr(self.vw, 4)}, v{t}, s[24:25]")
        a(f"v_min_u32 v{t}, {NPB * 8 - 1}, v{self.tid}")
        a(f"v_lshlrev_b32 v{t}, 4, v{t}")
        a(f"s_mul_i32 s26, s2, {NPB * 128}")
        a(f"v_add_u32 v{t}, s26, v{t}")
        a(f"global_load_dwordx4 {vr(self.vx, 4)}, v{t}, {sr(X)}")

    def stage(self):
        a, t, tid = self.a, self.t, self.tid
        a(f"v_bfe_u32 v{t}, v{tid}, 4, 1")
        a(f"v_bfe_u32 v{t + 1}, v{tid}, 6, 1")
        a(f"v_lshl_or_b32 v{t}, v{t + 1}, 1, v{t}")
        a(f"v_lshlrev_b32 v{t}, 5, v{t}")
        a(f"v_lshlrev_b32 v{t + 1}, 4, v{tid}")
        a(f"v_xor_b32 v{t}, v{t}, v{t + 1}")
        a(f"v_add_u32 v{t}, {self.WST}, v{t}")
        a(f"ds_write_b128 v{t}, {vr(self.vw, 4)}")
        a(f"v_lshrrev_b32 v{t}, 3, v{tid}")
        a(f"v_mul_u32_u24 v{t}, {XROW}, v{t}")
        a(f"v_and_b32 v{t + 1}, 7, v{tid}")
        a(f"v_lshl_add_u32 v{t}, v{t + 1}, 4, v{t}")
        a(f"v_add_u32 v{t}, {self.XST}, v{t}")
        a(f"v_cmp_gt_u32 vcc, {NPB * 8}, v{tid}")
        a("s_and_saveexec_b64 s[32:33], vcc")
        a(f"ds_write_b128 v{t}, {vr(self.vx, 4)}")
        a("s_mov_b64 exec, s[32:33]")

    def stage_addr(self, vw_a, vx_a, t):
        a, tid = self.a, self.tid
        a(f"v_bfe_u32 v{vw_a}, v{tid}, 4, 1")
        a(f"v_bfe_u32 v{t}, v{tid}, 6, 1")
        a(f"v_lshl_or_b32 v{vw_a}, v{t}, 1, v{vw_a}")
        a(f"v_lshlrev_b32 v{vw_a}, 5, v{vw_a}")
        a(f"v_lshlrev_b32 v{t}, 4, v{tid}")
        a(f"v_xor_b32 v{vw_a}, v{vw_a}, v{t}")
        a(f"v_add_u32 v{vw_a}, {self.WST}, v{vw_a}")
        a(f"v_lshrrev_b32 v{vx_a}, 3, v{tid}")
        a(f"v_mul_u32_u24 v{vx_a}, {XROW}, v{vx_a}")
        a(f"v_and_b32 v{t}, 7, v{tid}")
        a(f"v_lshl_add_u32 v{vx_a}, v{t}, 4, v{vx_a}")
        a(f"v_add_u32 v{vx_a}, {self.XST}, v{vx_a}")

    def stage_write(self, vw_a, vx_a):
        a, tid = self.a, self.tid
        a(f"ds_write_b128 v{vw_a}, {vr(self.vw, 4)}")
        a(f"v_cmp_gt_u32 vcc, {NPB * 8}, v{tid}")
        a("s_and_saveexec_b64 s[32:33], vcc")
        a(f"ds_write_b128 v{vx_a}, {vr(self.vx, 4)}")
        a("s_mov_b64 exec, s[32:33]")

    def pair_reads(self, aop, xop, vloc):
        a, t, lane = self.a, self.t, self.lane
        a(f"s_and_b32 s27, s{WAVE}, 1")
        a("s_lshl_b32 s27, s27, 1")
        a(f"s_lshr_b32 s26, s{WAVE}, 1")
        a(f"v_and_b32 v{t}, 15, v{lane}")
        a(f"v_lshrrev_b32 v{t + 1}, 4, v{lane}")
        a("s_lshl_b32 s26, s26, 4")
        a(f"v_add_u32 v{vloc}, s26, v{t}")
        a(f"v_mul_u32_u24 v{t + 2}, {XROW}, v{vloc}")
        a(f"v_lshl_add_u32 v{t + 2}, v{t + 1}, 4, v{t + 2}")
        a(f"v_add_u32 v{t + 2}, {self.XST}, v{t + 2}")
        a(f"ds_read_b128 {vr(xop, 4)}, v{t + 2}")
        a(f"ds_read_b128 {vr(xop + 4, 4)}, v{t + 2} offset:64")
        a(f"v_lshrrev_b32 v{t + 2}, 3, v{t}")
        a(f"v_and_b32 v{xop + 8}, 1, v{t + 1}")
        a(f"v_lshl_or_b32 v{t + 2}, v{xop + 8}, 1, v{t + 2}")
        a(f"v_xor_b32 v{t + 2}, s27, v{t + 2}")
        a(f"v_lshlrev_b32 v{t + 2}, 5, v{t + 2}")
        a(f"v_lshrrev_b32 v{xop + 8}, 2, v{t}")
        a(f"v_lshl_add_u32 v{xop + 8}, v{t + 1}, 3, v{xop + 8}")
        a(f"v_lshl_add_u32 v{t + 2}, v{xop + 8}, 7, v{t + 2}")
        a(f"v_and_b32 v{xop + 8}, 3, v{t}")
        a(f"v_lshl_add_u32 v{t + 2}, v{xop + 8}, 3, v{t + 2}")
        a(f"v_add_u32 v{t + 2}, {self.WST}, v{t + 2}")
        assert self.WST % 128 == 0
        for c in range(2):
            if c:
                a(f"v_xor_b32 v{t + 2}, 32, v{t + 2}")
            for m in range(2):
                for ks in range(2):
                    for hh in range(2):
                        r = aop + c * 16 + (m * 2 + ks) * 4 + hh * 2
                        a(f"ds_read_b64_tr_b16 {vr(r, 2)}, v{t + 2} offset:{m * 8192 + ks * 4096 + hh * 512}")

    def pair_mfma(self, aop, xop, dd):
        a = self.a
        for ks in range(2):
            for c in range(2):
                for m in range(2):
                    d = dd + (c * 2 + m) * 4
                    cop = "0" if ks == 0 else vr(d, 4)
                    a(f"v_mfma_f32_16x16x32_bf16 {vr(d, 4)}, {vr(aop + c * 16 + (m * 2 + ks) * 4, 4)}, {vr(xop + 4 * ks, 4)}, {cop}")


def copy_out(a, lds_addr_fn, goff_sgpr, t0, t1, d0, d1, tag):
    ST = STT if tag == "t" else STR_
    lds_addr_fn(0, t1)
    a(f"ds_read_b128 {vr(d0, 4)}, v{t1}")
    a(f"v_lshlrev_b32 v{t0}, 4, v0")
    a(f"v_add_u32 v{t0}, s{goff_sgpr}, v{t0}")
    a(f"s_cmp_gt_u32 s{WAVE}, 8")
    a(f"s_cbranch_scc1 L1_one{tag}")
    a(f"v_add_u32 v{t1}, 1024, v0")
    lds_addr_fn(t1, t1)
    a(f"ds_read_b128 {vr(d1, 4)}, v{t1}")
    a(f"v_add_u32 v{t1}, 16384, v{t0}")
    a("s_waitcnt lgkmcnt(0)")
    a(f"global_store_dwordx4 v{t1}, {vr(d1, 4)}, {sr(WS)}{ST}")
    a.label(f"L1_one{tag}")
    a("s_waitcnt lgkmcnt(0)")
    a(f"global_store_dwordx4 v{t0}, {vr(d0, 4)}, {sr(WS)}{ST}")


def gen_k1(a):
    HIST, BASE = 0, 1024
    WST = 2048
    XST = WST + 16384
    TST = XST + 112 * XROW
    STG = TST + NPB * ROW
    LDS = STG + EPC * 8
    TID, LANE = 0, 1
    T0, T1, T2, T3 = 2, 3, 14, 15
    VD, VS, VE = 4, 8, 12
    VW_, VX_ = 16, 20
    XOP = 24
    AOP = 36
    DD = 68
    PK = 84
    VLOC = 87
    VB, VR, VH = 88, 92, 96
    NT = 100
    nd = Node(a, WST, XST, TID, LANE, VW_, VX_, NT)

    a(f".globl {K1}")
    a(".p2align 8")
    a(f".type {K1},@function")
    a.label(K1)
    a(f"s_cmp_ge_u32 s2, {NC}")
    a("s_cbranch_scc1 L1_end")
    stamp(a, 0)
    stamp(a, 20, True)
    load_ptrs(a)
    a(f"v_and_b32 v{LANE}, 63, v{TID}")
    a(f"v_lshrrev_b32 v{T0}, 6, v{TID}")
    a(f"v_lshlrev_b32 v{T1}, 2, v{TID}")
    a(f"v_readfirstlane_b32 s{WAVE}, v{T0}")
    a(f"v_mov_b32 v{T0}, 0")
    a(f"s_cmp_lt_u32 s{WAVE}, 4")
    a("s_cbranch_scc0 L1_nozero")
    a(f"ds_write_b32 v{T1}, v{T0} offset:{HIST}")
    a.label("L1_nozero")
    a("s_waitcnt lgkmcnt(0)")
    fix_ws(a)
    stamp(a, 1)
    nd.issue_loads(GW, 8192, VW)
    a("s_barrier")
    a(f"s_cmp_gt_u32 s{WAVE}, 12")
    a("s_cbranch_scc1 L1_noedge0")
    a(f"s_mul_i32 s24, s2, {EPC * 4}")
    a(f"v_lshlrev_b32 v{T0}, 4, v{TID}")
    a(f"v_add_u32 v{T0}, s24, v{T0}")
    a(f"v_lshrrev_b32 v{T1}, 1, v{T0}")
    a(f"v_cmp_gt_u32 vcc, {EPC // 4}, v{TID}")
    a("s_and_saveexec_b64 s[32:33], vcc")
    a(f"global_load_dwordx4 {vr(VD, 4)}, v{T0}, {sr(DST)}")
    a(f"global_load_dwordx4 {vr(VS, 4)}, v{T0}, {sr(SRC)}")
    a(f"global_load_dwordx2 {vr(VE, 2)}, v{T1}, {sr(EA)}")
    a("s_mov_b64 exec, s[32:33]")
    a("s_waitcnt vmcnt(3)")
    a("s_branch L1_wx")
    a.label("L1_noedge0")
    a("s_waitcnt vmcnt(0)")
    a.label("L1_wx")
    stamp(a, 2)
    nd.stage()
    a("s_waitcnt lgkmcnt(0)")
    a("s_barrier")
    stamp(a, 3)
    a(f"s_cmp_gt_u32 s{WAVE}, 13")
    a("s_cbranch_scc1 L1_notask")
    nd.pair_reads(AOP, XOP, VLOC)
    a(f"v_mul_u32_u24 v{T0}, {ROW}, v{VLOC}")
    a(f"v_lshrrev_b32 v{T1}, 4, v{LANE}")
    a(f"v_lshl_add_u32 v{T0}, v{T1}, 4, v{T0}")
    a("s_lshl_b32 s30, s27, 6")
    a(f"s_add_u32 s30, s30, {TST}")
    a(f"v_add_u32 v{T0}, s30, v{T0}")
    a(f"s_mov_b32 s24, {LOG2E_NEG:#x}")
    a("s_mov_b32 s25, 0x7fff0000")
    a("s_mov_b32 s30, 0x7fffffff")
    a(f"v_cmp_gt_u32 vcc, {NPB}, v{VLOC}")
    a("s_waitcnt lgkmcnt(0)")
    nd.pair_mfma(AOP, XOP, DD)
    a("s_nop 5")
    for c in range(2):
        DQ, DH = DD + c * 8, DD + c * 8 + 4
        if c == 1:
            pass
        for i in range(4):
            a(f"v_mul_f32 v{DQ + i}, s24, v{DQ + i}")
        a(f"v_cvt_pk_bf16_f32 v{PK}, v{DQ}, v{DQ + 1}")
        a(f"v_cvt_pk_bf16_f32 v{PK + 1}, v{DQ + 2}, v{DQ + 3}")
        for i in range(4):
            q = DQ + i
            if i % 2 == 0:
                a(f"v_and_b32 v{q}, 0xffff, v{PK + i // 2}")
            else:
                a(f"v_lshrrev_b32 v{q}, 16, v{PK + i // 2}")
        for i in range(4):
            q, h = DQ + i, DH + i
            a(f"v_and_b32 v{PK + 2}, s30, v{h}")
            a(f"v_sub_u32 v{PK + 2}, v{PK + 2}, v{q}")
            a(f"v_add_u32 v{PK + 2}, 0x8000, v{PK + 2}")
            a(f"v_max_i32 v{PK + 2}, 0, v{PK + 2}")
            a(f"v_and_b32 v{h}, 0x80000000, v{h}")
            a(f"v_or_b32 v{h}, v{h}, v{q}")
            a(f"v_and_or_b32 v{h}, v{PK + 2}, s25, v{h}")
        a("s_and_saveexec_b64 s[32:33], vcc")
        a(f"ds_write_b128 v{T0}, {vr(DH, 4)} offset:{c * 64}")
        a("s_mov_b64 exec, s[32:33]")
    a.label("L1_notask")
    a("s_waitcnt lgkmcnt(0)")
    stamp(a, 4)
    a("s_barrier")

    a(f"s_sub_u32 s24, s{WAVE}, 13")
    a("s_cmp_lt_u32 s24, 2")
    a("s_cbranch_scc0 L1_not")
    a(f"v_lshrrev_b32 v{T0}, 4, v{LANE}")
    a(f"v_mul_u32_u24 v{T0}, {ROW}, v{T0}")
    a(f"v_and_b32 v{T1}, 15, v{LANE}")
    a(f"v_lshl_add_u32 v{T0}, v{T1}, 4, v{T0}")
    a(f"s_mul_i32 s25, s24, {13 * 4 * ROW}")
    a(f"s_add_u32 s25, s25, {TST}")
    a(f"v_add_u32 v{T0}, s25, v{T0}")
    a(f"s_mul_i32 s26, s2, {NPB * 256}")
    a(f"s_mul_i32 s25, s24, {13 * 1024}")
    a("s_add_u32 s26, s26, s25")
    a(f"v_lshlrev_b32 v{T1}, 4, v{LANE}")
    a(f"v_add_u32 v{T1}, s26, v{T1}")
    for n in range(12):
        a(f"ds_read_b128 {vr(16 + 4 * n, 4)}, v{T0} offset:{n * 4 * ROW}")
    a("s_cmp_eq_u32 s24, 0")
    a("s_cbranch_scc0 L1_t12")
    a(f"ds_read_b128 {vr(64, 4)}, v{T0} offset:{12 * 4 * ROW}")
    a(f"v_add_u32 v{T2}, {12 * 1024}, v{T1}")
    a("s_waitcnt lgkmcnt(0)")
    a(f"global_store_dwordx4 v{T2}, {vr(64, 4)}, {sr(WS)}{STT}")
    a.label("L1_t12")
    for n in range(12):
        a(f"s_waitcnt lgkmcnt({max(0, 11 - n)})")
        a(f"global_store_dwordx4 v{T1}, {vr(16 + 4 * n, 4)}, {sr(WS)} offset:{(n % 4) * 1024}{STT}")
        if n % 4 == 3:
            a(f"v_add_u32 v{T1}, 4096, v{T1}")
    stamp(a, 5)
    if STAMPS:
        a("s_waitcnt vmcnt(0)")
    stamp(a, 11)
    stamp(a, 21, True)
    stamp_flush(a, 0)
    a("s_endpgm")
    a.label("L1_not")
    stamp(a, 5)
    a(f"s_cmp_gt_u32 s{WAVE}, 12")
    a("s_cbranch_scc1 L1_noedge1")
    a(f"v_cmp_gt_u32 vcc, {EPC // 4}, v{TID}")
    a("s_and_saveexec_b64 s[32:33], vcc")
    a(f"v_mov_b32 v{T1}, 1")
    a("s_movk_i32 s24, -100")
    a("s_mov_b32 s25, 0xffff0000")
    a("s_movk_i32 s30, 128")
    a("s_waitcnt vmcnt(0)")
    for i in range(4):
        a(f"v_mul_u32_u24 v{T0}, 5243, v{VD + i}")
        a(f"v_lshrrev_b32 v{T0}, 19, v{T0}")
        a(f"v_lshlrev_b32 v{VB + i}, 2, v{T0}")
        a(f"ds_add_rtn_u32 v{VR + i}, v{VB + i}, v{T1} offset:{HIST}")
        a(f"v_mad_i32_i24 v{T2}, v{T0}, s24, v{VD + i}")
        a(f"v_lshrrev_b32 v{T3}, 5, v{VS + i}")
        a(f"v_and_or_b32 v{VH + i}, v{T3}, s30, v{T2}")
        if i % 2 == 0:
            a(f"v_lshl_or_b32 v{VS + i}, v{VE + i // 2}, 16, v{VS + i}")
        else:
            a(f"v_and_or_b32 v{VS + i}, v{VE + i // 2}, s25, v{VS + i}")
    a("s_mov_b64 exec, s[32:33]")
    a.label("L1_noedge1")
    a("s_waitcnt lgkmcnt(0)")
    stamp(a, 6)
    a("s_barrier")
    stamp(a, 7)
    a(f"s_cmp_eq_u32 s{WAVE}, 15")
    a("s_cbranch_scc0 L1_b2")
    C0 = 24
    a(f"v_lshlrev_b32 v{T0}, 4, v{LANE}")
    a(f"ds_read_b128 {vr(C0, 4)}, v{T0} offset:{HIST}")
    a("s_waitcnt lgkmcnt(0)")
    P = 28
    a(f"v_add_u32 v{P + 2}, v{C0}, v{C0 + 1}")
    a(f"v_add_u32 v{P + 3}, v{P + 2}, v{C0 + 2}")
    a(f"v_add_u32 v32, v{P + 3}, v{C0 + 3}")
    a("v_mov_b32 v33, v32")
    wave_scan(a, 33)
    a(f"v_sub_u32 v{P}, v33, v32")
    a(f"v_add_u32 v{P + 1}, v{P}, v{C0}")
    a(f"v_add_u32 v{P + 2}, v{P}, v{P + 2}")
    a(f"v_add_u32 v{P + 3}, v{P}, v{P + 3}")
    a(f"ds_write_b128 v{T0}, {vr(P, 4)} offset:{BASE}")
    a("s_lshl_b32 s24, s2, 10")
    a(f"s_add_u32 s24, s24, {SEG_OFF}")
    a(f"v_add_u32 v{T1}, s24, v{T0}")
    for i in range(4):
        a(f"v_lshl_or_b32 v{36 + i}, v{C0 + i}, 16, v{P + i}")
    a(f"global_store_dwordx4 v{T1}, v[36:39], {sr(WS)}{ST}")
    a("s_cmp_lg_u32 s2, 0")
    a("s_cbranch_scc1 L1_b2")
    a(f"v_mov_b32 v{T2}, 0")
    a(f"v_lshlrev_b32 v{T3}, 2, v{LANE}")
    a(f"v_add_u32 v{T3}, {N * 256}, v{T3}")
    a(f"global_store_dword v{T3}, v{T2}, {sr(WS)}{ST}")
    a.label("L1_b2")
    a("s_waitcnt lgkmcnt(0)")
    stamp(a, 8)
    a("s_barrier")
    a(f"s_cmp_gt_u32 s{WAVE}, 12")
    a("s_cbranch_scc1 L1_noedge2")
    a(f"v_cmp_gt_u32 vcc, {EPC // 4}, v{TID}")
    a("s_and_saveexec_b64 s[32:33], vcc")
    for i in range(4):
        a(f"ds_read_b32 v{VD + i}, v{VB + i} offset:{BASE}")
    a(f"s_mov_b32 s24, {STG}")
    for i in range(4):
        a("s_waitcnt lgkmcnt(3)")
        a(f"v_add_u32 v{VD + i}, v{VD + i}, v{VR + i}")
        a(f"v_lshl_add_u32 v{VD + i}, v{VD + i}, 3, s24")
        a(f"ds_write2_b32 v{VD + i}, v{VS + i}, v{VH + i} offset0:0 offset1:1")
    a("s_mov_b64 exec, s[32:33]")
    a.label("L1_noedge2")
    a("s_waitcnt lgkmcnt(0)")
    stamp(a, 9)
    a("s_barrier")

    a(f"s_min_u32 s25, s{WAVE}, 13")
    a("s_lshl_b32 s25, s25, 10")
    a(f"v_lshlrev_b32 v{T0}, 4, v{LANE}")
    a(f"v_add_u32 v{T0}, s25, v{T0}")
    a(f"v_add_u32 v{T1}, {STG}, v{T0}")
    a(f"ds_read_b128 v[24:27], v{T1}")
    a(f"s_mul_i32 s24, s2, {EPC * 8}")
    a(f"s_add_u32 s24, s24, {REC_OFF}")
    a(f"v_add_u32 v{T0}, s24, v{T0}")
    a(f"s_cmp_gt_u32 s{WAVE}, 10")
    a("s_cbranch_scc1 L1_oner")
    a(f"ds_read_b128 v[28:31], v{T1} offset:{14 * 1024}")
    a(f"v_add_u32 v{T1}, {14 * 1024}, v{T0}")
    a("s_waitcnt lgkmcnt(0)")
    a(f"global_store_dwordx4 v{T1}, v[28:31], {sr(WS)}{STR_}")
    a.label("L1_oner")
    a("s_waitcnt lgkmcnt(0)")
    a(f"global_store_dwordx4 v{T0}, v[24:27], {sr(WS)}{STR_}")
    for o in OPT:
        if o.startswith("delay="):
            n = int(o[6:])
            a(f"s_movk_i32 s24, {n}")
            a.label("L1_dly")
            a("s_sleep 16")
            a("s_sub_u32 s24, s24, 1")
            a("s_cmp_lg_u32 s24, 0")
            a("s_cbranch_scc1 L1_dly")
    stamp(a, 10)
    if STAMPS:
        a("s_waitcnt vmcnt(0)")
    stamp(a, 11)
    stamp(a, 21, True)
    stamp_flush(a, 0)
    a.label("L1_end")
    a("s_endpgm")
    return LDS, 104


def gen_k2(a):
    HIST = 0
    HIST2 = HIST + 1024
    BASE2 = HIST2 + 1024
    WCNT = BASE2 + 1024
    WKEY = WCNT + 1024
    MISC = WKEY + 1024
    SCR = MISC + 256
    ZERO = SCR + 256
    PL = ZERO + 256
    PART0 = PL + NPB * ROW
    PART1 = PART0 + NPB * ROW
    WST = (PART1 + NPB * ROW + 127) // 128 * 128
    XST = WST + 16384
    LIST = XST + NPB * XROW
    CAPK = 48
    COL = CAPK * 4
    LISTB = 228 * COL
    LDS = LIST + LISTB + 64
    assert PART1 < 65536 and PART0 + 64 * ROW < 65536 and LDS <= 163840, LDS
    NWIN = 50
    DUMMY_COL = 100 * COL

    TID, LANE = 0, 1
    T0, T1, T2, T3 = 2, 3, 4, 5
    RB = 6
    REM = 7
    RECS = 8
    RANK = 24
    VW_, VX_ = 32, 36
    XOP = 40
    AOP = 52
    DD = 84
    VLOC = 49
    NT = 100
    VLB = 103
    ASEL = 112
    VJ, VG4, VQ, VONE = 116, 117, 118, 119
    CV = 120
    VZ = 124
    MASK = 40
    nd = Node(a, WST, XST, TID, LANE, VW_, VX_, NT)

    a(f".globl {K2}")
    a(".p2align 8")
    a(f".type {K2},@function")
    a.label(K2)
    a(f"s_cmp_ge_u32 s2, {NB}")
    a("s_cbranch_scc1 L2_end")
    for o in OPT:
        if o.startswith("nops="):
            for _ in range(int(o[5:])):
                a("s_nop 0")
        if o.startswith("nopl="):
            a(f"s_movk_i32 s24, {int(o[5:]) // 16}")
            a.label("L2_nopl")
            for _ in range(13):
                a("s_nop 0")
            a("s_sub_u32 s24, s24, 1")
            a("s_cmp_lg_u32 s24, 0")
            a("s_cbranch_scc1 L2_nopl")
    stamp(a, 0)
    stamp(a, 20, True)
    load_ptrs(a)
    a(f"v_and_b32 v{LANE}, 63, v{TID}")
    a(f"v_lshrrev_b32 v{T0}, 6, v{TID}")
    a(f"v_lshlrev_b32 v{T1}, 2, v{TID}")
    a(f"v_readfirstlane_b32 s{WAVE}, v{T0}")
    a(f"v_lshrrev_b32 v{RB}, 2, v{TID}")
    a(f"v_lshlrev_b32 v{RB}, 10, v{RB}")
    a("s_lshl_b32 s24, s2, 2")
    a(f"s_add_u32 s24, s24, {SEG_OFF}")
    a(f"v_add_u32 v{RB}, s24, v{RB}")
    a("s_waitcnt lgkmcnt(0)")
    fix_ws(a)
    stamp(a, 1)
    a(f"global_load_dword v{REM}, v{RB}, {sr(WS)}")
    a(f"v_mov_b32 v{T0}, 0")
    a(f"s_cmp_lt_u32 s{WAVE}, 4")
    a("s_cbranch_scc0 L2_nozero")
    a(f"ds_write_b32 v{T1}, v{T0} offset:{HIST}")
    a(f"ds_write_b32 v{T1}, v{T0} offset:{HIST2}")
    a.label("L2_nozero")
    a(f"s_cmp_eq_u32 s{WAVE}, 4")
    a("s_cbranch_scc0 L2_nozero2")
    a(f"v_lshlrev_b32 v{T2}, 2, v{LANE}")
    a(f"v_cmp_eq_u32 vcc, 2, v{LANE}")
    a("s_nop 1")
    a(f"v_cndmask_b32 v{T3}, 0, 16, vcc")
    a(f"ds_write_b32 v{T2}, v{T3} offset:{MISC}")
    a(f"ds_write_b32 v{T2}, v{T0} offset:{ZERO}")
    a.label("L2_nozero2")
    a(f"v_lshrrev_b32 v{RB}, 2, v{TID}")
    a(f"v_mul_u32_u24 v{RB}, {EPC}, v{RB}")
    a(f"v_and_b32 v{T3}, 3, v{TID}")
    a(f"v_lshlrev_b32 v{T3}, 1, v{T3}")
    a(f"v_add_u32 v{RB}, v{RB}, v{T3}")
    a(f"v_lshlrev_b32 v{RB}, 3, v{RB}")
    a(f"v_add_u32 v{RB}, {REC_OFF}, v{RB}")
    a(f"v_cmp_gt_u32 vcc, {NC * 4}, v{TID}")
    a("s_waitcnt vmcnt(0)")
    stamp(a, 2)
    a(f"v_cndmask_b32 v{REM}, 0, v{REM}, vcc")
    a(f"v_and_b32 v{T2}, 0xffff, v{REM}")
    a(f"v_lshrrev_b32 v{REM}, 16, v{REM}")
    a(f"v_lshl_add_u32 v{RB}, v{T2}, 3, v{RB}")
    a(f"v_cmp_lt_u32 s[56:57], 32, v{REM}")
    a(f"v_sub_u32 v{REM}, v{REM}, v{T3}")
    for r in range(4):
        a(f"v_cmp_gt_i32 {sr(MASK + 4 * r)}, v{REM}, {8 * r}")
    a("s_nop 1")
    for r in range(4):
        m = MASK + 4 * r
        a(f"s_mov_b64 exec, {sr(m)}")
        a("s_cbranch_execz L2_recs_done")
        a(f"global_load_dwordx4 {vr(RECS + 4 * r, 4)}, v{RB}, {sr(WS)} offset:{64 * r}")
    a.label("L2_recs_done")
    a("s_mov_b64 exec, -1")
    for r in range(4):
        a(f"v_cmp_gt_i32 {sr(MASK + 4 * r + 2)}, v{REM}, {8 * r + 1}")
    nd.issue_loads(GW, 0, UW)
    a(f"v_and_b32 v{T0}, 15, v{LANE}")
    a(f"v_lshlrev_b32 v{VJ}, 4, v{T0}")
    a(f"v_lshrrev_b32 v{T2}, 1, v{VJ}")
    a(f"v_add_u32 v{T2}, {128 * 128}, v{T2}")
    a(f"global_load_dwordx2 {vr(CV + 2, 2)}, v{T2}, {sr(GW)}")
    for i in range(4):
        a(f"v_mov_b32 v{XOP + i}, {N}")
    a(f"v_lshlrev_b32 v{T2}, 4, v{TID}")
    a(f"v_add_u32 v{T2}, {LIST}, v{T2}")
    a(f"ds_write_b128 v{T2}, {vr(XOP, 4)}")
    a(f"ds_write_b128 v{T2}, {vr(XOP, 4)} offset:16384")
    nlast = LISTB // 16 - 2048
    a(f"v_cmp_gt_u32 vcc, {nlast}, v{TID}")
    a("s_and_saveexec_b64 s[32:33], vcc")
    a(f"ds_write_b128 v{T2}, {vr(XOP, 4)} offset:32768")
    a("s_mov_b64 exec, s[32:33]")
    a(f"v_lshrrev_b32 v{T1}, 4, v{LANE}")
    a(f"v_lshlrev_b32 v{VG4}, 2, v{T1}")
    a(f"v_add_u32 v{VZ}, {ZERO}, v{VJ}")
    a(f"v_mov_b32 v{VONE}, 1")
    a(f"v_mov_b32 v{VLB}, {LIST}")
    a(f"v_lshlrev_b32 v{VQ}, 2, v{LANE}")
    a(f"v_add_u32 v{VQ}, {SCR}, v{VQ}")
    a(f"v_cmp_eq_u32 vcc, 0, v{LANE}")
    a(f"v_mov_b32 v{T3}, {MISC + 8}")
    a(f"v_lshrrev_b32 v{T2}, 2, v{T0}")
    a(f"v_cndmask_b32 v{VQ}, v{VQ}, v{T3}, vcc")
    a(f"v_cmp_eq_u32 vcc, v{T2}, v{T1}")
    a(f"v_mov_b32 v{T3}, 0x3f80")
    a(f"v_and_b32 v{T2}, 3, v{T0}")
    a(f"v_cndmask_b32 v{T3}, 0, v{T3}, vcc")
    for q in range(4):
        a(f"v_cmp_eq_u32 vcc, {q}, v{T2}")
        a("s_nop 1")
        a(f"v_cndmask_b32 v{ASEL + q}, 0, v{T3}, vcc")
    nd.stage_addr(NT, NT + 1, NT + 2)
    a("s_waitcnt lgkmcnt(0)")
    a("s_barrier")
    a("s_cmp_eq_u64 s[56:57], 0")
    a("s_cbranch_scc1 L2_noflag")
    a(f"v_mov_b32 v{T2}, 0")
    a(f"ds_write_b32 v{T2}, v{VONE} offset:{MISC}")
    a.label("L2_noflag")
    a(f"s_movk_i32 s59, {COL}")
    a("s_waitcnt vmcnt(3)")
    stamp(a, 3)
    for r in range(4):
        if r >= 2:
            a(f"s_cmp_eq_u64 {sr(MASK + 4 * r)}, 0")
            a(f"s_cbranch_scc1 L2_h{r}")
        for s_ in range(2):
            k = 2 * r + s_
            hi = RECS + 4 * r + 2 * s_ + 1
            a(f"s_mov_b64 exec, {sr(MASK + 2 * k)}")
            a(f"v_lshlrev_b32 v{T1}, 2, v{hi}")
            a(f"ds_add_rtn_u32 v{RANK + k}, v{T1}, v{VONE} offset:{HIST}")
            a(f"v_mad_u32_u24 v{hi}, v{hi}, s59, v{VLB}")
        if r >= 2:
            a.label(f"L2_h{r}")
    a("s_mov_b64 exec, -1")
    a("s_waitcnt lgkmcnt(0)")
    for r in range(4):
        if r >= 2:
            a(f"s_cmp_eq_u64 {sr(MASK + 4 * r)}, 0")
            a(f"s_cbranch_scc1 L2_s{r}")
        for s_ in range(2):
            k = 2 * r + s_
            lo = RECS + 4 * r + 2 * s_
            hi = lo + 1
            a(f"s_mov_b64 exec, {sr(MASK + 2 * k)}")
            a(f"v_min_u32 v{RANK + k}, 63, v{RANK + k}")
            a(f"v_lshl_add_u32 v{hi}, v{RANK + k}, 2, v{hi}")
            a(f"ds_write_b32 v{hi}, v{lo}")
        if r >= 2:
            a.label(f"L2_s{r}")
    a("s_mov_b64 exec, -1")
    stamp(a, 4)
    a("s_waitcnt vmcnt(0)")
    stamp(a, 5)
    nd.stage_write(NT, NT + 1)
    a(f"s_mov_b32 s24, {LOG2E_NEG:#x}")
    a(f"v_lshlrev_b32 v{CV}, 16, v{CV + 2}")
    a(f"v_and_b32 v{CV + 1}, 0xffff0000, v{CV + 2}")
    a(f"v_lshlrev_b32 v{CV + 2}, 16, v{CV + 3}")
    a(f"v_and_b32 v{CV + 3}, 0xffff0000, v{CV + 3}")
    for i in range(4):
        a(f"v_mul_f32 v{CV + i}, s24, v{CV + i}")
    a("s_waitcnt lgkmcnt(0)")
    stamp(a, 6)
    a("s_barrier")
    a(f"s_cmp_eq_u32 s{WAVE}, 15")
    a("s_cbranch_scc1 L2_order")
    a(f"s_cmp_gt_u32 s{WAVE}, 3")
    a("s_cbranch_scc1 L2_b2")

    a("s_setprio 2")
    A0 = 8
    B0 = 24
    D0 = 48
    VXA, VPA, VSH = 72, 73, 74
    a(f"v_and_b32 v{T0}, 15, v{LANE}")
    a(f"v_lshrrev_b32 v{T1}, 4, v{LANE}")
    a(f"v_mul_u32_u24 v{VXA}, {XROW}, v{T0}")
    a(f"v_lshl_add_u32 v{VXA}, v{T1}, 4, v{VXA}")
    a(f"v_add_u32 v{VXA}, {XST}, v{VXA}")
    for t in range(2):
        a(f"ds_read_b128 {vr(B0 + 8 * t, 4)}, v{VXA} offset:{t * 16 * XROW}")
        a(f"ds_read_b128 {vr(B0 + 8 * t + 4, 4)}, v{VXA} offset:{t * 16 * XROW + 64}")
    a(f"v_lshrrev_b32 v{T2}, 3, v{T0}")
    a(f"v_and_b32 v{T3}, 1, v{T1}")
    a(f"v_lshl_or_b32 v{T2}, v{T3}, 1, v{T2}")
    a(f"v_xor_b32 v{T2}, s{WAVE}, v{T2}")
    a(f"v_lshlrev_b32 v{T2}, 5, v{T2}")
    a(f"v_lshrrev_b32 v{T3}, 2, v{T0}")
    a(f"v_lshl_add_u32 v{T3}, v{T1}, 3, v{T3}")
    a(f"v_lshl_add_u32 v{T2}, v{T3}, 7, v{T2}")
    a(f"v_and_b32 v{T3}, 3, v{T0}")
    a(f"v_lshl_add_u32 v{T2}, v{T3}, 3, v{T2}")
    a(f"v_add_u32 v{T2}, {WST}, v{T2}")
    for m in range(2):
        for ks in range(2):
            for hh in range(2):
                a(f"ds_read_b64_tr_b16 {vr(A0 + (m * 2 + ks) * 4 + hh * 2, 2)}, v{T2} offset:{m * 8192 + ks * 4096 + hh * 512}")
    a(f"v_mul_u32_u24 v{VPA}, {ROW}, v{T0}")
    a(f"v_lshl_add_u32 v{VPA}, v{T1}, 4, v{VPA}")
    a(f"s_lshl_b32 s30, s{WAVE}, 6")
    a(f"v_add_u32 v{VPA}, s30, v{VPA}")
    a(f"s_mov_b32 s24, {LOG2E_NEG:#x}")
    a(f"v_mov_b32 v{VSH}, {SHIFT_NEG:#x}")
    a(f"v_cmp_gt_u32 s[34:35], 4, v{T0}")

    def pu_out(t):
        d = D0 + 8 * (t % 3)
        for i in range(4):
            a(f"v_fma_f32 v{d + i}, v{d + i}, s24, v{VSH}")
        if t == 6:
            a("s_mov_b64 exec, s[34:35]")
        a(f"ds_write_b128 v{VPA}, {vr(d, 4)} offset:{PL + t * 16 * ROW}")
        a(f"ds_write_b128 v{VPA}, {vr(d + 4, 4)} offset:{PART0 + t * 16 * ROW}")
        if t == 6:
            a("s_mov_b64 exec, -1")

    for t in range(7):
        b = B0 + 8 * (t % 3)
        d = D0 + 8 * (t % 3)
        if t + 2 < 7:
            bn = B0 + 8 * ((t + 2) % 3)
            a(f"ds_read_b128 {vr(bn, 4)}, v{VXA} offset:{(t + 2) * 16 * XROW}")
            a(f"ds_read_b128 {vr(bn + 4, 4)}, v{VXA} offset:{(t + 2) * 16 * XROW + 64}")
        if t == 0:
            a("s_waitcnt lgkmcnt(2)")
        else:
            younger = (2 if t + 1 < 7 else 0) + (2 if t + 2 < 7 else 0) + (2 if t >= 2 else 0)
            a(f"s_waitcnt lgkmcnt({younger})")
        a(f"v_mfma_f32_16x16x32_bf16 {vr(d, 4)}, {vr(A0, 4)}, {vr(b, 4)}, 0")
        a(f"v_mfma_f32_16x16x32_bf16 {vr(d + 4, 4)}, {vr(A0 + 8, 4)}, {vr(b, 4)}, 0")
        a(f"v_mfma_f32_16x16x32_bf16 {vr(d, 4)}, {vr(A0 + 4, 4)}, {vr(b + 4, 4)}, {vr(d, 4)}")
        a(f"v_mfma_f32_16x16x32_bf16 {vr(d + 4, 4)}, {vr(A0 + 12, 4)}, {vr(b + 4, 4)}, {vr(d + 4, 4)}")
        if t >= 1:
            a("s_nop 1")
            pu_out(t - 1)
    a("s_nop 7")
    pu_out(6)
    a("s_setprio 0")
    a("s_branch L2_b2")

    a.label("L2_order")
    a("s_setprio 3")
    CN, BN, RK = 100, 104, 108
    S0 = 84
    a(f"v_lshlrev_b32 v{T0}, 4, v{LANE}")
    a(f"ds_read_b128 {vr(CN, 4)}, v{T0} offset:{HIST}")
    a(f"v_lshrrev_b32 v{T1}, 5, v{LANE}")
    a(f"v_and_b32 v{T2}, 31, v{LANE}")
    a(f"v_cmp_gt_u32 vcc, 25, v{T2}")
    a(f"v_lshlrev_b32 v{T3}, 8, v{T1}")
    a(f"v_add_u32 v{T3}, {63 * 4}, v{T3}")
    a(f"v_mov_b32 v{S0}, {(128 + 63) * 4}")
    a(f"v_cndmask_b32 v{T3}, v{S0}, v{T3}, vcc")
    a(f"v_mul_u32_u24 v{T2}, {4 * ROW}, v{T2}")
    a(f"v_mul_u32_u24 v{T1}, {4 * COL}, v{LANE}")
    a(f"v_lshl_or_b32 v{T1}, v{T1}, 16, v{T2}")
    a("s_waitcnt lgkmcnt(0)")
    a(f"v_max3_u32 v{S0 + 1}, v{CN}, v{CN + 1}, v{CN + 2}")
    a(f"v_max_u32 v{S0 + 1}, v{S0 + 1}, v{CN + 3}")
    for i in range(4):
        a(f"v_min_u32 v{BN + i}, 63, v{CN + i}")
        a(f"v_lshlrev_b32 v{BN + i}, 2, v{BN + i}")
        a(f"v_sub_u32 v{BN + i}, v{T3}, v{BN + i}")
        a(f"ds_add_rtn_u32 v{RK + i}, v{BN + i}, v{VONE} offset:{HIST2}")
    a(f"ds_read_b128 {vr(S0 + 4, 4)}, v{T0} offset:{HIST2}")
    a(f"v_cmp_lt_u32 vcc, {CAPK}, v{S0 + 1}")
    a("s_cbranch_vccz L2_nocap")
    a(f"v_mov_b32 v{S0}, 0")
    a(f"ds_write_b32 v{S0}, v{VONE} offset:{MISC}")
    a.label("L2_nocap")
    a("s_waitcnt lgkmcnt(0)")
    a(f"v_add_u32 v{S0 + 1}, v{S0 + 4}, v{S0 + 5}")
    a(f"v_add_u32 v{S0 + 2}, v{S0 + 1}, v{S0 + 6}")
    a(f"v_add_u32 v{S0 + 3}, v{S0 + 2}, v{S0 + 7}")
    a(f"v_mov_b32 v{S0}, v{S0 + 3}")
    wave_scan(a, S0)
    a(f"v_sub_u32 v{S0}, v{S0}, v{S0 + 3}")
    a(f"v_add_u32 v{S0 + 3}, v{S0}, v{S0 + 2}")
    a(f"v_add_u32 v{S0 + 2}, v{S0}, v{S0 + 1}")
    a(f"v_add_u32 v{S0 + 1}, v{S0}, v{S0 + 4}")
    a(f"ds_write_b128 v{T0}, {vr(S0, 4)} offset:{BASE2}")
    for i in range(4):
        a(f"ds_read_b32 v{S0 + 4 + i}, v{BN + i} offset:{BASE2}")
    a("s_waitcnt lgkmcnt(0)")
    for i in range(4):
        a(f"v_add_u32 v{RK + i}, v{RK + i}, v{S0 + 4 + i}")
        a(f"v_lshlrev_b32 v{RK + i}, 2, v{RK + i}")
        a(f"v_add_u32 v{S0}, {i * ((COL << 16) + ROW)}, v{T1}")
        a(f"ds_write_b32 v{RK + i}, v{CN + i} offset:{WCNT}")
        a(f"ds_write_b32 v{RK + i}, v{S0} offset:{WKEY}")
    a("s_setprio 0")
    a.label("L2_b2")
    a("s_waitcnt lgkmcnt(0)")
    stamp(a, 7)
    a("s_barrier")
    stamp(a, 8)
    NP = 4
    RA = 4
    PR = 8
    ACC = 12
    UR = 16
    DN = 20
    NM = 24
    DA = 28
    VB = 44
    IX = 76
    EV = 92
    VL = 100
    VFL = 101
    VFN = 102
    VRN = 103
    VIN = 104
    VWL = 105
    SC, SNL, SI = 61, 62, 63
    STR = 64
    a(f"s_mov_b32 s36, s{WS}")
    a(f"s_and_b32 s37, s{WS + 1}, 0xffff")
    a("s_or_b32 s37, s37, 0x1000000")
    a(f"s_mov_b32 s38, {N + 1}")
    a("s_mov_b32 s39, 0x20000")
    a(f"v_mov_b32 v{T0}, 0")
    a(f"ds_read_b32 v{T1}, v{T0} offset:{MISC}")
    a(f"v_lshlrev_b32 v{T2}, 4, v{LANE}")
    a(f"ds_read_b32 v{VWL}, v{T2} offset:{WCNT}")
    a(f"s_lshl_b32 s26, s{WAVE}, 4")
    a(f"v_add_u32 v{T2}, s26, v{VG4}")
    a(f"ds_read_b32 v{T3}, v{T2} offset:{WKEY}")
    for k in range(NP):
        a(f"v_mov_b32 v{IX + 4 * k + 1}, v{VJ}")
        a(f"v_mov_b32 v{IX + 4 * k + 3}, v{VJ}")
        a(f"v_mov_b32 v{EV + 2 * k}, 0")
        a(f"v_mov_b32 v{EV + 2 * k + 1}, 0")
    a(f"s_mov_b32 s66, {TINY:#x}")
    a(f"s_mov_b32 s67, {TINY:#x}")
    a(f"s_mov_b32 s68, {PART0}")
    a(f"s_mov_b32 s69, {PART1}")
    a("s_waitcnt lgkmcnt(0)")
    a(f"v_readfirstlane_b32 s24, v{T1}")
    a(f"v_add_u32 v{VWL}, 1, v{VWL}")
    a(f"v_lshrrev_b32 v{VWL}, 1, v{VWL}")
    a(f"v_max_u32 v{VWL}, {RA}, v{VWL}")
    a(f"v_lshrrev_b32 v{VL}, 16, v{T3}")
    a(f"v_add_u32 v{VL}, {LIST}, v{VL}")
    a("s_cmp_lg_u32 s24, 0")
    a("s_cbranch_scc1 L2_slow")
    for k in range(RA):
        a(f"ds_read_u16 v{IX + 4 * k}, v{VL} offset:{8 * k}")
        a(f"ds_read_u16 v{IX + 4 * k + 2}, v{VL} offset:{8 * k + 4}")
    a(f"v_and_b32 v{VRN}, 0xffff, v{T3}")
    a(f"v_add_u32 v{VRN}, v{VRN}, v{VJ}")
    a(f"v_add_u32 v{VFL}, {PART0}, v{VRN}")
    a(f"v_readlane_b32 s{SC}, v{VWL}, s{WAVE}")
    a(f"s_mov_b32 s{STR}, {RA}")
    a(f"s_mov_b32 s{SI}, s{WAVE}")
    if "noprio" not in OPT:
        a("s_setprio 3")
    a("s_waitcnt lgkmcnt(0)")
    for k in range(RA - 1):
        for h in range(2):
            a(f"buffer_load_dwordx4 {vr(VB + 8 * k + 4 * h, 4)}, {vr(IX + 4 * k + 2 * h, 2)}, s[36:39], 0 idxen offen")
    for k in range(RA):
        a(f"ds_read_u16_d16_hi v{EV + 2 * k}, v{VL} offset:{8 * k + 2}")
        a(f"ds_read_u16_d16_hi v{EV + 2 * k + 1}, v{VL} offset:{8 * k + 6}")
    a(f"ds_read_b128 {vr(PR, 4)}, v{VRN} offset:{PL}")
    a(f"ds_read_b128 {vr(UR, 4)}, v{VRN} offset:{PART0}")
    for i in range(4):
        a(f"v_mov_b32 v{ACC + i}, 0")
    a("s_waitcnt lgkmcnt(0)")
    stamp(a, 9)

    def mfma1(k, h):
        d = DA + 8 * (k & 1)
        a(f"v_mfma_f32_16x16x32_bf16 {vr(d + 4 * h, 4)}, {vr(ASEL, 4)}, {vr(VB + 8 * k + 4 * h, 4)}, {vr(PR, 4)}")

    def tail1(k):
        d = DA + 8 * (k & 1)
        vb = VB + 8 * k
        for h in range(2):
            a(f"v_pk_mul_f32 {vr(DN + 2 * h, 2)}, {vr(d + 2 * h, 2)}, {vr(d + 4 + 2 * h, 2)}")
        for h in range(2):
            a(f"v_pk_mul_f32 {vr(NM + 2 * h, 2)}, {vr(vb + 2 * h, 2)}, {vr(d + 4 + 2 * h, 2)}")
        for h in range(2):
            a(f"v_pk_fma_f32 {vr(NM + 2 * h, 2)}, {vr(vb + 4 + 2 * h, 2)}, {vr(d + 2 * h, 2)}, {vr(NM + 2 * h, 2)}")

    def rcp2(h):
        a(f"v_rcp_f32 v{DN + 2 * h}, v{DN + 2 * h}")
        a(f"v_rcp_f32 v{DN + 2 * h + 1}, v{DN + 2 * h + 1}")

    def tail2():
        a(f"v_pk_fma_f32 {vr(ACC, 2)}, {vr(NM, 2)}, {vr(DN, 2)}, {vr(ACC, 2)}")
        a(f"v_pk_fma_f32 {vr(ACC + 2, 2)}, {vr(NM + 2, 2)}, {vr(DN + 2, 2)}, {vr(ACC + 2, 2)}")

    def read_idx(k):
        a(f"ds_read_u16 v{IX + 4 * k}, v{VL} offset:{8 * (RA + k)}")
        a(f"ds_read_u16 v{IX + 4 * k + 2}, v{VL} offset:{8 * (RA + k) + 4}")

    def read_e(k):
        a(f"ds_read_u16_d16_hi v{EV + 2 * k}, v{VL} offset:{8 * (RA + k) + 2}")
        a(f"ds_read_u16_d16_hi v{EV + 2 * k + 1}, v{VL} offset:{8 * (RA + k) + 6}")

    def gather(k):
        p = (k - 1) % NP
        if "nogather" not in OPT:
            for h in range(2):
                a(f"buffer_load_dwordx4 {vr(VB + 8 * p + 4 * h, 4)}, {vr(IX + 4 * p + 2 * h, 2)}, s[36:39], 0 idxen offen")

    def front(k):
        d = DA + 8 * (k & 1)
        ep = EV + 2 * k
        for h in range(2):
            osel = "op_sel:[1,0,0] op_sel_hi:[1,1,1]" if h else "op_sel_hi:[0,1,1]"
            a(f"v_pk_fma_f32 {vr(d + 4 * h, 2)}, {vr(ep, 2)}, {vr(CV, 2)}, {vr(d + 4 * h, 2)} {osel}")
            a(f"v_pk_fma_f32 {vr(d + 4 * h + 2, 2)}, {vr(ep, 2)}, {vr(CV + 2, 2)}, {vr(d + 4 * h + 2, 2)} {osel}")
        read_e(k)
        for i in range(8):
            a(f"v_exp_f32_e64 v{d + i}, v{d + i} clamp")
            if i == 5:
                a(f"v_pk_add_f32 {vr(d, 2)}, {vr(d, 2)}, s[66:67]")
        a(f"v_pk_add_f32 {vr(d + 2, 2)}, {vr(d + 2, 2)}, s[66:67]")
        a(f"v_pk_add_f32 {vr(d + 4, 2)}, {vr(d + 4, 2)}, s[66:67]")
        a(f"v_pk_add_f32 {vr(d + 6, 2)}, {vr(d + 6, 2)}, s[66:67]")

    def flush():
        a(f"v_pk_fma_f32 {vr(UR, 2)}, {vr(ACC, 2)}, s[66:67], {vr(UR, 2)}")
        a(f"v_pk_fma_f32 {vr(UR + 2, 2)}, {vr(ACC + 2, 2)}, s[66:67], {vr(UR + 2, 2)}")
        a(f"ds_write_b128 v{VFL}, {vr(UR, 4)}")

    VW = 2 * (RA - 2)
    a(f"s_cmp_eq_u32 s{SC}, s{STR}")
    a("s_cbranch_scc1 L2_pop_first")
    a.label("L2_first_cont")
    if "nogather" not in OPT:
        a(f"s_waitcnt vmcnt({VW})")
    mfma1(0, 0)
    mfma1(0, 1)
    read_idx(0)
    a("s_nop 2")
    gather(0)
    a("s_branch L2_mid0")

    a.label("L2_loop")
    for k in range(NP):
        pk = (k - 1) % NP
        a(f"s_cmp_eq_u32 s{SC}, s{STR}")
        a(f"s_cbranch_scc1 L2_ev{k}")
        a.label(f"L2_cont{k}")
        tail1(pk)
        if "nogather" not in OPT:
            a(f"s_waitcnt vmcnt({VW})")
        mfma1(k, 0)
        rcp2(0)
        mfma1(k, 1)
        rcp2(1)
        read_idx(k)
        tail2()
        a("s_waitcnt lgkmcnt(4)")
        gather(k)
        a.label(f"L2_mid{k}")
        front(k)
        a(f"s_sub_u32 s{SC}, s{SC}, 1")
        if k == NP - 1:
            a(f"v_add_u32 v{VL}, {8 * NP}, v{VL}")
            a("s_branch L2_loop")

    def pop(k, cont):
        a(f"ds_add_rtn_u32 v{T2}, v{VQ}, v{VONE}")
        a(f"s_mov_b32 s{STR}, 0")
        a("s_waitcnt lgkmcnt(0)")
        a(f"v_readfirstlane_b32 s{SI}, v{T2}")
        a(f"s_mov_b32 s{SNL}, 0")
        a(f"v_mov_b32 v{VL}, {LIST + DUMMY_COL - 8 * (RA + k)}")
        a("s_nop 1")
        a(f"s_cmp_lt_u32 s{SI}, {NWIN}")
        a(f"s_cbranch_scc0 {cont}")
        a(f"s_lshl_b32 s26, s{SI}, 4")
        a(f"v_add_u32 v{T2}, s26, v{VG4}")
        a(f"ds_read_b32 v{T3}, v{T2} offset:{WKEY}")
        a(f"v_readlane_b32 s{SNL}, v{VWL}, s{SI}")
        a(f"s_cmp_lt_u32 s{SI}, {NWIN // 2}")
        a("s_cselect_b32 s26, s68, s69")
        a("s_waitcnt lgkmcnt(0)")
        a(f"v_and_b32 v{VRN}, 0xffff, v{T3}")
        a(f"v_lshrrev_b32 v{VL}, 16, v{T3}")
        a(f"v_add_u32 v{VRN}, v{VRN}, v{VJ}")
        a(f"v_add_u32 v{VL}, {LIST - 8 * (RA + k)}, v{VL}")
        a(f"v_add_u32 v{VFN}, s26, v{VRN}")
        a(f"v_mov_b32 v{VIN}, v{VFN}")
        a(f"s_cbranch_scc1 {cont}")
        a(f"v_mov_b32 v{VIN}, v{VZ}")
        a(f"s_branch {cont}")

    a.label("L2_pop_first")
    pop(0, "L2_first_cont")
    for k in range(NP):
        pk = (k - 1) % NP
        a.label(f"L2_ev{k}")
        a(f"s_cmp_eq_u32 s{STR}, 0")
        a(f"s_cbranch_scc1 L2_sw{k}")
        pop(k, f"L2_cont{k}")
        a.label(f"L2_sw{k}")
        tail1(pk)
        rcp2(0)
        rcp2(1)
        a("s_nop 0")
        tail2()
        flush()
        a(f"s_cmp_eq_u32 s{SNL}, 0")
        a("s_cbranch_scc1 L2_done")
        a(f"ds_read_b128 {vr(PR, 4)}, v{VRN} offset:{PL}")
        a(f"ds_read_b128 {vr(UR, 4)}, v{VIN}")
        for i in range(4):
            a(f"v_mov_b32 v{ACC + i}, 0")
        a(f"v_mov_b32 v{VFL}, v{VFN}")
        a(f"s_mov_b32 s{SC}, s{SNL}")
        a(f"s_mov_b32 s{STR}, {RA}")
        if "noprio" not in OPT:
            a(f"s_cmp_lt_u32 s{SI}, 40")
            a(f"s_cbranch_scc1 L2_p1_{k}")
            a("s_setprio 0")
            a(f"s_branch L2_pd_{k}")
            a.label(f"L2_p1_{k}")
            a(f"s_cmp_lt_u32 s{SI}, 32")
            a(f"s_cbranch_scc1 L2_p2_{k}")
            a("s_setprio 1")
            a(f"s_branch L2_pd_{k}")
            a.label(f"L2_p2_{k}")
            a(f"s_cmp_lt_u32 s{SI}, 25")
            a(f"s_cbranch_scc1 L2_pd_{k}")
            a("s_setprio 2")
            a.label(f"L2_pd_{k}")
        a(f"s_cmp_eq_u32 s{SC}, {RA}")
        a(f"s_cbranch_scc0 L2_sw2_{k}")
        pop(k, f"L2_sw2_{k}")
        a.label(f"L2_sw2_{k}")
        if "nogather" not in OPT:
            a(f"s_waitcnt vmcnt({VW}) lgkmcnt(0)")
        else:
            a("s_waitcnt lgkmcnt(0)")
        mfma1(k, 0)
        mfma1(k, 1)
        read_idx(k)
        a("s_nop 2")
        gather(k)
        a(f"s_branch L2_mid{k}")

    a.label("L2_slow")
    SSC, SCN, SRI = 61, 62, 63
    a(f"v_lshlrev_b32 v{T0}, 2, v{LANE}")
    a(f"v_lshlrev_b32 v{T1}, 1, v{LANE}")
    a(f"v_add_u32 v{T1}, {128 * 128}, v{T1}")
    a(f"global_load_ushort v{T2}, v{T1}, {sr(GW)}")
    a(f"s_mov_b32 s24, {LOG2E_NEG:#x}")
    a(f"s_mov_b32 s25, s{WAVE}")
    a("v_mov_b32 v9, 0")
    a.label("L2_slow_z")
    a(f"s_mul_i32 s26, s25, {ROW}")
    a(f"v_add_u32 v10, s26, v{T0}")
    a(f"ds_write_b32 v10, v9 offset:{PART1}")
    a("s_add_u32 s25, s25, 16")
    a(f"s_cmp_lt_u32 s25, {NPB}")
    a("s_cbranch_scc1 L2_slow_z")
    a("s_waitcnt vmcnt(0) lgkmcnt(0)")
    a(f"v_lshlrev_b32 v{T2}, 16, v{T2}")
    a(f"v_mul_f32 v8, s24, v{T2}")
    a(f"s_mov_b32 s{SSC}, 0")
    a.label("L2_slow_seg")
    a(f"s_cmp_ge_u32 s{SSC}, {NC}")
    a("s_cbranch_scc1 L2_done")
    a(f"s_lshl_b32 s24, s{SSC}, 8")
    a("s_add_u32 s24, s24, s2")
    a("s_lshl_b32 s24, s24, 2")
    a(f"s_add_u32 s24, s24, {SEG_OFF}")
    a(f"v_mov_b32 v{T1}, s24")
    a(f"global_load_dword v{T2}, v{T1}, {sr(WS)}")
    a("s_waitcnt vmcnt(0)")
    a(f"v_readfirstlane_b32 s25, v{T2}")
    a("s_nop 3")
    a(f"s_lshr_b32 s{SCN}, s25, 16")
    a("s_and_b32 s25, s25, 0xffff")
    a(f"s_mul_i32 s26, s{SSC}, {EPC}")
    a("s_add_u32 s26, s26, s25")
    a("s_lshl_b32 s26, s26, 3")
    a(f"s_add_u32 s{SRI}, s26, {REC_OFF}")
    a.label("L2_slow_rec")
    a(f"s_cmp_eq_u32 s{SCN}, 0")
    a("s_cbranch_scc1 L2_slow_next")
    a(f"v_mov_b32 v{T1}, s{SRI}")
    a(f"global_load_dwordx2 v[10:11], v{T1}, {sr(WS)}")
    a(f"s_add_u32 s{SRI}, s{SRI}, 8")
    a(f"s_sub_u32 s{SCN}, s{SCN}, 1")
    a("s_waitcnt vmcnt(0)")
    a("v_and_b32 v14, 127, v11")
    a("v_and_b32 v15, 15, v14")
    a("s_nop 0")
    a("v_readfirstlane_b32 s25, v15")
    a("s_nop 3")
    a(f"s_cmp_lg_u32 s25, s{WAVE}")
    a("s_cbranch_scc1 L2_slow_rec")
    a("v_and_b32 v18, 0xffff, v10")
    a(f"v_mov_b32 v19, v{T0}")
    a("buffer_load_dword v13, v[18:19], s[36:39], 0 idxen offen")
    a(f"v_mul_u32_u24 v14, {ROW}, v14")
    a(f"v_add_u32 v14, v14, v{T0}")
    a(f"ds_read_b32 v15, v14 offset:{PL}")
    a(f"ds_read_b32 v17, v14 offset:{PART1}")
    a("v_and_b32 v11, 0xffff0000, v10")
    a("s_waitcnt vmcnt(0) lgkmcnt(0)")
    a("v_lshlrev_b32 v16, 16, v13")
    a("v_add_f32 v16, v16, v15")
    a("v_fmac_f32 v16, v11, v8")
    a("v_exp_f32 v16, v16")
    a(f"s_mov_b32 s25, {TINY:#x}")
    a("v_add_f32 v16, s25, v16")
    a("v_rcp_f32 v16, v16")
    a("s_nop 0")
    a("v_mul_f32 v16, s25, v16")
    a("v_fmac_f32 v17, v16, v13")
    a(f"ds_write_b32 v14, v17 offset:{PART1}")
    a("s_waitcnt lgkmcnt(0)")
    a("s_branch L2_slow_rec")
    a.label("L2_slow_next")
    a(f"s_add_u32 s{SSC}, s{SSC}, 1")
    a("s_branch L2_slow_seg")

    a.label("L2_done")
    stamp(a, 10)
    a("s_setprio 0")
    a("s_waitcnt vmcnt(0) lgkmcnt(0)")
    a("s_barrier")
    stamp(a, 11)
    a(f"v_lshrrev_b32 v{T0}, 4, v{TID}")
    a(f"v_and_b32 v{T1}, 15, v{TID}")
    a(f"v_mul_u32_u24 v{T2}, {ROW}, v{T0}")
    a(f"v_lshl_add_u32 v{T2}, v{T1}, 4, v{T2}")
    a(f"s_mul_i32 s24, s2, {NPB * 128}")
    a(f"v_lshlrev_b32 v{T3}, 7, v{T0}")
    a(f"v_lshl_add_u32 v{T3}, v{T1}, 3, v{T3}")
    a(f"v_add_u32 v{T3}, s24, v{T3}")
    a(f"s_mov_b32 s24, {LOG2E_NEG:#x}")

    def silu_store(src, off):
        for i in range(4):
            a(f"v_add_f32 v{src + i}, v{src + i}, v{src + 4 + i}")
        for i in range(4):
            a(f"v_mul_f32 v{src + 4 + i}, s24, v{src + i}")
        for i in range(4):
            a(f"v_exp_f32 v{src + 4 + i}, v{src + 4 + i}")
        a("s_nop 0")
        for i in range(4):
            a(f"v_add_f32 v{src + 4 + i}, 1.0, v{src + 4 + i}")
        for i in range(4):
            a(f"v_rcp_f32 v{src + 4 + i}, v{src + 4 + i}")
        a("s_nop 0")
        for i in range(4):
            a(f"v_mul_f32 v{src + i}, v{src + i}, v{src + 4 + i}")
        a(f"v_cvt_pk_bf16_f32 v{src + 4}, v{src}, v{src + 1}")
        a(f"v_cvt_pk_bf16_f32 v{src + 5}, v{src + 2}, v{src + 3}")
        a(f"global_store_dwordx2 v{off}, {vr(src + 4, 2)}, {sr(OUT)}")

    a(f"ds_read_b128 v[8:11], v{T2} offset:{PART0}")
    a(f"ds_read_b128 v[12:15], v{T2} offset:{PART1}")
    a(f"s_cmp_lt_u32 s{WAVE}, 9")
    a("s_cbranch_scc0 L2_ep1")
    a(f"v_add_u32 v7, {64 * ROW}, v{T2}")
    a(f"ds_read_b128 v[16:19], v7 offset:{PART0}")
    a(f"ds_read_b128 v[20:23], v7 offset:{PART1}")
    a("s_waitcnt lgkmcnt(0)")
    a(f"v_add_u32 v6, {64 * 128}, v{T3}")
    silu_store(16, 6)
    a.label("L2_ep1")
    a("s_waitcnt lgkmcnt(0)")
    silu_store(8, T3)
    stamp(a, 12)
    if STAMPS:
        a("s_waitcnt vmcnt(0)")
    stamp(a, 13)
    stamp(a, 21, True)
    stamp_flush(a, 1)
    a.label("L2_end")
    a("s_endpgm")
    return LDS, 128


def descriptor(a, name, vgprs, sgprs=80):
    a(f".amdhsa_kernel {name}")
    a(f"  .amdhsa_next_free_vgpr {vgprs}")
    a(f"  .amdhsa_next_free_sgpr {sgprs}")
    a(f"  .amdhsa_accum_offset {vgprs}")
    a("  .amdhsa_group_segment_fixed_size 0")
    a("  .amdhsa_kernarg_size 80")
    a("  .amdhsa_user_sgpr_count 2")
    a("  .amdhsa_user_sgpr_kernarg_segment_ptr 1")
    a("  .amdhsa_system_sgpr_workgroup_id_x 1")
    a("  .amdhsa_float_denorm_mode_32 3")
    a(".end_amdhsa_kernel")


def main():
    global STAMPS, ST, STT, STR_
    if "--stamps" in sys.argv:
        STAMPS = True
        sys.argv.remove("--stamps")
    for o in OPT:
        if o.startswith("st="):
            ST = STT = STR_ = " " + o[3:].replace("+", " ")
        if o.startswith("stt="):
            STT = " " + o[4:].replace("+", " ")
        if o.startswith("str="):
            STR_ = " " + o[4:].replace("+", " ")
    body = Asm()
    body(".amdgcn_target \"amdgcn-amd-amdhsa--gfx950\"")
    body(".text")
    lds1, v1 = gen_k1(body)
    lds2, v2 = gen_k2(body)
    body(".section .rodata,\"a\"")
    body(".p2align 6")
    descriptor(body, K1, 128 if STAMPS else v1)
    body(".p2align 6")
    descriptor(body, K2, v2)
    head = [
        "; Edge-gated MPNN layer in two launches (generated by a hand-written generator script).",
        "; launch 1: partitions the edges by destination bucket and builds the per-node source table",
        "; launch 2: per bucket of 100 nodes: sorts its edges, gated aggregation, SiLU epilogue",
        f"; @launch kernel={K1} grid=({NC},1,1) block=(1024,1,1) lds={lds1}",
        f"; @launch kernel={K2} grid=({NB},1,1) block=(1024,1,1) lds={lds2}",
    ]
    out = "\n".join(head) + "\n" + body.text()
    path = sys.argv[1] if len(sys.argv) > 1 else "standalone__edge_featured_mpnn_egc__graph.s"
    open(path, "w").write(out)
    print("wrote", path, "lds", lds1, lds2)


if __name__ == "__main__":
    main()
```

```python
import os
import sys

N = 25000
E = 800000
NB = 250
NPB = 100
NC = 250
EPC = 3200
HALF = 12500

T_OFF = 0
REC_OFF = 0x700000
SEG_OFF = 0xE00000

LOG2E_NEG = 0xBFB8AA3B
SHIFT_NEG = 0xC2700000
TINY = 0x21800000
ROW = 272
XROW = 144

K1 = "egc_part_kernel"
K2 = "standalone__edge_featured_mpnn_egc__graph_kernel"

OPT = set(os.environ.get("OPT", "").split(","))
STAMPS = False
STAMP_OFF = 0x1000000
SV = 127

X, EA, SRC, DST, UW, VW, GW, OUT, WS = 4, 6, 8, 10, 12, 14, 16, 18, 20
WAVE = 22


def stamp(a, i, real=False):
    if not STAMPS:
        return
    a(f"s_mem{'real' if real else ''}time s[70:71]")
    a("s_waitcnt lgkmcnt(0)")
    a(f"v_writelane_b32 v{SV}, s70, {i}")


def dbg_time(a, which, slot, neg=False, tag=""):
    if "dbgt" not in OPT:
        return
    a("v_readfirstlane_b32 s78, v0")
    a("s_nop 3")
    a("s_cmp_lg_u32 s78, 0")
    a(f"s_cbranch_scc1 L_dbg_{which}_{slot}")
    a("s_memrealtime s[70:71]")
    a("s_load_dwordx2 s[74:75], s[0:1], 64")
    a("s_waitcnt lgkmcnt(0)")
    if neg:
        a("s_not_b32 s70, s70")
    a("v_mov_b32 v125, s70")
    a(f"v_mov_b32 v126, {slot * 4}")
    a("s_mov_b64 s[76:77], exec")
    a("s_mov_b64 exec, 1")
    a("global_atomic_umax v126, v125, s[74:75]")
    a("s_mov_b64 exec, s[76:77]")
    a.label(f"L_dbg_{which}_{slot}")


def stamp_flush(a, which):
    if not STAMPS:
        return
    a("s_lshl_b32 s72, s2, 4")
    a(f"s_add_u32 s72, s72, s{WAVE}")
    a("s_lshl_b32 s72, s72, 8")
    a(f"s_add_u32 s72, s72, {STAMP_OFF + which * 0x200000}")
    a("v_and_b32 v126, 63, v0")
    a("v_lshlrev_b32 v126, 2, v126")
    a("v_add_u32 v126, s72, v126")
    a(f"global_store_dword v126, v{SV}, s[20:21]")


class Asm:
    def __init__(self):
        self.lines = []

    def __call__(self, s=""):
        for ln in s.split("\n"):
            self.lines.append(ln if ln.strip().endswith(":") else "    " + ln.strip())

    def label(self, s):
        self.lines.append(s + ":")

    def text(self):
        return "\n".join(self.lines) + "\n"


def vr(a, n):
    return f"v[{a}:{a + n - 1}]"


def sr(a, n=2):
    return f"s[{a}:{a + n - 1}]"


def wave_scan(a, v):
    for sh in (1, 2, 4, 8):
        a("s_nop 1")
        a(f"v_add_u32_dpp v{v}, v{v}, v{v} row_shr:{sh} row_mask:0xf bank_mask:0xf bound_ctrl:0")
    a("s_nop 1")
    a(f"v_add_u32_dpp v{v}, v{v}, v{v} row_bcast:15 row_mask:0xa bank_mask:0xf")
    a("s_nop 1")
    a(f"v_add_u32_dpp v{v}, v{v}, v{v} row_bcast:31 row_mask:0xc bank_mask:0xf")
    a("s_nop 1")


WSBASE = int(os.environ.get("WSBASE", "0"), 0)


def load_ptrs(a):
    a("s_load_dwordx16 s[4:19], s[0:1], 0")
    a("s_load_dwordx2 s[20:21], s[0:1], 72")


def fix_ws(a):
    if WSBASE:
        a(f"s_add_u32 s20, s20, {WSBASE}")
        a("s_addc_u32 s21, s21, 0")


ST = ""
STT = ""
STR_ = ""


class Node:
    def __init__(self, a, WST, XST, tid, lane, vw, vx, t):
        self.a, self.WST, self.XST = a, WST, XST
        self.tid, self.lane, self.vw, self.vx, self.t = tid, lane, vw, vx, t

    def issue_loads(self, p0, off0, p1):
        a, t = self.a, self.t
        a(f"s_cmp_lt_u32 s{WAVE}, 8")
        a(f"s_cselect_b32 s24, s{p0}, s{p1}")
        a(f"s_cselect_b32 s25, s{p0 + 1}, s{p1 + 1}")
        if off0:
            a(f"s_cselect_b32 s26, {off0}, 0")
            a("s_add_u32 s24, s24, s26")
            a("s_addc_u32 s25, s25, 0")
        a(f"v_and_b32 v{t}, 511, v{self.tid}")
        a(f"v_lshlrev_b32 v{t}, 4, v{t}")
        a(f"global_load_dwordx4 {vr(self.vw, 4)}, v{t}, s[24:25]")
        a(f"v_min_u32 v{t}, {NPB * 8 - 1}, v{self.tid}")
        a(f"v_lshlrev_b32 v{t}, 4, v{t}")
        a(f"s_mul_i32 s26, s2, {NPB * 128}")
        a(f"v_add_u32 v{t}, s26, v{t}")
        a(f"global_load_dwordx4 {vr(self.vx, 4)}, v{t}, {sr(X)}")

    def stage(self):
        a, t, tid = self.a, self.t, self.tid
        a(f"v_bfe_u32 v{t}, v{tid}, 4, 1")
        a(f"v_bfe_u32 v{t + 1}, v{tid}, 6, 1")
        a(f"v_lshl_or_b32 v{t}, v{t + 1}, 1, v{t}")
        a(f"v_lshlrev_b32 v{t}, 5, v{t}")
        a(f"v_lshlrev_b32 v{t + 1}, 4, v{tid}")
        a(f"v_xor_b32 v{t}, v{t}, v{t + 1}")
        a(f"v_add_u32 v{t}, {self.WST}, v{t}")
        a(f"ds_write_b128 v{t}, {vr(self.vw, 4)}")
        a(f"v_lshrrev_b32 v{t}, 3, v{tid}")
        a(f"v_mul_u32_u24 v{t}, {XROW}, v{t}")
        a(f"v_and_b32 v{t + 1}, 7, v{tid}")
        a(f"v_lshl_add_u32 v{t}, v{t + 1}, 4, v{t}")
        a(f"v_add_u32 v{t}, {self.XST}, v{t}")
        a(f"v_cmp_gt_u32 vcc, {NPB * 8}, v{tid}")
        a("s_and_saveexec_b64 s[32:33], vcc")
        a(f"ds_write_b128 v{t}, {vr(self.vx, 4)}")
        a("s_mov_b64 exec, s[32:33]")

    def stage_addr(self, vw_a, vx_a, t):
        a, tid = self.a, self.tid
        a(f"v_bfe_u32 v{vw_a}, v{tid}, 4, 1")
        a(f"v_bfe_u32 v{t}, v{tid}, 6, 1")
        a(f"v_lshl_or_b32 v{vw_a}, v{t}, 1, v{vw_a}")
        a(f"v_lshlrev_b32 v{vw_a}, 5, v{vw_a}")
        a(f"v_lshlrev_b32 v{t}, 4, v{tid}")
        a(f"v_xor_b32 v{vw_a}, v{vw_a}, v{t}")
        a(f"v_add_u32 v{vw_a}, {self.WST}, v{vw_a}")
        a(f"v_lshrrev_b32 v{vx_a}, 3, v{tid}")
        a(f"v_mul_u32_u24 v{vx_a}, {XROW}, v{vx_a}")
        a(f"v_and_b32 v{t}, 7, v{tid}")
        a(f"v_lshl_add_u32 v{vx_a}, v{t}, 4, v{vx_a}")
        a(f"v_add_u32 v{vx_a}, {self.XST}, v{vx_a}")

    def stage_write(self, vw_a, vx_a):
        a, tid = self.a, self.tid
        a(f"ds_write_b128 v{vw_a}, {vr(self.vw, 4)}")
        a(f"v_cmp_gt_u32 vcc, {NPB * 8}, v{tid}")
        a("s_and_saveexec_b64 s[32:33], vcc")
        a(f"ds_write_b128 v{vx_a}, {vr(self.vx, 4)}")
        a("s_mov_b64 exec, s[32:33]")

    def pair_reads(self, aop, xop, vloc):
        a, t, lane = self.a, self.t, self.lane
        a(f"s_and_b32 s27, s{WAVE}, 1")
        a("s_lshl_b32 s27, s27, 1")
        a(f"s_lshr_b32 s26, s{WAVE}, 1")
        a(f"v_and_b32 v{t}, 15, v{lane}")
        a(f"v_lshrrev_b32 v{t + 1}, 4, v{lane}")
        a("s_lshl_b32 s26, s26, 4")
        a(f"v_add_u32 v{vloc}, s26, v{t}")
        a(f"v_mul_u32_u24 v{t + 2}, {XROW}, v{vloc}")
        a(f"v_lshl_add_u32 v{t + 2}, v{t + 1}, 4, v{t + 2}")
        a(f"v_add_u32 v{t + 2}, {self.XST}, v{t + 2}")
        a(f"ds_read_b128 {vr(xop, 4)}, v{t + 2}")
        a(f"ds_read_b128 {vr(xop + 4, 4)}, v{t + 2} offset:64")
        a(f"v_lshrrev_b32 v{t + 2}, 3, v{t}")
        a(f"v_and_b32 v{xop + 8}, 1, v{t + 1}")
        a(f"v_lshl_or_b32 v{t + 2}, v{xop + 8}, 1, v{t + 2}")
        a(f"v_xor_b32 v{t + 2}, s27, v{t + 2}")
        a(f"v_lshlrev_b32 v{t + 2}, 5, v{t + 2}")
        a(f"v_lshrrev_b32 v{xop + 8}, 2, v{t}")
        a(f"v_lshl_add_u32 v{xop + 8}, v{t + 1}, 3, v{xop + 8}")
        a(f"v_lshl_add_u32 v{t + 2}, v{xop + 8}, 7, v{t + 2}")
        a(f"v_and_b32 v{xop + 8}, 3, v{t}")
        a(f"v_lshl_add_u32 v{t + 2}, v{xop + 8}, 3, v{t + 2}")
        a(f"v_add_u32 v{t + 2}, {self.WST}, v{t + 2}")
        assert self.WST % 128 == 0
        for c in range(2):
            if c:
                a(f"v_xor_b32 v{t + 2}, 32, v{t + 2}")
            for m in range(2):
                for ks in range(2):
                    for hh in range(2):
                        r = aop + c * 16 + (m * 2 + ks) * 4 + hh * 2
                        a(f"ds_read_b64_tr_b16 {vr(r, 2)}, v{t + 2} offset:{m * 8192 + ks * 4096 + hh * 512}")

    def pair_mfma(self, aop, xop, dd):
        a = self.a
        for ks in range(2):
            for c in range(2):
                for m in range(2):
                    d = dd + (c * 2 + m) * 4
                    cop = "0" if ks == 0 else vr(d, 4)
                    a(f"v_mfma_f32_16x16x32_bf16 {vr(d, 4)}, {vr(aop + c * 16 + (m * 2 + ks) * 4, 4)}, {vr(xop + 4 * ks, 4)}, {cop}")


def copy_out(a, lds_addr_fn, goff_sgpr, t0, t1, d0, d1, tag):
    ST = STT if tag == "t" else STR_
    lds_addr_fn(0, t1)
    a(f"ds_read_b128 {vr(d0, 4)}, v{t1}")
    a(f"v_lshlrev_b32 v{t0}, 4, v0")
    a(f"v_add_u32 v{t0}, s{goff_sgpr}, v{t0}")
    a(f"s_cmp_gt_u32 s{WAVE}, 8")
    a(f"s_cbranch_scc1 L1_one{tag}")
    a(f"v_add_u32 v{t1}, 1024, v0")
    lds_addr_fn(t1, t1)
    a(f"ds_read_b128 {vr(d1, 4)}, v{t1}")
    a(f"v_add_u32 v{t1}, 16384, v{t0}")
    a("s_waitcnt lgkmcnt(0)")
    a(f"global_store_dwordx4 v{t1}, {vr(d1, 4)}, {sr(WS)}{ST}")
    a.label(f"L1_one{tag}")
    a("s_waitcnt lgkmcnt(0)")
    a(f"global_store_dwordx4 v{t0}, {vr(d0, 4)}, {sr(WS)}{ST}")


def gen_k1(a):
    HIST, BASE = 0, 1024
    WST = 2048
    XST = WST + 16384
    TST = XST + 112 * XROW
    STG = TST + NPB * ROW
    LDS = STG + EPC * 8
    TID, LANE = 0, 1
    T0, T1, T2, T3 = 2, 3, 14, 15
    VD, VS, VE = 4, 8, 12
    VW_, VX_ = 16, 20
    XOP = 24
    AOP = 36
    DD = 68
    PK = 84
    VLOC = 87
    VB, VR, VH = 88, 92, 96
    NT = 100
    nd = Node(a, WST, XST, TID, LANE, VW_, VX_, NT)

    a(f".globl {K1}")
    a(".p2align 8")
    a(f".type {K1},@function")
    a.label(K1)
    a(f"s_cmp_ge_u32 s2, {NC}")
    a("s_cbranch_scc1 L1_end")
    dbg_time(a, 0, 0, True)
    stamp(a, 0)
    stamp(a, 20, True)
    load_ptrs(a)
    a(f"v_and_b32 v{LANE}, 63, v{TID}")
    a(f"v_lshrrev_b32 v{T0}, 6, v{TID}")
    a(f"v_lshlrev_b32 v{T1}, 2, v{TID}")
    a(f"v_readfirstlane_b32 s{WAVE}, v{T0}")
    a(f"v_mov_b32 v{T0}, 0")
    a(f"s_cmp_lt_u32 s{WAVE}, 4")
    a("s_cbranch_scc0 L1_nozero")
    a(f"ds_write_b32 v{T1}, v{T0} offset:{HIST}")
    a.label("L1_nozero")
    a("s_waitcnt lgkmcnt(0)")
    fix_ws(a)
    stamp(a, 1)
    nd.issue_loads(GW, 8192, VW)
    a("s_barrier")
    a(f"s_cmp_gt_u32 s{WAVE}, 12")
    a("s_cbranch_scc1 L1_noedge0")
    a(f"s_mul_i32 s24, s2, {EPC * 4}")
    a(f"v_lshlrev_b32 v{T0}, 4, v{TID}")
    a(f"v_add_u32 v{T0}, s24, v{T0}")
    a(f"v_lshrrev_b32 v{T1}, 1, v{T0}")
    a(f"v_cmp_gt_u32 vcc, {EPC // 4}, v{TID}")
    a("s_and_saveexec_b64 s[32:33], vcc")
    a(f"global_load_dwordx4 {vr(VD, 4)}, v{T0}, {sr(DST)}")
    a(f"global_load_dwordx4 {vr(VS, 4)}, v{T0}, {sr(SRC)}")
    a(f"global_load_dwordx2 {vr(VE, 2)}, v{T1}, {sr(EA)}")
    a("s_mov_b64 exec, s[32:33]")
    a("s_waitcnt vmcnt(3)")
    a("s_branch L1_wx")
    a.label("L1_noedge0")
    a("s_waitcnt vmcnt(0)")
    a.label("L1_wx")
    stamp(a, 2)
    nd.stage()
    a("s_waitcnt lgkmcnt(0)")
    a("s_barrier")
    stamp(a, 3)
    a(f"s_cmp_gt_u32 s{WAVE}, 13")
    a("s_cbranch_scc1 L1_notask")
    nd.pair_reads(AOP, XOP, VLOC)
    a(f"v_mul_u32_u24 v{T0}, {ROW}, v{VLOC}")
    a(f"v_lshrrev_b32 v{T1}, 4, v{LANE}")
    a(f"v_lshl_add_u32 v{T0}, v{T1}, 4, v{T0}")
    a("s_lshl_b32 s30, s27, 6")
    a(f"s_add_u32 s30, s30, {TST}")
    a(f"v_add_u32 v{T0}, s30, v{T0}")
    a(f"s_mov_b32 s24, {LOG2E_NEG:#x}")
    a("s_mov_b32 s25, 0x7fff0000")
    a("s_mov_b32 s30, 0x7fffffff")
    a(f"v_cmp_gt_u32 vcc, {NPB}, v{VLOC}")
    a("s_waitcnt lgkmcnt(0)")
    nd.pair_mfma(AOP, XOP, DD)
    a("s_nop 5")
    for c in range(2):
        DQ, DH = DD + c * 8, DD + c * 8 + 4
        if c == 1:
            pass
        for i in range(4):
            a(f"v_mul_f32 v{DQ + i}, s24, v{DQ + i}")
        a(f"v_cvt_pk_bf16_f32 v{PK}, v{DQ}, v{DQ + 1}")
        a(f"v_cvt_pk_bf16_f32 v{PK + 1}, v{DQ + 2}, v{DQ + 3}")
        for i in range(4):
            q = DQ + i
            if i % 2 == 0:
                a(f"v_and_b32 v{q}, 0xffff, v{PK + i // 2}")
            else:
                a(f"v_lshrrev_b32 v{q}, 16, v{PK + i // 2}")
        for i in range(4):
            q, h = DQ + i, DH + i
            a(f"v_and_b32 v{PK + 2}, s30, v{h}")
            a(f"v_sub_u32 v{PK + 2}, v{PK + 2}, v{q}")
            a(f"v_add_u32 v{PK + 2}, 0x8000, v{PK + 2}")
            a(f"v_max_i32 v{PK + 2}, 0, v{PK + 2}")
            a(f"v_and_b32 v{h}, 0x80000000, v{h}")
            a(f"v_or_b32 v{h}, v{h}, v{q}")
            a(f"v_and_or_b32 v{h}, v{PK + 2}, s25, v{h}")
        a("s_and_saveexec_b64 s[32:33], vcc")
        a(f"ds_write_b128 v{T0}, {vr(DH, 4)} offset:{c * 64}")
        a("s_mov_b64 exec, s[32:33]")
    a.label("L1_notask")
    a("s_waitcnt lgkmcnt(0)")
    stamp(a, 4)
    a("s_barrier")

    a(f"s_sub_u32 s24, s{WAVE}, 13")
    a("s_cmp_lt_u32 s24, 2")
    a("s_cbranch_scc0 L1_not")
    a(f"v_lshrrev_b32 v{T0}, 4, v{LANE}")
    a(f"v_mul_u32_u24 v{T0}, {ROW}, v{T0}")
    a(f"v_and_b32 v{T1}, 15, v{LANE}")
    a(f"v_lshl_add_u32 v{T0}, v{T1}, 4, v{T0}")
    a(f"s_mul_i32 s25, s24, {13 * 4 * ROW}")
    a(f"s_add_u32 s25, s25, {TST}")
    a(f"v_add_u32 v{T0}, s25, v{T0}")
    a(f"s_mul_i32 s26, s2, {NPB * 256}")
    a(f"s_mul_i32 s25, s24, {13 * 1024}")
    a("s_add_u32 s26, s26, s25")
    a(f"v_lshlrev_b32 v{T1}, 4, v{LANE}")
    a(f"v_add_u32 v{T1}, s26, v{T1}")
    for n in range(12):
        a(f"ds_read_b128 {vr(16 + 4 * n, 4)}, v{T0} offset:{n * 4 * ROW}")
    a("s_cmp_eq_u32 s24, 0")
    a("s_cbranch_scc0 L1_t12")
    a(f"ds_read_b128 {vr(64, 4)}, v{T0} offset:{12 * 4 * ROW}")
    a(f"v_add_u32 v{T2}, {12 * 1024}, v{T1}")
    a("s_waitcnt lgkmcnt(0)")
    a(f"global_store_dwordx4 v{T2}, {vr(64, 4)}, {sr(WS)}{STT}")
    a.label("L1_t12")
    for n in range(12):
        a(f"s_waitcnt lgkmcnt({max(0, 11 - n)})")
        a(f"global_store_dwordx4 v{T1}, {vr(16 + 4 * n, 4)}, {sr(WS)} offset:{(n % 4) * 1024}{STT}")
        if n % 4 == 3:
            a(f"v_add_u32 v{T1}, 4096, v{T1}")
    stamp(a, 5)
    if STAMPS:
        a("s_waitcnt vmcnt(0)")
    stamp(a, 11)
    stamp(a, 21, True)
    stamp_flush(a, 0)
    a("s_endpgm")
    a.label("L1_not")
    stamp(a, 5)
    a(f"s_cmp_gt_u32 s{WAVE}, 12")
    a("s_cbranch_scc1 L1_noedge1")
    a(f"v_cmp_gt_u32 vcc, {EPC // 4}, v{TID}")
    a("s_and_saveexec_b64 s[32:33], vcc")
    a(f"v_mov_b32 v{T1}, 1")
    a("s_movk_i32 s24, -100")
    a("s_mov_b32 s25, 0xffff0000")
    a("s_movk_i32 s30, 128")
    a("s_waitcnt vmcnt(0)")
    for i in range(4):
        a(f"v_mul_u32_u24 v{T0}, 5243, v{VD + i}")
        a(f"v_lshrrev_b32 v{T0}, 19, v{T0}")
        a(f"v_lshlrev_b32 v{VB + i}, 2, v{T0}")
        a(f"ds_add_rtn_u32 v{VR + i}, v{VB + i}, v{T1} offset:{HIST}")
        a(f"v_mad_i32_i24 v{T2}, v{T0}, s24, v{VD + i}")
        a(f"v_lshrrev_b32 v{T3}, 5, v{VS + i}")
        a(f"v_and_or_b32 v{VH + i}, v{T3}, s30, v{T2}")
        if i % 2 == 0:
            a(f"v_lshl_or_b32 v{VS + i}, v{VE + i // 2}, 16, v{VS + i}")
        else:
            a(f"v_and_or_b32 v{VS + i}, v{VE + i // 2}, s25, v{VS + i}")
    a("s_mov_b64 exec, s[32:33]")
    a.label("L1_noedge1")
    a("s_waitcnt lgkmcnt(0)")
    stamp(a, 6)
    a("s_barrier")
    stamp(a, 7)
    a(f"s_cmp_eq_u32 s{WAVE}, 15")
    a("s_cbranch_scc0 L1_b2")
    C0 = 24
    a(f"v_lshlrev_b32 v{T0}, 4, v{LANE}")
    a(f"ds_read_b128 {vr(C0, 4)}, v{T0} offset:{HIST}")
    a("s_waitcnt lgkmcnt(0)")
    P = 28
    a(f"v_add_u32 v{P + 2}, v{C0}, v{C0 + 1}")
    a(f"v_add_u32 v{P + 3}, v{P + 2}, v{C0 + 2}")
    a(f"v_add_u32 v32, v{P + 3}, v{C0 + 3}")
    a("v_mov_b32 v33, v32")
    wave_scan(a, 33)
    a(f"v_sub_u32 v{P}, v33, v32")
    a(f"v_add_u32 v{P + 1}, v{P}, v{C0}")
    a(f"v_add_u32 v{P + 2}, v{P}, v{P + 2}")
    a(f"v_add_u32 v{P + 3}, v{P}, v{P + 3}")
    a(f"ds_write_b128 v{T0}, {vr(P, 4)} offset:{BASE}")
    a("s_lshl_b32 s24, s2, 10")
    a(f"s_add_u32 s24, s24, {SEG_OFF}")
    a(f"v_add_u32 v{T1}, s24, v{T0}")
    for i in range(4):
        a(f"v_lshl_or_b32 v{36 + i}, v{C0 + i}, 16, v{P + i}")
    a(f"global_store_dwordx4 v{T1}, v[36:39], {sr(WS)}{ST}")
    a("s_cmp_lg_u32 s2, 0")
    a("s_cbranch_scc1 L1_b2")
    a(f"v_mov_b32 v{T2}, 0")
    a(f"v_lshlrev_b32 v{T3}, 2, v{LANE}")
    a(f"v_add_u32 v{T3}, {N * 256}, v{T3}")
    a(f"global_store_dword v{T3}, v{T2}, {sr(WS)}{ST}")
    a.label("L1_b2")
    a("s_waitcnt lgkmcnt(0)")
    stamp(a, 8)
    a("s_barrier")
    a(f"s_cmp_gt_u32 s{WAVE}, 12")
    a("s_cbranch_scc1 L1_noedge2")
    a(f"v_cmp_gt_u32 vcc, {EPC // 4}, v{TID}")
    a("s_and_saveexec_b64 s[32:33], vcc")
    for i in range(4):
        a(f"ds_read_b32 v{VD + i}, v{VB + i} offset:{BASE}")
    a(f"s_mov_b32 s24, {STG}")
    for i in range(4):
        a("s_waitcnt lgkmcnt(3)")
        a(f"v_add_u32 v{VD + i}, v{VD + i}, v{VR + i}")
        a(f"v_lshl_add_u32 v{VD + i}, v{VD + i}, 3, s24")
        a(f"ds_write2_b32 v{VD + i}, v{VS + i}, v{VH + i} offset0:0 offset1:1")
    a("s_mov_b64 exec, s[32:33]")
    a.label("L1_noedge2")
    a("s_waitcnt lgkmcnt(0)")
    stamp(a, 9)
    a("s_barrier")

    a(f"s_min_u32 s25, s{WAVE}, 13")
    a("s_lshl_b32 s25, s25, 10")
    a(f"v_lshlrev_b32 v{T0}, 4, v{LANE}")
    a(f"v_add_u32 v{T0}, s25, v{T0}")
    a(f"v_add_u32 v{T1}, {STG}, v{T0}")
    a(f"ds_read_b128 v[24:27], v{T1}")
    a(f"s_mul_i32 s24, s2, {EPC * 8}")
    a(f"s_add_u32 s24, s24, {REC_OFF}")
    a(f"v_add_u32 v{T0}, s24, v{T0}")
    a(f"s_cmp_gt_u32 s{WAVE}, 10")
    a("s_cbranch_scc1 L1_oner")
    a(f"ds_read_b128 v[28:31], v{T1} offset:{14 * 1024}")
    a(f"v_add_u32 v{T1}, {14 * 1024}, v{T0}")
    a("s_waitcnt lgkmcnt(0)")
    a(f"global_store_dwordx4 v{T1}, v[28:31], {sr(WS)}{STR_}")
    a.label("L1_oner")
    a("s_waitcnt lgkmcnt(0)")
    a(f"global_store_dwordx4 v{T0}, v[24:27], {sr(WS)}{STR_}")
    for o in OPT:
        if o.startswith("delay="):
            n = int(o[6:])
            a(f"s_movk_i32 s24, {n}")
            a.label("L1_dly")
            a("s_sleep 16")
            a("s_sub_u32 s24, s24, 1")
            a("s_cmp_lg_u32 s24, 0")
            a("s_cbranch_scc1 L1_dly")
    if "dbgt" in OPT:
        a("s_waitcnt vmcnt(0)")
    dbg_time(a, 0, 1)
    stamp(a, 10)
    if STAMPS:
        a("s_waitcnt vmcnt(0)")
    stamp(a, 11)
    stamp(a, 21, True)
    stamp_flush(a, 0)
    a.label("L1_end")
    a("s_endpgm")
    return LDS, 104


def gen_k2(a):
    HIST = 0
    HIST2 = HIST + 1024
    BASE2 = HIST2 + 1024
    WCNT = BASE2 + 1024
    WKEY = WCNT + 1024
    MISC = WKEY + 1024
    SCR = MISC + 256
    ZERO = SCR + 256
    PL = ZERO + 256
    PART0 = PL + NPB * ROW
    PART1 = PART0 + NPB * ROW
    WST = (PART1 + NPB * ROW + 127) // 128 * 128
    XST = WST + 16384
    LIST = XST + NPB * XROW
    CAPK = 48
    COL = CAPK * 4
    LISTB = 228 * COL
    LDS = LIST + LISTB + 64
    assert PART1 < 65536 and PART0 + 64 * ROW < 65536 and LDS <= 163840, LDS
    NWIN = 50
    DUMMY_COL = 100 * COL

    TID, LANE = 0, 1
    T0, T1, T2, T3 = 2, 3, 4, 5
    RB = 6
    REM = 7
    RECS = 8
    RANK = 24
    VW_, VX_ = 32, 36
    XOP = 40
    AOP = 52
    DD = 84
    VLOC = 49
    NT = 100
    VLB = 103
    ASEL = 112
    VJ, VG4, VQ, VONE = 116, 117, 118, 119
    CV = 120
    VZ = 124
    MASK = 40
    nd = Node(a, WST, XST, TID, LANE, VW_, VX_, NT)

    a(f".globl {K2}")
    a(".p2align 8")
    a(f".type {K2},@function")
    a.label(K2)
    a(f"s_cmp_ge_u32 s2, {NB}")
    a("s_cbranch_scc1 L2_end")
    dbg_time(a, 1, 2, True)
    for o in OPT:
        if o.startswith("nops="):
            for _ in range(int(o[5:])):
                a("s_nop 0")
        if o.startswith("nopl="):
            a(f"s_movk_i32 s24, {int(o[5:]) // 16}")
            a.label("L2_nopl")
            for _ in range(13):
                a("s_nop 0")
            a("s_sub_u32 s24, s24, 1")
            a("s_cmp_lg_u32 s24, 0")
            a("s_cbranch_scc1 L2_nopl")
    stamp(a, 0)
    stamp(a, 20, True)
    load_ptrs(a)
    a(f"v_and_b32 v{LANE}, 63, v{TID}")
    a(f"v_lshrrev_b32 v{T0}, 6, v{TID}")
    a(f"v_lshlrev_b32 v{T1}, 2, v{TID}")
    a(f"v_readfirstlane_b32 s{WAVE}, v{T0}")
    a(f"v_lshrrev_b32 v{RB}, 2, v{TID}")
    a(f"v_lshlrev_b32 v{RB}, 10, v{RB}")
    a("s_lshl_b32 s24, s2, 2")
    a(f"s_add_u32 s24, s24, {SEG_OFF}")
    a(f"v_add_u32 v{RB}, s24, v{RB}")
    a("s_waitcnt lgkmcnt(0)")
    fix_ws(a)
    stamp(a, 1)
    a(f"global_load_dword v{REM}, v{RB}, {sr(WS)}")
    a(f"v_mov_b32 v{T0}, 0")
    a(f"s_cmp_lt_u32 s{WAVE}, 4")
    a("s_cbranch_scc0 L2_nozero")
    a(f"ds_write_b32 v{T1}, v{T0} offset:{HIST}")
    a(f"ds_write_b32 v{T1}, v{T0} offset:{HIST2}")
    a.label("L2_nozero")
    a(f"s_cmp_eq_u32 s{WAVE}, 4")
    a("s_cbranch_scc0 L2_nozero2")
    a(f"v_lshlrev_b32 v{T2}, 2, v{LANE}")
    a(f"v_cmp_eq_u32 vcc, 2, v{LANE}")
    a("s_nop 1")
    a(f"v_cndmask_b32 v{T3}, 0, 16, vcc")
    a(f"ds_write_b32 v{T2}, v{T3} offset:{MISC}")
    a(f"ds_write_b32 v{T2}, v{T0} offset:{ZERO}")
    a.label("L2_nozero2")
    a(f"v_lshrrev_b32 v{RB}, 2, v{TID}")
    a(f"v_mul_u32_u24 v{RB}, {EPC}, v{RB}")
    a(f"v_and_b32 v{T3}, 3, v{TID}")
    a(f"v_lshlrev_b32 v{T3}, 1, v{T3}")
    a(f"v_add_u32 v{RB}, v{RB}, v{T3}")
    a(f"v_lshlrev_b32 v{RB}, 3, v{RB}")
    a(f"v_add_u32 v{RB}, {REC_OFF}, v{RB}")
    a(f"v_cmp_gt_u32 vcc, {NC * 4}, v{TID}")
    a("s_waitcnt vmcnt(0)")
    stamp(a, 2)
    a(f"v_cndmask_b32 v{REM}, 0, v{REM}, vcc")
    a(f"v_and_b32 v{T2}, 0xffff, v{REM}")
    a(f"v_lshrrev_b32 v{REM}, 16, v{REM}")
    a(f"v_lshl_add_u32 v{RB}, v{T2}, 3, v{RB}")
    a(f"v_cmp_lt_u32 s[56:57], 32, v{REM}")
    a(f"v_sub_u32 v{REM}, v{REM}, v{T3}")
    for r in range(4):
        a(f"v_cmp_gt_i32 {sr(MASK + 4 * r)}, v{REM}, {8 * r}")
    a("s_nop 1")
    for r in range(4):
        m = MASK + 4 * r
        a(f"s_mov_b64 exec, {sr(m)}")
        a("s_cbranch_execz L2_recs_done")
        a(f"global_load_dwordx4 {vr(RECS + 4 * r, 4)}, v{RB}, {sr(WS)} offset:{64 * r}")
    a.label("L2_recs_done")
    a("s_mov_b64 exec, -1")
    for r in range(4):
        a(f"v_cmp_gt_i32 {sr(MASK + 4 * r + 2)}, v{REM}, {8 * r + 1}")
    nd.issue_loads(GW, 0, UW)
    a(f"v_and_b32 v{T0}, 15, v{LANE}")
    a(f"v_lshlrev_b32 v{VJ}, 4, v{T0}")
    a(f"v_lshrrev_b32 v{T2}, 1, v{VJ}")
    a(f"v_add_u32 v{T2}, {128 * 128}, v{T2}")
    a(f"global_load_dwordx2 {vr(CV + 2, 2)}, v{T2}, {sr(GW)}")
    for i in range(4):
        a(f"v_mov_b32 v{XOP + i}, {N}")
    a(f"v_lshlrev_b32 v{T2}, 4, v{TID}")
    a(f"v_add_u32 v{T2}, {LIST}, v{T2}")
    a(f"ds_write_b128 v{T2}, {vr(XOP, 4)}")
    a(f"ds_write_b128 v{T2}, {vr(XOP, 4)} offset:16384")
    nlast = LISTB // 16 - 2048
    a(f"v_cmp_gt_u32 vcc, {nlast}, v{TID}")
    a("s_and_saveexec_b64 s[32:33], vcc")
    a(f"ds_write_b128 v{T2}, {vr(XOP, 4)} offset:32768")
    a("s_mov_b64 exec, s[32:33]")
    a(f"v_lshrrev_b32 v{T1}, 4, v{LANE}")
    a(f"v_lshlrev_b32 v{VG4}, 2, v{T1}")
    a(f"v_add_u32 v{VZ}, {ZERO}, v{VJ}")
    a(f"v_mov_b32 v{VONE}, 1")
    a(f"v_mov_b32 v{VLB}, {LIST}")
    a(f"v_lshlrev_b32 v{VQ}, 2, v{LANE}")
    a(f"v_add_u32 v{VQ}, {SCR}, v{VQ}")
    a(f"v_cmp_eq_u32 vcc, 0, v{LANE}")
    a(f"v_mov_b32 v{T3}, {MISC + 8}")
    a(f"v_lshrrev_b32 v{T2}, 2, v{T0}")
    a(f"v_cndmask_b32 v{VQ}, v{VQ}, v{T3}, vcc")
    a(f"v_cmp_eq_u32 vcc, v{T2}, v{T1}")
    a(f"v_mov_b32 v{T3}, 0x3f80")
    a(f"v_and_b32 v{T2}, 3, v{T0}")
    a(f"v_cndmask_b32 v{T3}, 0, v{T3}, vcc")
    for q in range(4):
        a(f"v_cmp_eq_u32 vcc, {q}, v{T2}")
        a("s_nop 1")
        a(f"v_cndmask_b32 v{ASEL + q}, 0, v{T3}, vcc")
    nd.stage_addr(NT, NT + 1, NT + 2)
    a("s_waitcnt lgkmcnt(0)")
    a("s_barrier")
    a("s_cmp_eq_u64 s[56:57], 0")
    a("s_cbranch_scc1 L2_noflag")
    a(f"v_mov_b32 v{T2}, 0")
    a(f"ds_write_b32 v{T2}, v{VONE} offset:{MISC}")
    a.label("L2_noflag")
    a(f"s_movk_i32 s59, {COL}")
    a("s_waitcnt vmcnt(3)")
    stamp(a, 3)
    for r in range(4):
        if r >= 2:
            a(f"s_cmp_eq_u64 {sr(MASK + 4 * r)}, 0")
            a(f"s_cbranch_scc1 L2_h{r}")
        for s_ in range(2):
            k = 2 * r + s_
            hi = RECS + 4 * r + 2 * s_ + 1
            a(f"s_mov_b64 exec, {sr(MASK + 2 * k)}")
            a(f"v_lshlrev_b32 v{T1}, 2, v{hi}")
            a(f"ds_add_rtn_u32 v{RANK + k}, v{T1}, v{VONE} offset:{HIST}")
            a(f"v_mad_u32_u24 v{hi}, v{hi}, s59, v{VLB}")
        if r >= 2:
            a.label(f"L2_h{r}")
    a("s_mov_b64 exec, -1")
    a("s_waitcnt lgkmcnt(0)")
    for r in range(4):
        if r >= 2:
            a(f"s_cmp_eq_u64 {sr(MASK + 4 * r)}, 0")
            a(f"s_cbranch_scc1 L2_s{r}")
        for s_ in range(2):
            k = 2 * r + s_
            lo = RECS + 4 * r + 2 * s_
            hi = lo + 1
            a(f"s_mov_b64 exec, {sr(MASK + 2 * k)}")
            a(f"v_min_u32 v{RANK + k}, 63, v{RANK + k}")
            a(f"v_lshl_add_u32 v{hi}, v{RANK + k}, 2, v{hi}")
            a(f"ds_write_b32 v{hi}, v{lo}")
        if r >= 2:
            a.label(f"L2_s{r}")
    a("s_mov_b64 exec, -1")
    stamp(a, 4)
    a("s_waitcnt vmcnt(0)")
    stamp(a, 5)
    nd.stage_write(NT, NT + 1)
    a(f"s_mov_b32 s24, {LOG2E_NEG:#x}")
    a(f"v_lshlrev_b32 v{CV}, 16, v{CV + 2}")
    a(f"v_and_b32 v{CV + 1}, 0xffff0000, v{CV + 2}")
    a(f"v_lshlrev_b32 v{CV + 2}, 16, v{CV + 3}")
    a(f"v_and_b32 v{CV + 3}, 0xffff0000, v{CV + 3}")
    for i in range(4):
        a(f"v_mul_f32 v{CV + i}, s24, v{CV + i}")
    a("s_waitcnt lgkmcnt(0)")
    stamp(a, 6)
    a("s_barrier")
    a(f"s_cmp_eq_u32 s{WAVE}, 15")
    a("s_cbranch_scc1 L2_order")
    a(f"s_cmp_gt_u32 s{WAVE}, 3")
    a("s_cbranch_scc1 L2_b2")

    a("s_setprio 2")
    A0 = 8
    B0 = 24
    D0 = 48
    VXA, VPA, VSH = 72, 73, 74
    a(f"v_and_b32 v{T0}, 15, v{LANE}")
    a(f"v_lshrrev_b32 v{T1}, 4, v{LANE}")
    a(f"v_mul_u32_u24 v{VXA}, {XROW}, v{T0}")
    a(f"v_lshl_add_u32 v{VXA}, v{T1}, 4, v{VXA}")
    a(f"v_add_u32 v{VXA}, {XST}, v{VXA}")
    for t in range(2):
        a(f"ds_read_b128 {vr(B0 + 8 * t, 4)}, v{VXA} offset:{t * 16 * XROW}")
        a(f"ds_read_b128 {vr(B0 + 8 * t + 4, 4)}, v{VXA} offset:{t * 16 * XROW + 64}")
    a(f"v_lshrrev_b32 v{T2}, 3, v{T0}")
    a(f"v_and_b32 v{T3}, 1, v{T1}")
    a(f"v_lshl_or_b32 v{T2}, v{T3}, 1, v{T2}")
    a(f"v_xor_b32 v{T2}, s{WAVE}, v{T2}")
    a(f"v_lshlrev_b32 v{T2}, 5, v{T2}")
    a(f"v_lshrrev_b32 v{T3}, 2, v{T0}")
    a(f"v_lshl_add_u32 v{T3}, v{T1}, 3, v{T3}")
    a(f"v_lshl_add_u32 v{T2}, v{T3}, 7, v{T2}")
    a(f"v_and_b32 v{T3}, 3, v{T0}")
    a(f"v_lshl_add_u32 v{T2}, v{T3}, 3, v{T2}")
    a(f"v_add_u32 v{T2}, {WST}, v{T2}")
    for m in range(2):
        for ks in range(2):
            for hh in range(2):
                a(f"ds_read_b64_tr_b16 {vr(A0 + (m * 2 + ks) * 4 + hh * 2, 2)}, v{T2} offset:{m * 8192 + ks * 4096 + hh * 512}")
    a(f"v_mul_u32_u24 v{VPA}, {ROW}, v{T0}")
    a(f"v_lshl_add_u32 v{VPA}, v{T1}, 4, v{VPA}")
    a(f"s_lshl_b32 s30, s{WAVE}, 6")
    a(f"v_add_u32 v{VPA}, s30, v{VPA}")
    a(f"s_mov_b32 s24, {LOG2E_NEG:#x}")
    a(f"v_mov_b32 v{VSH}, {SHIFT_NEG:#x}")
    a(f"v_cmp_gt_u32 s[34:35], 4, v{T0}")

    def pu_out(t):
        d = D0 + 8 * (t % 3)
        for i in range(4):
            a(f"v_fma_f32 v{d + i}, v{d + i}, s24, v{VSH}")
        if t == 6:
            a("s_mov_b64 exec, s[34:35]")
        a(f"ds_write_b128 v{VPA}, {vr(d, 4)} offset:{PL + t * 16 * ROW}")
        a(f"ds_write_b128 v{VPA}, {vr(d + 4, 4)} offset:{PART0 + t * 16 * ROW}")
        if t == 6:
            a("s_mov_b64 exec, -1")

    for t in range(7):
        b = B0 + 8 * (t % 3)
        d = D0 + 8 * (t % 3)
        if t + 2 < 7:
            bn = B0 + 8 * ((t + 2) % 3)
            a(f"ds_read_b128 {vr(bn, 4)}, v{VXA} offset:{(t + 2) * 16 * XROW}")
            a(f"ds_read_b128 {vr(bn + 4, 4)}, v{VXA} offset:{(t + 2) * 16 * XROW + 64}")
        if t == 0:
            a("s_waitcnt lgkmcnt(2)")
        else:
            younger = (2 if t + 1 < 7 else 0) + (2 if t + 2 < 7 else 0) + (2 if t >= 2 else 0)
            a(f"s_waitcnt lgkmcnt({younger})")
        a(f"v_mfma_f32_16x16x32_bf16 {vr(d, 4)}, {vr(A0, 4)}, {vr(b, 4)}, 0")
        a(f"v_mfma_f32_16x16x32_bf16 {vr(d + 4, 4)}, {vr(A0 + 8, 4)}, {vr(b, 4)}, 0")
        a(f"v_mfma_f32_16x16x32_bf16 {vr(d, 4)}, {vr(A0 + 4, 4)}, {vr(b + 4, 4)}, {vr(d, 4)}")
        a(f"v_mfma_f32_16x16x32_bf16 {vr(d + 4, 4)}, {vr(A0 + 12, 4)}, {vr(b + 4, 4)}, {vr(d + 4, 4)}")
        if t >= 1:
            a("s_nop 1")
            pu_out(t - 1)
    a("s_nop 7")
    pu_out(6)
    a("s_setprio 0")
    a("s_branch L2_b2")

    a.label("L2_order")
    a("s_setprio 3")
    CN, BN, RK = 100, 104, 108
    S0 = 84
    a(f"v_lshlrev_b32 v{T0}, 4, v{LANE}")
    a(f"ds_read_b128 {vr(CN, 4)}, v{T0} offset:{HIST}")
    a(f"v_lshrrev_b32 v{T1}, 5, v{LANE}")
    a(f"v_and_b32 v{T2}, 31, v{LANE}")
    a(f"v_cmp_gt_u32 vcc, 25, v{T2}")
    a(f"v_lshlrev_b32 v{T3}, 8, v{T1}")
    a(f"v_add_u32 v{T3}, {63 * 4}, v{T3}")
    a(f"v_mov_b32 v{S0}, {(128 + 63) * 4}")
    a(f"v_cndmask_b32 v{T3}, v{S0}, v{T3}, vcc")
    a(f"v_mul_u32_u24 v{T2}, {4 * ROW}, v{T2}")
    a(f"v_mul_u32_u24 v{T1}, {4 * COL}, v{LANE}")
    a(f"v_lshl_or_b32 v{T1}, v{T1}, 16, v{T2}")
    a("s_waitcnt lgkmcnt(0)")
    a(f"v_max3_u32 v{S0 + 1}, v{CN}, v{CN + 1}, v{CN + 2}")
    a(f"v_max_u32 v{S0 + 1}, v{S0 + 1}, v{CN + 3}")
    for i in range(4):
        a(f"v_min_u32 v{BN + i}, 63, v{CN + i}")
        a(f"v_lshlrev_b32 v{BN + i}, 2, v{BN + i}")
        a(f"v_sub_u32 v{BN + i}, v{T3}, v{BN + i}")
        a(f"ds_add_rtn_u32 v{RK + i}, v{BN + i}, v{VONE} offset:{HIST2}")
    a(f"ds_read_b128 {vr(S0 + 4, 4)}, v{T0} offset:{HIST2}")
    a(f"v_cmp_lt_u32 vcc, {CAPK}, v{S0 + 1}")
    a("s_cbranch_vccz L2_nocap")
    a(f"v_mov_b32 v{S0}, 0")
    a(f"ds_write_b32 v{S0}, v{VONE} offset:{MISC}")
    a.label("L2_nocap")
    a("s_waitcnt lgkmcnt(0)")
    a(f"v_add_u32 v{S0 + 1}, v{S0 + 4}, v{S0 + 5}")
    a(f"v_add_u32 v{S0 + 2}, v{S0 + 1}, v{S0 + 6}")
    a(f"v_add_u32 v{S0 + 3}, v{S0 + 2}, v{S0 + 7}")
    a(f"v_mov_b32 v{S0}, v{S0 + 3}")
    wave_scan(a, S0)
    a(f"v_sub_u32 v{S0}, v{S0}, v{S0 + 3}")
    a(f"v_add_u32 v{S0 + 3}, v{S0}, v{S0 + 2}")
    a(f"v_add_u32 v{S0 + 2}, v{S0}, v{S0 + 1}")
    a(f"v_add_u32 v{S0 + 1}, v{S0}, v{S0 + 4}")
    a(f"ds_write_b128 v{T0}, {vr(S0, 4)} offset:{BASE2}")
    for i in range(4):
        a(f"ds_read_b32 v{S0 + 4 + i}, v{BN + i} offset:{BASE2}")
    a("s_waitcnt lgkmcnt(0)")
    for i in range(4):
        a(f"v_add_u32 v{RK + i}, v{RK + i}, v{S0 + 4 + i}")
        a(f"v_lshlrev_b32 v{RK + i}, 2, v{RK + i}")
        a(f"v_add_u32 v{S0}, {i * ((COL << 16) + ROW)}, v{T1}")
        a(f"ds_write_b32 v{RK + i}, v{CN + i} offset:{WCNT}")
        a(f"ds_write_b32 v{RK + i}, v{S0} offset:{WKEY}")
    a("s_setprio 0")
    a.label("L2_b2")
    a("s_waitcnt lgkmcnt(0)")
    stamp(a, 7)
    a("s_barrier")
    stamp(a, 8)
    NP = 4
    RA = 4
    PR = 8
    ACC = 12
    UR = 16
    DN = 20
    NM = 24
    DA = 28
    VB = 44
    IX = 76
    EV = 92
    VL = 100
    VFL = 101
    VFN = 102
    VRN = 103
    VIN = 104
    VWL = 105
    SC, SNL, SI = 61, 62, 63
    STR = 64
    a(f"s_mov_b32 s36, s{WS}")
    a(f"s_and_b32 s37, s{WS + 1}, 0xffff")
    a("s_or_b32 s37, s37, 0x1000000")
    a(f"s_mov_b32 s38, {N + 1}")
    a("s_mov_b32 s39, 0x20000")
    a(f"v_mov_b32 v{T0}, 0")
    a(f"ds_read_b32 v{T1}, v{T0} offset:{MISC}")
    a(f"v_lshlrev_b32 v{T2}, 4, v{LANE}")
    a(f"ds_read_b32 v{VWL}, v{T2} offset:{WCNT}")
    a(f"s_lshl_b32 s26, s{WAVE}, 4")
    a(f"v_add_u32 v{T2}, s26, v{VG4}")
    a(f"ds_read_b32 v{T3}, v{T2} offset:{WKEY}")
    for k in range(NP):
        a(f"v_mov_b32 v{IX + 4 * k + 1}, v{VJ}")
        a(f"v_mov_b32 v{IX + 4 * k + 3}, v{VJ}")
        a(f"v_mov_b32 v{EV + 2 * k}, 0")
        a(f"v_mov_b32 v{EV + 2 * k + 1}, 0")
    a(f"s_mov_b32 s66, {TINY:#x}")
    a(f"s_mov_b32 s67, {TINY:#x}")
    a(f"s_mov_b32 s68, {PART0}")
    a(f"s_mov_b32 s69, {PART1}")
    a("s_waitcnt lgkmcnt(0)")
    a(f"v_readfirstlane_b32 s24, v{T1}")
    a(f"v_add_u32 v{VWL}, 1, v{VWL}")
    a(f"v_lshrrev_b32 v{VWL}, 1, v{VWL}")
    a(f"v_max_u32 v{VWL}, {RA}, v{VWL}")
    a(f"v_lshrrev_b32 v{VL}, 16, v{T3}")
    a(f"v_add_u32 v{VL}, {LIST}, v{VL}")
    a("s_cmp_lg_u32 s24, 0")
    a("s_cbranch_scc1 L2_slow")
    for k in range(RA):
        a(f"ds_read_u16 v{IX + 4 * k}, v{VL} offset:{8 * k}")
        a(f"ds_read_u16 v{IX + 4 * k + 2}, v{VL} offset:{8 * k + 4}")
    a(f"v_and_b32 v{VRN}, 0xffff, v{T3}")
    a(f"v_add_u32 v{VRN}, v{VRN}, v{VJ}")
    a(f"v_add_u32 v{VFL}, {PART0}, v{VRN}")
    a(f"v_readlane_b32 s{SC}, v{VWL}, s{WAVE}")
    a(f"s_mov_b32 s{STR}, {RA}")
    a(f"s_mov_b32 s{SI}, s{WAVE}")
    if "noprio" not in OPT:
        a("s_setprio 3")
    a("s_waitcnt lgkmcnt(0)")
    for k in range(RA - 1):
        for h in range(2):
            a(f"buffer_load_dwordx4 {vr(VB + 8 * k + 4 * h, 4)}, {vr(IX + 4 * k + 2 * h, 2)}, s[36:39], 0 idxen offen")
    for k in range(RA):
        a(f"ds_read_u16_d16_hi v{EV + 2 * k}, v{VL} offset:{8 * k + 2}")
        a(f"ds_read_u16_d16_hi v{EV + 2 * k + 1}, v{VL} offset:{8 * k + 6}")
    a(f"ds_read_b128 {vr(PR, 4)}, v{VRN} offset:{PL}")
    a(f"ds_read_b128 {vr(UR, 4)}, v{VRN} offset:{PART0}")
    for i in range(4):
        a(f"v_mov_b32 v{ACC + i}, 0")
    a("s_waitcnt lgkmcnt(0)")
    stamp(a, 9)

    def mfma1(k, h):
        d = DA + 8 * (k & 1)
        a(f"v_mfma_f32_16x16x32_bf16 {vr(d + 4 * h, 4)}, {vr(ASEL, 4)}, {vr(VB + 8 * k + 4 * h, 4)}, {vr(PR, 4)}")

    def tail1(k):
        d = DA + 8 * (k & 1)
        vb = VB + 8 * k
        for h in range(2):
            a(f"v_pk_mul_f32 {vr(DN + 2 * h, 2)}, {vr(d + 2 * h, 2)}, {vr(d + 4 + 2 * h, 2)}")
        for h in range(2):
            a(f"v_pk_mul_f32 {vr(NM + 2 * h, 2)}, {vr(vb + 2 * h, 2)}, {vr(d + 4 + 2 * h, 2)}")
        for h in range(2):
            a(f"v_pk_fma_f32 {vr(NM + 2 * h, 2)}, {vr(vb + 4 + 2 * h, 2)}, {vr(d + 2 * h, 2)}, {vr(NM + 2 * h, 2)}")

    def rcp2(h):
        a(f"v_rcp_f32 v{DN + 2 * h}, v{DN + 2 * h}")
        a(f"v_rcp_f32 v{DN + 2 * h + 1}, v{DN + 2 * h + 1}")

    def tail2():
        a(f"v_pk_fma_f32 {vr(ACC, 2)}, {vr(NM, 2)}, {vr(DN, 2)}, {vr(ACC, 2)}")
        a(f"v_pk_fma_f32 {vr(ACC + 2, 2)}, {vr(NM + 2, 2)}, {vr(DN + 2, 2)}, {vr(ACC + 2, 2)}")

    def read_idx(k):
        a(f"ds_read_u16 v{IX + 4 * k}, v{VL} offset:{8 * (RA + k)}")
        a(f"ds_read_u16 v{IX + 4 * k + 2}, v{VL} offset:{8 * (RA + k) + 4}")

    def read_e(k):
        a(f"ds_read_u16_d16_hi v{EV + 2 * k}, v{VL} offset:{8 * (RA + k) + 2}")
        a(f"ds_read_u16_d16_hi v{EV + 2 * k + 1}, v{VL} offset:{8 * (RA + k) + 6}")

    def gather(k):
        p = (k - 1) % NP
        if "nogather" not in OPT:
            for h in range(2):
                a(f"buffer_load_dwordx4 {vr(VB + 8 * p + 4 * h, 4)}, {vr(IX + 4 * p + 2 * h, 2)}, s[36:39], 0 idxen offen")

    def front(k):
        d = DA + 8 * (k & 1)
        ep = EV + 2 * k
        for h in range(2):
            osel = "op_sel:[1,0,0] op_sel_hi:[1,1,1]" if h else "op_sel_hi:[0,1,1]"
            a(f"v_pk_fma_f32 {vr(d + 4 * h, 2)}, {vr(ep, 2)}, {vr(CV, 2)}, {vr(d + 4 * h, 2)} {osel}")
            a(f"v_pk_fma_f32 {vr(d + 4 * h + 2, 2)}, {vr(ep, 2)}, {vr(CV + 2, 2)}, {vr(d + 4 * h + 2, 2)} {osel}")
        read_e(k)
        for i in range(8):
            a(f"v_exp_f32_e64 v{d + i}, v{d + i} clamp")
            if i == 5:
                a(f"v_pk_add_f32 {vr(d, 2)}, {vr(d, 2)}, s[66:67]")
        a(f"v_pk_add_f32 {vr(d + 2, 2)}, {vr(d + 2, 2)}, s[66:67]")
        a(f"v_pk_add_f32 {vr(d + 4, 2)}, {vr(d + 4, 2)}, s[66:67]")
        a(f"v_pk_add_f32 {vr(d + 6, 2)}, {vr(d + 6, 2)}, s[66:67]")

    def flush():
        a(f"v_pk_fma_f32 {vr(UR, 2)}, {vr(ACC, 2)}, s[66:67], {vr(UR, 2)}")
        a(f"v_pk_fma_f32 {vr(UR + 2, 2)}, {vr(ACC + 2, 2)}, s[66:67], {vr(UR + 2, 2)}")
        a(f"ds_write_b128 v{VFL}, {vr(UR, 4)}")

    VW = 2 * (RA - 2)
    a(f"s_cmp_eq_u32 s{SC}, s{STR}")
    a("s_cbranch_scc1 L2_pop_first")
    a.label("L2_first_cont")
    if "nogather" not in OPT:
        a(f"s_waitcnt vmcnt({VW})")
    mfma1(0, 0)
    mfma1(0, 1)
    read_idx(0)
    a("s_nop 2")
    gather(0)
    a("s_branch L2_mid0")

    a.label("L2_loop")
    for k in range(NP):
        pk = (k - 1) % NP
        a(f"s_cmp_eq_u32 s{SC}, s{STR}")
        a(f"s_cbranch_scc1 L2_ev{k}")
        a.label(f"L2_cont{k}")
        tail1(pk)
        if "nogather" not in OPT:
            a(f"s_waitcnt vmcnt({VW})")
        mfma1(k, 0)
        rcp2(0)
        mfma1(k, 1)
        rcp2(1)
        read_idx(k)
        tail2()
        a("s_waitcnt lgkmcnt(4)")
        gather(k)
        a.label(f"L2_mid{k}")
        front(k)
        a(f"s_sub_u32 s{SC}, s{SC}, 1")
        if k == NP - 1:
            a(f"v_add_u32 v{VL}, {8 * NP}, v{VL}")
            a("s_branch L2_loop")

    def pop(k, cont):
        a(f"ds_add_rtn_u32 v{T2}, v{VQ}, v{VONE}")
        a(f"s_mov_b32 s{STR}, 0")
        a("s_waitcnt lgkmcnt(0)")
        a(f"v_readfirstlane_b32 s{SI}, v{T2}")
        a(f"s_mov_b32 s{SNL}, 0")
        a(f"v_mov_b32 v{VL}, {LIST + DUMMY_COL - 8 * (RA + k)}")
        a("s_nop 1")
        a(f"s_cmp_lt_u32 s{SI}, {NWIN}")
        a(f"s_cbranch_scc0 {cont}")
        a(f"s_lshl_b32 s26, s{SI}, 4")
        a(f"v_add_u32 v{T2}, s26, v{VG4}")
        a(f"ds_read_b32 v{T3}, v{T2} offset:{WKEY}")
        a(f"v_readlane_b32 s{SNL}, v{VWL}, s{SI}")
        a(f"s_cmp_lt_u32 s{SI}, {NWIN // 2}")
        a("s_cselect_b32 s26, s68, s69")
        a("s_waitcnt lgkmcnt(0)")
        a(f"v_and_b32 v{VRN}, 0xffff, v{T3}")
        a(f"v_lshrrev_b32 v{VL}, 16, v{T3}")
        a(f"v_add_u32 v{VRN}, v{VRN}, v{VJ}")
        a(f"v_add_u32 v{VL}, {LIST - 8 * (RA + k)}, v{VL}")
        a(f"v_add_u32 v{VFN}, s26, v{VRN}")
        a(f"v_mov_b32 v{VIN}, v{VFN}")
        a(f"s_cbranch_scc1 {cont}")
        a(f"v_mov_b32 v{VIN}, v{VZ}")
        a(f"s_branch {cont}")

    a.label("L2_pop_first")
    pop(0, "L2_first_cont")
    for k in range(NP):
        pk = (k - 1) % NP
        a.label(f"L2_ev{k}")
        a(f"s_cmp_eq_u32 s{STR}, 0")
        a(f"s_cbranch_scc1 L2_sw{k}")
        pop(k, f"L2_cont{k}")
        a.label(f"L2_sw{k}")
        tail1(pk)
        rcp2(0)
        rcp2(1)
        a("s_nop 0")
        tail2()
        flush()
        a(f"s_cmp_eq_u32 s{SNL}, 0")
        a("s_cbranch_scc1 L2_done")
        a(f"ds_read_b128 {vr(PR, 4)}, v{VRN} offset:{PL}")
        a(f"ds_read_b128 {vr(UR, 4)}, v{VIN}")
        for i in range(4):
            a(f"v_mov_b32 v{ACC + i}, 0")
        a(f"v_mov_b32 v{VFL}, v{VFN}")
        a(f"s_mov_b32 s{SC}, s{SNL}")
        a(f"s_mov_b32 s{STR}, {RA}")
        if "noprio" not in OPT:
            a(f"s_cmp_lt_u32 s{SI}, 40")
            a(f"s_cbranch_scc1 L2_p1_{k}")
            a("s_setprio 0")
            a(f"s_branch L2_pd_{k}")
            a.label(f"L2_p1_{k}")
            a(f"s_cmp_lt_u32 s{SI}, 32")
            a(f"s_cbranch_scc1 L2_p2_{k}")
            a("s_setprio 1")
            a(f"s_branch L2_pd_{k}")
            a.label(f"L2_p2_{k}")
            a(f"s_cmp_lt_u32 s{SI}, 25")
            a(f"s_cbranch_scc1 L2_pd_{k}")
            a("s_setprio 2")
            a.label(f"L2_pd_{k}")
        a(f"s_cmp_eq_u32 s{SC}, {RA}")
        a(f"s_cbranch_scc0 L2_sw2_{k}")
        pop(k, f"L2_sw2_{k}")
        a.label(f"L2_sw2_{k}")
        if "nogather" not in OPT:
            a(f"s_waitcnt vmcnt({VW}) lgkmcnt(0)")
        else:
            a("s_waitcnt lgkmcnt(0)")
        mfma1(k, 0)
        mfma1(k, 1)
        read_idx(k)
        a("s_nop 2")
        gather(k)
        a(f"s_branch L2_mid{k}")

    a.label("L2_slow")
    SSC, SCN, SRI = 61, 62, 63
    a(f"v_lshlrev_b32 v{T0}, 2, v{LANE}")
    a(f"v_lshlrev_b32 v{T1}, 1, v{LANE}")
    a(f"v_add_u32 v{T1}, {128 * 128}, v{T1}")
    a(f"global_load_ushort v{T2}, v{T1}, {sr(GW)}")
    a(f"s_mov_b32 s24, {LOG2E_NEG:#x}")
    a(f"s_mov_b32 s25, s{WAVE}")
    a("v_mov_b32 v9, 0")
    a.label("L2_slow_z")
    a(f"s_mul_i32 s26, s25, {ROW}")
    a(f"v_add_u32 v10, s26, v{T0}")
    a(f"ds_write_b32 v10, v9 offset:{PART1}")
    a("s_add_u32 s25, s25, 16")
    a(f"s_cmp_lt_u32 s25, {NPB}")
    a("s_cbranch_scc1 L2_slow_z")
    a("s_waitcnt vmcnt(0) lgkmcnt(0)")
    a(f"v_lshlrev_b32 v{T2}, 16, v{T2}")
    a(f"v_mul_f32 v8, s24, v{T2}")
    a(f"s_mov_b32 s{SSC}, 0")
    a.label("L2_slow_seg")
    a(f"s_cmp_ge_u32 s{SSC}, {NC}")
    a("s_cbranch_scc1 L2_done")
    a(f"s_lshl_b32 s24, s{SSC}, 8")
    a("s_add_u32 s24, s24, s2")
    a("s_lshl_b32 s24, s24, 2")
    a(f"s_add_u32 s24, s24, {SEG_OFF}")
    a(f"v_mov_b32 v{T1}, s24")
    a(f"global_load_dword v{T2}, v{T1}, {sr(WS)}")
    a("s_waitcnt vmcnt(0)")
    a(f"v_readfirstlane_b32 s25, v{T2}")
    a("s_nop 3")
    a(f"s_lshr_b32 s{SCN}, s25, 16")
    a("s_and_b32 s25, s25, 0xffff")
    a(f"s_mul_i32 s26, s{SSC}, {EPC}")
    a("s_add_u32 s26, s26, s25")
    a("s_lshl_b32 s26, s26, 3")
    a(f"s_add_u32 s{SRI}, s26, {REC_OFF}")
    a.label("L2_slow_rec")
    a(f"s_cmp_eq_u32 s{SCN}, 0")
    a("s_cbranch_scc1 L2_slow_next")
    a(f"v_mov_b32 v{T1}, s{SRI}")
    a(f"global_load_dwordx2 v[10:11], v{T1}, {sr(WS)}")
    a(f"s_add_u32 s{SRI}, s{SRI}, 8")
    a(f"s_sub_u32 s{SCN}, s{SCN}, 1")
    a("s_waitcnt vmcnt(0)")
    a("v_and_b32 v14, 127, v11")
    a("v_and_b32 v15, 15, v14")
    a("s_nop 0")
    a("v_readfirstlane_b32 s25, v15")
    a("s_nop 3")
    a(f"s_cmp_lg_u32 s25, s{WAVE}")
    a("s_cbranch_scc1 L2_slow_rec")
    a("v_and_b32 v18, 0xffff, v10")
    a(f"v_mov_b32 v19, v{T0}")
    a("buffer_load_dword v13, v[18:19], s[36:39], 0 idxen offen")
    a(f"v_mul_u32_u24 v14, {ROW}, v14")
    a(f"v_add_u32 v14, v14, v{T0}")
    a(f"ds_read_b32 v15, v14 offset:{PL}")
    a(f"ds_read_b32 v17, v14 offset:{PART1}")
    a("v_and_b32 v11, 0xffff0000, v10")
    a("s_waitcnt vmcnt(0) lgkmcnt(0)")
    a("v_lshlrev_b32 v16, 16, v13")
    a("v_add_f32 v16, v16, v15")
    a("v_fmac_f32 v16, v11, v8")
    a("v_exp_f32 v16, v16")
    a(f"s_mov_b32 s25, {TINY:#x}")
    a("v_add_f32 v16, s25, v16")
    a("v_rcp_f32 v16, v16")
    a("s_nop 0")
    a("v_mul_f32 v16, s25, v16")
    a("v_fmac_f32 v17, v16, v13")
    a(f"ds_write_b32 v14, v17 offset:{PART1}")
    a("s_waitcnt lgkmcnt(0)")
    a("s_branch L2_slow_rec")
    a.label("L2_slow_next")
    a(f"s_add_u32 s{SSC}, s{SSC}, 1")
    a("s_branch L2_slow_seg")

    a.label("L2_done")
    stamp(a, 10)
    a("s_setprio 0")
    a("s_waitcnt vmcnt(0) lgkmcnt(0)")
    a("s_barrier")
    stamp(a, 11)
    a(f"v_lshrrev_b32 v{T0}, 4, v{TID}")
    a(f"v_and_b32 v{T1}, 15, v{TID}")
    a(f"v_mul_u32_u24 v{T2}, {ROW}, v{T0}")
    a(f"v_lshl_add_u32 v{T2}, v{T1}, 4, v{T2}")
    a(f"s_mul_i32 s24, s2, {NPB * 128}")
    a(f"v_lshlrev_b32 v{T3}, 7, v{T0}")
    a(f"v_lshl_add_u32 v{T3}, v{T1}, 3, v{T3}")
    a(f"v_add_u32 v{T3}, s24, v{T3}")
    a(f"s_mov_b32 s24, {LOG2E_NEG:#x}")

    def silu_store(src, off):
        for i in range(4):
            a(f"v_add_f32 v{src + i}, v{src + i}, v{src + 4 + i}")
        for i in range(4):
            a(f"v_mul_f32 v{src + 4 + i}, s24, v{src + i}")
        for i in range(4):
            a(f"v_exp_f32 v{src + 4 + i}, v{src + 4 + i}")
        a("s_nop 0")
        for i in range(4):
            a(f"v_add_f32 v{src + 4 + i}, 1.0, v{src + 4 + i}")
        for i in range(4):
            a(f"v_rcp_f32 v{src + 4 + i}, v{src + 4 + i}")
        a("s_nop 0")
        for i in range(4):
            a(f"v_mul_f32 v{src + i}, v{src + i}, v{src + 4 + i}")
        a(f"v_cvt_pk_bf16_f32 v{src + 4}, v{src}, v{src + 1}")
        a(f"v_cvt_pk_bf16_f32 v{src + 5}, v{src + 2}, v{src + 3}")
        a(f"global_store_dwordx2 v{off}, {vr(src + 4, 2)}, {sr(OUT)}")

    a(f"ds_read_b128 v[8:11], v{T2} offset:{PART0}")
    a(f"ds_read_b128 v[12:15], v{T2} offset:{PART1}")
    a(f"s_cmp_lt_u32 s{WAVE}, 9")
    a("s_cbranch_scc0 L2_ep1")
    a(f"v_add_u32 v7, {64 * ROW}, v{T2}")
    a(f"ds_read_b128 v[16:19], v7 offset:{PART0}")
    a(f"ds_read_b128 v[20:23], v7 offset:{PART1}")
    a("s_waitcnt lgkmcnt(0)")
    a(f"v_add_u32 v6, {64 * 128}, v{T3}")
    silu_store(16, 6)
    a.label("L2_ep1")
    a("s_waitcnt lgkmcnt(0)")
    silu_store(8, T3)
    if "dbgt" in OPT:
        a("s_waitcnt vmcnt(0)")
    dbg_time(a, 1, 3)
    stamp(a, 12)
    if STAMPS:
        a("s_waitcnt vmcnt(0)")
    stamp(a, 13)
    stamp(a, 21, True)
    stamp_flush(a, 1)
    a.label("L2_end")
    a("s_endpgm")
    return LDS, 128


def descriptor(a, name, vgprs, sgprs=80):
    a(f".amdhsa_kernel {name}")
    a(f"  .amdhsa_next_free_vgpr {vgprs}")
    a(f"  .amdhsa_next_free_sgpr {sgprs}")
    a(f"  .amdhsa_accum_offset {vgprs}")
    a("  .amdhsa_group_segment_fixed_size 0")
    a("  .amdhsa_kernarg_size 80")
    a("  .amdhsa_user_sgpr_count 2")
    a("  .amdhsa_user_sgpr_kernarg_segment_ptr 1")
    a("  .amdhsa_system_sgpr_workgroup_id_x 1")
    a("  .amdhsa_float_denorm_mode_32 3")
    a(".end_amdhsa_kernel")


def main():
    global STAMPS, ST, STT, STR_
    if "--stamps" in sys.argv:
        STAMPS = True
        sys.argv.remove("--stamps")
    for o in OPT:
        if o.startswith("st="):
            ST = STT = STR_ = " " + o[3:].replace("+", " ")
        if o.startswith("stt="):
            STT = " " + o[4:].replace("+", " ")
        if o.startswith("str="):
            STR_ = " " + o[4:].replace("+", " ")
    body = Asm()
    body(".amdgcn_target \"amdgcn-amd-amdhsa--gfx950\"")
    body(".text")
    lds1, v1 = gen_k1(body)
    lds2, v2 = gen_k2(body)
    body(".section .rodata,\"a\"")
    body(".p2align 6")
    descriptor(body, K1, 128 if (STAMPS or 'dbgt' in OPT) else v1)
    body(".p2align 6")
    descriptor(body, K2, v2)
    head = [
        "; Edge-gated MPNN layer in two launches (generated by a hand-written generator script).",
        "; launch 1: partitions the edges by destination bucket and builds the per-node source table",
        "; launch 2: per bucket of 100 nodes: sorts its edges, gated aggregation, SiLU epilogue",
        f"; @launch kernel={K1} grid=({NC},1,1) block=(1024,1,1) lds={lds1}",
        f"; @launch kernel={K2} grid=({NB},1,1) block=(1024,1,1) lds={lds2}",
    ]
    out = "\n".join(head) + "\n" + body.text()
    path = sys.argv[1] if len(sys.argv) > 1 else "standalone__edge_featured_mpnn_egc__graph.s"
    open(path, "w").write(out)
    print("wrote", path, "lds", lds1, lds2)


if __name__ == "__main__":
    main()
```

```python
import os
import sys

N = 25000
E = 800000
NB = 250
NPB = 100
NC = 250
EPC = 3200
HALF = 12500

T_OFF = 0
REC_OFF = 0x700000
SEG_OFF = 0xE00000

LOG2E_NEG = 0xBFB8AA3B
SHIFT_NEG = 0xC2700000
TINY = 0x21800000
ROW = 272
XROW = 144

K1 = "egc_part_kernel"
K2 = "standalone__edge_featured_mpnn_egc__graph_kernel"

OPT = set(os.environ.get("OPT", "").split(","))
STAMPS = False
STAMP_OFF = 0x1000000
SV = 127

X, EA, SRC, DST, UW, VW, GW, OUT, WS = 4, 6, 8, 10, 12, 14, 16, 18, 20
WAVE = 22


def stamp(a, i, real=False):
    if not STAMPS:
        return
    a(f"s_mem{'real' if real else ''}time s[70:71]")
    a("s_waitcnt lgkmcnt(0)")
    a(f"v_writelane_b32 v{SV}, s70, {i}")


TIME_OFF = 0x1800000


def dbg_time(a, which, slot, neg=False, tag=""):
    if "dbgt" not in OPT:
        return
    a("v_readfirstlane_b32 s78, v0")
    a("s_nop 3")
    a("s_cmp_lg_u32 s78, 0")
    a(f"s_cbranch_scc1 L_dbg_{which}_{slot}")
    a("s_memrealtime s[70:71]")
    a(f"s_load_dwordx2 s[74:75], s[0:1], {72 if which == 0 else 64}")
    a("s_waitcnt lgkmcnt(0)")
    if neg:
        a("s_not_b32 s70, s70")
    a("v_mov_b32 v125, s70")
    a("s_mov_b64 s[76:77], exec")
    a("s_mov_b64 exec, 1")
    if which == 0:
        a("s_lshl_b32 s78, s2, 3")
        a(f"s_add_u32 s78, s78, {TIME_OFF + slot * 4}")
        a("v_mov_b32 v126, s78")
        a("global_store_dword v126, v125, s[74:75]")
    else:
        a(f"v_mov_b32 v126, {slot * 4}")
        a("global_atomic_umax v126, v125, s[74:75]")
    a("s_mov_b64 exec, s[76:77]")
    if which == 1 and slot == 2:
        a("s_cmp_lg_u32 s2, 0")
        a(f"s_cbranch_scc1 L_dbg_{which}_{slot}")
        a("s_load_dwordx2 s[76:77], s[0:1], 72")
        a("s_waitcnt lgkmcnt(0)")
        for r in range(4):
            a(f"v_add_u32 v124, {64 * r}, v0")
            a("v_min_u32 v124, 249, v124")
            a("v_lshlrev_b32 v124, 3, v124")
            a(f"v_add_u32 v124, {TIME_OFF}, v124")
            a("global_load_dwordx2 v[122:123], v124, s[76:77]")
            a("s_waitcnt vmcnt(0)")
            a("v_mov_b32 v126, 16")
            a("global_atomic_umax v126, v122, s[74:75]")
            a("v_mov_b32 v126, 20")
            a("global_atomic_umax v126, v123, s[74:75]")
        a("s_waitcnt vmcnt(0)")
    a.label(f"L_dbg_{which}_{slot}")


def stamp_flush(a, which):
    if not STAMPS:
        return
    a("s_lshl_b32 s72, s2, 4")
    a(f"s_add_u32 s72, s72, s{WAVE}")
    a("s_lshl_b32 s72, s72, 8")
    a(f"s_add_u32 s72, s72, {STAMP_OFF + which * 0x200000}")
    a("v_and_b32 v126, 63, v0")
    a("v_lshlrev_b32 v126, 2, v126")
    a("v_add_u32 v126, s72, v126")
    a(f"global_store_dword v126, v{SV}, s[20:21]")


class Asm:
    def __init__(self):
        self.lines = []

    def __call__(self, s=""):
        for ln in s.split("\n"):
            self.lines.append(ln if ln.strip().endswith(":") else "    " + ln.strip())

    def label(self, s):
        self.lines.append(s + ":")

    def text(self):
        return "\n".join(self.lines) + "\n"


def vr(a, n):
    return f"v[{a}:{a + n - 1}]"


def sr(a, n=2):
    return f"s[{a}:{a + n - 1}]"


def wave_scan(a, v):
    for sh in (1, 2, 4, 8):
        a("s_nop 1")
        a(f"v_add_u32_dpp v{v}, v{v}, v{v} row_shr:{sh} row_mask:0xf bank_mask:0xf bound_ctrl:0")
    a("s_nop 1")
    a(f"v_add_u32_dpp v{v}, v{v}, v{v} row_bcast:15 row_mask:0xa bank_mask:0xf")
    a("s_nop 1")
    a(f"v_add_u32_dpp v{v}, v{v}, v{v} row_bcast:31 row_mask:0xc bank_mask:0xf")
    a("s_nop 1")


WSBASE = int(os.environ.get("WSBASE", "0"), 0)


def load_ptrs(a):
    a("s_load_dwordx16 s[4:19], s[0:1], 0")
    a("s_load_dwordx2 s[20:21], s[0:1], 72")


def fix_ws(a):
    if WSBASE:
        a(f"s_add_u32 s20, s20, {WSBASE}")
        a("s_addc_u32 s21, s21, 0")


ST = ""
STT = ""
STR_ = ""


class Node:
    def __init__(self, a, WST, XST, tid, lane, vw, vx, t):
        self.a, self.WST, self.XST = a, WST, XST
        self.tid, self.lane, self.vw, self.vx, self.t = tid, lane, vw, vx, t

    def issue_loads(self, p0, off0, p1):
        a, t = self.a, self.t
        a(f"s_cmp_lt_u32 s{WAVE}, 8")
        a(f"s_cselect_b32 s24, s{p0}, s{p1}")
        a(f"s_cselect_b32 s25, s{p0 + 1}, s{p1 + 1}")
        if off0:
            a(f"s_cselect_b32 s26, {off0}, 0")
            a("s_add_u32 s24, s24, s26")
            a("s_addc_u32 s25, s25, 0")
        a(f"v_and_b32 v{t}, 511, v{self.tid}")
        a(f"v_lshlrev_b32 v{t}, 4, v{t}")
        a(f"global_load_dwordx4 {vr(self.vw, 4)}, v{t}, s[24:25]")
        a(f"v_min_u32 v{t}, {NPB * 8 - 1}, v{self.tid}")
        a(f"v_lshlrev_b32 v{t}, 4, v{t}")
        a(f"s_mul_i32 s26, s2, {NPB * 128}")
        a(f"v_add_u32 v{t}, s26, v{t}")
        a(f"global_load_dwordx4 {vr(self.vx, 4)}, v{t}, {sr(X)}")

    def stage(self):
        a, t, tid = self.a, self.t, self.tid
        a(f"v_bfe_u32 v{t}, v{tid}, 4, 1")
        a(f"v_bfe_u32 v{t + 1}, v{tid}, 6, 1")
        a(f"v_lshl_or_b32 v{t}, v{t + 1}, 1, v{t}")
        a(f"v_lshlrev_b32 v{t}, 5, v{t}")
        a(f"v_lshlrev_b32 v{t + 1}, 4, v{tid}")
        a(f"v_xor_b32 v{t}, v{t}, v{t + 1}")
        a(f"v_add_u32 v{t}, {self.WST}, v{t}")
        a(f"ds_write_b128 v{t}, {vr(self.vw, 4)}")
        a(f"v_lshrrev_b32 v{t}, 3, v{tid}")
        a(f"v_mul_u32_u24 v{t}, {XROW}, v{t}")
        a(f"v_and_b32 v{t + 1}, 7, v{tid}")
        a(f"v_lshl_add_u32 v{t}, v{t + 1}, 4, v{t}")
        a(f"v_add_u32 v{t}, {self.XST}, v{t}")
        a(f"v_cmp_gt_u32 vcc, {NPB * 8}, v{tid}")
        a("s_and_saveexec_b64 s[32:33], vcc")
        a(f"ds_write_b128 v{t}, {vr(self.vx, 4)}")
        a("s_mov_b64 exec, s[32:33]")

    def stage_addr(self, vw_a, vx_a, t):
        a, tid = self.a, self.tid
        a(f"v_bfe_u32 v{vw_a}, v{tid}, 4, 1")
        a(f"v_bfe_u32 v{t}, v{tid}, 6, 1")
        a(f"v_lshl_or_b32 v{vw_a}, v{t}, 1, v{vw_a}")
        a(f"v_lshlrev_b32 v{vw_a}, 5, v{vw_a}")
        a(f"v_lshlrev_b32 v{t}, 4, v{tid}")
        a(f"v_xor_b32 v{vw_a}, v{vw_a}, v{t}")
        a(f"v_add_u32 v{vw_a}, {self.WST}, v{vw_a}")
        a(f"v_lshrrev_b32 v{vx_a}, 3, v{tid}")
        a(f"v_mul_u32_u24 v{vx_a}, {XROW}, v{vx_a}")
        a(f"v_and_b32 v{t}, 7, v{tid}")
        a(f"v_lshl_add_u32 v{vx_a}, v{t}, 4, v{vx_a}")
        a(f"v_add_u32 v{vx_a}, {self.XST}, v{vx_a}")

    def stage_write(self, vw_a, vx_a):
        a, tid = self.a, self.tid
        a(f"ds_write_b128 v{vw_a}, {vr(self.vw, 4)}")
        a(f"v_cmp_gt_u32 vcc, {NPB * 8}, v{tid}")
        a("s_and_saveexec_b64 s[32:33], vcc")
        a(f"ds_write_b128 v{vx_a}, {vr(self.vx, 4)}")
        a("s_mov_b64 exec, s[32:33]")

    def pair_reads(self, aop, xop, vloc):
        a, t, lane = self.a, self.t, self.lane
        a(f"s_and_b32 s27, s{WAVE}, 1")
        a("s_lshl_b32 s27, s27, 1")
        a(f"s_lshr_b32 s26, s{WAVE}, 1")
        a(f"v_and_b32 v{t}, 15, v{lane}")
        a(f"v_lshrrev_b32 v{t + 1}, 4, v{lane}")
        a("s_lshl_b32 s26, s26, 4")
        a(f"v_add_u32 v{vloc}, s26, v{t}")
        a(f"v_mul_u32_u24 v{t + 2}, {XROW}, v{vloc}")
        a(f"v_lshl_add_u32 v{t + 2}, v{t + 1}, 4, v{t + 2}")
        a(f"v_add_u32 v{t + 2}, {self.XST}, v{t + 2}")
        a(f"ds_read_b128 {vr(xop, 4)}, v{t + 2}")
        a(f"ds_read_b128 {vr(xop + 4, 4)}, v{t + 2} offset:64")
        a(f"v_lshrrev_b32 v{t + 2}, 3, v{t}")
        a(f"v_and_b32 v{xop + 8}, 1, v{t + 1}")
        a(f"v_lshl_or_b32 v{t + 2}, v{xop + 8}, 1, v{t + 2}")
        a(f"v_xor_b32 v{t + 2}, s27, v{t + 2}")
        a(f"v_lshlrev_b32 v{t + 2}, 5, v{t + 2}")
        a(f"v_lshrrev_b32 v{xop + 8}, 2, v{t}")
        a(f"v_lshl_add_u32 v{xop + 8}, v{t + 1}, 3, v{xop + 8}")
        a(f"v_lshl_add_u32 v{t + 2}, v{xop + 8}, 7, v{t + 2}")
        a(f"v_and_b32 v{xop + 8}, 3, v{t}")
        a(f"v_lshl_add_u32 v{t + 2}, v{xop + 8}, 3, v{t + 2}")
        a(f"v_add_u32 v{t + 2}, {self.WST}, v{t + 2}")
        assert self.WST % 128 == 0
        for c in range(2):
            if c:
                a(f"v_xor_b32 v{t + 2}, 32, v{t + 2}")
            for m in range(2):
                for ks in range(2):
                    for hh in range(2):
                        r = aop + c * 16 + (m * 2 + ks) * 4 + hh * 2
                        a(f"ds_read_b64_tr_b16 {vr(r, 2)}, v{t + 2} offset:{m * 8192 + ks * 4096 + hh * 512}")

    def pair_mfma(self, aop, xop, dd):
        a = self.a
        for ks in range(2):
            for c in range(2):
                for m in range(2):
                    d = dd + (c * 2 + m) * 4
                    cop = "0" if ks == 0 else vr(d, 4)
                    a(f"v_mfma_f32_16x16x32_bf16 {vr(d, 4)}, {vr(aop + c * 16 + (m * 2 + ks) * 4, 4)}, {vr(xop + 4 * ks, 4)}, {cop}")


def copy_out(a, lds_addr_fn, goff_sgpr, t0, t1, d0, d1, tag):
    ST = STT if tag == "t" else STR_
    lds_addr_fn(0, t1)
    a(f"ds_read_b128 {vr(d0, 4)}, v{t1}")
    a(f"v_lshlrev_b32 v{t0}, 4, v0")
    a(f"v_add_u32 v{t0}, s{goff_sgpr}, v{t0}")
    a(f"s_cmp_gt_u32 s{WAVE}, 8")
    a(f"s_cbranch_scc1 L1_one{tag}")
    a(f"v_add_u32 v{t1}, 1024, v0")
    lds_addr_fn(t1, t1)
    a(f"ds_read_b128 {vr(d1, 4)}, v{t1}")
    a(f"v_add_u32 v{t1}, 16384, v{t0}")
    a("s_waitcnt lgkmcnt(0)")
    a(f"global_store_dwordx4 v{t1}, {vr(d1, 4)}, {sr(WS)}{ST}")
    a.label(f"L1_one{tag}")
    a("s_waitcnt lgkmcnt(0)")
    a(f"global_store_dwordx4 v{t0}, {vr(d0, 4)}, {sr(WS)}{ST}")


def gen_k1(a):
    HIST, BASE = 0, 1024
    WST = 2048
    XST = WST + 16384
    TST = XST + 112 * XROW
    STG = TST + NPB * ROW
    LDS = STG + EPC * 8
    TID, LANE = 0, 1
    T0, T1, T2, T3 = 2, 3, 14, 15
    VD, VS, VE = 4, 8, 12
    VW_, VX_ = 16, 20
    XOP = 24
    AOP = 36
    DD = 68
    PK = 84
    VLOC = 87
    VB, VR, VH = 88, 92, 96
    NT = 100
    nd = Node(a, WST, XST, TID, LANE, VW_, VX_, NT)

    a(f".globl {K1}")
    a(".p2align 8")
    a(f".type {K1},@function")
    a.label(K1)
    a(f"s_cmp_ge_u32 s2, {NC}")
    a("s_cbranch_scc1 L1_end")
    dbg_time(a, 0, 0, True)
    stamp(a, 0)
    stamp(a, 20, True)
    load_ptrs(a)
    a(f"v_and_b32 v{LANE}, 63, v{TID}")
    a(f"v_lshrrev_b32 v{T0}, 6, v{TID}")
    a(f"v_lshlrev_b32 v{T1}, 2, v{TID}")
    a(f"v_readfirstlane_b32 s{WAVE}, v{T0}")
    a(f"v_mov_b32 v{T0}, 0")
    a(f"s_cmp_lt_u32 s{WAVE}, 4")
    a("s_cbranch_scc0 L1_nozero")
    a(f"ds_write_b32 v{T1}, v{T0} offset:{HIST}")
    a.label("L1_nozero")
    a("s_waitcnt lgkmcnt(0)")
    fix_ws(a)
    stamp(a, 1)
    nd.issue_loads(GW, 8192, VW)
    a("s_barrier")
    a(f"s_cmp_gt_u32 s{WAVE}, 12")
    a("s_cbranch_scc1 L1_noedge0")
    a(f"s_mul_i32 s24, s2, {EPC * 4}")
    a(f"v_lshlrev_b32 v{T0}, 4, v{TID}")
    a(f"v_add_u32 v{T0}, s24, v{T0}")
    a(f"v_lshrrev_b32 v{T1}, 1, v{T0}")
    a(f"v_cmp_gt_u32 vcc, {EPC // 4}, v{TID}")
    a("s_and_saveexec_b64 s[32:33], vcc")
    a(f"global_load_dwordx4 {vr(VD, 4)}, v{T0}, {sr(DST)}")
    a(f"global_load_dwordx4 {vr(VS, 4)}, v{T0}, {sr(SRC)}")
    a(f"global_load_dwordx2 {vr(VE, 2)}, v{T1}, {sr(EA)}")
    a("s_mov_b64 exec, s[32:33]")
    a("s_waitcnt vmcnt(3)")
    a("s_branch L1_wx")
    a.label("L1_noedge0")
    a("s_waitcnt vmcnt(0)")
    a.label("L1_wx")
    stamp(a, 2)
    nd.stage()
    a("s_waitcnt lgkmcnt(0)")
    a("s_barrier")
    stamp(a, 3)
    a(f"s_cmp_gt_u32 s{WAVE}, 13")
    a("s_cbranch_scc1 L1_notask")
    nd.pair_reads(AOP, XOP, VLOC)
    a(f"v_mul_u32_u24 v{T0}, {ROW}, v{VLOC}")
    a(f"v_lshrrev_b32 v{T1}, 4, v{LANE}")
    a(f"v_lshl_add_u32 v{T0}, v{T1}, 4, v{T0}")
    a("s_lshl_b32 s30, s27, 6")
    a(f"s_add_u32 s30, s30, {TST}")
    a(f"v_add_u32 v{T0}, s30, v{T0}")
    a(f"s_mov_b32 s24, {LOG2E_NEG:#x}")
    a("s_mov_b32 s25, 0x7fff0000")
    a("s_mov_b32 s30, 0x7fffffff")
    a(f"v_cmp_gt_u32 vcc, {NPB}, v{VLOC}")
    a("s_waitcnt lgkmcnt(0)")
    nd.pair_mfma(AOP, XOP, DD)
    a("s_nop 5")
    for c in range(2):
        DQ, DH = DD + c * 8, DD + c * 8 + 4
        if c == 1:
            pass
        for i in range(4):
            a(f"v_mul_f32 v{DQ + i}, s24, v{DQ + i}")
        a(f"v_cvt_pk_bf16_f32 v{PK}, v{DQ}, v{DQ + 1}")
        a(f"v_cvt_pk_bf16_f32 v{PK + 1}, v{DQ + 2}, v{DQ + 3}")
        for i in range(4):
            q = DQ + i
            if i % 2 == 0:
                a(f"v_and_b32 v{q}, 0xffff, v{PK + i // 2}")
            else:
                a(f"v_lshrrev_b32 v{q}, 16, v{PK + i // 2}")
        for i in range(4):
            q, h = DQ + i, DH + i
            a(f"v_and_b32 v{PK + 2}, s30, v{h}")
            a(f"v_sub_u32 v{PK + 2}, v{PK + 2}, v{q}")
            a(f"v_add_u32 v{PK + 2}, 0x8000, v{PK + 2}")
            a(f"v_max_i32 v{PK + 2}, 0, v{PK + 2}")
            a(f"v_and_b32 v{h}, 0x80000000, v{h}")
            a(f"v_or_b32 v{h}, v{h}, v{q}")
            a(f"v_and_or_b32 v{h}, v{PK + 2}, s25, v{h}")
        a("s_and_saveexec_b64 s[32:33], vcc")
        a(f"ds_write_b128 v{T0}, {vr(DH, 4)} offset:{c * 64}")
        a("s_mov_b64 exec, s[32:33]")
    a.label("L1_notask")
    a("s_waitcnt lgkmcnt(0)")
    stamp(a, 4)
    a("s_barrier")

    a(f"s_sub_u32 s24, s{WAVE}, 13")
    a("s_cmp_lt_u32 s24, 2")
    a("s_cbranch_scc0 L1_not")
    a(f"v_lshrrev_b32 v{T0}, 4, v{LANE}")
    a(f"v_mul_u32_u24 v{T0}, {ROW}, v{T0}")
    a(f"v_and_b32 v{T1}, 15, v{LANE}")
    a(f"v_lshl_add_u32 v{T0}, v{T1}, 4, v{T0}")
    a(f"s_mul_i32 s25, s24, {13 * 4 * ROW}")
    a(f"s_add_u32 s25, s25, {TST}")
    a(f"v_add_u32 v{T0}, s25, v{T0}")
    a(f"s_mul_i32 s26, s2, {NPB * 256}")
    a(f"s_mul_i32 s25, s24, {13 * 1024}")
    a("s_add_u32 s26, s26, s25")
    a(f"v_lshlrev_b32 v{T1}, 4, v{LANE}")
    a(f"v_add_u32 v{T1}, s26, v{T1}")
    for n in range(12):
        a(f"ds_read_b128 {vr(16 + 4 * n, 4)}, v{T0} offset:{n * 4 * ROW}")
    a("s_cmp_eq_u32 s24, 0")
    a("s_cbranch_scc0 L1_t12")
    a(f"ds_read_b128 {vr(64, 4)}, v{T0} offset:{12 * 4 * ROW}")
    a(f"v_add_u32 v{T2}, {12 * 1024}, v{T1}")
    a("s_waitcnt lgkmcnt(0)")
    a(f"global_store_dwordx4 v{T2}, {vr(64, 4)}, {sr(WS)}{STT}")
    a.label("L1_t12")
    for n in range(12):
        a(f"s_waitcnt lgkmcnt({max(0, 11 - n)})")
        a(f"global_store_dwordx4 v{T1}, {vr(16 + 4 * n, 4)}, {sr(WS)} offset:{(n % 4) * 1024}{STT}")
        if n % 4 == 3:
            a(f"v_add_u32 v{T1}, 4096, v{T1}")
    stamp(a, 5)
    if STAMPS:
        a("s_waitcnt vmcnt(0)")
    stamp(a, 11)
    stamp(a, 21, True)
    stamp_flush(a, 0)
    a("s_endpgm")
    a.label("L1_not")
    stamp(a, 5)
    a(f"s_cmp_gt_u32 s{WAVE}, 12")
    a("s_cbranch_scc1 L1_noedge1")
    a(f"v_cmp_gt_u32 vcc, {EPC // 4}, v{TID}")
    a("s_and_saveexec_b64 s[32:33], vcc")
    a(f"v_mov_b32 v{T1}, 1")
    a("s_movk_i32 s24, -100")
    a("s_mov_b32 s25, 0xffff0000")
    a("s_movk_i32 s30, 128")
    a("s_waitcnt vmcnt(0)")
    for i in range(4):
        a(f"v_mul_u32_u24 v{T0}, 5243, v{VD + i}")
        a(f"v_lshrrev_b32 v{T0}, 19, v{T0}")
        a(f"v_lshlrev_b32 v{VB + i}, 2, v{T0}")
        a(f"ds_add_rtn_u32 v{VR + i}, v{VB + i}, v{T1} offset:{HIST}")
        a(f"v_mad_i32_i24 v{T2}, v{T0}, s24, v{VD + i}")
        a(f"v_lshrrev_b32 v{T3}, 5, v{VS + i}")
        a(f"v_and_or_b32 v{VH + i}, v{T3}, s30, v{T2}")
        if i % 2 == 0:
            a(f"v_lshl_or_b32 v{VS + i}, v{VE + i // 2}, 16, v{VS + i}")
        else:
            a(f"v_and_or_b32 v{VS + i}, v{VE + i // 2}, s25, v{VS + i}")
    a("s_mov_b64 exec, s[32:33]")
    a.label("L1_noedge1")
    a("s_waitcnt lgkmcnt(0)")
    stamp(a, 6)
    a("s_barrier")
    stamp(a, 7)
    a(f"s_cmp_eq_u32 s{WAVE}, 15")
    a("s_cbranch_scc0 L1_b2")
    C0 = 24
    a(f"v_lshlrev_b32 v{T0}, 4, v{LANE}")
    a(f"ds_read_b128 {vr(C0, 4)}, v{T0} offset:{HIST}")
    a("s_waitcnt lgkmcnt(0)")
    P = 28
    a(f"v_add_u32 v{P + 2}, v{C0}, v{C0 + 1}")
    a(f"v_add_u32 v{P + 3}, v{P + 2}, v{C0 + 2}")
    a(f"v_add_u32 v32, v{P + 3}, v{C0 + 3}")
    a("v_mov_b32 v33, v32")
    wave_scan(a, 33)
    a(f"v_sub_u32 v{P}, v33, v32")
    a(f"v_add_u32 v{P + 1}, v{P}, v{C0}")
    a(f"v_add_u32 v{P + 2}, v{P}, v{P + 2}")
    a(f"v_add_u32 v{P + 3}, v{P}, v{P + 3}")
    a(f"ds_write_b128 v{T0}, {vr(P, 4)} offset:{BASE}")
    a("s_lshl_b32 s24, s2, 10")
    a(f"s_add_u32 s24, s24, {SEG_OFF}")
    a(f"v_add_u32 v{T1}, s24, v{T0}")
    for i in range(4):
        a(f"v_lshl_or_b32 v{36 + i}, v{C0 + i}, 16, v{P + i}")
    a(f"global_store_dwordx4 v{T1}, v[36:39], {sr(WS)}{ST}")
    a("s_cmp_lg_u32 s2, 0")
    a("s_cbranch_scc1 L1_b2")
    a(f"v_mov_b32 v{T2}, 0")
    a(f"v_lshlrev_b32 v{T3}, 2, v{LANE}")
    a(f"v_add_u32 v{T3}, {N * 256}, v{T3}")
    a(f"global_store_dword v{T3}, v{T2}, {sr(WS)}{ST}")
    a.label("L1_b2")
    a("s_waitcnt lgkmcnt(0)")
    stamp(a, 8)
    a("s_barrier")
    a(f"s_cmp_gt_u32 s{WAVE}, 12")
    a("s_cbranch_scc1 L1_noedge2")
    a(f"v_cmp_gt_u32 vcc, {EPC // 4}, v{TID}")
    a("s_and_saveexec_b64 s[32:33], vcc")
    for i in range(4):
        a(f"ds_read_b32 v{VD + i}, v{VB + i} offset:{BASE}")
    a(f"s_mov_b32 s24, {STG}")
    for i in range(4):
        a("s_waitcnt lgkmcnt(3)")
        a(f"v_add_u32 v{VD + i}, v{VD + i}, v{VR + i}")
        a(f"v_lshl_add_u32 v{VD + i}, v{VD + i}, 3, s24")
        a(f"ds_write2_b32 v{VD + i}, v{VS + i}, v{VH + i} offset0:0 offset1:1")
    a("s_mov_b64 exec, s[32:33]")
    a.label("L1_noedge2")
    a("s_waitcnt lgkmcnt(0)")
    stamp(a, 9)
    a("s_barrier")

    a(f"s_min_u32 s25, s{WAVE}, 13")
    a("s_lshl_b32 s25, s25, 10")
    a(f"v_lshlrev_b32 v{T0}, 4, v{LANE}")
    a(f"v_add_u32 v{T0}, s25, v{T0}")
    a(f"v_add_u32 v{T1}, {STG}, v{T0}")
    a(f"ds_read_b128 v[24:27], v{T1}")
    a(f"s_mul_i32 s24, s2, {EPC * 8}")
    a(f"s_add_u32 s24, s24, {REC_OFF}")
    a(f"v_add_u32 v{T0}, s24, v{T0}")
    a(f"s_cmp_gt_u32 s{WAVE}, 10")
    a("s_cbranch_scc1 L1_oner")
    a(f"ds_read_b128 v[28:31], v{T1} offset:{14 * 1024}")
    a(f"v_add_u32 v{T1}, {14 * 1024}, v{T0}")
    a("s_waitcnt lgkmcnt(0)")
    a(f"global_store_dwordx4 v{T1}, v[28:31], {sr(WS)}{STR_}")
    a.label("L1_oner")
    a("s_waitcnt lgkmcnt(0)")
    a(f"global_store_dwordx4 v{T0}, v[24:27], {sr(WS)}{STR_}")
    for o in OPT:
        if o.startswith("delay="):
            n = int(o[6:])
            a(f"s_movk_i32 s24, {n}")
            a.label("L1_dly")
            a("s_sleep 16")
            a("s_sub_u32 s24, s24, 1")
            a("s_cmp_lg_u32 s24, 0")
            a("s_cbranch_scc1 L1_dly")
    if "dbgt" in OPT:
        a("s_waitcnt vmcnt(0)")
    dbg_time(a, 0, 1)
    stamp(a, 10)
    if STAMPS:
        a("s_waitcnt vmcnt(0)")
    stamp(a, 11)
    stamp(a, 21, True)
    stamp_flush(a, 0)
    a.label("L1_end")
    a("s_endpgm")
    return LDS, 104


def gen_k2(a):
    HIST = 0
    HIST2 = HIST + 1024
    BASE2 = HIST2 + 1024
    WCNT = BASE2 + 1024
    WKEY = WCNT + 1024
    MISC = WKEY + 1024
    SCR = MISC + 256
    ZERO = SCR + 256
    PL = ZERO + 256
    PART0 = PL + NPB * ROW
    PART1 = PART0 + NPB * ROW
    WST = (PART1 + NPB * ROW + 127) // 128 * 128
    XST = WST + 16384
    LIST = XST + NPB * XROW
    CAPK = 48
    COL = CAPK * 4
    LISTB = 228 * COL
    LDS = LIST + LISTB + 64
    assert PART1 < 65536 and PART0 + 64 * ROW < 65536 and LDS <= 163840, LDS
    NWIN = 50
    DUMMY_COL = 100 * COL

    TID, LANE = 0, 1
    T0, T1, T2, T3 = 2, 3, 4, 5
    RB = 6
    REM = 7
    RECS = 8
    RANK = 24
    VW_, VX_ = 32, 36
    XOP = 40
    AOP = 52
    DD = 84
    VLOC = 49
    NT = 100
    VLB = 103
    ASEL = 112
    VJ, VG4, VQ, VONE = 116, 117, 118, 119
    CV = 120
    VZ = 124
    MASK = 40
    nd = Node(a, WST, XST, TID, LANE, VW_, VX_, NT)

    a(f".globl {K2}")
    a(".p2align 8")
    a(f".type {K2},@function")
    a.label(K2)
    a(f"s_cmp_ge_u32 s2, {NB}")
    a("s_cbranch_scc1 L2_end")
    dbg_time(a, 1, 2, True)
    for o in OPT:
        if o.startswith("nops="):
            for _ in range(int(o[5:])):
                a("s_nop 0")
        if o.startswith("nopl="):
            a(f"s_movk_i32 s24, {int(o[5:]) // 16}")
            a.label("L2_nopl")
            for _ in range(13):
                a("s_nop 0")
            a("s_sub_u32 s24, s24, 1")
            a("s_cmp_lg_u32 s24, 0")
            a("s_cbranch_scc1 L2_nopl")
    stamp(a, 0)
    stamp(a, 20, True)
    load_ptrs(a)
    a(f"v_and_b32 v{LANE}, 63, v{TID}")
    a(f"v_lshrrev_b32 v{T0}, 6, v{TID}")
    a(f"v_lshlrev_b32 v{T1}, 2, v{TID}")
    a(f"v_readfirstlane_b32 s{WAVE}, v{T0}")
    a(f"v_lshrrev_b32 v{RB}, 2, v{TID}")
    a(f"v_lshlrev_b32 v{RB}, 10, v{RB}")
    a("s_lshl_b32 s24, s2, 2")
    a(f"s_add_u32 s24, s24, {SEG_OFF}")
    a(f"v_add_u32 v{RB}, s24, v{RB}")
    a("s_waitcnt lgkmcnt(0)")
    fix_ws(a)
    stamp(a, 1)
    a(f"global_load_dword v{REM}, v{RB}, {sr(WS)}")
    a(f"v_mov_b32 v{T0}, 0")
    a(f"s_cmp_lt_u32 s{WAVE}, 4")
    a("s_cbranch_scc0 L2_nozero")
    a(f"ds_write_b32 v{T1}, v{T0} offset:{HIST}")
    a(f"ds_write_b32 v{T1}, v{T0} offset:{HIST2}")
    a.label("L2_nozero")
    a(f"s_cmp_eq_u32 s{WAVE}, 4")
    a("s_cbranch_scc0 L2_nozero2")
    a(f"v_lshlrev_b32 v{T2}, 2, v{LANE}")
    a(f"v_cmp_eq_u32 vcc, 2, v{LANE}")
    a("s_nop 1")
    a(f"v_cndmask_b32 v{T3}, 0, 16, vcc")
    a(f"ds_write_b32 v{T2}, v{T3} offset:{MISC}")
    a(f"ds_write_b32 v{T2}, v{T0} offset:{ZERO}")
    a.label("L2_nozero2")
    a(f"v_lshrrev_b32 v{RB}, 2, v{TID}")
    a(f"v_mul_u32_u24 v{RB}, {EPC}, v{RB}")
    a(f"v_and_b32 v{T3}, 3, v{TID}")
    a(f"v_lshlrev_b32 v{T3}, 1, v{T3}")
    a(f"v_add_u32 v{RB}, v{RB}, v{T3}")
    a(f"v_lshlrev_b32 v{RB}, 3, v{RB}")
    a(f"v_add_u32 v{RB}, {REC_OFF}, v{RB}")
    a(f"v_cmp_gt_u32 vcc, {NC * 4}, v{TID}")
    a("s_waitcnt vmcnt(0)")
    stamp(a, 2)
    a(f"v_cndmask_b32 v{REM}, 0, v{REM}, vcc")
    a(f"v_and_b32 v{T2}, 0xffff, v{REM}")
    a(f"v_lshrrev_b32 v{REM}, 16, v{REM}")
    a(f"v_lshl_add_u32 v{RB}, v{T2}, 3, v{RB}")
    a(f"v_cmp_lt_u32 s[56:57], 32, v{REM}")
    a(f"v_sub_u32 v{REM}, v{REM}, v{T3}")
    for r in range(4):
        a(f"v_cmp_gt_i32 {sr(MASK + 4 * r)}, v{REM}, {8 * r}")
    a("s_nop 1")
    for r in range(4):
        m = MASK + 4 * r
        a(f"s_mov_b64 exec, {sr(m)}")
        a("s_cbranch_execz L2_recs_done")
        a(f"global_load_dwordx4 {vr(RECS + 4 * r, 4)}, v{RB}, {sr(WS)} offset:{64 * r}")
    a.label("L2_recs_done")
    a("s_mov_b64 exec, -1")
    for r in range(4):
        a(f"v_cmp_gt_i32 {sr(MASK + 4 * r + 2)}, v{REM}, {8 * r + 1}")
    nd.issue_loads(GW, 0, UW)
    a(f"v_and_b32 v{T0}, 15, v{LANE}")
    a(f"v_lshlrev_b32 v{VJ}, 4, v{T0}")
    a(f"v_lshrrev_b32 v{T2}, 1, v{VJ}")
    a(f"v_add_u32 v{T2}, {128 * 128}, v{T2}")
    a(f"global_load_dwordx2 {vr(CV + 2, 2)}, v{T2}, {sr(GW)}")
    for i in range(4):
        a(f"v_mov_b32 v{XOP + i}, {N}")
    a(f"v_lshlrev_b32 v{T2}, 4, v{TID}")
    a(f"v_add_u32 v{T2}, {LIST}, v{T2}")
    a(f"ds_write_b128 v{T2}, {vr(XOP, 4)}")
    a(f"ds_write_b128 v{T2}, {vr(XOP, 4)} offset:16384")
    nlast = LISTB // 16 - 2048
    a(f"v_cmp_gt_u32 vcc, {nlast}, v{TID}")
    a("s_and_saveexec_b64 s[32:33], vcc")
    a(f"ds_write_b128 v{T2}, {vr(XOP, 4)} offset:32768")
    a("s_mov_b64 exec, s[32:33]")
    a(f"v_lshrrev_b32 v{T1}, 4, v{LANE}")
    a(f"v_lshlrev_b32 v{VG4}, 2, v{T1}")
    a(f"v_add_u32 v{VZ}, {ZERO}, v{VJ}")
    a(f"v_mov_b32 v{VONE}, 1")
    a(f"v_mov_b32 v{VLB}, {LIST}")
    a(f"v_lshlrev_b32 v{VQ}, 2, v{LANE}")
    a(f"v_add_u32 v{VQ}, {SCR}, v{VQ}")
    a(f"v_cmp_eq_u32 vcc, 0, v{LANE}")
    a(f"v_mov_b32 v{T3}, {MISC + 8}")
    a(f"v_lshrrev_b32 v{T2}, 2, v{T0}")
    a(f"v_cndmask_b32 v{VQ}, v{VQ}, v{T3}, vcc")
    a(f"v_cmp_eq_u32 vcc, v{T2}, v{T1}")
    a(f"v_mov_b32 v{T3}, 0x3f80")
    a(f"v_and_b32 v{T2}, 3, v{T0}")
    a(f"v_cndmask_b32 v{T3}, 0, v{T3}, vcc")
    for q in range(4):
        a(f"v_cmp_eq_u32 vcc, {q}, v{T2}")
        a("s_nop 1")
        a(f"v_cndmask_b32 v{ASEL + q}, 0, v{T3}, vcc")
    nd.stage_addr(NT, NT + 1, NT + 2)
    a("s_waitcnt lgkmcnt(0)")
    a("s_barrier")
    a("s_cmp_eq_u64 s[56:57], 0")
    a("s_cbranch_scc1 L2_noflag")
    a(f"v_mov_b32 v{T2}, 0")
    a(f"ds_write_b32 v{T2}, v{VONE} offset:{MISC}")
    a.label("L2_noflag")
    a(f"s_movk_i32 s59, {COL}")
    a("s_waitcnt vmcnt(3)")
    stamp(a, 3)
    for r in range(4):
        if r >= 2:
            a(f"s_cmp_eq_u64 {sr(MASK + 4 * r)}, 0")
            a(f"s_cbranch_scc1 L2_h{r}")
        for s_ in range(2):
            k = 2 * r + s_
            hi = RECS + 4 * r + 2 * s_ + 1
            a(f"s_mov_b64 exec, {sr(MASK + 2 * k)}")
            a(f"v_lshlrev_b32 v{T1}, 2, v{hi}")
            a(f"ds_add_rtn_u32 v{RANK + k}, v{T1}, v{VONE} offset:{HIST}")
            a(f"v_mad_u32_u24 v{hi}, v{hi}, s59, v{VLB}")
        if r >= 2:
            a.label(f"L2_h{r}")
    a("s_mov_b64 exec, -1")
    a("s_waitcnt lgkmcnt(0)")
    for r in range(4):
        if r >= 2:
            a(f"s_cmp_eq_u64 {sr(MASK + 4 * r)}, 0")
            a(f"s_cbranch_scc1 L2_s{r}")
        for s_ in range(2):
            k = 2 * r + s_
            lo = RECS + 4 * r + 2 * s_
            hi = lo + 1
            a(f"s_mov_b64 exec, {sr(MASK + 2 * k)}")
            a(f"v_min_u32 v{RANK + k}, 63, v{RANK + k}")
            a(f"v_lshl_add_u32 v{hi}, v{RANK + k}, 2, v{hi}")
            a(f"ds_write_b32 v{hi}, v{lo}")
        if r >= 2:
            a.label(f"L2_s{r}")
    a("s_mov_b64 exec, -1")
    stamp(a, 4)
    a("s_waitcnt vmcnt(0)")
    stamp(a, 5)
    nd.stage_write(NT, NT + 1)
    a(f"s_mov_b32 s24, {LOG2E_NEG:#x}")
    a(f"v_lshlrev_b32 v{CV}, 16, v{CV + 2}")
    a(f"v_and_b32 v{CV + 1}, 0xffff0000, v{CV + 2}")
    a(f"v_lshlrev_b32 v{CV + 2}, 16, v{CV + 3}")
    a(f"v_and_b32 v{CV + 3}, 0xffff0000, v{CV + 3}")
    for i in range(4):
        a(f"v_mul_f32 v{CV + i}, s24, v{CV + i}")
    a("s_waitcnt lgkmcnt(0)")
    stamp(a, 6)
    a("s_barrier")
    a(f"s_cmp_eq_u32 s{WAVE}, 15")
    a("s_cbranch_scc1 L2_order")
    a(f"s_cmp_gt_u32 s{WAVE}, 3")
    a("s_cbranch_scc1 L2_b2")

    a("s_setprio 2")
    A0 = 8
    B0 = 24
    D0 = 48
    VXA, VPA, VSH = 72, 73, 74
    a(f"v_and_b32 v{T0}, 15, v{LANE}")
    a(f"v_lshrrev_b32 v{T1}, 4, v{LANE}")
    a(f"v_mul_u32_u24 v{VXA}, {XROW}, v{T0}")
    a(f"v_lshl_add_u32 v{VXA}, v{T1}, 4, v{VXA}")
    a(f"v_add_u32 v{VXA}, {XST}, v{VXA}")
    for t in range(2):
        a(f"ds_read_b128 {vr(B0 + 8 * t, 4)}, v{VXA} offset:{t * 16 * XROW}")
        a(f"ds_read_b128 {vr(B0 + 8 * t + 4, 4)}, v{VXA} offset:{t * 16 * XROW + 64}")
    a(f"v_lshrrev_b32 v{T2}, 3, v{T0}")
    a(f"v_and_b32 v{T3}, 1, v{T1}")
    a(f"v_lshl_or_b32 v{T2}, v{T3}, 1, v{T2}")
    a(f"v_xor_b32 v{T2}, s{WAVE}, v{T2}")
    a(f"v_lshlrev_b32 v{T2}, 5, v{T2}")
    a(f"v_lshrrev_b32 v{T3}, 2, v{T0}")
    a(f"v_lshl_add_u32 v{T3}, v{T1}, 3, v{T3}")
    a(f"v_lshl_add_u32 v{T2}, v{T3}, 7, v{T2}")
    a(f"v_and_b32 v{T3}, 3, v{T0}")
    a(f"v_lshl_add_u32 v{T2}, v{T3}, 3, v{T2}")
    a(f"v_add_u32 v{T2}, {WST}, v{T2}")
    for m in range(2):
        for ks in range(2):
            for hh in range(2):
                a(f"ds_read_b64_tr_b16 {vr(A0 + (m * 2 + ks) * 4 + hh * 2, 2)}, v{T2} offset:{m * 8192 + ks * 4096 + hh * 512}")
    a(f"v_mul_u32_u24 v{VPA}, {ROW}, v{T0}")
    a(f"v_lshl_add_u32 v{VPA}, v{T1}, 4, v{VPA}")
    a(f"s_lshl_b32 s30, s{WAVE}, 6")
    a(f"v_add_u32 v{VPA}, s30, v{VPA}")
    a(f"s_mov_b32 s24, {LOG2E_NEG:#x}")
    a(f"v_mov_b32 v{VSH}, {SHIFT_NEG:#x}")
    a(f"v_cmp_gt_u32 s[34:35], 4, v{T0}")

    def pu_out(t):
        d = D0 + 8 * (t % 3)
        for i in range(4):
            a(f"v_fma_f32 v{d + i}, v{d + i}, s24, v{VSH}")
        if t == 6:
            a("s_mov_b64 exec, s[34:35]")
        a(f"ds_write_b128 v{VPA}, {vr(d, 4)} offset:{PL + t * 16 * ROW}")
        a(f"ds_write_b128 v{VPA}, {vr(d + 4, 4)} offset:{PART0 + t * 16 * ROW}")
        if t == 6:
            a("s_mov_b64 exec, -1")

    for t in range(7):
        b = B0 + 8 * (t % 3)
        d = D0 + 8 * (t % 3)
        if t + 2 < 7:
            bn = B0 + 8 * ((t + 2) % 3)
            a(f"ds_read_b128 {vr(bn, 4)}, v{VXA} offset:{(t + 2) * 16 * XROW}")
            a(f"ds_read_b128 {vr(bn + 4, 4)}, v{VXA} offset:{(t + 2) * 16 * XROW + 64}")
        if t == 0:
            a("s_waitcnt lgkmcnt(2)")
        else:
            younger = (2 if t + 1 < 7 else 0) + (2 if t + 2 < 7 else 0) + (2 if t >= 2 else 0)
            a(f"s_waitcnt lgkmcnt({younger})")
        a(f"v_mfma_f32_16x16x32_bf16 {vr(d, 4)}, {vr(A0, 4)}, {vr(b, 4)}, 0")
        a(f"v_mfma_f32_16x16x32_bf16 {vr(d + 4, 4)}, {vr(A0 + 8, 4)}, {vr(b, 4)}, 0")
        a(f"v_mfma_f32_16x16x32_bf16 {vr(d, 4)}, {vr(A0 + 4, 4)}, {vr(b + 4, 4)}, {vr(d, 4)}")
        a(f"v_mfma_f32_16x16x32_bf16 {vr(d + 4, 4)}, {vr(A0 + 12, 4)}, {vr(b + 4, 4)}, {vr(d + 4, 4)}")
        if t >= 1:
            a("s_nop 1")
            pu_out(t - 1)
    a("s_nop 7")
    pu_out(6)
    a("s_setprio 0")
    a("s_branch L2_b2")

    a.label("L2_order")
    a("s_setprio 3")
    CN, BN, RK = 100, 104, 108
    S0 = 84
    a(f"v_lshlrev_b32 v{T0}, 4, v{LANE}")
    a(f"ds_read_b128 {vr(CN, 4)}, v{T0} offset:{HIST}")
    a(f"v_lshrrev_b32 v{T1}, 5, v{LANE}")
    a(f"v_and_b32 v{T2}, 31, v{LANE}")
    a(f"v_cmp_gt_u32 vcc, 25, v{T2}")
    a(f"v_lshlrev_b32 v{T3}, 8, v{T1}")
    a(f"v_add_u32 v{T3}, {63 * 4}, v{T3}")
    a(f"v_mov_b32 v{S0}, {(128 + 63) * 4}")
    a(f"v_cndmask_b32 v{T3}, v{S0}, v{T3}, vcc")
    a(f"v_mul_u32_u24 v{T2}, {4 * ROW}, v{T2}")
    a(f"v_mul_u32_u24 v{T1}, {4 * COL}, v{LANE}")
    a(f"v_lshl_or_b32 v{T1}, v{T1}, 16, v{T2}")
    a("s_waitcnt lgkmcnt(0)")
    a(f"v_max3_u32 v{S0 + 1}, v{CN}, v{CN + 1}, v{CN + 2}")
    a(f"v_max_u32 v{S0 + 1}, v{S0 + 1}, v{CN + 3}")
    for i in range(4):
        a(f"v_min_u32 v{BN + i}, 63, v{CN + i}")
        a(f"v_lshlrev_b32 v{BN + i}, 2, v{BN + i}")
        a(f"v_sub_u32 v{BN + i}, v{T3}, v{BN + i}")
        a(f"ds_add_rtn_u32 v{RK + i}, v{BN + i}, v{VONE} offset:{HIST2}")
    a(f"ds_read_b128 {vr(S0 + 4, 4)}, v{T0} offset:{HIST2}")
    a(f"v_cmp_lt_u32 vcc, {CAPK}, v{S0 + 1}")
    a("s_cbranch_vccz L2_nocap")
    a(f"v_mov_b32 v{S0}, 0")
    a(f"ds_write_b32 v{S0}, v{VONE} offset:{MISC}")
    a.label("L2_nocap")
    a("s_waitcnt lgkmcnt(0)")
    a(f"v_add_u32 v{S0 + 1}, v{S0 + 4}, v{S0 + 5}")
    a(f"v_add_u32 v{S0 + 2}, v{S0 + 1}, v{S0 + 6}")
    a(f"v_add_u32 v{S0 + 3}, v{S0 + 2}, v{S0 + 7}")
    a(f"v_mov_b32 v{S0}, v{S0 + 3}")
    wave_scan(a, S0)
    a(f"v_sub_u32 v{S0}, v{S0}, v{S0 + 3}")
    a(f"v_add_u32 v{S0 + 3}, v{S0}, v{S0 + 2}")
    a(f"v_add_u32 v{S0 + 2}, v{S0}, v{S0 + 1}")
    a(f"v_add_u32 v{S0 + 1}, v{S0}, v{S0 + 4}")
    a(f"ds_write_b128 v{T0}, {vr(S0, 4)} offset:{BASE2}")
    for i in range(4):
        a(f"ds_read_b32 v{S0 + 4 + i}, v{BN + i} offset:{BASE2}")
    a("s_waitcnt lgkmcnt(0)")
    for i in range(4):
        a(f"v_add_u32 v{RK + i}, v{RK + i}, v{S0 + 4 + i}")
        a(f"v_lshlrev_b32 v{RK + i}, 2, v{RK + i}")
        a(f"v_add_u32 v{S0}, {i * ((COL << 16) + ROW)}, v{T1}")
        a(f"ds_write_b32 v{RK + i}, v{CN + i} offset:{WCNT}")
        a(f"ds_write_b32 v{RK + i}, v{S0} offset:{WKEY}")
    a("s_setprio 0")
    a.label("L2_b2")
    a("s_waitcnt lgkmcnt(0)")
    stamp(a, 7)
    a("s_barrier")
    stamp(a, 8)
    NP = 4
    RA = 4
    PR = 8
    ACC = 12
    UR = 16
    DN = 20
    NM = 24
    DA = 28
    VB = 44
    IX = 76
    EV = 92
    VL = 100
    VFL = 101
    VFN = 102
    VRN = 103
    VIN = 104
    VWL = 105
    SC, SNL, SI = 61, 62, 63
    STR = 64
    a(f"s_mov_b32 s36, s{WS}")
    a(f"s_and_b32 s37, s{WS + 1}, 0xffff")
    a("s_or_b32 s37, s37, 0x1000000")
    a(f"s_mov_b32 s38, {N + 1}")
    a("s_mov_b32 s39, 0x20000")
    a(f"v_mov_b32 v{T0}, 0")
    a(f"ds_read_b32 v{T1}, v{T0} offset:{MISC}")
    a(f"v_lshlrev_b32 v{T2}, 4, v{LANE}")
    a(f"ds_read_b32 v{VWL}, v{T2} offset:{WCNT}")
    a(f"s_lshl_b32 s26, s{WAVE}, 4")
    a(f"v_add_u32 v{T2}, s26, v{VG4}")
    a(f"ds_read_b32 v{T3}, v{T2} offset:{WKEY}")
    for k in range(NP):
        a(f"v_mov_b32 v{IX + 4 * k + 1}, v{VJ}")
        a(f"v_mov_b32 v{IX + 4 * k + 3}, v{VJ}")
        a(f"v_mov_b32 v{EV + 2 * k}, 0")
        a(f"v_mov_b32 v{EV + 2 * k + 1}, 0")
    a(f"s_mov_b32 s66, {TINY:#x}")
    a(f"s_mov_b32 s67, {TINY:#x}")
    a(f"s_mov_b32 s68, {PART0}")
    a(f"s_mov_b32 s69, {PART1}")
    a("s_waitcnt lgkmcnt(0)")
    a(f"v_readfirstlane_b32 s24, v{T1}")
    a(f"v_add_u32 v{VWL}, 1, v{VWL}")
    a(f"v_lshrrev_b32 v{VWL}, 1, v{VWL}")
    a(f"v_max_u32 v{VWL}, {RA}, v{VWL}")
    a(f"v_lshrrev_b32 v{VL}, 16, v{T3}")
    a(f"v_add_u32 v{VL}, {LIST}, v{VL}")
    a("s_cmp_lg_u32 s24, 0")
    a("s_cbranch_scc1 L2_slow")
    for k in range(RA):
        a(f"ds_read_u16 v{IX + 4 * k}, v{VL} offset:{8 * k}")
        a(f"ds_read_u16 v{IX + 4 * k + 2}, v{VL} offset:{8 * k + 4}")
    a(f"v_and_b32 v{VRN}, 0xffff, v{T3}")
    a(f"v_add_u32 v{VRN}, v{VRN}, v{VJ}")
    a(f"v_add_u32 v{VFL}, {PART0}, v{VRN}")
    a(f"v_readlane_b32 s{SC}, v{VWL}, s{WAVE}")
    a(f"s_mov_b32 s{STR}, {RA}")
    a(f"s_mov_b32 s{SI}, s{WAVE}")
    if "noprio" not in OPT:
        a("s_setprio 3")
    a("s_waitcnt lgkmcnt(0)")
    for k in range(RA - 1):
        for h in range(2):
            a(f"buffer_load_dwordx4 {vr(VB + 8 * k + 4 * h, 4)}, {vr(IX + 4 * k + 2 * h, 2)}, s[36:39], 0 idxen offen")
    for k in range(RA):
        a(f"ds_read_u16_d16_hi v{EV + 2 * k}, v{VL} offset:{8 * k + 2}")
        a(f"ds_read_u16_d16_hi v{EV + 2 * k + 1}, v{VL} offset:{8 * k + 6}")
    a(f"ds_read_b128 {vr(PR, 4)}, v{VRN} offset:{PL}")
    a(f"ds_read_b128 {vr(UR, 4)}, v{VRN} offset:{PART0}")
    for i in range(4):
        a(f"v_mov_b32 v{ACC + i}, 0")
    a("s_waitcnt lgkmcnt(0)")
    stamp(a, 9)

    def mfma1(k, h):
        d = DA + 8 * (k & 1)
        a(f"v_mfma_f32_16x16x32_bf16 {vr(d + 4 * h, 4)}, {vr(ASEL, 4)}, {vr(VB + 8 * k + 4 * h, 4)}, {vr(PR, 4)}")

    def tail1(k):
        d = DA + 8 * (k & 1)
        vb = VB + 8 * k
        for h in range(2):
            a(f"v_pk_mul_f32 {vr(DN + 2 * h, 2)}, {vr(d + 2 * h, 2)}, {vr(d + 4 + 2 * h, 2)}")
        for h in range(2):
            a(f"v_pk_mul_f32 {vr(NM + 2 * h, 2)}, {vr(vb + 2 * h, 2)}, {vr(d + 4 + 2 * h, 2)}")
        for h in range(2):
            a(f"v_pk_fma_f32 {vr(NM + 2 * h, 2)}, {vr(vb + 4 + 2 * h, 2)}, {vr(d + 2 * h, 2)}, {vr(NM + 2 * h, 2)}")

    def rcp2(h):
        a(f"v_rcp_f32 v{DN + 2 * h}, v{DN + 2 * h}")
        a(f"v_rcp_f32 v{DN + 2 * h + 1}, v{DN + 2 * h + 1}")

    def tail2():
        a(f"v_pk_fma_f32 {vr(ACC, 2)}, {vr(NM, 2)}, {vr(DN, 2)}, {vr(ACC, 2)}")
        a(f"v_pk_fma_f32 {vr(ACC + 2, 2)}, {vr(NM + 2, 2)}, {vr(DN + 2, 2)}, {vr(ACC + 2, 2)}")

    def read_idx(k):
        a(f"ds_read_u16 v{IX + 4 * k}, v{VL} offset:{8 * (RA + k)}")
        a(f"ds_read_u16 v{IX + 4 * k + 2}, v{VL} offset:{8 * (RA + k) + 4}")

    def read_e(k):
        a(f"ds_read_u16_d16_hi v{EV + 2 * k}, v{VL} offset:{8 * (RA + k) + 2}")
        a(f"ds_read_u16_d16_hi v{EV + 2 * k + 1}, v{VL} offset:{8 * (RA + k) + 6}")

    def gather(k):
        p = (k - 1) % NP
        if "nogather" not in OPT:
            for h in range(2):
                a(f"buffer_load_dwordx4 {vr(VB + 8 * p + 4 * h, 4)}, {vr(IX + 4 * p + 2 * h, 2)}, s[36:39], 0 idxen offen")

    def front(k):
        d = DA + 8 * (k & 1)
        ep = EV + 2 * k
        for h in range(2):
            osel = "op_sel:[1,0,0] op_sel_hi:[1,1,1]" if h else "op_sel_hi:[0,1,1]"
            a(f"v_pk_fma_f32 {vr(d + 4 * h, 2)}, {vr(ep, 2)}, {vr(CV, 2)}, {vr(d + 4 * h, 2)} {osel}")
            a(f"v_pk_fma_f32 {vr(d + 4 * h + 2, 2)}, {vr(ep, 2)}, {vr(CV + 2, 2)}, {vr(d + 4 * h + 2, 2)} {osel}")
        read_e(k)
        for i in range(8):
            a(f"v_exp_f32_e64 v{d + i}, v{d + i} clamp")
            if i == 5:
                a(f"v_pk_add_f32 {vr(d, 2)}, {vr(d, 2)}, s[66:67]")
        a(f"v_pk_add_f32 {vr(d + 2, 2)}, {vr(d + 2, 2)}, s[66:67]")
        a(f"v_pk_add_f32 {vr(d + 4, 2)}, {vr(d + 4, 2)}, s[66:67]")
        a(f"v_pk_add_f32 {vr(d + 6, 2)}, {vr(d + 6, 2)}, s[66:67]")

    def flush():
        a(f"v_pk_fma_f32 {vr(UR, 2)}, {vr(ACC, 2)}, s[66:67], {vr(UR, 2)}")
        a(f"v_pk_fma_f32 {vr(UR + 2, 2)}, {vr(ACC + 2, 2)}, s[66:67], {vr(UR + 2, 2)}")
        a(f"ds_write_b128 v{VFL}, {vr(UR, 4)}")

    VW = 2 * (RA - 2)
    a(f"s_cmp_eq_u32 s{SC}, s{STR}")
    a("s_cbranch_scc1 L2_pop_first")
    a.label("L2_first_cont")
    if "nogather" not in OPT:
        a(f"s_waitcnt vmcnt({VW})")
    mfma1(0, 0)
    mfma1(0, 1)
    read_idx(0)
    a("s_nop 2")
    gather(0)
    a("s_branch L2_mid0")

    a.label("L2_loop")
    for k in range(NP):
        pk = (k - 1) % NP
        a(f"s_cmp_eq_u32 s{SC}, s{STR}")
        a(f"s_cbranch_scc1 L2_ev{k}")
        a.label(f"L2_cont{k}")
        tail1(pk)
        if "nogather" not in OPT:
            a(f"s_waitcnt vmcnt({VW})")
        mfma1(k, 0)
        rcp2(0)
        mfma1(k, 1)
        rcp2(1)
        read_idx(k)
        tail2()
        a("s_waitcnt lgkmcnt(4)")
        gather(k)
        a.label(f"L2_mid{k}")
        front(k)
        a(f"s_sub_u32 s{SC}, s{SC}, 1")
        if k == NP - 1:
            a(f"v_add_u32 v{VL}, {8 * NP}, v{VL}")
            a("s_branch L2_loop")

    def pop(k, cont):
        a(f"ds_add_rtn_u32 v{T2}, v{VQ}, v{VONE}")
        a(f"s_mov_b32 s{STR}, 0")
        a("s_waitcnt lgkmcnt(0)")
        a(f"v_readfirstlane_b32 s{SI}, v{T2}")
        a(f"s_mov_b32 s{SNL}, 0")
        a(f"v_mov_b32 v{VL}, {LIST + DUMMY_COL - 8 * (RA + k)}")
        a("s_nop 1")
        a(f"s_cmp_lt_u32 s{SI}, {NWIN}")
        a(f"s_cbranch_scc0 {cont}")
        a(f"s_lshl_b32 s26, s{SI}, 4")
        a(f"v_add_u32 v{T2}, s26, v{VG4}")
        a(f"ds_read_b32 v{T3}, v{T2} offset:{WKEY}")
        a(f"v_readlane_b32 s{SNL}, v{VWL}, s{SI}")
        a(f"s_cmp_lt_u32 s{SI}, {NWIN // 2}")
        a("s_cselect_b32 s26, s68, s69")
        a("s_waitcnt lgkmcnt(0)")
        a(f"v_and_b32 v{VRN}, 0xffff, v{T3}")
        a(f"v_lshrrev_b32 v{VL}, 16, v{T3}")
        a(f"v_add_u32 v{VRN}, v{VRN}, v{VJ}")
        a(f"v_add_u32 v{VL}, {LIST - 8 * (RA + k)}, v{VL}")
        a(f"v_add_u32 v{VFN}, s26, v{VRN}")
        a(f"v_mov_b32 v{VIN}, v{VFN}")
        a(f"s_cbranch_scc1 {cont}")
        a(f"v_mov_b32 v{VIN}, v{VZ}")
        a(f"s_branch {cont}")

    a.label("L2_pop_first")
    pop(0, "L2_first_cont")
    for k in range(NP):
        pk = (k - 1) % NP
        a.label(f"L2_ev{k}")
        a(f"s_cmp_eq_u32 s{STR}, 0")
        a(f"s_cbranch_scc1 L2_sw{k}")
        pop(k, f"L2_cont{k}")
        a.label(f"L2_sw{k}")
        tail1(pk)
        rcp2(0)
        rcp2(1)
        a("s_nop 0")
        tail2()
        flush()
        a(f"s_cmp_eq_u32 s{SNL}, 0")
        a("s_cbranch_scc1 L2_done")
        a(f"ds_read_b128 {vr(PR, 4)}, v{VRN} offset:{PL}")
        a(f"ds_read_b128 {vr(UR, 4)}, v{VIN}")
        for i in range(4):
            a(f"v_mov_b32 v{ACC + i}, 0")
        a(f"v_mov_b32 v{VFL}, v{VFN}")
        a(f"s_mov_b32 s{SC}, s{SNL}")
        a(f"s_mov_b32 s{STR}, {RA}")
        if "noprio" not in OPT:
            a(f"s_cmp_lt_u32 s{SI}, 40")
            a(f"s_cbranch_scc1 L2_p1_{k}")
            a("s_setprio 0")
            a(f"s_branch L2_pd_{k}")
            a.label(f"L2_p1_{k}")
            a(f"s_cmp_lt_u32 s{SI}, 32")
            a(f"s_cbranch_scc1 L2_p2_{k}")
            a("s_setprio 1")
            a(f"s_branch L2_pd_{k}")
            a.label(f"L2_p2_{k}")
            a(f"s_cmp_lt_u32 s{SI}, 25")
            a(f"s_cbranch_scc1 L2_pd_{k}")
            a("s_setprio 2")
            a.label(f"L2_pd_{k}")
        a(f"s_cmp_eq_u32 s{SC}, {RA}")
        a(f"s_cbranch_scc0 L2_sw2_{k}")
        pop(k, f"L2_sw2_{k}")
        a.label(f"L2_sw2_{k}")
        if "nogather" not in OPT:
            a(f"s_waitcnt vmcnt({VW}) lgkmcnt(0)")
        else:
            a("s_waitcnt lgkmcnt(0)")
        mfma1(k, 0)
        mfma1(k, 1)
        read_idx(k)
        a("s_nop 2")
        gather(k)
        a(f"s_branch L2_mid{k}")

    a.label("L2_slow")
    SSC, SCN, SRI = 61, 62, 63
    a(f"v_lshlrev_b32 v{T0}, 2, v{LANE}")
    a(f"v_lshlrev_b32 v{T1}, 1, v{LANE}")
    a(f"v_add_u32 v{T1}, {128 * 128}, v{T1}")
    a(f"global_load_ushort v{T2}, v{T1}, {sr(GW)}")
    a(f"s_mov_b32 s24, {LOG2E_NEG:#x}")
    a(f"s_mov_b32 s25, s{WAVE}")
    a("v_mov_b32 v9, 0")
    a.label("L2_slow_z")
    a(f"s_mul_i32 s26, s25, {ROW}")
    a(f"v_add_u32 v10, s26, v{T0}")
    a(f"ds_write_b32 v10, v9 offset:{PART1}")
    a("s_add_u32 s25, s25, 16")
    a(f"s_cmp_lt_u32 s25, {NPB}")
    a("s_cbranch_scc1 L2_slow_z")
    a("s_waitcnt vmcnt(0) lgkmcnt(0)")
    a(f"v_lshlrev_b32 v{T2}, 16, v{T2}")
    a(f"v_mul_f32 v8, s24, v{T2}")
    a(f"s_mov_b32 s{SSC}, 0")
    a.label("L2_slow_seg")
    a(f"s_cmp_ge_u32 s{SSC}, {NC}")
    a("s_cbranch_scc1 L2_done")
    a(f"s_lshl_b32 s24, s{SSC}, 8")
    a("s_add_u32 s24, s24, s2")
    a("s_lshl_b32 s24, s24, 2")
    a(f"s_add_u32 s24, s24, {SEG_OFF}")
    a(f"v_mov_b32 v{T1}, s24")
    a(f"global_load_dword v{T2}, v{T1}, {sr(WS)}")
    a("s_waitcnt vmcnt(0)")
    a(f"v_readfirstlane_b32 s25, v{T2}")
    a("s_nop 3")
    a(f"s_lshr_b32 s{SCN}, s25, 16")
    a("s_and_b32 s25, s25, 0xffff")
    a(f"s_mul_i32 s26, s{SSC}, {EPC}")
    a("s_add_u32 s26, s26, s25")
    a("s_lshl_b32 s26, s26, 3")
    a(f"s_add_u32 s{SRI}, s26, {REC_OFF}")
    a.label("L2_slow_rec")
    a(f"s_cmp_eq_u32 s{SCN}, 0")
    a("s_cbranch_scc1 L2_slow_next")
    a(f"v_mov_b32 v{T1}, s{SRI}")
    a(f"global_load_dwordx2 v[10:11], v{T1}, {sr(WS)}")
    a(f"s_add_u32 s{SRI}, s{SRI}, 8")
    a(f"s_sub_u32 s{SCN}, s{SCN}, 1")
    a("s_waitcnt vmcnt(0)")
    a("v_and_b32 v14, 127, v11")
    a("v_and_b32 v15, 15, v14")
    a("s_nop 0")
    a("v_readfirstlane_b32 s25, v15")
    a("s_nop 3")
    a(f"s_cmp_lg_u32 s25, s{WAVE}")
    a("s_cbranch_scc1 L2_slow_rec")
    a("v_and_b32 v18, 0xffff, v10")
    a(f"v_mov_b32 v19, v{T0}")
    a("buffer_load_dword v13, v[18:19], s[36:39], 0 idxen offen")
    a(f"v_mul_u32_u24 v14, {ROW}, v14")
    a(f"v_add_u32 v14, v14, v{T0}")
    a(f"ds_read_b32 v15, v14 offset:{PL}")
    a(f"ds_read_b32 v17, v14 offset:{PART1}")
    a("v_and_b32 v11, 0xffff0000, v10")
    a("s_waitcnt vmcnt(0) lgkmcnt(0)")
    a("v_lshlrev_b32 v16, 16, v13")
    a("v_add_f32 v16, v16, v15")
    a("v_fmac_f32 v16, v11, v8")
    a("v_exp_f32 v16, v16")
    a(f"s_mov_b32 s25, {TINY:#x}")
    a("v_add_f32 v16, s25, v16")
    a("v_rcp_f32 v16, v16")
    a("s_nop 0")
    a("v_mul_f32 v16, s25, v16")
    a("v_fmac_f32 v17, v16, v13")
    a(f"ds_write_b32 v14, v17 offset:{PART1}")
    a("s_waitcnt lgkmcnt(0)")
    a("s_branch L2_slow_rec")
    a.label("L2_slow_next")
    a(f"s_add_u32 s{SSC}, s{SSC}, 1")
    a("s_branch L2_slow_seg")

    a.label("L2_done")
    stamp(a, 10)
    a("s_setprio 0")
    a("s_waitcnt vmcnt(0) lgkmcnt(0)")
    a("s_barrier")
    stamp(a, 11)
    a(f"v_lshrrev_b32 v{T0}, 4, v{TID}")
    a(f"v_and_b32 v{T1}, 15, v{TID}")
    a(f"v_mul_u32_u24 v{T2}, {ROW}, v{T0}")
    a(f"v_lshl_add_u32 v{T2}, v{T1}, 4, v{T2}")
    a(f"s_mul_i32 s24, s2, {NPB * 128}")
    a(f"v_lshlrev_b32 v{T3}, 7, v{T0}")
    a(f"v_lshl_add_u32 v{T3}, v{T1}, 3, v{T3}")
    a(f"v_add_u32 v{T3}, s24, v{T3}")
    a(f"s_mov_b32 s24, {LOG2E_NEG:#x}")

    def silu_store(src, off):
        for i in range(4):
            a(f"v_add_f32 v{src + i}, v{src + i}, v{src + 4 + i}")
        for i in range(4):
            a(f"v_mul_f32 v{src + 4 + i}, s24, v{src + i}")
        for i in range(4):
            a(f"v_exp_f32 v{src + 4 + i}, v{src + 4 + i}")
        a("s_nop 0")
        for i in range(4):
            a(f"v_add_f32 v{src + 4 + i}, 1.0, v{src + 4 + i}")
        for i in range(4):
            a(f"v_rcp_f32 v{src + 4 + i}, v{src + 4 + i}")
        a("s_nop 0")
        for i in range(4):
            a(f"v_mul_f32 v{src + i}, v{src + i}, v{src + 4 + i}")
        a(f"v_cvt_pk_bf16_f32 v{src + 4}, v{src}, v{src + 1}")
        a(f"v_cvt_pk_bf16_f32 v{src + 5}, v{src + 2}, v{src + 3}")
        a(f"global_store_dwordx2 v{off}, {vr(src + 4, 2)}, {sr(OUT)}")

    a(f"ds_read_b128 v[8:11], v{T2} offset:{PART0}")
    a(f"ds_read_b128 v[12:15], v{T2} offset:{PART1}")
    a(f"s_cmp_lt_u32 s{WAVE}, 9")
    a("s_cbranch_scc0 L2_ep1")
    a(f"v_add_u32 v7, {64 * ROW}, v{T2}")
    a(f"ds_read_b128 v[16:19], v7 offset:{PART0}")
    a(f"ds_read_b128 v[20:23], v7 offset:{PART1}")
    a("s_waitcnt lgkmcnt(0)")
    a(f"v_add_u32 v6, {64 * 128}, v{T3}")
    silu_store(16, 6)
    a.label("L2_ep1")
    a("s_waitcnt lgkmcnt(0)")
    silu_store(8, T3)
    if "dbgt" in OPT:
        a("s_waitcnt vmcnt(0)")
    dbg_time(a, 1, 3)
    stamp(a, 12)
    if STAMPS:
        a("s_waitcnt vmcnt(0)")
    stamp(a, 13)
    stamp(a, 21, True)
    stamp_flush(a, 1)
    a.label("L2_end")
    a("s_endpgm")
    return LDS, 128


def descriptor(a, name, vgprs, sgprs=80):
    a(f".amdhsa_kernel {name}")
    a(f"  .amdhsa_next_free_vgpr {vgprs}")
    a(f"  .amdhsa_next_free_sgpr {sgprs}")
    a(f"  .amdhsa_accum_offset {vgprs}")
    a("  .amdhsa_group_segment_fixed_size 0")
    a("  .amdhsa_kernarg_size 80")
    a("  .amdhsa_user_sgpr_count 2")
    a("  .amdhsa_user_sgpr_kernarg_segment_ptr 1")
    a("  .amdhsa_system_sgpr_workgroup_id_x 1")
    a("  .amdhsa_float_denorm_mode_32 3")
    a(".end_amdhsa_kernel")


def main():
    global STAMPS, ST, STT, STR_
    if "--stamps" in sys.argv:
        STAMPS = True
        sys.argv.remove("--stamps")
    for o in OPT:
        if o.startswith("st="):
            ST = STT = STR_ = " " + o[3:].replace("+", " ")
        if o.startswith("stt="):
            STT = " " + o[4:].replace("+", " ")
        if o.startswith("str="):
            STR_ = " " + o[4:].replace("+", " ")
    body = Asm()
    body(".amdgcn_target \"amdgcn-amd-amdhsa--gfx950\"")
    body(".text")
    lds1, v1 = gen_k1(body)
    lds2, v2 = gen_k2(body)
    body(".section .rodata,\"a\"")
    body(".p2align 6")
    descriptor(body, K1, 128 if (STAMPS or 'dbgt' in OPT) else v1)
    body(".p2align 6")
    descriptor(body, K2, v2)
    head = [
        "; Edge-gated MPNN layer in two launches (generated by a hand-written generator script).",
        "; launch 1: partitions the edges by destination bucket and builds the per-node source table",
        "; launch 2: per bucket of 100 nodes: sorts its edges, gated aggregation, SiLU epilogue",
        f"; @launch kernel={K1} grid=({NC},1,1) block=(1024,1,1) lds={lds1}",
        f"; @launch kernel={K2} grid=({NB},1,1) block=(1024,1,1) lds={lds2}",
    ]
    out = "\n".join(head) + "\n" + body.text()
    path = sys.argv[1] if len(sys.argv) > 1 else "standalone__edge_featured_mpnn_egc__graph.s"
    open(path, "w").write(out)
    print("wrote", path, "lds", lds1, lds2)


if __name__ == "__main__":
    main()
```

```python
import os
import sys

N = 25000
E = 800000
NB = 250
NPB = 100
NC = 250
EPC = 3200
HALF = 12500

T_OFF = 0
REC_OFF = int(os.environ.get('REC_OFF', '0x700000'), 0)
SEG_OFF = REC_OFF + 0x700000

LOG2E_NEG = 0xBFB8AA3B
SHIFT_NEG = 0xC2700000
TINY = 0x21800000
ROW = 272
XROW = 144

K1 = "egc_part_kernel"
K2 = "standalone__edge_featured_mpnn_egc__graph_kernel"

OPT = set(os.environ.get("OPT", "").split(","))
PRIO_A = int(os.environ.get('PRIO_A', '25'))
PRIO_B = int(os.environ.get('PRIO_B', '38'))
STAMPS = False
STAMP_OFF = 0x2000000
SV = 127

X, EA, SRC, DST, UW, VW, GW, OUT, WS = 4, 6, 8, 10, 12, 14, 16, 18, 20
WAVE = 22


def stamp(a, i, real=False):
    if not STAMPS:
        return
    a(f"s_mem{'real' if real else ''}time s[70:71]")
    a("s_waitcnt lgkmcnt(0)")
    a(f"v_writelane_b32 v{SV}, s70, {i}")


TIME_OFF = 0x2800000


def dbg_time(a, which, slot, neg=False, tag=""):
    if "dbgt" not in OPT:
        return
    a("v_readfirstlane_b32 s78, v0")
    a("s_nop 3")
    a("s_cmp_lg_u32 s78, 0")
    a(f"s_cbranch_scc1 L_dbg_{which}_{slot}")
    a("s_memrealtime s[70:71]")
    a(f"s_load_dwordx2 s[74:75], s[0:1], {72 if which == 0 else 64}")
    a("s_waitcnt lgkmcnt(0)")
    if neg:
        a("s_not_b32 s70, s70")
    a("v_mov_b32 v125, s70")
    a("s_mov_b64 s[76:77], exec")
    a("s_mov_b64 exec, 1")
    if which == 0:
        a("s_lshl_b32 s78, s2, 3")
        a(f"s_add_u32 s78, s78, {TIME_OFF + slot * 4}")
        a("v_mov_b32 v126, s78")
        a("global_store_dword v126, v125, s[74:75]")
    else:
        a(f"v_mov_b32 v126, {slot * 4}")
        a("global_atomic_umax v126, v125, s[74:75]")
    a("s_mov_b64 exec, s[76:77]")
    if which == 1 and slot == 2:
        a("s_cmp_lg_u32 s2, 0")
        a(f"s_cbranch_scc1 L_dbg_{which}_{slot}")
        a("s_load_dwordx2 s[76:77], s[0:1], 72")
        a("s_waitcnt lgkmcnt(0)")
        for r in range(4):
            a(f"v_add_u32 v124, {64 * r}, v0")
            a("v_min_u32 v124, 249, v124")
            a("v_lshlrev_b32 v124, 3, v124")
            a(f"v_add_u32 v124, {TIME_OFF}, v124")
            a("global_load_dwordx2 v[122:123], v124, s[76:77]")
            a("s_waitcnt vmcnt(0)")
            a("v_mov_b32 v126, 16")
            a("global_atomic_umax v126, v122, s[74:75]")
            a("v_mov_b32 v126, 20")
            a("global_atomic_umax v126, v123, s[74:75]")
        a("s_waitcnt vmcnt(0)")
    a.label(f"L_dbg_{which}_{slot}")


def stamp_flush(a, which):
    if not STAMPS:
        return
    a("s_lshl_b32 s72, s2, 4")
    a(f"s_add_u32 s72, s72, s{WAVE}")
    a("s_lshl_b32 s72, s72, 8")
    a(f"s_add_u32 s72, s72, {STAMP_OFF + which * 0x200000}")
    a("v_and_b32 v126, 63, v0")
    a("v_lshlrev_b32 v126, 2, v126")
    a("v_add_u32 v126, s72, v126")
    a(f"global_store_dword v126, v{SV}, s[20:21]")


class Asm:
    def __init__(self):
        self.lines = []

    def __call__(self, s=""):
        for ln in s.split("\n"):
            self.lines.append(ln if ln.strip().endswith(":") else "    " + ln.strip())

    def label(self, s):
        self.lines.append(s + ":")

    def text(self):
        return "\n".join(self.lines) + "\n"


def vr(a, n):
    return f"v[{a}:{a + n - 1}]"


def sr(a, n=2):
    return f"s[{a}:{a + n - 1}]"


def wave_scan(a, v):
    for sh in (1, 2, 4, 8):
        a("s_nop 1")
        a(f"v_add_u32_dpp v{v}, v{v}, v{v} row_shr:{sh} row_mask:0xf bank_mask:0xf bound_ctrl:0")
    a("s_nop 1")
    a(f"v_add_u32_dpp v{v}, v{v}, v{v} row_bcast:15 row_mask:0xa bank_mask:0xf")
    a("s_nop 1")
    a(f"v_add_u32_dpp v{v}, v{v}, v{v} row_bcast:31 row_mask:0xc bank_mask:0xf")
    a("s_nop 1")


WSBASE = int(os.environ.get("WSBASE", "0"), 0)


def load_ptrs(a):
    a("s_load_dwordx16 s[4:19], s[0:1], 0")
    a("s_load_dwordx2 s[20:21], s[0:1], 72")


def fix_ws(a):
    if WSBASE:
        a(f"s_add_u32 s20, s20, {WSBASE}")
        a("s_addc_u32 s21, s21, 0")


ST = ""
STT = ""
STR_ = ""
STO = ""


class Node:
    def __init__(self, a, WST, XST, tid, lane, vw, vx, t):
        self.a, self.WST, self.XST = a, WST, XST
        self.tid, self.lane, self.vw, self.vx, self.t = tid, lane, vw, vx, t

    def issue_loads(self, p0, off0, p1):
        a, t = self.a, self.t
        a(f"s_cmp_lt_u32 s{WAVE}, 8")
        a(f"s_cselect_b32 s24, s{p0}, s{p1}")
        a(f"s_cselect_b32 s25, s{p0 + 1}, s{p1 + 1}")
        if off0:
            a(f"s_cselect_b32 s26, {off0}, 0")
            a("s_add_u32 s24, s24, s26")
            a("s_addc_u32 s25, s25, 0")
        a(f"v_and_b32 v{t}, 511, v{self.tid}")
        a(f"v_lshlrev_b32 v{t}, 4, v{t}")
        a(f"global_load_dwordx4 {vr(self.vw, 4)}, v{t}, s[24:25]")
        a(f"v_min_u32 v{t}, {NPB * 8 - 1}, v{self.tid}")
        a(f"v_lshlrev_b32 v{t}, 4, v{t}")
        a(f"s_mul_i32 s26, s2, {NPB * 128}")
        a(f"v_add_u32 v{t}, s26, v{t}")
        a(f"global_load_dwordx4 {vr(self.vx, 4)}, v{t}, {sr(X)}")

    def stage(self):
        a, t, tid = self.a, self.t, self.tid
        a(f"v_bfe_u32 v{t}, v{tid}, 4, 1")
        a(f"v_bfe_u32 v{t + 1}, v{tid}, 6, 1")
        a(f"v_lshl_or_b32 v{t}, v{t + 1}, 1, v{t}")
        a(f"v_lshlrev_b32 v{t}, 5, v{t}")
        a(f"v_lshlrev_b32 v{t + 1}, 4, v{tid}")
        a(f"v_xor_b32 v{t}, v{t}, v{t + 1}")
        a(f"v_add_u32 v{t}, {self.WST}, v{t}")
        a(f"ds_write_b128 v{t}, {vr(self.vw, 4)}")
        a(f"v_lshrrev_b32 v{t}, 3, v{tid}")
        a(f"v_mul_u32_u24 v{t}, {XROW}, v{t}")
        a(f"v_and_b32 v{t + 1}, 7, v{tid}")
        a(f"v_lshl_add_u32 v{t}, v{t + 1}, 4, v{t}")
        a(f"v_add_u32 v{t}, {self.XST}, v{t}")
        a(f"v_cmp_gt_u32 vcc, {NPB * 8}, v{tid}")
        a("s_and_saveexec_b64 s[32:33], vcc")
        a(f"ds_write_b128 v{t}, {vr(self.vx, 4)}")
        a("s_mov_b64 exec, s[32:33]")

    def stage_addr(self, vw_a, vx_a, t):
        a, tid = self.a, self.tid
        a(f"v_bfe_u32 v{vw_a}, v{tid}, 4, 1")
        a(f"v_bfe_u32 v{t}, v{tid}, 6, 1")
        a(f"v_lshl_or_b32 v{vw_a}, v{t}, 1, v{vw_a}")
        a(f"v_lshlrev_b32 v{vw_a}, 5, v{vw_a}")
        a(f"v_lshlrev_b32 v{t}, 4, v{tid}")
        a(f"v_xor_b32 v{vw_a}, v{vw_a}, v{t}")
        a(f"v_add_u32 v{vw_a}, {self.WST}, v{vw_a}")
        a(f"v_lshrrev_b32 v{vx_a}, 3, v{tid}")
        a(f"v_mul_u32_u24 v{vx_a}, {XROW}, v{vx_a}")
        a(f"v_and_b32 v{t}, 7, v{tid}")
        a(f"v_lshl_add_u32 v{vx_a}, v{t}, 4, v{vx_a}")
        a(f"v_add_u32 v{vx_a}, {self.XST}, v{vx_a}")

    def stage_write(self, vw_a, vx_a):
        a, tid = self.a, self.tid
        a(f"ds_write_b128 v{vw_a}, {vr(self.vw, 4)}")
        a(f"v_cmp_gt_u32 vcc, {NPB * 8}, v{tid}")
        a("s_and_saveexec_b64 s[32:33], vcc")
        a(f"ds_write_b128 v{vx_a}, {vr(self.vx, 4)}")
        a("s_mov_b64 exec, s[32:33]")

    def pair_reads(self, aop, xop, vloc):
        a, t, lane = self.a, self.t, self.lane
        a(f"s_and_b32 s27, s{WAVE}, 1")
        a("s_lshl_b32 s27, s27, 1")
        a(f"s_lshr_b32 s26, s{WAVE}, 1")
        a(f"v_and_b32 v{t}, 15, v{lane}")
        a(f"v_lshrrev_b32 v{t + 1}, 4, v{lane}")
        a("s_lshl_b32 s26, s26, 4")
        a(f"v_add_u32 v{vloc}, s26, v{t}")
        a(f"v_mul_u32_u24 v{t + 2}, {XROW}, v{vloc}")
        a(f"v_lshl_add_u32 v{t + 2}, v{t + 1}, 4, v{t + 2}")
        a(f"v_add_u32 v{t + 2}, {self.XST}, v{t + 2}")
        a(f"ds_read_b128 {vr(xop, 4)}, v{t + 2}")
        a(f"ds_read_b128 {vr(xop + 4, 4)}, v{t + 2} offset:64")
        a(f"v_lshrrev_b32 v{t + 2}, 3, v{t}")
        a(f"v_and_b32 v{xop + 8}, 1, v{t + 1}")
        a(f"v_lshl_or_b32 v{t + 2}, v{xop + 8}, 1, v{t + 2}")
        a(f"v_xor_b32 v{t + 2}, s27, v{t + 2}")
        a(f"v_lshlrev_b32 v{t + 2}, 5, v{t + 2}")
        a(f"v_lshrrev_b32 v{xop + 8}, 2, v{t}")
        a(f"v_lshl_add_u32 v{xop + 8}, v{t + 1}, 3, v{xop + 8}")
        a(f"v_lshl_add_u32 v{t + 2}, v{xop + 8}, 7, v{t + 2}")
        a(f"v_and_b32 v{xop + 8}, 3, v{t}")
        a(f"v_lshl_add_u32 v{t + 2}, v{xop + 8}, 3, v{t + 2}")
        a(f"v_add_u32 v{t + 2}, {self.WST}, v{t + 2}")
        assert self.WST % 128 == 0
        for c in range(2):
            if c:
                a(f"v_xor_b32 v{t + 2}, 32, v{t + 2}")
            for m in range(2):
                for ks in range(2):
                    for hh in range(2):
                        r = aop + c * 16 + (m * 2 + ks) * 4 + hh * 2
                        a(f"ds_read_b64_tr_b16 {vr(r, 2)}, v{t + 2} offset:{m * 8192 + ks * 4096 + hh * 512}")

    def pair_mfma(self, aop, xop, dd):
        a = self.a
        for ks in range(2):
            for c in range(2):
                for m in range(2):
                    d = dd + (c * 2 + m) * 4
                    cop = "0" if ks == 0 else vr(d, 4)
                    a(f"v_mfma_f32_16x16x32_bf16 {vr(d, 4)}, {vr(aop + c * 16 + (m * 2 + ks) * 4, 4)}, {vr(xop + 4 * ks, 4)}, {cop}")


def copy_out(a, lds_addr_fn, goff_sgpr, t0, t1, d0, d1, tag):
    ST = STT if tag == "t" else STR_
    lds_addr_fn(0, t1)
    a(f"ds_read_b128 {vr(d0, 4)}, v{t1}")
    a(f"v_lshlrev_b32 v{t0}, 4, v0")
    a(f"v_add_u32 v{t0}, s{goff_sgpr}, v{t0}")
    a(f"s_cmp_gt_u32 s{WAVE}, 8")
    a(f"s_cbranch_scc1 L1_one{tag}")
    a(f"v_add_u32 v{t1}, 1024, v0")
    lds_addr_fn(t1, t1)
    a(f"ds_read_b128 {vr(d1, 4)}, v{t1}")
    a(f"v_add_u32 v{t1}, 16384, v{t0}")
    a("s_waitcnt lgkmcnt(0)")
    a(f"global_store_dwordx4 v{t1}, {vr(d1, 4)}, {sr(WS)}{ST}")
    a.label(f"L1_one{tag}")
    a("s_waitcnt lgkmcnt(0)")
    a(f"global_store_dwordx4 v{t0}, {vr(d0, 4)}, {sr(WS)}{ST}")


def gen_k1(a):
    HIST, BASE = 0, 1024
    WST = 2048
    XST = WST + 16384
    TST = XST + 112 * XROW
    STG = TST + NPB * ROW
    LDS = STG + EPC * 8
    TID, LANE = 0, 1
    T0, T1, T2, T3 = 2, 3, 14, 15
    VD, VS, VE = 4, 8, 12
    VW_, VX_ = 16, 20
    XOP = 24
    AOP = 36
    DD = 68
    PK = 84
    VLOC = 87
    VB, VR, VH = 88, 92, 96
    NT = 100
    nd = Node(a, WST, XST, TID, LANE, VW_, VX_, NT)

    a(f".globl {K1}")
    a(".p2align 8")
    a(f".type {K1},@function")
    a.label(K1)
    a(f"s_cmp_ge_u32 s2, {NC}")
    a("s_cbranch_scc1 L1_end")
    dbg_time(a, 0, 0, True)
    stamp(a, 0)
    stamp(a, 20, True)
    load_ptrs(a)
    a(f"v_and_b32 v{LANE}, 63, v{TID}")
    a(f"v_lshrrev_b32 v{T0}, 6, v{TID}")
    a(f"v_lshlrev_b32 v{T1}, 2, v{TID}")
    a(f"v_readfirstlane_b32 s{WAVE}, v{T0}")
    a(f"v_mov_b32 v{T0}, 0")
    a(f"s_cmp_lt_u32 s{WAVE}, 4")
    a("s_cbranch_scc0 L1_nozero")
    a(f"ds_write_b32 v{T1}, v{T0} offset:{HIST}")
    a.label("L1_nozero")
    a("s_waitcnt lgkmcnt(0)")
    fix_ws(a)
    stamp(a, 1)
    nd.issue_loads(GW, 8192, VW)
    a("s_barrier")
    a(f"s_cmp_gt_u32 s{WAVE}, 12")
    a("s_cbranch_scc1 L1_noedge0")
    a(f"s_mul_i32 s24, s2, {EPC * 4}")
    a(f"v_lshlrev_b32 v{T0}, 4, v{TID}")
    a(f"v_add_u32 v{T0}, s24, v{T0}")
    a(f"v_lshrrev_b32 v{T1}, 1, v{T0}")
    a(f"v_cmp_gt_u32 vcc, {EPC // 4}, v{TID}")
    a("s_and_saveexec_b64 s[32:33], vcc")
    a(f"global_load_dwordx4 {vr(VD, 4)}, v{T0}, {sr(DST)}")
    a(f"global_load_dwordx4 {vr(VS, 4)}, v{T0}, {sr(SRC)}")
    a(f"global_load_dwordx2 {vr(VE, 2)}, v{T1}, {sr(EA)}")
    a("s_mov_b64 exec, s[32:33]")
    a("s_waitcnt vmcnt(3)")
    a("s_branch L1_wx")
    a.label("L1_noedge0")
    a("s_waitcnt vmcnt(0)")
    a.label("L1_wx")
    stamp(a, 2)
    nd.stage()
    a("s_waitcnt lgkmcnt(0)")
    a("s_barrier")
    stamp(a, 3)
    a(f"s_cmp_gt_u32 s{WAVE}, 13")
    a("s_cbranch_scc1 L1_notask")
    nd.pair_reads(AOP, XOP, VLOC)
    a(f"v_mul_u32_u24 v{T0}, {ROW}, v{VLOC}")
    a(f"v_lshrrev_b32 v{T1}, 4, v{LANE}")
    a(f"v_lshl_add_u32 v{T0}, v{T1}, 4, v{T0}")
    a("s_lshl_b32 s30, s27, 6")
    a(f"s_add_u32 s30, s30, {TST}")
    a(f"v_add_u32 v{T0}, s30, v{T0}")
    a(f"s_mov_b32 s24, {LOG2E_NEG:#x}")
    a("s_mov_b32 s25, 0x7fff0000")
    a("s_mov_b32 s30, 0x7fffffff")
    a(f"v_cmp_gt_u32 vcc, {NPB}, v{VLOC}")
    a("s_waitcnt lgkmcnt(0)")
    nd.pair_mfma(AOP, XOP, DD)
    a("s_nop 5")
    for c in range(2):
        DQ, DH = DD + c * 8, DD + c * 8 + 4
        if c == 1:
            pass
        for i in range(4):
            a(f"v_mul_f32 v{DQ + i}, s24, v{DQ + i}")
        a(f"v_cvt_pk_bf16_f32 v{PK}, v{DQ}, v{DQ + 1}")
        a(f"v_cvt_pk_bf16_f32 v{PK + 1}, v{DQ + 2}, v{DQ + 3}")
        for i in range(4):
            h = DH + i
            sel = "WORD_1" if i % 2 else "WORD_0"
            a(f"v_and_b32 v{DQ + i}, s30, v{h}")
            a(f"v_add_u32 v{DQ + i}, 0x8000, v{DQ + i}")
            a(f"v_sub_u32_sdwa v{DQ + i}, v{DQ + i}, v{PK + i // 2} clamp dst_sel:DWORD dst_unused:UNUSED_PAD src0_sel:DWORD src1_sel:{sel}")
        for i in range(4):
            h = DH + i
            a(f"v_bfi_b32 v{h}, s25, v{DQ + i}, v{h}")
        for i in range(4):
            h = DH + i
            sel = "WORD_1" if i % 2 else "WORD_0"
            a(f"v_mov_b32_sdwa v{h}, v{PK + i // 2} dst_sel:WORD_0 dst_unused:UNUSED_PRESERVE src0_sel:{sel}")
        a("s_and_saveexec_b64 s[32:33], vcc")
        a(f"ds_write_b128 v{T0}, {vr(DH, 4)} offset:{c * 64}")
        a("s_mov_b64 exec, s[32:33]")
    a.label("L1_notask")
    a("s_waitcnt lgkmcnt(0)")
    stamp(a, 4)
    a("s_barrier")

    a(f"s_sub_u32 s24, s{WAVE}, 13")
    a("s_cmp_lt_u32 s24, 2")
    a("s_cbranch_scc0 L1_not")
    a(f"v_lshrrev_b32 v{T0}, 4, v{LANE}")
    a(f"v_mul_u32_u24 v{T0}, {ROW}, v{T0}")
    a(f"v_and_b32 v{T1}, 15, v{LANE}")
    a(f"v_lshl_add_u32 v{T0}, v{T1}, 4, v{T0}")
    a(f"s_mul_i32 s25, s24, {13 * 4 * ROW}")
    a(f"s_add_u32 s25, s25, {TST}")
    a(f"v_add_u32 v{T0}, s25, v{T0}")
    a(f"s_mul_i32 s26, s2, {NPB * 256}")
    a(f"s_mul_i32 s25, s24, {13 * 1024}")
    a("s_add_u32 s26, s26, s25")
    a(f"v_lshlrev_b32 v{T1}, 4, v{LANE}")
    a(f"v_add_u32 v{T1}, s26, v{T1}")
    for n in range(12):
        a(f"ds_read_b128 {vr(16 + 4 * n, 4)}, v{T0} offset:{n * 4 * ROW}")
    a(f"v_add_u32 v{T2}, {12 * 1024}, v{T1}")
    a("s_cmp_eq_u32 s24, 0")
    a("s_cbranch_scc0 L1_t12")
    a(f"ds_read_b128 {vr(64, 4)}, v{T0} offset:{12 * 4 * ROW}")
    a("s_waitcnt lgkmcnt(0)")
    a(f"global_store_dwordx4 v{T2}, {vr(64, 4)}, {sr(WS)}{STT}")
    a.label("L1_t12")
    for n in range(12):
        a(f"s_waitcnt lgkmcnt({max(0, 11 - n)})")
        a(f"global_store_dwordx4 v{T1}, {vr(16 + 4 * n, 4)}, {sr(WS)} offset:{(n % 4) * 1024}{STT}")
        if n % 4 == 3:
            a(f"v_add_u32 v{T1}, 4096, v{T1}")
    if "readback" in OPT:
        a("s_waitcnt vmcnt(0)")
        a(f"v_subrev_u32 v{T1}, {3 * 4096}, v{T1}")
        for n in range(12):
            a(f"global_load_dwordx4 {vr(16 + 4 * n, 4)}, v{T1}, {sr(WS)} offset:{(n % 4) * 1024}")
            if n % 4 == 3:
                a(f"v_add_u32 v{T1}, 4096, v{T1}")
        a(f"global_load_dwordx4 {vr(64, 4)}, v{T2}, {sr(WS)}")
        a("s_waitcnt vmcnt(0)")
    if "wbl2" in OPT:
        a("s_waitcnt vmcnt(0)")
        a("buffer_wbl2 sc1")
        a("s_waitcnt vmcnt(0)")
    stamp(a, 5)
    if STAMPS:
        a("s_waitcnt vmcnt(0)")
    stamp(a, 11)
    stamp(a, 21, True)
    stamp_flush(a, 0)
    a("s_endpgm")
    a.label("L1_not")
    stamp(a, 5)
    a(f"s_cmp_gt_u32 s{WAVE}, 12")
    a("s_cbranch_scc1 L1_noedge1")
    a(f"v_cmp_gt_u32 vcc, {EPC // 4}, v{TID}")
    a("s_and_saveexec_b64 s[32:33], vcc")
    a(f"v_mov_b32 v{T1}, 1")
    a("s_movk_i32 s24, -100")
    a("s_mov_b32 s25, 0xffff0000")
    a("s_movk_i32 s30, 128")
    a("s_waitcnt vmcnt(0)")
    for i in range(4):
        a(f"v_mul_u32_u24 v{T0}, 5243, v{VD + i}")
        a(f"v_lshrrev_b32 v{T0}, 19, v{T0}")
        a(f"v_lshlrev_b32 v{VB + i}, 2, v{T0}")
        a(f"ds_add_rtn_u32 v{VR + i}, v{VB + i}, v{T1} offset:{HIST}")
        a(f"v_mad_i32_i24 v{T2}, v{T0}, s24, v{VD + i}")
        a(f"v_lshrrev_b32 v{T3}, 5, v{VS + i}")
        a(f"v_and_or_b32 v{VH + i}, v{T3}, s30, v{T2}")
        if i % 2 == 0:
            a(f"v_lshl_or_b32 v{VS + i}, v{VE + i // 2}, 16, v{VS + i}")
        else:
            a(f"v_and_or_b32 v{VS + i}, v{VE + i // 2}, s25, v{VS + i}")
    a("s_mov_b64 exec, s[32:33]")
    a.label("L1_noedge1")
    a("s_waitcnt lgkmcnt(0)")
    stamp(a, 6)
    a("s_barrier")
    stamp(a, 7)
    a(f"s_cmp_eq_u32 s{WAVE}, 15")
    a("s_cbranch_scc0 L1_b2")
    C0 = 24
    a(f"v_lshlrev_b32 v{T0}, 4, v{LANE}")
    a(f"ds_read_b128 {vr(C0, 4)}, v{T0} offset:{HIST}")
    a("s_waitcnt lgkmcnt(0)")
    P = 28
    a(f"v_add_u32 v{P + 2}, v{C0}, v{C0 + 1}")
    a(f"v_add_u32 v{P + 3}, v{P + 2}, v{C0 + 2}")
    a(f"v_add_u32 v32, v{P + 3}, v{C0 + 3}")
    a("v_mov_b32 v33, v32")
    wave_scan(a, 33)
    a(f"v_sub_u32 v{P}, v33, v32")
    a(f"v_add_u32 v{P + 1}, v{P}, v{C0}")
    a(f"v_add_u32 v{P + 2}, v{P}, v{P + 2}")
    a(f"v_add_u32 v{P + 3}, v{P}, v{P + 3}")
    a(f"ds_write_b128 v{T0}, {vr(P, 4)} offset:{BASE}")
    a("s_lshl_b32 s24, s2, 10")
    a(f"s_add_u32 s24, s24, {SEG_OFF}")
    a(f"v_add_u32 v{T1}, s24, v{T0}")
    for i in range(4):
        a(f"v_lshl_or_b32 v{36 + i}, v{C0 + i}, 16, v{P + i}")
    a(f"global_store_dwordx4 v{T1}, v[36:39], {sr(WS)}{ST}")
    a("s_cmp_lg_u32 s2, 0")
    a("s_cbranch_scc1 L1_b2")
    a(f"v_mov_b32 v{T2}, 0")
    a(f"v_lshlrev_b32 v{T3}, 2, v{LANE}")
    a(f"v_add_u32 v{T3}, {N * 256}, v{T3}")
    a(f"global_store_dword v{T3}, v{T2}, {sr(WS)}{ST}")
    a.label("L1_b2")
    a("s_waitcnt lgkmcnt(0)")
    stamp(a, 8)
    a("s_barrier")
    a(f"s_cmp_gt_u32 s{WAVE}, 12")
    a("s_cbranch_scc1 L1_noedge2")
    a(f"v_cmp_gt_u32 vcc, {EPC // 4}, v{TID}")
    a("s_and_saveexec_b64 s[32:33], vcc")
    for i in range(4):
        a(f"ds_read_b32 v{VD + i}, v{VB + i} offset:{BASE}")
    a(f"s_mov_b32 s24, {STG}")
    for i in range(4):
        a("s_waitcnt lgkmcnt(3)")
        a(f"v_add_u32 v{VD + i}, v{VD + i}, v{VR + i}")
        a(f"v_lshl_add_u32 v{VD + i}, v{VD + i}, 3, s24")
        a(f"ds_write2_b32 v{VD + i}, v{VS + i}, v{VH + i} offset0:0 offset1:1")
    a("s_mov_b64 exec, s[32:33]")
    a.label("L1_noedge2")
    a("s_waitcnt lgkmcnt(0)")
    stamp(a, 9)
    a("s_barrier")

    a(f"s_min_u32 s25, s{WAVE}, 13")
    a("s_lshl_b32 s25, s25, 10")
    a(f"v_lshlrev_b32 v{T0}, 4, v{LANE}")
    a(f"v_add_u32 v{T0}, s25, v{T0}")
    a(f"v_add_u32 v{T1}, {STG}, v{T0}")
    a(f"ds_read_b128 v[24:27], v{T1}")
    a(f"s_mul_i32 s24, s2, {EPC * 8}")
    a(f"s_add_u32 s24, s24, {REC_OFF}")
    a(f"v_add_u32 v{T0}, s24, v{T0}")
    a(f"s_cmp_gt_u32 s{WAVE}, 10")
    a("s_cbranch_scc1 L1_oner")
    a(f"ds_read_b128 v[28:31], v{T1} offset:{14 * 1024}")
    a(f"v_add_u32 v{T1}, {14 * 1024}, v{T0}")
    a("s_waitcnt lgkmcnt(0)")
    a(f"global_store_dwordx4 v{T1}, v[28:31], {sr(WS)}{STR_}")
    a.label("L1_oner")
    a("s_waitcnt lgkmcnt(0)")
    a(f"global_store_dwordx4 v{T0}, v[24:27], {sr(WS)}{STR_}")
    for o in OPT:
        if o.startswith("delay="):
            n = int(o[6:])
            a(f"s_movk_i32 s24, {n}")
            a.label("L1_dly")
            a("s_sleep 16")
            a("s_sub_u32 s24, s24, 1")
            a("s_cmp_lg_u32 s24, 0")
            a("s_cbranch_scc1 L1_dly")
    if "dbgt" in OPT:
        a("s_waitcnt vmcnt(0)")
    dbg_time(a, 0, 1)
    stamp(a, 10)
    if STAMPS:
        a("s_waitcnt vmcnt(0)")
    stamp(a, 11)
    stamp(a, 21, True)
    stamp_flush(a, 0)
    a.label("L1_end")
    a("s_endpgm")
    return LDS, 104


def gen_k2(a):
    HIST = 0
    HIST2 = HIST + 1024
    BASE2 = HIST2 + 1024
    WCNT = BASE2 + 1024
    WKEY = WCNT + 1024
    MISC = WKEY + 1024
    SCR = MISC + 256
    ZERO = SCR + 256
    PL = ZERO + 256
    PART0 = PL + NPB * ROW
    PART1 = PART0 + NPB * ROW
    WST = (PART1 + NPB * ROW + 127) // 128 * 128
    XST = WST + 16384
    LIST = XST + NPB * XROW
    CAPK = 48
    COL = CAPK * 4
    LISTB = 228 * COL
    LDS = LIST + LISTB + 64
    assert PART1 < 65536 and PART0 + 64 * ROW < 65536 and LDS <= 163840, LDS
    NWIN = 50
    DUMMY_COL = 100 * COL

    TID, LANE = 0, 1
    T0, T1, T2, T3 = 2, 3, 4, 5
    RB = 6
    REM = 7
    RECS = 8
    RANK = 24
    VW_, VX_ = 32, 36
    XOP = 40
    AOP = 52
    DD = 84
    VLOC = 49
    NT = 100
    VLB = 103
    ASEL = 112
    VJ, VG4, VQ, VONE = 116, 117, 118, 119
    CV = 120
    VZ = 124
    VXA, VWA, VPA, VSH = 104, 105, 106, 107
    MASK = 40
    nd = Node(a, WST, XST, TID, LANE, VW_, VX_, NT)

    a(f".globl {K2}")
    a(".p2align 8")
    a(f".type {K2},@function")
    a.label(K2)
    a(f"s_cmp_ge_u32 s2, {NB}")
    a("s_cbranch_scc1 L2_end")
    dbg_time(a, 1, 2, True)
    for o in OPT:
        if o.startswith("nops="):
            for _ in range(int(o[5:])):
                a("s_nop 0")
        if o.startswith("nopl="):
            a(f"s_movk_i32 s24, {int(o[5:]) // 16}")
            a.label("L2_nopl")
            for _ in range(13):
                a("s_nop 0")
            a("s_sub_u32 s24, s24, 1")
            a("s_cmp_lg_u32 s24, 0")
            a("s_cbranch_scc1 L2_nopl")
    stamp(a, 0)
    stamp(a, 20, True)
    load_ptrs(a)
    a(f"v_and_b32 v{LANE}, 63, v{TID}")
    a(f"v_lshrrev_b32 v{T0}, 6, v{TID}")
    a(f"v_lshlrev_b32 v{T1}, 2, v{TID}")
    a(f"v_readfirstlane_b32 s{WAVE}, v{T0}")
    a(f"v_lshrrev_b32 v{RB}, 2, v{TID}")
    a(f"v_lshlrev_b32 v{RB}, 10, v{RB}")
    a("s_lshl_b32 s24, s2, 2")
    a(f"s_add_u32 s24, s24, {SEG_OFF}")
    a(f"v_add_u32 v{RB}, s24, v{RB}")
    a("s_waitcnt lgkmcnt(0)")
    fix_ws(a)
    stamp(a, 1)
    a(f"global_load_dword v{REM}, v{RB}, {sr(WS)}")
    a(f"v_mov_b32 v{T0}, 0")
    a(f"s_cmp_lt_u32 s{WAVE}, 4")
    a("s_cbranch_scc0 L2_nozero")
    a(f"ds_write_b32 v{T1}, v{T0} offset:{HIST}")
    a(f"ds_write_b32 v{T1}, v{T0} offset:{HIST2}")
    a.label("L2_nozero")
    a(f"s_cmp_eq_u32 s{WAVE}, 4")
    a("s_cbranch_scc0 L2_nozero2")
    a(f"v_lshlrev_b32 v{T2}, 2, v{LANE}")
    a(f"v_cmp_eq_u32 vcc, 2, v{LANE}")
    a("s_nop 1")
    a(f"v_cndmask_b32 v{T3}, 0, 16, vcc")
    a(f"ds_write_b32 v{T2}, v{T3} offset:{MISC}")
    a(f"ds_write_b32 v{T2}, v{T0} offset:{ZERO}")
    a.label("L2_nozero2")
    a(f"v_lshrrev_b32 v{RB}, 2, v{TID}")
    a(f"v_mul_u32_u24 v{RB}, {EPC}, v{RB}")
    a(f"v_and_b32 v{T3}, 3, v{TID}")
    a(f"v_lshlrev_b32 v{T3}, 1, v{T3}")
    a(f"v_add_u32 v{RB}, v{RB}, v{T3}")
    a(f"v_lshlrev_b32 v{RB}, 3, v{RB}")
    a(f"v_add_u32 v{RB}, {REC_OFF}, v{RB}")
    a(f"v_cmp_gt_u32 vcc, {NC * 4}, v{TID}")
    a("s_waitcnt vmcnt(0)")
    stamp(a, 2)
    a(f"v_cndmask_b32 v{REM}, 0, v{REM}, vcc")
    a(f"v_and_b32 v{T2}, 0xffff, v{REM}")
    a(f"v_lshrrev_b32 v{REM}, 16, v{REM}")
    a(f"v_lshl_add_u32 v{RB}, v{T2}, 3, v{RB}")
    a(f"v_cmp_lt_u32 s[56:57], 32, v{REM}")
    a(f"v_sub_u32 v{REM}, v{REM}, v{T3}")
    for r in range(4):
        a(f"v_cmp_gt_i32 {sr(MASK + 4 * r)}, v{REM}, {8 * r}")
    a("s_nop 1")
    for r in range(4):
        m = MASK + 4 * r
        a(f"s_mov_b64 exec, {sr(m)}")
        a("s_cbranch_execz L2_recs_done")
        a(f"global_load_dwordx4 {vr(RECS + 4 * r, 4)}, v{RB}, {sr(WS)} offset:{64 * r}")
    a.label("L2_recs_done")
    a("s_mov_b64 exec, -1")
    for r in range(4):
        a(f"v_cmp_gt_i32 {sr(MASK + 4 * r + 2)}, v{REM}, {8 * r + 1}")
    nd.issue_loads(GW, 0, UW)
    a(f"v_and_b32 v{T0}, 15, v{LANE}")
    a(f"v_lshlrev_b32 v{VJ}, 4, v{T0}")
    a(f"v_lshrrev_b32 v{T2}, 1, v{VJ}")
    a(f"v_add_u32 v{T2}, {128 * 128}, v{T2}")
    a(f"global_load_dwordx2 {vr(CV + 2, 2)}, v{T2}, {sr(GW)}")
    for i in range(4):
        a(f"v_mov_b32 v{XOP + i}, {N}")
    a(f"v_lshlrev_b32 v{T2}, 4, v{TID}")
    a(f"v_add_u32 v{T2}, {LIST}, v{T2}")
    a(f"ds_write_b128 v{T2}, {vr(XOP, 4)}")
    a(f"ds_write_b128 v{T2}, {vr(XOP, 4)} offset:16384")
    nlast = LISTB // 16 - 2048
    a(f"v_cmp_gt_u32 vcc, {nlast}, v{TID}")
    a("s_and_saveexec_b64 s[32:33], vcc")
    a(f"ds_write_b128 v{T2}, {vr(XOP, 4)} offset:32768")
    a("s_mov_b64 exec, s[32:33]")
    a(f"v_lshrrev_b32 v{T1}, 4, v{LANE}")
    a(f"v_lshlrev_b32 v{VG4}, 2, v{T1}")
    a(f"v_add_u32 v{VZ}, {ZERO}, v{VJ}")
    a(f"v_mov_b32 v{VONE}, 1")
    a(f"v_mov_b32 v{VLB}, {LIST}")
    a(f"v_lshlrev_b32 v{VQ}, 2, v{LANE}")
    a(f"v_add_u32 v{VQ}, {SCR}, v{VQ}")
    a(f"v_cmp_eq_u32 vcc, 0, v{LANE}")
    a(f"v_mov_b32 v{T3}, {MISC + 8}")
    a(f"v_lshrrev_b32 v{T2}, 2, v{T0}")
    a(f"v_cndmask_b32 v{VQ}, v{VQ}, v{T3}, vcc")
    a(f"v_cmp_eq_u32 vcc, v{T2}, v{T1}")
    a(f"v_mov_b32 v{T3}, 0x3f80")
    a(f"v_and_b32 v{T2}, 3, v{T0}")
    a(f"v_cndmask_b32 v{T3}, 0, v{T3}, vcc")
    for q in range(4):
        a(f"v_cmp_eq_u32 vcc, {q}, v{T2}")
        a("s_nop 1")
        a(f"v_cndmask_b32 v{ASEL + q}, 0, v{T3}, vcc")
    nd.stage_addr(NT, NT + 1, NT + 2)
    a(f"s_and_b32 s27, s{WAVE}, 3")
    a(f"s_lshr_b32 s26, s{WAVE}, 2")
    a("s_lshl_b32 s26, s26, 6")
    a(f"v_and_b32 v{T0}, 15, v{LANE}")
    a(f"v_lshrrev_b32 v{T1}, 4, v{LANE}")
    a(f"v_add_u32 v{T2}, s26, v{T0}")
    a(f"v_mul_u32_u24 v{VXA}, {XROW}, v{T2}")
    a(f"v_lshl_add_u32 v{VXA}, v{T1}, 4, v{VXA}")
    a(f"v_add_u32 v{VXA}, {XST}, v{VXA}")
    a(f"v_mul_u32_u24 v{VPA}, {ROW}, v{T2}")
    a(f"v_lshl_add_u32 v{VPA}, v{T1}, 4, v{VPA}")
    a("s_lshl_b32 s30, s27, 6")
    a(f"v_add_u32 v{VPA}, s30, v{VPA}")
    a(f"v_lshrrev_b32 v{T2}, 3, v{T0}")
    a(f"v_and_b32 v{T3}, 1, v{T1}")
    a(f"v_lshl_or_b32 v{T2}, v{T3}, 1, v{T2}")
    a(f"v_xor_b32 v{T2}, s27, v{T2}")
    a(f"v_lshlrev_b32 v{T2}, 5, v{T2}")
    a(f"v_lshrrev_b32 v{T3}, 2, v{T0}")
    a(f"v_lshl_add_u32 v{T3}, v{T1}, 3, v{T3}")
    a(f"v_lshl_add_u32 v{T2}, v{T3}, 7, v{T2}")
    a(f"v_and_b32 v{T3}, 3, v{T0}")
    a(f"v_lshl_add_u32 v{T2}, v{T3}, 3, v{T2}")
    a(f"v_add_u32 v{VWA}, {WST}, v{T2}")
    a(f"v_mov_b32 v{VSH}, {SHIFT_NEG:#x}")
    a(f"v_cmp_gt_u32 s[34:35], 4, v{T0}")
    a("s_waitcnt lgkmcnt(0)")
    a("s_barrier")
    a("s_cmp_eq_u64 s[56:57], 0")
    a("s_cbranch_scc1 L2_noflag")
    a(f"v_mov_b32 v{T2}, 0")
    a(f"ds_write_b32 v{T2}, v{VONE} offset:{MISC}")
    a.label("L2_noflag")
    a(f"s_movk_i32 s59, {COL}")
    a("s_waitcnt vmcnt(3)")
    stamp(a, 3)
    for r in range(4):
        if r >= 2:
            a(f"s_cmp_eq_u64 {sr(MASK + 4 * r)}, 0")
            a(f"s_cbranch_scc1 L2_h{r}")
        for s_ in range(2):
            k = 2 * r + s_
            hi = RECS + 4 * r + 2 * s_ + 1
            a(f"s_mov_b64 exec, {sr(MASK + 2 * k)}")
            a(f"v_lshlrev_b32 v{T1}, 2, v{hi}")
            a(f"ds_add_rtn_u32 v{RANK + k}, v{T1}, v{VONE} offset:{HIST}")
            a(f"v_mad_u32_u24 v{hi}, v{hi}, s59, v{VLB}")
        if r >= 2:
            a.label(f"L2_h{r}")
    a("s_mov_b64 exec, -1")
    a("s_waitcnt lgkmcnt(0)")
    for r in range(4):
        if r >= 2:
            a(f"s_cmp_eq_u64 {sr(MASK + 4 * r)}, 0")
            a(f"s_cbranch_scc1 L2_s{r}")
        for s_ in range(2):
            k = 2 * r + s_
            lo = RECS + 4 * r + 2 * s_
            hi = lo + 1
            a(f"s_mov_b64 exec, {sr(MASK + 2 * k)}")
            a(f"v_min_u32 v{RANK + k}, 63, v{RANK + k}")
            a(f"v_lshl_add_u32 v{hi}, v{RANK + k}, 2, v{hi}")
            a(f"ds_write_b32 v{hi}, v{lo}")
        if r >= 2:
            a.label(f"L2_s{r}")
    a("s_mov_b64 exec, -1")
    stamp(a, 4)
    a("s_waitcnt vmcnt(0)")
    stamp(a, 5)
    if "ttouch" in OPT:
        a(f"s_cmp_eq_u32 s{WAVE}, 15")
        a("s_cbranch_scc1 L2_notouch")
        a(f"s_mul_i32 s24, s2, {NPB * 256}")
        a(f"s_lshl_b32 s25, s{WAVE}, 10")
        a("s_add_u32 s24, s24, s25")
        a(f"v_lshlrev_b32 v{T2}, 4, v{LANE}")
        a(f"v_add_u32 v{T2}, s24, v{T2}")
        a(f"global_load_dwordx4 v[108:111], v{T2}, {sr(WS)}")
        a(f"s_cmp_gt_u32 s{WAVE}, 9")
        a("s_cbranch_scc1 L2_notouch")
        a(f"v_add_u32 v{T2}, {15 * 1024}, v{T2}")
        a(f"global_load_dwordx4 v[108:111], v{T2}, {sr(WS)}")
        a.label("L2_notouch")
    nd.stage_write(NT, NT + 1)
    a(f"s_mov_b32 s24, {LOG2E_NEG:#x}")
    a(f"v_lshlrev_b32 v{CV}, 16, v{CV + 2}")
    a(f"v_and_b32 v{CV + 1}, 0xffff0000, v{CV + 2}")
    a(f"v_lshlrev_b32 v{CV + 2}, 16, v{CV + 3}")
    a(f"v_and_b32 v{CV + 3}, 0xffff0000, v{CV + 3}")
    for i in range(4):
        a(f"v_mul_f32 v{CV + i}, s24, v{CV + i}")
    a("s_waitcnt lgkmcnt(0)")
    stamp(a, 6)
    a("s_barrier")
    a(f"s_cmp_eq_u32 s{WAVE}, 15")
    a("s_cbranch_scc1 L2_order")
    a(f"s_cmp_gt_u32 s{WAVE}, 7")
    a("s_cbranch_scc1 L2_b2")

    a("s_setprio 2")
    A0 = 8
    B0 = 24
    D0 = 56
    for t in range(4):
        a(f"ds_read_b128 {vr(B0 + 8 * t, 4)}, v{VXA} offset:{t * 16 * XROW}")
        a(f"ds_read_b128 {vr(B0 + 8 * t + 4, 4)}, v{VXA} offset:{t * 16 * XROW + 64}")
        if t == 0:
            for m in range(2):
                for ks in range(2):
                    for hh in range(2):
                        a(f"ds_read_b64_tr_b16 {vr(A0 + (m * 2 + ks) * 4 + hh * 2, 2)}, v{VWA} offset:{m * 8192 + ks * 4096 + hh * 512}")
    a(f"s_mov_b32 s24, {LOG2E_NEG:#x}")
    for t in range(4):
        b = B0 + 8 * t
        d = D0 + 8 * t
        a(f"s_waitcnt lgkmcnt({2 * (3 - t)})")
        a(f"v_mfma_f32_16x16x32_bf16 {vr(d, 4)}, {vr(A0, 4)}, {vr(b, 4)}, 0")
        a(f"v_mfma_f32_16x16x32_bf16 {vr(d + 4, 4)}, {vr(A0 + 8, 4)}, {vr(b, 4)}, 0")
        a(f"v_mfma_f32_16x16x32_bf16 {vr(d, 4)}, {vr(A0 + 4, 4)}, {vr(b + 4, 4)}, {vr(d, 4)}")
        a(f"v_mfma_f32_16x16x32_bf16 {vr(d + 4, 4)}, {vr(A0 + 12, 4)}, {vr(b + 4, 4)}, {vr(d + 4, 4)}")
    a("s_nop 0")
    for t in range(4):
        d = D0 + 8 * t
        if t == 2:
            a(f"s_cmp_gt_u32 s{WAVE}, 3")
            a("s_cbranch_scc0 L2_pu_t2")
            a("s_mov_b64 exec, s[34:35]")
            a.label("L2_pu_t2")
        if t == 3:
            a(f"s_cmp_gt_u32 s{WAVE}, 3")
            a("s_cbranch_scc1 L2_pu_done")
        for i in range(4):
            a(f"v_fma_f32 v{d + i}, v{d + i}, s24, v{VSH}")
        a(f"ds_write_b128 v{VPA}, {vr(d, 4)} offset:{PL + t * 16 * ROW}")
        a(f"ds_write_b128 v{VPA}, {vr(d + 4, 4)} offset:{PART0 + t * 16 * ROW}")
    a.label("L2_pu_done")
    a("s_mov_b64 exec, -1")
    a("s_setprio 0")
    a("s_branch L2_b2")

    a.label("L2_order")
    a("s_setprio 3")
    CN, BN, RK = 100, 104, 108
    S0 = 84
    a(f"v_lshlrev_b32 v{T0}, 4, v{LANE}")
    a(f"ds_read_b128 {vr(CN, 4)}, v{T0} offset:{HIST}")
    a(f"v_lshrrev_b32 v{T1}, 5, v{LANE}")
    a(f"v_and_b32 v{T2}, 31, v{LANE}")
    a(f"v_cmp_gt_u32 vcc, 25, v{T2}")
    a(f"v_lshlrev_b32 v{T3}, 8, v{T1}")
    a(f"v_add_u32 v{T3}, {63 * 4}, v{T3}")
    a(f"v_mov_b32 v{S0}, {(128 + 63) * 4}")
    a(f"v_cndmask_b32 v{T3}, v{S0}, v{T3}, vcc")
    a(f"v_mul_u32_u24 v{T2}, {4 * ROW}, v{T2}")
    a(f"v_mul_u32_u24 v{T1}, {4 * COL}, v{LANE}")
    a(f"v_lshl_or_b32 v{T1}, v{T1}, 16, v{T2}")
    a("s_waitcnt lgkmcnt(0)")
    a(f"v_max3_u32 v{S0 + 1}, v{CN}, v{CN + 1}, v{CN + 2}")
    a(f"v_max_u32 v{S0 + 1}, v{S0 + 1}, v{CN + 3}")
    for i in range(4):
        a(f"v_min_u32 v{BN + i}, 63, v{CN + i}")
        a(f"v_lshlrev_b32 v{BN + i}, 2, v{BN + i}")
        a(f"v_sub_u32 v{BN + i}, v{T3}, v{BN + i}")
        a(f"ds_add_rtn_u32 v{RK + i}, v{BN + i}, v{VONE} offset:{HIST2}")
    a(f"ds_read_b128 {vr(S0 + 4, 4)}, v{T0} offset:{HIST2}")
    a(f"v_cmp_lt_u32 vcc, {CAPK}, v{S0 + 1}")
    a("s_cbranch_vccz L2_nocap")
    a(f"v_mov_b32 v{S0}, 0")
    a(f"ds_write_b32 v{S0}, v{VONE} offset:{MISC}")
    a.label("L2_nocap")
    a("s_waitcnt lgkmcnt(0)")
    a(f"v_add_u32 v{S0 + 1}, v{S0 + 4}, v{S0 + 5}")
    a(f"v_add_u32 v{S0 + 2}, v{S0 + 1}, v{S0 + 6}")
    a(f"v_add_u32 v{S0 + 3}, v{S0 + 2}, v{S0 + 7}")
    a(f"v_mov_b32 v{S0}, v{S0 + 3}")
    wave_scan(a, S0)
    a(f"v_sub_u32 v{S0}, v{S0}, v{S0 + 3}")
    a(f"v_add_u32 v{S0 + 3}, v{S0}, v{S0 + 2}")
    a(f"v_add_u32 v{S0 + 2}, v{S0}, v{S0 + 1}")
    a(f"v_add_u32 v{S0 + 1}, v{S0}, v{S0 + 4}")
    a(f"ds_write_b128 v{T0}, {vr(S0, 4)} offset:{BASE2}")
    for i in range(4):
        a(f"ds_read_b32 v{S0 + 4 + i}, v{BN + i} offset:{BASE2}")
    a("s_waitcnt lgkmcnt(0)")
    for i in range(4):
        a(f"v_add_u32 v{RK + i}, v{RK + i}, v{S0 + 4 + i}")
        a(f"v_lshlrev_b32 v{RK + i}, 2, v{RK + i}")
        a(f"v_add_u32 v{S0}, {i * ((COL << 16) + ROW)}, v{T1}")
        a(f"ds_write_b32 v{RK + i}, v{CN + i} offset:{WCNT}")
        a(f"ds_write_b32 v{RK + i}, v{S0} offset:{WKEY}")
    a("s_setprio 0")
    a.label("L2_b2")
    a("s_waitcnt lgkmcnt(0)")
    stamp(a, 7)
    a("s_barrier")
    stamp(a, 8)
    if "noprio" not in OPT:
        a("s_setprio 3")
    NP = 4
    RA = 4
    PR = 8
    ACC = 12
    UR = 16
    DN = 20
    NM = 24
    DA = 28
    VB = 44
    IX = 76
    EV = 92
    VL = 100
    VFL = 101
    VFN = 102
    VRN = 103
    VIN = 104
    VWL = 105
    SC, SNL, SI = 61, 62, 63
    STR = 64
    a(f"s_mov_b32 s36, s{WS}")
    a(f"s_and_b32 s37, s{WS + 1}, 0xffff")
    a("s_or_b32 s37, s37, 0x1000000")
    a(f"s_mov_b32 s38, {N + 1}")
    a("s_mov_b32 s39, 0x20000")
    a(f"v_mov_b32 v{T0}, 0")
    a(f"ds_read_b32 v{T1}, v{T0} offset:{MISC}")
    a(f"v_lshlrev_b32 v{T2}, 4, v{LANE}")
    a(f"ds_read_b32 v{VWL}, v{T2} offset:{WCNT}")
    a(f"s_lshl_b32 s26, s{WAVE}, 4")
    a(f"v_add_u32 v{T2}, s26, v{VG4}")
    a(f"ds_read_b32 v{T3}, v{T2} offset:{WKEY}")
    for k in range(NP):
        a(f"v_mov_b32 v{IX + 4 * k + 1}, v{VJ}")
        a(f"v_mov_b32 v{IX + 4 * k + 3}, v{VJ}")
        a(f"v_mov_b32 v{EV + 2 * k}, 0")
        a(f"v_mov_b32 v{EV + 2 * k + 1}, 0")
    a(f"s_mov_b32 s66, {TINY:#x}")
    a(f"s_mov_b32 s67, {TINY:#x}")
    a(f"s_mov_b32 s68, {PART0}")
    a(f"s_mov_b32 s69, {PART1}")
    a("s_waitcnt lgkmcnt(0)")
    a(f"v_readfirstlane_b32 s24, v{T1}")
    a(f"v_add_u32 v{VWL}, 1, v{VWL}")
    a(f"v_lshrrev_b32 v{VWL}, 1, v{VWL}")
    a(f"v_max_u32 v{VWL}, {RA}, v{VWL}")
    a(f"v_lshrrev_b32 v{VL}, 16, v{T3}")
    a(f"v_add_u32 v{VL}, {LIST}, v{VL}")
    a("s_cmp_lg_u32 s24, 0")
    a("s_cbranch_scc1 L2_slow")
    for k in range(RA):
        a(f"ds_read_u16 v{IX + 4 * k}, v{VL} offset:{8 * k}")
        a(f"ds_read_u16 v{IX + 4 * k + 2}, v{VL} offset:{8 * k + 4}")
    a(f"v_and_b32 v{VRN}, 0xffff, v{T3}")
    a(f"v_add_u32 v{VRN}, v{VRN}, v{VJ}")
    a(f"v_add_u32 v{VFL}, {PART0}, v{VRN}")
    a(f"v_readlane_b32 s{SC}, v{VWL}, s{WAVE}")
    a(f"s_mov_b32 s{STR}, {RA}")
    a(f"s_mov_b32 s{SI}, s{WAVE}")
    a("s_waitcnt lgkmcnt(0)")
    for k in range(RA - 1):
        for h in range(2):
            a(f"buffer_load_dwordx4 {vr(VB + 8 * k + 4 * h, 4)}, {vr(IX + 4 * k + 2 * h, 2)}, s[36:39], 0 idxen offen")
    for k in range(RA):
        a(f"ds_read_u16_d16_hi v{EV + 2 * k}, v{VL} offset:{8 * k + 2}")
        a(f"ds_read_u16_d16_hi v{EV + 2 * k + 1}, v{VL} offset:{8 * k + 6}")
    a(f"ds_read_b128 {vr(PR, 4)}, v{VRN} offset:{PL}")
    a(f"ds_read_b128 {vr(UR, 4)}, v{VRN} offset:{PART0}")
    for i in range(4):
        a(f"v_mov_b32 v{ACC + i}, 0")
    if "noprio" not in OPT:
        a("s_setprio 2")
    a("s_waitcnt lgkmcnt(0)")
    stamp(a, 9)

    def mfma1(k, h):
        d = DA + 8 * (k & 1)
        a(f"v_mfma_f32_16x16x32_bf16 {vr(d + 4 * h, 4)}, {vr(ASEL, 4)}, {vr(VB + 8 * k + 4 * h, 4)}, {vr(PR, 4)}")

    def tail1(k):
        d = DA + 8 * (k & 1)
        vb = VB + 8 * k
        for h in range(2):
            a(f"v_pk_mul_f32 {vr(DN + 2 * h, 2)}, {vr(d + 2 * h, 2)}, {vr(d + 4 + 2 * h, 2)}")
        for h in range(2):
            a(f"v_pk_mul_f32 {vr(NM + 2 * h, 2)}, {vr(vb + 2 * h, 2)}, {vr(d + 4 + 2 * h, 2)}")
        for h in range(2):
            a(f"v_pk_fma_f32 {vr(NM + 2 * h, 2)}, {vr(vb + 4 + 2 * h, 2)}, {vr(d + 2 * h, 2)}, {vr(NM + 2 * h, 2)}")

    def rcp2(h):
        a(f"v_rcp_f32 v{DN + 2 * h}, v{DN + 2 * h}")
        a(f"v_rcp_f32 v{DN + 2 * h + 1}, v{DN + 2 * h + 1}")

    def tail2():
        a(f"v_pk_fma_f32 {vr(ACC, 2)}, {vr(NM, 2)}, {vr(DN, 2)}, {vr(ACC, 2)}")
        a(f"v_pk_fma_f32 {vr(ACC + 2, 2)}, {vr(NM + 2, 2)}, {vr(DN + 2, 2)}, {vr(ACC + 2, 2)}")

    def read_idx(k):
        a(f"ds_read_u16 v{IX + 4 * k}, v{VL} offset:{8 * (RA + k)}")
        a(f"ds_read_u16 v{IX + 4 * k + 2}, v{VL} offset:{8 * (RA + k) + 4}")

    def read_e(k):
        a(f"ds_read_u16_d16_hi v{EV + 2 * k}, v{VL} offset:{8 * (RA + k) + 2}")
        a(f"ds_read_u16_d16_hi v{EV + 2 * k + 1}, v{VL} offset:{8 * (RA + k) + 6}")

    def gather(k):
        p = (k - 1) % NP
        if "nogather" not in OPT:
            for h in range(2):
                a(f"buffer_load_dwordx4 {vr(VB + 8 * p + 4 * h, 4)}, {vr(IX + 4 * p + 2 * h, 2)}, s[36:39], 0 idxen offen")

    def front(k):
        d = DA + 8 * (k & 1)
        ep = EV + 2 * k
        for h in range(2):
            osel = "op_sel:[1,0,0] op_sel_hi:[1,1,1]" if h else "op_sel_hi:[0,1,1]"
            a(f"v_pk_fma_f32 {vr(d + 4 * h, 2)}, {vr(ep, 2)}, {vr(CV, 2)}, {vr(d + 4 * h, 2)} {osel}")
            a(f"v_pk_fma_f32 {vr(d + 4 * h + 2, 2)}, {vr(ep, 2)}, {vr(CV + 2, 2)}, {vr(d + 4 * h + 2, 2)} {osel}")
        read_e(k)
        for i in range(8):
            a(f"v_exp_f32_e64 v{d + i}, v{d + i} clamp")
            if i == 5:
                a(f"v_pk_add_f32 {vr(d, 2)}, {vr(d, 2)}, s[66:67]")
        a(f"v_pk_add_f32 {vr(d + 2, 2)}, {vr(d + 2, 2)}, s[66:67]")
        a(f"v_pk_add_f32 {vr(d + 4, 2)}, {vr(d + 4, 2)}, s[66:67]")
        a(f"v_pk_add_f32 {vr(d + 6, 2)}, {vr(d + 6, 2)}, s[66:67]")

    def flush():
        a(f"v_pk_fma_f32 {vr(UR, 2)}, {vr(ACC, 2)}, s[66:67], {vr(UR, 2)}")
        a(f"v_pk_fma_f32 {vr(UR + 2, 2)}, {vr(ACC + 2, 2)}, s[66:67], {vr(UR + 2, 2)}")
        a(f"ds_write_b128 v{VFL}, {vr(UR, 4)}")

    VW = 2 * (RA - 2)
    a(f"s_cmp_eq_u32 s{SC}, s{STR}")
    a("s_cbranch_scc1 L2_pop_first")
    a.label("L2_first_cont")
    if "nogather" not in OPT:
        a(f"s_waitcnt vmcnt({VW})")
    mfma1(0, 0)
    mfma1(0, 1)
    read_idx(0)
    a("s_nop 2")
    gather(0)
    a("s_branch L2_mid0")

    a.label("L2_loop")
    for k in range(NP):
        pk = (k - 1) % NP
        a(f"s_cmp_eq_u32 s{SC}, s{STR}")
        a(f"s_cbranch_scc1 L2_ev{k}")
        a.label(f"L2_cont{k}")
        tail1(pk)
        if "nogather" not in OPT:
            a(f"s_waitcnt vmcnt({VW})")
        mfma1(k, 0)
        rcp2(0)
        mfma1(k, 1)
        rcp2(1)
        read_idx(k)
        tail2()
        a("s_waitcnt lgkmcnt(4)")
        gather(k)
        a.label(f"L2_mid{k}")
        front(k)
        a(f"s_sub_u32 s{SC}, s{SC}, 1")
        if k == NP - 1:
            a(f"v_add_u32 v{VL}, {8 * NP}, v{VL}")
            a("s_branch L2_loop")

    def pop(k, cont):
        a(f"ds_add_rtn_u32 v{T2}, v{VQ}, v{VONE}")
        a(f"s_mov_b32 s{STR}, 0")
        a("s_waitcnt lgkmcnt(0)")
        a(f"v_readfirstlane_b32 s{SI}, v{T2}")
        a(f"s_mov_b32 s{SNL}, 0")
        a(f"v_mov_b32 v{VL}, {LIST + DUMMY_COL - 8 * (RA + k)}")
        a("s_nop 1")
        a(f"s_cmp_lt_u32 s{SI}, {NWIN}")
        a(f"s_cbranch_scc0 {cont}")
        a(f"s_lshl_b32 s26, s{SI}, 4")
        a(f"v_add_u32 v{T2}, s26, v{VG4}")
        a(f"ds_read_b32 v{T3}, v{T2} offset:{WKEY}")
        a(f"v_readlane_b32 s{SNL}, v{VWL}, s{SI}")
        a(f"s_cmp_lt_u32 s{SI}, {NWIN // 2}")
        a("s_cselect_b32 s26, s68, s69")
        a("s_waitcnt lgkmcnt(0)")
        a(f"v_and_b32 v{VRN}, 0xffff, v{T3}")
        a(f"v_lshrrev_b32 v{VL}, 16, v{T3}")
        a(f"v_add_u32 v{VRN}, v{VRN}, v{VJ}")
        a(f"v_add_u32 v{VL}, {LIST - 8 * (RA + k)}, v{VL}")
        a(f"v_add_u32 v{VFN}, s26, v{VRN}")
        a(f"v_mov_b32 v{VIN}, v{VFN}")
        a(f"s_cbranch_scc1 {cont}")
        a(f"v_mov_b32 v{VIN}, v{VZ}")
        a(f"s_branch {cont}")

    a.label("L2_pop_first")
    pop(0, "L2_first_cont")
    for k in range(NP):
        pk = (k - 1) % NP
        a.label(f"L2_ev{k}")
        a(f"s_cmp_eq_u32 s{STR}, 0")
        a(f"s_cbranch_scc1 L2_sw{k}")
        pop(k, f"L2_cont{k}")
        a.label(f"L2_sw{k}")
        tail1(pk)
        rcp2(0)
        rcp2(1)
        a("s_nop 0")
        tail2()
        flush()
        a(f"s_cmp_eq_u32 s{SNL}, 0")
        a("s_cbranch_scc1 L2_done")
        a(f"ds_read_b128 {vr(PR, 4)}, v{VRN} offset:{PL}")
        a(f"ds_read_b128 {vr(UR, 4)}, v{VIN}")
        for i in range(4):
            a(f"v_mov_b32 v{ACC + i}, 0")
        a(f"v_mov_b32 v{VFL}, v{VFN}")
        a(f"s_mov_b32 s{SC}, s{SNL}")
        a(f"s_mov_b32 s{STR}, {RA}")
        if "noprio" not in OPT:
            a(f"s_cmp_lt_u32 s{SI}, {PRIO_B}")
            a(f"s_cbranch_scc1 L2_p1_{k}")
            a("s_setprio 0")
            a(f"s_branch L2_pd_{k}")
            a.label(f"L2_p1_{k}")
            a(f"s_cmp_lt_u32 s{SI}, {PRIO_A}")
            a(f"s_cbranch_scc1 L2_pd_{k}")
            a("s_setprio 1")
            a.label(f"L2_pd_{k}")
        a(f"s_cmp_eq_u32 s{SC}, {RA}")
        a(f"s_cbranch_scc0 L2_sw2_{k}")
        pop(k, f"L2_sw2_{k}")
        a.label(f"L2_sw2_{k}")
        if "nogather" not in OPT:
            a(f"s_waitcnt vmcnt({VW}) lgkmcnt(0)")
        else:
            a("s_waitcnt lgkmcnt(0)")
        mfma1(k, 0)
        mfma1(k, 1)
        read_idx(k)
        a("s_nop 2")
        gather(k)
        a(f"s_branch L2_mid{k}")

    a.label("L2_slow")
    SSC, SCN, SRI = 61, 62, 63
    a(f"v_lshlrev_b32 v{T0}, 2, v{LANE}")
    a(f"v_lshlrev_b32 v{T1}, 1, v{LANE}")
    a(f"v_add_u32 v{T1}, {128 * 128}, v{T1}")
    a(f"global_load_ushort v{T2}, v{T1}, {sr(GW)}")
    a(f"s_mov_b32 s24, {LOG2E_NEG:#x}")
    a(f"s_mov_b32 s25, s{WAVE}")
    a("v_mov_b32 v9, 0")
    a.label("L2_slow_z")
    a(f"s_mul_i32 s26, s25, {ROW}")
    a(f"v_add_u32 v10, s26, v{T0}")
    a(f"ds_write_b32 v10, v9 offset:{PART1}")
    a("s_add_u32 s25, s25, 16")
    a(f"s_cmp_lt_u32 s25, {NPB}")
    a("s_cbranch_scc1 L2_slow_z")
    a("s_waitcnt vmcnt(0) lgkmcnt(0)")
    a(f"v_lshlrev_b32 v{T2}, 16, v{T2}")
    a(f"v_mul_f32 v8, s24, v{T2}")
    a(f"s_mov_b32 s{SSC}, 0")
    a.label("L2_slow_seg")
    a(f"s_cmp_ge_u32 s{SSC}, {NC}")
    a("s_cbranch_scc1 L2_done")
    a(f"s_lshl_b32 s24, s{SSC}, 8")
    a("s_add_u32 s24, s24, s2")
    a("s_lshl_b32 s24, s24, 2")
    a(f"s_add_u32 s24, s24, {SEG_OFF}")
    a(f"v_mov_b32 v{T1}, s24")
    a(f"global_load_dword v{T2}, v{T1}, {sr(WS)}")
    a("s_waitcnt vmcnt(0)")
    a(f"v_readfirstlane_b32 s25, v{T2}")
    a("s_nop 3")
    a(f"s_lshr_b32 s{SCN}, s25, 16")
    a("s_and_b32 s25, s25, 0xffff")
    a(f"s_mul_i32 s26, s{SSC}, {EPC}")
    a("s_add_u32 s26, s26, s25")
    a("s_lshl_b32 s26, s26, 3")
    a(f"s_add_u32 s{SRI}, s26, {REC_OFF}")
    a.label("L2_slow_rec")
    a(f"s_cmp_eq_u32 s{SCN}, 0")
    a("s_cbranch_scc1 L2_slow_next")
    a(f"v_mov_b32 v{T1}, s{SRI}")
    a(f"global_load_dwordx2 v[10:11], v{T1}, {sr(WS)}")
    a(f"s_add_u32 s{SRI}, s{SRI}, 8")
    a(f"s_sub_u32 s{SCN}, s{SCN}, 1")
    a("s_waitcnt vmcnt(0)")
    a("v_and_b32 v14, 127, v11")
    a("v_and_b32 v15, 15, v14")
    a("s_nop 0")
    a("v_readfirstlane_b32 s25, v15")
    a("s_nop 3")
    a(f"s_cmp_lg_u32 s25, s{WAVE}")
    a("s_cbranch_scc1 L2_slow_rec")
    a("v_and_b32 v18, 0xffff, v10")
    a(f"v_mov_b32 v19, v{T0}")
    a("buffer_load_dword v13, v[18:19], s[36:39], 0 idxen offen")
    a(f"v_mul_u32_u24 v14, {ROW}, v14")
    a(f"v_add_u32 v14, v14, v{T0}")
    a(f"ds_read_b32 v15, v14 offset:{PL}")
    a(f"ds_read_b32 v17, v14 offset:{PART1}")
    a("v_and_b32 v11, 0xffff0000, v10")
    a("s_waitcnt vmcnt(0) lgkmcnt(0)")
    a("v_lshlrev_b32 v16, 16, v13")
    a("v_add_f32 v16, v16, v15")
    a("v_fmac_f32 v16, v11, v8")
    a("v_exp_f32 v16, v16")
    a(f"s_mov_b32 s25, {TINY:#x}")
    a("v_add_f32 v16, s25, v16")
    a("v_rcp_f32 v16, v16")
    a("s_nop 0")
    a("v_mul_f32 v16, s25, v16")
    a("v_fmac_f32 v17, v16, v13")
    a(f"ds_write_b32 v14, v17 offset:{PART1}")
    a("s_waitcnt lgkmcnt(0)")
    a("s_branch L2_slow_rec")
    a.label("L2_slow_next")
    a(f"s_add_u32 s{SSC}, s{SSC}, 1")
    a("s_branch L2_slow_seg")

    a.label("L2_done")
    stamp(a, 10)
    a("s_setprio 0")
    a("s_waitcnt vmcnt(0) lgkmcnt(0)")
    a("s_barrier")
    stamp(a, 11)
    a(f"v_lshrrev_b32 v{T0}, 4, v{TID}")
    a(f"v_and_b32 v{T1}, 15, v{TID}")
    a(f"v_mul_u32_u24 v{T2}, {ROW}, v{T0}")
    a(f"v_lshl_add_u32 v{T2}, v{T1}, 4, v{T2}")
    a(f"s_mul_i32 s24, s2, {NPB * 128}")
    a(f"v_lshlrev_b32 v{T3}, 7, v{T0}")
    a(f"v_lshl_add_u32 v{T3}, v{T1}, 3, v{T3}")
    a(f"v_add_u32 v{T3}, s24, v{T3}")
    a(f"s_mov_b32 s24, {LOG2E_NEG:#x}")
    a(f"s_mov_b32 s25, {LOG2E_NEG:#x}")
    a("s_mov_b32 s26, 1.0")
    a("s_mov_b32 s27, 1.0")

    def silu_store(src, off):
        a(f"v_pk_add_f32 {vr(src, 2)}, {vr(src, 2)}, {vr(src + 4, 2)}")
        a(f"v_pk_add_f32 {vr(src + 2, 2)}, {vr(src + 2, 2)}, {vr(src + 6, 2)}")
        a(f"v_pk_mul_f32 {vr(src + 4, 2)}, {vr(src, 2)}, s[24:25]")
        a(f"v_pk_mul_f32 {vr(src + 6, 2)}, {vr(src + 2, 2)}, s[24:25]")
        for i in range(4):
            a(f"v_exp_f32 v{src + 4 + i}, v{src + 4 + i}")
        a(f"v_pk_add_f32 {vr(src + 4, 2)}, {vr(src + 4, 2)}, s[26:27]")
        a(f"v_pk_add_f32 {vr(src + 6, 2)}, {vr(src + 6, 2)}, s[26:27]")
        for i in range(4):
            a(f"v_rcp_f32 v{src + 4 + i}, v{src + 4 + i}")
        a(f"v_pk_mul_f32 {vr(src, 2)}, {vr(src, 2)}, {vr(src + 4, 2)}")
        a(f"v_pk_mul_f32 {vr(src + 2, 2)}, {vr(src + 2, 2)}, {vr(src + 6, 2)}")
        a(f"v_cvt_pk_bf16_f32 v{src + 4}, v{src}, v{src + 1}")
        a(f"v_cvt_pk_bf16_f32 v{src + 5}, v{src + 2}, v{src + 3}")
        a(f"global_store_dwordx2 v{off}, {vr(src + 4, 2)}, {sr(OUT)}{STO}")

    a(f"ds_read_b128 v[8:11], v{T2} offset:{PART0}")
    a(f"ds_read_b128 v[12:15], v{T2} offset:{PART1}")
    a(f"s_cmp_lt_u32 s{WAVE}, 9")
    a("s_cbranch_scc0 L2_ep1")
    a(f"v_add_u32 v7, {64 * ROW}, v{T2}")
    a(f"ds_read_b128 v[16:19], v7 offset:{PART0}")
    a(f"ds_read_b128 v[20:23], v7 offset:{PART1}")
    a("s_waitcnt lgkmcnt(0)")
    a(f"v_add_u32 v6, {64 * 128}, v{T3}")
    silu_store(16, 6)
    a.label("L2_ep1")
    a("s_waitcnt lgkmcnt(0)")
    silu_store(8, T3)
    if "dbgt" in OPT:
        a("s_waitcnt vmcnt(0)")
    dbg_time(a, 1, 3)
    stamp(a, 12)
    if STAMPS:
        a("s_waitcnt vmcnt(0)")
    stamp(a, 13)
    stamp(a, 21, True)
    stamp_flush(a, 1)
    a.label("L2_end")
    a("s_endpgm")
    return LDS, 128


def descriptor(a, name, vgprs, sgprs=80):
    a(f".amdhsa_kernel {name}")
    a(f"  .amdhsa_next_free_vgpr {vgprs}")
    a(f"  .amdhsa_next_free_sgpr {sgprs}")
    a(f"  .amdhsa_accum_offset {vgprs}")
    a("  .amdhsa_group_segment_fixed_size 0")
    a("  .amdhsa_kernarg_size 80")
    a("  .amdhsa_user_sgpr_count 2")
    a("  .amdhsa_user_sgpr_kernarg_segment_ptr 1")
    a("  .amdhsa_system_sgpr_workgroup_id_x 1")
    a("  .amdhsa_float_denorm_mode_32 3")
    a(".end_amdhsa_kernel")


def main():
    global STAMPS, ST, STT, STR_, STO
    if "--stamps" in sys.argv:
        STAMPS = True
        sys.argv.remove("--stamps")
    for o in OPT:
        if o.startswith("st="):
            ST = STT = STR_ = " " + o[3:].replace("+", " ")
        if o.startswith("stt="):
            STT = " " + o[4:].replace("+", " ")
        if o.startswith("sto="):
            STO = " " + o[4:].replace("+", " ")
        if o.startswith("str="):
            STR_ = " " + o[4:].replace("+", " ")
    body = Asm()
    body(".amdgcn_target \"amdgcn-amd-amdhsa--gfx950\"")
    body(".text")
    lds1, v1 = gen_k1(body)
    lds2, v2 = gen_k2(body)
    body(".section .rodata,\"a\"")
    body(".p2align 6")
    descriptor(body, K1, 128 if (STAMPS or 'dbgt' in OPT) else v1)
    body(".p2align 6")
    descriptor(body, K2, v2)
    head = [
        "; Edge-gated MPNN layer in two launches (generated by a hand-written generator script).",
        "; launch 1: partitions the edges by destination bucket and builds the per-node source table",
        "; launch 2: per bucket of 100 nodes: sorts its edges, gated aggregation, SiLU epilogue",
        f"; @launch kernel={K1} grid=({NC},1,1) block=(1024,1,1) lds={lds1}",
        f"; @launch kernel={K2} grid=({NB},1,1) block=(1024,1,1) lds={lds2}",
    ]
    out = "\n".join(head) + "\n" + body.text()
    path = sys.argv[1] if len(sys.argv) > 1 else "standalone__edge_featured_mpnn_egc__graph.s"
    open(path, "w").write(out)
    print("wrote", path, "lds", lds1, lds2)


if __name__ == "__main__":
    main()
```

```python
import os
import sys

N = 25000
E = 800000
NB = 250
NPB = 100
NC = 250
EPC = 3200
HALF = 12500

T_OFF = 0
REC_OFF = int(os.environ.get('REC_OFF', '0x700000'), 0)
SEG_OFF = REC_OFF + 0x700000

LOG2E_NEG = 0xBFB8AA3B
SHIFT_NEG = 0xC2700000
TINY = 0x21800000
ROW = 272
XROW = 144

K1 = "egc_part_kernel"
K2 = "standalone__edge_featured_mpnn_egc__graph_kernel"

OPT = set(os.environ.get("OPT", "").split(","))
PRIO_A = int(os.environ.get('PRIO_A', '25'))
PRIO_B = int(os.environ.get('PRIO_B', '38'))
STAMPS = False
STAMP_OFF = 0x2000000
SV = 127

X, EA, SRC, DST, UW, VW, GW, OUT, WS = 4, 6, 8, 10, 12, 14, 16, 18, 20
WAVE = 22


def stamp(a, i, real=False):
    if not STAMPS:
        return
    a(f"s_mem{'real' if real else ''}time s[70:71]")
    a("s_waitcnt lgkmcnt(0)")
    a(f"v_writelane_b32 v{SV}, s70, {i}")


TIME_OFF = 0x2800000


def dbg_time(a, which, slot, neg=False, tag=""):
    if "dbgt" not in OPT:
        return
    a("v_readfirstlane_b32 s78, v0")
    a("s_nop 3")
    a("s_cmp_lg_u32 s78, 0")
    a(f"s_cbranch_scc1 L_dbg_{which}_{slot}")
    a("s_memrealtime s[70:71]")
    a(f"s_load_dwordx2 s[74:75], s[0:1], {72 if which == 0 else 64}")
    a("s_waitcnt lgkmcnt(0)")
    if neg:
        a("s_not_b32 s70, s70")
    a("v_mov_b32 v125, s70")
    a("s_mov_b64 s[76:77], exec")
    a("s_mov_b64 exec, 1")
    if which == 0:
        a("s_lshl_b32 s78, s2, 3")
        a(f"s_add_u32 s78, s78, {TIME_OFF + slot * 4}")
        a("v_mov_b32 v126, s78")
        a("global_store_dword v126, v125, s[74:75]")
    else:
        a(f"v_mov_b32 v126, {slot * 4}")
        a("global_atomic_umax v126, v125, s[74:75]")
    a("s_mov_b64 exec, s[76:77]")
    if which == 1 and slot == 2:
        a("s_cmp_lg_u32 s2, 0")
        a(f"s_cbranch_scc1 L_dbg_{which}_{slot}")
        a("s_load_dwordx2 s[76:77], s[0:1], 72")
        a("s_waitcnt lgkmcnt(0)")
        for r in range(4):
            a(f"v_add_u32 v124, {64 * r}, v0")
            a("v_min_u32 v124, 249, v124")
            a("v_lshlrev_b32 v124, 3, v124")
            a(f"v_add_u32 v124, {TIME_OFF}, v124")
            a("global_load_dwordx2 v[122:123], v124, s[76:77]")
            a("s_waitcnt vmcnt(0)")
            a("v_mov_b32 v126, 16")
            a("global_atomic_umax v126, v122, s[74:75]")
            a("v_mov_b32 v126, 20")
            a("global_atomic_umax v126, v123, s[74:75]")
        a("s_waitcnt vmcnt(0)")
    a.label(f"L_dbg_{which}_{slot}")


def stamp_flush(a, which):
    if not STAMPS:
        return
    a("s_lshl_b32 s72, s2, 4")
    a(f"s_add_u32 s72, s72, s{WAVE}")
    a("s_lshl_b32 s72, s72, 8")
    a(f"s_add_u32 s72, s72, {STAMP_OFF + which * 0x200000}")
    a("v_and_b32 v126, 63, v0")
    a("v_lshlrev_b32 v126, 2, v126")
    a("v_add_u32 v126, s72, v126")
    a(f"global_store_dword v126, v{SV}, s[20:21]")


class Asm:
    def __init__(self):
        self.lines = []

    def __call__(self, s=""):
        for ln in s.split("\n"):
            self.lines.append(ln if ln.strip().endswith(":") else "    " + ln.strip())

    def label(self, s):
        self.lines.append(s + ":")

    def text(self):
        return "\n".join(self.lines) + "\n"


def vr(a, n):
    return f"v[{a}:{a + n - 1}]"


def sr(a, n=2):
    return f"s[{a}:{a + n - 1}]"


def wave_scan(a, v):
    for sh in (1, 2, 4, 8):
        a("s_nop 1")
        a(f"v_add_u32_dpp v{v}, v{v}, v{v} row_shr:{sh} row_mask:0xf bank_mask:0xf bound_ctrl:0")
    a("s_nop 1")
    a(f"v_add_u32_dpp v{v}, v{v}, v{v} row_bcast:15 row_mask:0xa bank_mask:0xf")
    a("s_nop 1")
    a(f"v_add_u32_dpp v{v}, v{v}, v{v} row_bcast:31 row_mask:0xc bank_mask:0xf")
    a("s_nop 1")


WSBASE = int(os.environ.get("WSBASE", "0"), 0)


def load_ptrs(a):
    a("s_load_dwordx16 s[4:19], s[0:1], 0")
    a("s_load_dwordx2 s[20:21], s[0:1], 72")


def fix_ws(a):
    if WSBASE:
        a(f"s_add_u32 s20, s20, {WSBASE}")
        a("s_addc_u32 s21, s21, 0")


ST = ""
STT = ""
STR_ = ""
STO = ""


class Node:
    def __init__(self, a, WST, XST, tid, lane, vw, vx, t):
        self.a, self.WST, self.XST = a, WST, XST
        self.tid, self.lane, self.vw, self.vx, self.t = tid, lane, vw, vx, t

    def issue_loads(self, p0, off0, p1):
        a, t = self.a, self.t
        a(f"s_cmp_lt_u32 s{WAVE}, 8")
        a(f"s_cselect_b32 s24, s{p0}, s{p1}")
        a(f"s_cselect_b32 s25, s{p0 + 1}, s{p1 + 1}")
        if off0:
            a(f"s_cselect_b32 s26, {off0}, 0")
            a("s_add_u32 s24, s24, s26")
            a("s_addc_u32 s25, s25, 0")
        a(f"v_and_b32 v{t}, 511, v{self.tid}")
        a(f"v_lshlrev_b32 v{t}, 4, v{t}")
        a(f"global_load_dwordx4 {vr(self.vw, 4)}, v{t}, s[24:25]")
        a(f"v_min_u32 v{t}, {NPB * 8 - 1}, v{self.tid}")
        a(f"v_lshlrev_b32 v{t}, 4, v{t}")
        a(f"s_mul_i32 s26, s2, {NPB * 128}")
        a(f"v_add_u32 v{t}, s26, v{t}")
        a(f"global_load_dwordx4 {vr(self.vx, 4)}, v{t}, {sr(X)}")

    def stage(self):
        a, t, tid = self.a, self.t, self.tid
        a(f"v_bfe_u32 v{t}, v{tid}, 4, 1")
        a(f"v_bfe_u32 v{t + 1}, v{tid}, 6, 1")
        a(f"v_lshl_or_b32 v{t}, v{t + 1}, 1, v{t}")
        a(f"v_lshlrev_b32 v{t}, 5, v{t}")
        a(f"v_lshlrev_b32 v{t + 1}, 4, v{tid}")
        a(f"v_xor_b32 v{t}, v{t}, v{t + 1}")
        a(f"v_add_u32 v{t}, {self.WST}, v{t}")
        a(f"ds_write_b128 v{t}, {vr(self.vw, 4)}")
        a(f"v_lshrrev_b32 v{t}, 3, v{tid}")
        a(f"v_mul_u32_u24 v{t}, {XROW}, v{t}")
        a(f"v_and_b32 v{t + 1}, 7, v{tid}")
        a(f"v_lshl_add_u32 v{t}, v{t + 1}, 4, v{t}")
        a(f"v_add_u32 v{t}, {self.XST}, v{t}")
        a(f"v_cmp_gt_u32 vcc, {NPB * 8}, v{tid}")
        a("s_and_saveexec_b64 s[32:33], vcc")
        a(f"ds_write_b128 v{t}, {vr(self.vx, 4)}")
        a("s_mov_b64 exec, s[32:33]")

    def stage_addr(self, vw_a, vx_a, t):
        a, tid = self.a, self.tid
        a(f"v_bfe_u32 v{vw_a}, v{tid}, 4, 1")
        a(f"v_bfe_u32 v{t}, v{tid}, 6, 1")
        a(f"v_lshl_or_b32 v{vw_a}, v{t}, 1, v{vw_a}")
        a(f"v_lshlrev_b32 v{vw_a}, 5, v{vw_a}")
        a(f"v_lshlrev_b32 v{t}, 4, v{tid}")
        a(f"v_xor_b32 v{vw_a}, v{vw_a}, v{t}")
        a(f"v_add_u32 v{vw_a}, {self.WST}, v{vw_a}")
        a(f"v_lshrrev_b32 v{vx_a}, 3, v{tid}")
        a(f"v_mul_u32_u24 v{vx_a}, {XROW}, v{vx_a}")
        a(f"v_and_b32 v{t}, 7, v{tid}")
        a(f"v_lshl_add_u32 v{vx_a}, v{t}, 4, v{vx_a}")
        a(f"v_add_u32 v{vx_a}, {self.XST}, v{vx_a}")

    def stage_write(self, vw_a, vx_a):
        a, tid = self.a, self.tid
        a(f"ds_write_b128 v{vw_a}, {vr(self.vw, 4)}")
        a(f"v_cmp_gt_u32 vcc, {NPB * 8}, v{tid}")
        a("s_and_saveexec_b64 s[32:33], vcc")
        a(f"ds_write_b128 v{vx_a}, {vr(self.vx, 4)}")
        a("s_mov_b64 exec, s[32:33]")

    def pair_reads(self, aop, xop, vloc):
        a, t, lane = self.a, self.t, self.lane
        a(f"s_and_b32 s27, s{WAVE}, 1")
        a("s_lshl_b32 s27, s27, 1")
        a(f"s_lshr_b32 s26, s{WAVE}, 1")
        a(f"v_and_b32 v{t}, 15, v{lane}")
        a(f"v_lshrrev_b32 v{t + 1}, 4, v{lane}")
        a("s_lshl_b32 s26, s26, 4")
        a(f"v_add_u32 v{vloc}, s26, v{t}")
        a(f"v_mul_u32_u24 v{t + 2}, {XROW}, v{vloc}")
        a(f"v_lshl_add_u32 v{t + 2}, v{t + 1}, 4, v{t + 2}")
        a(f"v_add_u32 v{t + 2}, {self.XST}, v{t + 2}")
        a(f"ds_read_b128 {vr(xop, 4)}, v{t + 2}")
        a(f"ds_read_b128 {vr(xop + 4, 4)}, v{t + 2} offset:64")
        a(f"v_lshrrev_b32 v{t + 2}, 3, v{t}")
        a(f"v_and_b32 v{xop + 8}, 1, v{t + 1}")
        a(f"v_lshl_or_b32 v{t + 2}, v{xop + 8}, 1, v{t + 2}")
        a(f"v_xor_b32 v{t + 2}, s27, v{t + 2}")
        a(f"v_lshlrev_b32 v{t + 2}, 5, v{t + 2}")
        a(f"v_lshrrev_b32 v{xop + 8}, 2, v{t}")
        a(f"v_lshl_add_u32 v{xop + 8}, v{t + 1}, 3, v{xop + 8}")
        a(f"v_lshl_add_u32 v{t + 2}, v{xop + 8}, 7, v{t + 2}")
        a(f"v_and_b32 v{xop + 8}, 3, v{t}")
        a(f"v_lshl_add_u32 v{t + 2}, v{xop + 8}, 3, v{t + 2}")
        a(f"v_add_u32 v{t + 2}, {self.WST}, v{t + 2}")
        assert self.WST % 128 == 0
        for c in range(2):
            if c:
                a(f"v_xor_b32 v{t + 2}, 32, v{t + 2}")
            for m in range(2):
                for ks in range(2):
                    for hh in range(2):
                        r = aop + c * 16 + (m * 2 + ks) * 4 + hh * 2
                        a(f"ds_read_b64_tr_b16 {vr(r, 2)}, v{t + 2} offset:{m * 8192 + ks * 4096 + hh * 512}")

    def pair_mfma(self, aop, xop, dd):
        a = self.a
        for ks in range(2):
            for c in range(2):
                for m in range(2):
                    d = dd + (c * 2 + m) * 4
                    cop = "0" if ks == 0 else vr(d, 4)
                    a(f"v_mfma_f32_16x16x32_bf16 {vr(d, 4)}, {vr(aop + c * 16 + (m * 2 + ks) * 4, 4)}, {vr(xop + 4 * ks, 4)}, {cop}")


def copy_out(a, lds_addr_fn, goff_sgpr, t0, t1, d0, d1, tag):
    ST = STT if tag == "t" else STR_
    lds_addr_fn(0, t1)
    a(f"ds_read_b128 {vr(d0, 4)}, v{t1}")
    a(f"v_lshlrev_b32 v{t0}, 4, v0")
    a(f"v_add_u32 v{t0}, s{goff_sgpr}, v{t0}")
    a(f"s_cmp_gt_u32 s{WAVE}, 8")
    a(f"s_cbranch_scc1 L1_one{tag}")
    a(f"v_add_u32 v{t1}, 1024, v0")
    lds_addr_fn(t1, t1)
    a(f"ds_read_b128 {vr(d1, 4)}, v{t1}")
    a(f"v_add_u32 v{t1}, 16384, v{t0}")
    a("s_waitcnt lgkmcnt(0)")
    a(f"global_store_dwordx4 v{t1}, {vr(d1, 4)}, {sr(WS)}{ST}")
    a.label(f"L1_one{tag}")
    a("s_waitcnt lgkmcnt(0)")
    a(f"global_store_dwordx4 v{t0}, {vr(d0, 4)}, {sr(WS)}{ST}")


def gen_k1(a):
    HIST, BASE = 0, 1024
    WST = 2048
    XST = WST + 16384
    TST = XST + 112 * XROW
    STG = TST + NPB * ROW
    LDS = STG + EPC * 8
    TID, LANE = 0, 1
    T0, T1, T2, T3 = 2, 3, 14, 15
    VD, VS, VE = 4, 8, 12
    VW_, VX_ = 16, 20
    XOP = 24
    AOP = 36
    DD = 68
    PK = 84
    VLOC = 87
    VB, VR, VH = 88, 92, 96
    NT = 100
    nd = Node(a, WST, XST, TID, LANE, VW_, VX_, NT)

    a(f".globl {K1}")
    a(".p2align 8")
    a(f".type {K1},@function")
    a.label(K1)
    a(f"s_cmp_ge_u32 s2, {NC}")
    a("s_cbranch_scc1 L1_end")
    dbg_time(a, 0, 0, True)
    stamp(a, 0)
    stamp(a, 20, True)
    load_ptrs(a)
    a(f"v_and_b32 v{LANE}, 63, v{TID}")
    a(f"v_lshrrev_b32 v{T0}, 6, v{TID}")
    a(f"v_lshlrev_b32 v{T1}, 2, v{TID}")
    a(f"v_readfirstlane_b32 s{WAVE}, v{T0}")
    a(f"v_mov_b32 v{T0}, 0")
    a(f"s_cmp_lt_u32 s{WAVE}, 4")
    a("s_cbranch_scc0 L1_nozero")
    a(f"ds_write_b32 v{T1}, v{T0} offset:{HIST}")
    a.label("L1_nozero")
    a("s_waitcnt lgkmcnt(0)")
    fix_ws(a)
    stamp(a, 1)
    nd.issue_loads(GW, 8192, VW)
    a("s_barrier")
    a(f"s_cmp_gt_u32 s{WAVE}, 12")
    a("s_cbranch_scc1 L1_noedge0")
    a(f"s_mul_i32 s24, s2, {EPC * 4}")
    a(f"v_lshlrev_b32 v{T0}, 4, v{TID}")
    a(f"v_add_u32 v{T0}, s24, v{T0}")
    a(f"v_lshrrev_b32 v{T1}, 1, v{T0}")
    a(f"v_cmp_gt_u32 vcc, {EPC // 4}, v{TID}")
    a("s_and_saveexec_b64 s[32:33], vcc")
    a(f"global_load_dwordx4 {vr(VD, 4)}, v{T0}, {sr(DST)}")
    a(f"global_load_dwordx4 {vr(VS, 4)}, v{T0}, {sr(SRC)}")
    a(f"global_load_dwordx2 {vr(VE, 2)}, v{T1}, {sr(EA)}")
    a("s_mov_b64 exec, s[32:33]")
    a("s_waitcnt vmcnt(3)")
    a("s_branch L1_wx")
    a.label("L1_noedge0")
    a("s_waitcnt vmcnt(0)")
    a.label("L1_wx")
    stamp(a, 2)
    nd.stage()
    a("s_waitcnt lgkmcnt(0)")
    a("s_barrier")
    stamp(a, 3)
    a(f"s_cmp_gt_u32 s{WAVE}, 13")
    a("s_cbranch_scc1 L1_notask")
    nd.pair_reads(AOP, XOP, VLOC)
    a(f"v_mul_u32_u24 v{T0}, {ROW}, v{VLOC}")
    a(f"v_lshrrev_b32 v{T1}, 4, v{LANE}")
    a(f"v_lshl_add_u32 v{T0}, v{T1}, 4, v{T0}")
    a("s_lshl_b32 s30, s27, 6")
    a(f"s_add_u32 s30, s30, {TST}")
    a(f"v_add_u32 v{T0}, s30, v{T0}")
    a(f"s_mov_b32 s24, {LOG2E_NEG:#x}")
    a("s_mov_b32 s25, 0x7fff0000")
    a("s_mov_b32 s30, 0x7fffffff")
    a(f"v_cmp_gt_u32 vcc, {NPB}, v{VLOC}")
    a("s_waitcnt lgkmcnt(0)")
    nd.pair_mfma(AOP, XOP, DD)
    a("s_nop 5")
    for c in range(2):
        DQ, DH = DD + c * 8, DD + c * 8 + 4
        if c == 1:
            pass
        for i in range(4):
            a(f"v_mul_f32 v{DQ + i}, s24, v{DQ + i}")
        a(f"v_cvt_pk_bf16_f32 v{PK}, v{DQ}, v{DQ + 1}")
        a(f"v_cvt_pk_bf16_f32 v{PK + 1}, v{DQ + 2}, v{DQ + 3}")
        for i in range(4):
            h = DH + i
            sel = "WORD_1" if i % 2 else "WORD_0"
            a(f"v_and_b32 v{DQ + i}, s30, v{h}")
            a(f"v_add_u32 v{DQ + i}, 0x8000, v{DQ + i}")
            a(f"v_sub_u32_sdwa v{DQ + i}, v{DQ + i}, v{PK + i // 2} clamp dst_sel:DWORD dst_unused:UNUSED_PAD src0_sel:DWORD src1_sel:{sel}")
        for i in range(4):
            h = DH + i
            a(f"v_bfi_b32 v{h}, s25, v{DQ + i}, v{h}")
        for i in range(4):
            h = DH + i
            sel = "WORD_1" if i % 2 else "WORD_0"
            a(f"v_mov_b32_sdwa v{h}, v{PK + i // 2} dst_sel:WORD_0 dst_unused:UNUSED_PRESERVE src0_sel:{sel}")
        a("s_and_saveexec_b64 s[32:33], vcc")
        a(f"ds_write_b128 v{T0}, {vr(DH, 4)} offset:{c * 64}")
        a("s_mov_b64 exec, s[32:33]")
    a.label("L1_notask")
    a("s_waitcnt lgkmcnt(0)")
    stamp(a, 4)
    a("s_barrier")

    a(f"s_sub_u32 s24, s{WAVE}, 13")
    a("s_cmp_lt_u32 s24, 2")
    a("s_cbranch_scc0 L1_not")
    a(f"v_lshrrev_b32 v{T0}, 4, v{LANE}")
    a(f"v_mul_u32_u24 v{T0}, {ROW}, v{T0}")
    a(f"v_and_b32 v{T1}, 15, v{LANE}")
    a(f"v_lshl_add_u32 v{T0}, v{T1}, 4, v{T0}")
    a(f"s_mul_i32 s25, s24, {13 * 4 * ROW}")
    a(f"s_add_u32 s25, s25, {TST}")
    a(f"v_add_u32 v{T0}, s25, v{T0}")
    a(f"s_mul_i32 s26, s2, {NPB * 256}")
    a(f"s_mul_i32 s25, s24, {13 * 1024}")
    a("s_add_u32 s26, s26, s25")
    a(f"v_lshlrev_b32 v{T1}, 4, v{LANE}")
    a(f"v_add_u32 v{T1}, s26, v{T1}")
    for n in range(12):
        a(f"ds_read_b128 {vr(16 + 4 * n, 4)}, v{T0} offset:{n * 4 * ROW}")
    a(f"v_add_u32 v{T2}, {12 * 1024}, v{T1}")
    a("s_cmp_eq_u32 s24, 0")
    a("s_cbranch_scc0 L1_t12")
    a(f"ds_read_b128 {vr(64, 4)}, v{T0} offset:{12 * 4 * ROW}")
    a("s_waitcnt lgkmcnt(0)")
    a(f"global_store_dwordx4 v{T2}, {vr(64, 4)}, {sr(WS)}{STT}")
    a.label("L1_t12")
    for n in range(12):
        a(f"s_waitcnt lgkmcnt({max(0, 11 - n)})")
        a(f"global_store_dwordx4 v{T1}, {vr(16 + 4 * n, 4)}, {sr(WS)} offset:{(n % 4) * 1024}{STT}")
        if n % 4 == 3:
            a(f"v_add_u32 v{T1}, 4096, v{T1}")
    if "readback" in OPT:
        a("s_waitcnt vmcnt(0)")
        a(f"v_subrev_u32 v{T1}, {3 * 4096}, v{T1}")
        for n in range(12):
            a(f"global_load_dwordx4 {vr(16 + 4 * n, 4)}, v{T1}, {sr(WS)} offset:{(n % 4) * 1024}")
            if n % 4 == 3:
                a(f"v_add_u32 v{T1}, 4096, v{T1}")
        a(f"global_load_dwordx4 {vr(64, 4)}, v{T2}, {sr(WS)}")
        a("s_waitcnt vmcnt(0)")
    if "wbl2" in OPT:
        a("s_waitcnt vmcnt(0)")
        a("buffer_wbl2 sc1")
        a("s_waitcnt vmcnt(0)")
    stamp(a, 5)
    if STAMPS:
        a("s_waitcnt vmcnt(0)")
    stamp(a, 11)
    stamp(a, 21, True)
    stamp_flush(a, 0)
    a("s_endpgm")
    a.label("L1_not")
    stamp(a, 5)
    a(f"s_cmp_gt_u32 s{WAVE}, 12")
    a("s_cbranch_scc1 L1_noedge1")
    a(f"v_cmp_gt_u32 vcc, {EPC // 4}, v{TID}")
    a("s_and_saveexec_b64 s[32:33], vcc")
    a(f"v_mov_b32 v{T1}, 1")
    a("s_movk_i32 s24, -100")
    a("s_mov_b32 s25, 0xffff0000")
    a("s_movk_i32 s30, 128")
    a("s_waitcnt vmcnt(0)")
    for i in range(4):
        a(f"v_mul_u32_u24 v{T0}, 5243, v{VD + i}")
        a(f"v_lshrrev_b32 v{T0}, 19, v{T0}")
        a(f"v_lshlrev_b32 v{VB + i}, 2, v{T0}")
        a(f"ds_add_rtn_u32 v{VR + i}, v{VB + i}, v{T1} offset:{HIST}")
        a(f"v_mad_i32_i24 v{T2}, v{T0}, s24, v{VD + i}")
        a(f"v_lshrrev_b32 v{T3}, 5, v{VS + i}")
        a(f"v_and_or_b32 v{VH + i}, v{T3}, s30, v{T2}")
        if "smallsrc" in OPT:
            a(f"v_and_b32 v{VS + i}, 0x7ff, v{VS + i}")
        if i % 2 == 0:
            a(f"v_lshl_or_b32 v{VS + i}, v{VE + i // 2}, 16, v{VS + i}")
        else:
            a(f"v_and_or_b32 v{VS + i}, v{VE + i // 2}, s25, v{VS + i}")
    a("s_mov_b64 exec, s[32:33]")
    a.label("L1_noedge1")
    a("s_waitcnt lgkmcnt(0)")
    stamp(a, 6)
    a("s_barrier")
    stamp(a, 7)
    a(f"s_cmp_eq_u32 s{WAVE}, 15")
    a("s_cbranch_scc0 L1_b2")
    C0 = 24
    a(f"v_lshlrev_b32 v{T0}, 4, v{LANE}")
    a(f"ds_read_b128 {vr(C0, 4)}, v{T0} offset:{HIST}")
    a("s_waitcnt lgkmcnt(0)")
    P = 28
    a(f"v_add_u32 v{P + 2}, v{C0}, v{C0 + 1}")
    a(f"v_add_u32 v{P + 3}, v{P + 2}, v{C0 + 2}")
    a(f"v_add_u32 v32, v{P + 3}, v{C0 + 3}")
    a("v_mov_b32 v33, v32")
    wave_scan(a, 33)
    a(f"v_sub_u32 v{P}, v33, v32")
    a(f"v_add_u32 v{P + 1}, v{P}, v{C0}")
    a(f"v_add_u32 v{P + 2}, v{P}, v{P + 2}")
    a(f"v_add_u32 v{P + 3}, v{P}, v{P + 3}")
    a(f"ds_write_b128 v{T0}, {vr(P, 4)} offset:{BASE}")
    a("s_lshl_b32 s24, s2, 10")
    a(f"s_add_u32 s24, s24, {SEG_OFF}")
    a(f"v_add_u32 v{T1}, s24, v{T0}")
    for i in range(4):
        a(f"v_lshl_or_b32 v{36 + i}, v{C0 + i}, 16, v{P + i}")
    a(f"global_store_dwordx4 v{T1}, v[36:39], {sr(WS)}{ST}")
    a("s_cmp_lg_u32 s2, 0")
    a("s_cbranch_scc1 L1_b2")
    a(f"v_mov_b32 v{T2}, 0")
    a(f"v_lshlrev_b32 v{T3}, 2, v{LANE}")
    a(f"v_add_u32 v{T3}, {N * 256}, v{T3}")
    a(f"global_store_dword v{T3}, v{T2}, {sr(WS)}{ST}")
    a.label("L1_b2")
    a("s_waitcnt lgkmcnt(0)")
    stamp(a, 8)
    a("s_barrier")
    a(f"s_cmp_gt_u32 s{WAVE}, 12")
    a("s_cbranch_scc1 L1_noedge2")
    a(f"v_cmp_gt_u32 vcc, {EPC // 4}, v{TID}")
    a("s_and_saveexec_b64 s[32:33], vcc")
    for i in range(4):
        a(f"ds_read_b32 v{VD + i}, v{VB + i} offset:{BASE}")
    a(f"s_mov_b32 s24, {STG}")
    for i in range(4):
        a("s_waitcnt lgkmcnt(3)")
        a(f"v_add_u32 v{VD + i}, v{VD + i}, v{VR + i}")
        a(f"v_lshl_add_u32 v{VD + i}, v{VD + i}, 3, s24")
        a(f"ds_write2_b32 v{VD + i}, v{VS + i}, v{VH + i} offset0:0 offset1:1")
    a("s_mov_b64 exec, s[32:33]")
    a.label("L1_noedge2")
    a("s_waitcnt lgkmcnt(0)")
    stamp(a, 9)
    a("s_barrier")

    a(f"s_min_u32 s25, s{WAVE}, 13")
    a("s_lshl_b32 s25, s25, 10")
    a(f"v_lshlrev_b32 v{T0}, 4, v{LANE}")
    a(f"v_add_u32 v{T0}, s25, v{T0}")
    a(f"v_add_u32 v{T1}, {STG}, v{T0}")
    a(f"ds_read_b128 v[24:27], v{T1}")
    a(f"s_mul_i32 s24, s2, {EPC * 8}")
    a(f"s_add_u32 s24, s24, {REC_OFF}")
    a(f"v_add_u32 v{T0}, s24, v{T0}")
    a(f"s_cmp_gt_u32 s{WAVE}, 10")
    a("s_cbranch_scc1 L1_oner")
    a(f"ds_read_b128 v[28:31], v{T1} offset:{14 * 1024}")
    a(f"v_add_u32 v{T1}, {14 * 1024}, v{T0}")
    a("s_waitcnt lgkmcnt(0)")
    a(f"global_store_dwordx4 v{T1}, v[28:31], {sr(WS)}{STR_}")
    a.label("L1_oner")
    a("s_waitcnt lgkmcnt(0)")
    a(f"global_store_dwordx4 v{T0}, v[24:27], {sr(WS)}{STR_}")
    for o in OPT:
        if o.startswith("delay="):
            n = int(o[6:])
            a(f"s_movk_i32 s24, {n}")
            a.label("L1_dly")
            a("s_sleep 16")
            a("s_sub_u32 s24, s24, 1")
            a("s_cmp_lg_u32 s24, 0")
            a("s_cbranch_scc1 L1_dly")
    if "dbgt" in OPT:
        a("s_waitcnt vmcnt(0)")
    dbg_time(a, 0, 1)
    stamp(a, 10)
    if STAMPS:
        a("s_waitcnt vmcnt(0)")
    stamp(a, 11)
    stamp(a, 21, True)
    stamp_flush(a, 0)
    a.label("L1_end")
    a("s_endpgm")
    return LDS, 104


def gen_k2(a):
    HIST = 0
    HIST2 = HIST + 1024
    BASE2 = HIST2 + 1024
    WCNT = BASE2 + 1024
    WKEY = WCNT + 1024
    MISC = WKEY + 1024
    SCR = MISC + 256
    ZERO = SCR + 256
    PL = ZERO + 256
    PART0 = PL + NPB * ROW
    PART1 = PART0 + NPB * ROW
    WST = (PART1 + NPB * ROW + 127) // 128 * 128
    XST = WST + 16384
    LIST = XST + NPB * XROW
    CAPK = 48
    COL = CAPK * 4
    LISTB = 228 * COL
    LDS = LIST + LISTB + 64
    assert PART1 < 65536 and PART0 + 64 * ROW < 65536 and LDS <= 163840, LDS
    NWIN = 50
    DUMMY_COL = 100 * COL

    TID, LANE = 0, 1
    T0, T1, T2, T3 = 2, 3, 4, 5
    RB = 6
    REM = 7
    RECS = 8
    RANK = 24
    VW_, VX_ = 32, 36
    XOP = 40
    AOP = 52
    DD = 84
    VLOC = 49
    NT = 100
    VLB = 103
    ASEL = 112
    VJ, VG4, VQ, VONE = 116, 117, 118, 119
    CV = 120
    VZ = 124
    VXA, VWA, VPA, VSH = 104, 105, 106, 107
    MASK = 40
    nd = Node(a, WST, XST, TID, LANE, VW_, VX_, NT)

    a(f".globl {K2}")
    a(".p2align 8")
    a(f".type {K2},@function")
    a.label(K2)
    a(f"s_cmp_ge_u32 s2, {NB}")
    a("s_cbranch_scc1 L2_end")
    dbg_time(a, 1, 2, True)
    for o in OPT:
        if o.startswith("nops="):
            for _ in range(int(o[5:])):
                a("s_nop 0")
        if o.startswith("slit="):
            for _ in range(int(o[5:])):
                a("s_mov_b32 s24, 0x12345678")
        if o.startswith("slil="):
            a(f"s_movk_i32 s25, {int(o[5:]) // 16}")
            a.label("L2_slil")
            for _ in range(13):
                a("s_mov_b32 s24, 0x12345678")
            a("s_sub_u32 s25, s25, 1")
            a("s_cmp_lg_u32 s25, 0")
            a("s_cbranch_scc1 L2_slil")
        if o.startswith("nopl="):
            a(f"s_movk_i32 s24, {int(o[5:]) // 16}")
            a.label("L2_nopl")
            for _ in range(13):
                a("s_nop 0")
            a("s_sub_u32 s24, s24, 1")
            a("s_cmp_lg_u32 s24, 0")
            a("s_cbranch_scc1 L2_nopl")
    stamp(a, 0)
    stamp(a, 20, True)
    load_ptrs(a)
    a(f"v_and_b32 v{LANE}, 63, v{TID}")
    a(f"v_lshrrev_b32 v{T0}, 6, v{TID}")
    a(f"v_lshlrev_b32 v{T1}, 2, v{TID}")
    a(f"v_readfirstlane_b32 s{WAVE}, v{T0}")
    a(f"v_lshrrev_b32 v{RB}, 2, v{TID}")
    a(f"v_lshlrev_b32 v{RB}, 10, v{RB}")
    a("s_lshl_b32 s24, s2, 2")
    a(f"s_add_u32 s24, s24, {SEG_OFF}")
    a(f"v_add_u32 v{RB}, s24, v{RB}")
    a("s_waitcnt lgkmcnt(0)")
    fix_ws(a)
    stamp(a, 1)
    a(f"global_load_dword v{REM}, v{RB}, {sr(WS)}")
    a(f"v_mov_b32 v{T0}, 0")
    a(f"s_cmp_lt_u32 s{WAVE}, 4")
    a("s_cbranch_scc0 L2_nozero")
    a(f"ds_write_b32 v{T1}, v{T0} offset:{HIST}")
    a(f"ds_write_b32 v{T1}, v{T0} offset:{HIST2}")
    a.label("L2_nozero")
    a(f"s_cmp_eq_u32 s{WAVE}, 4")
    a("s_cbranch_scc0 L2_nozero2")
    a(f"v_lshlrev_b32 v{T2}, 2, v{LANE}")
    a(f"v_cmp_eq_u32 vcc, 2, v{LANE}")
    a("s_nop 1")
    a(f"v_cndmask_b32 v{T3}, 0, 16, vcc")
    a(f"ds_write_b32 v{T2}, v{T3} offset:{MISC}")
    a(f"ds_write_b32 v{T2}, v{T0} offset:{ZERO}")
    a.label("L2_nozero2")
    a(f"v_lshrrev_b32 v{RB}, 2, v{TID}")
    a(f"v_mul_u32_u24 v{RB}, {EPC}, v{RB}")
    a(f"v_and_b32 v{T3}, 3, v{TID}")
    a(f"v_lshlrev_b32 v{T3}, 1, v{T3}")
    a(f"v_add_u32 v{RB}, v{RB}, v{T3}")
    a(f"v_lshlrev_b32 v{RB}, 3, v{RB}")
    a(f"v_add_u32 v{RB}, {REC_OFF}, v{RB}")
    a(f"v_cmp_gt_u32 vcc, {NC * 4}, v{TID}")
    a("s_waitcnt vmcnt(0)")
    stamp(a, 2)
    a(f"v_cndmask_b32 v{REM}, 0, v{REM}, vcc")
    a(f"v_and_b32 v{T2}, 0xffff, v{REM}")
    a(f"v_lshrrev_b32 v{REM}, 16, v{REM}")
    a(f"v_lshl_add_u32 v{RB}, v{T2}, 3, v{RB}")
    a(f"v_cmp_lt_u32 s[56:57], 32, v{REM}")
    a(f"v_sub_u32 v{REM}, v{REM}, v{T3}")
    for r in range(4):
        a(f"v_cmp_gt_i32 {sr(MASK + 4 * r)}, v{REM}, {8 * r}")
    a("s_nop 1")
    for r in range(4):
        m = MASK + 4 * r
        a(f"s_mov_b64 exec, {sr(m)}")
        a("s_cbranch_execz L2_recs_done")
        a(f"global_load_dwordx4 {vr(RECS + 4 * r, 4)}, v{RB}, {sr(WS)} offset:{64 * r}")
    a.label("L2_recs_done")
    a("s_mov_b64 exec, -1")
    for r in range(4):
        a(f"v_cmp_gt_i32 {sr(MASK + 4 * r + 2)}, v{REM}, {8 * r + 1}")
    nd.issue_loads(GW, 0, UW)
    a(f"v_and_b32 v{T0}, 15, v{LANE}")
    a(f"v_lshlrev_b32 v{VJ}, 4, v{T0}")
    a(f"v_lshrrev_b32 v{T2}, 1, v{VJ}")
    a(f"v_add_u32 v{T2}, {128 * 128}, v{T2}")
    a(f"global_load_dwordx2 {vr(CV + 2, 2)}, v{T2}, {sr(GW)}")
    for i in range(4):
        a(f"v_mov_b32 v{XOP + i}, {N}")
    a(f"v_lshlrev_b32 v{T2}, 4, v{TID}")
    a(f"v_add_u32 v{T2}, {LIST}, v{T2}")
    a(f"ds_write_b128 v{T2}, {vr(XOP, 4)}")
    a(f"ds_write_b128 v{T2}, {vr(XOP, 4)} offset:16384")
    nlast = LISTB // 16 - 2048
    a(f"v_cmp_gt_u32 vcc, {nlast}, v{TID}")
    a("s_and_saveexec_b64 s[32:33], vcc")
    a(f"ds_write_b128 v{T2}, {vr(XOP, 4)} offset:32768")
    a("s_mov_b64 exec, s[32:33]")
    a(f"v_lshrrev_b32 v{T1}, 4, v{LANE}")
    a(f"v_lshlrev_b32 v{VG4}, 2, v{T1}")
    a(f"v_add_u32 v{VZ}, {ZERO}, v{VJ}")
    a(f"v_mov_b32 v{VONE}, 1")
    a(f"v_mov_b32 v{VLB}, {LIST}")
    a(f"v_lshlrev_b32 v{VQ}, 2, v{LANE}")
    a(f"v_add_u32 v{VQ}, {SCR}, v{VQ}")
    a(f"v_cmp_eq_u32 vcc, 0, v{LANE}")
    a(f"v_mov_b32 v{T3}, {MISC + 8}")
    a(f"v_lshrrev_b32 v{T2}, 2, v{T0}")
    a(f"v_cndmask_b32 v{VQ}, v{VQ}, v{T3}, vcc")
    a(f"v_cmp_eq_u32 vcc, v{T2}, v{T1}")
    a(f"v_mov_b32 v{T3}, 0x3f80")
    a(f"v_and_b32 v{T2}, 3, v{T0}")
    a(f"v_cndmask_b32 v{T3}, 0, v{T3}, vcc")
    for q in range(4):
        a(f"v_cmp_eq_u32 vcc, {q}, v{T2}")
        a("s_nop 1")
        a(f"v_cndmask_b32 v{ASEL + q}, 0, v{T3}, vcc")
    nd.stage_addr(NT, NT + 1, NT + 2)
    a(f"s_and_b32 s27, s{WAVE}, 3")
    a(f"s_lshr_b32 s26, s{WAVE}, 2")
    a("s_lshl_b32 s26, s26, 6")
    a(f"v_and_b32 v{T0}, 15, v{LANE}")
    a(f"v_lshrrev_b32 v{T1}, 4, v{LANE}")
    a(f"v_add_u32 v{T2}, s26, v{T0}")
    a(f"v_mul_u32_u24 v{VXA}, {XROW}, v{T2}")
    a(f"v_lshl_add_u32 v{VXA}, v{T1}, 4, v{VXA}")
    a(f"v_add_u32 v{VXA}, {XST}, v{VXA}")
    a(f"v_mul_u32_u24 v{VPA}, {ROW}, v{T2}")
    a(f"v_lshl_add_u32 v{VPA}, v{T1}, 4, v{VPA}")
    a("s_lshl_b32 s30, s27, 6")
    a(f"v_add_u32 v{VPA}, s30, v{VPA}")
    a(f"v_lshrrev_b32 v{T2}, 3, v{T0}")
    a(f"v_and_b32 v{T3}, 1, v{T1}")
    a(f"v_lshl_or_b32 v{T2}, v{T3}, 1, v{T2}")
    a(f"v_xor_b32 v{T2}, s27, v{T2}")
    a(f"v_lshlrev_b32 v{T2}, 5, v{T2}")
    a(f"v_lshrrev_b32 v{T3}, 2, v{T0}")
    a(f"v_lshl_add_u32 v{T3}, v{T1}, 3, v{T3}")
    a(f"v_lshl_add_u32 v{T2}, v{T3}, 7, v{T2}")
    a(f"v_and_b32 v{T3}, 3, v{T0}")
    a(f"v_lshl_add_u32 v{T2}, v{T3}, 3, v{T2}")
    a(f"v_add_u32 v{VWA}, {WST}, v{T2}")
    a(f"v_mov_b32 v{VSH}, {SHIFT_NEG:#x}")
    a(f"v_cmp_gt_u32 s[34:35], 4, v{T0}")
    a("s_waitcnt lgkmcnt(0)")
    a("s_barrier")
    a("s_cmp_eq_u64 s[56:57], 0")
    a("s_cbranch_scc1 L2_noflag")
    a(f"v_mov_b32 v{T2}, 0")
    a(f"ds_write_b32 v{T2}, v{VONE} offset:{MISC}")
    a.label("L2_noflag")
    a(f"s_movk_i32 s59, {COL}")
    a("s_waitcnt vmcnt(3)")
    stamp(a, 3)
    for r in range(4):
        if r >= 2:
            a(f"s_cmp_eq_u64 {sr(MASK + 4 * r)}, 0")
            a(f"s_cbranch_scc1 L2_h{r}")
        for s_ in range(2):
            k = 2 * r + s_
            hi = RECS + 4 * r + 2 * s_ + 1
            a(f"s_mov_b64 exec, {sr(MASK + 2 * k)}")
            a(f"v_lshlrev_b32 v{T1}, 2, v{hi}")
            a(f"ds_add_rtn_u32 v{RANK + k}, v{T1}, v{VONE} offset:{HIST}")
            a(f"v_mad_u32_u24 v{hi}, v{hi}, s59, v{VLB}")
        if r >= 2:
            a.label(f"L2_h{r}")
    a("s_mov_b64 exec, -1")
    a("s_waitcnt lgkmcnt(0)")
    for r in range(4):
        if r >= 2:
            a(f"s_cmp_eq_u64 {sr(MASK + 4 * r)}, 0")
            a(f"s_cbranch_scc1 L2_s{r}")
        for s_ in range(2):
            k = 2 * r + s_
            lo = RECS + 4 * r + 2 * s_
            hi = lo + 1
            a(f"s_mov_b64 exec, {sr(MASK + 2 * k)}")
            a(f"v_min_u32 v{RANK + k}, 63, v{RANK + k}")
            a(f"v_lshl_add_u32 v{hi}, v{RANK + k}, 2, v{hi}")
            a(f"ds_write_b32 v{hi}, v{lo}")
        if r >= 2:
            a.label(f"L2_s{r}")
    a("s_mov_b64 exec, -1")
    stamp(a, 4)
    a("s_waitcnt vmcnt(0)")
    stamp(a, 5)
    if "ttouch" in OPT:
        a(f"s_cmp_eq_u32 s{WAVE}, 15")
        a("s_cbranch_scc1 L2_notouch")
        a(f"s_mul_i32 s24, s2, {NPB * 256}")
        a(f"s_lshl_b32 s25, s{WAVE}, 10")
        a("s_add_u32 s24, s24, s25")
        a(f"v_lshlrev_b32 v{T2}, 4, v{LANE}")
        a(f"v_add_u32 v{T2}, s24, v{T2}")
        a(f"global_load_dwordx4 v[108:111], v{T2}, {sr(WS)}")
        a(f"s_cmp_gt_u32 s{WAVE}, 9")
        a("s_cbranch_scc1 L2_notouch")
        a(f"v_add_u32 v{T2}, {15 * 1024}, v{T2}")
        a(f"global_load_dwordx4 v[108:111], v{T2}, {sr(WS)}")
        a.label("L2_notouch")
    nd.stage_write(NT, NT + 1)
    a(f"s_mov_b32 s24, {LOG2E_NEG:#x}")
    a(f"v_lshlrev_b32 v{CV}, 16, v{CV + 2}")
    a(f"v_and_b32 v{CV + 1}, 0xffff0000, v{CV + 2}")
    a(f"v_lshlrev_b32 v{CV + 2}, 16, v{CV + 3}")
    a(f"v_and_b32 v{CV + 3}, 0xffff0000, v{CV + 3}")
    for i in range(4):
        a(f"v_mul_f32 v{CV + i}, s24, v{CV + i}")
    a("s_waitcnt lgkmcnt(0)")
    stamp(a, 6)
    a("s_barrier")
    a(f"s_cmp_eq_u32 s{WAVE}, 15")
    a("s_cbranch_scc1 L2_order")
    a(f"s_cmp_gt_u32 s{WAVE}, 7")
    a("s_cbranch_scc1 L2_b2")

    a("s_setprio 2")
    A0 = 8
    B0 = 24
    D0 = 56
    for t in range(4):
        a(f"ds_read_b128 {vr(B0 + 8 * t, 4)}, v{VXA} offset:{t * 16 * XROW}")
        a(f"ds_read_b128 {vr(B0 + 8 * t + 4, 4)}, v{VXA} offset:{t * 16 * XROW + 64}")
        if t == 0:
            for m in range(2):
                for ks in range(2):
                    for hh in range(2):
                        a(f"ds_read_b64_tr_b16 {vr(A0 + (m * 2 + ks) * 4 + hh * 2, 2)}, v{VWA} offset:{m * 8192 + ks * 4096 + hh * 512}")
    a(f"s_mov_b32 s24, {LOG2E_NEG:#x}")
    for t in range(4):
        b = B0 + 8 * t
        d = D0 + 8 * t
        a(f"s_waitcnt lgkmcnt({2 * (3 - t)})")
        a(f"v_mfma_f32_16x16x32_bf16 {vr(d, 4)}, {vr(A0, 4)}, {vr(b, 4)}, 0")
        a(f"v_mfma_f32_16x16x32_bf16 {vr(d + 4, 4)}, {vr(A0 + 8, 4)}, {vr(b, 4)}, 0")
        a(f"v_mfma_f32_16x16x32_bf16 {vr(d, 4)}, {vr(A0 + 4, 4)}, {vr(b + 4, 4)}, {vr(d, 4)}")
        a(f"v_mfma_f32_16x16x32_bf16 {vr(d + 4, 4)}, {vr(A0 + 12, 4)}, {vr(b + 4, 4)}, {vr(d + 4, 4)}")
    a("s_nop 0")
    for t in range(4):
        d = D0 + 8 * t
        if t == 2:
            a(f"s_cmp_gt_u32 s{WAVE}, 3")
            a("s_cbranch_scc0 L2_pu_t2")
            a("s_mov_b64 exec, s[34:35]")
            a.label("L2_pu_t2")
        if t == 3:
            a(f"s_cmp_gt_u32 s{WAVE}, 3")
            a("s_cbranch_scc1 L2_pu_done")
        for i in range(4):
            a(f"v_fma_f32 v{d + i}, v{d + i}, s24, v{VSH}")
        a(f"ds_write_b128 v{VPA}, {vr(d, 4)} offset:{PL + t * 16 * ROW}")
        a(f"ds_write_b128 v{VPA}, {vr(d + 4, 4)} offset:{PART0 + t * 16 * ROW}")
    a.label("L2_pu_done")
    a("s_mov_b64 exec, -1")
    a("s_setprio 0")
    a("s_branch L2_b2")

    a.label("L2_order")
    a("s_setprio 3")
    CN, BN, RK = 100, 104, 108
    S0 = 84
    a(f"v_lshlrev_b32 v{T0}, 4, v{LANE}")
    a(f"ds_read_b128 {vr(CN, 4)}, v{T0} offset:{HIST}")
    a(f"v_lshrrev_b32 v{T1}, 5, v{LANE}")
    a(f"v_and_b32 v{T2}, 31, v{LANE}")
    a(f"v_cmp_gt_u32 vcc, 25, v{T2}")
    a(f"v_lshlrev_b32 v{T3}, 8, v{T1}")
    a(f"v_add_u32 v{T3}, {63 * 4}, v{T3}")
    a(f"v_mov_b32 v{S0}, {(128 + 63) * 4}")
    a(f"v_cndmask_b32 v{T3}, v{S0}, v{T3}, vcc")
    a(f"v_mul_u32_u24 v{T2}, {4 * ROW}, v{T2}")
    a(f"v_mul_u32_u24 v{T1}, {4 * COL}, v{LANE}")
    a(f"v_lshl_or_b32 v{T1}, v{T1}, 16, v{T2}")
    a("s_waitcnt lgkmcnt(0)")
    a(f"v_max3_u32 v{S0 + 1}, v{CN}, v{CN + 1}, v{CN + 2}")
    a(f"v_max_u32 v{S0 + 1}, v{S0 + 1}, v{CN + 3}")
    for i in range(4):
        a(f"v_min_u32 v{BN + i}, 63, v{CN + i}")
        a(f"v_lshlrev_b32 v{BN + i}, 2, v{BN + i}")
        a(f"v_sub_u32 v{BN + i}, v{T3}, v{BN + i}")
        a(f"ds_add_rtn_u32 v{RK + i}, v{BN + i}, v{VONE} offset:{HIST2}")
    a(f"ds_read_b128 {vr(S0 + 4, 4)}, v{T0} offset:{HIST2}")
    a(f"v_cmp_lt_u32 vcc, {CAPK}, v{S0 + 1}")
    a("s_cbranch_vccz L2_nocap")
    a(f"v_mov_b32 v{S0}, 0")
    a(f"ds_write_b32 v{S0}, v{VONE} offset:{MISC}")
    a.label("L2_nocap")
    a("s_waitcnt lgkmcnt(0)")
    a(f"v_add_u32 v{S0 + 1}, v{S0 + 4}, v{S0 + 5}")
    a(f"v_add_u32 v{S0 + 2}, v{S0 + 1}, v{S0 + 6}")
    a(f"v_add_u32 v{S0 + 3}, v{S0 + 2}, v{S0 + 7}")
    a(f"v_mov_b32 v{S0}, v{S0 + 3}")
    wave_scan(a, S0)
    a(f"v_sub_u32 v{S0}, v{S0}, v{S0 + 3}")
    a(f"v_add_u32 v{S0 + 3}, v{S0}, v{S0 + 2}")
    a(f"v_add_u32 v{S0 + 2}, v{S0}, v{S0 + 1}")
    a(f"v_add_u32 v{S0 + 1}, v{S0}, v{S0 + 4}")
    a(f"ds_write_b128 v{T0}, {vr(S0, 4)} offset:{BASE2}")
    for i in range(4):
        a(f"ds_read_b32 v{S0 + 4 + i}, v{BN + i} offset:{BASE2}")
    a("s_waitcnt lgkmcnt(0)")
    for i in range(4):
        a(f"v_add_u32 v{RK + i}, v{RK + i}, v{S0 + 4 + i}")
        a(f"v_lshlrev_b32 v{RK + i}, 2, v{RK + i}")
        a(f"v_add_u32 v{S0}, {i * ((COL << 16) + ROW)}, v{T1}")
        a(f"ds_write_b32 v{RK + i}, v{CN + i} offset:{WCNT}")
        a(f"ds_write_b32 v{RK + i}, v{S0} offset:{WKEY}")
    a("s_setprio 0")
    a.label("L2_b2")
    a("s_waitcnt lgkmcnt(0)")
    stamp(a, 7)
    a("s_barrier")
    stamp(a, 8)
    if "noprio" not in OPT:
        a("s_setprio 3")
    NP = 4
    RA = 4
    PR = 8
    ACC = 12
    UR = 16
    DN = 20
    NM = 24
    DA = 28
    VB = 44
    IX = 76
    EV = 92
    VL = 100
    VFL = 101
    VFN = 102
    VRN = 103
    VIN = 104
    VWL = 105
    SC, SNL, SI = 61, 62, 63
    STR = 64
    a(f"s_mov_b32 s36, s{WS}")
    a(f"s_and_b32 s37, s{WS + 1}, 0xffff")
    a("s_or_b32 s37, s37, 0x1000000")
    a(f"s_mov_b32 s38, {N + 1}")
    a("s_mov_b32 s39, 0x20000")
    a(f"v_mov_b32 v{T0}, 0")
    a(f"ds_read_b32 v{T1}, v{T0} offset:{MISC}")
    a(f"v_lshlrev_b32 v{T2}, 4, v{LANE}")
    a(f"ds_read_b32 v{VWL}, v{T2} offset:{WCNT}")
    a(f"s_lshl_b32 s26, s{WAVE}, 4")
    a(f"v_add_u32 v{T2}, s26, v{VG4}")
    a(f"ds_read_b32 v{T3}, v{T2} offset:{WKEY}")
    for k in range(NP):
        a(f"v_mov_b32 v{IX + 4 * k + 1}, v{VJ}")
        a(f"v_mov_b32 v{IX + 4 * k + 3}, v{VJ}")
        a(f"v_mov_b32 v{EV + 2 * k}, 0")
        a(f"v_mov_b32 v{EV + 2 * k + 1}, 0")
    a(f"s_mov_b32 s66, {TINY:#x}")
    a(f"s_mov_b32 s67, {TINY:#x}")
    a(f"s_mov_b32 s68, {PART0}")
    a(f"s_mov_b32 s69, {PART1}")
    a("s_waitcnt lgkmcnt(0)")
    a(f"v_readfirstlane_b32 s24, v{T1}")
    a(f"v_add_u32 v{VWL}, 1, v{VWL}")
    a(f"v_lshrrev_b32 v{VWL}, 1, v{VWL}")
    a(f"v_max_u32 v{VWL}, {RA}, v{VWL}")
    a(f"v_lshrrev_b32 v{VL}, 16, v{T3}")
    a(f"v_add_u32 v{VL}, {LIST}, v{VL}")
    a("s_cmp_lg_u32 s24, 0")
    a("s_cbranch_scc1 L2_slow")
    for k in range(RA):
        a(f"ds_read_u16 v{IX + 4 * k}, v{VL} offset:{8 * k}")
        a(f"ds_read_u16 v{IX + 4 * k + 2}, v{VL} offset:{8 * k + 4}")
    a(f"v_and_b32 v{VRN}, 0xffff, v{T3}")
    a(f"v_add_u32 v{VRN}, v{VRN}, v{VJ}")
    a(f"v_add_u32 v{VFL}, {PART0}, v{VRN}")
    a(f"v_readlane_b32 s{SC}, v{VWL}, s{WAVE}")
    a(f"s_mov_b32 s{STR}, {RA}")
    a(f"s_mov_b32 s{SI}, s{WAVE}")
    a("s_waitcnt lgkmcnt(0)")
    for k in range(RA - 1):
        for h in range(2):
            a(f"buffer_load_dwordx4 {vr(VB + 8 * k + 4 * h, 4)}, {vr(IX + 4 * k + 2 * h, 2)}, s[36:39], 0 idxen offen")
    for k in range(RA):
        a(f"ds_read_u16_d16_hi v{EV + 2 * k}, v{VL} offset:{8 * k + 2}")
        a(f"ds_read_u16_d16_hi v{EV + 2 * k + 1}, v{VL} offset:{8 * k + 6}")
    a(f"ds_read_b128 {vr(PR, 4)}, v{VRN} offset:{PL}")
    a(f"ds_read_b128 {vr(UR, 4)}, v{VRN} offset:{PART0}")
    for i in range(4):
        a(f"v_mov_b32 v{ACC + i}, 0")
    if "noprio" not in OPT:
        a("s_setprio 2")
    a("s_waitcnt lgkmcnt(0)")
    stamp(a, 9)

    def mfma1(k, h):
        d = DA + 8 * (k & 1)
        a(f"v_mfma_f32_16x16x32_bf16 {vr(d + 4 * h, 4)}, {vr(ASEL, 4)}, {vr(VB + 8 * k + 4 * h, 4)}, {vr(PR, 4)}")

    def tail1(k):
        d = DA + 8 * (k & 1)
        vb = VB + 8 * k
        for h in range(2):
            a(f"v_pk_mul_f32 {vr(DN + 2 * h, 2)}, {vr(d + 2 * h, 2)}, {vr(d + 4 + 2 * h, 2)}")
        for h in range(2):
            a(f"v_pk_mul_f32 {vr(NM + 2 * h, 2)}, {vr(vb + 2 * h, 2)}, {vr(d + 4 + 2 * h, 2)}")
        for h in range(2):
            a(f"v_pk_fma_f32 {vr(NM + 2 * h, 2)}, {vr(vb + 4 + 2 * h, 2)}, {vr(d + 2 * h, 2)}, {vr(NM + 2 * h, 2)}")

    def rcp2(h):
        a(f"v_rcp_f32 v{DN + 2 * h}, v{DN + 2 * h}")
        a(f"v_rcp_f32 v{DN + 2 * h + 1}, v{DN + 2 * h + 1}")

    def tail2():
        a(f"v_pk_fma_f32 {vr(ACC, 2)}, {vr(NM, 2)}, {vr(DN, 2)}, {vr(ACC, 2)}")
        a(f"v_pk_fma_f32 {vr(ACC + 2, 2)}, {vr(NM + 2, 2)}, {vr(DN + 2, 2)}, {vr(ACC + 2, 2)}")

    def read_idx(k):
        a(f"ds_read_u16 v{IX + 4 * k}, v{VL} offset:{8 * (RA + k)}")
        a(f"ds_read_u16 v{IX + 4 * k + 2}, v{VL} offset:{8 * (RA + k) + 4}")

    def read_e(k):
        a(f"ds_read_u16_d16_hi v{EV + 2 * k}, v{VL} offset:{8 * (RA + k) + 2}")
        a(f"ds_read_u16_d16_hi v{EV + 2 * k + 1}, v{VL} offset:{8 * (RA + k) + 6}")

    def gather(k):
        p = (k - 1) % NP
        if "nogather" not in OPT:
            for h in range(2):
                a(f"buffer_load_dwordx4 {vr(VB + 8 * p + 4 * h, 4)}, {vr(IX + 4 * p + 2 * h, 2)}, s[36:39], 0 idxen offen")

    def front(k):
        d = DA + 8 * (k & 1)
        ep = EV + 2 * k
        for h in range(2):
            osel = "op_sel:[1,0,0] op_sel_hi:[1,1,1]" if h else "op_sel_hi:[0,1,1]"
            a(f"v_pk_fma_f32 {vr(d + 4 * h, 2)}, {vr(ep, 2)}, {vr(CV, 2)}, {vr(d + 4 * h, 2)} {osel}")
            a(f"v_pk_fma_f32 {vr(d + 4 * h + 2, 2)}, {vr(ep, 2)}, {vr(CV + 2, 2)}, {vr(d + 4 * h + 2, 2)} {osel}")
        read_e(k)
        for i in range(8):
            a(f"v_exp_f32_e64 v{d + i}, v{d + i} clamp")
            if i == 5:
                a(f"v_pk_add_f32 {vr(d, 2)}, {vr(d, 2)}, s[66:67]")
        a(f"v_pk_add_f32 {vr(d + 2, 2)}, {vr(d + 2, 2)}, s[66:67]")
        a(f"v_pk_add_f32 {vr(d + 4, 2)}, {vr(d + 4, 2)}, s[66:67]")
        a(f"v_pk_add_f32 {vr(d + 6, 2)}, {vr(d + 6, 2)}, s[66:67]")

    def flush():
        a(f"v_pk_fma_f32 {vr(UR, 2)}, {vr(ACC, 2)}, s[66:67], {vr(UR, 2)}")
        a(f"v_pk_fma_f32 {vr(UR + 2, 2)}, {vr(ACC + 2, 2)}, s[66:67], {vr(UR + 2, 2)}")
        a(f"ds_write_b128 v{VFL}, {vr(UR, 4)}")

    VW = 2 * (RA - 2)
    a(f"s_cmp_eq_u32 s{SC}, s{STR}")
    a("s_cbranch_scc1 L2_pop_first")
    a.label("L2_first_cont")
    if "nogather" not in OPT:
        a(f"s_waitcnt vmcnt({VW})")
    mfma1(0, 0)
    mfma1(0, 1)
    read_idx(0)
    a("s_nop 2")
    gather(0)
    a("s_branch L2_mid0")

    a.label("L2_loop")
    for k in range(NP):
        pk = (k - 1) % NP
        a(f"s_cmp_eq_u32 s{SC}, s{STR}")
        a(f"s_cbranch_scc1 L2_ev{k}")
        a.label(f"L2_cont{k}")
        tail1(pk)
        if "nogather" not in OPT:
            a(f"s_waitcnt vmcnt({VW})")
        mfma1(k, 0)
        rcp2(0)
        mfma1(k, 1)
        rcp2(1)
        read_idx(k)
        tail2()
        a("s_waitcnt lgkmcnt(4)")
        gather(k)
        a.label(f"L2_mid{k}")
        front(k)
        a(f"s_sub_u32 s{SC}, s{SC}, 1")
        if k == NP - 1:
            a(f"v_add_u32 v{VL}, {8 * NP}, v{VL}")
            a("s_branch L2_loop")

    def pop(k, cont):
        a(f"ds_add_rtn_u32 v{T2}, v{VQ}, v{VONE}")
        a(f"s_mov_b32 s{STR}, 0")
        a("s_waitcnt lgkmcnt(0)")
        a(f"v_readfirstlane_b32 s{SI}, v{T2}")
        a(f"s_mov_b32 s{SNL}, 0")
        a(f"v_mov_b32 v{VL}, {LIST + DUMMY_COL - 8 * (RA + k)}")
        a("s_nop 1")
        a(f"s_cmp_lt_u32 s{SI}, {NWIN}")
        a(f"s_cbranch_scc0 {cont}")
        a(f"s_lshl_b32 s26, s{SI}, 4")
        a(f"v_add_u32 v{T2}, s26, v{VG4}")
        a(f"ds_read_b32 v{T3}, v{T2} offset:{WKEY}")
        a(f"v_readlane_b32 s{SNL}, v{VWL}, s{SI}")
        a(f"s_cmp_lt_u32 s{SI}, {NWIN // 2}")
        a("s_cselect_b32 s26, s68, s69")
        a("s_waitcnt lgkmcnt(0)")
        a(f"v_and_b32 v{VRN}, 0xffff, v{T3}")
        a(f"v_lshrrev_b32 v{VL}, 16, v{T3}")
        a(f"v_add_u32 v{VRN}, v{VRN}, v{VJ}")
        a(f"v_add_u32 v{VL}, {LIST - 8 * (RA + k)}, v{VL}")
        a(f"v_add_u32 v{VFN}, s26, v{VRN}")
        a(f"v_mov_b32 v{VIN}, v{VFN}")
        a(f"s_cbranch_scc1 {cont}")
        a(f"v_mov_b32 v{VIN}, v{VZ}")
        a(f"s_branch {cont}")

    a.label("L2_pop_first")
    pop(0, "L2_first_cont")
    for k in range(NP):
        pk = (k - 1) % NP
        a.label(f"L2_ev{k}")
        a(f"s_cmp_eq_u32 s{STR}, 0")
        a(f"s_cbranch_scc1 L2_sw{k}")
        pop(k, f"L2_cont{k}")
        a.label(f"L2_sw{k}")
        tail1(pk)
        rcp2(0)
        rcp2(1)
        a("s_nop 0")
        tail2()
        flush()
        a(f"s_cmp_eq_u32 s{SNL}, 0")
        a("s_cbranch_scc1 L2_done")
        a(f"ds_read_b128 {vr(PR, 4)}, v{VRN} offset:{PL}")
        a(f"ds_read_b128 {vr(UR, 4)}, v{VIN}")
        for i in range(4):
            a(f"v_mov_b32 v{ACC + i}, 0")
        a(f"v_mov_b32 v{VFL}, v{VFN}")
        a(f"s_mov_b32 s{SC}, s{SNL}")
        a(f"s_mov_b32 s{STR}, {RA}")
        if "noprio" not in OPT:
            a(f"s_cmp_lt_u32 s{SI}, {PRIO_B}")
            a(f"s_cbranch_scc1 L2_p1_{k}")
            a("s_setprio 0")
            a(f"s_branch L2_pd_{k}")
            a.label(f"L2_p1_{k}")
            a(f"s_cmp_lt_u32 s{SI}, {PRIO_A}")
            a(f"s_cbranch_scc1 L2_pd_{k}")
            a("s_setprio 1")
            a.label(f"L2_pd_{k}")
        a(f"s_cmp_eq_u32 s{SC}, {RA}")
        a(f"s_cbranch_scc0 L2_sw2_{k}")
        pop(k, f"L2_sw2_{k}")
        a.label(f"L2_sw2_{k}")
        if "nogather" not in OPT:
            a(f"s_waitcnt vmcnt({VW}) lgkmcnt(0)")
        else:
            a("s_waitcnt lgkmcnt(0)")
        mfma1(k, 0)
        mfma1(k, 1)
        read_idx(k)
        a("s_nop 2")
        gather(k)
        a(f"s_branch L2_mid{k}")

    a.label("L2_slow")
    SSC, SCN, SRI = 61, 62, 63
    a(f"v_lshlrev_b32 v{T0}, 2, v{LANE}")
    a(f"v_lshlrev_b32 v{T1}, 1, v{LANE}")
    a(f"v_add_u32 v{T1}, {128 * 128}, v{T1}")
    a(f"global_load_ushort v{T2}, v{T1}, {sr(GW)}")
    a(f"s_mov_b32 s24, {LOG2E_NEG:#x}")
    a(f"s_mov_b32 s25, s{WAVE}")
    a("v_mov_b32 v9, 0")
    a.label("L2_slow_z")
    a(f"s_mul_i32 s26, s25, {ROW}")
    a(f"v_add_u32 v10, s26, v{T0}")
    a(f"ds_write_b32 v10, v9 offset:{PART1}")
    a("s_add_u32 s25, s25, 16")
    a(f"s_cmp_lt_u32 s25, {NPB}")
    a("s_cbranch_scc1 L2_slow_z")
    a("s_waitcnt vmcnt(0) lgkmcnt(0)")
    a(f"v_lshlrev_b32 v{T2}, 16, v{T2}")
    a(f"v_mul_f32 v8, s24, v{T2}")
    a(f"s_mov_b32 s{SSC}, 0")
    a.label("L2_slow_seg")
    a(f"s_cmp_ge_u32 s{SSC}, {NC}")
    a("s_cbranch_scc1 L2_done")
    a(f"s_lshl_b32 s24, s{SSC}, 8")
    a("s_add_u32 s24, s24, s2")
    a("s_lshl_b32 s24, s24, 2")
    a(f"s_add_u32 s24, s24, {SEG_OFF}")
    a(f"v_mov_b32 v{T1}, s24")
    a(f"global_load_dword v{T2}, v{T1}, {sr(WS)}")
    a("s_waitcnt vmcnt(0)")
    a(f"v_readfirstlane_b32 s25, v{T2}")
    a("s_nop 3")
    a(f"s_lshr_b32 s{SCN}, s25, 16")
    a("s_and_b32 s25, s25, 0xffff")
    a(f"s_mul_i32 s26, s{SSC}, {EPC}")
    a("s_add_u32 s26, s26, s25")
    a("s_lshl_b32 s26, s26, 3")
    a(f"s_add_u32 s{SRI}, s26, {REC_OFF}")
    a.label("L2_slow_rec")
    a(f"s_cmp_eq_u32 s{SCN}, 0")
    a("s_cbranch_scc1 L2_slow_next")
    a(f"v_mov_b32 v{T1}, s{SRI}")
    a(f"global_load_dwordx2 v[10:11], v{T1}, {sr(WS)}")
    a(f"s_add_u32 s{SRI}, s{SRI}, 8")
    a(f"s_sub_u32 s{SCN}, s{SCN}, 1")
    a("s_waitcnt vmcnt(0)")
    a("v_and_b32 v14, 127, v11")
    a("v_and_b32 v15, 15, v14")
    a("s_nop 0")
    a("v_readfirstlane_b32 s25, v15")
    a("s_nop 3")
    a(f"s_cmp_lg_u32 s25, s{WAVE}")
    a("s_cbranch_scc1 L2_slow_rec")
    a("v_and_b32 v18, 0xffff, v10")
    a(f"v_mov_b32 v19, v{T0}")
    a("buffer_load_dword v13, v[18:19], s[36:39], 0 idxen offen")
    a(f"v_mul_u32_u24 v14, {ROW}, v14")
    a(f"v_add_u32 v14, v14, v{T0}")
    a(f"ds_read_b32 v15, v14 offset:{PL}")
    a(f"ds_read_b32 v17, v14 offset:{PART1}")
    a("v_and_b32 v11, 0xffff0000, v10")
    a("s_waitcnt vmcnt(0) lgkmcnt(0)")
    a("v_lshlrev_b32 v16, 16, v13")
    a("v_add_f32 v16, v16, v15")
    a("v_fmac_f32 v16, v11, v8")
    a("v_exp_f32 v16, v16")
    a(f"s_mov_b32 s25, {TINY:#x}")
    a("v_add_f32 v16, s25, v16")
    a("v_rcp_f32 v16, v16")
    a("s_nop 0")
    a("v_mul_f32 v16, s25, v16")
    a("v_fmac_f32 v17, v16, v13")
    a(f"ds_write_b32 v14, v17 offset:{PART1}")
    a("s_waitcnt lgkmcnt(0)")
    a("s_branch L2_slow_rec")
    a.label("L2_slow_next")
    a(f"s_add_u32 s{SSC}, s{SSC}, 1")
    a("s_branch L2_slow_seg")

    a.label("L2_done")
    stamp(a, 10)
    a("s_setprio 0")
    a("s_waitcnt vmcnt(0) lgkmcnt(0)")
    a("s_barrier")
    stamp(a, 11)
    a(f"v_lshrrev_b32 v{T0}, 4, v{TID}")
    a(f"v_and_b32 v{T1}, 15, v{TID}")
    a(f"v_mul_u32_u24 v{T2}, {ROW}, v{T0}")
    a(f"v_lshl_add_u32 v{T2}, v{T1}, 4, v{T2}")
    a(f"s_mul_i32 s24, s2, {NPB * 128}")
    a(f"v_lshlrev_b32 v{T3}, 7, v{T0}")
    a(f"v_lshl_add_u32 v{T3}, v{T1}, 3, v{T3}")
    a(f"v_add_u32 v{T3}, s24, v{T3}")
    a(f"s_mov_b32 s24, {LOG2E_NEG:#x}")
    a(f"s_mov_b32 s25, {LOG2E_NEG:#x}")
    a("s_mov_b32 s26, 1.0")
    a("s_mov_b32 s27, 1.0")

    def silu_store(src, off):
        a(f"v_pk_add_f32 {vr(src, 2)}, {vr(src, 2)}, {vr(src + 4, 2)}")
        a(f"v_pk_add_f32 {vr(src + 2, 2)}, {vr(src + 2, 2)}, {vr(src + 6, 2)}")
        a(f"v_pk_mul_f32 {vr(src + 4, 2)}, {vr(src, 2)}, s[24:25]")
        a(f"v_pk_mul_f32 {vr(src + 6, 2)}, {vr(src + 2, 2)}, s[24:25]")
        for i in range(4):
            a(f"v_exp_f32 v{src + 4 + i}, v{src + 4 + i}")
        a(f"v_pk_add_f32 {vr(src + 4, 2)}, {vr(src + 4, 2)}, s[26:27]")
        a(f"v_pk_add_f32 {vr(src + 6, 2)}, {vr(src + 6, 2)}, s[26:27]")
        for i in range(4):
            a(f"v_rcp_f32 v{src + 4 + i}, v{src + 4 + i}")
        a(f"v_pk_mul_f32 {vr(src, 2)}, {vr(src, 2)}, {vr(src + 4, 2)}")
        a(f"v_pk_mul_f32 {vr(src + 2, 2)}, {vr(src + 2, 2)}, {vr(src + 6, 2)}")
        a(f"v_cvt_pk_bf16_f32 v{src + 4}, v{src}, v{src + 1}")
        a(f"v_cvt_pk_bf16_f32 v{src + 5}, v{src + 2}, v{src + 3}")
        a(f"global_store_dwordx2 v{off}, {vr(src + 4, 2)}, {sr(OUT)}{STO}")

    a(f"ds_read_b128 v[8:11], v{T2} offset:{PART0}")
    a(f"ds_read_b128 v[12:15], v{T2} offset:{PART1}")
    a(f"s_cmp_lt_u32 s{WAVE}, 9")
    a("s_cbranch_scc0 L2_ep1")
    a(f"v_add_u32 v7, {64 * ROW}, v{T2}")
    a(f"ds_read_b128 v[16:19], v7 offset:{PART0}")
    a(f"ds_read_b128 v[20:23], v7 offset:{PART1}")
    a("s_waitcnt lgkmcnt(0)")
    a(f"v_add_u32 v6, {64 * 128}, v{T3}")
    silu_store(16, 6)
    a.label("L2_ep1")
    a("s_waitcnt lgkmcnt(0)")
    silu_store(8, T3)
    if "dbgt" in OPT:
        a("s_waitcnt vmcnt(0)")
    dbg_time(a, 1, 3)
    stamp(a, 12)
    if STAMPS:
        a("s_waitcnt vmcnt(0)")
    stamp(a, 13)
    stamp(a, 21, True)
    stamp_flush(a, 1)
    a.label("L2_end")
    a("s_endpgm")
    return LDS, 128


def descriptor(a, name, vgprs, sgprs=80):
    a(f".amdhsa_kernel {name}")
    a(f"  .amdhsa_next_free_vgpr {vgprs}")
    a(f"  .amdhsa_next_free_sgpr {sgprs}")
    a(f"  .amdhsa_accum_offset {vgprs}")
    a("  .amdhsa_group_segment_fixed_size 0")
    a("  .amdhsa_kernarg_size 80")
    a("  .amdhsa_user_sgpr_count 2")
    a("  .amdhsa_user_sgpr_kernarg_segment_ptr 1")
    a("  .amdhsa_system_sgpr_workgroup_id_x 1")
    a("  .amdhsa_float_denorm_mode_32 3")
    a(".end_amdhsa_kernel")


def main():
    global STAMPS, ST, STT, STR_, STO
    if "--stamps" in sys.argv:
        STAMPS = True
        sys.argv.remove("--stamps")
    for o in OPT:
        if o.startswith("st="):
            ST = STT = STR_ = " " + o[3:].replace("+", " ")
        if o.startswith("stt="):
            STT = " " + o[4:].replace("+", " ")
        if o.startswith("sto="):
            STO = " " + o[4:].replace("+", " ")
        if o.startswith("str="):
            STR_ = " " + o[4:].replace("+", " ")
    body = Asm()
    body(".amdgcn_target \"amdgcn-amd-amdhsa--gfx950\"")
    body(".text")
    lds1, v1 = gen_k1(body)
    lds2, v2 = gen_k2(body)
    body(".section .rodata,\"a\"")
    body(".p2align 6")
    descriptor(body, K1, 128 if (STAMPS or 'dbgt' in OPT) else v1)
    body(".p2align 6")
    descriptor(body, K2, v2)
    head = [
        "; Edge-gated MPNN layer in two launches (generated by a hand-written generator script).",
        "; launch 1: partitions the edges by destination bucket and builds the per-node source table",
        "; launch 2: per bucket of 100 nodes: sorts its edges, gated aggregation, SiLU epilogue",
        f"; @launch kernel={K1} grid=({NC},1,1) block=(1024,1,1) lds={lds1}",
        f"; @launch kernel={K2} grid=({NB},1,1) block=(1024,1,1) lds={lds2}",
    ]
    out = "\n".join(head) + "\n" + body.text()
    path = sys.argv[1] if len(sys.argv) > 1 else "standalone__edge_featured_mpnn_egc__graph.s"
    open(path, "w").write(out)
    print("wrote", path, "lds", lds1, lds2)


if __name__ == "__main__":
    main()
```

```python
import os
import sys

N = 25000
E = 800000
NB = 250
NPB = 100
NC = 250
EPC = 3200
HALF = 12500

T_OFF = 0
REC_OFF = int(os.environ.get('REC_OFF', '0x700000'), 0)
SEG_OFF = REC_OFF + 0x700000

LOG2E_NEG = 0xBFB8AA3B
SHIFT_NEG = 0xC2700000
TINY = 0x21800000
ROW = 272
XROW = 144

K1 = "egc_part_kernel"
K2 = "standalone__edge_featured_mpnn_egc__graph_kernel"

OPT = set(os.environ.get("OPT", "").split(","))
PRIO_A = int(os.environ.get('PRIO_A', '25'))
PRIO_B = int(os.environ.get('PRIO_B', '38'))
STAMPS = False
STAMP_OFF = 0x2000000
SV = 127

X, EA, SRC, DST, UW, VW, GW, OUT, WS = 4, 6, 8, 10, 12, 14, 16, 18, 20
WAVE = 22


def stamp(a, i, real=False):
    if not STAMPS:
        return
    a(f"s_mem{'real' if real else ''}time s[70:71]")
    a("s_waitcnt lgkmcnt(0)")
    a(f"v_writelane_b32 v{SV}, s70, {i}")


TIME_OFF = 0x2800000


def dbg_time(a, which, slot, neg=False, tag=""):
    if "dbgt" not in OPT:
        return
    a("v_readfirstlane_b32 s78, v0")
    a("s_nop 3")
    a("s_cmp_lg_u32 s78, 0")
    a(f"s_cbranch_scc1 L_dbg_{which}_{slot}")
    a("s_memrealtime s[70:71]")
    a(f"s_load_dwordx2 s[74:75], s[0:1], {72 if which == 0 else 64}")
    a("s_waitcnt lgkmcnt(0)")
    if neg:
        a("s_not_b32 s70, s70")
    a("v_mov_b32 v125, s70")
    a("s_mov_b64 s[76:77], exec")
    a("s_mov_b64 exec, 1")
    if which == 0:
        a("s_lshl_b32 s78, s2, 3")
        a(f"s_add_u32 s78, s78, {TIME_OFF + slot * 4}")
        a("v_mov_b32 v126, s78")
        a("global_store_dword v126, v125, s[74:75]")
    else:
        a(f"v_mov_b32 v126, {slot * 4}")
        a("global_atomic_umax v126, v125, s[74:75]")
    a("s_mov_b64 exec, s[76:77]")
    if which == 1 and slot == 2:
        a("s_cmp_lg_u32 s2, 0")
        a(f"s_cbranch_scc1 L_dbg_{which}_{slot}")
        a("s_load_dwordx2 s[76:77], s[0:1], 72")
        a("s_waitcnt lgkmcnt(0)")
        for r in range(4):
            a(f"v_add_u32 v124, {64 * r}, v0")
            a("v_min_u32 v124, 249, v124")
            a("v_lshlrev_b32 v124, 3, v124")
            a(f"v_add_u32 v124, {TIME_OFF}, v124")
            a("global_load_dwordx2 v[122:123], v124, s[76:77]")
            a("s_waitcnt vmcnt(0)")
            a("v_mov_b32 v126, 16")
            a("global_atomic_umax v126, v122, s[74:75]")
            a("v_mov_b32 v126, 20")
            a("global_atomic_umax v126, v123, s[74:75]")
        a("s_waitcnt vmcnt(0)")
    a.label(f"L_dbg_{which}_{slot}")


def stamp_flush(a, which):
    if not STAMPS:
        return
    a("s_lshl_b32 s72, s2, 4")
    a(f"s_add_u32 s72, s72, s{WAVE}")
    a("s_lshl_b32 s72, s72, 8")
    a(f"s_add_u32 s72, s72, {STAMP_OFF + which * 0x200000}")
    a("v_and_b32 v126, 63, v0")
    a("v_lshlrev_b32 v126, 2, v126")
    a("v_add_u32 v126, s72, v126")
    a(f"global_store_dword v126, v{SV}, s[20:21]")


class Asm:
    def __init__(self):
        self.lines = []

    def __call__(self, s=""):
        for ln in s.split("\n"):
            self.lines.append(ln if ln.strip().endswith(":") else "    " + ln.strip())

    def label(self, s):
        self.lines.append(s + ":")

    def text(self):
        return "\n".join(self.lines) + "\n"


def vr(a, n):
    return f"v[{a}:{a + n - 1}]"


def sr(a, n=2):
    return f"s[{a}:{a + n - 1}]"


def wave_scan(a, v):
    for sh in (1, 2, 4, 8):
        a("s_nop 1")
        a(f"v_add_u32_dpp v{v}, v{v}, v{v} row_shr:{sh} row_mask:0xf bank_mask:0xf bound_ctrl:0")
    a("s_nop 1")
    a(f"v_add_u32_dpp v{v}, v{v}, v{v} row_bcast:15 row_mask:0xa bank_mask:0xf")
    a("s_nop 1")
    a(f"v_add_u32_dpp v{v}, v{v}, v{v} row_bcast:31 row_mask:0xc bank_mask:0xf")
    a("s_nop 1")


WSBASE = int(os.environ.get("WSBASE", "0"), 0)


def load_ptrs(a):
    a("s_load_dwordx16 s[4:19], s[0:1], 0")
    a("s_load_dwordx2 s[20:21], s[0:1], 72")


def fix_ws(a):
    if WSBASE:
        a(f"s_add_u32 s20, s20, {WSBASE}")
        a("s_addc_u32 s21, s21, 0")


ST = ""
STT = ""
STR_ = ""
STO = ""


class Node:
    def __init__(self, a, WST, XST, tid, lane, vw, vx, t):
        self.a, self.WST, self.XST = a, WST, XST
        self.tid, self.lane, self.vw, self.vx, self.t = tid, lane, vw, vx, t

    def issue_loads(self, p0, off0, p1):
        a, t = self.a, self.t
        a(f"s_cmp_lt_u32 s{WAVE}, 8")
        a(f"s_cselect_b32 s24, s{p0}, s{p1}")
        a(f"s_cselect_b32 s25, s{p0 + 1}, s{p1 + 1}")
        if off0:
            a(f"s_cselect_b32 s26, {off0}, 0")
            a("s_add_u32 s24, s24, s26")
            a("s_addc_u32 s25, s25, 0")
        a(f"v_and_b32 v{t}, 511, v{self.tid}")
        a(f"v_lshlrev_b32 v{t}, 4, v{t}")
        a(f"global_load_dwordx4 {vr(self.vw, 4)}, v{t}, s[24:25]")
        a(f"v_min_u32 v{t}, {NPB * 8 - 1}, v{self.tid}")
        a(f"v_lshlrev_b32 v{t}, 4, v{t}")
        a(f"s_mul_i32 s26, s2, {NPB * 128}")
        a(f"v_add_u32 v{t}, s26, v{t}")
        a(f"global_load_dwordx4 {vr(self.vx, 4)}, v{t}, {sr(X)}")

    def stage(self):
        a, t, tid = self.a, self.t, self.tid
        a(f"v_bfe_u32 v{t}, v{tid}, 4, 1")
        a(f"v_bfe_u32 v{t + 1}, v{tid}, 6, 1")
        a(f"v_lshl_or_b32 v{t}, v{t + 1}, 1, v{t}")
        a(f"v_lshlrev_b32 v{t}, 5, v{t}")
        a(f"v_lshlrev_b32 v{t + 1}, 4, v{tid}")
        a(f"v_xor_b32 v{t}, v{t}, v{t + 1}")
        a(f"v_add_u32 v{t}, {self.WST}, v{t}")
        a(f"ds_write_b128 v{t}, {vr(self.vw, 4)}")
        a(f"v_lshrrev_b32 v{t}, 3, v{tid}")
        a(f"v_mul_u32_u24 v{t}, {XROW}, v{t}")
        a(f"v_and_b32 v{t + 1}, 7, v{tid}")
        a(f"v_lshl_add_u32 v{t}, v{t + 1}, 4, v{t}")
        a(f"v_add_u32 v{t}, {self.XST}, v{t}")
        a(f"v_cmp_gt_u32 vcc, {NPB * 8}, v{tid}")
        a("s_and_saveexec_b64 s[32:33], vcc")
        a(f"ds_write_b128 v{t}, {vr(self.vx, 4)}")
        a("s_mov_b64 exec, s[32:33]")

    def stage_addr(self, vw_a, vx_a, t):
        a, tid = self.a, self.tid
        a(f"v_bfe_u32 v{vw_a}, v{tid}, 4, 1")
        a(f"v_bfe_u32 v{t}, v{tid}, 6, 1")
        a(f"v_lshl_or_b32 v{vw_a}, v{t}, 1, v{vw_a}")
        a(f"v_lshlrev_b32 v{vw_a}, 5, v{vw_a}")
        a(f"v_lshlrev_b32 v{t}, 4, v{tid}")
        a(f"v_xor_b32 v{vw_a}, v{vw_a}, v{t}")
        a(f"v_add_u32 v{vw_a}, {self.WST}, v{vw_a}")
        a(f"v_lshrrev_b32 v{vx_a}, 3, v{tid}")
        a(f"v_mul_u32_u24 v{vx_a}, {XROW}, v{vx_a}")
        a(f"v_and_b32 v{t}, 7, v{tid}")
        a(f"v_lshl_add_u32 v{vx_a}, v{t}, 4, v{vx_a}")
        a(f"v_add_u32 v{vx_a}, {self.XST}, v{vx_a}")

    def stage_write(self, vw_a, vx_a):
        a, tid = self.a, self.tid
        a(f"ds_write_b128 v{vw_a}, {vr(self.vw, 4)}")
        a(f"v_cmp_gt_u32 vcc, {NPB * 8}, v{tid}")
        a("s_and_saveexec_b64 s[32:33], vcc")
        a(f"ds_write_b128 v{vx_a}, {vr(self.vx, 4)}")
        a("s_mov_b64 exec, s[32:33]")

    def pair_reads(self, aop, xop, vloc):
        a, t, lane = self.a, self.t, self.lane
        a(f"s_and_b32 s27, s{WAVE}, 1")
        a("s_lshl_b32 s27, s27, 1")
        a(f"s_lshr_b32 s26, s{WAVE}, 1")
        a(f"v_and_b32 v{t}, 15, v{lane}")
        a(f"v_lshrrev_b32 v{t + 1}, 4, v{lane}")
        a("s_lshl_b32 s26, s26, 4")
        a(f"v_add_u32 v{vloc}, s26, v{t}")
        a(f"v_mul_u32_u24 v{t + 2}, {XROW}, v{vloc}")
        a(f"v_lshl_add_u32 v{t + 2}, v{t + 1}, 4, v{t + 2}")
        a(f"v_add_u32 v{t + 2}, {self.XST}, v{t + 2}")
        a(f"ds_read_b128 {vr(xop, 4)}, v{t + 2}")
        a(f"ds_read_b128 {vr(xop + 4, 4)}, v{t + 2} offset:64")
        a(f"v_lshrrev_b32 v{t + 2}, 3, v{t}")
        a(f"v_and_b32 v{xop + 8}, 1, v{t + 1}")
        a(f"v_lshl_or_b32 v{t + 2}, v{xop + 8}, 1, v{t + 2}")
        a(f"v_xor_b32 v{t + 2}, s27, v{t + 2}")
        a(f"v_lshlrev_b32 v{t + 2}, 5, v{t + 2}")
        a(f"v_lshrrev_b32 v{xop + 8}, 2, v{t}")
        a(f"v_lshl_add_u32 v{xop + 8}, v{t + 1}, 3, v{xop + 8}")
        a(f"v_lshl_add_u32 v{t + 2}, v{xop + 8}, 7, v{t + 2}")
        a(f"v_and_b32 v{xop + 8}, 3, v{t}")
        a(f"v_lshl_add_u32 v{t + 2}, v{xop + 8}, 3, v{t + 2}")
        a(f"v_add_u32 v{t + 2}, {self.WST}, v{t + 2}")
        assert self.WST % 128 == 0
        for c in range(2):
            if c:
                a("s_waitcnt lgkmcnt(6)")
                a(f"v_xor_b32 v{t + 2}, 32, v{t + 2}")
            for m in range(2):
                for ks in range(2):
                    for hh in range(2):
                        r = aop + c * 16 + (m * 2 + ks) * 4 + hh * 2
                        a(f"ds_read_b64_tr_b16 {vr(r, 2)}, v{t + 2} offset:{m * 8192 + ks * 4096 + hh * 512}")

    def pair_mfma(self, aop, xop, dd):
        a = self.a
        for ks in range(2):
            for c in range(2):
                for m in range(2):
                    d = dd + (c * 2 + m) * 4
                    cop = "0" if ks == 0 else vr(d, 4)
                    a(f"v_mfma_f32_16x16x32_bf16 {vr(d, 4)}, {vr(aop + c * 16 + (m * 2 + ks) * 4, 4)}, {vr(xop + 4 * ks, 4)}, {cop}")


def copy_out(a, lds_addr_fn, goff_sgpr, t0, t1, d0, d1, tag):
    ST = STT if tag == "t" else STR_
    lds_addr_fn(0, t1)
    a(f"ds_read_b128 {vr(d0, 4)}, v{t1}")
    a(f"v_lshlrev_b32 v{t0}, 4, v0")
    a(f"v_add_u32 v{t0}, s{goff_sgpr}, v{t0}")
    a(f"s_cmp_gt_u32 s{WAVE}, 8")
    a(f"s_cbranch_scc1 L1_one{tag}")
    a(f"v_add_u32 v{t1}, 1024, v0")
    lds_addr_fn(t1, t1)
    a(f"ds_read_b128 {vr(d1, 4)}, v{t1}")
    a(f"v_add_u32 v{t1}, 16384, v{t0}")
    a("s_waitcnt lgkmcnt(0)")
    a(f"global_store_dwordx4 v{t1}, {vr(d1, 4)}, {sr(WS)}{ST}")
    a.label(f"L1_one{tag}")
    a("s_waitcnt lgkmcnt(0)")
    a(f"global_store_dwordx4 v{t0}, {vr(d0, 4)}, {sr(WS)}{ST}")


def gen_k1(a):
    HIST, BASE = 0, 1024
    WST = 2048
    XST = WST + 16384
    TST = XST + 112 * XROW
    STG = TST + NPB * ROW
    LDS = STG + EPC * 8
    TID, LANE = 0, 1
    T0, T1, T2, T3 = 2, 3, 14, 15
    VD, VS, VE = 4, 8, 12
    VW_, VX_ = 16, 20
    XOP = 24
    AOP = 36
    DD = 68
    PK = 84
    VLOC = 87
    VB, VR = 88, 92
    RP = 104
    NT = 100
    nd = Node(a, WST, XST, TID, LANE, VW_, VX_, NT)

    a(f".globl {K1}")
    a(".p2align 8")
    a(f".type {K1},@function")
    a.label(K1)
    a(f"s_cmp_ge_u32 s2, {NC}")
    a("s_cbranch_scc1 L1_end")
    dbg_time(a, 0, 0, True)
    stamp(a, 0)
    stamp(a, 20, True)
    load_ptrs(a)
    a(f"v_and_b32 v{LANE}, 63, v{TID}")
    a(f"v_lshrrev_b32 v{T0}, 6, v{TID}")
    a(f"v_lshlrev_b32 v{T1}, 2, v{TID}")
    a(f"v_readfirstlane_b32 s{WAVE}, v{T0}")
    a(f"v_mov_b32 v{T0}, 0")
    a(f"s_cmp_lt_u32 s{WAVE}, 4")
    a("s_cbranch_scc0 L1_nozero")
    a(f"ds_write_b32 v{T1}, v{T0} offset:{HIST}")
    a.label("L1_nozero")
    a("s_waitcnt lgkmcnt(0)")
    fix_ws(a)
    stamp(a, 1)
    nd.issue_loads(GW, 8192, VW)
    a("s_barrier")
    a(f"s_cmp_gt_u32 s{WAVE}, 12")
    a("s_cbranch_scc1 L1_noedge0")
    a(f"s_mul_i32 s24, s2, {EPC * 4}")
    a(f"v_lshlrev_b32 v{T0}, 4, v{TID}")
    a(f"v_add_u32 v{T0}, s24, v{T0}")
    a(f"v_lshrrev_b32 v{T1}, 1, v{T0}")
    a(f"v_cmp_gt_u32 vcc, {EPC // 4}, v{TID}")
    a("s_and_saveexec_b64 s[32:33], vcc")
    a(f"global_load_dwordx4 {vr(VD, 4)}, v{T0}, {sr(DST)}")
    a(f"global_load_dwordx4 {vr(VS, 4)}, v{T0}, {sr(SRC)}")
    a(f"global_load_dwordx2 {vr(VE, 2)}, v{T1}, {sr(EA)}")
    a("s_mov_b64 exec, s[32:33]")
    a("s_waitcnt vmcnt(3)")
    a("s_branch L1_wx")
    a.label("L1_noedge0")
    a("s_waitcnt vmcnt(0)")
    a.label("L1_wx")
    stamp(a, 2)
    nd.stage()
    a("s_waitcnt lgkmcnt(0)")
    a("s_barrier")
    stamp(a, 3)
    a(f"s_cmp_gt_u32 s{WAVE}, 13")
    a("s_cbranch_scc1 L1_notask")
    nd.pair_reads(AOP, XOP, VLOC)
    a(f"v_mul_u32_u24 v{T0}, {ROW}, v{VLOC}")
    a(f"v_lshrrev_b32 v{T1}, 4, v{LANE}")
    a(f"v_lshl_add_u32 v{T0}, v{T1}, 4, v{T0}")
    a("s_lshl_b32 s30, s27, 6")
    a(f"s_add_u32 s30, s30, {TST}")
    a(f"v_add_u32 v{T0}, s30, v{T0}")
    a(f"s_mov_b32 s24, {LOG2E_NEG:#x}")
    a("s_mov_b32 s25, 0x7fff0000")
    a("s_mov_b32 s30, 0x7fffffff")
    VLO, VHI = 33, 34
    a(f"v_mov_b32 v{VLO}, 0xc77fe000")
    a(f"v_mov_b32 v{VHI}, 0x477fe000")
    a(f"v_cmp_gt_u32 vcc, {NPB}, v{VLOC}")
    a("s_waitcnt lgkmcnt(0)")
    nd.pair_mfma(AOP, XOP, DD)
    a("s_nop 5")
    for c in range(2):
        DQ, DH = DD + c * 8, DD + c * 8 + 4
        if c == 1:
            pass
        for i in range(4):
            a(f"v_mul_f32 v{DQ + i}, s24, v{DQ + i}")
        for i in range(4):
            a(f"v_med3_f32 v{DQ + i}, v{DQ + i}, v{VLO}, v{VHI}")
        a(f"v_cvt_pk_f16_f32 v{PK}, v{DQ}, v{DQ + 1}")
        a(f"v_cvt_pk_f16_f32 v{PK + 1}, v{DQ + 2}, v{DQ + 3}")
        for i in range(4):
            h = DH + i
            sel = "WORD_1" if i % 2 else "WORD_0"
            a(f"v_and_b32 v{DQ + i}, s30, v{h}")
            a(f"v_add_u32 v{DQ + i}, 0x8000, v{DQ + i}")
            a(f"v_sub_u32_sdwa v{DQ + i}, v{DQ + i}, v{PK + i // 2} clamp dst_sel:DWORD dst_unused:UNUSED_PAD src0_sel:DWORD src1_sel:{sel}")
        for i in range(4):
            h = DH + i
            a(f"v_bfi_b32 v{h}, s25, v{DQ + i}, v{h}")
        for i in range(4):
            h = DH + i
            sel = "WORD_1" if i % 2 else "WORD_0"
            a(f"v_mov_b32_sdwa v{h}, v{PK + i // 2} dst_sel:WORD_0 dst_unused:UNUSED_PRESERVE src0_sel:{sel}")
        a("s_and_saveexec_b64 s[32:33], vcc")
        a(f"ds_write_b128 v{T0}, {vr(DH, 4)} offset:{c * 64}")
        a("s_mov_b64 exec, s[32:33]")
    a.label("L1_notask")
    a("s_waitcnt lgkmcnt(0)")
    stamp(a, 4)
    a("s_barrier")

    a(f"s_sub_u32 s24, s{WAVE}, 13")
    a("s_cmp_lt_u32 s24, 2")
    a("s_cbranch_scc0 L1_not")
    a(f"v_lshrrev_b32 v{T0}, 4, v{LANE}")
    a(f"v_mul_u32_u24 v{T0}, {ROW}, v{T0}")
    a(f"v_and_b32 v{T1}, 15, v{LANE}")
    a(f"v_lshl_add_u32 v{T0}, v{T1}, 4, v{T0}")
    a(f"s_mul_i32 s25, s24, {13 * 4 * ROW}")
    a(f"s_add_u32 s25, s25, {TST}")
    a(f"v_add_u32 v{T0}, s25, v{T0}")
    a(f"s_mul_i32 s26, s2, {NPB * 256}")
    a(f"s_mul_i32 s25, s24, {13 * 1024}")
    a("s_add_u32 s26, s26, s25")
    a(f"v_lshlrev_b32 v{T1}, 4, v{LANE}")
    a(f"v_add_u32 v{T1}, s26, v{T1}")
    for n in range(12):
        a(f"ds_read_b128 {vr(16 + 4 * n, 4)}, v{T0} offset:{n * 4 * ROW}")
    a(f"v_add_u32 v{T2}, {12 * 1024}, v{T1}")
    a("s_cmp_eq_u32 s24, 0")
    a("s_cbranch_scc0 L1_t12")
    a(f"ds_read_b128 {vr(64, 4)}, v{T0} offset:{12 * 4 * ROW}")
    a("s_waitcnt lgkmcnt(0)")
    a(f"global_store_dwordx4 v{T2}, {vr(64, 4)}, {sr(WS)}{STT}")
    a.label("L1_t12")
    for n in range(12):
        a(f"s_waitcnt lgkmcnt({max(0, 11 - n)})")
        a(f"global_store_dwordx4 v{T1}, {vr(16 + 4 * n, 4)}, {sr(WS)} offset:{(n % 4) * 1024}{STT}")
        if n % 4 == 3:
            a(f"v_add_u32 v{T1}, 4096, v{T1}")
    if "readback" in OPT:
        a("s_waitcnt vmcnt(0)")
        a(f"v_subrev_u32 v{T1}, {3 * 4096}, v{T1}")
        for n in range(12):
            a(f"global_load_dwordx4 {vr(16 + 4 * n, 4)}, v{T1}, {sr(WS)} offset:{(n % 4) * 1024}")
            if n % 4 == 3:
                a(f"v_add_u32 v{T1}, 4096, v{T1}")
        a(f"global_load_dwordx4 {vr(64, 4)}, v{T2}, {sr(WS)}")
        a("s_waitcnt vmcnt(0)")
    if "wbl2" in OPT:
        a("s_waitcnt vmcnt(0)")
        a("buffer_wbl2 sc1")
        a("s_waitcnt vmcnt(0)")
    stamp(a, 5)
    if STAMPS:
        a("s_waitcnt vmcnt(0)")
    stamp(a, 11)
    stamp(a, 21, True)
    stamp_flush(a, 0)
    a("s_endpgm")
    a.label("L1_not")
    stamp(a, 5)
    a(f"s_cmp_gt_u32 s{WAVE}, 12")
    a("s_cbranch_scc1 L1_noedge1")
    a(f"v_cmp_gt_u32 vcc, {EPC // 4}, v{TID}")
    a("s_and_saveexec_b64 s[32:33], vcc")
    a(f"v_mov_b32 v{T1}, 1")
    a("s_movk_i32 s24, -100")
    a("s_mov_b32 s25, 0xffff0000")
    a("s_movk_i32 s30, 128")
    a("s_waitcnt vmcnt(0)")
    for i in range(4):
        a(f"v_mul_u32_u24 v{T0}, 5243, v{VD + i}")
        a(f"v_lshrrev_b32 v{T0}, 19, v{T0}")
        a(f"v_lshlrev_b32 v{VB + i}, 2, v{T0}")
        a(f"ds_add_rtn_u32 v{VR + i}, v{VB + i}, v{T1} offset:{HIST}")
        a(f"v_mad_i32_i24 v{T2}, v{T0}, s24, v{VD + i}")
        a(f"v_lshrrev_b32 v{T3}, 5, v{VS + i}")
        a(f"v_and_or_b32 v{RP + 2 * i + 1}, v{T3}, s30, v{T2}")
        if "smallsrc" in OPT:
            a(f"v_and_b32 v{VS + i}, 0x7ff, v{VS + i}")
        if i % 2 == 0:
            a(f"v_lshl_or_b32 v{RP + 2 * i}, v{VE + i // 2}, 16, v{VS + i}")
        else:
            a(f"v_and_or_b32 v{RP + 2 * i}, v{VE + i // 2}, s25, v{VS + i}")
    a("s_mov_b64 exec, s[32:33]")
    a.label("L1_noedge1")
    a("s_waitcnt lgkmcnt(0)")
    stamp(a, 6)
    a("s_barrier")
    stamp(a, 7)
    a(f"s_cmp_eq_u32 s{WAVE}, 15")
    a("s_cbranch_scc0 L1_b2")
    C0 = 24
    a(f"v_lshlrev_b32 v{T0}, 4, v{LANE}")
    a(f"ds_read_b128 {vr(C0, 4)}, v{T0} offset:{HIST}")
    a("s_waitcnt lgkmcnt(0)")
    P = 28
    a(f"v_add_u32 v{P + 2}, v{C0}, v{C0 + 1}")
    a(f"v_add_u32 v{P + 3}, v{P + 2}, v{C0 + 2}")
    a(f"v_add_u32 v32, v{P + 3}, v{C0 + 3}")
    a("v_mov_b32 v33, v32")
    wave_scan(a, 33)
    a(f"v_sub_u32 v{P}, v33, v32")
    a(f"v_add_u32 v{P + 1}, v{P}, v{C0}")
    a(f"v_add_u32 v{P + 2}, v{P}, v{P + 2}")
    a(f"v_add_u32 v{P + 3}, v{P}, v{P + 3}")
    a(f"ds_write_b128 v{T0}, {vr(P, 4)} offset:{BASE}")
    a("s_lshl_b32 s24, s2, 10")
    a(f"s_add_u32 s24, s24, {SEG_OFF}")
    a(f"v_add_u32 v{T1}, s24, v{T0}")
    for i in range(4):
        a(f"v_lshl_or_b32 v{36 + i}, v{C0 + i}, 16, v{P + i}")
    a(f"global_store_dwordx4 v{T1}, v[36:39], {sr(WS)}{ST}")
    a("s_cmp_lg_u32 s2, 0")
    a("s_cbranch_scc1 L1_b2")
    a(f"v_mov_b32 v{T2}, 0")
    a(f"v_lshlrev_b32 v{T3}, 2, v{LANE}")
    a(f"v_add_u32 v{T3}, {N * 256}, v{T3}")
    a(f"global_store_dword v{T3}, v{T2}, {sr(WS)}{ST}")
    a.label("L1_b2")
    a("s_waitcnt lgkmcnt(0)")
    stamp(a, 8)
    a("s_barrier")
    a(f"s_cmp_gt_u32 s{WAVE}, 12")
    a("s_cbranch_scc1 L1_noedge2")
    a(f"v_cmp_gt_u32 vcc, {EPC // 4}, v{TID}")
    a("s_and_saveexec_b64 s[32:33], vcc")
    for i in range(4):
        a(f"ds_read_b32 v{VD + i}, v{VB + i} offset:{BASE}")
    a(f"s_mov_b32 s24, {STG}")
    for i in range(4):
        a("s_waitcnt lgkmcnt(3)")
        a(f"v_add_u32 v{VD + i}, v{VD + i}, v{VR + i}")
        a(f"v_lshl_add_u32 v{VD + i}, v{VD + i}, 3, s24")
        a(f"ds_write_b64 v{VD + i}, {vr(RP + 2 * i, 2)}")
    a("s_mov_b64 exec, s[32:33]")
    a.label("L1_noedge2")
    a(f"s_min_u32 s25, s{WAVE}, 13")
    a("s_lshl_b32 s25, s25, 10")
    a(f"v_lshlrev_b32 v{T0}, 4, v{LANE}")
    a(f"v_add_u32 v{T0}, s25, v{T0}")
    a(f"v_add_u32 v{T1}, {STG}, v{T0}")
    a(f"s_mul_i32 s24, s2, {EPC * 8}")
    a(f"s_add_u32 s24, s24, {REC_OFF}")
    a(f"v_add_u32 v{T0}, s24, v{T0}")
    a("s_waitcnt lgkmcnt(0)")
    stamp(a, 9)
    a("s_barrier")
    a(f"ds_read_b128 v[24:27], v{T1}")
    a(f"s_cmp_gt_u32 s{WAVE}, 10")
    a("s_cbranch_scc1 L1_oner")
    a(f"ds_read_b128 v[28:31], v{T1} offset:{14 * 1024}")
    a(f"v_add_u32 v{T1}, {14 * 1024}, v{T0}")
    a("s_waitcnt lgkmcnt(0)")
    a(f"global_store_dwordx4 v{T1}, v[28:31], {sr(WS)}{STR_}")
    a.label("L1_oner")
    a("s_waitcnt lgkmcnt(0)")
    a(f"global_store_dwordx4 v{T0}, v[24:27], {sr(WS)}{STR_}")
    for o in OPT:
        if o.startswith("delay="):
            n = int(o[6:])
            a(f"s_movk_i32 s24, {n}")
            a.label("L1_dly")
            a("s_sleep 16")
            a("s_sub_u32 s24, s24, 1")
            a("s_cmp_lg_u32 s24, 0")
            a("s_cbranch_scc1 L1_dly")
    if "dbgt" in OPT:
        a("s_waitcnt vmcnt(0)")
    dbg_time(a, 0, 1)
    stamp(a, 10)
    if STAMPS:
        a("s_waitcnt vmcnt(0)")
    stamp(a, 11)
    stamp(a, 21, True)
    stamp_flush(a, 0)
    a.label("L1_end")
    a("s_endpgm")
    return LDS, 112


def gen_k2(a):
    HIST = 0
    HIST2 = HIST + 1024
    BASE2 = HIST2 + 1024
    WCNT = BASE2 + 1024
    WKEY = WCNT + 1024
    MISC = WKEY + 1024
    SCR = MISC + 256
    ZERO = SCR + 256
    PL = ZERO + 256
    PART0 = PL + NPB * ROW
    PART1 = PART0 + NPB * ROW
    WST = (PART1 + NPB * ROW + 127) // 128 * 128
    XST = WST + 16384
    LIST = XST + NPB * XROW
    CAPK = 48
    COL = CAPK * 4
    LISTB = 228 * COL
    LDS = LIST + LISTB + 64
    assert PART1 < 65536 and PART0 + 64 * ROW < 65536 and LDS <= 163840, LDS
    NWIN = 50
    DUMMY_COL = 100 * COL

    TID, LANE = 0, 1
    T0, T1, T2, T3 = 2, 3, 4, 5
    RB = 6
    REM = 7
    RECS = 8
    RANK = 24
    VW_, VX_ = 32, 36
    XOP = 40
    AOP = 52
    DD = 84
    VLOC = 49
    NT = 100
    VLB = 103
    ASEL = 112
    VJ, VG4, VQ, VONE = 116, 117, 118, 119
    CV = 120
    VZ = 124
    VXA, VWA, VPA, VSH = 104, 105, 106, 107
    MASK = 40
    nd = Node(a, WST, XST, TID, LANE, VW_, VX_, NT)

    a(f".globl {K2}")
    a(".p2align 8")
    a(f".type {K2},@function")
    a.label(K2)
    a(f"s_cmp_ge_u32 s2, {NB}")
    a("s_cbranch_scc1 L2_end")
    dbg_time(a, 1, 2, True)
    for o in OPT:
        if o.startswith("nops="):
            for _ in range(int(o[5:])):
                a("s_nop 0")
        if o.startswith("slit="):
            for _ in range(int(o[5:])):
                a("s_mov_b32 s24, 0x12345678")
        if o.startswith("slil="):
            a(f"s_movk_i32 s25, {int(o[5:]) // 16}")
            a.label("L2_slil")
            for _ in range(13):
                a("s_mov_b32 s24, 0x12345678")
            a("s_sub_u32 s25, s25, 1")
            a("s_cmp_lg_u32 s25, 0")
            a("s_cbranch_scc1 L2_slil")
        if o.startswith("nopl="):
            a(f"s_movk_i32 s24, {int(o[5:]) // 16}")
            a.label("L2_nopl")
            for _ in range(13):
                a("s_nop 0")
            a("s_sub_u32 s24, s24, 1")
            a("s_cmp_lg_u32 s24, 0")
            a("s_cbranch_scc1 L2_nopl")
    stamp(a, 0)
    stamp(a, 20, True)
    load_ptrs(a)
    a(f"v_and_b32 v{LANE}, 63, v{TID}")
    a(f"v_lshrrev_b32 v{T0}, 6, v{TID}")
    a(f"v_lshlrev_b32 v{T1}, 2, v{TID}")
    a(f"v_readfirstlane_b32 s{WAVE}, v{T0}")
    a(f"v_lshrrev_b32 v{RB}, 2, v{TID}")
    a(f"v_lshlrev_b32 v{RB}, 10, v{RB}")
    a("s_lshl_b32 s24, s2, 2")
    a(f"s_add_u32 s24, s24, {SEG_OFF}")
    a(f"v_add_u32 v{RB}, s24, v{RB}")
    a("s_waitcnt lgkmcnt(0)")
    fix_ws(a)
    stamp(a, 1)
    a(f"global_load_dword v{REM}, v{RB}, {sr(WS)}")
    a(f"v_mov_b32 v{T0}, 0")
    a(f"s_cmp_lt_u32 s{WAVE}, 4")
    a("s_cbranch_scc0 L2_nozero")
    a(f"ds_write_b32 v{T1}, v{T0} offset:{HIST}")
    a(f"ds_write_b32 v{T1}, v{T0} offset:{HIST2}")
    a.label("L2_nozero")
    a(f"s_cmp_eq_u32 s{WAVE}, 4")
    a("s_cbranch_scc0 L2_nozero2")
    a(f"v_lshlrev_b32 v{T2}, 2, v{LANE}")
    a(f"v_cmp_eq_u32 vcc, 2, v{LANE}")
    a("s_nop 1")
    a(f"v_cndmask_b32 v{T3}, 0, 16, vcc")
    a(f"ds_write_b32 v{T2}, v{T3} offset:{MISC}")
    a(f"ds_write_b32 v{T2}, v{T0} offset:{ZERO}")
    a.label("L2_nozero2")
    a(f"v_lshrrev_b32 v{RB}, 2, v{TID}")
    a(f"v_mul_u32_u24 v{RB}, {EPC}, v{RB}")
    a(f"v_and_b32 v{T3}, 3, v{TID}")
    a(f"v_lshlrev_b32 v{T3}, 1, v{T3}")
    a(f"v_add_u32 v{RB}, v{RB}, v{T3}")
    a(f"v_lshlrev_b32 v{RB}, 3, v{RB}")
    a(f"v_add_u32 v{RB}, {REC_OFF}, v{RB}")
    a(f"v_cmp_gt_u32 vcc, {NC * 4}, v{TID}")
    a("s_waitcnt vmcnt(0)")
    stamp(a, 2)
    a(f"v_cndmask_b32 v{REM}, 0, v{REM}, vcc")
    a(f"v_and_b32 v{T2}, 0xffff, v{REM}")
    a(f"v_lshrrev_b32 v{REM}, 16, v{REM}")
    a(f"v_lshl_add_u32 v{RB}, v{T2}, 3, v{RB}")
    a(f"v_cmp_lt_u32 s[56:57], 32, v{REM}")
    a(f"v_sub_u32 v{REM}, v{REM}, v{T3}")
    for r in range(4):
        a(f"v_cmp_gt_i32 {sr(MASK + 4 * r)}, v{REM}, {8 * r}")
    a("s_nop 1")
    for r in range(4):
        m = MASK + 4 * r
        a(f"s_mov_b64 exec, {sr(m)}")
        a("s_cbranch_execz L2_recs_done")
        a(f"global_load_dwordx4 {vr(RECS + 4 * r, 4)}, v{RB}, {sr(WS)} offset:{64 * r}")
    a.label("L2_recs_done")
    a("s_mov_b64 exec, -1")
    for r in range(4):
        a(f"v_cmp_gt_i32 {sr(MASK + 4 * r + 2)}, v{REM}, {8 * r + 1}")
    nd.issue_loads(GW, 0, UW)
    a(f"v_and_b32 v{T0}, 15, v{LANE}")
    a(f"v_lshlrev_b32 v{VJ}, 4, v{T0}")
    a(f"v_lshrrev_b32 v{T2}, 1, v{VJ}")
    a(f"v_add_u32 v{T2}, {128 * 128}, v{T2}")
    a(f"global_load_dwordx2 {vr(CV + 2, 2)}, v{T2}, {sr(GW)}")
    for i in range(4):
        a(f"v_mov_b32 v{XOP + i}, {N}")
    a(f"v_lshlrev_b32 v{T2}, 4, v{TID}")
    a(f"v_add_u32 v{T2}, {LIST}, v{T2}")
    a(f"ds_write_b128 v{T2}, {vr(XOP, 4)}")
    a(f"ds_write_b128 v{T2}, {vr(XOP, 4)} offset:16384")
    nlast = LISTB // 16 - 2048
    a(f"v_cmp_gt_u32 vcc, {nlast}, v{TID}")
    a("s_and_saveexec_b64 s[32:33], vcc")
    a(f"ds_write_b128 v{T2}, {vr(XOP, 4)} offset:32768")
    a("s_mov_b64 exec, s[32:33]")
    a(f"v_lshrrev_b32 v{T1}, 4, v{LANE}")
    a(f"v_lshlrev_b32 v{VG4}, 2, v{T1}")
    a(f"v_add_u32 v{VZ}, {ZERO}, v{VJ}")
    a(f"v_mov_b32 v{VONE}, 1")
    a(f"v_mov_b32 v{VLB}, {LIST}")
    a(f"v_lshlrev_b32 v{VQ}, 2, v{LANE}")
    a(f"v_add_u32 v{VQ}, {SCR}, v{VQ}")
    a(f"v_cmp_eq_u32 vcc, 0, v{LANE}")
    a(f"v_mov_b32 v{T3}, {MISC + 8}")
    a(f"v_lshrrev_b32 v{T2}, 2, v{T0}")
    a(f"v_cndmask_b32 v{VQ}, v{VQ}, v{T3}, vcc")
    a(f"v_cmp_eq_u32 vcc, v{T2}, v{T1}")
    a(f"v_mov_b32 v{T3}, 0x3c00")
    a(f"v_and_b32 v{T2}, 3, v{T0}")
    a(f"v_cndmask_b32 v{T3}, 0, v{T3}, vcc")
    for q in range(4):
        a(f"v_cmp_eq_u32 vcc, {q}, v{T2}")
        a("s_nop 1")
        a(f"v_cndmask_b32 v{ASEL + q}, 0, v{T3}, vcc")
    a(f"s_mov_b32 s36, s{WS}")
    a(f"s_and_b32 s37, s{WS + 1}, 0xffff")
    a("s_or_b32 s37, s37, 0x1000000")
    a(f"s_mov_b32 s38, {N + 1}")
    a("s_mov_b32 s39, 0x20000")
    a(f"s_mov_b32 s66, {TINY:#x}")
    a(f"s_mov_b32 s67, {TINY:#x}")
    a(f"s_mov_b32 s68, {PART0}")
    a(f"s_mov_b32 s69, {PART1}")
    for k in range(4):
        a(f"v_mov_b32 v{76 + 4 * k + 1}, v{VJ}")
        a(f"v_mov_b32 v{76 + 4 * k + 3}, v{VJ}")
        a(f"v_mov_b32 v{92 + 2 * k}, 0")
        a(f"v_mov_b32 v{92 + 2 * k + 1}, 0")
    nd.stage_addr(NT, NT + 1, NT + 2)
    a(f"s_and_b32 s27, s{WAVE}, 3")
    a(f"s_lshr_b32 s26, s{WAVE}, 2")
    a("s_lshl_b32 s26, s26, 6")
    a(f"v_and_b32 v{T0}, 15, v{LANE}")
    a(f"v_lshrrev_b32 v{T1}, 4, v{LANE}")
    a(f"v_add_u32 v{T2}, s26, v{T0}")
    a(f"v_mul_u32_u24 v{VXA}, {XROW}, v{T2}")
    a(f"v_lshl_add_u32 v{VXA}, v{T1}, 4, v{VXA}")
    a(f"v_add_u32 v{VXA}, {XST}, v{VXA}")
    a(f"v_mul_u32_u24 v{VPA}, {ROW}, v{T2}")
    a(f"v_lshl_add_u32 v{VPA}, v{T1}, 4, v{VPA}")
    a("s_lshl_b32 s30, s27, 6")
    a(f"v_add_u32 v{VPA}, s30, v{VPA}")
    a(f"v_lshrrev_b32 v{T2}, 3, v{T0}")
    a(f"v_and_b32 v{T3}, 1, v{T1}")
    a(f"v_lshl_or_b32 v{T2}, v{T3}, 1, v{T2}")
    a(f"v_xor_b32 v{T2}, s27, v{T2}")
    a(f"v_lshlrev_b32 v{T2}, 5, v{T2}")
    a(f"v_lshrrev_b32 v{T3}, 2, v{T0}")
    a(f"v_lshl_add_u32 v{T3}, v{T1}, 3, v{T3}")
    a(f"v_lshl_add_u32 v{T2}, v{T3}, 7, v{T2}")
    a(f"v_and_b32 v{T3}, 3, v{T0}")
    a(f"v_lshl_add_u32 v{T2}, v{T3}, 3, v{T2}")
    a(f"v_add_u32 v{VWA}, {WST}, v{T2}")
    a(f"v_mov_b32 v{VSH}, {SHIFT_NEG:#x}")
    a(f"v_cmp_gt_u32 s[34:35], 4, v{T0}")
    a("s_waitcnt lgkmcnt(0)")
    a("s_barrier")
    a("s_cmp_eq_u64 s[56:57], 0")
    a("s_cbranch_scc1 L2_noflag")
    a(f"v_mov_b32 v{T2}, 0")
    a(f"ds_write_b32 v{T2}, v{VONE} offset:{MISC}")
    a.label("L2_noflag")
    a(f"s_movk_i32 s59, {COL}")
    a("s_waitcnt vmcnt(3)")
    stamp(a, 3)
    for r in range(4):
        if r >= 2:
            a(f"s_cmp_eq_u64 {sr(MASK + 4 * r)}, 0")
            a(f"s_cbranch_scc1 L2_h{r}")
        for s_ in range(2):
            k = 2 * r + s_
            hi = RECS + 4 * r + 2 * s_ + 1
            a(f"s_mov_b64 exec, {sr(MASK + 2 * k)}")
            a(f"v_lshlrev_b32 v{T1}, 2, v{hi}")
            a(f"ds_add_rtn_u32 v{RANK + k}, v{T1}, v{VONE} offset:{HIST}")
            a(f"v_mad_u32_u24 v{hi}, v{hi}, s59, v{VLB}")
        if r >= 2:
            a.label(f"L2_h{r}")
    a("s_mov_b64 exec, -1")
    a("s_waitcnt lgkmcnt(0)")
    for r in range(4):
        if r >= 2:
            a(f"s_cmp_eq_u64 {sr(MASK + 4 * r)}, 0")
            a(f"s_cbranch_scc1 L2_s{r}")
        for s_ in range(2):
            k = 2 * r + s_
            lo = RECS + 4 * r + 2 * s_
            hi = lo + 1
            a(f"s_mov_b64 exec, {sr(MASK + 2 * k)}")
            a(f"v_min_u32 v{RANK + k}, 63, v{RANK + k}")
            a(f"v_lshl_add_u32 v{hi}, v{RANK + k}, 2, v{hi}")
            a(f"ds_write_b32 v{hi}, v{lo}")
        if r >= 2:
            a.label(f"L2_s{r}")
    a("s_mov_b64 exec, -1")
    stamp(a, 4)
    a("s_waitcnt vmcnt(0)")
    stamp(a, 5)
    if "ttouch" in OPT:
        a(f"s_cmp_eq_u32 s{WAVE}, 15")
        a("s_cbranch_scc1 L2_notouch")
        a(f"s_mul_i32 s24, s2, {NPB * 256}")
        a(f"s_lshl_b32 s25, s{WAVE}, 10")
        a("s_add_u32 s24, s24, s25")
        a(f"v_lshlrev_b32 v{T2}, 4, v{LANE}")
        a(f"v_add_u32 v{T2}, s24, v{T2}")
        a(f"global_load_dwordx4 v[108:111], v{T2}, {sr(WS)}")
        a(f"s_cmp_gt_u32 s{WAVE}, 9")
        a("s_cbranch_scc1 L2_notouch")
        a(f"v_add_u32 v{T2}, {15 * 1024}, v{T2}")
        a(f"global_load_dwordx4 v[108:111], v{T2}, {sr(WS)}")
        a.label("L2_notouch")
        if "ttouch2" in OPT:
            a(f"s_cmp_eq_u32 s{WAVE}, 15")
            a("s_cbranch_scc1 L2_notouch2")
            a("s_lshr_b32 s24, s2, 3")
            a(f"s_mul_i32 s24, s24, {NPB * 256}")
            a(f"s_lshl_b32 s25, s{WAVE}, 10")
            a("s_add_u32 s24, s24, s25")
            a(f"v_lshlrev_b32 v{T2}, 4, v{LANE}")
            a(f"v_add_u32 v{T2}, s24, v{T2}")
            a(f"global_load_dwordx4 v[108:111], v{T2}, {sr(WS)}")
            a(f"s_cmp_gt_u32 s{WAVE}, 9")
            a("s_cbranch_scc1 L2_notouch2")
            a(f"v_add_u32 v{T2}, {15 * 1024}, v{T2}")
            a(f"global_load_dwordx4 v[108:111], v{T2}, {sr(WS)}")
            a.label("L2_notouch2")
    nd.stage_write(NT, NT + 1)
    a(f"s_mov_b32 s24, {LOG2E_NEG:#x}")
    a(f"v_lshlrev_b32 v{CV}, 16, v{CV + 2}")
    a(f"v_and_b32 v{CV + 1}, 0xffff0000, v{CV + 2}")
    a(f"v_lshlrev_b32 v{CV + 2}, 16, v{CV + 3}")
    a(f"v_and_b32 v{CV + 3}, 0xffff0000, v{CV + 3}")
    for i in range(4):
        a(f"v_mul_f32 v{CV + i}, s24, v{CV + i}")
    a("s_waitcnt lgkmcnt(0)")
    stamp(a, 6)
    a("s_barrier")
    a(f"s_cmp_eq_u32 s{WAVE}, 15")
    a("s_cbranch_scc1 L2_order")
    a(f"s_cmp_gt_u32 s{WAVE}, 7")
    a("s_cbranch_scc1 L2_b2")

    a("s_setprio 2")
    A0 = 8
    B0 = 24
    dreg = lambda t: 56 if t == 0 else B0 + 8 * (t - 1)
    for t in range(4):
        if t == 3:
            a("s_waitcnt lgkmcnt(12)")
        a(f"ds_read_b128 {vr(B0 + 8 * t, 4)}, v{VXA} offset:{t * 16 * XROW}")
        a(f"ds_read_b128 {vr(B0 + 8 * t + 4, 4)}, v{VXA} offset:{t * 16 * XROW + 64}")
        if t == 0:
            for m in range(2):
                for ks in range(2):
                    for hh in range(2):
                        a(f"ds_read_b64_tr_b16 {vr(A0 + (m * 2 + ks) * 4 + hh * 2, 2)}, v{VWA} offset:{m * 8192 + ks * 4096 + hh * 512}")
    a(f"s_mov_b32 s24, {LOG2E_NEG:#x}")
    for t in range(4):
        b = B0 + 8 * t
        d = dreg(t)
        a(f"s_waitcnt lgkmcnt({2 * (3 - t)})")
        a(f"v_mfma_f32_16x16x32_bf16 {vr(d, 4)}, {vr(A0, 4)}, {vr(b, 4)}, 0")
        a(f"v_mfma_f32_16x16x32_bf16 {vr(d + 4, 4)}, {vr(A0 + 8, 4)}, {vr(b, 4)}, 0")
        a(f"v_mfma_f32_16x16x32_bf16 {vr(d, 4)}, {vr(A0 + 4, 4)}, {vr(b + 4, 4)}, {vr(d, 4)}")
        a(f"v_mfma_f32_16x16x32_bf16 {vr(d + 4, 4)}, {vr(A0 + 12, 4)}, {vr(b + 4, 4)}, {vr(d + 4, 4)}")
    a("s_nop 4")
    for t in range(4):
        d = dreg(t)
        if t == 2:
            a(f"s_cmp_gt_u32 s{WAVE}, 3")
            a("s_cbranch_scc0 L2_pu_t2")
            a("s_mov_b64 exec, s[34:35]")
            a.label("L2_pu_t2")
        if t == 3:
            a(f"s_cmp_gt_u32 s{WAVE}, 3")
            a("s_cbranch_scc1 L2_pu_done")
        for i in range(4):
            a(f"v_fma_f32 v{d + i}, v{d + i}, s24, v{VSH}")
        a(f"ds_write_b128 v{VPA}, {vr(d, 4)} offset:{PL + t * 16 * ROW}")
        a(f"ds_write_b128 v{VPA}, {vr(d + 4, 4)} offset:{PART0 + t * 16 * ROW}")
    a.label("L2_pu_done")
    a("s_mov_b64 exec, -1")
    a("s_setprio 0")
    a("s_branch L2_b2")

    a.label("L2_order")
    a("s_setprio 3")
    CN, BN, RK = 100, 104, 108
    S0 = 56
    a(f"v_lshlrev_b32 v{T0}, 4, v{LANE}")
    a(f"ds_read_b128 {vr(CN, 4)}, v{T0} offset:{HIST}")
    a(f"v_lshrrev_b32 v{T1}, 5, v{LANE}")
    a(f"v_and_b32 v{T2}, 31, v{LANE}")
    a(f"v_cmp_gt_u32 vcc, 25, v{T2}")
    a(f"v_lshlrev_b32 v{T3}, 8, v{T1}")
    a(f"v_add_u32 v{T3}, {63 * 4}, v{T3}")
    a(f"v_mov_b32 v{S0}, {(128 + 63) * 4}")
    a(f"v_cndmask_b32 v{T3}, v{S0}, v{T3}, vcc")
    a(f"v_mul_u32_u24 v{T2}, {4 * ROW}, v{T2}")
    a(f"v_mul_u32_u24 v{T1}, {4 * COL}, v{LANE}")
    a(f"v_lshl_or_b32 v{T1}, v{T1}, 16, v{T2}")
    a("s_waitcnt lgkmcnt(0)")
    a(f"v_max3_u32 v{S0 + 1}, v{CN}, v{CN + 1}, v{CN + 2}")
    a(f"v_max_u32 v{S0 + 1}, v{S0 + 1}, v{CN + 3}")
    for i in range(4):
        a(f"v_min_u32 v{BN + i}, 63, v{CN + i}")
        a(f"v_lshlrev_b32 v{BN + i}, 2, v{BN + i}")
        a(f"v_sub_u32 v{BN + i}, v{T3}, v{BN + i}")
        a(f"ds_add_rtn_u32 v{RK + i}, v{BN + i}, v{VONE} offset:{HIST2}")
    a(f"ds_read_b128 {vr(S0 + 4, 4)}, v{T0} offset:{HIST2}")
    a(f"v_cmp_lt_u32 vcc, {CAPK}, v{S0 + 1}")
    a("s_cbranch_vccz L2_nocap")
    a(f"v_mov_b32 v{S0}, 0")
    a(f"ds_write_b32 v{S0}, v{VONE} offset:{MISC}")
    a.label("L2_nocap")
    a("s_waitcnt lgkmcnt(0)")
    a(f"v_add_u32 v{S0 + 1}, v{S0 + 4}, v{S0 + 5}")
    a(f"v_add_u32 v{S0 + 2}, v{S0 + 1}, v{S0 + 6}")
    a(f"v_add_u32 v{S0 + 3}, v{S0 + 2}, v{S0 + 7}")
    a(f"v_mov_b32 v{S0}, v{S0 + 3}")
    wave_scan(a, S0)
    a(f"v_sub_u32 v{S0}, v{S0}, v{S0 + 3}")
    a(f"v_add_u32 v{S0 + 3}, v{S0}, v{S0 + 2}")
    a(f"v_add_u32 v{S0 + 2}, v{S0}, v{S0 + 1}")
    a(f"v_add_u32 v{S0 + 1}, v{S0}, v{S0 + 4}")
    a(f"ds_write_b128 v{T0}, {vr(S0, 4)} offset:{BASE2}")
    for i in range(4):
        a(f"ds_read_b32 v{S0 + 4 + i}, v{BN + i} offset:{BASE2}")
    a("s_waitcnt lgkmcnt(0)")
    for i in range(4):
        a(f"v_add_u32 v{RK + i}, v{RK + i}, v{S0 + 4 + i}")
        a(f"v_lshlrev_b32 v{RK + i}, 2, v{RK + i}")
        a(f"v_add_u32 v{S0}, {i * ((COL << 16) + ROW)}, v{T1}")
        a(f"ds_write_b32 v{RK + i}, v{CN + i} offset:{WCNT}")
        a(f"ds_write_b32 v{RK + i}, v{S0} offset:{WKEY}")
    a("s_setprio 0")
    a.label("L2_b2")
    a("s_waitcnt lgkmcnt(0)")
    stamp(a, 7)
    a("s_barrier")
    stamp(a, 8)
    if "noprio" not in OPT:
        a("s_setprio 3")
    NP = 4
    RA = 4
    PR = 8
    ACC = 12
    UR = 16
    DN = 20
    NM = 24
    DA = 28
    VB = 44
    IX = 76
    EV = 92
    VL = 100
    VFL = 101
    VFN = 102
    VRN = 103
    VIN = 104
    VWL = 105
    SC, SNL, SI = 61, 62, 63
    STR = 64
    assert IX == 76 and EV == 92
    a(f"v_mov_b32 v{T0}, 0")
    a(f"ds_read_b32 v{T1}, v{T0} offset:{MISC}")
    a(f"v_lshlrev_b32 v{T2}, 4, v{LANE}")
    a(f"ds_read_b32 v{VWL}, v{T2} offset:{WCNT}")
    a(f"s_lshl_b32 s26, s{WAVE}, 4")
    a(f"v_add_u32 v{T2}, s26, v{VG4}")
    a(f"ds_read_b32 v{T3}, v{T2} offset:{WKEY}")
    a("s_waitcnt lgkmcnt(0)")
    a(f"v_readfirstlane_b32 s24, v{T1}")
    a(f"v_add_u32 v{VWL}, 1, v{VWL}")
    a(f"v_lshrrev_b32 v{VWL}, 1, v{VWL}")
    a(f"v_max_u32 v{VWL}, {RA}, v{VWL}")
    a(f"v_lshrrev_b32 v{VL}, 16, v{T3}")
    a(f"v_add_u32 v{VL}, {LIST}, v{VL}")
    a("s_cmp_lg_u32 s24, 0")
    a("s_cbranch_scc1 L2_slow")
    for k in range(RA):
        a(f"ds_read_u16 v{IX + 4 * k}, v{VL} offset:{8 * k}")
        a(f"ds_read_u16 v{IX + 4 * k + 2}, v{VL} offset:{8 * k + 4}")
    a(f"v_and_b32 v{VRN}, 0xffff, v{T3}")
    a(f"v_add_u32 v{VRN}, v{VRN}, v{VJ}")
    a(f"v_add_u32 v{VFL}, {PART0}, v{VRN}")
    a(f"v_readlane_b32 s{SC}, v{VWL}, s{WAVE}")
    a(f"s_mov_b32 s{STR}, {RA}")
    a(f"s_mov_b32 s{SI}, s{WAVE}")
    a("s_waitcnt lgkmcnt(0)")
    for k in range(RA - 1):
        for h in range(2):
            a(f"buffer_load_dwordx4 {vr(VB + 8 * k + 4 * h, 4)}, {vr(IX + 4 * k + 2 * h, 2)}, s[36:39], 0 idxen offen")
    for k in range(RA):
        a(f"ds_read_u16_d16_hi v{EV + 2 * k}, v{VL} offset:{8 * k + 2}")
        a(f"ds_read_u16_d16_hi v{EV + 2 * k + 1}, v{VL} offset:{8 * k + 6}")
    a(f"ds_read_b128 {vr(PR, 4)}, v{VRN} offset:{PL}")
    a(f"ds_read_b128 {vr(UR, 4)}, v{VRN} offset:{PART0}")
    for i in range(4):
        a(f"v_mov_b32 v{ACC + i}, 0")
    if "noprio" not in OPT:
        a("s_setprio 2")
    a("s_waitcnt lgkmcnt(0)")
    stamp(a, 9)

    def mfma1(k, h):
        d = DA + 8 * (k & 1)
        a(f"v_mfma_f32_16x16x32_f16 {vr(d + 4 * h, 4)}, {vr(ASEL, 4)}, {vr(VB + 8 * k + 4 * h, 4)}, {vr(PR, 4)}")

    def tail1(k):
        d = DA + 8 * (k & 1)
        vb = VB + 8 * k
        for h in range(2):
            a(f"v_pk_mul_f32 {vr(DN + 2 * h, 2)}, {vr(d + 2 * h, 2)}, {vr(d + 4 + 2 * h, 2)}")
        for h in range(2):
            a(f"v_pk_mul_f32 {vr(NM + 2 * h, 2)}, {vr(vb + 2 * h, 2)}, {vr(d + 4 + 2 * h, 2)}")
        for h in range(2):
            a(f"v_pk_fma_f32 {vr(NM + 2 * h, 2)}, {vr(vb + 4 + 2 * h, 2)}, {vr(d + 2 * h, 2)}, {vr(NM + 2 * h, 2)}")

    def rcp2(h):
        a(f"v_rcp_f32 v{DN + 2 * h}, v{DN + 2 * h}")
        a(f"v_rcp_f32 v{DN + 2 * h + 1}, v{DN + 2 * h + 1}")

    def tail2():
        a(f"v_pk_fma_f32 {vr(ACC, 2)}, {vr(NM, 2)}, {vr(DN, 2)}, {vr(ACC, 2)}")
        a(f"v_pk_fma_f32 {vr(ACC + 2, 2)}, {vr(NM + 2, 2)}, {vr(DN + 2, 2)}, {vr(ACC + 2, 2)}")

    def read_idx(k):
        a(f"ds_read_u16 v{IX + 4 * k}, v{VL} offset:{8 * (RA + k)}")
        a(f"ds_read_u16 v{IX + 4 * k + 2}, v{VL} offset:{8 * (RA + k) + 4}")

    def read_e(k):
        a(f"ds_read_u16_d16_hi v{EV + 2 * k}, v{VL} offset:{8 * (RA + k) + 2}")
        a(f"ds_read_u16_d16_hi v{EV + 2 * k + 1}, v{VL} offset:{8 * (RA + k) + 6}")

    def gather(k):
        p = (k - 1) % NP
        if "nogather" not in OPT:
            for h in range(2):
                a(f"buffer_load_dwordx4 {vr(VB + 8 * p + 4 * h, 4)}, {vr(IX + 4 * p + 2 * h, 2)}, s[36:39], 0 idxen offen")

    def front(k):
        d = DA + 8 * (k & 1)
        ep = EV + 2 * k
        for h in range(2):
            osel = "op_sel:[1,0,0] op_sel_hi:[1,1,1]" if h else "op_sel_hi:[0,1,1]"
            a(f"v_pk_fma_f32 {vr(d + 4 * h, 2)}, {vr(ep, 2)}, {vr(CV, 2)}, {vr(d + 4 * h, 2)} {osel}")
            a(f"v_pk_fma_f32 {vr(d + 4 * h + 2, 2)}, {vr(ep, 2)}, {vr(CV + 2, 2)}, {vr(d + 4 * h + 2, 2)} {osel}")
        read_e(k)
        for i in range(8):
            a(f"v_exp_f32_e64 v{d + i}, v{d + i} clamp")
            if i == 5:
                a(f"v_pk_add_f32 {vr(d, 2)}, {vr(d, 2)}, s[66:67]")
        a(f"v_pk_add_f32 {vr(d + 2, 2)}, {vr(d + 2, 2)}, s[66:67]")
        a(f"v_pk_add_f32 {vr(d + 4, 2)}, {vr(d + 4, 2)}, s[66:67]")
        a(f"v_pk_add_f32 {vr(d + 6, 2)}, {vr(d + 6, 2)}, s[66:67]")

    def flush():
        a(f"v_pk_fma_f32 {vr(UR, 2)}, {vr(ACC, 2)}, s[66:67], {vr(UR, 2)}")
        a(f"v_pk_fma_f32 {vr(UR + 2, 2)}, {vr(ACC + 2, 2)}, s[66:67], {vr(UR + 2, 2)}")
        a(f"ds_write_b128 v{VFL}, {vr(UR, 4)}")

    VW = 2 * (RA - 2)
    a(f"s_cmp_eq_u32 s{SC}, s{STR}")
    a("s_cbranch_scc1 L2_pop_first")
    a.label("L2_first_cont")
    if "nogather" not in OPT:
        a(f"s_waitcnt vmcnt({VW})")
    mfma1(0, 0)
    mfma1(0, 1)
    read_idx(0)
    a("s_nop 2")
    gather(0)
    a("s_branch L2_mid0")

    a.label("L2_loop")
    for k in range(NP):
        pk = (k - 1) % NP
        a(f"s_cmp_eq_u32 s{SC}, s{STR}")
        a(f"s_cbranch_scc1 L2_ev{k}")
        a.label(f"L2_cont{k}")
        tail1(pk)
        if "nogather" not in OPT:
            a(f"s_waitcnt vmcnt({VW})")
        mfma1(k, 0)
        rcp2(0)
        mfma1(k, 1)
        rcp2(1)
        read_idx(k)
        tail2()
        a("s_waitcnt lgkmcnt(4)")
        gather(k)
        a.label(f"L2_mid{k}")
        front(k)
        a(f"s_sub_u32 s{SC}, s{SC}, 1")
        if k == NP - 1:
            a(f"v_add_u32 v{VL}, {8 * NP}, v{VL}")
            a("s_branch L2_loop")

    def pop(k, cont):
        a(f"ds_add_rtn_u32 v{T2}, v{VQ}, v{VONE}")
        a(f"s_mov_b32 s{STR}, 0")
        a("s_waitcnt lgkmcnt(0)")
        a(f"v_readfirstlane_b32 s{SI}, v{T2}")
        a(f"s_mov_b32 s{SNL}, 0")
        a(f"v_mov_b32 v{VL}, {LIST + DUMMY_COL - 8 * (RA + k)}")
        a("s_nop 1")
        a(f"s_cmp_lt_u32 s{SI}, {NWIN}")
        a(f"s_cbranch_scc0 {cont}")
        a(f"s_lshl_b32 s26, s{SI}, 4")
        a(f"v_add_u32 v{T2}, s26, v{VG4}")
        a(f"ds_read_b32 v{T3}, v{T2} offset:{WKEY}")
        a(f"v_readlane_b32 s{SNL}, v{VWL}, s{SI}")
        a(f"s_cmp_lt_u32 s{SI}, {NWIN // 2}")
        a("s_cselect_b32 s26, s68, s69")
        a("s_waitcnt lgkmcnt(0)")
        a(f"v_and_b32 v{VRN}, 0xffff, v{T3}")
        a(f"v_lshrrev_b32 v{VL}, 16, v{T3}")
        a(f"v_add_u32 v{VRN}, v{VRN}, v{VJ}")
        a(f"v_add_u32 v{VL}, {LIST - 8 * (RA + k)}, v{VL}")
        a(f"v_add_u32 v{VFN}, s26, v{VRN}")
        a(f"v_mov_b32 v{VIN}, v{VFN}")
        a(f"s_cbranch_scc1 {cont}")
        a(f"v_mov_b32 v{VIN}, v{VZ}")
        a(f"s_branch {cont}")

    a.label("L2_pop_first")
    pop(0, "L2_first_cont")
    for k in range(NP):
        pk = (k - 1) % NP
        a.label(f"L2_ev{k}")
        a(f"s_cmp_eq_u32 s{STR}, 0")
        a(f"s_cbranch_scc1 L2_sw{k}")
        pop(k, f"L2_cont{k}")
        a.label(f"L2_sw{k}")
        tail1(pk)
        rcp2(0)
        rcp2(1)
        a("s_nop 0")
        tail2()
        flush()
        a(f"s_cmp_eq_u32 s{SNL}, 0")
        a("s_cbranch_scc1 L2_done")
        a(f"ds_read_b128 {vr(PR, 4)}, v{VRN} offset:{PL}")
        a(f"ds_read_b128 {vr(UR, 4)}, v{VIN}")
        for i in range(4):
            a(f"v_mov_b32 v{ACC + i}, 0")
        a(f"v_mov_b32 v{VFL}, v{VFN}")
        a(f"s_mov_b32 s{SC}, s{SNL}")
        a(f"s_mov_b32 s{STR}, {RA}")
        if "noprio" not in OPT:
            a(f"s_cmp_lt_u32 s{SI}, {PRIO_B}")
            a(f"s_cbranch_scc1 L2_p1_{k}")
            a("s_setprio 0")
            a(f"s_branch L2_pd_{k}")
            a.label(f"L2_p1_{k}")
            a(f"s_cmp_lt_u32 s{SI}, {PRIO_A}")
            a(f"s_cbranch_scc1 L2_pd_{k}")
            a("s_setprio 1")
            a.label(f"L2_pd_{k}")
        a(f"s_cmp_eq_u32 s{SC}, {RA}")
        a(f"s_cbranch_scc0 L2_sw2_{k}")
        pop(k, f"L2_sw2_{k}")
        a.label(f"L2_sw2_{k}")
        if "nogather" not in OPT:
            a(f"s_waitcnt vmcnt({VW}) lgkmcnt(0)")
        else:
            a("s_waitcnt lgkmcnt(0)")
        mfma1(k, 0)
        mfma1(k, 1)
        read_idx(k)
        a("s_nop 2")
        gather(k)
        a(f"s_branch L2_mid{k}")

    a.label("L2_slow")
    SSC, SCN, SRI = 61, 62, 63
    a(f"v_lshlrev_b32 v{T0}, 2, v{LANE}")
    a(f"v_lshlrev_b32 v{T1}, 1, v{LANE}")
    a(f"v_add_u32 v{T1}, {128 * 128}, v{T1}")
    a(f"global_load_ushort v{T2}, v{T1}, {sr(GW)}")
    a(f"s_mov_b32 s24, {LOG2E_NEG:#x}")
    a(f"s_mov_b32 s25, s{WAVE}")
    a("v_mov_b32 v9, 0")
    a.label("L2_slow_z")
    a(f"s_mul_i32 s26, s25, {ROW}")
    a(f"v_add_u32 v10, s26, v{T0}")
    a(f"ds_write_b32 v10, v9 offset:{PART1}")
    a("s_add_u32 s25, s25, 16")
    a(f"s_cmp_lt_u32 s25, {NPB}")
    a("s_cbranch_scc1 L2_slow_z")
    a("s_waitcnt vmcnt(0) lgkmcnt(0)")
    a(f"v_lshlrev_b32 v{T2}, 16, v{T2}")
    a(f"v_mul_f32 v8, s24, v{T2}")
    a(f"s_mov_b32 s{SSC}, 0")
    a.label("L2_slow_seg")
    a(f"s_cmp_ge_u32 s{SSC}, {NC}")
    a("s_cbranch_scc1 L2_done")
    a(f"s_lshl_b32 s24, s{SSC}, 8")
    a("s_add_u32 s24, s24, s2")
    a("s_lshl_b32 s24, s24, 2")
    a(f"s_add_u32 s24, s24, {SEG_OFF}")
    a(f"v_mov_b32 v{T1}, s24")
    a(f"global_load_dword v{T2}, v{T1}, {sr(WS)}")
    a("s_waitcnt vmcnt(0)")
    a(f"v_readfirstlane_b32 s25, v{T2}")
    a("s_nop 3")
    a(f"s_lshr_b32 s{SCN}, s25, 16")
    a("s_and_b32 s25, s25, 0xffff")
    a(f"s_mul_i32 s26, s{SSC}, {EPC}")
    a("s_add_u32 s26, s26, s25")
    a("s_lshl_b32 s26, s26, 3")
    a(f"s_add_u32 s{SRI}, s26, {REC_OFF}")
    a.label("L2_slow_rec")
    a(f"s_cmp_eq_u32 s{SCN}, 0")
    a("s_cbranch_scc1 L2_slow_next")
    a(f"v_mov_b32 v{T1}, s{SRI}")
    a(f"global_load_dwordx2 v[10:11], v{T1}, {sr(WS)}")
    a(f"s_add_u32 s{SRI}, s{SRI}, 8")
    a(f"s_sub_u32 s{SCN}, s{SCN}, 1")
    a("s_waitcnt vmcnt(0)")
    a("v_and_b32 v14, 127, v11")
    a("v_and_b32 v15, 15, v14")
    a("s_nop 0")
    a("v_readfirstlane_b32 s25, v15")
    a("s_nop 3")
    a(f"s_cmp_lg_u32 s25, s{WAVE}")
    a("s_cbranch_scc1 L2_slow_rec")
    a("v_and_b32 v18, 0xffff, v10")
    a(f"v_mov_b32 v19, v{T0}")
    a("buffer_load_dword v13, v[18:19], s[36:39], 0 idxen offen")
    a(f"v_mul_u32_u24 v14, {ROW}, v14")
    a(f"v_add_u32 v14, v14, v{T0}")
    a(f"ds_read_b32 v15, v14 offset:{PL}")
    a(f"ds_read_b32 v17, v14 offset:{PART1}")
    a("v_and_b32 v11, 0xffff0000, v10")
    a("s_waitcnt vmcnt(0) lgkmcnt(0)")
    a("v_cvt_f32_f16 v16, v13")
    a("v_add_f32 v16, v16, v15")
    a("v_fmac_f32 v16, v11, v8")
    a("v_exp_f32 v16, v16")
    a(f"s_mov_b32 s25, {TINY:#x}")
    a("v_add_f32 v16, s25, v16")
    a("v_rcp_f32 v16, v16")
    a("s_nop 0")
    a("v_mul_f32 v16, s25, v16")
    a("v_fmac_f32 v17, v16, v13")
    a(f"ds_write_b32 v14, v17 offset:{PART1}")
    a("s_waitcnt lgkmcnt(0)")
    a("s_branch L2_slow_rec")
    a.label("L2_slow_next")
    a(f"s_add_u32 s{SSC}, s{SSC}, 1")
    a("s_branch L2_slow_seg")

    a.label("L2_done")
    stamp(a, 10)
    a("s_setprio 0")
    a(f"v_lshrrev_b32 v{T0}, 4, v{TID}")
    a(f"v_and_b32 v{T1}, 15, v{TID}")
    a(f"v_mul_u32_u24 v{T2}, {ROW}, v{T0}")
    a(f"v_lshl_add_u32 v{T2}, v{T1}, 4, v{T2}")
    a(f"s_mul_i32 s24, s2, {NPB * 128}")
    a(f"v_lshlrev_b32 v{T3}, 7, v{T0}")
    a(f"v_lshl_add_u32 v{T3}, v{T1}, 3, v{T3}")
    a(f"v_add_u32 v{T3}, s24, v{T3}")
    a(f"v_add_u32 v7, {64 * ROW}, v{T2}")
    a(f"v_add_u32 v6, {64 * 128}, v{T3}")
    a(f"s_mov_b32 s24, {LOG2E_NEG:#x}")
    a(f"s_mov_b32 s25, {LOG2E_NEG:#x}")
    a("s_mov_b32 s26, 1.0")
    a("s_mov_b32 s27, 1.0")
    a("s_waitcnt vmcnt(0) lgkmcnt(0)")
    a("s_barrier")
    stamp(a, 11)

    def silu_store(src, off):
        a(f"v_pk_add_f32 {vr(src, 2)}, {vr(src, 2)}, {vr(src + 4, 2)}")
        a(f"v_pk_add_f32 {vr(src + 2, 2)}, {vr(src + 2, 2)}, {vr(src + 6, 2)}")
        a(f"v_pk_mul_f32 {vr(src + 4, 2)}, {vr(src, 2)}, s[24:25]")
        a(f"v_pk_mul_f32 {vr(src + 6, 2)}, {vr(src + 2, 2)}, s[24:25]")
        for i in range(4):
            a(f"v_exp_f32 v{src + 4 + i}, v{src + 4 + i}")
        a(f"v_pk_add_f32 {vr(src + 4, 2)}, {vr(src + 4, 2)}, s[26:27]")
        a(f"v_pk_add_f32 {vr(src + 6, 2)}, {vr(src + 6, 2)}, s[26:27]")
        for i in range(4):
            a(f"v_rcp_f32 v{src + 4 + i}, v{src + 4 + i}")
        a(f"v_pk_mul_f32 {vr(src, 2)}, {vr(src, 2)}, {vr(src + 4, 2)}")
        a(f"v_pk_mul_f32 {vr(src + 2, 2)}, {vr(src + 2, 2)}, {vr(src + 6, 2)}")
        a(f"v_cvt_pk_bf16_f32 v{src + 4}, v{src}, v{src + 1}")
        a(f"v_cvt_pk_bf16_f32 v{src + 5}, v{src + 2}, v{src + 3}")
        a(f"global_store_dwordx2 v{off}, {vr(src + 4, 2)}, {sr(OUT)}{STO}")

    a(f"ds_read_b128 v[8:11], v{T2} offset:{PART0}")
    a(f"ds_read_b128 v[12:15], v{T2} offset:{PART1}")
    a(f"s_cmp_lt_u32 s{WAVE}, 9")
    a("s_cbranch_scc0 L2_ep1")
    a(f"ds_read_b128 v[16:19], v7 offset:{PART0}")
    a(f"ds_read_b128 v[20:23], v7 offset:{PART1}")
    a("s_waitcnt lgkmcnt(0)")
    silu_store(16, 6)
    a.label("L2_ep1")
    a("s_waitcnt lgkmcnt(0)")
    silu_store(8, T3)
    if "dbgt" in OPT:
        a("s_waitcnt vmcnt(0)")
    dbg_time(a, 1, 3)
    stamp(a, 12)
    if STAMPS:
        a("s_waitcnt vmcnt(0)")
    stamp(a, 13)
    stamp(a, 21, True)
    stamp_flush(a, 1)
    a.label("L2_end")
    a("s_endpgm")
    return LDS, 128


def descriptor(a, name, vgprs, sgprs=80):
    a(f".amdhsa_kernel {name}")
    a(f"  .amdhsa_next_free_vgpr {vgprs}")
    a(f"  .amdhsa_next_free_sgpr {sgprs}")
    a(f"  .amdhsa_accum_offset {vgprs}")
    a("  .amdhsa_group_segment_fixed_size 0")
    a("  .amdhsa_kernarg_size 80")
    a("  .amdhsa_user_sgpr_count 2")
    a("  .amdhsa_user_sgpr_kernarg_segment_ptr 1")
    a("  .amdhsa_system_sgpr_workgroup_id_x 1")
    a("  .amdhsa_float_denorm_mode_32 3")
    a(".end_amdhsa_kernel")


def main():
    global STAMPS, ST, STT, STR_, STO
    if "--stamps" in sys.argv:
        STAMPS = True
        sys.argv.remove("--stamps")
    for o in OPT:
        if o.startswith("st="):
            ST = STT = STR_ = " " + o[3:].replace("+", " ")
        if o.startswith("stt="):
            STT = " " + o[4:].replace("+", " ")
        if o.startswith("sto="):
            STO = " " + o[4:].replace("+", " ")
        if o.startswith("str="):
            STR_ = " " + o[4:].replace("+", " ")
    body = Asm()
    body(".amdgcn_target \"amdgcn-amd-amdhsa--gfx950\"")
    body(".text")
    lds1, v1 = gen_k1(body)
    lds2, v2 = gen_k2(body)
    body(".section .rodata,\"a\"")
    body(".p2align 6")
    descriptor(body, K1, 128 if (STAMPS or 'dbgt' in OPT) else v1)
    body(".p2align 6")
    descriptor(body, K2, v2)
    head = [
        "; Edge-gated MPNN layer in two launches (generated by a hand-written generator script).",
        "; launch 1: partitions the edges by destination bucket and builds the per-node source table",
        "; launch 2: per bucket of 100 nodes: sorts its edges, gated aggregation, SiLU epilogue",
        f"; @launch kernel={K1} grid=({NC},1,1) block=(1024,1,1) lds={lds1}",
        f"; @launch kernel={K2} grid=({NB},1,1) block=(1024,1,1) lds={lds2}",
    ]
    out = "\n".join(head) + "\n" + body.text()
    path = sys.argv[1] if len(sys.argv) > 1 else "standalone__edge_featured_mpnn_egc__graph.s"
    open(path, "w").write(out)
    print("wrote", path, "lds", lds1, lds2)


if __name__ == "__main__":
    main()
```

```python
import os
import sys

N = 25000
E = 800000
NB = 250
NPB = 100
NC = 250
EPC = 3200
HALF = 12500

T_OFF = 0
REC_OFF = int(os.environ.get('REC_OFF', '0x700000'), 0)
SEG_OFF = REC_OFF + 0x700000

LOG2E_NEG = 0xBFB8AA3B
SHIFT_NEG = 0xC2700000
TINY = 0x21800000
ROW = 272
XROW = 144

K1 = "egc_part_kernel"
K2 = "standalone__edge_featured_mpnn_egc__graph_kernel"

OPT = set(os.environ.get("OPT", "").split(","))
TOUCH0 = int(os.environ.get('TOUCH0', '12'))
PRIO_A = int(os.environ.get('PRIO_A', '25'))
PRIO_B = int(os.environ.get('PRIO_B', '38'))
STAMPS = False
STAMP_OFF = 0x2000000
SV = 127

X, EA, SRC, DST, UW, VW, GW, OUT, WS = 4, 6, 8, 10, 12, 14, 16, 18, 20
WAVE = 22


def stamp(a, i, real=False):
    if not STAMPS:
        return
    a(f"s_mem{'real' if real else ''}time s[70:71]")
    a("s_waitcnt lgkmcnt(0)")
    a(f"v_writelane_b32 v{SV}, s70, {i}")


TIME_OFF = 0x2800000


def dbg_time(a, which, slot, neg=False, tag=""):
    if "dbgt" not in OPT:
        return
    a("v_readfirstlane_b32 s78, v0")
    a("s_nop 3")
    a("s_cmp_lg_u32 s78, 0")
    a(f"s_cbranch_scc1 L_dbg_{which}_{slot}")
    a("s_memrealtime s[70:71]")
    a(f"s_load_dwordx2 s[74:75], s[0:1], {72 if which == 0 else 64}")
    a("s_waitcnt lgkmcnt(0)")
    if neg:
        a("s_not_b32 s70, s70")
    a("v_mov_b32 v125, s70")
    a("s_mov_b64 s[76:77], exec")
    a("s_mov_b64 exec, 1")
    if which == 0:
        a("s_lshl_b32 s78, s2, 3")
        a(f"s_add_u32 s78, s78, {TIME_OFF + slot * 4}")
        a("v_mov_b32 v126, s78")
        a("global_store_dword v126, v125, s[74:75]")
    else:
        a(f"v_mov_b32 v126, {slot * 4}")
        a("global_atomic_umax v126, v125, s[74:75]")
    a("s_mov_b64 exec, s[76:77]")
    if which == 1 and slot == 2:
        a("s_cmp_lg_u32 s2, 0")
        a(f"s_cbranch_scc1 L_dbg_{which}_{slot}")
        a("s_load_dwordx2 s[76:77], s[0:1], 72")
        a("s_waitcnt lgkmcnt(0)")
        for r in range(4):
            a(f"v_add_u32 v124, {64 * r}, v0")
            a("v_min_u32 v124, 249, v124")
            a("v_lshlrev_b32 v124, 3, v124")
            a(f"v_add_u32 v124, {TIME_OFF}, v124")
            a("global_load_dwordx2 v[122:123], v124, s[76:77]")
            a("s_waitcnt vmcnt(0)")
            a("v_mov_b32 v126, 16")
            a("global_atomic_umax v126, v122, s[74:75]")
            a("v_mov_b32 v126, 20")
            a("global_atomic_umax v126, v123, s[74:75]")
        a("s_waitcnt vmcnt(0)")
    a.label(f"L_dbg_{which}_{slot}")


def stamp_flush(a, which):
    if not STAMPS:
        return
    a("s_lshl_b32 s72, s2, 4")
    a(f"s_add_u32 s72, s72, s{WAVE}")
    a("s_lshl_b32 s72, s72, 8")
    a(f"s_add_u32 s72, s72, {STAMP_OFF + which * 0x200000}")
    a("v_and_b32 v126, 63, v0")
    a("v_lshlrev_b32 v126, 2, v126")
    a("v_add_u32 v126, s72, v126")
    a(f"global_store_dword v126, v{SV}, s[20:21]")


class Asm:
    def __init__(self):
        self.lines = []

    def __call__(self, s=""):
        for ln in s.split("\n"):
            self.lines.append(ln if ln.strip().endswith(":") else "    " + ln.strip())

    def label(self, s):
        self.lines.append(s + ":")

    def text(self):
        return "\n".join(self.lines) + "\n"


def vr(a, n):
    return f"v[{a}:{a + n - 1}]"


def sr(a, n=2):
    return f"s[{a}:{a + n - 1}]"


def wave_scan(a, v):
    for sh in (1, 2, 4, 8):
        a("s_nop 1")
        a(f"v_add_u32_dpp v{v}, v{v}, v{v} row_shr:{sh} row_mask:0xf bank_mask:0xf bound_ctrl:0")
    a("s_nop 1")
    a(f"v_add_u32_dpp v{v}, v{v}, v{v} row_bcast:15 row_mask:0xa bank_mask:0xf")
    a("s_nop 1")
    a(f"v_add_u32_dpp v{v}, v{v}, v{v} row_bcast:31 row_mask:0xc bank_mask:0xf")
    a("s_nop 1")


WSBASE = int(os.environ.get("WSBASE", "0"), 0)


def remap_wg(a, which):
    if f"noremap{which}" in OPT:
        return
    a("s_and_b32 s24, s2, 7")
    a("s_lshr_b32 s2, s2, 3")
    a("s_mov_b32 s23, s2")
    a("s_mul_i32 s25, s24, 31")
    a("s_min_u32 s24, s24, 2")
    a("s_add_u32 s2, s2, s25")
    a("s_add_u32 s2, s2, s24")


def warm_l2(a, lane, t0, t1, dst):
    for n in range(2):
        a(f"s_lshl_b32 s24, s{WAVE}, 7")
        a(f"s_add_u32 s24, s24, {n * 64}")
        a(f"v_add_u32 v{t0}, s24, v{lane}")
        a(f"v_min_u32 v{t0}, 1599, v{t0}")
        a(f"v_lshrrev_b32 v{t1}, 2, v{t0}")
        a("s_mul_i32 s24, s23, 400")
        a(f"v_add_u32 v{t1}, s24, v{t1}")
        a(f"v_min_u32 v{t1}, 12711, v{t1}")
        a(f"v_and_b32 v{t0}, 3, v{t0}")
        a(f"v_lshlrev_b32 v{t0}, 6, v{t0}")
        a(f"v_and_b32 v125, 0xfffff000, v{t1}")
        a(f"v_add_u32 v{t1}, v{t1}, v125")
        a(f"v_lshl_add_u32 v{t0}, v{t1}, 8, v{t0}")
        a(f"global_load_dword v{dst}, v{t0}, {sr(WS)}")


def load_ptrs(a):
    a("s_load_dwordx16 s[4:19], s[0:1], 0")
    a("s_load_dwordx2 s[20:21], s[0:1], 72")


def fix_ws(a):
    if WSBASE:
        a(f"s_add_u32 s20, s20, {WSBASE}")
        a("s_addc_u32 s21, s21, 0")


ST = ""
STT = ""
STR_ = ""
STO = ""


class Node:
    def __init__(self, a, WST, XST, tid, lane, vw, vx, t):
        self.a, self.WST, self.XST = a, WST, XST
        self.tid, self.lane, self.vw, self.vx, self.t = tid, lane, vw, vx, t

    def issue_loads(self, p0, off0, p1):
        a, t = self.a, self.t
        a(f"s_cmp_lt_u32 s{WAVE}, 8")
        a(f"s_cselect_b32 s24, s{p0}, s{p1}")
        a(f"s_cselect_b32 s25, s{p0 + 1}, s{p1 + 1}")
        if off0:
            a(f"s_cselect_b32 s26, {off0}, 0")
            a("s_add_u32 s24, s24, s26")
            a("s_addc_u32 s25, s25, 0")
        a(f"v_and_b32 v{t}, 511, v{self.tid}")
        a(f"v_lshlrev_b32 v{t}, 4, v{t}")
        a(f"global_load_dwordx4 {vr(self.vw, 4)}, v{t}, s[24:25]")
        a(f"v_min_u32 v{t}, {NPB * 8 - 1}, v{self.tid}")
        a(f"v_lshlrev_b32 v{t}, 4, v{t}")
        a(f"s_mul_i32 s26, s2, {NPB * 128}")
        a(f"v_add_u32 v{t}, s26, v{t}")
        a(f"global_load_dwordx4 {vr(self.vx, 4)}, v{t}, {sr(X)}")

    def stage(self):
        a, t, tid = self.a, self.t, self.tid
        a(f"v_bfe_u32 v{t}, v{tid}, 4, 1")
        a(f"v_bfe_u32 v{t + 1}, v{tid}, 6, 1")
        a(f"v_lshl_or_b32 v{t}, v{t + 1}, 1, v{t}")
        a(f"v_lshlrev_b32 v{t}, 5, v{t}")
        a(f"v_lshlrev_b32 v{t + 1}, 4, v{tid}")
        a(f"v_xor_b32 v{t}, v{t}, v{t + 1}")
        a(f"v_add_u32 v{t}, {self.WST}, v{t}")
        a(f"ds_write_b128 v{t}, {vr(self.vw, 4)}")
        a(f"v_lshrrev_b32 v{t}, 3, v{tid}")
        a(f"v_mul_u32_u24 v{t}, {XROW}, v{t}")
        a(f"v_and_b32 v{t + 1}, 7, v{tid}")
        a(f"v_lshl_add_u32 v{t}, v{t + 1}, 4, v{t}")
        a(f"v_add_u32 v{t}, {self.XST}, v{t}")
        a(f"v_cmp_gt_u32 vcc, {NPB * 8}, v{tid}")
        a("s_and_saveexec_b64 s[32:33], vcc")
        a(f"ds_write_b128 v{t}, {vr(self.vx, 4)}")
        a("s_mov_b64 exec, s[32:33]")

    def stage_addr(self, vw_a, vx_a, t):
        a, tid = self.a, self.tid
        a(f"v_bfe_u32 v{vw_a}, v{tid}, 4, 1")
        a(f"v_bfe_u32 v{t}, v{tid}, 6, 1")
        a(f"v_lshl_or_b32 v{vw_a}, v{t}, 1, v{vw_a}")
        a(f"v_lshlrev_b32 v{vw_a}, 5, v{vw_a}")
        a(f"v_lshlrev_b32 v{t}, 4, v{tid}")
        a(f"v_xor_b32 v{vw_a}, v{vw_a}, v{t}")
        a(f"v_add_u32 v{vw_a}, {self.WST}, v{vw_a}")
        a(f"v_lshrrev_b32 v{vx_a}, 3, v{tid}")
        a(f"v_mul_u32_u24 v{vx_a}, {XROW}, v{vx_a}")
        a(f"v_and_b32 v{t}, 7, v{tid}")
        a(f"v_lshl_add_u32 v{vx_a}, v{t}, 4, v{vx_a}")
        a(f"v_add_u32 v{vx_a}, {self.XST}, v{vx_a}")

    def stage_write(self, vw_a, vx_a):
        a, tid = self.a, self.tid
        a(f"ds_write_b128 v{vw_a}, {vr(self.vw, 4)}")
        a(f"v_cmp_gt_u32 vcc, {NPB * 8}, v{tid}")
        a("s_and_saveexec_b64 s[32:33], vcc")
        a(f"ds_write_b128 v{vx_a}, {vr(self.vx, 4)}")
        a("s_mov_b64 exec, s[32:33]")

    def pair_reads(self, aop, xop, vloc):
        a, t, lane = self.a, self.t, self.lane
        a(f"s_and_b32 s27, s{WAVE}, 1")
        a("s_lshl_b32 s27, s27, 1")
        a(f"s_lshr_b32 s26, s{WAVE}, 1")
        a(f"v_and_b32 v{t}, 15, v{lane}")
        a(f"v_lshrrev_b32 v{t + 1}, 4, v{lane}")
        a("s_lshl_b32 s26, s26, 4")
        a(f"v_add_u32 v{vloc}, s26, v{t}")
        a(f"v_mul_u32_u24 v{t + 2}, {XROW}, v{vloc}")
        a(f"v_lshl_add_u32 v{t + 2}, v{t + 1}, 4, v{t + 2}")
        a(f"v_add_u32 v{t + 2}, {self.XST}, v{t + 2}")
        a(f"ds_read_b128 {vr(xop, 4)}, v{t + 2}")
        a(f"ds_read_b128 {vr(xop + 4, 4)}, v{t + 2} offset:64")
        a(f"v_lshrrev_b32 v{t + 2}, 3, v{t}")
        a(f"v_and_b32 v{xop + 8}, 1, v{t + 1}")
        a(f"v_lshl_or_b32 v{t + 2}, v{xop + 8}, 1, v{t + 2}")
        a(f"v_xor_b32 v{t + 2}, s27, v{t + 2}")
        a(f"v_lshlrev_b32 v{t + 2}, 5, v{t + 2}")
        a(f"v_lshrrev_b32 v{xop + 8}, 2, v{t}")
        a(f"v_lshl_add_u32 v{xop + 8}, v{t + 1}, 3, v{xop + 8}")
        a(f"v_lshl_add_u32 v{t + 2}, v{xop + 8}, 7, v{t + 2}")
        a(f"v_and_b32 v{xop + 8}, 3, v{t}")
        a(f"v_lshl_add_u32 v{t + 2}, v{xop + 8}, 3, v{t + 2}")
        a(f"v_add_u32 v{t + 2}, {self.WST}, v{t + 2}")
        assert self.WST % 128 == 0
        for c in range(2):
            if c:
                a("s_waitcnt lgkmcnt(6)")
                a(f"v_xor_b32 v{t + 2}, 32, v{t + 2}")
            for m in range(2):
                for ks in range(2):
                    for hh in range(2):
                        r = aop + c * 16 + (m * 2 + ks) * 4 + hh * 2
                        a(f"ds_read_b64_tr_b16 {vr(r, 2)}, v{t + 2} offset:{m * 8192 + ks * 4096 + hh * 512}")

    def pair_mfma(self, aop, xop, dd):
        a = self.a
        for ks in range(2):
            for c in range(2):
                for m in range(2):
                    d = dd + (c * 2 + m) * 4
                    cop = "0" if ks == 0 else vr(d, 4)
                    a(f"v_mfma_f32_16x16x32_bf16 {vr(d, 4)}, {vr(aop + c * 16 + (m * 2 + ks) * 4, 4)}, {vr(xop + 4 * ks, 4)}, {cop}")


def copy_out(a, lds_addr_fn, goff_sgpr, t0, t1, d0, d1, tag):
    ST = STT if tag == "t" else STR_
    lds_addr_fn(0, t1)
    a(f"ds_read_b128 {vr(d0, 4)}, v{t1}")
    a(f"v_lshlrev_b32 v{t0}, 4, v0")
    a(f"v_add_u32 v{t0}, s{goff_sgpr}, v{t0}")
    a(f"s_cmp_gt_u32 s{WAVE}, 8")
    a(f"s_cbranch_scc1 L1_one{tag}")
    a(f"v_add_u32 v{t1}, 1024, v0")
    lds_addr_fn(t1, t1)
    a(f"ds_read_b128 {vr(d1, 4)}, v{t1}")
    a(f"v_add_u32 v{t1}, 16384, v{t0}")
    a("s_waitcnt lgkmcnt(0)")
    a(f"global_store_dwordx4 v{t1}, {vr(d1, 4)}, {sr(WS)}{ST}")
    a.label(f"L1_one{tag}")
    a("s_waitcnt lgkmcnt(0)")
    a(f"global_store_dwordx4 v{t0}, {vr(d0, 4)}, {sr(WS)}{ST}")


def gen_k1(a):
    HIST, BASE = 0, 1024
    WST = 2048
    XST = WST + 16384
    TST = XST + 112 * XROW
    STG = TST + NPB * ROW
    LDS = STG + EPC * 8
    TID, LANE = 0, 1
    T0, T1, T2, T3 = 2, 3, 14, 15
    VD, VS, VE = 4, 8, 12
    VW_, VX_ = 16, 20
    XOP = 24
    AOP = 36
    DD = 68
    PK = 84
    VLOC = 87
    VB, VR = 88, 92
    RP = 104
    NT = 100
    nd = Node(a, WST, XST, TID, LANE, VW_, VX_, NT)

    a(f".globl {K1}")
    a(".p2align 8")
    a(f".type {K1},@function")
    a.label(K1)
    a(f"s_cmp_ge_u32 s2, {NC}")
    a("s_cbranch_scc1 L1_end")
    dbg_time(a, 0, 0, True)
    stamp(a, 0)
    stamp(a, 20, True)
    load_ptrs(a)
    remap_wg(a, 1)
    a(f"v_and_b32 v{LANE}, 63, v{TID}")
    a(f"v_lshrrev_b32 v{T0}, 6, v{TID}")
    a(f"v_lshlrev_b32 v{T1}, 2, v{TID}")
    a(f"v_readfirstlane_b32 s{WAVE}, v{T0}")
    a(f"v_mov_b32 v{T0}, 0")
    a(f"s_cmp_lt_u32 s{WAVE}, 4")
    a("s_cbranch_scc0 L1_nozero")
    a(f"ds_write_b32 v{T1}, v{T0} offset:{HIST}")
    a.label("L1_nozero")
    a("s_waitcnt lgkmcnt(0)")
    fix_ws(a)
    stamp(a, 1)
    nd.issue_loads(GW, 8192, VW)
    a("s_barrier")
    a(f"s_cmp_gt_u32 s{WAVE}, 12")
    a("s_cbranch_scc1 L1_noedge0")
    a(f"s_mul_i32 s24, s2, {EPC * 4}")
    a(f"v_lshlrev_b32 v{T0}, 4, v{TID}")
    a(f"v_add_u32 v{T0}, s24, v{T0}")
    a(f"v_lshrrev_b32 v{T1}, 1, v{T0}")
    a(f"v_cmp_gt_u32 vcc, {EPC // 4}, v{TID}")
    a("s_and_saveexec_b64 s[32:33], vcc")
    a(f"global_load_dwordx4 {vr(VD, 4)}, v{T0}, {sr(DST)}")
    a(f"global_load_dwordx4 {vr(VS, 4)}, v{T0}, {sr(SRC)}")
    a(f"global_load_dwordx2 {vr(VE, 2)}, v{T1}, {sr(EA)}")
    a("s_mov_b64 exec, s[32:33]")
    a("s_waitcnt vmcnt(3)")
    a("s_branch L1_wx")
    a.label("L1_noedge0")
    a("s_waitcnt vmcnt(0)")
    a.label("L1_wx")
    stamp(a, 2)
    nd.stage()
    a("s_waitcnt lgkmcnt(0)")
    a("s_barrier")
    stamp(a, 3)
    a(f"s_cmp_gt_u32 s{WAVE}, 13")
    a("s_cbranch_scc1 L1_notask")
    nd.pair_reads(AOP, XOP, VLOC)
    a(f"v_mul_u32_u24 v{T0}, {ROW}, v{VLOC}")
    a(f"v_lshrrev_b32 v{T1}, 4, v{LANE}")
    a(f"v_lshl_add_u32 v{T0}, v{T1}, 4, v{T0}")
    a("s_lshl_b32 s30, s27, 6")
    a(f"s_add_u32 s30, s30, {TST}")
    a(f"v_add_u32 v{T0}, s30, v{T0}")
    a(f"s_mov_b32 s24, {LOG2E_NEG:#x}")
    a("s_mov_b32 s25, 0x7fff0000")
    a("s_mov_b32 s30, 0x7fffffff")
    VLO, VHI = 33, 34
    a(f"v_mov_b32 v{VLO}, 0xc77fe000")
    a(f"v_mov_b32 v{VHI}, 0x477fe000")
    a(f"v_cmp_gt_u32 vcc, {NPB}, v{VLOC}")
    a("s_waitcnt lgkmcnt(0)")
    nd.pair_mfma(AOP, XOP, DD)
    a("s_nop 5")
    for c in range(2):
        DQ, DH = DD + c * 8, DD + c * 8 + 4
        if c == 1:
            pass
        for i in range(4):
            a(f"v_mul_f32 v{DQ + i}, s24, v{DQ + i}")
        for i in range(4):
            a(f"v_med3_f32 v{DQ + i}, v{DQ + i}, v{VLO}, v{VHI}")
        a(f"v_cvt_pk_f16_f32 v{PK}, v{DQ}, v{DQ + 1}")
        a(f"v_cvt_pk_f16_f32 v{PK + 1}, v{DQ + 2}, v{DQ + 3}")
        for i in range(4):
            h = DH + i
            sel = "WORD_1" if i % 2 else "WORD_0"
            a(f"v_and_b32 v{DQ + i}, s30, v{h}")
            a(f"v_add_u32 v{DQ + i}, 0x8000, v{DQ + i}")
            a(f"v_sub_u32_sdwa v{DQ + i}, v{DQ + i}, v{PK + i // 2} clamp dst_sel:DWORD dst_unused:UNUSED_PAD src0_sel:DWORD src1_sel:{sel}")
        for i in range(4):
            h = DH + i
            a(f"v_bfi_b32 v{h}, s25, v{DQ + i}, v{h}")
        for i in range(4):
            h = DH + i
            sel = "WORD_1" if i % 2 else "WORD_0"
            a(f"v_mov_b32_sdwa v{h}, v{PK + i // 2} dst_sel:WORD_0 dst_unused:UNUSED_PRESERVE src0_sel:{sel}")
        a("s_and_saveexec_b64 s[32:33], vcc")
        a(f"ds_write_b128 v{T0}, {vr(DH, 4)} offset:{c * 64}")
        a("s_mov_b64 exec, s[32:33]")
    a.label("L1_notask")
    a("s_waitcnt lgkmcnt(0)")
    stamp(a, 4)
    a("s_barrier")

    a(f"s_sub_u32 s24, s{WAVE}, 13")
    a("s_cmp_lt_u32 s24, 2")
    a("s_cbranch_scc0 L1_not")
    a(f"v_lshrrev_b32 v{T0}, 4, v{LANE}")
    a(f"v_mul_u32_u24 v{T0}, {ROW}, v{T0}")
    a(f"v_and_b32 v{T1}, 15, v{LANE}")
    a(f"v_lshl_add_u32 v{T0}, v{T1}, 4, v{T0}")
    a(f"s_mul_i32 s25, s24, {13 * 4 * ROW}")
    a(f"s_add_u32 s25, s25, {TST}")
    a(f"v_add_u32 v{T0}, s25, v{T0}")
    a(f"s_mul_i32 s26, s2, {NPB * 256}")
    a(f"s_mul_i32 s25, s24, {13 * 1024}")
    a("s_add_u32 s26, s26, s25")
    a(f"v_lshlrev_b32 v{T1}, 4, v{LANE}")
    a(f"v_add_u32 v{T1}, s26, v{T1}")
    for n in range(12):
        a(f"ds_read_b128 {vr(16 + 4 * n, 4)}, v{T0} offset:{n * 4 * ROW}")
    a(f"v_add_u32 v{T2}, {12 * 1024}, v{T1}")
    a("s_cmp_eq_u32 s24, 0")
    a("s_cbranch_scc0 L1_t12")
    a(f"ds_read_b128 {vr(64, 4)}, v{T0} offset:{12 * 4 * ROW}")
    a("s_waitcnt lgkmcnt(0)")
    a(f"global_store_dwordx4 v{T2}, {vr(64, 4)}, {sr(WS)}{STT}")
    a.label("L1_t12")
    for n in range(12):
        a(f"s_waitcnt lgkmcnt({max(0, 11 - n)})")
        a(f"global_store_dwordx4 v{T1}, {vr(16 + 4 * n, 4)}, {sr(WS)} offset:{(n % 4) * 1024}{STT}")
        if n % 4 == 3:
            a(f"v_add_u32 v{T1}, 4096, v{T1}")
    if "readback" in OPT:
        a("s_waitcnt vmcnt(0)")
        a(f"v_subrev_u32 v{T1}, {3 * 4096}, v{T1}")
        for n in range(12):
            a(f"global_load_dwordx4 {vr(16 + 4 * n, 4)}, v{T1}, {sr(WS)} offset:{(n % 4) * 1024}")
            if n % 4 == 3:
                a(f"v_add_u32 v{T1}, 4096, v{T1}")
        a(f"global_load_dwordx4 {vr(64, 4)}, v{T2}, {sr(WS)}")
        a("s_waitcnt vmcnt(0)")
    if "wbl2" in OPT:
        a("s_waitcnt vmcnt(0)")
        a("buffer_wbl2 sc1")
        a("s_waitcnt vmcnt(0)")
    stamp(a, 5)
    if STAMPS:
        a("s_waitcnt vmcnt(0)")
    stamp(a, 11)
    stamp(a, 21, True)
    stamp_flush(a, 0)
    a("s_endpgm")
    a.label("L1_not")
    stamp(a, 5)
    a(f"s_cmp_gt_u32 s{WAVE}, 12")
    a("s_cbranch_scc1 L1_noedge1")
    a(f"v_cmp_gt_u32 vcc, {EPC // 4}, v{TID}")
    a("s_and_saveexec_b64 s[32:33], vcc")
    a(f"v_mov_b32 v{T1}, 1")
    a("s_movk_i32 s24, -100")
    a("s_mov_b32 s25, 0xffff0000")
    a("s_movk_i32 s30, 128")
    a("s_waitcnt vmcnt(0)")
    for i in range(4):
        a(f"v_mul_u32_u24 v{T0}, 5243, v{VD + i}")
        a(f"v_lshrrev_b32 v{T0}, 19, v{T0}")
        a(f"v_lshlrev_b32 v{VB + i}, 2, v{T0}")
        a(f"ds_add_rtn_u32 v{VR + i}, v{VB + i}, v{T1} offset:{HIST}")
        a(f"v_mad_i32_i24 v{T2}, v{T0}, s24, v{VD + i}")
        a(f"v_lshrrev_b32 v{T3}, 5, v{VS + i}")
        a(f"v_and_or_b32 v{RP + 2 * i + 1}, v{T3}, s30, v{T2}")
        if "smallsrc" in OPT:
            a(f"v_and_b32 v{VS + i}, 0x7ff, v{VS + i}")
        if i % 2 == 0:
            a(f"v_lshl_or_b32 v{RP + 2 * i}, v{VE + i // 2}, 16, v{VS + i}")
        else:
            a(f"v_and_or_b32 v{RP + 2 * i}, v{VE + i // 2}, s25, v{VS + i}")
    a("s_mov_b64 exec, s[32:33]")
    a.label("L1_noedge1")
    a("s_waitcnt lgkmcnt(0)")
    stamp(a, 6)
    a("s_barrier")
    stamp(a, 7)
    a(f"s_cmp_eq_u32 s{WAVE}, 15")
    a("s_cbranch_scc0 L1_b2")
    C0 = 24
    a(f"v_lshlrev_b32 v{T0}, 4, v{LANE}")
    a(f"ds_read_b128 {vr(C0, 4)}, v{T0} offset:{HIST}")
    a("s_waitcnt lgkmcnt(0)")
    P = 28
    a(f"v_add_u32 v{P + 2}, v{C0}, v{C0 + 1}")
    a(f"v_add_u32 v{P + 3}, v{P + 2}, v{C0 + 2}")
    a(f"v_add_u32 v32, v{P + 3}, v{C0 + 3}")
    a("v_mov_b32 v33, v32")
    wave_scan(a, 33)
    a(f"v_sub_u32 v{P}, v33, v32")
    a(f"v_add_u32 v{P + 1}, v{P}, v{C0}")
    a(f"v_add_u32 v{P + 2}, v{P}, v{P + 2}")
    a(f"v_add_u32 v{P + 3}, v{P}, v{P + 3}")
    a(f"ds_write_b128 v{T0}, {vr(P, 4)} offset:{BASE}")
    a("s_lshl_b32 s24, s2, 10")
    a(f"s_add_u32 s24, s24, {SEG_OFF}")
    a(f"v_add_u32 v{T1}, s24, v{T0}")
    for i in range(4):
        a(f"v_lshl_or_b32 v{36 + i}, v{C0 + i}, 16, v{P + i}")
    a(f"global_store_dwordx4 v{T1}, v[36:39], {sr(WS)}{ST}")
    a("s_cmp_lg_u32 s2, 0")
    a("s_cbranch_scc1 L1_b2")
    a(f"v_mov_b32 v{T2}, 0")
    a(f"v_lshlrev_b32 v{T3}, 2, v{LANE}")
    a(f"v_add_u32 v{T3}, {N * 256}, v{T3}")
    a(f"global_store_dword v{T3}, v{T2}, {sr(WS)}{ST}")
    a.label("L1_b2")
    a("s_waitcnt lgkmcnt(0)")
    stamp(a, 8)
    a("s_barrier")
    a(f"s_cmp_gt_u32 s{WAVE}, 12")
    a("s_cbranch_scc1 L1_noedge2")
    a(f"v_cmp_gt_u32 vcc, {EPC // 4}, v{TID}")
    a("s_and_saveexec_b64 s[32:33], vcc")
    for i in range(4):
        a(f"ds_read_b32 v{VD + i}, v{VB + i} offset:{BASE}")
    a(f"s_mov_b32 s24, {STG}")
    for i in range(4):
        a("s_waitcnt lgkmcnt(3)")
        a(f"v_add_u32 v{VD + i}, v{VD + i}, v{VR + i}")
        a(f"v_lshl_add_u32 v{VD + i}, v{VD + i}, 3, s24")
        a(f"ds_write_b64 v{VD + i}, {vr(RP + 2 * i, 2)}")
    a("s_mov_b64 exec, s[32:33]")
    a.label("L1_noedge2")
    a(f"s_min_u32 s25, s{WAVE}, 13")
    a("s_lshl_b32 s25, s25, 10")
    a(f"v_lshlrev_b32 v{T0}, 4, v{LANE}")
    a(f"v_add_u32 v{T0}, s25, v{T0}")
    a(f"v_add_u32 v{T1}, {STG}, v{T0}")
    a(f"s_mul_i32 s24, s2, {EPC * 8}")
    a(f"s_add_u32 s24, s24, {REC_OFF}")
    a(f"v_add_u32 v{T0}, s24, v{T0}")
    a("s_waitcnt lgkmcnt(0)")
    stamp(a, 9)
    a("s_barrier")
    a(f"ds_read_b128 v[24:27], v{T1}")
    a(f"s_cmp_gt_u32 s{WAVE}, 10")
    a("s_cbranch_scc1 L1_oner")
    a(f"ds_read_b128 v[28:31], v{T1} offset:{14 * 1024}")
    a(f"v_add_u32 v{T1}, {14 * 1024}, v{T0}")
    a("s_waitcnt lgkmcnt(0)")
    a(f"global_store_dwordx4 v{T1}, v[28:31], {sr(WS)}{STR_}")
    a.label("L1_oner")
    a("s_waitcnt lgkmcnt(0)")
    a(f"global_store_dwordx4 v{T0}, v[24:27], {sr(WS)}{STR_}")
    for o in OPT:
        if o.startswith("delay="):
            n = int(o[6:])
            a(f"s_movk_i32 s24, {n}")
            a.label("L1_dly")
            a("s_sleep 16")
            a("s_sub_u32 s24, s24, 1")
            a("s_cmp_lg_u32 s24, 0")
            a("s_cbranch_scc1 L1_dly")
    if "dbgt" in OPT:
        a("s_waitcnt vmcnt(0)")
    dbg_time(a, 0, 1)
    stamp(a, 10)
    if STAMPS:
        a("s_waitcnt vmcnt(0)")
    stamp(a, 11)
    stamp(a, 21, True)
    stamp_flush(a, 0)
    a.label("L1_end")
    a("s_endpgm")
    return LDS, 112


def gen_k2(a):
    HIST = 0
    HIST2 = HIST + 1024
    BASE2 = HIST2 + 1024
    WCNT = BASE2 + 1024
    WKEY = WCNT + 1024
    MISC = WKEY + 1024
    SCR = MISC + 256
    ZERO = SCR + 256
    PL = ZERO + 256
    PART0 = PL + NPB * ROW
    WST = (PART0 + NPB * ROW + 127) // 128 * 128
    XST = WST + 16384
    LIST = XST + NPB * XROW
    CAPK = 48
    COL = CAPK * 4
    LISTB = 228 * COL
    LDS = LIST + LISTB + 64
    assert PART0 + 64 * ROW < 65536 and LDS <= 163840, LDS
    NWIN = 50
    DUMMY_COL = 100 * COL

    TID, LANE = 0, 1
    T0, T1, T2, T3 = 2, 3, 4, 5
    RB = 6
    REM = 7
    RECS = 8
    RANK = 24
    VW_, VX_ = 32, 36
    XOP = 40
    AOP = 52
    DD = 84
    VLOC = 49
    NT = 100
    VLB = 103
    ASEL = 112
    VJ, VG4, VQ, VONE = 116, 117, 118, 119
    CV = 120
    VZ = 124
    VXA, VWA, VPA, VSH = 104, 105, 106, 107
    MASK = 40
    nd = Node(a, WST, XST, TID, LANE, VW_, VX_, NT)

    a(f".globl {K2}")
    a(".p2align 8")
    a(f".type {K2},@function")
    a.label(K2)
    a(f"s_cmp_ge_u32 s2, {NB}")
    a("s_cbranch_scc1 L2_end")
    dbg_time(a, 1, 2, True)
    for o in OPT:
        if o.startswith("nops="):
            for _ in range(int(o[5:])):
                a("s_nop 0")
        if o.startswith("slit="):
            for _ in range(int(o[5:])):
                a("s_mov_b32 s24, 0x12345678")
        if o.startswith("slil="):
            a(f"s_movk_i32 s25, {int(o[5:]) // 16}")
            a.label("L2_slil")
            for _ in range(13):
                a("s_mov_b32 s24, 0x12345678")
            a("s_sub_u32 s25, s25, 1")
            a("s_cmp_lg_u32 s25, 0")
            a("s_cbranch_scc1 L2_slil")
        if o.startswith("nopl="):
            a(f"s_movk_i32 s24, {int(o[5:]) // 16}")
            a.label("L2_nopl")
            for _ in range(13):
                a("s_nop 0")
            a("s_sub_u32 s24, s24, 1")
            a("s_cmp_lg_u32 s24, 0")
            a("s_cbranch_scc1 L2_nopl")
    stamp(a, 0)
    stamp(a, 20, True)
    load_ptrs(a)
    remap_wg(a, 2)
    a(f"v_and_b32 v{LANE}, 63, v{TID}")
    a(f"v_lshrrev_b32 v{T0}, 6, v{TID}")
    a(f"v_lshlrev_b32 v{T1}, 2, v{TID}")
    a(f"v_readfirstlane_b32 s{WAVE}, v{T0}")
    a(f"v_lshrrev_b32 v{RB}, 2, v{TID}")
    a(f"v_lshlrev_b32 v{RB}, 10, v{RB}")
    a("s_lshl_b32 s24, s2, 2")
    a(f"s_add_u32 s24, s24, {SEG_OFF}")
    a(f"v_add_u32 v{RB}, s24, v{RB}")
    a("s_waitcnt lgkmcnt(0)")
    fix_ws(a)
    stamp(a, 1)
    a(f"global_load_dword v{REM}, v{RB}, {sr(WS)}")
    a(f"v_mov_b32 v{T0}, 0")
    a(f"s_cmp_lt_u32 s{WAVE}, 4")
    a("s_cbranch_scc0 L2_nozero")
    a(f"ds_write_b32 v{T1}, v{T0} offset:{HIST}")
    a(f"ds_write_b32 v{T1}, v{T0} offset:{HIST2}")
    a.label("L2_nozero")
    a(f"s_cmp_eq_u32 s{WAVE}, 4")
    a("s_cbranch_scc0 L2_nozero2")
    a(f"v_lshlrev_b32 v{T2}, 2, v{LANE}")
    a(f"v_cmp_eq_u32 vcc, 2, v{LANE}")
    a("s_nop 1")
    a(f"v_cndmask_b32 v{T3}, 0, 16, vcc")
    a(f"ds_write_b32 v{T2}, v{T3} offset:{MISC}")
    a(f"ds_write_b32 v{T2}, v{T0} offset:{ZERO}")
    a.label("L2_nozero2")
    a(f"v_lshrrev_b32 v{RB}, 2, v{TID}")
    a(f"v_mul_u32_u24 v{RB}, {EPC}, v{RB}")
    a(f"v_and_b32 v{T3}, 3, v{TID}")
    a(f"v_lshlrev_b32 v{T3}, 1, v{T3}")
    a(f"v_add_u32 v{RB}, v{RB}, v{T3}")
    a(f"v_lshlrev_b32 v{RB}, 3, v{RB}")
    a(f"v_add_u32 v{RB}, {REC_OFF}, v{RB}")
    a(f"v_cmp_gt_u32 vcc, {NC * 4}, v{TID}")
    a("s_waitcnt vmcnt(0)")
    stamp(a, 2)
    a(f"v_cndmask_b32 v{REM}, 0, v{REM}, vcc")
    a(f"v_and_b32 v{T2}, 0xffff, v{REM}")
    a(f"v_lshrrev_b32 v{REM}, 16, v{REM}")
    a(f"v_lshl_add_u32 v{RB}, v{T2}, 3, v{RB}")
    a(f"v_cmp_lt_u32 s[56:57], 32, v{REM}")
    a(f"v_sub_u32 v{REM}, v{REM}, v{T3}")
    for r in range(4):
        a(f"v_cmp_gt_i32 {sr(MASK + 4 * r)}, v{REM}, {8 * r}")
    a("s_nop 1")
    for r in range(4):
        m = MASK + 4 * r
        a(f"s_mov_b64 exec, {sr(m)}")
        a("s_cbranch_execz L2_recs_done")
        a(f"global_load_dwordx4 {vr(RECS + 4 * r, 4)}, v{RB}, {sr(WS)} offset:{64 * r}")
    a.label("L2_recs_done")
    a("s_mov_b64 exec, -1")
    for r in range(4):
        a(f"v_cmp_gt_i32 {sr(MASK + 4 * r + 2)}, v{REM}, {8 * r + 1}")
    nd.issue_loads(GW, 0, UW)
    a(f"v_and_b32 v{T0}, 15, v{LANE}")
    a(f"v_lshlrev_b32 v{VJ}, 4, v{T0}")
    a(f"v_lshrrev_b32 v{T2}, 1, v{VJ}")
    a(f"v_add_u32 v{T2}, {128 * 128}, v{T2}")
    a(f"global_load_dwordx2 {vr(CV + 2, 2)}, v{T2}, {sr(GW)}")
    if "warm1" in OPT:
        warm_l2(a, LANE, T2, T3, 127)
    for i in range(4):
        a(f"v_mov_b32 v{XOP + i}, {N}")
    a(f"v_lshlrev_b32 v{T2}, 4, v{TID}")
    a(f"v_add_u32 v{T2}, {LIST}, v{T2}")
    a(f"ds_write_b128 v{T2}, {vr(XOP, 4)}")
    a(f"ds_write_b128 v{T2}, {vr(XOP, 4)} offset:16384")
    nlast = LISTB // 16 - 2048
    a(f"v_cmp_gt_u32 vcc, {nlast}, v{TID}")
    a("s_and_saveexec_b64 s[32:33], vcc")
    a(f"ds_write_b128 v{T2}, {vr(XOP, 4)} offset:32768")
    a("s_mov_b64 exec, s[32:33]")
    a(f"v_lshrrev_b32 v{T1}, 4, v{LANE}")
    a(f"v_lshlrev_b32 v{VG4}, 2, v{T1}")
    a(f"s_mul_i32 s24, s2, {NPB * 128}")
    a(f"v_lshrrev_b32 v{VZ}, 1, v{VJ}")
    a(f"v_add_u32 v{VZ}, s24, v{VZ}")
    a(f"v_mov_b32 v{VONE}, 1")
    a(f"v_mov_b32 v{VLB}, {LIST}")
    a(f"v_lshlrev_b32 v{VQ}, 2, v{LANE}")
    a(f"v_add_u32 v{VQ}, {SCR}, v{VQ}")
    a(f"v_cmp_eq_u32 vcc, 0, v{LANE}")
    a(f"v_mov_b32 v{T3}, {MISC + 8}")
    a(f"v_lshrrev_b32 v{T2}, 2, v{T0}")
    a(f"v_cndmask_b32 v{VQ}, v{VQ}, v{T3}, vcc")
    a(f"v_cmp_eq_u32 vcc, v{T2}, v{T1}")
    a(f"v_mov_b32 v{T3}, 0x3c00")
    a(f"v_and_b32 v{T2}, 3, v{T0}")
    a(f"v_cndmask_b32 v{T3}, 0, v{T3}, vcc")
    for q in range(4):
        a(f"v_cmp_eq_u32 vcc, {q}, v{T2}")
        a("s_nop 1")
        a(f"v_cndmask_b32 v{ASEL + q}, 0, v{T3}, vcc")
    a(f"s_mov_b32 s36, s{WS}")
    a(f"s_and_b32 s37, s{WS + 1}, 0xffff")
    a("s_or_b32 s37, s37, 0x1000000")
    a(f"s_mov_b32 s38, {N + 1}")
    a("s_mov_b32 s39, 0x20000")
    a(f"s_mov_b32 s66, {TINY:#x}")
    a(f"s_mov_b32 s67, {TINY:#x}")
    for k in range(4):
        a(f"v_mov_b32 v{76 + 4 * k + 1}, v{VJ}")
        a(f"v_mov_b32 v{76 + 4 * k + 3}, v{VJ}")
        a(f"v_mov_b32 v{92 + 2 * k}, 0")
        a(f"v_mov_b32 v{92 + 2 * k + 1}, 0")
    nd.stage_addr(NT, NT + 1, NT + 2)
    a(f"s_and_b32 s27, s{WAVE}, 3")
    a(f"s_lshr_b32 s26, s{WAVE}, 2")
    a("s_lshl_b32 s26, s26, 5")
    a(f"v_and_b32 v{T0}, 15, v{LANE}")
    a(f"v_lshrrev_b32 v{T1}, 4, v{LANE}")
    a(f"v_add_u32 v{T2}, s26, v{T0}")
    a(f"v_mul_u32_u24 v{VXA}, {XROW}, v{T2}")
    a(f"v_lshl_add_u32 v{VXA}, v{T1}, 4, v{VXA}")
    a(f"v_add_u32 v{VXA}, {XST}, v{VXA}")
    a(f"v_mul_u32_u24 v{VPA}, {ROW}, v{T2}")
    a(f"v_lshl_add_u32 v{VPA}, v{T1}, 4, v{VPA}")
    a("s_lshl_b32 s30, s27, 6")
    a(f"v_add_u32 v{VPA}, s30, v{VPA}")
    a(f"v_lshrrev_b32 v{T2}, 3, v{T0}")
    a(f"v_and_b32 v{T3}, 1, v{T1}")
    a(f"v_lshl_or_b32 v{T2}, v{T3}, 1, v{T2}")
    a(f"v_xor_b32 v{T2}, s27, v{T2}")
    a(f"v_lshlrev_b32 v{T2}, 5, v{T2}")
    a(f"v_lshrrev_b32 v{T3}, 2, v{T0}")
    a(f"v_lshl_add_u32 v{T3}, v{T1}, 3, v{T3}")
    a(f"v_lshl_add_u32 v{T2}, v{T3}, 7, v{T2}")
    a(f"v_and_b32 v{T3}, 3, v{T0}")
    a(f"v_lshl_add_u32 v{T2}, v{T3}, 3, v{T2}")
    a(f"v_add_u32 v{VWA}, {WST}, v{T2}")
    a(f"v_mov_b32 v{VSH}, {SHIFT_NEG:#x}")
    a(f"v_cmp_gt_u32 s[34:35], 4, v{T0}")
    a("s_waitcnt lgkmcnt(0)")
    a("s_barrier")
    a("s_cmp_eq_u64 s[56:57], 0")
    a("s_cbranch_scc1 L2_noflag")
    a(f"v_mov_b32 v{T2}, 0")
    a(f"ds_write_b32 v{T2}, v{VONE} offset:{MISC}")
    a.label("L2_noflag")
    a(f"s_movk_i32 s59, {COL}")
    a(f"s_waitcnt vmcnt({5 if 'warm1' in OPT else 3})")
    stamp(a, 3)
    if "warm2" in OPT:
        warm_l2(a, LANE, T2, T3, 127)
    for r in range(4):
        if r >= 2:
            a(f"s_cmp_eq_u64 {sr(MASK + 4 * r)}, 0")
            a(f"s_cbranch_scc1 L2_h{r}")
        for s_ in range(2):
            k = 2 * r + s_
            hi = RECS + 4 * r + 2 * s_ + 1
            a(f"s_mov_b64 exec, {sr(MASK + 2 * k)}")
            a(f"v_lshlrev_b32 v{T1}, 2, v{hi}")
            a(f"ds_add_rtn_u32 v{RANK + k}, v{T1}, v{VONE} offset:{HIST}")
            a(f"v_mad_u32_u24 v{hi}, v{hi}, s59, v{VLB}")
        if r >= 2:
            a.label(f"L2_h{r}")
    a("s_mov_b64 exec, -1")
    a("s_waitcnt lgkmcnt(0)")
    for r in range(4):
        if r >= 2:
            a(f"s_cmp_eq_u64 {sr(MASK + 4 * r)}, 0")
            a(f"s_cbranch_scc1 L2_s{r}")
        for s_ in range(2):
            k = 2 * r + s_
            lo = RECS + 4 * r + 2 * s_
            hi = lo + 1
            a(f"s_mov_b64 exec, {sr(MASK + 2 * k)}")
            a(f"v_min_u32 v{RANK + k}, 63, v{RANK + k}")
            a(f"v_lshl_add_u32 v{hi}, v{RANK + k}, 2, v{hi}")
            a(f"ds_write_b32 v{hi}, v{lo}")
        if r >= 2:
            a.label(f"L2_s{r}")
    a("s_mov_b64 exec, -1")
    stamp(a, 4)
    a(f"s_waitcnt vmcnt({2 if ('warm1' in OPT or 'warm2' in OPT) else 0})")
    stamp(a, 5)
    if "ttouch" in OPT:
        a(f"s_cmp_lt_u32 s{WAVE}, {TOUCH0}")
        a("s_cbranch_scc1 L2_notouch")
        a(f"s_sub_u32 s25, s{WAVE}, {TOUCH0}")
        a(f"s_cmp_gt_u32 s25, 3")
        a("s_cbranch_scc1 L2_notouch")
        a("s_lshl_b32 s25, s25, 6")
        a(f"v_add_u32 v{T2}, s25, v{LANE}")
        a(f"v_min_u32 v{T2}, {NPB * 2 - 1}, v{T2}")
        a(f"v_lshlrev_b32 v{T2}, 7, v{T2}")
        a(f"s_mul_i32 s24, s2, {NPB * 256}")
        a(f"v_add_u32 v{T2}, s24, v{T2}")
        a(f"global_load_dword v126, v{T2}, {sr(WS)}")
        a.label("L2_notouch")
    nd.stage_write(NT, NT + 1)
    a(f"s_mov_b32 s24, {LOG2E_NEG:#x}")
    a(f"v_lshlrev_b32 v{CV}, 16, v{CV + 2}")
    a(f"v_and_b32 v{CV + 1}, 0xffff0000, v{CV + 2}")
    a(f"v_lshlrev_b32 v{CV + 2}, 16, v{CV + 3}")
    a(f"v_and_b32 v{CV + 3}, 0xffff0000, v{CV + 3}")
    for i in range(4):
        a(f"v_mul_f32 v{CV + i}, s24, v{CV + i}")
    a("s_waitcnt lgkmcnt(0)")
    stamp(a, 6)
    a("s_barrier")
    a(f"s_cmp_eq_u32 s{WAVE}, 15")
    a("s_cbranch_scc1 L2_order")
    a("s_branch L2_b2")

    a.label("L2_order")
    a("s_setprio 3")
    CN, BN, RK = 64, 68, 72
    S0 = 56
    a(f"v_lshlrev_b32 v{T0}, 4, v{LANE}")
    a(f"ds_read_b128 {vr(CN, 4)}, v{T0} offset:{HIST}")
    a(f"v_lshrrev_b32 v{T1}, 5, v{LANE}")
    a(f"v_and_b32 v{T2}, 31, v{LANE}")
    a(f"v_cmp_gt_u32 vcc, 25, v{T2}")
    a(f"v_lshlrev_b32 v{T3}, 8, v{T1}")
    a(f"v_add_u32 v{T3}, {63 * 4}, v{T3}")
    a(f"v_mov_b32 v{S0}, {(128 + 63) * 4}")
    a(f"v_cndmask_b32 v{T3}, v{S0}, v{T3}, vcc")
    a(f"v_lshlrev_b32 v{T2}, 2, v{T2}")
    a(f"v_mul_u32_u24 v{T1}, {4 * COL}, v{LANE}")
    a(f"v_lshl_or_b32 v{T1}, v{T1}, 16, v{T2}")
    a("s_waitcnt lgkmcnt(0)")
    a(f"v_max3_u32 v{S0 + 1}, v{CN}, v{CN + 1}, v{CN + 2}")
    a(f"v_max_u32 v{S0 + 1}, v{S0 + 1}, v{CN + 3}")
    for i in range(4):
        a(f"v_min_u32 v{BN + i}, 63, v{CN + i}")
        a(f"v_lshlrev_b32 v{BN + i}, 2, v{BN + i}")
        a(f"v_sub_u32 v{BN + i}, v{T3}, v{BN + i}")
        a(f"ds_add_rtn_u32 v{RK + i}, v{BN + i}, v{VONE} offset:{HIST2}")
    a(f"ds_read_b128 {vr(S0 + 4, 4)}, v{T0} offset:{HIST2}")
    a(f"v_cmp_lt_u32 vcc, {CAPK}, v{S0 + 1}")
    a("s_cbranch_vccz L2_nocap")
    a(f"v_mov_b32 v{S0}, 0")
    a(f"ds_write_b32 v{S0}, v{VONE} offset:{MISC}")
    a.label("L2_nocap")
    a("s_waitcnt lgkmcnt(0)")
    a(f"v_add_u32 v{S0 + 1}, v{S0 + 4}, v{S0 + 5}")
    a(f"v_add_u32 v{S0 + 2}, v{S0 + 1}, v{S0 + 6}")
    a(f"v_add_u32 v{S0 + 3}, v{S0 + 2}, v{S0 + 7}")
    a(f"v_mov_b32 v{S0}, v{S0 + 3}")
    wave_scan(a, S0)
    a(f"v_sub_u32 v{S0}, v{S0}, v{S0 + 3}")
    a(f"v_add_u32 v{S0 + 3}, v{S0}, v{S0 + 2}")
    a(f"v_add_u32 v{S0 + 2}, v{S0}, v{S0 + 1}")
    a(f"v_add_u32 v{S0 + 1}, v{S0}, v{S0 + 4}")
    a(f"ds_write_b128 v{T0}, {vr(S0, 4)} offset:{BASE2}")
    for i in range(4):
        a(f"ds_read_b32 v{S0 + 4 + i}, v{BN + i} offset:{BASE2}")
    a("s_waitcnt lgkmcnt(0)")
    for i in range(4):
        a(f"v_add_u32 v{RK + i}, v{RK + i}, v{S0 + 4 + i}")
        a(f"v_lshlrev_b32 v{RK + i}, 2, v{RK + i}")
        a(f"v_add_u32 v{S0}, {i * ((COL << 16) + 1)}, v{T1}")
        a(f"ds_write_b32 v{RK + i}, v{CN + i} offset:{WCNT}")
        a(f"ds_write_b32 v{RK + i}, v{S0} offset:{WKEY}")
    a("s_setprio 0")
    a.label("L2_b2")
    a("s_waitcnt lgkmcnt(0)")
    stamp(a, 7)
    a("s_barrier")
    stamp(a, 8)
    if "noprio" not in OPT:
        a("s_setprio 3")
    NP = 4
    RA = 4
    PR = 8
    ACC = 12
    UR = 16
    DN = 20
    NM = 24
    DA = 28
    VB = 44
    IX = 76
    EV = 92
    VL = 100
    VFL = 101
    VRN = 103
    VWL = 125
    SC, SNL, SI = 61, 62, 63
    STR = 64
    SP, SDONE = 58, 59
    VOC, VON = 104, 105
    a(f"s_movk_i32 s68, {ROW}")
    assert IX == 76 and EV == 92
    a(f"v_mov_b32 v{T0}, 0")
    a(f"ds_read_b32 v{T1}, v{T0} offset:{MISC}")
    a(f"v_lshlrev_b32 v{T2}, 4, v{LANE}")
    a(f"ds_read_b32 v{VWL}, v{T2} offset:{WCNT}")
    a(f"s_lshl_b32 s26, s{WAVE}, 4")
    a(f"v_add_u32 v{T2}, s26, v{VG4}")
    a(f"ds_read_b32 v{T3}, v{T2} offset:{WKEY}")
    a("s_waitcnt lgkmcnt(0)")
    a(f"v_readfirstlane_b32 s24, v{T1}")
    a(f"v_add_u32 v{VWL}, 1, v{VWL}")
    a(f"v_lshrrev_b32 v{VWL}, 1, v{VWL}")
    a(f"v_max_u32 v{VWL}, {RA}, v{VWL}")
    a(f"v_lshrrev_b32 v{VL}, 16, v{T3}")
    a(f"v_add_u32 v{VL}, {LIST}, v{VL}")
    a("s_mov_b32 s65, s24")
    for k in range(RA):
        a(f"ds_read_u16 v{IX + 4 * k}, v{VL} offset:{8 * k}")
        a(f"ds_read_u16 v{IX + 4 * k + 2}, v{VL} offset:{8 * k + 4}")
    a(f"v_and_b32 v{VRN}, 0xffff, v{T3}")
    a(f"v_mad_u32_u24 v{VRN}, v{VRN}, s68, v{VJ}")
    a(f"v_mov_b32 v{VFL}, v{VRN}")
    a(f"s_mov_b32 s{SP}, 0")
    a(f"s_mov_b32 s{SDONE}, 0")
    a(f"s_mov_b32 s28, {LOG2E_NEG:#x}")
    a(f"s_mov_b32 s29, {LOG2E_NEG:#x}")
    a("s_mov_b32 s30, 1.0")
    a("s_mov_b32 s31, 1.0")
    a(f"v_readlane_b32 s{SC}, v{VWL}, s{WAVE}")
    a(f"s_mov_b32 s{STR}, {RA}")
    a(f"s_mov_b32 s{SI}, s{WAVE}")
    a("s_waitcnt lgkmcnt(0)")
    for k in range(RA - 1):
        for h in range(2):
            a(f"buffer_load_dwordx4 {vr(VB + 8 * k + 4 * h, 4)}, {vr(IX + 4 * k + 2 * h, 2)}, s[36:39], 0 idxen offen")
    for k in range(RA):
        a(f"ds_read_u16_d16_hi v{EV + 2 * k}, v{VL} offset:{8 * k + 2}")
        a(f"ds_read_u16_d16_hi v{EV + 2 * k + 1}, v{VL} offset:{8 * k + 6}")
    A0, BA, BB_ = 8, 24, 32
    DP0, DU0 = 40, 108
    a(f"ds_read_b128 {vr(BA, 4)}, v{VXA}")
    a(f"ds_read_b128 {vr(BA + 4, 4)}, v{VXA} offset:64")
    a("s_waitcnt lgkmcnt(2)")
    for m in range(2):
        for ks in range(2):
            for hh in range(2):
                a(f"ds_read_b64_tr_b16 {vr(A0 + (m * 2 + ks) * 4 + hh * 2, 2)}, v{VWA} offset:{m * 8192 + ks * 4096 + hh * 512}")
    a(f"ds_read_b128 {vr(BB_, 4)}, v{VXA} offset:{16 * XROW}")
    a(f"ds_read_b128 {vr(BB_ + 4, 4)}, v{VXA} offset:{16 * XROW + 64}")
    a(f"s_mov_b32 s24, {LOG2E_NEG:#x}")
    a("s_waitcnt lgkmcnt(2)")
    a(f"v_mfma_f32_16x16x32_bf16 {vr(DP0, 4)}, {vr(A0, 4)}, {vr(BA, 4)}, 0")
    a(f"v_mfma_f32_16x16x32_bf16 {vr(DU0, 4)}, {vr(A0 + 8, 4)}, {vr(BA, 4)}, 0")
    a(f"v_mfma_f32_16x16x32_bf16 {vr(DP0, 4)}, {vr(A0 + 4, 4)}, {vr(BA + 4, 4)}, {vr(DP0, 4)}")
    a(f"v_mfma_f32_16x16x32_bf16 {vr(DU0, 4)}, {vr(A0 + 12, 4)}, {vr(BA + 4, 4)}, {vr(DU0, 4)}")
    a("s_waitcnt lgkmcnt(0)")
    a(f"v_mfma_f32_16x16x32_bf16 {vr(BA, 4)}, {vr(A0, 4)}, {vr(BB_, 4)}, 0")
    a(f"v_mfma_f32_16x16x32_bf16 {vr(BA + 4, 4)}, {vr(A0 + 8, 4)}, {vr(BB_, 4)}, 0")
    a(f"v_mfma_f32_16x16x32_bf16 {vr(BA, 4)}, {vr(A0 + 4, 4)}, {vr(BB_ + 4, 4)}, {vr(BA, 4)}")
    a(f"v_mfma_f32_16x16x32_bf16 {vr(BA + 4, 4)}, {vr(A0 + 12, 4)}, {vr(BB_ + 4, 4)}, {vr(BA + 4, 4)}")
    a(f"s_cmp_gt_u32 s{WAVE}, 11")
    a("s_cbranch_scc0 L2_pu_full")
    a("s_mov_b64 exec, s[34:35]")
    a.label("L2_pu_full")
    a("s_nop 1")
    for i in range(4):
        a(f"v_fma_f32 v{DP0 + i}, v{DP0 + i}, s24, v{VSH}")
    a(f"ds_write_b128 v{VPA}, {vr(DP0, 4)} offset:{PL}")
    a(f"ds_write_b128 v{VPA}, {vr(DU0, 4)} offset:{PART0}")
    a(f"s_cmp_gt_u32 s{WAVE}, 11")
    a("s_cbranch_scc1 L2_pu_done")
    for i in range(4):
        a(f"v_fma_f32 v{BA + i}, v{BA + i}, s24, v{VSH}")
    a(f"ds_write_b128 v{VPA}, {vr(BA, 4)} offset:{PL + 16 * ROW}")
    a(f"ds_write_b128 v{VPA}, {vr(BA + 4, 4)} offset:{PART0 + 16 * ROW}")
    a.label("L2_pu_done")
    a("s_mov_b64 exec, -1")
    a("s_waitcnt lgkmcnt(0)")
    a("s_barrier")
    a("s_cmp_lg_u32 s65, 0")
    a("s_cbranch_scc1 L2_slow")
    a(f"ds_read_b128 {vr(PR, 4)}, v{VRN} offset:{PL}")
    a(f"ds_read_b128 {vr(UR, 4)}, v{VRN} offset:{PART0}")
    for i in range(4):
        a(f"v_mov_b32 v{ACC + i}, 0")
    if "noprio" not in OPT:
        a("s_setprio 2")
    a("s_waitcnt lgkmcnt(0)")
    stamp(a, 9)

    def mfma1(k, h):
        d = DA + 8 * (k & 1)
        a(f"v_mfma_f32_16x16x32_f16 {vr(d + 4 * h, 4)}, {vr(ASEL, 4)}, {vr(VB + 8 * k + 4 * h, 4)}, {vr(PR, 4)}")

    def tail1(k):
        d = DA + 8 * (k & 1)
        vb = VB + 8 * k
        for h in range(2):
            a(f"v_pk_mul_f32 {vr(DN + 2 * h, 2)}, {vr(d + 2 * h, 2)}, {vr(d + 4 + 2 * h, 2)}")
        for h in range(2):
            a(f"v_pk_mul_f32 {vr(NM + 2 * h, 2)}, {vr(vb + 2 * h, 2)}, {vr(d + 4 + 2 * h, 2)}")
        for h in range(2):
            a(f"v_pk_fma_f32 {vr(NM + 2 * h, 2)}, {vr(vb + 4 + 2 * h, 2)}, {vr(d + 2 * h, 2)}, {vr(NM + 2 * h, 2)}")

    def rcp2(h):
        a(f"v_rcp_f32 v{DN + 2 * h}, v{DN + 2 * h}")
        a(f"v_rcp_f32 v{DN + 2 * h + 1}, v{DN + 2 * h + 1}")

    def tail2():
        a(f"v_pk_fma_f32 {vr(ACC, 2)}, {vr(NM, 2)}, {vr(DN, 2)}, {vr(ACC, 2)}")
        a(f"v_pk_fma_f32 {vr(ACC + 2, 2)}, {vr(NM + 2, 2)}, {vr(DN + 2, 2)}, {vr(ACC + 2, 2)}")

    def read_idx(k):
        a(f"ds_read_u16 v{IX + 4 * k}, v{VL} offset:{8 * (RA + k)}")
        a(f"ds_read_u16 v{IX + 4 * k + 2}, v{VL} offset:{8 * (RA + k) + 4}")

    def read_e(k):
        a(f"ds_read_u16_d16_hi v{EV + 2 * k}, v{VL} offset:{8 * (RA + k) + 2}")
        a(f"ds_read_u16_d16_hi v{EV + 2 * k + 1}, v{VL} offset:{8 * (RA + k) + 6}")

    def gather(k):
        p = (k - 1) % NP
        if "nogather" not in OPT:
            for h in range(2):
                a(f"buffer_load_dwordx4 {vr(VB + 8 * p + 4 * h, 4)}, {vr(IX + 4 * p + 2 * h, 2)}, s[36:39], 0 idxen offen")

    def front(k):
        d = DA + 8 * (k & 1)
        ep = EV + 2 * k
        for h in range(2):
            osel = "op_sel:[1,0,0] op_sel_hi:[1,1,1]" if h else "op_sel_hi:[0,1,1]"
            a(f"v_pk_fma_f32 {vr(d + 4 * h, 2)}, {vr(ep, 2)}, {vr(CV, 2)}, {vr(d + 4 * h, 2)} {osel}")
            a(f"v_pk_fma_f32 {vr(d + 4 * h + 2, 2)}, {vr(ep, 2)}, {vr(CV + 2, 2)}, {vr(d + 4 * h + 2, 2)} {osel}")
        read_e(k)
        for i in range(8):
            a(f"v_exp_f32_e64 v{d + i}, v{d + i} clamp")
            if i == 5:
                a(f"v_pk_add_f32 {vr(d, 2)}, {vr(d, 2)}, s[66:67]")
        a(f"v_pk_add_f32 {vr(d + 2, 2)}, {vr(d + 2, 2)}, s[66:67]")
        a(f"v_pk_add_f32 {vr(d + 4, 2)}, {vr(d + 4, 2)}, s[66:67]")
        a(f"v_pk_add_f32 {vr(d + 6, 2)}, {vr(d + 6, 2)}, s[66:67]")

    def flush(k):
        a(f"s_cmp_lg_u32 s{SP}, 0")
        a(f"s_cbranch_scc1 L2_fin{k}")
        a(f"v_pk_fma_f32 {vr(UR, 2)}, {vr(ACC, 2)}, s[66:67], {vr(UR, 2)}")
        a(f"v_pk_fma_f32 {vr(UR + 2, 2)}, {vr(ACC + 2, 2)}, s[66:67], {vr(UR + 2, 2)}")
        a(f"ds_write_b128 v{VFL}, {vr(UR, 4)} offset:{PART0}")
        a(f"ds_add_u32 v{VQ}, v{VONE} offset:4")
        a(f"s_branch L2_fld{k}")
        a.label(f"L2_fin{k}")
        a(f"s_cmp_lg_u32 s{SDONE}, 0")
        a(f"s_cbranch_scc1 L2_rdy{k}")
        a("s_mov_b32 s25, 0")
        a.label(f"L2_spin{k}")
        a(f"v_mov_b32 v{T2}, 0")
        a(f"ds_read_b32 v{T2}, v{T2} offset:{MISC + 12}")
        a("s_waitcnt lgkmcnt(0)")
        a(f"v_readfirstlane_b32 s24, v{T2}")
        a("s_nop 3")
        a(f"s_cmp_ge_u32 s24, {NWIN // 2}")
        a(f"s_cbranch_scc1 L2_seen{k}")
        a("s_sleep 2")
        a("s_add_u32 s25, s25, 1")
        a("s_cmp_lt_u32 s25, 0x400000")
        a(f"s_cbranch_scc1 L2_spin{k}")
        a.label(f"L2_seen{k}")
        a(f"s_mov_b32 s{SDONE}, 1")
        a.label(f"L2_rdy{k}")
        a(f"ds_read_b128 {vr(UR, 4)}, v{VFL} offset:{PART0}")
        a("s_waitcnt lgkmcnt(0)")
        a(f"v_pk_fma_f32 {vr(UR, 2)}, {vr(ACC, 2)}, s[66:67], {vr(UR, 2)}")
        a(f"v_pk_fma_f32 {vr(UR + 2, 2)}, {vr(ACC + 2, 2)}, s[66:67], {vr(UR + 2, 2)}")
        a(f"v_pk_mul_f32 {vr(DN, 2)}, {vr(UR, 2)}, s[28:29]")
        a(f"v_pk_mul_f32 {vr(DN + 2, 2)}, {vr(UR + 2, 2)}, s[28:29]")
        for i in range(4):
            a(f"v_exp_f32 v{DN + i}, v{DN + i}")
        a(f"v_pk_add_f32 {vr(DN, 2)}, {vr(DN, 2)}, s[30:31]")
        a(f"v_pk_add_f32 {vr(DN + 2, 2)}, {vr(DN + 2, 2)}, s[30:31]")
        for i in range(4):
            a(f"v_rcp_f32 v{DN + i}, v{DN + i}")
        a(f"v_pk_mul_f32 {vr(UR, 2)}, {vr(UR, 2)}, {vr(DN, 2)}")
        a(f"v_pk_mul_f32 {vr(UR + 2, 2)}, {vr(UR + 2, 2)}, {vr(DN + 2, 2)}")
        a(f"v_cvt_pk_bf16_f32 v{NM}, v{UR}, v{UR + 1}")
        a(f"v_cvt_pk_bf16_f32 v{NM + 1}, v{UR + 2}, v{UR + 3}")
        a(f"global_store_dwordx2 v{VOC}, {vr(NM, 2)}, {sr(OUT)}{STO}")
        a.label(f"L2_fld{k}")

    VW = 2 * (RA - 2)
    a(f"s_cmp_eq_u32 s{SC}, s{STR}")
    a("s_cbranch_scc1 L2_pop_first")
    a.label("L2_first_cont")
    if "nogather" not in OPT:
        a(f"s_waitcnt vmcnt({VW})")
    mfma1(0, 0)
    mfma1(0, 1)
    read_idx(0)
    a("s_nop 2")
    gather(0)
    a("s_branch L2_mid0")

    a.label("L2_loop")
    for k in range(NP):
        pk = (k - 1) % NP
        a(f"s_cmp_eq_u32 s{SC}, s{STR}")
        a(f"s_cbranch_scc1 L2_ev{k}")
        a.label(f"L2_cont{k}")
        tail1(pk)
        if "nogather" not in OPT:
            a(f"s_waitcnt vmcnt({VW})")
        mfma1(k, 0)
        rcp2(0)
        mfma1(k, 1)
        rcp2(1)
        read_idx(k)
        tail2()
        a("s_waitcnt lgkmcnt(4)")
        gather(k)
        a.label(f"L2_mid{k}")
        front(k)
        a(f"s_sub_u32 s{SC}, s{SC}, 1")
        if k == NP - 1:
            a(f"v_add_u32 v{VL}, {8 * NP}, v{VL}")
            a("s_branch L2_loop")

    def pop(k, cont):
        a(f"ds_add_rtn_u32 v{T2}, v{VQ}, v{VONE}")
        a(f"s_mov_b32 s{STR}, 0")
        a("s_waitcnt lgkmcnt(0)")
        a(f"v_readfirstlane_b32 s{SI}, v{T2}")
        a(f"s_mov_b32 s{SNL}, 0")
        a(f"v_mov_b32 v{VL}, {LIST + DUMMY_COL - 8 * (RA + k)}")
        a("s_nop 1")
        a(f"s_cmp_lt_u32 s{SI}, {NWIN}")
        a(f"s_cbranch_scc0 {cont}")
        a(f"s_lshl_b32 s26, s{SI}, 4")
        a(f"v_add_u32 v{T2}, s26, v{VG4}")
        a(f"ds_read_b32 v{T3}, v{T2} offset:{WKEY}")
        a(f"v_readlane_b32 s{SNL}, v{VWL}, s{SI}")
        a("s_waitcnt lgkmcnt(0)")
        a(f"v_and_b32 v{VRN}, 0xffff, v{T3}")
        a(f"v_lshrrev_b32 v{VL}, 16, v{T3}")
        a(f"v_lshl_add_u32 v{VON}, v{VRN}, 7, v{VZ}")
        a(f"v_mad_u32_u24 v{VRN}, v{VRN}, s68, v{VJ}")
        a(f"v_add_u32 v{VL}, {LIST - 8 * (RA + k)}, v{VL}")
        a(f"s_branch {cont}")

    a.label("L2_pop_first")
    pop(0, "L2_first_cont")
    for k in range(NP):
        pk = (k - 1) % NP
        a.label(f"L2_ev{k}")
        a(f"s_cmp_eq_u32 s{STR}, 0")
        a(f"s_cbranch_scc1 L2_sw{k}")
        pop(k, f"L2_cont{k}")
        a.label(f"L2_sw{k}")
        tail1(pk)
        rcp2(0)
        rcp2(1)
        a("s_nop 0")
        tail2()
        flush(k)
        a(f"s_cmp_eq_u32 s{SNL}, 0")
        a("s_cbranch_scc1 L2_exit")
        a(f"ds_read_b128 {vr(PR, 4)}, v{VRN} offset:{PL}")
        a(f"ds_read_b128 {vr(UR, 4)}, v{VRN} offset:{PART0}")
        for i in range(4):
            a(f"v_mov_b32 v{ACC + i}, 0")
        a(f"v_mov_b32 v{VFL}, v{VRN}")
        a(f"v_mov_b32 v{VOC}, v{VON}")
        a(f"s_cmp_ge_u32 s{SI}, {NWIN // 2}")
        a(f"s_cselect_b32 s{SP}, 1, 0")
        a(f"s_mov_b32 s{SC}, s{SNL}")
        a(f"s_mov_b32 s{STR}, {RA}")
        if "noprio" not in OPT:
            a(f"s_cmp_lt_u32 s{SI}, {PRIO_B}")
            a(f"s_cbranch_scc1 L2_p1_{k}")
            a("s_setprio 0")
            a(f"s_branch L2_pd_{k}")
            a.label(f"L2_p1_{k}")
            a(f"s_cmp_lt_u32 s{SI}, {PRIO_A}")
            a(f"s_cbranch_scc1 L2_pd_{k}")
            a("s_setprio 1")
            a.label(f"L2_pd_{k}")
        a(f"s_cmp_eq_u32 s{SC}, {RA}")
        a(f"s_cbranch_scc0 L2_sw2_{k}")
        pop(k, f"L2_sw2_{k}")
        a.label(f"L2_sw2_{k}")
        if "nogather" not in OPT:
            a(f"s_waitcnt vmcnt({VW}) lgkmcnt(0)")
        else:
            a("s_waitcnt lgkmcnt(0)")
        mfma1(k, 0)
        mfma1(k, 1)
        read_idx(k)
        a("s_nop 2")
        gather(k)
        a(f"s_branch L2_mid{k}")

    a.label("L2_exit")
    stamp(a, 10)
    stamp(a, 11)
    stamp(a, 12)
    if STAMPS:
        a("s_waitcnt vmcnt(0)")
    stamp(a, 13)
    stamp(a, 21, True)
    stamp_flush(a, 1)
    a("s_endpgm")

    a.label("L2_slow")
    SSC, SCN, SRI = 61, 62, 63
    a(f"v_lshlrev_b32 v{T0}, 2, v{LANE}")
    a(f"v_lshlrev_b32 v{T1}, 1, v{LANE}")
    a(f"v_add_u32 v{T1}, {128 * 128}, v{T1}")
    a(f"global_load_ushort v{T2}, v{T1}, {sr(GW)}")
    a(f"s_mov_b32 s24, {LOG2E_NEG:#x}")
    a("s_waitcnt vmcnt(0) lgkmcnt(0)")
    a(f"v_lshlrev_b32 v{T2}, 16, v{T2}")
    a(f"v_mul_f32 v8, s24, v{T2}")
    a(f"s_mov_b32 s{SSC}, 0")
    a.label("L2_slow_seg")
    a(f"s_cmp_ge_u32 s{SSC}, {NC}")
    a("s_cbranch_scc1 L2_done")
    a(f"s_lshl_b32 s24, s{SSC}, 8")
    a("s_add_u32 s24, s24, s2")
    a("s_lshl_b32 s24, s24, 2")
    a(f"s_add_u32 s24, s24, {SEG_OFF}")
    a(f"v_mov_b32 v{T1}, s24")
    a(f"global_load_dword v{T2}, v{T1}, {sr(WS)}")
    a("s_waitcnt vmcnt(0)")
    a(f"v_readfirstlane_b32 s25, v{T2}")
    a("s_nop 3")
    a(f"s_lshr_b32 s{SCN}, s25, 16")
    a("s_and_b32 s25, s25, 0xffff")
    a(f"s_mul_i32 s26, s{SSC}, {EPC}")
    a("s_add_u32 s26, s26, s25")
    a("s_lshl_b32 s26, s26, 3")
    a(f"s_add_u32 s{SRI}, s26, {REC_OFF}")
    a.label("L2_slow_rec")
    a(f"s_cmp_eq_u32 s{SCN}, 0")
    a("s_cbranch_scc1 L2_slow_next")
    a(f"v_mov_b32 v{T1}, s{SRI}")
    a(f"global_load_dwordx2 v[10:11], v{T1}, {sr(WS)}")
    a(f"s_add_u32 s{SRI}, s{SRI}, 8")
    a(f"s_sub_u32 s{SCN}, s{SCN}, 1")
    a("s_waitcnt vmcnt(0)")
    a("v_and_b32 v14, 127, v11")
    a("v_and_b32 v15, 15, v14")
    a("s_nop 0")
    a("v_readfirstlane_b32 s25, v15")
    a("s_nop 3")
    a(f"s_cmp_lg_u32 s25, s{WAVE}")
    a("s_cbranch_scc1 L2_slow_rec")
    a("v_and_b32 v18, 0xffff, v10")
    a(f"v_mov_b32 v19, v{T0}")
    a("buffer_load_dword v13, v[18:19], s[36:39], 0 idxen offen")
    a(f"v_mul_u32_u24 v14, {ROW}, v14")
    a(f"v_add_u32 v14, v14, v{T0}")
    a(f"ds_read_b32 v15, v14 offset:{PL}")
    a(f"ds_read_b32 v17, v14 offset:{PART0}")
    a("v_and_b32 v11, 0xffff0000, v10")
    a("s_waitcnt vmcnt(0) lgkmcnt(0)")
    a("v_cvt_f32_f16 v16, v13")
    a("v_add_f32 v16, v16, v15")
    a("v_fmac_f32 v16, v11, v8")
    a("v_exp_f32 v16, v16")
    a(f"s_mov_b32 s25, {TINY:#x}")
    a("v_add_f32 v16, s25, v16")
    a("v_rcp_f32 v16, v16")
    a("s_nop 0")
    a("v_mul_f32 v16, s25, v16")
    a("v_fmac_f32 v17, v16, v13")
    a(f"ds_write_b32 v14, v17 offset:{PART0}")
    a("s_waitcnt lgkmcnt(0)")
    a("s_branch L2_slow_rec")
    a.label("L2_slow_next")
    a(f"s_add_u32 s{SSC}, s{SSC}, 1")
    a("s_branch L2_slow_seg")

    a.label("L2_done")
    stamp(a, 10)
    a("s_setprio 0")
    a(f"v_lshrrev_b32 v{T0}, 4, v{TID}")
    a(f"v_and_b32 v{T1}, 15, v{TID}")
    a(f"v_mul_u32_u24 v{T2}, {ROW}, v{T0}")
    a(f"v_lshl_add_u32 v{T2}, v{T1}, 4, v{T2}")
    a(f"s_mul_i32 s24, s2, {NPB * 128}")
    a(f"v_lshlrev_b32 v{T3}, 7, v{T0}")
    a(f"v_lshl_add_u32 v{T3}, v{T1}, 3, v{T3}")
    a(f"v_add_u32 v{T3}, s24, v{T3}")
    a(f"v_add_u32 v7, {64 * ROW}, v{T2}")
    a(f"v_add_u32 v6, {64 * 128}, v{T3}")
    a(f"s_mov_b32 s24, {LOG2E_NEG:#x}")
    a(f"s_mov_b32 s25, {LOG2E_NEG:#x}")
    a("s_mov_b32 s26, 1.0")
    a("s_mov_b32 s27, 1.0")
    a("s_waitcnt vmcnt(0) lgkmcnt(0)")
    a("s_barrier")
    stamp(a, 11)

    def silu_store(src, off):
        a(f"v_pk_mul_f32 {vr(src + 4, 2)}, {vr(src, 2)}, s[24:25]")
        a(f"v_pk_mul_f32 {vr(src + 6, 2)}, {vr(src + 2, 2)}, s[24:25]")
        for i in range(4):
            a(f"v_exp_f32 v{src + 4 + i}, v{src + 4 + i}")
        a(f"v_pk_add_f32 {vr(src + 4, 2)}, {vr(src + 4, 2)}, s[26:27]")
        a(f"v_pk_add_f32 {vr(src + 6, 2)}, {vr(src + 6, 2)}, s[26:27]")
        for i in range(4):
            a(f"v_rcp_f32 v{src + 4 + i}, v{src + 4 + i}")
        a(f"v_pk_mul_f32 {vr(src, 2)}, {vr(src, 2)}, {vr(src + 4, 2)}")
        a(f"v_pk_mul_f32 {vr(src + 2, 2)}, {vr(src + 2, 2)}, {vr(src + 6, 2)}")
        a(f"v_cvt_pk_bf16_f32 v{src + 4}, v{src}, v{src + 1}")
        a(f"v_cvt_pk_bf16_f32 v{src + 5}, v{src + 2}, v{src + 3}")
        a(f"global_store_dwordx2 v{off}, {vr(src + 4, 2)}, {sr(OUT)}{STO}")

    a(f"ds_read_b128 v[8:11], v{T2} offset:{PART0}")
    a(f"s_cmp_lt_u32 s{WAVE}, 9")
    a("s_cbranch_scc0 L2_ep1")
    a(f"ds_read_b128 v[16:19], v7 offset:{PART0}")
    a("s_waitcnt lgkmcnt(0)")
    silu_store(16, 6)
    a.label("L2_ep1")
    a("s_waitcnt lgkmcnt(0)")
    silu_store(8, T3)
    if "dbgt" in OPT:
        a("s_waitcnt vmcnt(0)")
    dbg_time(a, 1, 3)
    stamp(a, 12)
    if STAMPS:
        a("s_waitcnt vmcnt(0)")
    stamp(a, 13)
    stamp(a, 21, True)
    stamp_flush(a, 1)
    a.label("L2_end")
    a("s_endpgm")
    return LDS, 128


def descriptor(a, name, vgprs, sgprs=80):
    a(f".amdhsa_kernel {name}")
    a(f"  .amdhsa_next_free_vgpr {vgprs}")
    a(f"  .amdhsa_next_free_sgpr {sgprs}")
    a(f"  .amdhsa_accum_offset {vgprs}")
    a("  .amdhsa_group_segment_fixed_size 0")
    a("  .amdhsa_kernarg_size 80")
    a("  .amdhsa_user_sgpr_count 2")
    a("  .amdhsa_user_sgpr_kernarg_segment_ptr 1")
    a("  .amdhsa_system_sgpr_workgroup_id_x 1")
    a("  .amdhsa_float_denorm_mode_32 3")
    a(".end_amdhsa_kernel")


def main():
    global STAMPS, ST, STT, STR_, STO
    if "--stamps" in sys.argv:
        STAMPS = True
        sys.argv.remove("--stamps")
    for o in OPT:
        if o.startswith("st="):
            ST = STT = STR_ = " " + o[3:].replace("+", " ")
        if o.startswith("stt="):
            STT = " " + o[4:].replace("+", " ")
        if o.startswith("sto="):
            STO = " " + o[4:].replace("+", " ")
        if o.startswith("str="):
            STR_ = " " + o[4:].replace("+", " ")
    body = Asm()
    body(".amdgcn_target \"amdgcn-amd-amdhsa--gfx950\"")
    body(".text")
    lds1, v1 = gen_k1(body)
    lds2, v2 = gen_k2(body)
    body(".section .rodata,\"a\"")
    body(".p2align 6")
    descriptor(body, K1, 128 if (STAMPS or 'dbgt' in OPT) else v1)
    body(".p2align 6")
    descriptor(body, K2, v2)
    head = [
        "; Edge-gated MPNN layer in two launches (generated by a hand-written generator script).",
        "; launch 1: partitions the edges by destination bucket and builds the per-node source table",
        "; launch 2: per bucket of 100 nodes: sorts its edges, gated aggregation, SiLU epilogue",
        f"; @launch kernel={K1} grid=({NC},1,1) block=(1024,1,1) lds={lds1}",
        f"; @launch kernel={K2} grid=({NB},1,1) block=(1024,1,1) lds={lds2}",
    ]
    out = "\n".join(head) + "\n" + body.text()
    path = sys.argv[1] if len(sys.argv) > 1 else "standalone__edge_featured_mpnn_egc__graph.s"
    open(path, "w").write(out)
    print("wrote", path, "lds", lds1, lds2)


if __name__ == "__main__":
    main()
```

```python
import os
import sys

N = 25000
E = 800000
NB = 250
NPB = 100
NC = 250
EPC = 3200
HALF = 12500

T_OFF = 0
REC_OFF = int(os.environ.get('REC_OFF', '0x700000'), 0)
SEG_OFF = REC_OFF + 0x700000

LOG2E_NEG = 0xBFB8AA3B
SHIFT_NEG = 0xC2700000
TINY = 0x21800000
ROW = 272
XROW = 144

K1 = "egc_part_kernel"
K2 = "standalone__edge_featured_mpnn_egc__graph_kernel"

OPT = set(os.environ.get("OPT", "").split(","))
TOUCH0 = int(os.environ.get('TOUCH0', '12'))
PRIO_A = int(os.environ.get('PRIO_A', '25'))
PRIO_B = int(os.environ.get('PRIO_B', '38'))
STAMPS = False
STAMP_OFF = 0x2000000
SV = 127

X, EA, SRC, DST, UW, VW, GW, OUT, WS = 4, 6, 8, 10, 12, 14, 16, 18, 20
WAVE = 22


def stamp(a, i, real=False):
    if not STAMPS:
        return
    a(f"s_mem{'real' if real else ''}time s[70:71]")
    a("s_waitcnt lgkmcnt(0)")
    a(f"v_writelane_b32 v{SV}, s70, {i}")


TIME_OFF = 0x2800000


def dbg_time(a, which, slot, neg=False, tag=""):
    if "dbgt" not in OPT:
        return
    a("v_readfirstlane_b32 s78, v0")
    a("s_nop 3")
    a("s_cmp_lg_u32 s78, 0")
    a(f"s_cbranch_scc1 L_dbg_{which}_{slot}")
    a("s_memrealtime s[70:71]")
    a(f"s_load_dwordx2 s[74:75], s[0:1], {72 if which == 0 else 64}")
    a("s_waitcnt lgkmcnt(0)")
    if neg:
        a("s_not_b32 s70, s70")
    a("v_mov_b32 v125, s70")
    a("s_mov_b64 s[76:77], exec")
    a("s_mov_b64 exec, 1")
    if which == 0:
        a("s_lshl_b32 s78, s2, 3")
        a(f"s_add_u32 s78, s78, {TIME_OFF + slot * 4}")
        a("v_mov_b32 v126, s78")
        a("global_store_dword v126, v125, s[74:75]")
    else:
        a(f"v_mov_b32 v126, {slot * 4}")
        a("global_atomic_umax v126, v125, s[74:75]")
    a("s_mov_b64 exec, s[76:77]")
    if which == 1 and slot == 2:
        a("s_cmp_lg_u32 s2, 0")
        a(f"s_cbranch_scc1 L_dbg_{which}_{slot}")
        a("s_load_dwordx2 s[76:77], s[0:1], 72")
        a("s_waitcnt lgkmcnt(0)")
        for r in range(4):
            a(f"v_add_u32 v124, {64 * r}, v0")
            a("v_min_u32 v124, 249, v124")
            a("v_lshlrev_b32 v124, 3, v124")
            a(f"v_add_u32 v124, {TIME_OFF}, v124")
            a("global_load_dwordx2 v[122:123], v124, s[76:77]")
            a("s_waitcnt vmcnt(0)")
            a("v_mov_b32 v126, 16")
            a("global_atomic_umax v126, v122, s[74:75]")
            a("v_mov_b32 v126, 20")
            a("global_atomic_umax v126, v123, s[74:75]")
        a("s_waitcnt vmcnt(0)")
    a.label(f"L_dbg_{which}_{slot}")


def stamp_flush(a, which):
    if not STAMPS:
        return
    a("s_lshl_b32 s72, s2, 4")
    a(f"s_add_u32 s72, s72, s{WAVE}")
    a("s_lshl_b32 s72, s72, 8")
    a(f"s_add_u32 s72, s72, {STAMP_OFF + which * 0x200000}")
    a("v_and_b32 v126, 63, v0")
    a("v_lshlrev_b32 v126, 2, v126")
    a("v_add_u32 v126, s72, v126")
    a(f"global_store_dword v126, v{SV}, s[20:21]")


class Asm:
    def __init__(self):
        self.lines = []

    def __call__(self, s=""):
        for ln in s.split("\n"):
            self.lines.append(ln if ln.strip().endswith(":") else "    " + ln.strip())

    def label(self, s):
        self.lines.append(s + ":")

    def text(self):
        return "\n".join(self.lines) + "\n"


def vr(a, n):
    return f"v[{a}:{a + n - 1}]"


def sr(a, n=2):
    return f"s[{a}:{a + n - 1}]"


def wave_scan(a, v):
    for sh in (1, 2, 4, 8):
        a("s_nop 1")
        a(f"v_add_u32_dpp v{v}, v{v}, v{v} row_shr:{sh} row_mask:0xf bank_mask:0xf bound_ctrl:0")
    a("s_nop 1")
    a(f"v_add_u32_dpp v{v}, v{v}, v{v} row_bcast:15 row_mask:0xa bank_mask:0xf")
    a("s_nop 1")
    a(f"v_add_u32_dpp v{v}, v{v}, v{v} row_bcast:31 row_mask:0xc bank_mask:0xf")
    a("s_nop 1")


WSBASE = int(os.environ.get("WSBASE", "0"), 0)


def remap_wg(a, which):
    if f"noremap{which}" in OPT:
        return
    a("s_and_b32 s24, s2, 7")
    a("s_lshr_b32 s2, s2, 3")
    a("s_mov_b32 s23, s2")
    a("s_mul_i32 s25, s24, 31")
    a("s_min_u32 s24, s24, 2")
    a("s_add_u32 s2, s2, s25")
    a("s_add_u32 s2, s2, s24")


def warm_l2(a, lane, t0, t1, dst):
    for n in range(2):
        a(f"s_lshl_b32 s24, s{WAVE}, 7")
        a(f"s_add_u32 s24, s24, {n * 64}")
        a(f"v_add_u32 v{t0}, s24, v{lane}")
        a(f"v_min_u32 v{t0}, 1599, v{t0}")
        a(f"v_lshrrev_b32 v{t1}, 2, v{t0}")
        a("s_mul_i32 s24, s23, 400")
        a(f"v_add_u32 v{t1}, s24, v{t1}")
        a(f"v_min_u32 v{t1}, 12711, v{t1}")
        a(f"v_and_b32 v{t0}, 3, v{t0}")
        a(f"v_lshlrev_b32 v{t0}, 6, v{t0}")
        a(f"v_and_b32 v125, 0xfffff000, v{t1}")
        a(f"v_add_u32 v{t1}, v{t1}, v125")
        a(f"v_lshl_add_u32 v{t0}, v{t1}, 8, v{t0}")
        a(f"global_load_dword v{dst}, v{t0}, {sr(WS)}")


def load_ptrs(a):
    a("s_load_dwordx16 s[4:19], s[0:1], 0")
    a("s_load_dwordx2 s[20:21], s[0:1], 72")


def fix_ws(a):
    if WSBASE:
        a(f"s_add_u32 s20, s20, {WSBASE}")
        a("s_addc_u32 s21, s21, 0")


ST = ""
STT = ""
STR_ = ""
STO = ""


class Node:
    def __init__(self, a, WST, XST, tid, lane, vw, vx, t):
        self.a, self.WST, self.XST = a, WST, XST
        self.tid, self.lane, self.vw, self.vx, self.t = tid, lane, vw, vx, t

    def issue_loads(self, p0, off0, p1):
        a, t = self.a, self.t
        a(f"s_cmp_lt_u32 s{WAVE}, 8")
        a(f"s_cselect_b32 s24, s{p0}, s{p1}")
        a(f"s_cselect_b32 s25, s{p0 + 1}, s{p1 + 1}")
        if off0:
            a(f"s_cselect_b32 s26, {off0}, 0")
            a("s_add_u32 s24, s24, s26")
            a("s_addc_u32 s25, s25, 0")
        a(f"v_and_b32 v{t}, 511, v{self.tid}")
        a(f"v_lshlrev_b32 v{t}, 4, v{t}")
        a(f"global_load_dwordx4 {vr(self.vw, 4)}, v{t}, s[24:25]")
        a(f"v_min_u32 v{t}, {NPB * 8 - 1}, v{self.tid}")
        a(f"v_lshlrev_b32 v{t}, 4, v{t}")
        a(f"s_mul_i32 s26, s2, {NPB * 128}")
        a(f"v_add_u32 v{t}, s26, v{t}")
        a(f"global_load_dwordx4 {vr(self.vx, 4)}, v{t}, {sr(X)}")

    def stage(self):
        a, t, tid = self.a, self.t, self.tid
        a(f"v_bfe_u32 v{t}, v{tid}, 4, 1")
        a(f"v_bfe_u32 v{t + 1}, v{tid}, 6, 1")
        a(f"v_lshl_or_b32 v{t}, v{t + 1}, 1, v{t}")
        a(f"v_lshlrev_b32 v{t}, 5, v{t}")
        a(f"v_lshlrev_b32 v{t + 1}, 4, v{tid}")
        a(f"v_xor_b32 v{t}, v{t}, v{t + 1}")
        a(f"v_add_u32 v{t}, {self.WST}, v{t}")
        a(f"ds_write_b128 v{t}, {vr(self.vw, 4)}")
        a(f"v_lshrrev_b32 v{t}, 3, v{tid}")
        a(f"v_mul_u32_u24 v{t}, {XROW}, v{t}")
        a(f"v_and_b32 v{t + 1}, 7, v{tid}")
        a(f"v_lshl_add_u32 v{t}, v{t + 1}, 4, v{t}")
        a(f"v_add_u32 v{t}, {self.XST}, v{t}")
        a(f"v_cmp_gt_u32 vcc, {NPB * 8}, v{tid}")
        a("s_and_saveexec_b64 s[32:33], vcc")
        a(f"ds_write_b128 v{t}, {vr(self.vx, 4)}")
        a("s_mov_b64 exec, s[32:33]")

    def stage_addr(self, vw_a, vx_a, t):
        a, tid = self.a, self.tid
        a(f"v_bfe_u32 v{vw_a}, v{tid}, 4, 1")
        a(f"v_bfe_u32 v{t}, v{tid}, 6, 1")
        a(f"v_lshl_or_b32 v{vw_a}, v{t}, 1, v{vw_a}")
        a(f"v_lshlrev_b32 v{vw_a}, 5, v{vw_a}")
        a(f"v_lshlrev_b32 v{t}, 4, v{tid}")
        a(f"v_xor_b32 v{vw_a}, v{vw_a}, v{t}")
        a(f"v_add_u32 v{vw_a}, {self.WST}, v{vw_a}")
        a(f"v_lshrrev_b32 v{vx_a}, 3, v{tid}")
        a(f"v_mul_u32_u24 v{vx_a}, {XROW}, v{vx_a}")
        a(f"v_and_b32 v{t}, 7, v{tid}")
        a(f"v_lshl_add_u32 v{vx_a}, v{t}, 4, v{vx_a}")
        a(f"v_add_u32 v{vx_a}, {self.XST}, v{vx_a}")

    def stage_write(self, vw_a, vx_a):
        a, tid = self.a, self.tid
        a(f"ds_write_b128 v{vw_a}, {vr(self.vw, 4)}")
        a(f"v_cmp_gt_u32 vcc, {NPB * 8}, v{tid}")
        a("s_and_saveexec_b64 s[32:33], vcc")
        a(f"ds_write_b128 v{vx_a}, {vr(self.vx, 4)}")
        a("s_mov_b64 exec, s[32:33]")

    def pair_reads(self, aop, xop, vloc):
        a, t, lane = self.a, self.t, self.lane
        a(f"s_and_b32 s27, s{WAVE}, 1")
        a("s_lshl_b32 s27, s27, 1")
        a(f"s_lshr_b32 s26, s{WAVE}, 1")
        a(f"v_and_b32 v{t}, 15, v{lane}")
        a(f"v_lshrrev_b32 v{t + 1}, 4, v{lane}")
        a("s_lshl_b32 s26, s26, 4")
        a(f"v_add_u32 v{vloc}, s26, v{t}")
        a(f"v_mul_u32_u24 v{t + 2}, {XROW}, v{vloc}")
        a(f"v_lshl_add_u32 v{t + 2}, v{t + 1}, 4, v{t + 2}")
        a(f"v_add_u32 v{t + 2}, {self.XST}, v{t + 2}")
        a(f"ds_read_b128 {vr(xop, 4)}, v{t + 2}")
        a(f"ds_read_b128 {vr(xop + 4, 4)}, v{t + 2} offset:64")
        a(f"v_lshrrev_b32 v{t + 2}, 3, v{t}")
        a(f"v_and_b32 v{xop + 8}, 1, v{t + 1}")
        a(f"v_lshl_or_b32 v{t + 2}, v{xop + 8}, 1, v{t + 2}")
        a(f"v_xor_b32 v{t + 2}, s27, v{t + 2}")
        a(f"v_lshlrev_b32 v{t + 2}, 5, v{t + 2}")
        a(f"v_lshrrev_b32 v{xop + 8}, 2, v{t}")
        a(f"v_lshl_add_u32 v{xop + 8}, v{t + 1}, 3, v{xop + 8}")
        a(f"v_lshl_add_u32 v{t + 2}, v{xop + 8}, 7, v{t + 2}")
        a(f"v_and_b32 v{xop + 8}, 3, v{t}")
        a(f"v_lshl_add_u32 v{t + 2}, v{xop + 8}, 3, v{t + 2}")
        a(f"v_add_u32 v{t + 2}, {self.WST}, v{t + 2}")
        assert self.WST % 128 == 0
        for c in range(2):
            if c:
                a("s_waitcnt lgkmcnt(6)")
                a(f"v_xor_b32 v{t + 2}, 32, v{t + 2}")
            for m in range(2):
                for ks in range(2):
                    for hh in range(2):
                        r = aop + c * 16 + (m * 2 + ks) * 4 + hh * 2
                        a(f"ds_read_b64_tr_b16 {vr(r, 2)}, v{t + 2} offset:{m * 8192 + ks * 4096 + hh * 512}")

    def pair_mfma(self, aop, xop, dd):
        a = self.a
        for ks in range(2):
            for c in range(2):
                for m in range(2):
                    d = dd + (c * 2 + m) * 4
                    cop = "0" if ks == 0 else vr(d, 4)
                    a(f"v_mfma_f32_16x16x32_bf16 {vr(d, 4)}, {vr(aop + c * 16 + (m * 2 + ks) * 4, 4)}, {vr(xop + 4 * ks, 4)}, {cop}")


def copy_out(a, lds_addr_fn, goff_sgpr, t0, t1, d0, d1, tag):
    ST = STT if tag == "t" else STR_
    lds_addr_fn(0, t1)
    a(f"ds_read_b128 {vr(d0, 4)}, v{t1}")
    a(f"v_lshlrev_b32 v{t0}, 4, v0")
    a(f"v_add_u32 v{t0}, s{goff_sgpr}, v{t0}")
    a(f"s_cmp_gt_u32 s{WAVE}, 8")
    a(f"s_cbranch_scc1 L1_one{tag}")
    a(f"v_add_u32 v{t1}, 1024, v0")
    lds_addr_fn(t1, t1)
    a(f"ds_read_b128 {vr(d1, 4)}, v{t1}")
    a(f"v_add_u32 v{t1}, 16384, v{t0}")
    a("s_waitcnt lgkmcnt(0)")
    a(f"global_store_dwordx4 v{t1}, {vr(d1, 4)}, {sr(WS)}{ST}")
    a.label(f"L1_one{tag}")
    a("s_waitcnt lgkmcnt(0)")
    a(f"global_store_dwordx4 v{t0}, {vr(d0, 4)}, {sr(WS)}{ST}")


def gen_k1(a):
    HIST, BASE = 0, 1024
    WST = 2048
    XST = WST + 16384
    TST = XST + 112 * XROW
    STG = TST + NPB * ROW
    LDS = STG + EPC * 8
    TID, LANE = 0, 1
    T0, T1, T2, T3 = 2, 3, 14, 15
    VD, VS, VE = 4, 8, 12
    VW_, VX_ = 16, 20
    XOP = 24
    AOP = 36
    DD = 68
    PK = 84
    VLOC = 87
    VB, VR = 88, 92
    RP = 104
    NT = 100
    nd = Node(a, WST, XST, TID, LANE, VW_, VX_, NT)

    a(f".globl {K1}")
    a(".p2align 8")
    a(f".type {K1},@function")
    a.label(K1)
    a(f"s_cmp_ge_u32 s2, {NC}")
    a("s_cbranch_scc1 L1_end")
    dbg_time(a, 0, 0, True)
    stamp(a, 0)
    stamp(a, 20, True)
    load_ptrs(a)
    remap_wg(a, 1)
    a(f"v_and_b32 v{LANE}, 63, v{TID}")
    a(f"v_lshrrev_b32 v{T0}, 6, v{TID}")
    a(f"v_lshlrev_b32 v{T1}, 2, v{TID}")
    a(f"v_readfirstlane_b32 s{WAVE}, v{T0}")
    a(f"v_mov_b32 v{T0}, 0")
    a(f"s_cmp_lt_u32 s{WAVE}, 4")
    a("s_cbranch_scc0 L1_nozero")
    a(f"ds_write_b32 v{T1}, v{T0} offset:{HIST}")
    a.label("L1_nozero")
    a("s_waitcnt lgkmcnt(0)")
    fix_ws(a)
    stamp(a, 1)
    nd.issue_loads(GW, 8192, VW)
    a("s_barrier")
    a(f"s_cmp_gt_u32 s{WAVE}, 12")
    a("s_cbranch_scc1 L1_noedge0")
    a(f"s_mul_i32 s24, s2, {EPC * 4}")
    a(f"v_lshlrev_b32 v{T0}, 4, v{TID}")
    a(f"v_add_u32 v{T0}, s24, v{T0}")
    a(f"v_lshrrev_b32 v{T1}, 1, v{T0}")
    a(f"v_cmp_gt_u32 vcc, {EPC // 4}, v{TID}")
    a("s_and_saveexec_b64 s[32:33], vcc")
    a(f"global_load_dwordx4 {vr(VD, 4)}, v{T0}, {sr(DST)}")
    a(f"global_load_dwordx4 {vr(VS, 4)}, v{T0}, {sr(SRC)}")
    a(f"global_load_dwordx2 {vr(VE, 2)}, v{T1}, {sr(EA)}")
    a("s_mov_b64 exec, s[32:33]")
    a("s_waitcnt vmcnt(3)")
    a("s_branch L1_wx")
    a.label("L1_noedge0")
    a("s_waitcnt vmcnt(0)")
    a.label("L1_wx")
    stamp(a, 2)
    nd.stage()
    a("s_waitcnt lgkmcnt(0)")
    a("s_barrier")
    stamp(a, 3)
    a(f"s_cmp_gt_u32 s{WAVE}, 13")
    a("s_cbranch_scc1 L1_notask")
    nd.pair_reads(AOP, XOP, VLOC)
    a(f"v_mul_u32_u24 v{T0}, {ROW}, v{VLOC}")
    a(f"v_lshrrev_b32 v{T1}, 4, v{LANE}")
    a(f"v_lshl_add_u32 v{T0}, v{T1}, 4, v{T0}")
    a("s_lshl_b32 s30, s27, 6")
    a(f"s_add_u32 s30, s30, {TST}")
    a(f"v_add_u32 v{T0}, s30, v{T0}")
    a(f"s_mov_b32 s24, {LOG2E_NEG:#x}")
    a("s_mov_b32 s25, 0x7fff0000")
    a("s_mov_b32 s30, 0x7fffffff")
    VLO, VHI = 33, 34
    a(f"v_mov_b32 v{VLO}, 0xc77fe000")
    a(f"v_mov_b32 v{VHI}, 0x477fe000")
    a(f"v_cmp_gt_u32 vcc, {NPB}, v{VLOC}")
    a("s_waitcnt lgkmcnt(0)")
    nd.pair_mfma(AOP, XOP, DD)
    a("s_nop 5")
    for c in range(2):
        DQ, DH = DD + c * 8, DD + c * 8 + 4
        if c == 1:
            pass
        for i in range(4):
            a(f"v_mul_f32 v{DQ + i}, s24, v{DQ + i}")
        for i in range(4):
            a(f"v_med3_f32 v{DQ + i}, v{DQ + i}, v{VLO}, v{VHI}")
        a(f"v_cvt_pk_f16_f32 v{PK}, v{DQ}, v{DQ + 1}")
        a(f"v_cvt_pk_f16_f32 v{PK + 1}, v{DQ + 2}, v{DQ + 3}")
        for i in range(4):
            h = DH + i
            sel = "WORD_1" if i % 2 else "WORD_0"
            a(f"v_and_b32 v{DQ + i}, s30, v{h}")
            a(f"v_add_u32 v{DQ + i}, 0x8000, v{DQ + i}")
            a(f"v_sub_u32_sdwa v{DQ + i}, v{DQ + i}, v{PK + i // 2} clamp dst_sel:DWORD dst_unused:UNUSED_PAD src0_sel:DWORD src1_sel:{sel}")
        for i in range(4):
            h = DH + i
            a(f"v_bfi_b32 v{h}, s25, v{DQ + i}, v{h}")
        for i in range(4):
            h = DH + i
            sel = "WORD_1" if i % 2 else "WORD_0"
            a(f"v_mov_b32_sdwa v{h}, v{PK + i // 2} dst_sel:WORD_0 dst_unused:UNUSED_PRESERVE src0_sel:{sel}")
        a("s_and_saveexec_b64 s[32:33], vcc")
        a(f"ds_write_b128 v{T0}, {vr(DH, 4)} offset:{c * 64}")
        a("s_mov_b64 exec, s[32:33]")
    a.label("L1_notask")
    a("s_waitcnt lgkmcnt(0)")
    stamp(a, 4)
    a("s_barrier")

    a(f"s_sub_u32 s24, s{WAVE}, 13")
    a("s_cmp_lt_u32 s24, 2")
    a("s_cbranch_scc0 L1_not")
    a(f"v_lshrrev_b32 v{T0}, 4, v{LANE}")
    a(f"v_mul_u32_u24 v{T0}, {ROW}, v{T0}")
    a(f"v_and_b32 v{T1}, 15, v{LANE}")
    a(f"v_lshl_add_u32 v{T0}, v{T1}, 4, v{T0}")
    a(f"s_mul_i32 s25, s24, {13 * 4 * ROW}")
    a(f"s_add_u32 s25, s25, {TST}")
    a(f"v_add_u32 v{T0}, s25, v{T0}")
    a(f"s_mul_i32 s26, s2, {NPB * 256}")
    a(f"s_mul_i32 s25, s24, {13 * 1024}")
    a("s_add_u32 s26, s26, s25")
    a(f"v_lshlrev_b32 v{T1}, 4, v{LANE}")
    a(f"v_add_u32 v{T1}, s26, v{T1}")
    for n in range(12):
        a(f"ds_read_b128 {vr(16 + 4 * n, 4)}, v{T0} offset:{n * 4 * ROW}")
    a(f"v_add_u32 v{T2}, {12 * 1024}, v{T1}")
    a("s_cmp_eq_u32 s24, 0")
    a("s_cbranch_scc0 L1_t12")
    a(f"ds_read_b128 {vr(64, 4)}, v{T0} offset:{12 * 4 * ROW}")
    a("s_waitcnt lgkmcnt(0)")
    a(f"global_store_dwordx4 v{T2}, {vr(64, 4)}, {sr(WS)}{STT}")
    a.label("L1_t12")
    for n in range(12):
        a(f"s_waitcnt lgkmcnt({max(0, 11 - n)})")
        a(f"global_store_dwordx4 v{T1}, {vr(16 + 4 * n, 4)}, {sr(WS)} offset:{(n % 4) * 1024}{STT}")
        if n % 4 == 3:
            a(f"v_add_u32 v{T1}, 4096, v{T1}")
    if "readback" in OPT:
        a("s_waitcnt vmcnt(0)")
        a(f"v_subrev_u32 v{T1}, {3 * 4096}, v{T1}")
        for n in range(12):
            a(f"global_load_dwordx4 {vr(16 + 4 * n, 4)}, v{T1}, {sr(WS)} offset:{(n % 4) * 1024}")
            if n % 4 == 3:
                a(f"v_add_u32 v{T1}, 4096, v{T1}")
        a(f"global_load_dwordx4 {vr(64, 4)}, v{T2}, {sr(WS)}")
        a("s_waitcnt vmcnt(0)")
    if "wbl2" in OPT:
        a("s_waitcnt vmcnt(0)")
        a("buffer_wbl2 sc1")
        a("s_waitcnt vmcnt(0)")
    stamp(a, 5)
    if STAMPS:
        a("s_waitcnt vmcnt(0)")
    stamp(a, 11)
    stamp(a, 21, True)
    stamp_flush(a, 0)
    a("s_endpgm")
    a.label("L1_not")
    stamp(a, 5)
    a(f"s_cmp_gt_u32 s{WAVE}, 12")
    a("s_cbranch_scc1 L1_noedge1")
    a(f"v_cmp_gt_u32 vcc, {EPC // 4}, v{TID}")
    a("s_and_saveexec_b64 s[32:33], vcc")
    a(f"v_mov_b32 v{T1}, 1")
    a("s_movk_i32 s24, -100")
    a("s_mov_b32 s25, 0xffff0000")
    a("s_movk_i32 s30, 128")
    a("s_waitcnt vmcnt(0)")
    for i in range(4):
        a(f"v_mul_u32_u24 v{T0}, 5243, v{VD + i}")
        a(f"v_lshrrev_b32 v{T0}, 19, v{T0}")
        a(f"v_lshlrev_b32 v{VB + i}, 2, v{T0}")
        a(f"ds_add_rtn_u32 v{VR + i}, v{VB + i}, v{T1} offset:{HIST}")
        a(f"v_mad_i32_i24 v{T2}, v{T0}, s24, v{VD + i}")
        a(f"v_lshrrev_b32 v{T3}, 5, v{VS + i}")
        a(f"v_and_or_b32 v{RP + 2 * i + 1}, v{T3}, s30, v{T2}")
        if "smallsrc" in OPT:
            a(f"v_and_b32 v{VS + i}, 0x7ff, v{VS + i}")
        if i % 2 == 0:
            a(f"v_lshl_or_b32 v{RP + 2 * i}, v{VE + i // 2}, 16, v{VS + i}")
        else:
            a(f"v_and_or_b32 v{RP + 2 * i}, v{VE + i // 2}, s25, v{VS + i}")
    a("s_mov_b64 exec, s[32:33]")
    a.label("L1_noedge1")
    a("s_waitcnt lgkmcnt(0)")
    stamp(a, 6)
    a("s_barrier")
    stamp(a, 7)
    a(f"s_cmp_eq_u32 s{WAVE}, 15")
    a("s_cbranch_scc0 L1_b2")
    C0 = 24
    a(f"v_lshlrev_b32 v{T0}, 4, v{LANE}")
    a(f"ds_read_b128 {vr(C0, 4)}, v{T0} offset:{HIST}")
    a("s_waitcnt lgkmcnt(0)")
    P = 28
    a(f"v_add_u32 v{P + 2}, v{C0}, v{C0 + 1}")
    a(f"v_add_u32 v{P + 3}, v{P + 2}, v{C0 + 2}")
    a(f"v_add_u32 v32, v{P + 3}, v{C0 + 3}")
    a("v_mov_b32 v33, v32")
    wave_scan(a, 33)
    a(f"v_sub_u32 v{P}, v33, v32")
    a(f"v_add_u32 v{P + 1}, v{P}, v{C0}")
    a(f"v_add_u32 v{P + 2}, v{P}, v{P + 2}")
    a(f"v_add_u32 v{P + 3}, v{P}, v{P + 3}")
    a(f"ds_write_b128 v{T0}, {vr(P, 4)} offset:{BASE}")
    a("s_lshl_b32 s24, s2, 10")
    a(f"s_add_u32 s24, s24, {SEG_OFF}")
    a(f"v_add_u32 v{T1}, s24, v{T0}")
    for i in range(4):
        a(f"v_lshl_or_b32 v{36 + i}, v{C0 + i}, 16, v{P + i}")
    a(f"global_store_dwordx4 v{T1}, v[36:39], {sr(WS)}{ST}")
    a("s_cmp_lg_u32 s2, 0")
    a("s_cbranch_scc1 L1_b2")
    a(f"v_mov_b32 v{T2}, 0")
    a(f"v_lshlrev_b32 v{T3}, 2, v{LANE}")
    a(f"v_add_u32 v{T3}, {N * 256}, v{T3}")
    a(f"global_store_dword v{T3}, v{T2}, {sr(WS)}{ST}")
    a.label("L1_b2")
    a("s_waitcnt lgkmcnt(0)")
    stamp(a, 8)
    a("s_barrier")
    a(f"s_cmp_gt_u32 s{WAVE}, 12")
    a("s_cbranch_scc1 L1_noedge2")
    a(f"v_cmp_gt_u32 vcc, {EPC // 4}, v{TID}")
    a("s_and_saveexec_b64 s[32:33], vcc")
    for i in range(4):
        a(f"ds_read_b32 v{VD + i}, v{VB + i} offset:{BASE}")
    a(f"s_mov_b32 s24, {STG}")
    for i in range(4):
        a("s_waitcnt lgkmcnt(3)")
        a(f"v_add_u32 v{VD + i}, v{VD + i}, v{VR + i}")
        a(f"v_lshl_add_u32 v{VD + i}, v{VD + i}, 3, s24")
        a(f"ds_write_b64 v{VD + i}, {vr(RP + 2 * i, 2)}")
    a("s_mov_b64 exec, s[32:33]")
    a.label("L1_noedge2")
    a(f"s_min_u32 s25, s{WAVE}, 13")
    a("s_lshl_b32 s25, s25, 10")
    a(f"v_lshlrev_b32 v{T0}, 4, v{LANE}")
    a(f"v_add_u32 v{T0}, s25, v{T0}")
    a(f"v_add_u32 v{T1}, {STG}, v{T0}")
    a(f"s_mul_i32 s24, s2, {EPC * 8}")
    a(f"s_add_u32 s24, s24, {REC_OFF}")
    a(f"v_add_u32 v{T0}, s24, v{T0}")
    a("s_waitcnt lgkmcnt(0)")
    stamp(a, 9)
    a("s_barrier")
    a(f"ds_read_b128 v[24:27], v{T1}")
    a(f"s_cmp_gt_u32 s{WAVE}, 10")
    a("s_cbranch_scc1 L1_oner")
    a(f"ds_read_b128 v[28:31], v{T1} offset:{14 * 1024}")
    a(f"v_add_u32 v{T1}, {14 * 1024}, v{T0}")
    a("s_waitcnt lgkmcnt(0)")
    a(f"global_store_dwordx4 v{T1}, v[28:31], {sr(WS)}{STR_}")
    a.label("L1_oner")
    a("s_waitcnt lgkmcnt(0)")
    a(f"global_store_dwordx4 v{T0}, v[24:27], {sr(WS)}{STR_}")
    for o in OPT:
        if o.startswith("delay="):
            n = int(o[6:])
            a(f"s_movk_i32 s24, {n}")
            a.label("L1_dly")
            a("s_sleep 16")
            a("s_sub_u32 s24, s24, 1")
            a("s_cmp_lg_u32 s24, 0")
            a("s_cbranch_scc1 L1_dly")
    if "dbgt" in OPT:
        a("s_waitcnt vmcnt(0)")
    dbg_time(a, 0, 1)
    stamp(a, 10)
    if STAMPS:
        a("s_waitcnt vmcnt(0)")
    stamp(a, 11)
    stamp(a, 21, True)
    stamp_flush(a, 0)
    a.label("L1_end")
    a("s_endpgm")
    return LDS, 112


def gen_k2(a):
    HIST = 0
    HIST2 = HIST + 1024
    BASE2 = HIST2 + 1024
    WCNT = BASE2 + 1024
    WKEY = WCNT + 1024
    MISC = WKEY + 1024
    SCR = MISC + 256
    ZERO = SCR + 256
    PL = ZERO + 256
    PART0 = PL + NPB * ROW
    WST = (PART0 + NPB * ROW + 127) // 128 * 128
    XST = WST + 16384
    LIST = XST + NPB * XROW
    CAPK = 48
    COL = CAPK * 4
    LISTB = 228 * COL
    LDS = LIST + LISTB + 64
    assert PART0 + 64 * ROW < 65536 and LDS <= 163840, LDS
    NWIN = 50
    DUMMY_COL = 100 * COL

    TID, LANE = 0, 1
    T0, T1, T2, T3 = 2, 3, 4, 5
    RB = 6
    REM = 7
    RECS = 8
    RANK = 24
    VW_, VX_ = 32, 36
    XOP = 40
    AOP = 52
    DD = 84
    VLOC = 49
    NT = 100
    VLB = 103
    ASEL = 112
    VJ, VG4, VQ, VONE = 116, 117, 118, 119
    CV = 120
    VZ = 124
    VXA, VWA, VPA, VSH = 104, 105, 106, 107
    MASK = 40
    nd = Node(a, WST, XST, TID, LANE, VW_, VX_, NT)

    a(f".globl {K2}")
    a(".p2align 8")
    a(f".type {K2},@function")
    a.label(K2)
    a(f"s_cmp_ge_u32 s2, {NB}")
    a("s_cbranch_scc1 L2_end")
    dbg_time(a, 1, 2, True)
    for o in OPT:
        if o.startswith("nops="):
            for _ in range(int(o[5:])):
                a("s_nop 0")
        if o.startswith("slit="):
            for _ in range(int(o[5:])):
                a("s_mov_b32 s24, 0x12345678")
        if o.startswith("slil="):
            a(f"s_movk_i32 s25, {int(o[5:]) // 16}")
            a.label("L2_slil")
            for _ in range(13):
                a("s_mov_b32 s24, 0x12345678")
            a("s_sub_u32 s25, s25, 1")
            a("s_cmp_lg_u32 s25, 0")
            a("s_cbranch_scc1 L2_slil")
        if o.startswith("nopl="):
            a(f"s_movk_i32 s24, {int(o[5:]) // 16}")
            a.label("L2_nopl")
            for _ in range(13):
                a("s_nop 0")
            a("s_sub_u32 s24, s24, 1")
            a("s_cmp_lg_u32 s24, 0")
            a("s_cbranch_scc1 L2_nopl")
    stamp(a, 0)
    stamp(a, 20, True)
    load_ptrs(a)
    remap_wg(a, 2)
    a(f"v_and_b32 v{LANE}, 63, v{TID}")
    a(f"v_lshrrev_b32 v{T0}, 6, v{TID}")
    a(f"v_lshlrev_b32 v{T1}, 2, v{TID}")
    a(f"v_readfirstlane_b32 s{WAVE}, v{T0}")
    a(f"v_lshrrev_b32 v{RB}, 2, v{TID}")
    a(f"v_lshlrev_b32 v{RB}, 10, v{RB}")
    a("s_lshl_b32 s24, s2, 2")
    a(f"s_add_u32 s24, s24, {SEG_OFF}")
    a(f"v_add_u32 v{RB}, s24, v{RB}")
    a("s_waitcnt lgkmcnt(0)")
    fix_ws(a)
    stamp(a, 1)
    a(f"global_load_dword v{REM}, v{RB}, {sr(WS)}")
    nd.issue_loads(GW, 0, UW)
    a(f"v_and_b32 v{T0}, 15, v{LANE}")
    a(f"v_lshlrev_b32 v{VJ}, 4, v{T0}")
    a(f"v_lshrrev_b32 v{T2}, 1, v{VJ}")
    a(f"v_add_u32 v{T2}, {128 * 128}, v{T2}")
    a(f"global_load_dwordx2 {vr(CV + 2, 2)}, v{T2}, {sr(GW)}")
    a(f"v_mov_b32 v{T0}, 0")
    a(f"s_cmp_lt_u32 s{WAVE}, 4")
    a("s_cbranch_scc0 L2_nozero")
    a(f"ds_write_b32 v{T1}, v{T0} offset:{HIST}")
    a(f"ds_write_b32 v{T1}, v{T0} offset:{HIST2}")
    a.label("L2_nozero")
    a(f"s_cmp_eq_u32 s{WAVE}, 4")
    a("s_cbranch_scc0 L2_nozero2")
    a(f"v_lshlrev_b32 v{T2}, 2, v{LANE}")
    a(f"v_cmp_eq_u32 vcc, 2, v{LANE}")
    a("s_nop 1")
    a(f"v_cndmask_b32 v{T3}, 0, 16, vcc")
    a(f"ds_write_b32 v{T2}, v{T3} offset:{MISC}")
    a(f"ds_write_b32 v{T2}, v{T0} offset:{ZERO}")
    a.label("L2_nozero2")
    a(f"v_lshrrev_b32 v{RB}, 2, v{TID}")
    a(f"v_mul_u32_u24 v{RB}, {EPC}, v{RB}")
    a(f"v_and_b32 v{T3}, 3, v{TID}")
    a(f"v_lshlrev_b32 v{T3}, 1, v{T3}")
    a(f"v_add_u32 v{RB}, v{RB}, v{T3}")
    a(f"v_lshlrev_b32 v{RB}, 3, v{RB}")
    a(f"v_add_u32 v{RB}, {REC_OFF}, v{RB}")
    a(f"v_cmp_gt_u32 vcc, {NC * 4}, v{TID}")
    a("s_waitcnt vmcnt(3)")
    stamp(a, 2)
    a(f"v_cndmask_b32 v{REM}, 0, v{REM}, vcc")
    a(f"v_and_b32 v{T2}, 0xffff, v{REM}")
    a(f"v_lshrrev_b32 v{REM}, 16, v{REM}")
    a(f"v_lshl_add_u32 v{RB}, v{T2}, 3, v{RB}")
    a(f"v_cmp_lt_u32 s[56:57], 32, v{REM}")
    a(f"v_sub_u32 v{REM}, v{REM}, v{T3}")
    for r in range(4):
        a(f"v_cmp_gt_i32 {sr(MASK + 4 * r)}, v{REM}, {8 * r}")
    a("s_nop 1")
    a("s_mov_b32 s58, 0")
    for r in range(4):
        m = MASK + 4 * r
        a(f"s_mov_b64 exec, {sr(m)}")
        a("s_cbranch_execz L2_recs_done")
        a(f"global_load_dwordx4 {vr(RECS + 4 * r, 4)}, v{RB}, {sr(WS)} offset:{64 * r}")
        a(f"s_mov_b32 s58, {r + 1}")
    a.label("L2_recs_done")
    a("s_mov_b64 exec, -1")
    if "earlytouch" in OPT:
        a(f"s_cmp_lt_u32 s{WAVE}, {TOUCH0}")
        a("s_cbranch_scc1 L2_notouche")
        a(f"s_sub_u32 s25, s{WAVE}, {TOUCH0}")
        a(f"s_cmp_gt_u32 s25, 3")
        a("s_cbranch_scc1 L2_notouche")
        a("s_lshl_b32 s25, s25, 6")
        a(f"v_add_u32 v{T2}, s25, v{LANE}")
        a(f"v_min_u32 v{T2}, {NPB * 2 - 1}, v{T2}")
        a(f"v_lshlrev_b32 v{T2}, 7, v{T2}")
        a(f"s_mul_i32 s24, s2, {NPB * 256}")
        a(f"v_add_u32 v{T2}, s24, v{T2}")
        a(f"global_load_dword v126, v{T2}, {sr(WS)}")
        a("s_add_u32 s58, s58, 1")
        a.label("L2_notouche")
    for r in range(4):
        a(f"v_cmp_gt_i32 {sr(MASK + 4 * r + 2)}, v{REM}, {8 * r + 1}")
    for i in range(4):
        a(f"v_mov_b32 v{XOP + i}, {N}")
    a(f"v_lshlrev_b32 v{T2}, 4, v{TID}")
    a(f"v_add_u32 v{T2}, {LIST}, v{T2}")
    a(f"ds_write_b128 v{T2}, {vr(XOP, 4)}")
    a(f"ds_write_b128 v{T2}, {vr(XOP, 4)} offset:16384")
    nlast = LISTB // 16 - 2048
    a(f"v_cmp_gt_u32 vcc, {nlast}, v{TID}")
    a("s_and_saveexec_b64 s[32:33], vcc")
    a(f"ds_write_b128 v{T2}, {vr(XOP, 4)} offset:32768")
    a("s_mov_b64 exec, s[32:33]")
    a(f"v_and_b32 v{T0}, 15, v{LANE}")
    a(f"v_lshrrev_b32 v{T1}, 4, v{LANE}")
    a(f"v_lshlrev_b32 v{VG4}, 2, v{T1}")
    a(f"s_mul_i32 s24, s2, {NPB * 128}")
    a(f"v_lshrrev_b32 v{VZ}, 1, v{VJ}")
    a(f"v_add_u32 v{VZ}, s24, v{VZ}")
    a(f"v_mov_b32 v{VONE}, 1")
    a(f"v_mov_b32 v{VLB}, {LIST}")
    a(f"v_lshlrev_b32 v{VQ}, 2, v{LANE}")
    a(f"v_add_u32 v{VQ}, {SCR}, v{VQ}")
    a(f"v_cmp_eq_u32 vcc, 0, v{LANE}")
    a(f"v_mov_b32 v{T3}, {MISC + 8}")
    a(f"v_lshrrev_b32 v{T2}, 2, v{T0}")
    a(f"v_cndmask_b32 v{VQ}, v{VQ}, v{T3}, vcc")
    a(f"v_cmp_eq_u32 vcc, v{T2}, v{T1}")
    a(f"v_mov_b32 v{T3}, 0x3c00")
    a(f"v_and_b32 v{T2}, 3, v{T0}")
    a(f"v_cndmask_b32 v{T3}, 0, v{T3}, vcc")
    for q in range(4):
        a(f"v_cmp_eq_u32 vcc, {q}, v{T2}")
        a("s_nop 1")
        a(f"v_cndmask_b32 v{ASEL + q}, 0, v{T3}, vcc")
    a(f"s_mov_b32 s36, s{WS}")
    a(f"s_and_b32 s37, s{WS + 1}, 0xffff")
    a("s_or_b32 s37, s37, 0x1000000")
    a(f"s_mov_b32 s38, {N + 1}")
    a("s_mov_b32 s39, 0x20000")
    a(f"s_mov_b32 s66, {TINY:#x}")
    a(f"s_mov_b32 s67, {TINY:#x}")
    for k in range(4):
        a(f"v_mov_b32 v{76 + 4 * k + 1}, v{VJ}")
        a(f"v_mov_b32 v{76 + 4 * k + 3}, v{VJ}")
        a(f"v_mov_b32 v{92 + 2 * k}, 0")
        a(f"v_mov_b32 v{92 + 2 * k + 1}, 0")
    nd.stage_addr(NT, NT + 1, NT + 2)
    a(f"s_and_b32 s27, s{WAVE}, 3")
    a(f"s_lshr_b32 s26, s{WAVE}, 2")
    a("s_lshl_b32 s26, s26, 5")
    a(f"v_and_b32 v{T0}, 15, v{LANE}")
    a(f"v_lshrrev_b32 v{T1}, 4, v{LANE}")
    a(f"v_add_u32 v{T2}, s26, v{T0}")
    a(f"v_mul_u32_u24 v{VXA}, {XROW}, v{T2}")
    a(f"v_lshl_add_u32 v{VXA}, v{T1}, 4, v{VXA}")
    a(f"v_add_u32 v{VXA}, {XST}, v{VXA}")
    a(f"v_mul_u32_u24 v{VPA}, {ROW}, v{T2}")
    a(f"v_lshl_add_u32 v{VPA}, v{T1}, 4, v{VPA}")
    a("s_lshl_b32 s30, s27, 6")
    a(f"v_add_u32 v{VPA}, s30, v{VPA}")
    a(f"v_lshrrev_b32 v{T2}, 3, v{T0}")
    a(f"v_and_b32 v{T3}, 1, v{T1}")
    a(f"v_lshl_or_b32 v{T2}, v{T3}, 1, v{T2}")
    a(f"v_xor_b32 v{T2}, s27, v{T2}")
    a(f"v_lshlrev_b32 v{T2}, 5, v{T2}")
    a(f"v_lshrrev_b32 v{T3}, 2, v{T0}")
    a(f"v_lshl_add_u32 v{T3}, v{T1}, 3, v{T3}")
    a(f"v_lshl_add_u32 v{T2}, v{T3}, 7, v{T2}")
    a(f"v_and_b32 v{T3}, 3, v{T0}")
    a(f"v_lshl_add_u32 v{T2}, v{T3}, 3, v{T2}")
    a(f"v_add_u32 v{VWA}, {WST}, v{T2}")
    a(f"v_mov_b32 v{VSH}, {SHIFT_NEG:#x}")
    a(f"v_cmp_gt_u32 s[34:35], 4, v{T0}")
    for n in range(5 if "earlytouch" in OPT else 4, -1, -1):
        if n:
            a(f"s_cmp_lg_u32 s58, {n}")
            a(f"s_cbranch_scc1 L2_wx{n}")
        a(f"s_waitcnt vmcnt({n})")
        if n:
            a("s_branch L2_wxdone")
            a.label(f"L2_wx{n}")
    a.label("L2_wxdone")
    stamp(a, 3)
    nd.stage_write(NT, NT + 1)
    a(f"s_mov_b32 s24, {LOG2E_NEG:#x}")
    a(f"v_lshlrev_b32 v{CV}, 16, v{CV + 2}")
    a(f"v_and_b32 v{CV + 1}, 0xffff0000, v{CV + 2}")
    a(f"v_lshlrev_b32 v{CV + 2}, 16, v{CV + 3}")
    a(f"v_and_b32 v{CV + 3}, 0xffff0000, v{CV + 3}")
    for i in range(4):
        a(f"v_mul_f32 v{CV + i}, s24, v{CV + i}")
    a("s_waitcnt lgkmcnt(0)")
    a("s_barrier")
    stamp(a, 4)
    a("s_cmp_eq_u64 s[56:57], 0")
    a("s_cbranch_scc1 L2_noflag")
    a(f"v_mov_b32 v{T2}, 0")
    a(f"ds_write_b32 v{T2}, v{VONE} offset:{MISC}")
    a.label("L2_noflag")
    A0, BA, BB_ = 32, 48, 56
    DP0, DU0 = 64, 68

    def pu_block(tag, two):
        a(f"ds_read_b128 {vr(BA, 4)}, v{VXA}")
        a(f"ds_read_b128 {vr(BA + 4, 4)}, v{VXA} offset:64")
        for m in range(2):
            for ks in range(2):
                for hh in range(2):
                    a(f"ds_read_b64_tr_b16 {vr(A0 + (m * 2 + ks) * 4 + hh * 2, 2)}, v{VWA} offset:{m * 8192 + ks * 4096 + hh * 512}")
        if two:
            a(f"ds_read_b128 {vr(BB_, 4)}, v{VXA} offset:{16 * XROW}")
            a(f"ds_read_b128 {vr(BB_ + 4, 4)}, v{VXA} offset:{16 * XROW + 64}")
        a(f"s_mov_b32 s24, {LOG2E_NEG:#x}")
        a(f"s_waitcnt lgkmcnt({2 if two else 0})")
        a(f"v_mfma_f32_16x16x32_bf16 {vr(DP0, 4)}, {vr(A0, 4)}, {vr(BA, 4)}, 0")
        a(f"v_mfma_f32_16x16x32_bf16 {vr(DU0, 4)}, {vr(A0 + 8, 4)}, {vr(BA, 4)}, 0")
        a(f"v_mfma_f32_16x16x32_bf16 {vr(DP0, 4)}, {vr(A0 + 4, 4)}, {vr(BA + 4, 4)}, {vr(DP0, 4)}")
        a(f"v_mfma_f32_16x16x32_bf16 {vr(DU0, 4)}, {vr(A0 + 12, 4)}, {vr(BA + 4, 4)}, {vr(DU0, 4)}")
        if two:
            a("s_waitcnt lgkmcnt(0)")
            a(f"v_mfma_f32_16x16x32_bf16 {vr(BA, 4)}, {vr(A0, 4)}, {vr(BB_, 4)}, 0")
            a(f"v_mfma_f32_16x16x32_bf16 {vr(BA + 4, 4)}, {vr(A0 + 8, 4)}, {vr(BB_, 4)}, 0")
            a(f"v_mfma_f32_16x16x32_bf16 {vr(BA, 4)}, {vr(A0 + 4, 4)}, {vr(BB_ + 4, 4)}, {vr(BA, 4)}")
            a(f"v_mfma_f32_16x16x32_bf16 {vr(BA + 4, 4)}, {vr(A0 + 12, 4)}, {vr(BB_ + 4, 4)}, {vr(BA + 4, 4)}")
            a("s_nop 3")
        else:
            a("s_mov_b64 exec, s[34:35]")
            a("s_nop 6")
        for i in range(4):
            a(f"v_fma_f32 v{DP0 + i}, v{DP0 + i}, s24, v{VSH}")
        a(f"ds_write_b128 v{VPA}, {vr(DP0, 4)} offset:{PL}")
        a(f"ds_write_b128 v{VPA}, {vr(DU0, 4)} offset:{PART0}")
        if two:
            for i in range(4):
                a(f"v_fma_f32 v{BA + i}, v{BA + i}, s24, v{VSH}")
            a(f"ds_write_b128 v{VPA}, {vr(BA, 4)} offset:{PL + 16 * ROW}")
            a(f"ds_write_b128 v{VPA}, {vr(BA + 4, 4)} offset:{PART0 + 16 * ROW}")
        else:
            a("s_mov_b64 exec, -1")

    a(f"s_cmp_gt_u32 s{WAVE}, 11")
    a("s_cbranch_scc1 L2_pu_last")
    pu_block("a", True)
    a("s_branch L2_pu_end")
    a.label("L2_pu_last")
    pu_block("b", False)
    a.label("L2_pu_end")
    a(f"s_movk_i32 s59, {COL}")
    if "earlytouch" in OPT:
        a(f"s_sub_u32 s24, s{WAVE}, {TOUCH0}")
        a("s_cmp_lt_u32 s24, 4")
        a("s_cbranch_scc0 L2_wall")
        a("s_waitcnt vmcnt(1)")
        a("s_branch L2_wall2")
        a.label("L2_wall")
        a("s_waitcnt vmcnt(0)")
        a.label("L2_wall2")
    else:
        a("s_waitcnt vmcnt(0)")
    stamp(a, 5)
    if "ttouch" in OPT and "earlytouch" not in OPT:
        a(f"s_cmp_lt_u32 s{WAVE}, {TOUCH0}")
        a("s_cbranch_scc1 L2_notouch")
        a(f"s_sub_u32 s25, s{WAVE}, {TOUCH0}")
        a(f"s_cmp_gt_u32 s25, 3")
        a("s_cbranch_scc1 L2_notouch")
        a("s_lshl_b32 s25, s25, 6")
        a(f"v_add_u32 v{T2}, s25, v{LANE}")
        a(f"v_min_u32 v{T2}, {NPB * 2 - 1}, v{T2}")
        a(f"v_lshlrev_b32 v{T2}, 7, v{T2}")
        a(f"s_mul_i32 s24, s2, {NPB * 256}")
        a(f"v_add_u32 v{T2}, s24, v{T2}")
        a(f"global_load_dword v126, v{T2}, {sr(WS)}")
        a.label("L2_notouch")
    for r in range(4):
        if r >= 2:
            a(f"s_cmp_eq_u64 {sr(MASK + 4 * r)}, 0")
            a(f"s_cbranch_scc1 L2_h{r}")
        for s_ in range(2):
            k = 2 * r + s_
            hi = RECS + 4 * r + 2 * s_ + 1
            a(f"s_mov_b64 exec, {sr(MASK + 2 * k)}")
            a(f"v_lshlrev_b32 v{T1}, 2, v{hi}")
            a(f"ds_add_rtn_u32 v{RANK + k}, v{T1}, v{VONE} offset:{HIST}")
            a(f"v_mad_u32_u24 v{hi}, v{hi}, s59, v{VLB}")
        if r >= 2:
            a.label(f"L2_h{r}")
    a("s_mov_b64 exec, -1")
    a("s_waitcnt lgkmcnt(0)")
    for r in range(4):
        if r >= 2:
            a(f"s_cmp_eq_u64 {sr(MASK + 4 * r)}, 0")
            a(f"s_cbranch_scc1 L2_s{r}")
        for s_ in range(2):
            k = 2 * r + s_
            lo = RECS + 4 * r + 2 * s_
            hi = lo + 1
            a(f"s_mov_b64 exec, {sr(MASK + 2 * k)}")
            a(f"v_min_u32 v{RANK + k}, 63, v{RANK + k}")
            a(f"v_lshl_add_u32 v{hi}, v{RANK + k}, 2, v{hi}")
            a(f"ds_write_b32 v{hi}, v{lo}")
        if r >= 2:
            a.label(f"L2_s{r}")
    a("s_mov_b64 exec, -1")
    a("s_waitcnt lgkmcnt(0)")
    stamp(a, 6)
    a("s_barrier")
    a(f"s_cmp_eq_u32 s{WAVE}, 15")
    a("s_cbranch_scc0 L2_b2")

    a.label("L2_order")
    a("s_setprio 3")
    CN, BN, RK = 64, 68, 72
    S0 = 56
    a(f"v_lshlrev_b32 v{T0}, 4, v{LANE}")
    a(f"ds_read_b128 {vr(CN, 4)}, v{T0} offset:{HIST}")
    a(f"v_lshrrev_b32 v{T1}, 5, v{LANE}")
    a(f"v_and_b32 v{T2}, 31, v{LANE}")
    a(f"v_cmp_gt_u32 vcc, 25, v{T2}")
    a(f"v_lshlrev_b32 v{T3}, 8, v{T1}")
    a(f"v_add_u32 v{T3}, {63 * 4}, v{T3}")
    a(f"v_mov_b32 v{S0}, {(128 + 63) * 4}")
    a(f"v_cndmask_b32 v{T3}, v{S0}, v{T3}, vcc")
    a(f"v_lshlrev_b32 v{T2}, 2, v{T2}")
    a(f"v_mul_u32_u24 v{T1}, {4 * COL}, v{LANE}")
    a(f"v_lshl_or_b32 v{T1}, v{T1}, 16, v{T2}")
    a("s_waitcnt lgkmcnt(0)")
    a(f"v_max3_u32 v{S0 + 1}, v{CN}, v{CN + 1}, v{CN + 2}")
    a(f"v_max_u32 v{S0 + 1}, v{S0 + 1}, v{CN + 3}")
    for i in range(4):
        a(f"v_min_u32 v{BN + i}, 63, v{CN + i}")
        a(f"v_lshlrev_b32 v{BN + i}, 2, v{BN + i}")
        a(f"v_sub_u32 v{BN + i}, v{T3}, v{BN + i}")
        a(f"ds_add_rtn_u32 v{RK + i}, v{BN + i}, v{VONE} offset:{HIST2}")
    a(f"ds_read_b128 {vr(S0 + 4, 4)}, v{T0} offset:{HIST2}")
    a(f"v_cmp_lt_u32 vcc, {CAPK}, v{S0 + 1}")
    a("s_cbranch_vccz L2_nocap")
    a(f"v_mov_b32 v{S0}, 0")
    a(f"ds_write_b32 v{S0}, v{VONE} offset:{MISC}")
    a.label("L2_nocap")
    a("s_waitcnt lgkmcnt(0)")
    a(f"v_add_u32 v{S0 + 1}, v{S0 + 4}, v{S0 + 5}")
    a(f"v_add_u32 v{S0 + 2}, v{S0 + 1}, v{S0 + 6}")
    a(f"v_add_u32 v{S0 + 3}, v{S0 + 2}, v{S0 + 7}")
    a(f"v_mov_b32 v{S0}, v{S0 + 3}")
    wave_scan(a, S0)
    a(f"v_sub_u32 v{S0}, v{S0}, v{S0 + 3}")
    a(f"v_add_u32 v{S0 + 3}, v{S0}, v{S0 + 2}")
    a(f"v_add_u32 v{S0 + 2}, v{S0}, v{S0 + 1}")
    a(f"v_add_u32 v{S0 + 1}, v{S0}, v{S0 + 4}")
    a(f"ds_write_b128 v{T0}, {vr(S0, 4)} offset:{BASE2}")
    for i in range(4):
        a(f"ds_read_b32 v{S0 + 4 + i}, v{BN + i} offset:{BASE2}")
    a("s_waitcnt lgkmcnt(0)")
    for i in range(4):
        a(f"v_add_u32 v{RK + i}, v{RK + i}, v{S0 + 4 + i}")
        a(f"v_lshlrev_b32 v{RK + i}, 2, v{RK + i}")
        a(f"v_add_u32 v{S0}, {i * ((COL << 16) + 1)}, v{T1}")
        a(f"ds_write_b32 v{RK + i}, v{CN + i} offset:{WCNT}")
        a(f"ds_write_b32 v{RK + i}, v{S0} offset:{WKEY}")
    a("s_setprio 0")
    a.label("L2_b2")
    a("s_waitcnt lgkmcnt(0)")
    stamp(a, 7)
    a("s_barrier")
    stamp(a, 8)
    if "noprio" not in OPT:
        a("s_setprio 3")
    NP = 4
    RA = 4
    PR = 8
    ACC = 12
    UR = 16
    DN = 20
    NM = 24
    DA = 28
    VB = 44
    IX = 76
    EV = 92
    VL = 100
    VFL = 101
    VRN = 103
    VWL = 125
    SC, SNL, SI = 61, 62, 63
    STR = 64
    SP, SDONE = 58, 59
    VOC, VON = 104, 105
    a(f"s_movk_i32 s68, {ROW}")
    assert IX == 76 and EV == 92
    a(f"v_mov_b32 v{T0}, 0")
    a(f"ds_read_b32 v{T1}, v{T0} offset:{MISC}")
    a(f"v_lshlrev_b32 v{T2}, 4, v{LANE}")
    a(f"ds_read_b32 v{VWL}, v{T2} offset:{WCNT}")
    a(f"s_lshl_b32 s26, s{WAVE}, 4")
    a(f"v_add_u32 v{T2}, s26, v{VG4}")
    a(f"ds_read_b32 v{T3}, v{T2} offset:{WKEY}")
    a("s_waitcnt lgkmcnt(0)")
    a(f"v_readfirstlane_b32 s24, v{T1}")
    a(f"v_add_u32 v{VWL}, 1, v{VWL}")
    a(f"v_lshrrev_b32 v{VWL}, 1, v{VWL}")
    a(f"v_max_u32 v{VWL}, {RA}, v{VWL}")
    a(f"v_lshrrev_b32 v{VL}, 16, v{T3}")
    a(f"v_add_u32 v{VL}, {LIST}, v{VL}")
    a("s_cmp_lg_u32 s24, 0")
    a("s_cbranch_scc1 L2_slow")
    for k in range(RA):
        a(f"ds_read_u16 v{IX + 4 * k}, v{VL} offset:{8 * k}")
        a(f"ds_read_u16 v{IX + 4 * k + 2}, v{VL} offset:{8 * k + 4}")
    a(f"v_and_b32 v{VRN}, 0xffff, v{T3}")
    a(f"v_mad_u32_u24 v{VRN}, v{VRN}, s68, v{VJ}")
    a(f"v_mov_b32 v{VFL}, v{VRN}")
    a(f"s_mov_b32 s{SP}, 0")
    a(f"s_mov_b32 s{SDONE}, 0")
    a(f"s_mov_b32 s28, {LOG2E_NEG:#x}")
    a(f"s_mov_b32 s29, {LOG2E_NEG:#x}")
    a("s_mov_b32 s30, 1.0")
    a("s_mov_b32 s31, 1.0")
    a(f"v_readlane_b32 s{SC}, v{VWL}, s{WAVE}")
    a(f"s_mov_b32 s{STR}, {RA}")
    a(f"s_mov_b32 s{SI}, s{WAVE}")
    a("s_waitcnt lgkmcnt(0)")
    for k in range(RA - 1):
        for h in range(2):
            a(f"buffer_load_dwordx4 {vr(VB + 8 * k + 4 * h, 4)}, {vr(IX + 4 * k + 2 * h, 2)}, s[36:39], 0 idxen offen")
    for k in range(RA):
        a(f"ds_read_u16_d16_hi v{EV + 2 * k}, v{VL} offset:{8 * k + 2}")
        a(f"ds_read_u16_d16_hi v{EV + 2 * k + 1}, v{VL} offset:{8 * k + 6}")
    a(f"ds_read_b128 {vr(PR, 4)}, v{VRN} offset:{PL}")
    a(f"ds_read_b128 {vr(UR, 4)}, v{VRN} offset:{PART0}")
    for i in range(4):
        a(f"v_mov_b32 v{ACC + i}, 0")
    if "noprio" not in OPT:
        a("s_setprio 2")
    a("s_waitcnt lgkmcnt(0)")
    stamp(a, 9)

    def mfma1(k, h):
        d = DA + 8 * (k & 1)
        a(f"v_mfma_f32_16x16x32_f16 {vr(d + 4 * h, 4)}, {vr(ASEL, 4)}, {vr(VB + 8 * k + 4 * h, 4)}, {vr(PR, 4)}")

    def tail1(k):
        d = DA + 8 * (k & 1)
        vb = VB + 8 * k
        for h in range(2):
            a(f"v_pk_mul_f32 {vr(DN + 2 * h, 2)}, {vr(d + 2 * h, 2)}, {vr(d + 4 + 2 * h, 2)}")
        for h in range(2):
            a(f"v_pk_mul_f32 {vr(NM + 2 * h, 2)}, {vr(vb + 2 * h, 2)}, {vr(d + 4 + 2 * h, 2)}")
        for h in range(2):
            a(f"v_pk_fma_f32 {vr(NM + 2 * h, 2)}, {vr(vb + 4 + 2 * h, 2)}, {vr(d + 2 * h, 2)}, {vr(NM + 2 * h, 2)}")

    def rcp2(h):
        a(f"v_rcp_f32 v{DN + 2 * h}, v{DN + 2 * h}")
        a(f"v_rcp_f32 v{DN + 2 * h + 1}, v{DN + 2 * h + 1}")

    def tail2():
        a(f"v_pk_fma_f32 {vr(ACC, 2)}, {vr(NM, 2)}, {vr(DN, 2)}, {vr(ACC, 2)}")
        a(f"v_pk_fma_f32 {vr(ACC + 2, 2)}, {vr(NM + 2, 2)}, {vr(DN + 2, 2)}, {vr(ACC + 2, 2)}")

    def read_idx(k):
        a(f"ds_read_u16 v{IX + 4 * k}, v{VL} offset:{8 * (RA + k)}")
        a(f"ds_read_u16 v{IX + 4 * k + 2}, v{VL} offset:{8 * (RA + k) + 4}")

    def read_e(k):
        a(f"ds_read_u16_d16_hi v{EV + 2 * k}, v{VL} offset:{8 * (RA + k) + 2}")
        a(f"ds_read_u16_d16_hi v{EV + 2 * k + 1}, v{VL} offset:{8 * (RA + k) + 6}")

    def gather(k):
        p = (k - 1) % NP
        if "nogather" not in OPT:
            for h in range(2):
                a(f"buffer_load_dwordx4 {vr(VB + 8 * p + 4 * h, 4)}, {vr(IX + 4 * p + 2 * h, 2)}, s[36:39], 0 idxen offen")

    def front(k):
        d = DA + 8 * (k & 1)
        ep = EV + 2 * k
        for h in range(2):
            osel = "op_sel:[1,0,0] op_sel_hi:[1,1,1]" if h else "op_sel_hi:[0,1,1]"
            a(f"v_pk_fma_f32 {vr(d + 4 * h, 2)}, {vr(ep, 2)}, {vr(CV, 2)}, {vr(d + 4 * h, 2)} {osel}")
            a(f"v_pk_fma_f32 {vr(d + 4 * h + 2, 2)}, {vr(ep, 2)}, {vr(CV + 2, 2)}, {vr(d + 4 * h + 2, 2)} {osel}")
        read_e(k)
        for i in range(8):
            a(f"v_exp_f32_e64 v{d + i}, v{d + i} clamp")
            if i == 5:
                a(f"v_pk_add_f32 {vr(d, 2)}, {vr(d, 2)}, s[66:67]")
        a(f"v_pk_add_f32 {vr(d + 2, 2)}, {vr(d + 2, 2)}, s[66:67]")
        a(f"v_pk_add_f32 {vr(d + 4, 2)}, {vr(d + 4, 2)}, s[66:67]")
        a(f"v_pk_add_f32 {vr(d + 6, 2)}, {vr(d + 6, 2)}, s[66:67]")

    def flush(k):
        a(f"s_cmp_lg_u32 s{SP}, 0")
        a(f"s_cbranch_scc1 L2_fin{k}")
        a(f"v_pk_fma_f32 {vr(UR, 2)}, {vr(ACC, 2)}, s[66:67], {vr(UR, 2)}")
        a(f"v_pk_fma_f32 {vr(UR + 2, 2)}, {vr(ACC + 2, 2)}, s[66:67], {vr(UR + 2, 2)}")
        a(f"ds_write_b128 v{VFL}, {vr(UR, 4)} offset:{PART0}")
        a(f"ds_add_u32 v{VQ}, v{VONE} offset:4")
        a(f"s_branch L2_fld{k}")
        a.label(f"L2_fin{k}")
        a(f"s_cmp_lg_u32 s{SDONE}, 0")
        a(f"s_cbranch_scc1 L2_rdy{k}")
        a("s_mov_b32 s25, 0")
        a.label(f"L2_spin{k}")
        a(f"v_mov_b32 v{T2}, 0")
        a(f"ds_read_b32 v{T2}, v{T2} offset:{MISC + 12}")
        a("s_waitcnt lgkmcnt(0)")
        a(f"v_readfirstlane_b32 s24, v{T2}")
        a("s_nop 3")
        a(f"s_cmp_ge_u32 s24, {NWIN // 2}")
        a(f"s_cbranch_scc1 L2_seen{k}")
        a("s_sleep 2")
        a("s_add_u32 s25, s25, 1")
        a("s_cmp_lt_u32 s25, 0x400000")
        a(f"s_cbranch_scc1 L2_spin{k}")
        a.label(f"L2_seen{k}")
        a(f"s_mov_b32 s{SDONE}, 1")
        a.label(f"L2_rdy{k}")
        a(f"ds_read_b128 {vr(UR, 4)}, v{VFL} offset:{PART0}")
        a("s_waitcnt lgkmcnt(0)")
        a(f"v_pk_fma_f32 {vr(UR, 2)}, {vr(ACC, 2)}, s[66:67], {vr(UR, 2)}")
        a(f"v_pk_fma_f32 {vr(UR + 2, 2)}, {vr(ACC + 2, 2)}, s[66:67], {vr(UR + 2, 2)}")
        a(f"v_pk_mul_f32 {vr(DN, 2)}, {vr(UR, 2)}, s[28:29]")
        a(f"v_pk_mul_f32 {vr(DN + 2, 2)}, {vr(UR + 2, 2)}, s[28:29]")
        for i in range(4):
            a(f"v_exp_f32 v{DN + i}, v{DN + i}")
        a(f"v_pk_add_f32 {vr(DN, 2)}, {vr(DN, 2)}, s[30:31]")
        a(f"v_pk_add_f32 {vr(DN + 2, 2)}, {vr(DN + 2, 2)}, s[30:31]")
        for i in range(4):
            a(f"v_rcp_f32 v{DN + i}, v{DN + i}")
        a(f"v_pk_mul_f32 {vr(UR, 2)}, {vr(UR, 2)}, {vr(DN, 2)}")
        a(f"v_pk_mul_f32 {vr(UR + 2, 2)}, {vr(UR + 2, 2)}, {vr(DN + 2, 2)}")
        a(f"v_cvt_pk_bf16_f32 v{NM}, v{UR}, v{UR + 1}")
        a(f"v_cvt_pk_bf16_f32 v{NM + 1}, v{UR + 2}, v{UR + 3}")
        a(f"global_store_dwordx2 v{VOC}, {vr(NM, 2)}, {sr(OUT)}{STO}")
        a.label(f"L2_fld{k}")

    VW = 2 * (RA - 2)
    a(f"s_cmp_eq_u32 s{SC}, s{STR}")
    a("s_cbranch_scc1 L2_pop_first")
    a.label("L2_first_cont")
    if "nogather" not in OPT:
        a(f"s_waitcnt vmcnt({VW})")
    mfma1(0, 0)
    mfma1(0, 1)
    read_idx(0)
    a("s_nop 2")
    gather(0)
    a("s_branch L2_mid0")

    a.label("L2_loop")
    for k in range(NP):
        pk = (k - 1) % NP
        a(f"s_cmp_eq_u32 s{SC}, s{STR}")
        a(f"s_cbranch_scc1 L2_ev{k}")
        a.label(f"L2_cont{k}")
        tail1(pk)
        if "nogather" not in OPT:
            a(f"s_waitcnt vmcnt({VW})")
        mfma1(k, 0)
        rcp2(0)
        mfma1(k, 1)
        rcp2(1)
        read_idx(k)
        tail2()
        a("s_waitcnt lgkmcnt(4)")
        gather(k)
        a.label(f"L2_mid{k}")
        front(k)
        a(f"s_sub_u32 s{SC}, s{SC}, 1")
        if k == NP - 1:
            a(f"v_add_u32 v{VL}, {8 * NP}, v{VL}")
            a("s_branch L2_loop")

    def pop(k, cont):
        a(f"ds_add_rtn_u32 v{T2}, v{VQ}, v{VONE}")
        a(f"s_mov_b32 s{STR}, 0")
        a("s_waitcnt lgkmcnt(0)")
        a(f"v_readfirstlane_b32 s{SI}, v{T2}")
        a(f"s_mov_b32 s{SNL}, 0")
        a(f"v_mov_b32 v{VL}, {LIST + DUMMY_COL - 8 * (RA + k)}")
        a("s_nop 1")
        a(f"s_cmp_lt_u32 s{SI}, {NWIN}")
        a(f"s_cbranch_scc0 {cont}")
        a(f"s_lshl_b32 s26, s{SI}, 4")
        a(f"v_add_u32 v{T2}, s26, v{VG4}")
        a(f"ds_read_b32 v{T3}, v{T2} offset:{WKEY}")
        a(f"v_readlane_b32 s{SNL}, v{VWL}, s{SI}")
        a("s_waitcnt lgkmcnt(0)")
        a(f"v_and_b32 v{VRN}, 0xffff, v{T3}")
        a(f"v_lshrrev_b32 v{VL}, 16, v{T3}")
        a(f"v_lshl_add_u32 v{VON}, v{VRN}, 7, v{VZ}")
        a(f"v_mad_u32_u24 v{VRN}, v{VRN}, s68, v{VJ}")
        a(f"v_add_u32 v{VL}, {LIST - 8 * (RA + k)}, v{VL}")
        a(f"s_branch {cont}")

    a.label("L2_pop_first")
    pop(0, "L2_first_cont")
    for k in range(NP):
        pk = (k - 1) % NP
        a.label(f"L2_ev{k}")
        a(f"s_cmp_eq_u32 s{STR}, 0")
        a(f"s_cbranch_scc1 L2_sw{k}")
        pop(k, f"L2_cont{k}")
        a.label(f"L2_sw{k}")
        tail1(pk)
        rcp2(0)
        rcp2(1)
        a("s_nop 0")
        tail2()
        flush(k)
        a(f"s_cmp_eq_u32 s{SNL}, 0")
        a("s_cbranch_scc1 L2_exit")
        a(f"ds_read_b128 {vr(PR, 4)}, v{VRN} offset:{PL}")
        a(f"ds_read_b128 {vr(UR, 4)}, v{VRN} offset:{PART0}")
        for i in range(4):
            a(f"v_mov_b32 v{ACC + i}, 0")
        a(f"v_mov_b32 v{VFL}, v{VRN}")
        a(f"v_mov_b32 v{VOC}, v{VON}")
        a(f"s_cmp_ge_u32 s{SI}, {NWIN // 2}")
        a(f"s_cselect_b32 s{SP}, 1, 0")
        a(f"s_mov_b32 s{SC}, s{SNL}")
        a(f"s_mov_b32 s{STR}, {RA}")
        if "noprio" not in OPT:
            a(f"s_cmp_lt_u32 s{SI}, {PRIO_B}")
            a(f"s_cbranch_scc1 L2_p1_{k}")
            a("s_setprio 0")
            a(f"s_branch L2_pd_{k}")
            a.label(f"L2_p1_{k}")
            a(f"s_cmp_lt_u32 s{SI}, {PRIO_A}")
            a(f"s_cbranch_scc1 L2_pd_{k}")
            a("s_setprio 1")
            a.label(f"L2_pd_{k}")
        a(f"s_cmp_eq_u32 s{SC}, {RA}")
        a(f"s_cbranch_scc0 L2_sw2_{k}")
        pop(k, f"L2_sw2_{k}")
        a.label(f"L2_sw2_{k}")
        if "nogather" not in OPT:
            a(f"s_waitcnt vmcnt({VW}) lgkmcnt(0)")
        else:
            a("s_waitcnt lgkmcnt(0)")
        mfma1(k, 0)
        mfma1(k, 1)
        read_idx(k)
        a("s_nop 2")
        gather(k)
        a(f"s_branch L2_mid{k}")

    a.label("L2_exit")
    stamp(a, 10)
    stamp(a, 11)
    stamp(a, 12)
    if STAMPS:
        a("s_waitcnt vmcnt(0)")
    stamp(a, 13)
    stamp(a, 21, True)
    stamp_flush(a, 1)
    a("s_endpgm")

    a.label("L2_slow")
    SSC, SCN, SRI = 61, 62, 63
    a(f"v_lshlrev_b32 v{T0}, 2, v{LANE}")
    a(f"v_lshlrev_b32 v{T1}, 1, v{LANE}")
    a(f"v_add_u32 v{T1}, {128 * 128}, v{T1}")
    a(f"global_load_ushort v{T2}, v{T1}, {sr(GW)}")
    a(f"s_mov_b32 s24, {LOG2E_NEG:#x}")
    a("s_waitcnt vmcnt(0) lgkmcnt(0)")
    a(f"v_lshlrev_b32 v{T2}, 16, v{T2}")
    a(f"v_mul_f32 v8, s24, v{T2}")
    a(f"s_mov_b32 s{SSC}, 0")
    a.label("L2_slow_seg")
    a(f"s_cmp_ge_u32 s{SSC}, {NC}")
    a("s_cbranch_scc1 L2_done")
    a(f"s_lshl_b32 s24, s{SSC}, 8")
    a("s_add_u32 s24, s24, s2")
    a("s_lshl_b32 s24, s24, 2")
    a(f"s_add_u32 s24, s24, {SEG_OFF}")
    a(f"v_mov_b32 v{T1}, s24")
    a(f"global_load_dword v{T2}, v{T1}, {sr(WS)}")
    a("s_waitcnt vmcnt(0)")
    a(f"v_readfirstlane_b32 s25, v{T2}")
    a("s_nop 3")
    a(f"s_lshr_b32 s{SCN}, s25, 16")
    a("s_and_b32 s25, s25, 0xffff")
    a(f"s_mul_i32 s26, s{SSC}, {EPC}")
    a("s_add_u32 s26, s26, s25")
    a("s_lshl_b32 s26, s26, 3")
    a(f"s_add_u32 s{SRI}, s26, {REC_OFF}")
    a.label("L2_slow_rec")
    a(f"s_cmp_eq_u32 s{SCN}, 0")
    a("s_cbranch_scc1 L2_slow_next")
    a(f"v_mov_b32 v{T1}, s{SRI}")
    a(f"global_load_dwordx2 v[10:11], v{T1}, {sr(WS)}")
    a(f"s_add_u32 s{SRI}, s{SRI}, 8")
    a(f"s_sub_u32 s{SCN}, s{SCN}, 1")
    a("s_waitcnt vmcnt(0)")
    a("v_and_b32 v14, 127, v11")
    a("v_and_b32 v15, 15, v14")
    a("s_nop 0")
    a("v_readfirstlane_b32 s25, v15")
    a("s_nop 3")
    a(f"s_cmp_lg_u32 s25, s{WAVE}")
    a("s_cbranch_scc1 L2_slow_rec")
    a("v_and_b32 v18, 0xffff, v10")
    a(f"v_mov_b32 v19, v{T0}")
    a("buffer_load_dword v13, v[18:19], s[36:39], 0 idxen offen")
    a(f"v_mul_u32_u24 v14, {ROW}, v14")
    a(f"v_add_u32 v14, v14, v{T0}")
    a(f"ds_read_b32 v15, v14 offset:{PL}")
    a(f"ds_read_b32 v17, v14 offset:{PART0}")
    a("v_and_b32 v11, 0xffff0000, v10")
    a("s_waitcnt vmcnt(0) lgkmcnt(0)")
    a("v_cvt_f32_f16 v16, v13")
    a("v_add_f32 v16, v16, v15")
    a("v_fmac_f32 v16, v11, v8")
    a("v_exp_f32 v16, v16")
    a(f"s_mov_b32 s25, {TINY:#x}")
    a("v_add_f32 v16, s25, v16")
    a("v_rcp_f32 v16, v16")
    a("s_nop 0")
    a("v_mul_f32 v16, s25, v16")
    a("v_fmac_f32 v17, v16, v13")
    a(f"ds_write_b32 v14, v17 offset:{PART0}")
    a("s_waitcnt lgkmcnt(0)")
    a("s_branch L2_slow_rec")
    a.label("L2_slow_next")
    a(f"s_add_u32 s{SSC}, s{SSC}, 1")
    a("s_branch L2_slow_seg")

    a.label("L2_done")
    stamp(a, 10)
    a("s_setprio 0")
    a(f"v_lshrrev_b32 v{T0}, 4, v{TID}")
    a(f"v_and_b32 v{T1}, 15, v{TID}")
    a(f"v_mul_u32_u24 v{T2}, {ROW}, v{T0}")
    a(f"v_lshl_add_u32 v{T2}, v{T1}, 4, v{T2}")
    a(f"s_mul_i32 s24, s2, {NPB * 128}")
    a(f"v_lshlrev_b32 v{T3}, 7, v{T0}")
    a(f"v_lshl_add_u32 v{T3}, v{T1}, 3, v{T3}")
    a(f"v_add_u32 v{T3}, s24, v{T3}")
    a(f"v_add_u32 v7, {64 * ROW}, v{T2}")
    a(f"v_add_u32 v6, {64 * 128}, v{T3}")
    a(f"s_mov_b32 s24, {LOG2E_NEG:#x}")
    a(f"s_mov_b32 s25, {LOG2E_NEG:#x}")
    a("s_mov_b32 s26, 1.0")
    a("s_mov_b32 s27, 1.0")
    a("s_waitcnt vmcnt(0) lgkmcnt(0)")
    a("s_barrier")
    stamp(a, 11)

    def silu_store(src, off):
        a(f"v_pk_mul_f32 {vr(src + 4, 2)}, {vr(src, 2)}, s[24:25]")
        a(f"v_pk_mul_f32 {vr(src + 6, 2)}, {vr(src + 2, 2)}, s[24:25]")
        for i in range(4):
            a(f"v_exp_f32 v{src + 4 + i}, v{src + 4 + i}")
        a(f"v_pk_add_f32 {vr(src + 4, 2)}, {vr(src + 4, 2)}, s[26:27]")
        a(f"v_pk_add_f32 {vr(src + 6, 2)}, {vr(src + 6, 2)}, s[26:27]")
        for i in range(4):
            a(f"v_rcp_f32 v{src + 4 + i}, v{src + 4 + i}")
        a(f"v_pk_mul_f32 {vr(src, 2)}, {vr(src, 2)}, {vr(src + 4, 2)}")
        a(f"v_pk_mul_f32 {vr(src + 2, 2)}, {vr(src + 2, 2)}, {vr(src + 6, 2)}")
        a(f"v_cvt_pk_bf16_f32 v{src + 4}, v{src}, v{src + 1}")
        a(f"v_cvt_pk_bf16_f32 v{src + 5}, v{src + 2}, v{src + 3}")
        a(f"global_store_dwordx2 v{off}, {vr(src + 4, 2)}, {sr(OUT)}{STO}")

    a(f"ds_read_b128 v[8:11], v{T2} offset:{PART0}")
    a(f"s_cmp_lt_u32 s{WAVE}, 9")
    a("s_cbranch_scc0 L2_ep1")
    a(f"ds_read_b128 v[16:19], v7 offset:{PART0}")
    a("s_waitcnt lgkmcnt(0)")
    silu_store(16, 6)
    a.label("L2_ep1")
    a("s_waitcnt lgkmcnt(0)")
    silu_store(8, T3)
    if "dbgt" in OPT:
        a("s_waitcnt vmcnt(0)")
    dbg_time(a, 1, 3)
    stamp(a, 12)
    if STAMPS:
        a("s_waitcnt vmcnt(0)")
    stamp(a, 13)
    stamp(a, 21, True)
    stamp_flush(a, 1)
    a.label("L2_end")
    a("s_endpgm")
    return LDS, 128


def descriptor(a, name, vgprs, sgprs=80):
    a(f".amdhsa_kernel {name}")
    a(f"  .amdhsa_next_free_vgpr {vgprs}")
    a(f"  .amdhsa_next_free_sgpr {sgprs}")
    a(f"  .amdhsa_accum_offset {vgprs}")
    a("  .amdhsa_group_segment_fixed_size 0")
    a("  .amdhsa_kernarg_size 80")
    a("  .amdhsa_user_sgpr_count 2")
    a("  .amdhsa_user_sgpr_kernarg_segment_ptr 1")
    a("  .amdhsa_system_sgpr_workgroup_id_x 1")
    a("  .amdhsa_float_denorm_mode_32 3")
    a(".end_amdhsa_kernel")


def main():
    global STAMPS, ST, STT, STR_, STO
    if "--stamps" in sys.argv:
        STAMPS = True
        sys.argv.remove("--stamps")
    for o in OPT:
        if o.startswith("st="):
            ST = STT = STR_ = " " + o[3:].replace("+", " ")
        if o.startswith("stt="):
            STT = " " + o[4:].replace("+", " ")
        if o.startswith("sto="):
            STO = " " + o[4:].replace("+", " ")
        if o.startswith("str="):
            STR_ = " " + o[4:].replace("+", " ")
    body = Asm()
    body(".amdgcn_target \"amdgcn-amd-amdhsa--gfx950\"")
    body(".text")
    lds1, v1 = gen_k1(body)
    lds2, v2 = gen_k2(body)
    body(".section .rodata,\"a\"")
    body(".p2align 6")
    descriptor(body, K1, 128 if (STAMPS or 'dbgt' in OPT) else v1)
    body(".p2align 6")
    descriptor(body, K2, v2)
    head = [
        "; Edge-gated MPNN layer in two launches (generated by a hand-written generator script).",
        "; launch 1: partitions the edges by destination bucket and builds the per-node source table",
        "; launch 2: per bucket of 100 nodes: sorts its edges, gated aggregation, SiLU epilogue",
        f"; @launch kernel={K1} grid=({NC},1,1) block=(1024,1,1) lds={lds1}",
        f"; @launch kernel={K2} grid=({NB},1,1) block=(1024,1,1) lds={lds2}",
    ]
    out = "\n".join(head) + "\n" + body.text()
    path = sys.argv[1] if len(sys.argv) > 1 else "standalone__edge_featured_mpnn_egc__graph.s"
    open(path, "w").write(out)
    print("wrote", path, "lds", lds1, lds2)


if __name__ == "__main__":
    main()
```

```python
import os
import sys

N = 25000
E = 800000
NB = 250
NPB = 100
NC = 250
EPC = 3200
HALF = 12500

T_OFF = 0
REC_OFF = int(os.environ.get('REC_OFF', '0x700000'), 0)
SEG_OFF = REC_OFF + 0x700000

LOG2E_NEG = 0xBFB8AA3B
SHIFT_NEG = 0xC2700000
TINY = 0x21800000
ROW = 272
XROW = 144

K1 = "egc_part_kernel"
K2 = "standalone__edge_featured_mpnn_egc__graph_kernel"

OPT = set(os.environ.get("OPT", "").split(","))
TOUCH0 = int(os.environ.get('TOUCH0', '12'))
PRIO_A = int(os.environ.get('PRIO_A', '25'))
PRIO_B = int(os.environ.get('PRIO_B', '38'))
STAMPS = False
STAMP_OFF = 0x2000000
SV = 127

X, EA, SRC, DST, UW, VW, GW, OUT, WS = 4, 6, 8, 10, 12, 14, 16, 18, 20
WAVE = 22


DBGS_SLOTS = {0: None, 1: 0, 3: 1, 4: 2, 5: 3, 6: 4, 8: 5, 9: 6, 10: 7}


def stamp(a, i, real=False):
    if "dbgs" in OPT and a.kernel == 2 and not real:
        a("s_memtime s[70:71]")
        a("s_waitcnt lgkmcnt(0)")
        a(f"v_writelane_b32 v127, s70, {i}")
        return
    if not STAMPS:
        return
    a(f"s_mem{'real' if real else ''}time s[70:71]")
    a("s_waitcnt lgkmcnt(0)")
    a(f"v_writelane_b32 v{SV}, s70, {i}")


TIME_OFF = 0x2800000


def dbg_time(a, which, slot, neg=False, tag=""):
    if "dbgt" not in OPT:
        return
    a("v_readfirstlane_b32 s78, v0")
    a("s_nop 3")
    a("s_cmp_lg_u32 s78, 0")
    a(f"s_cbranch_scc1 L_dbg_{which}_{slot}")
    a("s_memrealtime s[70:71]")
    a(f"s_load_dwordx2 s[74:75], s[0:1], {72 if which == 0 else 64}")
    a("s_waitcnt lgkmcnt(0)")
    if neg:
        a("s_not_b32 s70, s70")
    a("v_mov_b32 v125, s70")
    a("s_mov_b64 s[76:77], exec")
    a("s_mov_b64 exec, 1")
    if which == 0:
        a("s_lshl_b32 s78, s2, 3")
        a(f"s_add_u32 s78, s78, {TIME_OFF + slot * 4}")
        a("v_mov_b32 v126, s78")
        a("global_store_dword v126, v125, s[74:75]")
    else:
        a(f"v_mov_b32 v126, {slot * 4}")
        a("global_atomic_umax v126, v125, s[74:75]")
    a("s_mov_b64 exec, s[76:77]")
    if which == 1 and slot == 2:
        a("s_cmp_lg_u32 s2, 0")
        a(f"s_cbranch_scc1 L_dbg_{which}_{slot}")
        a("s_load_dwordx2 s[76:77], s[0:1], 72")
        a("s_waitcnt lgkmcnt(0)")
        for r in range(4):
            a(f"v_add_u32 v124, {64 * r}, v0")
            a("v_min_u32 v124, 249, v124")
            a("v_lshlrev_b32 v124, 3, v124")
            a(f"v_add_u32 v124, {TIME_OFF}, v124")
            a("global_load_dwordx2 v[122:123], v124, s[76:77]")
            a("s_waitcnt vmcnt(0)")
            a("v_mov_b32 v126, 16")
            a("global_atomic_umax v126, v122, s[74:75]")
            a("v_mov_b32 v126, 20")
            a("global_atomic_umax v126, v123, s[74:75]")
        a("s_waitcnt vmcnt(0)")
    a.label(f"L_dbg_{which}_{slot}")


def stamp_flush(a, which):
    if "dbgs" in OPT and which == 1:
        a("s_load_dwordx2 s[74:75], s[0:1], 64")
        a("v_readlane_b32 s70, v127, 0")
        a("s_waitcnt lgkmcnt(0)")
        a("v_subrev_u32 v126, s70, v127")
        a("v_and_b32 v125, 63, v0")
        a("v_cmp_gt_u32 vcc, 16, v125")
        a("v_lshlrev_b32 v125, 2, v125")
        a("s_and_saveexec_b64 s[76:77], vcc")
        a("global_atomic_umax v125, v126, s[74:75]")
        a("s_mov_b64 exec, s[76:77]")
        return
    if not STAMPS:
        return
    a("s_lshl_b32 s72, s2, 4")
    a(f"s_add_u32 s72, s72, s{WAVE}")
    a("s_lshl_b32 s72, s72, 8")
    a(f"s_add_u32 s72, s72, {STAMP_OFF + which * 0x200000}")
    a("v_and_b32 v126, 63, v0")
    a("v_lshlrev_b32 v126, 2, v126")
    a("v_add_u32 v126, s72, v126")
    a(f"global_store_dword v126, v{SV}, s[20:21]")


class Asm:
    def __init__(self):
        self.lines = []
        self.kernel = 1

    def __call__(self, s=""):
        for ln in s.split("\n"):
            self.lines.append(ln if ln.strip().endswith(":") else "    " + ln.strip())

    def label(self, s):
        self.lines.append(s + ":")

    def text(self):
        return "\n".join(self.lines) + "\n"


def vr(a, n):
    return f"v[{a}:{a + n - 1}]"


def sr(a, n=2):
    return f"s[{a}:{a + n - 1}]"


def wave_scan(a, v):
    for sh in (1, 2, 4, 8):
        a("s_nop 1")
        a(f"v_add_u32_dpp v{v}, v{v}, v{v} row_shr:{sh} row_mask:0xf bank_mask:0xf bound_ctrl:0")
    a("s_nop 1")
    a(f"v_add_u32_dpp v{v}, v{v}, v{v} row_bcast:15 row_mask:0xa bank_mask:0xf")
    a("s_nop 1")
    a(f"v_add_u32_dpp v{v}, v{v}, v{v} row_bcast:31 row_mask:0xc bank_mask:0xf")
    a("s_nop 1")


WSBASE = int(os.environ.get("WSBASE", "0"), 0)


def remap_wg(a, which):
    if f"noremap{which}" in OPT:
        return
    a("s_and_b32 s24, s2, 7")
    a("s_lshr_b32 s2, s2, 3")
    a("s_mov_b32 s23, s2")
    a("s_mul_i32 s25, s24, 31")
    a("s_min_u32 s24, s24, 2")
    a("s_add_u32 s2, s2, s25")
    a("s_add_u32 s2, s2, s24")


def warm_l2(a, lane, t0, t1, dst):
    for n in range(2):
        a(f"s_lshl_b32 s24, s{WAVE}, 7")
        a(f"s_add_u32 s24, s24, {n * 64}")
        a(f"v_add_u32 v{t0}, s24, v{lane}")
        a(f"v_min_u32 v{t0}, 1599, v{t0}")
        a(f"v_lshrrev_b32 v{t1}, 2, v{t0}")
        a("s_mul_i32 s24, s23, 400")
        a(f"v_add_u32 v{t1}, s24, v{t1}")
        a(f"v_min_u32 v{t1}, 12711, v{t1}")
        a(f"v_and_b32 v{t0}, 3, v{t0}")
        a(f"v_lshlrev_b32 v{t0}, 6, v{t0}")
        a(f"v_and_b32 v125, 0xfffff000, v{t1}")
        a(f"v_add_u32 v{t1}, v{t1}, v125")
        a(f"v_lshl_add_u32 v{t0}, v{t1}, 8, v{t0}")
        a(f"global_load_dword v{dst}, v{t0}, {sr(WS)}")


def load_ptrs(a):
    a("s_load_dwordx16 s[4:19], s[0:1], 0")
    a("s_load_dwordx2 s[20:21], s[0:1], 72")


def fix_ws(a):
    if WSBASE:
        a(f"s_add_u32 s20, s20, {WSBASE}")
        a("s_addc_u32 s21, s21, 0")


ST = ""
STT = ""
STR_ = ""
STO = ""


class Node:
    def __init__(self, a, WST, XST, tid, lane, vw, vx, t):
        self.a, self.WST, self.XST = a, WST, XST
        self.tid, self.lane, self.vw, self.vx, self.t = tid, lane, vw, vx, t

    def issue_loads(self, p0, off0, p1):
        a, t = self.a, self.t
        a(f"s_cmp_lt_u32 s{WAVE}, 8")
        a(f"s_cselect_b32 s24, s{p0}, s{p1}")
        a(f"s_cselect_b32 s25, s{p0 + 1}, s{p1 + 1}")
        if off0:
            a(f"s_cselect_b32 s26, {off0}, 0")
            a("s_add_u32 s24, s24, s26")
            a("s_addc_u32 s25, s25, 0")
        a(f"v_and_b32 v{t}, 511, v{self.tid}")
        a(f"v_lshlrev_b32 v{t}, 4, v{t}")
        a(f"global_load_dwordx4 {vr(self.vw, 4)}, v{t}, s[24:25]")
        a(f"v_min_u32 v{t}, {NPB * 8 - 1}, v{self.tid}")
        a(f"v_lshlrev_b32 v{t}, 4, v{t}")
        a(f"s_mul_i32 s26, s2, {NPB * 128}")
        a(f"v_add_u32 v{t}, s26, v{t}")
        a(f"global_load_dwordx4 {vr(self.vx, 4)}, v{t}, {sr(X)}")

    def stage(self):
        a, t, tid = self.a, self.t, self.tid
        a(f"v_bfe_u32 v{t}, v{tid}, 4, 1")
        a(f"v_bfe_u32 v{t + 1}, v{tid}, 6, 1")
        a(f"v_lshl_or_b32 v{t}, v{t + 1}, 1, v{t}")
        a(f"v_lshlrev_b32 v{t}, 5, v{t}")
        a(f"v_lshlrev_b32 v{t + 1}, 4, v{tid}")
        a(f"v_xor_b32 v{t}, v{t}, v{t + 1}")
        a(f"v_add_u32 v{t}, {self.WST}, v{t}")
        a(f"ds_write_b128 v{t}, {vr(self.vw, 4)}")
        a(f"v_lshrrev_b32 v{t}, 3, v{tid}")
        a(f"v_mul_u32_u24 v{t}, {XROW}, v{t}")
        a(f"v_and_b32 v{t + 1}, 7, v{tid}")
        a(f"v_lshl_add_u32 v{t}, v{t + 1}, 4, v{t}")
        a(f"v_add_u32 v{t}, {self.XST}, v{t}")
        a(f"v_cmp_gt_u32 vcc, {NPB * 8}, v{tid}")
        a("s_and_saveexec_b64 s[32:33], vcc")
        a(f"ds_write_b128 v{t}, {vr(self.vx, 4)}")
        a("s_mov_b64 exec, s[32:33]")

    def stage_addr(self, vw_a, vx_a, t):
        a, tid = self.a, self.tid
        a(f"v_bfe_u32 v{vw_a}, v{tid}, 4, 1")
        a(f"v_bfe_u32 v{t}, v{tid}, 6, 1")
        a(f"v_lshl_or_b32 v{vw_a}, v{t}, 1, v{vw_a}")
        a(f"v_lshlrev_b32 v{vw_a}, 5, v{vw_a}")
        a(f"v_lshlrev_b32 v{t}, 4, v{tid}")
        a(f"v_xor_b32 v{vw_a}, v{vw_a}, v{t}")
        a(f"v_add_u32 v{vw_a}, {self.WST}, v{vw_a}")
        a(f"v_lshrrev_b32 v{vx_a}, 3, v{tid}")
        a(f"v_mul_u32_u24 v{vx_a}, {XROW}, v{vx_a}")
        a(f"v_and_b32 v{t}, 7, v{tid}")
        a(f"v_lshl_add_u32 v{vx_a}, v{t}, 4, v{vx_a}")
        a(f"v_add_u32 v{vx_a}, {self.XST}, v{vx_a}")

    def stage_write(self, vw_a, vx_a):
        a, tid = self.a, self.tid
        a(f"ds_write_b128 v{vw_a}, {vr(self.vw, 4)}")
        a(f"v_cmp_gt_u32 vcc, {NPB * 8}, v{tid}")
        a("s_and_saveexec_b64 s[32:33], vcc")
        a(f"ds_write_b128 v{vx_a}, {vr(self.vx, 4)}")
        a("s_mov_b64 exec, s[32:33]")

    def pair_reads(self, aop, xop, vloc):
        a, t, lane = self.a, self.t, self.lane
        a(f"s_and_b32 s27, s{WAVE}, 1")
        a("s_lshl_b32 s27, s27, 1")
        a(f"s_lshr_b32 s26, s{WAVE}, 1")
        a(f"v_and_b32 v{t}, 15, v{lane}")
        a(f"v_lshrrev_b32 v{t + 1}, 4, v{lane}")
        a("s_lshl_b32 s26, s26, 4")
        a(f"v_add_u32 v{vloc}, s26, v{t}")
        a(f"v_mul_u32_u24 v{t + 2}, {XROW}, v{vloc}")
        a(f"v_lshl_add_u32 v{t + 2}, v{t + 1}, 4, v{t + 2}")
        a(f"v_add_u32 v{t + 2}, {self.XST}, v{t + 2}")
        a(f"ds_read_b128 {vr(xop, 4)}, v{t + 2}")
        a(f"ds_read_b128 {vr(xop + 4, 4)}, v{t + 2} offset:64")
        a(f"v_lshrrev_b32 v{t + 2}, 3, v{t}")
        a(f"v_and_b32 v{xop + 8}, 1, v{t + 1}")
        a(f"v_lshl_or_b32 v{t + 2}, v{xop + 8}, 1, v{t + 2}")
        a(f"v_xor_b32 v{t + 2}, s27, v{t + 2}")
        a(f"v_lshlrev_b32 v{t + 2}, 5, v{t + 2}")
        a(f"v_lshrrev_b32 v{xop + 8}, 2, v{t}")
        a(f"v_lshl_add_u32 v{xop + 8}, v{t + 1}, 3, v{xop + 8}")
        a(f"v_lshl_add_u32 v{t + 2}, v{xop + 8}, 7, v{t + 2}")
        a(f"v_and_b32 v{xop + 8}, 3, v{t}")
        a(f"v_lshl_add_u32 v{t + 2}, v{xop + 8}, 3, v{t + 2}")
        a(f"v_add_u32 v{t + 2}, {self.WST}, v{t + 2}")
        assert self.WST % 128 == 0
        for c in range(2):
            if c:
                a("s_waitcnt lgkmcnt(6)")
                a(f"v_xor_b32 v{t + 2}, 32, v{t + 2}")
            for m in range(2):
                for ks in range(2):
                    for hh in range(2):
                        r = aop + c * 16 + (m * 2 + ks) * 4 + hh * 2
                        a(f"ds_read_b64_tr_b16 {vr(r, 2)}, v{t + 2} offset:{m * 8192 + ks * 4096 + hh * 512}")

    def pair_mfma(self, aop, xop, dd):
        a = self.a
        for ks in range(2):
            for c in range(2):
                for m in range(2):
                    d = dd + (c * 2 + m) * 4
                    cop = "0" if ks == 0 else vr(d, 4)
                    a(f"v_mfma_f32_16x16x32_bf16 {vr(d, 4)}, {vr(aop + c * 16 + (m * 2 + ks) * 4, 4)}, {vr(xop + 4 * ks, 4)}, {cop}")


def copy_out(a, lds_addr_fn, goff_sgpr, t0, t1, d0, d1, tag):
    ST = STT if tag == "t" else STR_
    lds_addr_fn(0, t1)
    a(f"ds_read_b128 {vr(d0, 4)}, v{t1}")
    a(f"v_lshlrev_b32 v{t0}, 4, v0")
    a(f"v_add_u32 v{t0}, s{goff_sgpr}, v{t0}")
    a(f"s_cmp_gt_u32 s{WAVE}, 8")
    a(f"s_cbranch_scc1 L1_one{tag}")
    a(f"v_add_u32 v{t1}, 1024, v0")
    lds_addr_fn(t1, t1)
    a(f"ds_read_b128 {vr(d1, 4)}, v{t1}")
    a(f"v_add_u32 v{t1}, 16384, v{t0}")
    a("s_waitcnt lgkmcnt(0)")
    a(f"global_store_dwordx4 v{t1}, {vr(d1, 4)}, {sr(WS)}{ST}")
    a.label(f"L1_one{tag}")
    a("s_waitcnt lgkmcnt(0)")
    a(f"global_store_dwordx4 v{t0}, {vr(d0, 4)}, {sr(WS)}{ST}")


def gen_k1(a):
    HIST, BASE = 0, 1024
    WST = 2048
    XST = WST + 16384
    TST = XST + 112 * XROW
    STG = TST + NPB * ROW
    LDS = STG + EPC * 8
    TID, LANE = 0, 1
    T0, T1, T2, T3 = 2, 3, 14, 15
    VD, VS, VE = 4, 8, 12
    VW_, VX_ = 16, 20
    XOP = 24
    AOP = 36
    DD = 68
    PK = 84
    VLOC = 87
    VB, VR = 88, 92
    RP = 104
    NT = 100
    nd = Node(a, WST, XST, TID, LANE, VW_, VX_, NT)

    a(f".globl {K1}")
    a(".p2align 8")
    a(f".type {K1},@function")
    a.label(K1)
    a(f"s_cmp_ge_u32 s2, {NC}")
    a("s_cbranch_scc1 L1_end")
    dbg_time(a, 0, 0, True)
    stamp(a, 0)
    stamp(a, 20, True)
    load_ptrs(a)
    remap_wg(a, 1)
    a(f"v_and_b32 v{LANE}, 63, v{TID}")
    a(f"v_lshrrev_b32 v{T0}, 6, v{TID}")
    a(f"v_lshlrev_b32 v{T1}, 2, v{TID}")
    a(f"v_readfirstlane_b32 s{WAVE}, v{T0}")
    a(f"v_mov_b32 v{T0}, 0")
    a(f"s_cmp_lt_u32 s{WAVE}, 4")
    a("s_cbranch_scc0 L1_nozero")
    a(f"ds_write_b32 v{T1}, v{T0} offset:{HIST}")
    a.label("L1_nozero")
    a("s_waitcnt lgkmcnt(0)")
    fix_ws(a)
    stamp(a, 1)
    nd.issue_loads(GW, 8192, VW)
    a("s_barrier")
    a(f"s_cmp_gt_u32 s{WAVE}, 12")
    a("s_cbranch_scc1 L1_noedge0")
    a(f"s_mul_i32 s24, s2, {EPC * 4}")
    a(f"v_lshlrev_b32 v{T0}, 4, v{TID}")
    a(f"v_add_u32 v{T0}, s24, v{T0}")
    a(f"v_lshrrev_b32 v{T1}, 1, v{T0}")
    a(f"v_cmp_gt_u32 vcc, {EPC // 4}, v{TID}")
    a("s_and_saveexec_b64 s[32:33], vcc")
    a(f"global_load_dwordx4 {vr(VD, 4)}, v{T0}, {sr(DST)}")
    a(f"global_load_dwordx4 {vr(VS, 4)}, v{T0}, {sr(SRC)}")
    a(f"global_load_dwordx2 {vr(VE, 2)}, v{T1}, {sr(EA)}")
    a("s_mov_b64 exec, s[32:33]")
    a("s_waitcnt vmcnt(3)")
    a("s_branch L1_wx")
    a.label("L1_noedge0")
    a("s_waitcnt vmcnt(0)")
    a.label("L1_wx")
    stamp(a, 2)
    nd.stage()
    a("s_waitcnt lgkmcnt(0)")
    a("s_barrier")
    stamp(a, 3)
    a(f"s_cmp_gt_u32 s{WAVE}, 13")
    a("s_cbranch_scc1 L1_notask")
    nd.pair_reads(AOP, XOP, VLOC)
    a(f"v_mul_u32_u24 v{T0}, {ROW}, v{VLOC}")
    a(f"v_lshrrev_b32 v{T1}, 4, v{LANE}")
    a(f"v_lshl_add_u32 v{T0}, v{T1}, 4, v{T0}")
    a("s_lshl_b32 s30, s27, 6")
    a(f"s_add_u32 s30, s30, {TST}")
    a(f"v_add_u32 v{T0}, s30, v{T0}")
    a(f"s_mov_b32 s24, {LOG2E_NEG:#x}")
    a("s_mov_b32 s25, 0x7fff0000")
    a("s_mov_b32 s30, 0x7fffffff")
    VLO, VHI = 33, 34
    a(f"v_mov_b32 v{VLO}, 0xc77fe000")
    a(f"v_mov_b32 v{VHI}, 0x477fe000")
    a(f"v_cmp_gt_u32 vcc, {NPB}, v{VLOC}")
    a("s_waitcnt lgkmcnt(0)")
    nd.pair_mfma(AOP, XOP, DD)
    a("s_nop 5")
    for c in range(2):
        DQ, DH = DD + c * 8, DD + c * 8 + 4
        if c == 1:
            pass
        for i in range(4):
            a(f"v_mul_f32 v{DQ + i}, s24, v{DQ + i}")
        for i in range(4):
            a(f"v_med3_f32 v{DQ + i}, v{DQ + i}, v{VLO}, v{VHI}")
        a(f"v_cvt_pk_f16_f32 v{PK}, v{DQ}, v{DQ + 1}")
        a(f"v_cvt_pk_f16_f32 v{PK + 1}, v{DQ + 2}, v{DQ + 3}")
        for i in range(4):
            h = DH + i
            sel = "WORD_1" if i % 2 else "WORD_0"
            a(f"v_and_b32 v{DQ + i}, s30, v{h}")
            a(f"v_add_u32 v{DQ + i}, 0x8000, v{DQ + i}")
            a(f"v_sub_u32_sdwa v{DQ + i}, v{DQ + i}, v{PK + i // 2} clamp dst_sel:DWORD dst_unused:UNUSED_PAD src0_sel:DWORD src1_sel:{sel}")
        for i in range(4):
            h = DH + i
            a(f"v_bfi_b32 v{h}, s25, v{DQ + i}, v{h}")
        for i in range(4):
            h = DH + i
            sel = "WORD_1" if i % 2 else "WORD_0"
            a(f"v_mov_b32_sdwa v{h}, v{PK + i // 2} dst_sel:WORD_0 dst_unused:UNUSED_PRESERVE src0_sel:{sel}")
        a("s_and_saveexec_b64 s[32:33], vcc")
        a(f"ds_write_b128 v{T0}, {vr(DH, 4)} offset:{c * 64}")
        a("s_mov_b64 exec, s[32:33]")
    a.label("L1_notask")
    a("s_waitcnt lgkmcnt(0)")
    stamp(a, 4)
    a("s_barrier")

    a(f"s_sub_u32 s24, s{WAVE}, 13")
    a("s_cmp_lt_u32 s24, 2")
    a("s_cbranch_scc0 L1_not")
    a(f"v_lshrrev_b32 v{T0}, 4, v{LANE}")
    a(f"v_mul_u32_u24 v{T0}, {ROW}, v{T0}")
    a(f"v_and_b32 v{T1}, 15, v{LANE}")
    a(f"v_lshl_add_u32 v{T0}, v{T1}, 4, v{T0}")
    a(f"s_mul_i32 s25, s24, {13 * 4 * ROW}")
    a(f"s_add_u32 s25, s25, {TST}")
    a(f"v_add_u32 v{T0}, s25, v{T0}")
    a(f"s_mul_i32 s26, s2, {NPB * 256}")
    a(f"s_mul_i32 s25, s24, {13 * 1024}")
    a("s_add_u32 s26, s26, s25")
    a(f"v_lshlrev_b32 v{T1}, 4, v{LANE}")
    a(f"v_add_u32 v{T1}, s26, v{T1}")
    for n in range(12):
        a(f"ds_read_b128 {vr(16 + 4 * n, 4)}, v{T0} offset:{n * 4 * ROW}")
    a(f"v_add_u32 v{T2}, {12 * 1024}, v{T1}")
    a("s_cmp_eq_u32 s24, 0")
    a("s_cbranch_scc0 L1_t12")
    a(f"ds_read_b128 {vr(64, 4)}, v{T0} offset:{12 * 4 * ROW}")
    a("s_waitcnt lgkmcnt(0)")
    a(f"global_store_dwordx4 v{T2}, {vr(64, 4)}, {sr(WS)}{STT}")
    a.label("L1_t12")
    for n in range(12):
        a(f"s_waitcnt lgkmcnt({max(0, 11 - n)})")
        a(f"global_store_dwordx4 v{T1}, {vr(16 + 4 * n, 4)}, {sr(WS)} offset:{(n % 4) * 1024}{STT}")
        if n % 4 == 3:
            a(f"v_add_u32 v{T1}, 4096, v{T1}")
    if "readback" in OPT:
        a("s_waitcnt vmcnt(0)")
        a(f"v_subrev_u32 v{T1}, {3 * 4096}, v{T1}")
        for n in range(12):
            a(f"global_load_dwordx4 {vr(16 + 4 * n, 4)}, v{T1}, {sr(WS)} offset:{(n % 4) * 1024}")
            if n % 4 == 3:
                a(f"v_add_u32 v{T1}, 4096, v{T1}")
        a(f"global_load_dwordx4 {vr(64, 4)}, v{T2}, {sr(WS)}")
        a("s_waitcnt vmcnt(0)")
    if "wbl2" in OPT:
        a("s_waitcnt vmcnt(0)")
        a("buffer_wbl2 sc1")
        a("s_waitcnt vmcnt(0)")
    stamp(a, 5)
    if STAMPS:
        a("s_waitcnt vmcnt(0)")
    stamp(a, 11)
    stamp(a, 21, True)
    stamp_flush(a, 0)
    a("s_endpgm")
    a.label("L1_not")
    stamp(a, 5)
    a(f"s_cmp_gt_u32 s{WAVE}, 12")
    a("s_cbranch_scc1 L1_noedge1")
    a(f"v_cmp_gt_u32 vcc, {EPC // 4}, v{TID}")
    a("s_and_saveexec_b64 s[32:33], vcc")
    a(f"v_mov_b32 v{T1}, 1")
    a("s_movk_i32 s24, -100")
    a("s_mov_b32 s25, 0xffff0000")
    a("s_movk_i32 s30, 128")
    a("s_waitcnt vmcnt(0)")
    for i in range(4):
        a(f"v_mul_u32_u24 v{T0}, 5243, v{VD + i}")
        a(f"v_lshrrev_b32 v{T0}, 19, v{T0}")
        a(f"v_lshlrev_b32 v{VB + i}, 2, v{T0}")
        a(f"ds_add_rtn_u32 v{VR + i}, v{VB + i}, v{T1} offset:{HIST}")
        a(f"v_mad_i32_i24 v{T2}, v{T0}, s24, v{VD + i}")
        a(f"v_lshrrev_b32 v{T3}, 5, v{VS + i}")
        a(f"v_and_or_b32 v{RP + 2 * i + 1}, v{T3}, s30, v{T2}")
        if "smallsrc" in OPT:
            a(f"v_and_b32 v{VS + i}, 0x7ff, v{VS + i}")
        if i % 2 == 0:
            a(f"v_lshl_or_b32 v{RP + 2 * i}, v{VE + i // 2}, 16, v{VS + i}")
        else:
            a(f"v_and_or_b32 v{RP + 2 * i}, v{VE + i // 2}, s25, v{VS + i}")
    a("s_mov_b64 exec, s[32:33]")
    a.label("L1_noedge1")
    a("s_waitcnt lgkmcnt(0)")
    stamp(a, 6)
    a("s_barrier")
    stamp(a, 7)
    a(f"s_cmp_eq_u32 s{WAVE}, 15")
    a("s_cbranch_scc0 L1_b2")
    C0 = 24
    a(f"v_lshlrev_b32 v{T0}, 4, v{LANE}")
    a(f"ds_read_b128 {vr(C0, 4)}, v{T0} offset:{HIST}")
    a("s_waitcnt lgkmcnt(0)")
    P = 28
    a(f"v_add_u32 v{P + 2}, v{C0}, v{C0 + 1}")
    a(f"v_add_u32 v{P + 3}, v{P + 2}, v{C0 + 2}")
    a(f"v_add_u32 v32, v{P + 3}, v{C0 + 3}")
    a("v_mov_b32 v33, v32")
    wave_scan(a, 33)
    a(f"v_sub_u32 v{P}, v33, v32")
    a(f"v_add_u32 v{P + 1}, v{P}, v{C0}")
    a(f"v_add_u32 v{P + 2}, v{P}, v{P + 2}")
    a(f"v_add_u32 v{P + 3}, v{P}, v{P + 3}")
    a(f"ds_write_b128 v{T0}, {vr(P, 4)} offset:{BASE}")
    a("s_lshl_b32 s24, s2, 10")
    a(f"s_add_u32 s24, s24, {SEG_OFF}")
    a(f"v_add_u32 v{T1}, s24, v{T0}")
    for i in range(4):
        a(f"v_lshl_or_b32 v{36 + i}, v{C0 + i}, 16, v{P + i}")
    a(f"global_store_dwordx4 v{T1}, v[36:39], {sr(WS)}{ST}")
    a("s_cmp_lg_u32 s2, 0")
    a("s_cbranch_scc1 L1_b2")
    a(f"v_mov_b32 v{T2}, 0")
    a(f"v_lshlrev_b32 v{T3}, 2, v{LANE}")
    a(f"v_add_u32 v{T3}, {N * 256}, v{T3}")
    a(f"global_store_dword v{T3}, v{T2}, {sr(WS)}{ST}")
    a.label("L1_b2")
    a("s_waitcnt lgkmcnt(0)")
    stamp(a, 8)
    a("s_barrier")
    a(f"s_cmp_gt_u32 s{WAVE}, 12")
    a("s_cbranch_scc1 L1_noedge2")
    a(f"v_cmp_gt_u32 vcc, {EPC // 4}, v{TID}")
    a("s_and_saveexec_b64 s[32:33], vcc")
    for i in range(4):
        a(f"ds_read_b32 v{VD + i}, v{VB + i} offset:{BASE}")
    a(f"s_mov_b32 s24, {STG}")
    for i in range(4):
        a("s_waitcnt lgkmcnt(3)")
        a(f"v_add_u32 v{VD + i}, v{VD + i}, v{VR + i}")
        a(f"v_lshl_add_u32 v{VD + i}, v{VD + i}, 3, s24")
        a(f"ds_write_b64 v{VD + i}, {vr(RP + 2 * i, 2)}")
    a("s_mov_b64 exec, s[32:33]")
    a.label("L1_noedge2")
    a(f"s_min_u32 s25, s{WAVE}, 13")
    a("s_lshl_b32 s25, s25, 10")
    a(f"v_lshlrev_b32 v{T0}, 4, v{LANE}")
    a(f"v_add_u32 v{T0}, s25, v{T0}")
    a(f"v_add_u32 v{T1}, {STG}, v{T0}")
    a(f"s_mul_i32 s24, s2, {EPC * 8}")
    a(f"s_add_u32 s24, s24, {REC_OFF}")
    a(f"v_add_u32 v{T0}, s24, v{T0}")
    a("s_waitcnt lgkmcnt(0)")
    stamp(a, 9)
    a("s_barrier")
    a(f"ds_read_b128 v[24:27], v{T1}")
    a(f"s_cmp_gt_u32 s{WAVE}, 10")
    a("s_cbranch_scc1 L1_oner")
    a(f"ds_read_b128 v[28:31], v{T1} offset:{14 * 1024}")
    a(f"v_add_u32 v{T1}, {14 * 1024}, v{T0}")
    a("s_waitcnt lgkmcnt(0)")
    a(f"global_store_dwordx4 v{T1}, v[28:31], {sr(WS)}{STR_}")
    a.label("L1_oner")
    a("s_waitcnt lgkmcnt(0)")
    a(f"global_store_dwordx4 v{T0}, v[24:27], {sr(WS)}{STR_}")
    for o in OPT:
        if o.startswith("delay="):
            n = int(o[6:])
            a(f"s_movk_i32 s24, {n}")
            a.label("L1_dly")
            a("s_sleep 16")
            a("s_sub_u32 s24, s24, 1")
            a("s_cmp_lg_u32 s24, 0")
            a("s_cbranch_scc1 L1_dly")
    if "dbgt" in OPT:
        a("s_waitcnt vmcnt(0)")
    dbg_time(a, 0, 1)
    stamp(a, 10)
    if STAMPS:
        a("s_waitcnt vmcnt(0)")
    stamp(a, 11)
    stamp(a, 21, True)
    stamp_flush(a, 0)
    a.label("L1_end")
    a("s_endpgm")
    return LDS, 112


def gen_k2(a):
    a.kernel = 2
    HIST = 0
    HIST2 = HIST + 1024
    BASE2 = HIST2 + 1024
    WCNT = BASE2 + 1024
    WKEY = WCNT + 1024
    MISC = WKEY + 1024
    SCR = MISC + 256
    ZERO = SCR + 256
    PL = ZERO + 256
    PART0 = PL + NPB * ROW
    WST = (PART0 + NPB * ROW + 127) // 128 * 128
    XST = WST + 16384
    LIST = XST + NPB * XROW
    CAPK = 48
    COL = CAPK * 4
    LISTB = 228 * COL
    LDS = LIST + LISTB + 64
    assert PART0 + 64 * ROW < 65536 and LDS <= 163840, LDS
    NWIN = 50
    DUMMY_COL = 100 * COL

    TID, LANE = 0, 1
    T0, T1, T2, T3 = 2, 3, 4, 5
    RB = 6
    REM = 7
    RECS = 8
    RANK = 24
    VW_, VX_ = 32, 36
    XOP = 40
    AOP = 52
    DD = 84
    VLOC = 49
    NT = 100
    VLB = 103
    ASEL = 112
    VJ, VG4, VQ, VONE = 116, 117, 118, 119
    CV = 120
    VZ = 124
    VXA, VWA, VPA, VSH = 104, 105, 106, 107
    MASK = 40
    nd = Node(a, WST, XST, TID, LANE, VW_, VX_, NT)

    a(f".globl {K2}")
    a(".p2align 8")
    a(f".type {K2},@function")
    a.label(K2)
    a(f"s_cmp_ge_u32 s2, {NB}")
    a("s_cbranch_scc1 L2_end")
    dbg_time(a, 1, 2, True)
    for o in OPT:
        if o.startswith("nops="):
            for _ in range(int(o[5:])):
                a("s_nop 0")
        if o.startswith("slit="):
            for _ in range(int(o[5:])):
                a("s_mov_b32 s24, 0x12345678")
        if o.startswith("slil="):
            a(f"s_movk_i32 s25, {int(o[5:]) // 16}")
            a.label("L2_slil")
            for _ in range(13):
                a("s_mov_b32 s24, 0x12345678")
            a("s_sub_u32 s25, s25, 1")
            a("s_cmp_lg_u32 s25, 0")
            a("s_cbranch_scc1 L2_slil")
        if o.startswith("nopl="):
            a(f"s_movk_i32 s24, {int(o[5:]) // 16}")
            a.label("L2_nopl")
            for _ in range(13):
                a("s_nop 0")
            a("s_sub_u32 s24, s24, 1")
            a("s_cmp_lg_u32 s24, 0")
            a("s_cbranch_scc1 L2_nopl")
    stamp(a, 0)
    stamp(a, 20, True)
    load_ptrs(a)
    remap_wg(a, 2)
    a(f"v_and_b32 v{LANE}, 63, v{TID}")
    a(f"v_lshrrev_b32 v{T0}, 6, v{TID}")
    a(f"v_lshlrev_b32 v{T1}, 2, v{TID}")
    a(f"v_readfirstlane_b32 s{WAVE}, v{T0}")
    a(f"v_lshrrev_b32 v{RB}, 2, v{TID}")
    a(f"v_lshlrev_b32 v{RB}, 10, v{RB}")
    a("s_lshl_b32 s24, s2, 2")
    a(f"s_add_u32 s24, s24, {SEG_OFF}")
    a(f"v_add_u32 v{RB}, s24, v{RB}")
    a("s_waitcnt lgkmcnt(0)")
    fix_ws(a)
    stamp(a, 1)
    a(f"global_load_dword v{REM}, v{RB}, {sr(WS)}")
    nd.issue_loads(GW, 0, UW)
    a(f"v_and_b32 v{T0}, 15, v{LANE}")
    a(f"v_lshlrev_b32 v{VJ}, 4, v{T0}")
    a(f"v_lshrrev_b32 v{T2}, 1, v{VJ}")
    a(f"v_add_u32 v{T2}, {128 * 128}, v{T2}")
    a(f"global_load_dwordx2 {vr(CV + 2, 2)}, v{T2}, {sr(GW)}")
    a(f"v_mov_b32 v{T0}, 0")
    a(f"s_cmp_lt_u32 s{WAVE}, 4")
    a("s_cbranch_scc0 L2_nozero")
    a(f"ds_write_b32 v{T1}, v{T0} offset:{HIST}")
    a(f"ds_write_b32 v{T1}, v{T0} offset:{HIST2}")
    a.label("L2_nozero")
    a(f"s_cmp_eq_u32 s{WAVE}, 4")
    a("s_cbranch_scc0 L2_nozero2")
    a(f"v_lshlrev_b32 v{T2}, 2, v{LANE}")
    a(f"v_cmp_eq_u32 vcc, 2, v{LANE}")
    a("s_nop 1")
    a(f"v_cndmask_b32 v{T3}, 0, 16, vcc")
    a(f"ds_write_b32 v{T2}, v{T3} offset:{MISC}")
    a(f"ds_write_b32 v{T2}, v{T0} offset:{ZERO}")
    a.label("L2_nozero2")
    a(f"v_lshrrev_b32 v{RB}, 2, v{TID}")
    a(f"v_mul_u32_u24 v{RB}, {EPC}, v{RB}")
    a(f"v_and_b32 v{T3}, 3, v{TID}")
    a(f"v_lshlrev_b32 v{T3}, 1, v{T3}")
    a(f"v_add_u32 v{RB}, v{RB}, v{T3}")
    a(f"v_lshlrev_b32 v{RB}, 3, v{RB}")
    a(f"v_add_u32 v{RB}, {REC_OFF}, v{RB}")
    a(f"v_cmp_gt_u32 vcc, {NC * 4}, v{TID}")
    a("s_waitcnt vmcnt(3)")
    stamp(a, 2)
    a(f"v_cndmask_b32 v{REM}, 0, v{REM}, vcc")
    a(f"v_and_b32 v{T2}, 0xffff, v{REM}")
    a(f"v_lshrrev_b32 v{REM}, 16, v{REM}")
    a(f"v_lshl_add_u32 v{RB}, v{T2}, 3, v{RB}")
    a(f"v_cmp_lt_u32 s[56:57], 32, v{REM}")
    a(f"v_sub_u32 v{REM}, v{REM}, v{T3}")
    for r in range(4):
        a(f"v_cmp_gt_i32 {sr(MASK + 4 * r)}, v{REM}, {8 * r}")
    a("s_nop 1")
    a("s_mov_b32 s58, 0")
    for r in range(4):
        m = MASK + 4 * r
        a(f"s_mov_b64 exec, {sr(m)}")
        a("s_cbranch_execz L2_recs_done")
        a(f"global_load_dwordx4 {vr(RECS + 4 * r, 4)}, v{RB}, {sr(WS)} offset:{64 * r}")
        a(f"s_mov_b32 s58, {r + 1}")
    a.label("L2_recs_done")
    a("s_mov_b64 exec, -1")
    if "earlytouch" in OPT:
        a(f"s_cmp_lt_u32 s{WAVE}, {TOUCH0}")
        a("s_cbranch_scc1 L2_notouche")
        a(f"s_sub_u32 s25, s{WAVE}, {TOUCH0}")
        a(f"s_cmp_gt_u32 s25, 3")
        a("s_cbranch_scc1 L2_notouche")
        a("s_lshl_b32 s25, s25, 6")
        a(f"v_add_u32 v{T2}, s25, v{LANE}")
        a(f"v_min_u32 v{T2}, {NPB * 2 - 1}, v{T2}")
        a(f"v_lshlrev_b32 v{T2}, 7, v{T2}")
        a(f"s_mul_i32 s24, s2, {NPB * 256}")
        a(f"v_add_u32 v{T2}, s24, v{T2}")
        a(f"global_load_dword v126, v{T2}, {sr(WS)}")
        a("s_add_u32 s58, s58, 1")
        a.label("L2_notouche")
    for r in range(4):
        a(f"v_cmp_gt_i32 {sr(MASK + 4 * r + 2)}, v{REM}, {8 * r + 1}")
    for i in range(4):
        a(f"v_mov_b32 v{XOP + i}, {N}")
    a(f"v_lshlrev_b32 v{T2}, 4, v{TID}")
    a(f"v_add_u32 v{T2}, {LIST}, v{T2}")
    a(f"ds_write_b128 v{T2}, {vr(XOP, 4)}")
    a(f"ds_write_b128 v{T2}, {vr(XOP, 4)} offset:16384")
    nlast = LISTB // 16 - 2048
    a(f"v_cmp_gt_u32 vcc, {nlast}, v{TID}")
    a("s_and_saveexec_b64 s[32:33], vcc")
    a(f"ds_write_b128 v{T2}, {vr(XOP, 4)} offset:32768")
    a("s_mov_b64 exec, s[32:33]")
    a(f"v_and_b32 v{T0}, 15, v{LANE}")
    a(f"v_lshrrev_b32 v{T1}, 4, v{LANE}")
    a(f"v_lshlrev_b32 v{VG4}, 2, v{T1}")
    a(f"s_mul_i32 s24, s2, {NPB * 128}")
    a(f"v_lshrrev_b32 v{VZ}, 1, v{VJ}")
    a(f"v_add_u32 v{VZ}, s24, v{VZ}")
    a(f"v_mov_b32 v{VONE}, 1")
    a(f"v_mov_b32 v{VLB}, {LIST}")
    a(f"v_lshlrev_b32 v{VQ}, 2, v{LANE}")
    a(f"v_add_u32 v{VQ}, {SCR}, v{VQ}")
    a(f"v_cmp_eq_u32 vcc, 0, v{LANE}")
    a(f"v_mov_b32 v{T3}, {MISC + 8}")
    a(f"v_lshrrev_b32 v{T2}, 2, v{T0}")
    a(f"v_cndmask_b32 v{VQ}, v{VQ}, v{T3}, vcc")
    a(f"v_cmp_eq_u32 vcc, v{T2}, v{T1}")
    a(f"v_mov_b32 v{T3}, 0x3c00")
    a(f"v_and_b32 v{T2}, 3, v{T0}")
    a(f"v_cndmask_b32 v{T3}, 0, v{T3}, vcc")
    for q in range(4):
        a(f"v_cmp_eq_u32 vcc, {q}, v{T2}")
        a("s_nop 1")
        a(f"v_cndmask_b32 v{ASEL + q}, 0, v{T3}, vcc")
    a(f"s_mov_b32 s36, s{WS}")
    a(f"s_and_b32 s37, s{WS + 1}, 0xffff")
    a("s_or_b32 s37, s37, 0x1000000")
    a(f"s_mov_b32 s38, {N + 1}")
    a("s_mov_b32 s39, 0x20000")
    a(f"s_mov_b32 s66, {TINY:#x}")
    a(f"s_mov_b32 s67, {TINY:#x}")
    for k in range(4):
        a(f"v_mov_b32 v{76 + 4 * k + 1}, v{VJ}")
        a(f"v_mov_b32 v{76 + 4 * k + 3}, v{VJ}")
        a(f"v_mov_b32 v{92 + 2 * k}, 0")
        a(f"v_mov_b32 v{92 + 2 * k + 1}, 0")
    nd.stage_addr(NT, NT + 1, NT + 2)
    a(f"s_and_b32 s27, s{WAVE}, 3")
    a(f"s_lshr_b32 s26, s{WAVE}, 2")
    a("s_lshl_b32 s26, s26, 5")
    a(f"v_and_b32 v{T0}, 15, v{LANE}")
    a(f"v_lshrrev_b32 v{T1}, 4, v{LANE}")
    a(f"v_add_u32 v{T2}, s26, v{T0}")
    a(f"v_mul_u32_u24 v{VXA}, {XROW}, v{T2}")
    a(f"v_lshl_add_u32 v{VXA}, v{T1}, 4, v{VXA}")
    a(f"v_add_u32 v{VXA}, {XST}, v{VXA}")
    a(f"v_mul_u32_u24 v{VPA}, {ROW}, v{T2}")
    a(f"v_lshl_add_u32 v{VPA}, v{T1}, 4, v{VPA}")
    a("s_lshl_b32 s30, s27, 6")
    a(f"v_add_u32 v{VPA}, s30, v{VPA}")
    a(f"v_lshrrev_b32 v{T2}, 3, v{T0}")
    a(f"v_and_b32 v{T3}, 1, v{T1}")
    a(f"v_lshl_or_b32 v{T2}, v{T3}, 1, v{T2}")
    a(f"v_xor_b32 v{T2}, s27, v{T2}")
    a(f"v_lshlrev_b32 v{T2}, 5, v{T2}")
    a(f"v_lshrrev_b32 v{T3}, 2, v{T0}")
    a(f"v_lshl_add_u32 v{T3}, v{T1}, 3, v{T3}")
    a(f"v_lshl_add_u32 v{T2}, v{T3}, 7, v{T2}")
    a(f"v_and_b32 v{T3}, 3, v{T0}")
    a(f"v_lshl_add_u32 v{T2}, v{T3}, 3, v{T2}")
    a(f"v_add_u32 v{VWA}, {WST}, v{T2}")
    a(f"v_mov_b32 v{VSH}, {SHIFT_NEG:#x}")
    a(f"v_cmp_gt_u32 s[34:35], 4, v{T0}")
    for n in range(5 if "earlytouch" in OPT else 4, -1, -1):
        if n:
            a(f"s_cmp_lg_u32 s58, {n}")
            a(f"s_cbranch_scc1 L2_wx{n}")
        a(f"s_waitcnt vmcnt({n})")
        if n:
            a("s_branch L2_wxdone")
            a.label(f"L2_wx{n}")
    a.label("L2_wxdone")
    stamp(a, 3)
    nd.stage_write(NT, NT + 1)
    a(f"s_mov_b32 s24, {LOG2E_NEG:#x}")
    a(f"v_lshlrev_b32 v{CV}, 16, v{CV + 2}")
    a(f"v_and_b32 v{CV + 1}, 0xffff0000, v{CV + 2}")
    a(f"v_lshlrev_b32 v{CV + 2}, 16, v{CV + 3}")
    a(f"v_and_b32 v{CV + 3}, 0xffff0000, v{CV + 3}")
    for i in range(4):
        a(f"v_mul_f32 v{CV + i}, s24, v{CV + i}")
    a("s_waitcnt lgkmcnt(0)")
    a("s_barrier")
    stamp(a, 4)
    a("s_cmp_eq_u64 s[56:57], 0")
    a("s_cbranch_scc1 L2_noflag")
    a(f"v_mov_b32 v{T2}, 0")
    a(f"ds_write_b32 v{T2}, v{VONE} offset:{MISC}")
    a.label("L2_noflag")
    A0, BA, BB_ = 32, 48, 56
    DP0, DU0 = 64, 68

    def pu_block(tag, two):
        a(f"ds_read_b128 {vr(BA, 4)}, v{VXA}")
        a(f"ds_read_b128 {vr(BA + 4, 4)}, v{VXA} offset:64")
        for m in range(2):
            for ks in range(2):
                for hh in range(2):
                    a(f"ds_read_b64_tr_b16 {vr(A0 + (m * 2 + ks) * 4 + hh * 2, 2)}, v{VWA} offset:{m * 8192 + ks * 4096 + hh * 512}")
        if two:
            a(f"ds_read_b128 {vr(BB_, 4)}, v{VXA} offset:{16 * XROW}")
            a(f"ds_read_b128 {vr(BB_ + 4, 4)}, v{VXA} offset:{16 * XROW + 64}")
        a(f"s_mov_b32 s24, {LOG2E_NEG:#x}")
        a(f"s_waitcnt lgkmcnt({2 if two else 0})")
        a(f"v_mfma_f32_16x16x32_bf16 {vr(DP0, 4)}, {vr(A0, 4)}, {vr(BA, 4)}, 0")
        a(f"v_mfma_f32_16x16x32_bf16 {vr(DU0, 4)}, {vr(A0 + 8, 4)}, {vr(BA, 4)}, 0")
        a(f"v_mfma_f32_16x16x32_bf16 {vr(DP0, 4)}, {vr(A0 + 4, 4)}, {vr(BA + 4, 4)}, {vr(DP0, 4)}")
        a(f"v_mfma_f32_16x16x32_bf16 {vr(DU0, 4)}, {vr(A0 + 12, 4)}, {vr(BA + 4, 4)}, {vr(DU0, 4)}")
        if two:
            a("s_waitcnt lgkmcnt(0)")
            a(f"v_mfma_f32_16x16x32_bf16 {vr(BA, 4)}, {vr(A0, 4)}, {vr(BB_, 4)}, 0")
            a(f"v_mfma_f32_16x16x32_bf16 {vr(BA + 4, 4)}, {vr(A0 + 8, 4)}, {vr(BB_, 4)}, 0")
            a(f"v_mfma_f32_16x16x32_bf16 {vr(BA, 4)}, {vr(A0 + 4, 4)}, {vr(BB_ + 4, 4)}, {vr(BA, 4)}")
            a(f"v_mfma_f32_16x16x32_bf16 {vr(BA + 4, 4)}, {vr(A0 + 12, 4)}, {vr(BB_ + 4, 4)}, {vr(BA + 4, 4)}")
            a("s_nop 3")
        else:
            a("s_mov_b64 exec, s[34:35]")
            a("s_nop 6")
        for i in range(4):
            a(f"v_fma_f32 v{DP0 + i}, v{DP0 + i}, s24, v{VSH}")
        a(f"ds_write_b128 v{VPA}, {vr(DP0, 4)} offset:{PL}")
        a(f"ds_write_b128 v{VPA}, {vr(DU0, 4)} offset:{PART0}")
        if two:
            for i in range(4):
                a(f"v_fma_f32 v{BA + i}, v{BA + i}, s24, v{VSH}")
            a(f"ds_write_b128 v{VPA}, {vr(BA, 4)} offset:{PL + 16 * ROW}")
            a(f"ds_write_b128 v{VPA}, {vr(BA + 4, 4)} offset:{PART0 + 16 * ROW}")
        else:
            a("s_mov_b64 exec, -1")

    a(f"s_cmp_gt_u32 s{WAVE}, 11")
    a("s_cbranch_scc1 L2_pu_last")
    pu_block("a", True)
    a("s_branch L2_pu_end")
    a.label("L2_pu_last")
    pu_block("b", False)
    a.label("L2_pu_end")
    a(f"s_movk_i32 s59, {COL}")
    if "earlytouch" in OPT:
        a(f"s_sub_u32 s24, s{WAVE}, {TOUCH0}")
        a("s_cmp_lt_u32 s24, 4")
        a("s_cbranch_scc0 L2_wall")
        a("s_waitcnt vmcnt(1)")
        a("s_branch L2_wall2")
        a.label("L2_wall")
        a("s_waitcnt vmcnt(0)")
        a.label("L2_wall2")
    else:
        a("s_waitcnt vmcnt(0)")
    stamp(a, 5)
    if "ttouch" in OPT and "earlytouch" not in OPT:
        a(f"s_cmp_lt_u32 s{WAVE}, {TOUCH0}")
        a("s_cbranch_scc1 L2_notouch")
        a(f"s_sub_u32 s25, s{WAVE}, {TOUCH0}")
        a(f"s_cmp_gt_u32 s25, 3")
        a("s_cbranch_scc1 L2_notouch")
        a("s_lshl_b32 s25, s25, 6")
        a(f"v_add_u32 v{T2}, s25, v{LANE}")
        a(f"v_min_u32 v{T2}, {NPB * 2 - 1}, v{T2}")
        a(f"v_lshlrev_b32 v{T2}, 7, v{T2}")
        a(f"s_mul_i32 s24, s2, {NPB * 256}")
        a(f"v_add_u32 v{T2}, s24, v{T2}")
        a(f"global_load_dword v126, v{T2}, {sr(WS)}")
        a.label("L2_notouch")
    for r in range(4):
        if r >= 2:
            a(f"s_cmp_eq_u64 {sr(MASK + 4 * r)}, 0")
            a(f"s_cbranch_scc1 L2_h{r}")
        for s_ in range(2):
            k = 2 * r + s_
            hi = RECS + 4 * r + 2 * s_ + 1
            a(f"s_mov_b64 exec, {sr(MASK + 2 * k)}")
            a(f"v_lshlrev_b32 v{T1}, 2, v{hi}")
            a(f"ds_add_rtn_u32 v{RANK + k}, v{T1}, v{VONE} offset:{HIST}")
            a(f"v_mad_u32_u24 v{hi}, v{hi}, s59, v{VLB}")
        if r >= 2:
            a.label(f"L2_h{r}")
    a("s_mov_b64 exec, -1")
    a("s_waitcnt lgkmcnt(0)")
    for r in range(4):
        if r >= 2:
            a(f"s_cmp_eq_u64 {sr(MASK + 4 * r)}, 0")
            a(f"s_cbranch_scc1 L2_s{r}")
        for s_ in range(2):
            k = 2 * r + s_
            lo = RECS + 4 * r + 2 * s_
            hi = lo + 1
            a(f"s_mov_b64 exec, {sr(MASK + 2 * k)}")
            a(f"v_min_u32 v{RANK + k}, 63, v{RANK + k}")
            a(f"v_lshl_add_u32 v{hi}, v{RANK + k}, 2, v{hi}")
            a(f"ds_write_b32 v{hi}, v{lo}")
        if r >= 2:
            a.label(f"L2_s{r}")
    a("s_mov_b64 exec, -1")
    a("s_waitcnt lgkmcnt(0)")
    stamp(a, 6)
    a("s_barrier")
    a(f"s_cmp_eq_u32 s{WAVE}, 15")
    a("s_cbranch_scc0 L2_b2")

    a.label("L2_order")
    a("s_setprio 3")
    CN, BN, RK = 64, 68, 72
    S0 = 56
    a(f"v_lshlrev_b32 v{T0}, 4, v{LANE}")
    a(f"ds_read_b128 {vr(CN, 4)}, v{T0} offset:{HIST}")
    a(f"v_lshrrev_b32 v{T1}, 5, v{LANE}")
    a(f"v_and_b32 v{T2}, 31, v{LANE}")
    a(f"v_cmp_gt_u32 vcc, 25, v{T2}")
    a(f"v_lshlrev_b32 v{T3}, 8, v{T1}")
    a(f"v_add_u32 v{T3}, {63 * 4}, v{T3}")
    a(f"v_mov_b32 v{S0}, {(128 + 63) * 4}")
    a(f"v_cndmask_b32 v{T3}, v{S0}, v{T3}, vcc")
    a(f"v_lshlrev_b32 v{T2}, 2, v{T2}")
    a(f"v_mul_u32_u24 v{T1}, {4 * COL}, v{LANE}")
    a(f"v_lshl_or_b32 v{T1}, v{T1}, 16, v{T2}")
    a("s_waitcnt lgkmcnt(0)")
    a(f"v_max3_u32 v{S0 + 1}, v{CN}, v{CN + 1}, v{CN + 2}")
    a(f"v_max_u32 v{S0 + 1}, v{S0 + 1}, v{CN + 3}")
    for i in range(4):
        a(f"v_min_u32 v{BN + i}, 63, v{CN + i}")
        a(f"v_lshlrev_b32 v{BN + i}, 2, v{BN + i}")
        a(f"v_sub_u32 v{BN + i}, v{T3}, v{BN + i}")
        a(f"ds_add_rtn_u32 v{RK + i}, v{BN + i}, v{VONE} offset:{HIST2}")
    a(f"ds_read_b128 {vr(S0 + 4, 4)}, v{T0} offset:{HIST2}")
    a(f"v_cmp_lt_u32 vcc, {CAPK}, v{S0 + 1}")
    a("s_cbranch_vccz L2_nocap")
    a(f"v_mov_b32 v{S0}, 0")
    a(f"ds_write_b32 v{S0}, v{VONE} offset:{MISC}")
    a.label("L2_nocap")
    a("s_waitcnt lgkmcnt(0)")
    a(f"v_add_u32 v{S0 + 1}, v{S0 + 4}, v{S0 + 5}")
    a(f"v_add_u32 v{S0 + 2}, v{S0 + 1}, v{S0 + 6}")
    a(f"v_add_u32 v{S0 + 3}, v{S0 + 2}, v{S0 + 7}")
    a(f"v_mov_b32 v{S0}, v{S0 + 3}")
    wave_scan(a, S0)
    a(f"v_sub_u32 v{S0}, v{S0}, v{S0 + 3}")
    a(f"v_add_u32 v{S0 + 3}, v{S0}, v{S0 + 2}")
    a(f"v_add_u32 v{S0 + 2}, v{S0}, v{S0 + 1}")
    a(f"v_add_u32 v{S0 + 1}, v{S0}, v{S0 + 4}")
    a(f"ds_write_b128 v{T0}, {vr(S0, 4)} offset:{BASE2}")
    for i in range(4):
        a(f"ds_read_b32 v{S0 + 4 + i}, v{BN + i} offset:{BASE2}")
    a("s_waitcnt lgkmcnt(0)")
    for i in range(4):
        a(f"v_add_u32 v{RK + i}, v{RK + i}, v{S0 + 4 + i}")
        a(f"v_lshlrev_b32 v{RK + i}, 2, v{RK + i}")
        a(f"v_add_u32 v{S0}, {i * ((COL << 16) + 1)}, v{T1}")
        a(f"ds_write_b32 v{RK + i}, v{CN + i} offset:{WCNT}")
        a(f"ds_write_b32 v{RK + i}, v{S0} offset:{WKEY}")
    a("s_setprio 0")
    a.label("L2_b2")
    a("s_waitcnt lgkmcnt(0)")
    stamp(a, 7)
    a("s_barrier")
    stamp(a, 8)
    if "noprio" not in OPT:
        a("s_setprio 3")
    NP = 4
    RA = 4
    PR = 8
    ACC = 12
    UR = 16
    DN = 20
    NM = 24
    DA = 28
    VB = 44
    IX = 76
    EV = 92
    VL = 100
    VFL = 101
    VRN = 103
    VWL = 125
    SC, SNL, SI = 61, 62, 63
    STR = 64
    SP, SDONE = 58, 59
    VOC, VON = 104, 105
    a(f"s_movk_i32 s68, {ROW}")
    assert IX == 76 and EV == 92
    a(f"v_mov_b32 v{T0}, 0")
    a(f"ds_read_b32 v{T1}, v{T0} offset:{MISC}")
    a(f"v_lshlrev_b32 v{T2}, 4, v{LANE}")
    a(f"ds_read_b32 v{VWL}, v{T2} offset:{WCNT}")
    a(f"s_lshl_b32 s26, s{WAVE}, 4")
    a(f"v_add_u32 v{T2}, s26, v{VG4}")
    a(f"ds_read_b32 v{T3}, v{T2} offset:{WKEY}")
    a("s_waitcnt lgkmcnt(0)")
    a(f"v_readfirstlane_b32 s24, v{T1}")
    a(f"v_add_u32 v{VWL}, 1, v{VWL}")
    a(f"v_lshrrev_b32 v{VWL}, 1, v{VWL}")
    a(f"v_max_u32 v{VWL}, {RA}, v{VWL}")
    a(f"v_lshrrev_b32 v{VL}, 16, v{T3}")
    a(f"v_add_u32 v{VL}, {LIST}, v{VL}")
    a("s_cmp_lg_u32 s24, 0")
    a("s_cbranch_scc1 L2_slow")
    for k in range(RA):
        a(f"ds_read_u16 v{IX + 4 * k}, v{VL} offset:{8 * k}")
        a(f"ds_read_u16 v{IX + 4 * k + 2}, v{VL} offset:{8 * k + 4}")
    a(f"v_and_b32 v{VRN}, 0xffff, v{T3}")
    a(f"v_mad_u32_u24 v{VRN}, v{VRN}, s68, v{VJ}")
    a(f"v_mov_b32 v{VFL}, v{VRN}")
    a(f"s_mov_b32 s{SP}, 0")
    a(f"s_mov_b32 s{SDONE}, 0")
    a(f"s_mov_b32 s28, {LOG2E_NEG:#x}")
    a(f"s_mov_b32 s29, {LOG2E_NEG:#x}")
    a("s_mov_b32 s30, 1.0")
    a("s_mov_b32 s31, 1.0")
    a(f"v_readlane_b32 s{SC}, v{VWL}, s{WAVE}")
    a(f"s_mov_b32 s{STR}, {RA}")
    a(f"s_mov_b32 s{SI}, s{WAVE}")
    a("s_waitcnt lgkmcnt(0)")
    for k in range(RA - 1):
        for h in range(2):
            a(f"buffer_load_dwordx4 {vr(VB + 8 * k + 4 * h, 4)}, {vr(IX + 4 * k + 2 * h, 2)}, s[36:39], 0 idxen offen")
    for k in range(RA):
        a(f"ds_read_u16_d16_hi v{EV + 2 * k}, v{VL} offset:{8 * k + 2}")
        a(f"ds_read_u16_d16_hi v{EV + 2 * k + 1}, v{VL} offset:{8 * k + 6}")
    a(f"ds_read_b128 {vr(PR, 4)}, v{VRN} offset:{PL}")
    a(f"ds_read_b128 {vr(UR, 4)}, v{VRN} offset:{PART0}")
    for i in range(4):
        a(f"v_mov_b32 v{ACC + i}, 0")
    if "noprio" not in OPT:
        a("s_setprio 2")
    a("s_waitcnt lgkmcnt(0)")
    stamp(a, 9)

    def mfma1(k, h):
        d = DA + 8 * (k & 1)
        a(f"v_mfma_f32_16x16x32_f16 {vr(d + 4 * h, 4)}, {vr(ASEL, 4)}, {vr(VB + 8 * k + 4 * h, 4)}, {vr(PR, 4)}")

    def tail1(k):
        d = DA + 8 * (k & 1)
        vb = VB + 8 * k
        for h in range(2):
            a(f"v_pk_mul_f32 {vr(DN + 2 * h, 2)}, {vr(d + 2 * h, 2)}, {vr(d + 4 + 2 * h, 2)}")
        for h in range(2):
            a(f"v_pk_mul_f32 {vr(NM + 2 * h, 2)}, {vr(vb + 2 * h, 2)}, {vr(d + 4 + 2 * h, 2)}")
        for h in range(2):
            a(f"v_pk_fma_f32 {vr(NM + 2 * h, 2)}, {vr(vb + 4 + 2 * h, 2)}, {vr(d + 2 * h, 2)}, {vr(NM + 2 * h, 2)}")

    def rcp2(h):
        a(f"v_rcp_f32 v{DN + 2 * h}, v{DN + 2 * h}")
        a(f"v_rcp_f32 v{DN + 2 * h + 1}, v{DN + 2 * h + 1}")

    def tail2():
        a(f"v_pk_fma_f32 {vr(ACC, 2)}, {vr(NM, 2)}, {vr(DN, 2)}, {vr(ACC, 2)}")
        a(f"v_pk_fma_f32 {vr(ACC + 2, 2)}, {vr(NM + 2, 2)}, {vr(DN + 2, 2)}, {vr(ACC + 2, 2)}")

    def read_idx(k):
        a(f"ds_read_u16 v{IX + 4 * k}, v{VL} offset:{8 * (RA + k)}")
        a(f"ds_read_u16 v{IX + 4 * k + 2}, v{VL} offset:{8 * (RA + k) + 4}")

    def read_e(k):
        a(f"ds_read_u16_d16_hi v{EV + 2 * k}, v{VL} offset:{8 * (RA + k) + 2}")
        a(f"ds_read_u16_d16_hi v{EV + 2 * k + 1}, v{VL} offset:{8 * (RA + k) + 6}")

    def gather(k):
        p = (k - 1) % NP
        if "nogather" not in OPT:
            for h in range(2):
                a(f"buffer_load_dwordx4 {vr(VB + 8 * p + 4 * h, 4)}, {vr(IX + 4 * p + 2 * h, 2)}, s[36:39], 0 idxen offen")

    def front(k):
        d = DA + 8 * (k & 1)
        ep = EV + 2 * k
        for h in range(2):
            osel = "op_sel:[1,0,0] op_sel_hi:[1,1,1]" if h else "op_sel_hi:[0,1,1]"
            a(f"v_pk_fma_f32 {vr(d + 4 * h, 2)}, {vr(ep, 2)}, {vr(CV, 2)}, {vr(d + 4 * h, 2)} {osel}")
            a(f"v_pk_fma_f32 {vr(d + 4 * h + 2, 2)}, {vr(ep, 2)}, {vr(CV + 2, 2)}, {vr(d + 4 * h + 2, 2)} {osel}")
        read_e(k)
        for i in range(8):
            a(f"v_exp_f32_e64 v{d + i}, v{d + i} clamp")
            if i == 5:
                a(f"v_pk_add_f32 {vr(d, 2)}, {vr(d, 2)}, s[66:67]")
        a(f"v_pk_add_f32 {vr(d + 2, 2)}, {vr(d + 2, 2)}, s[66:67]")
        a(f"v_pk_add_f32 {vr(d + 4, 2)}, {vr(d + 4, 2)}, s[66:67]")
        a(f"v_pk_add_f32 {vr(d + 6, 2)}, {vr(d + 6, 2)}, s[66:67]")

    def flush(k):
        a(f"s_cmp_lg_u32 s{SP}, 0")
        a(f"s_cbranch_scc1 L2_fin{k}")
        a(f"v_pk_fma_f32 {vr(UR, 2)}, {vr(ACC, 2)}, s[66:67], {vr(UR, 2)}")
        a(f"v_pk_fma_f32 {vr(UR + 2, 2)}, {vr(ACC + 2, 2)}, s[66:67], {vr(UR + 2, 2)}")
        a(f"ds_write_b128 v{VFL}, {vr(UR, 4)} offset:{PART0}")
        a(f"ds_add_u32 v{VQ}, v{VONE} offset:4")
        a(f"s_branch L2_fld{k}")
        a.label(f"L2_fin{k}")
        a(f"s_cmp_lg_u32 s{SDONE}, 0")
        a(f"s_cbranch_scc1 L2_rdy{k}")
        a("s_mov_b32 s25, 0")
        a.label(f"L2_spin{k}")
        a(f"v_mov_b32 v{T2}, 0")
        a(f"ds_read_b32 v{T2}, v{T2} offset:{MISC + 12}")
        a("s_waitcnt lgkmcnt(0)")
        a(f"v_readfirstlane_b32 s24, v{T2}")
        a("s_nop 3")
        a(f"s_cmp_ge_u32 s24, {NWIN // 2}")
        a(f"s_cbranch_scc1 L2_seen{k}")
        a("s_sleep 2")
        a("s_add_u32 s25, s25, 1")
        a("s_cmp_lt_u32 s25, 0x400000")
        a(f"s_cbranch_scc1 L2_spin{k}")
        a.label(f"L2_seen{k}")
        a(f"s_mov_b32 s{SDONE}, 1")
        a.label(f"L2_rdy{k}")
        a(f"ds_read_b128 {vr(UR, 4)}, v{VFL} offset:{PART0}")
        a("s_waitcnt lgkmcnt(0)")
        a(f"v_pk_fma_f32 {vr(UR, 2)}, {vr(ACC, 2)}, s[66:67], {vr(UR, 2)}")
        a(f"v_pk_fma_f32 {vr(UR + 2, 2)}, {vr(ACC + 2, 2)}, s[66:67], {vr(UR + 2, 2)}")
        a(f"v_pk_mul_f32 {vr(DN, 2)}, {vr(UR, 2)}, s[28:29]")
        a(f"v_pk_mul_f32 {vr(DN + 2, 2)}, {vr(UR + 2, 2)}, s[28:29]")
        for i in range(4):
            a(f"v_exp_f32 v{DN + i}, v{DN + i}")
        a(f"v_pk_add_f32 {vr(DN, 2)}, {vr(DN, 2)}, s[30:31]")
        a(f"v_pk_add_f32 {vr(DN + 2, 2)}, {vr(DN + 2, 2)}, s[30:31]")
        for i in range(4):
            a(f"v_rcp_f32 v{DN + i}, v{DN + i}")
        a(f"v_pk_mul_f32 {vr(UR, 2)}, {vr(UR, 2)}, {vr(DN, 2)}")
        a(f"v_pk_mul_f32 {vr(UR + 2, 2)}, {vr(UR + 2, 2)}, {vr(DN + 2, 2)}")
        a(f"v_cvt_pk_bf16_f32 v{NM}, v{UR}, v{UR + 1}")
        a(f"v_cvt_pk_bf16_f32 v{NM + 1}, v{UR + 2}, v{UR + 3}")
        a(f"global_store_dwordx2 v{VOC}, {vr(NM, 2)}, {sr(OUT)}{STO}")
        a.label(f"L2_fld{k}")

    VW = 2 * (RA - 2)
    a(f"s_cmp_eq_u32 s{SC}, s{STR}")
    a("s_cbranch_scc1 L2_pop_first")
    a.label("L2_first_cont")
    if "nogather" not in OPT:
        a(f"s_waitcnt vmcnt({VW})")
    mfma1(0, 0)
    mfma1(0, 1)
    read_idx(0)
    a("s_nop 2")
    gather(0)
    a("s_branch L2_mid0")

    a.label("L2_loop")
    for k in range(NP):
        pk = (k - 1) % NP
        a(f"s_cmp_eq_u32 s{SC}, s{STR}")
        a(f"s_cbranch_scc1 L2_ev{k}")
        a.label(f"L2_cont{k}")
        tail1(pk)
        if "nogather" not in OPT:
            a(f"s_waitcnt vmcnt({VW})")
        mfma1(k, 0)
        rcp2(0)
        mfma1(k, 1)
        rcp2(1)
        read_idx(k)
        tail2()
        a("s_waitcnt lgkmcnt(4)")
        gather(k)
        a.label(f"L2_mid{k}")
        front(k)
        a(f"s_sub_u32 s{SC}, s{SC}, 1")
        if k == NP - 1:
            a(f"v_add_u32 v{VL}, {8 * NP}, v{VL}")
            a("s_branch L2_loop")

    def pop(k, cont):
        a(f"ds_add_rtn_u32 v{T2}, v{VQ}, v{VONE}")
        a(f"s_mov_b32 s{STR}, 0")
        a("s_waitcnt lgkmcnt(0)")
        a(f"v_readfirstlane_b32 s{SI}, v{T2}")
        a(f"s_mov_b32 s{SNL}, 0")
        a(f"v_mov_b32 v{VL}, {LIST + DUMMY_COL - 8 * (RA + k)}")
        a("s_nop 1")
        a(f"s_cmp_lt_u32 s{SI}, {NWIN}")
        a(f"s_cbranch_scc0 {cont}")
        a(f"s_lshl_b32 s26, s{SI}, 4")
        a(f"v_add_u32 v{T2}, s26, v{VG4}")
        a(f"ds_read_b32 v{T3}, v{T2} offset:{WKEY}")
        a(f"v_readlane_b32 s{SNL}, v{VWL}, s{SI}")
        a("s_waitcnt lgkmcnt(0)")
        a(f"v_and_b32 v{VRN}, 0xffff, v{T3}")
        a(f"v_lshrrev_b32 v{VL}, 16, v{T3}")
        a(f"v_lshl_add_u32 v{VON}, v{VRN}, 7, v{VZ}")
        a(f"v_mad_u32_u24 v{VRN}, v{VRN}, s68, v{VJ}")
        a(f"v_add_u32 v{VL}, {LIST - 8 * (RA + k)}, v{VL}")
        a(f"s_branch {cont}")

    a.label("L2_pop_first")
    pop(0, "L2_first_cont")
    for k in range(NP):
        pk = (k - 1) % NP
        a.label(f"L2_ev{k}")
        a(f"s_cmp_eq_u32 s{STR}, 0")
        a(f"s_cbranch_scc1 L2_sw{k}")
        pop(k, f"L2_cont{k}")
        a.label(f"L2_sw{k}")
        tail1(pk)
        rcp2(0)
        rcp2(1)
        a("s_nop 0")
        tail2()
        flush(k)
        a(f"s_cmp_eq_u32 s{SNL}, 0")
        a("s_cbranch_scc1 L2_exit")
        a(f"ds_read_b128 {vr(PR, 4)}, v{VRN} offset:{PL}")
        a(f"ds_read_b128 {vr(UR, 4)}, v{VRN} offset:{PART0}")
        for i in range(4):
            a(f"v_mov_b32 v{ACC + i}, 0")
        a(f"v_mov_b32 v{VFL}, v{VRN}")
        a(f"v_mov_b32 v{VOC}, v{VON}")
        a(f"s_cmp_ge_u32 s{SI}, {NWIN // 2}")
        a(f"s_cselect_b32 s{SP}, 1, 0")
        a(f"s_mov_b32 s{SC}, s{SNL}")
        a(f"s_mov_b32 s{STR}, {RA}")
        if "noprio" not in OPT:
            a(f"s_cmp_lt_u32 s{SI}, {PRIO_B}")
            a(f"s_cbranch_scc1 L2_p1_{k}")
            a("s_setprio 0")
            a(f"s_branch L2_pd_{k}")
            a.label(f"L2_p1_{k}")
            a(f"s_cmp_lt_u32 s{SI}, {PRIO_A}")
            a(f"s_cbranch_scc1 L2_pd_{k}")
            a("s_setprio 1")
            a.label(f"L2_pd_{k}")
        a(f"s_cmp_eq_u32 s{SC}, {RA}")
        a(f"s_cbranch_scc0 L2_sw2_{k}")
        pop(k, f"L2_sw2_{k}")
        a.label(f"L2_sw2_{k}")
        if "nogather" not in OPT:
            a(f"s_waitcnt vmcnt({VW}) lgkmcnt(0)")
        else:
            a("s_waitcnt lgkmcnt(0)")
        mfma1(k, 0)
        mfma1(k, 1)
        read_idx(k)
        a("s_nop 2")
        gather(k)
        a(f"s_branch L2_mid{k}")

    a.label("L2_exit")
    stamp(a, 10)
    stamp(a, 11)
    stamp(a, 12)
    if STAMPS or "dbgs" in OPT:
        a("s_waitcnt vmcnt(0)")
    stamp(a, 13)
    stamp(a, 21, True)
    stamp_flush(a, 1)
    a("s_endpgm")

    a.label("L2_slow")
    SSC, SCN, SRI = 61, 62, 63
    a(f"v_lshlrev_b32 v{T0}, 2, v{LANE}")
    a(f"v_lshlrev_b32 v{T1}, 1, v{LANE}")
    a(f"v_add_u32 v{T1}, {128 * 128}, v{T1}")
    a(f"global_load_ushort v{T2}, v{T1}, {sr(GW)}")
    a(f"s_mov_b32 s24, {LOG2E_NEG:#x}")
    a("s_waitcnt vmcnt(0) lgkmcnt(0)")
    a(f"v_lshlrev_b32 v{T2}, 16, v{T2}")
    a(f"v_mul_f32 v8, s24, v{T2}")
    a(f"s_mov_b32 s{SSC}, 0")
    a.label("L2_slow_seg")
    a(f"s_cmp_ge_u32 s{SSC}, {NC}")
    a("s_cbranch_scc1 L2_done")
    a(f"s_lshl_b32 s24, s{SSC}, 8")
    a("s_add_u32 s24, s24, s2")
    a("s_lshl_b32 s24, s24, 2")
    a(f"s_add_u32 s24, s24, {SEG_OFF}")
    a(f"v_mov_b32 v{T1}, s24")
    a(f"global_load_dword v{T2}, v{T1}, {sr(WS)}")
    a("s_waitcnt vmcnt(0)")
    a(f"v_readfirstlane_b32 s25, v{T2}")
    a("s_nop 3")
    a(f"s_lshr_b32 s{SCN}, s25, 16")
    a("s_and_b32 s25, s25, 0xffff")
    a(f"s_mul_i32 s26, s{SSC}, {EPC}")
    a("s_add_u32 s26, s26, s25")
    a("s_lshl_b32 s26, s26, 3")
    a(f"s_add_u32 s{SRI}, s26, {REC_OFF}")
    a.label("L2_slow_rec")
    a(f"s_cmp_eq_u32 s{SCN}, 0")
    a("s_cbranch_scc1 L2_slow_next")
    a(f"v_mov_b32 v{T1}, s{SRI}")
    a(f"global_load_dwordx2 v[10:11], v{T1}, {sr(WS)}")
    a(f"s_add_u32 s{SRI}, s{SRI}, 8")
    a(f"s_sub_u32 s{SCN}, s{SCN}, 1")
    a("s_waitcnt vmcnt(0)")
    a("v_and_b32 v14, 127, v11")
    a("v_and_b32 v15, 15, v14")
    a("s_nop 0")
    a("v_readfirstlane_b32 s25, v15")
    a("s_nop 3")
    a(f"s_cmp_lg_u32 s25, s{WAVE}")
    a("s_cbranch_scc1 L2_slow_rec")
    a("v_and_b32 v18, 0xffff, v10")
    a(f"v_mov_b32 v19, v{T0}")
    a("buffer_load_dword v13, v[18:19], s[36:39], 0 idxen offen")
    a(f"v_mul_u32_u24 v14, {ROW}, v14")
    a(f"v_add_u32 v14, v14, v{T0}")
    a(f"ds_read_b32 v15, v14 offset:{PL}")
    a(f"ds_read_b32 v17, v14 offset:{PART0}")
    a("v_and_b32 v11, 0xffff0000, v10")
    a("s_waitcnt vmcnt(0) lgkmcnt(0)")
    a("v_cvt_f32_f16 v16, v13")
    a("v_add_f32 v16, v16, v15")
    a("v_fmac_f32 v16, v11, v8")
    a("v_exp_f32 v16, v16")
    a(f"s_mov_b32 s25, {TINY:#x}")
    a("v_add_f32 v16, s25, v16")
    a("v_rcp_f32 v16, v16")
    a("s_nop 0")
    a("v_mul_f32 v16, s25, v16")
    a("v_fmac_f32 v17, v16, v13")
    a(f"ds_write_b32 v14, v17 offset:{PART0}")
    a("s_waitcnt lgkmcnt(0)")
    a("s_branch L2_slow_rec")
    a.label("L2_slow_next")
    a(f"s_add_u32 s{SSC}, s{SSC}, 1")
    a("s_branch L2_slow_seg")

    a.label("L2_done")
    stamp(a, 10)
    a("s_setprio 0")
    a(f"v_lshrrev_b32 v{T0}, 4, v{TID}")
    a(f"v_and_b32 v{T1}, 15, v{TID}")
    a(f"v_mul_u32_u24 v{T2}, {ROW}, v{T0}")
    a(f"v_lshl_add_u32 v{T2}, v{T1}, 4, v{T2}")
    a(f"s_mul_i32 s24, s2, {NPB * 128}")
    a(f"v_lshlrev_b32 v{T3}, 7, v{T0}")
    a(f"v_lshl_add_u32 v{T3}, v{T1}, 3, v{T3}")
    a(f"v_add_u32 v{T3}, s24, v{T3}")
    a(f"v_add_u32 v7, {64 * ROW}, v{T2}")
    a(f"v_add_u32 v6, {64 * 128}, v{T3}")
    a(f"s_mov_b32 s24, {LOG2E_NEG:#x}")
    a(f"s_mov_b32 s25, {LOG2E_NEG:#x}")
    a("s_mov_b32 s26, 1.0")
    a("s_mov_b32 s27, 1.0")
    a("s_waitcnt vmcnt(0) lgkmcnt(0)")
    a("s_barrier")
    stamp(a, 11)

    def silu_store(src, off):
        a(f"v_pk_mul_f32 {vr(src + 4, 2)}, {vr(src, 2)}, s[24:25]")
        a(f"v_pk_mul_f32 {vr(src + 6, 2)}, {vr(src + 2, 2)}, s[24:25]")
        for i in range(4):
            a(f"v_exp_f32 v{src + 4 + i}, v{src + 4 + i}")
        a(f"v_pk_add_f32 {vr(src + 4, 2)}, {vr(src + 4, 2)}, s[26:27]")
        a(f"v_pk_add_f32 {vr(src + 6, 2)}, {vr(src + 6, 2)}, s[26:27]")
        for i in range(4):
            a(f"v_rcp_f32 v{src + 4 + i}, v{src + 4 + i}")
        a(f"v_pk_mul_f32 {vr(src, 2)}, {vr(src, 2)}, {vr(src + 4, 2)}")
        a(f"v_pk_mul_f32 {vr(src + 2, 2)}, {vr(src + 2, 2)}, {vr(src + 6, 2)}")
        a(f"v_cvt_pk_bf16_f32 v{src + 4}, v{src}, v{src + 1}")
        a(f"v_cvt_pk_bf16_f32 v{src + 5}, v{src + 2}, v{src + 3}")
        a(f"global_store_dwordx2 v{off}, {vr(src + 4, 2)}, {sr(OUT)}{STO}")

    a(f"ds_read_b128 v[8:11], v{T2} offset:{PART0}")
    a(f"s_cmp_lt_u32 s{WAVE}, 9")
    a("s_cbranch_scc0 L2_ep1")
    a(f"ds_read_b128 v[16:19], v7 offset:{PART0}")
    a("s_waitcnt lgkmcnt(0)")
    silu_store(16, 6)
    a.label("L2_ep1")
    a("s_waitcnt lgkmcnt(0)")
    silu_store(8, T3)
    if "dbgt" in OPT:
        a("s_waitcnt vmcnt(0)")
    dbg_time(a, 1, 3)
    stamp(a, 12)
    if STAMPS:
        a("s_waitcnt vmcnt(0)")
    stamp(a, 13)
    stamp(a, 21, True)
    stamp_flush(a, 1)
    a.label("L2_end")
    a("s_endpgm")
    return LDS, 128


def descriptor(a, name, vgprs, sgprs=80):
    a(f".amdhsa_kernel {name}")
    a(f"  .amdhsa_next_free_vgpr {vgprs}")
    a(f"  .amdhsa_next_free_sgpr {sgprs}")
    a(f"  .amdhsa_accum_offset {vgprs}")
    a("  .amdhsa_group_segment_fixed_size 0")
    a("  .amdhsa_kernarg_size 80")
    a("  .amdhsa_user_sgpr_count 2")
    a("  .amdhsa_user_sgpr_kernarg_segment_ptr 1")
    a("  .amdhsa_system_sgpr_workgroup_id_x 1")
    a("  .amdhsa_float_denorm_mode_32 3")
    a(".end_amdhsa_kernel")


def main():
    global STAMPS, ST, STT, STR_, STO
    if "--stamps" in sys.argv:
        STAMPS = True
        sys.argv.remove("--stamps")
    for o in OPT:
        if o.startswith("st="):
            ST = STT = STR_ = " " + o[3:].replace("+", " ")
        if o.startswith("stt="):
            STT = " " + o[4:].replace("+", " ")
        if o.startswith("sto="):
            STO = " " + o[4:].replace("+", " ")
        if o.startswith("str="):
            STR_ = " " + o[4:].replace("+", " ")
    body = Asm()
    body(".amdgcn_target \"amdgcn-amd-amdhsa--gfx950\"")
    body(".text")
    lds1, v1 = gen_k1(body)
    lds2, v2 = gen_k2(body)
    body(".section .rodata,\"a\"")
    body(".p2align 6")
    descriptor(body, K1, 128 if (STAMPS or 'dbgt' in OPT) else v1)
    body(".p2align 6")
    descriptor(body, K2, v2)
    head = [
        "; Edge-gated MPNN layer in two launches (generated by a hand-written generator script).",
        "; launch 1: partitions the edges by destination bucket and builds the per-node source table",
        "; launch 2: per bucket of 100 nodes: sorts its edges, gated aggregation, SiLU epilogue",
        f"; @launch kernel={K1} grid=({NC},1,1) block=(1024,1,1) lds={lds1}",
        f"; @launch kernel={K2} grid=({NB},1,1) block=(1024,1,1) lds={lds2}",
    ]
    out = "\n".join(head) + "\n" + body.text()
    path = sys.argv[1] if len(sys.argv) > 1 else "standalone__edge_featured_mpnn_egc__graph.s"
    open(path, "w").write(out)
    print("wrote", path, "lds", lds1, lds2)


if __name__ == "__main__":
    main()
```

```python
import os
import sys

N = 25000
E = 800000
NB = 250
NPB = 100
NC = 250
EPC = 3200
HALF = 12500

T_OFF = 0
REC_OFF = int(os.environ.get('REC_OFF', '0x700000'), 0)
SEG_OFF = REC_OFF + 0x700000

LOG2E_NEG = 0xBFB8AA3B
SHIFT_NEG = 0xC2700000
TINY = 0x21800000
ROW = 272
XROW = 144

K1 = "egc_part_kernel"
K2 = "standalone__edge_featured_mpnn_egc__graph_kernel"

OPT = set(os.environ.get("OPT", "").split(","))
TOUCH0 = int(os.environ.get('TOUCH0', '12'))
PRIO_A = int(os.environ.get('PRIO_A', '25'))
PRIO_B = int(os.environ.get('PRIO_B', '38'))
STAMPS = False
STAMP_OFF = 0x2000000
SV = 127

X, EA, SRC, DST, UW, VW, GW, OUT, WS = 4, 6, 8, 10, 12, 14, 16, 18, 20
WAVE = 22


DBGS_SLOTS = {0: None, 1: 0, 3: 1, 4: 2, 5: 3, 6: 4, 8: 5, 9: 6, 10: 7}


def stamp(a, i, real=False):
    if "dbgs" in OPT and a.kernel == 2 and not real:
        a("s_memtime s[70:71]")
        a("s_waitcnt lgkmcnt(0)")
        a(f"v_writelane_b32 v127, s70, {i}")
        return
    if not STAMPS:
        return
    a(f"s_mem{'real' if real else ''}time s[70:71]")
    a("s_waitcnt lgkmcnt(0)")
    a(f"v_writelane_b32 v{SV}, s70, {i}")


TIME_OFF = 0x2800000


def dbg_time(a, which, slot, neg=False, tag=""):
    if "dbgt" not in OPT:
        return
    a("v_readfirstlane_b32 s78, v0")
    a("s_nop 3")
    a("s_cmp_lg_u32 s78, 0")
    a(f"s_cbranch_scc1 L_dbg_{which}_{slot}")
    a("s_memrealtime s[70:71]")
    a(f"s_load_dwordx2 s[74:75], s[0:1], {72 if which == 0 else 64}")
    a("s_waitcnt lgkmcnt(0)")
    if neg:
        a("s_not_b32 s70, s70")
    a("v_mov_b32 v125, s70")
    a("s_mov_b64 s[76:77], exec")
    a("s_mov_b64 exec, 1")
    if which == 0:
        a("s_lshl_b32 s78, s2, 3")
        a(f"s_add_u32 s78, s78, {TIME_OFF + slot * 4}")
        a("v_mov_b32 v126, s78")
        a("global_store_dword v126, v125, s[74:75]")
    else:
        a(f"v_mov_b32 v126, {slot * 4}")
        a("global_atomic_umax v126, v125, s[74:75]")
    a("s_mov_b64 exec, s[76:77]")
    if which == 1 and slot == 2:
        a("s_cmp_lg_u32 s2, 0")
        a(f"s_cbranch_scc1 L_dbg_{which}_{slot}")
        a("s_load_dwordx2 s[76:77], s[0:1], 72")
        a("s_waitcnt lgkmcnt(0)")
        for r in range(4):
            a(f"v_add_u32 v124, {64 * r}, v0")
            a("v_min_u32 v124, 249, v124")
            a("v_lshlrev_b32 v124, 3, v124")
            a(f"v_add_u32 v124, {TIME_OFF}, v124")
            a("global_load_dwordx2 v[122:123], v124, s[76:77]")
            a("s_waitcnt vmcnt(0)")
            a("v_mov_b32 v126, 16")
            a("global_atomic_umax v126, v122, s[74:75]")
            a("v_mov_b32 v126, 20")
            a("global_atomic_umax v126, v123, s[74:75]")
        a("s_waitcnt vmcnt(0)")
    a.label(f"L_dbg_{which}_{slot}")


def stamp_flush(a, which):
    if "dbgs" in OPT and which == 1:
        a.nflush = getattr(a, "nflush", 0) + 1
        a(f"s_cmp_lg_u32 s{WAVE}, 12")
        a(f"s_cbranch_scc1 L_dbgs_skip{a.nflush}")
        a("s_load_dwordx2 s[74:75], s[0:1], 64")
        a("v_readlane_b32 s70, v127, 0")
        a("s_waitcnt lgkmcnt(0)")
        a("v_subrev_u32 v126, s70, v127")
        a("v_and_b32 v125, 63, v0")
        a("v_cmp_gt_u32 vcc, 16, v125")
        a("v_lshlrev_b32 v125, 2, v125")
        a("s_and_saveexec_b64 s[76:77], vcc")
        a("global_atomic_umax v125, v126, s[74:75]")
        a("s_mov_b64 exec, s[76:77]")
        a.label(f"L_dbgs_skip{a.nflush}")
        return
    if not STAMPS:
        return
    a("s_lshl_b32 s72, s2, 4")
    a(f"s_add_u32 s72, s72, s{WAVE}")
    a("s_lshl_b32 s72, s72, 8")
    a(f"s_add_u32 s72, s72, {STAMP_OFF + which * 0x200000}")
    a("v_and_b32 v126, 63, v0")
    a("v_lshlrev_b32 v126, 2, v126")
    a("v_add_u32 v126, s72, v126")
    a(f"global_store_dword v126, v{SV}, s[20:21]")


class Asm:
    def __init__(self):
        self.lines = []
        self.kernel = 1

    def __call__(self, s=""):
        for ln in s.split("\n"):
            self.lines.append(ln if ln.strip().endswith(":") else "    " + ln.strip())

    def label(self, s):
        self.lines.append(s + ":")

    def text(self):
        return "\n".join(self.lines) + "\n"


def vr(a, n):
    return f"v[{a}:{a + n - 1}]"


def sr(a, n=2):
    return f"s[{a}:{a + n - 1}]"


def wave_scan(a, v):
    for sh in (1, 2, 4, 8):
        a("s_nop 1")
        a(f"v_add_u32_dpp v{v}, v{v}, v{v} row_shr:{sh} row_mask:0xf bank_mask:0xf bound_ctrl:0")
    a("s_nop 1")
    a(f"v_add_u32_dpp v{v}, v{v}, v{v} row_bcast:15 row_mask:0xa bank_mask:0xf")
    a("s_nop 1")
    a(f"v_add_u32_dpp v{v}, v{v}, v{v} row_bcast:31 row_mask:0xc bank_mask:0xf")
    a("s_nop 1")


WSBASE = int(os.environ.get("WSBASE", "0"), 0)


def remap_wg(a, which):
    if f"noremap{which}" in OPT:
        return
    a("s_and_b32 s24, s2, 7")
    a("s_lshr_b32 s2, s2, 3")
    a("s_mov_b32 s23, s2")
    a("s_mul_i32 s25, s24, 31")
    a("s_min_u32 s24, s24, 2")
    a("s_add_u32 s2, s2, s25")
    a("s_add_u32 s2, s2, s24")


def warm_l2(a, lane, t0, t1, dst):
    for n in range(2):
        a(f"s_lshl_b32 s24, s{WAVE}, 7")
        a(f"s_add_u32 s24, s24, {n * 64}")
        a(f"v_add_u32 v{t0}, s24, v{lane}")
        a(f"v_min_u32 v{t0}, 1599, v{t0}")
        a(f"v_lshrrev_b32 v{t1}, 2, v{t0}")
        a("s_mul_i32 s24, s23, 400")
        a(f"v_add_u32 v{t1}, s24, v{t1}")
        a(f"v_min_u32 v{t1}, 12711, v{t1}")
        a(f"v_and_b32 v{t0}, 3, v{t0}")
        a(f"v_lshlrev_b32 v{t0}, 6, v{t0}")
        a(f"v_and_b32 v125, 0xfffff000, v{t1}")
        a(f"v_add_u32 v{t1}, v{t1}, v125")
        a(f"v_lshl_add_u32 v{t0}, v{t1}, 8, v{t0}")
        a(f"global_load_dword v{dst}, v{t0}, {sr(WS)}")


def load_ptrs(a):
    a("s_load_dwordx16 s[4:19], s[0:1], 0")
    a("s_load_dwordx2 s[20:21], s[0:1], 72")


def fix_ws(a):
    if WSBASE:
        a(f"s_add_u32 s20, s20, {WSBASE}")
        a("s_addc_u32 s21, s21, 0")


ST = ""
STT = ""
STR_ = ""
STO = ""


class Node:
    def __init__(self, a, WST, XST, tid, lane, vw, vx, t):
        self.a, self.WST, self.XST = a, WST, XST
        self.tid, self.lane, self.vw, self.vx, self.t = tid, lane, vw, vx, t

    def issue_loads(self, p0, off0, p1):
        a, t = self.a, self.t
        a(f"s_cmp_lt_u32 s{WAVE}, 8")
        a(f"s_cselect_b32 s24, s{p0}, s{p1}")
        a(f"s_cselect_b32 s25, s{p0 + 1}, s{p1 + 1}")
        if off0:
            a(f"s_cselect_b32 s26, {off0}, 0")
            a("s_add_u32 s24, s24, s26")
            a("s_addc_u32 s25, s25, 0")
        a(f"v_and_b32 v{t}, 511, v{self.tid}")
        a(f"v_lshlrev_b32 v{t}, 4, v{t}")
        a(f"global_load_dwordx4 {vr(self.vw, 4)}, v{t}, s[24:25]")
        a(f"v_min_u32 v{t}, {NPB * 8 - 1}, v{self.tid}")
        a(f"v_lshlrev_b32 v{t}, 4, v{t}")
        a(f"s_mul_i32 s26, s2, {NPB * 128}")
        a(f"v_add_u32 v{t}, s26, v{t}")
        a(f"global_load_dwordx4 {vr(self.vx, 4)}, v{t}, {sr(X)}")

    def stage(self):
        a, t, tid = self.a, self.t, self.tid
        a(f"v_bfe_u32 v{t}, v{tid}, 4, 1")
        a(f"v_bfe_u32 v{t + 1}, v{tid}, 6, 1")
        a(f"v_lshl_or_b32 v{t}, v{t + 1}, 1, v{t}")
        a(f"v_lshlrev_b32 v{t}, 5, v{t}")
        a(f"v_lshlrev_b32 v{t + 1}, 4, v{tid}")
        a(f"v_xor_b32 v{t}, v{t}, v{t + 1}")
        a(f"v_add_u32 v{t}, {self.WST}, v{t}")
        a(f"ds_write_b128 v{t}, {vr(self.vw, 4)}")
        a(f"v_lshrrev_b32 v{t}, 3, v{tid}")
        a(f"v_mul_u32_u24 v{t}, {XROW}, v{t}")
        a(f"v_and_b32 v{t + 1}, 7, v{tid}")
        a(f"v_lshl_add_u32 v{t}, v{t + 1}, 4, v{t}")
        a(f"v_add_u32 v{t}, {self.XST}, v{t}")
        a(f"v_cmp_gt_u32 vcc, {NPB * 8}, v{tid}")
        a("s_and_saveexec_b64 s[32:33], vcc")
        a(f"ds_write_b128 v{t}, {vr(self.vx, 4)}")
        a("s_mov_b64 exec, s[32:33]")

    def stage_addr(self, vw_a, vx_a, t):
        a, tid = self.a, self.tid
        a(f"v_bfe_u32 v{vw_a}, v{tid}, 4, 1")
        a(f"v_bfe_u32 v{t}, v{tid}, 6, 1")
        a(f"v_lshl_or_b32 v{vw_a}, v{t}, 1, v{vw_a}")
        a(f"v_lshlrev_b32 v{vw_a}, 5, v{vw_a}")
        a(f"v_lshlrev_b32 v{t}, 4, v{tid}")
        a(f"v_xor_b32 v{vw_a}, v{vw_a}, v{t}")
        a(f"v_add_u32 v{vw_a}, {self.WST}, v{vw_a}")
        a(f"v_lshrrev_b32 v{vx_a}, 3, v{tid}")
        a(f"v_mul_u32_u24 v{vx_a}, {XROW}, v{vx_a}")
        a(f"v_and_b32 v{t}, 7, v{tid}")
        a(f"v_lshl_add_u32 v{vx_a}, v{t}, 4, v{vx_a}")
        a(f"v_add_u32 v{vx_a}, {self.XST}, v{vx_a}")

    def stage_write(self, vw_a, vx_a):
        a, tid = self.a, self.tid
        a(f"ds_write_b128 v{vw_a}, {vr(self.vw, 4)}")
        a(f"v_cmp_gt_u32 vcc, {NPB * 8}, v{tid}")
        a("s_and_saveexec_b64 s[32:33], vcc")
        a(f"ds_write_b128 v{vx_a}, {vr(self.vx, 4)}")
        a("s_mov_b64 exec, s[32:33]")

    def pair_reads(self, aop, xop, vloc):
        a, t, lane = self.a, self.t, self.lane
        a(f"s_and_b32 s27, s{WAVE}, 1")
        a("s_lshl_b32 s27, s27, 1")
        a(f"s_lshr_b32 s26, s{WAVE}, 1")
        a(f"v_and_b32 v{t}, 15, v{lane}")
        a(f"v_lshrrev_b32 v{t + 1}, 4, v{lane}")
        a("s_lshl_b32 s26, s26, 4")
        a(f"v_add_u32 v{vloc}, s26, v{t}")
        a(f"v_mul_u32_u24 v{t + 2}, {XROW}, v{vloc}")
        a(f"v_lshl_add_u32 v{t + 2}, v{t + 1}, 4, v{t + 2}")
        a(f"v_add_u32 v{t + 2}, {self.XST}, v{t + 2}")
        a(f"ds_read_b128 {vr(xop, 4)}, v{t + 2}")
        a(f"ds_read_b128 {vr(xop + 4, 4)}, v{t + 2} offset:64")
        a(f"v_lshrrev_b32 v{t + 2}, 3, v{t}")
        a(f"v_and_b32 v{xop + 8}, 1, v{t + 1}")
        a(f"v_lshl_or_b32 v{t + 2}, v{xop + 8}, 1, v{t + 2}")
        a(f"v_xor_b32 v{t + 2}, s27, v{t + 2}")
        a(f"v_lshlrev_b32 v{t + 2}, 5, v{t + 2}")
        a(f"v_lshrrev_b32 v{xop + 8}, 2, v{t}")
        a(f"v_lshl_add_u32 v{xop + 8}, v{t + 1}, 3, v{xop + 8}")
        a(f"v_lshl_add_u32 v{t + 2}, v{xop + 8}, 7, v{t + 2}")
        a(f"v_and_b32 v{xop + 8}, 3, v{t}")
        a(f"v_lshl_add_u32 v{t + 2}, v{xop + 8}, 3, v{t + 2}")
        a(f"v_add_u32 v{t + 2}, {self.WST}, v{t + 2}")
        assert self.WST % 128 == 0
        for c in range(2):
            if c:
                a("s_waitcnt lgkmcnt(6)")
                a(f"v_xor_b32 v{t + 2}, 32, v{t + 2}")
            for m in range(2):
                for ks in range(2):
                    for hh in range(2):
                        r = aop + c * 16 + (m * 2 + ks) * 4 + hh * 2
                        a(f"ds_read_b64_tr_b16 {vr(r, 2)}, v{t + 2} offset:{m * 8192 + ks * 4096 + hh * 512}")

    def pair_mfma(self, aop, xop, dd):
        a = self.a
        for ks in range(2):
            for c in range(2):
                for m in range(2):
                    d = dd + (c * 2 + m) * 4
                    cop = "0" if ks == 0 else vr(d, 4)
                    a(f"v_mfma_f32_16x16x32_bf16 {vr(d, 4)}, {vr(aop + c * 16 + (m * 2 + ks) * 4, 4)}, {vr(xop + 4 * ks, 4)}, {cop}")


def copy_out(a, lds_addr_fn, goff_sgpr, t0, t1, d0, d1, tag):
    ST = STT if tag == "t" else STR_
    lds_addr_fn(0, t1)
    a(f"ds_read_b128 {vr(d0, 4)}, v{t1}")
    a(f"v_lshlrev_b32 v{t0}, 4, v0")
    a(f"v_add_u32 v{t0}, s{goff_sgpr}, v{t0}")
    a(f"s_cmp_gt_u32 s{WAVE}, 8")
    a(f"s_cbranch_scc1 L1_one{tag}")
    a(f"v_add_u32 v{t1}, 1024, v0")
    lds_addr_fn(t1, t1)
    a(f"ds_read_b128 {vr(d1, 4)}, v{t1}")
    a(f"v_add_u32 v{t1}, 16384, v{t0}")
    a("s_waitcnt lgkmcnt(0)")
    a(f"global_store_dwordx4 v{t1}, {vr(d1, 4)}, {sr(WS)}{ST}")
    a.label(f"L1_one{tag}")
    a("s_waitcnt lgkmcnt(0)")
    a(f"global_store_dwordx4 v{t0}, {vr(d0, 4)}, {sr(WS)}{ST}")


def gen_k1(a):
    HIST, BASE = 0, 1024
    WST = 2048
    XST = WST + 16384
    TST = XST + 112 * XROW
    STG = TST + NPB * ROW
    LDS = STG + EPC * 8
    TID, LANE = 0, 1
    T0, T1, T2, T3 = 2, 3, 14, 15
    VD, VS, VE = 4, 8, 12
    VW_, VX_ = 16, 20
    XOP = 24
    AOP = 36
    DD = 68
    PK = 84
    VLOC = 87
    VB, VR = 88, 92
    RP = 104
    NT = 100
    nd = Node(a, WST, XST, TID, LANE, VW_, VX_, NT)

    a(f".globl {K1}")
    a(".p2align 8")
    a(f".type {K1},@function")
    a.label(K1)
    a(f"s_cmp_ge_u32 s2, {NC}")
    a("s_cbranch_scc1 L1_end")
    dbg_time(a, 0, 0, True)
    stamp(a, 0)
    stamp(a, 20, True)
    load_ptrs(a)
    remap_wg(a, 1)
    a(f"v_and_b32 v{LANE}, 63, v{TID}")
    a(f"v_lshrrev_b32 v{T0}, 6, v{TID}")
    a(f"v_lshlrev_b32 v{T1}, 2, v{TID}")
    a(f"v_readfirstlane_b32 s{WAVE}, v{T0}")
    a(f"v_mov_b32 v{T0}, 0")
    a(f"s_cmp_lt_u32 s{WAVE}, 4")
    a("s_cbranch_scc0 L1_nozero")
    a(f"ds_write_b32 v{T1}, v{T0} offset:{HIST}")
    a.label("L1_nozero")
    a("s_waitcnt lgkmcnt(0)")
    fix_ws(a)
    stamp(a, 1)
    nd.issue_loads(GW, 8192, VW)
    a("s_barrier")
    a(f"s_cmp_gt_u32 s{WAVE}, 12")
    a("s_cbranch_scc1 L1_noedge0")
    a(f"s_mul_i32 s24, s2, {EPC * 4}")
    a(f"v_lshlrev_b32 v{T0}, 4, v{TID}")
    a(f"v_add_u32 v{T0}, s24, v{T0}")
    a(f"v_lshrrev_b32 v{T1}, 1, v{T0}")
    a(f"v_cmp_gt_u32 vcc, {EPC // 4}, v{TID}")
    a("s_and_saveexec_b64 s[32:33], vcc")
    a(f"global_load_dwordx4 {vr(VD, 4)}, v{T0}, {sr(DST)}")
    a(f"global_load_dwordx4 {vr(VS, 4)}, v{T0}, {sr(SRC)}")
    a(f"global_load_dwordx2 {vr(VE, 2)}, v{T1}, {sr(EA)}")
    a("s_mov_b64 exec, s[32:33]")
    a("s_waitcnt vmcnt(3)")
    a("s_branch L1_wx")
    a.label("L1_noedge0")
    a("s_waitcnt vmcnt(0)")
    a.label("L1_wx")
    stamp(a, 2)
    nd.stage()
    a("s_waitcnt lgkmcnt(0)")
    a("s_barrier")
    stamp(a, 3)
    a(f"s_cmp_gt_u32 s{WAVE}, 13")
    a("s_cbranch_scc1 L1_notask")
    nd.pair_reads(AOP, XOP, VLOC)
    a(f"v_mul_u32_u24 v{T0}, {ROW}, v{VLOC}")
    a(f"v_lshrrev_b32 v{T1}, 4, v{LANE}")
    a(f"v_lshl_add_u32 v{T0}, v{T1}, 4, v{T0}")
    a("s_lshl_b32 s30, s27, 6")
    a(f"s_add_u32 s30, s30, {TST}")
    a(f"v_add_u32 v{T0}, s30, v{T0}")
    a(f"s_mov_b32 s24, {LOG2E_NEG:#x}")
    a("s_mov_b32 s25, 0x7fff0000")
    a("s_mov_b32 s30, 0x7fffffff")
    VLO, VHI = 33, 34
    a(f"v_mov_b32 v{VLO}, 0xc77fe000")
    a(f"v_mov_b32 v{VHI}, 0x477fe000")
    a(f"v_cmp_gt_u32 vcc, {NPB}, v{VLOC}")
    a("s_waitcnt lgkmcnt(0)")
    nd.pair_mfma(AOP, XOP, DD)
    a("s_nop 5")
    for c in range(2):
        DQ, DH = DD + c * 8, DD + c * 8 + 4
        if c == 1:
            pass
        for i in range(4):
            a(f"v_mul_f32 v{DQ + i}, s24, v{DQ + i}")
        for i in range(4):
            a(f"v_med3_f32 v{DQ + i}, v{DQ + i}, v{VLO}, v{VHI}")
        a(f"v_cvt_pk_f16_f32 v{PK}, v{DQ}, v{DQ + 1}")
        a(f"v_cvt_pk_f16_f32 v{PK + 1}, v{DQ + 2}, v{DQ + 3}")
        for i in range(4):
            h = DH + i
            sel = "WORD_1" if i % 2 else "WORD_0"
            a(f"v_and_b32 v{DQ + i}, s30, v{h}")
            a(f"v_add_u32 v{DQ + i}, 0x8000, v{DQ + i}")
            a(f"v_sub_u32_sdwa v{DQ + i}, v{DQ + i}, v{PK + i // 2} clamp dst_sel:DWORD dst_unused:UNUSED_PAD src0_sel:DWORD src1_sel:{sel}")
        for i in range(4):
            h = DH + i
            a(f"v_bfi_b32 v{h}, s25, v{DQ + i}, v{h}")
        for i in range(4):
            h = DH + i
            sel = "WORD_1" if i % 2 else "WORD_0"
            a(f"v_mov_b32_sdwa v{h}, v{PK + i // 2} dst_sel:WORD_0 dst_unused:UNUSED_PRESERVE src0_sel:{sel}")
        a("s_and_saveexec_b64 s[32:33], vcc")
        a(f"ds_write_b128 v{T0}, {vr(DH, 4)} offset:{c * 64}")
        a("s_mov_b64 exec, s[32:33]")
    a.label("L1_notask")
    a("s_waitcnt lgkmcnt(0)")
    stamp(a, 4)
    a("s_barrier")

    a(f"s_sub_u32 s24, s{WAVE}, 13")
    a("s_cmp_lt_u32 s24, 2")
    a("s_cbranch_scc0 L1_not")
    a(f"v_lshrrev_b32 v{T0}, 4, v{LANE}")
    a(f"v_mul_u32_u24 v{T0}, {ROW}, v{T0}")
    a(f"v_and_b32 v{T1}, 15, v{LANE}")
    a(f"v_lshl_add_u32 v{T0}, v{T1}, 4, v{T0}")
    a(f"s_mul_i32 s25, s24, {13 * 4 * ROW}")
    a(f"s_add_u32 s25, s25, {TST}")
    a(f"v_add_u32 v{T0}, s25, v{T0}")
    a(f"s_mul_i32 s26, s2, {NPB * 256}")
    a(f"s_mul_i32 s25, s24, {13 * 1024}")
    a("s_add_u32 s26, s26, s25")
    a(f"v_lshlrev_b32 v{T1}, 4, v{LANE}")
    a(f"v_add_u32 v{T1}, s26, v{T1}")
    for n in range(12):
        a(f"ds_read_b128 {vr(16 + 4 * n, 4)}, v{T0} offset:{n * 4 * ROW}")
    a(f"v_add_u32 v{T2}, {12 * 1024}, v{T1}")
    a("s_cmp_eq_u32 s24, 0")
    a("s_cbranch_scc0 L1_t12")
    a(f"ds_read_b128 {vr(64, 4)}, v{T0} offset:{12 * 4 * ROW}")
    a("s_waitcnt lgkmcnt(0)")
    a(f"global_store_dwordx4 v{T2}, {vr(64, 4)}, {sr(WS)}{STT}")
    a.label("L1_t12")
    for n in range(12):
        a(f"s_waitcnt lgkmcnt({max(0, 11 - n)})")
        a(f"global_store_dwordx4 v{T1}, {vr(16 + 4 * n, 4)}, {sr(WS)} offset:{(n % 4) * 1024}{STT}")
        if n % 4 == 3:
            a(f"v_add_u32 v{T1}, 4096, v{T1}")
    if "readback" in OPT:
        a("s_waitcnt vmcnt(0)")
        a(f"v_subrev_u32 v{T1}, {3 * 4096}, v{T1}")
        for n in range(12):
            a(f"global_load_dwordx4 {vr(16 + 4 * n, 4)}, v{T1}, {sr(WS)} offset:{(n % 4) * 1024}")
            if n % 4 == 3:
                a(f"v_add_u32 v{T1}, 4096, v{T1}")
        a(f"global_load_dwordx4 {vr(64, 4)}, v{T2}, {sr(WS)}")
        a("s_waitcnt vmcnt(0)")
    if "wbl2" in OPT:
        a("s_waitcnt vmcnt(0)")
        a("buffer_wbl2 sc1")
        a("s_waitcnt vmcnt(0)")
    stamp(a, 5)
    if STAMPS:
        a("s_waitcnt vmcnt(0)")
    stamp(a, 11)
    stamp(a, 21, True)
    stamp_flush(a, 0)
    a("s_endpgm")
    a.label("L1_not")
    stamp(a, 5)
    a(f"s_cmp_gt_u32 s{WAVE}, 12")
    a("s_cbranch_scc1 L1_noedge1")
    a(f"v_cmp_gt_u32 vcc, {EPC // 4}, v{TID}")
    a("s_and_saveexec_b64 s[32:33], vcc")
    a(f"v_mov_b32 v{T1}, 1")
    a("s_movk_i32 s24, -100")
    a("s_mov_b32 s25, 0xffff0000")
    a("s_movk_i32 s30, 128")
    a("s_waitcnt vmcnt(0)")
    for i in range(4):
        a(f"v_mul_u32_u24 v{T0}, 5243, v{VD + i}")
        a(f"v_lshrrev_b32 v{T0}, 19, v{T0}")
        a(f"v_lshlrev_b32 v{VB + i}, 2, v{T0}")
        a(f"ds_add_rtn_u32 v{VR + i}, v{VB + i}, v{T1} offset:{HIST}")
        a(f"v_mad_i32_i24 v{T2}, v{T0}, s24, v{VD + i}")
        a(f"v_lshrrev_b32 v{T3}, 5, v{VS + i}")
        a(f"v_and_or_b32 v{RP + 2 * i + 1}, v{T3}, s30, v{T2}")
        if "smallsrc" in OPT:
            a(f"v_and_b32 v{VS + i}, 0x7ff, v{VS + i}")
        if i % 2 == 0:
            a(f"v_lshl_or_b32 v{RP + 2 * i}, v{VE + i // 2}, 16, v{VS + i}")
        else:
            a(f"v_and_or_b32 v{RP + 2 * i}, v{VE + i // 2}, s25, v{VS + i}")
    a("s_mov_b64 exec, s[32:33]")
    a.label("L1_noedge1")
    a("s_waitcnt lgkmcnt(0)")
    stamp(a, 6)
    a("s_barrier")
    stamp(a, 7)
    a(f"s_cmp_eq_u32 s{WAVE}, 15")
    a("s_cbranch_scc0 L1_b2")
    C0 = 24
    a(f"v_lshlrev_b32 v{T0}, 4, v{LANE}")
    a(f"ds_read_b128 {vr(C0, 4)}, v{T0} offset:{HIST}")
    a("s_waitcnt lgkmcnt(0)")
    P = 28
    a(f"v_add_u32 v{P + 2}, v{C0}, v{C0 + 1}")
    a(f"v_add_u32 v{P + 3}, v{P + 2}, v{C0 + 2}")
    a(f"v_add_u32 v32, v{P + 3}, v{C0 + 3}")
    a("v_mov_b32 v33, v32")
    wave_scan(a, 33)
    a(f"v_sub_u32 v{P}, v33, v32")
    a(f"v_add_u32 v{P + 1}, v{P}, v{C0}")
    a(f"v_add_u32 v{P + 2}, v{P}, v{P + 2}")
    a(f"v_add_u32 v{P + 3}, v{P}, v{P + 3}")
    a(f"ds_write_b128 v{T0}, {vr(P, 4)} offset:{BASE}")
    a("s_lshl_b32 s24, s2, 10")
    a(f"s_add_u32 s24, s24, {SEG_OFF}")
    a(f"v_add_u32 v{T1}, s24, v{T0}")
    for i in range(4):
        a(f"v_lshl_or_b32 v{36 + i}, v{C0 + i}, 16, v{P + i}")
    a(f"global_store_dwordx4 v{T1}, v[36:39], {sr(WS)}{ST}")
    a("s_cmp_lg_u32 s2, 0")
    a("s_cbranch_scc1 L1_b2")
    a(f"v_mov_b32 v{T2}, 0")
    a(f"v_lshlrev_b32 v{T3}, 2, v{LANE}")
    a(f"v_add_u32 v{T3}, {N * 256}, v{T3}")
    a(f"global_store_dword v{T3}, v{T2}, {sr(WS)}{ST}")
    a.label("L1_b2")
    a("s_waitcnt lgkmcnt(0)")
    stamp(a, 8)
    a("s_barrier")
    a(f"s_cmp_gt_u32 s{WAVE}, 12")
    a("s_cbranch_scc1 L1_noedge2")
    a(f"v_cmp_gt_u32 vcc, {EPC // 4}, v{TID}")
    a("s_and_saveexec_b64 s[32:33], vcc")
    for i in range(4):
        a(f"ds_read_b32 v{VD + i}, v{VB + i} offset:{BASE}")
    a(f"s_mov_b32 s24, {STG}")
    for i in range(4):
        a("s_waitcnt lgkmcnt(3)")
        a(f"v_add_u32 v{VD + i}, v{VD + i}, v{VR + i}")
        a(f"v_lshl_add_u32 v{VD + i}, v{VD + i}, 3, s24")
        a(f"ds_write_b64 v{VD + i}, {vr(RP + 2 * i, 2)}")
    a("s_mov_b64 exec, s[32:33]")
    a.label("L1_noedge2")
    a(f"s_min_u32 s25, s{WAVE}, 13")
    a("s_lshl_b32 s25, s25, 10")
    a(f"v_lshlrev_b32 v{T0}, 4, v{LANE}")
    a(f"v_add_u32 v{T0}, s25, v{T0}")
    a(f"v_add_u32 v{T1}, {STG}, v{T0}")
    a(f"s_mul_i32 s24, s2, {EPC * 8}")
    a(f"s_add_u32 s24, s24, {REC_OFF}")
    a(f"v_add_u32 v{T0}, s24, v{T0}")
    a("s_waitcnt lgkmcnt(0)")
    stamp(a, 9)
    a("s_barrier")
    a(f"ds_read_b128 v[24:27], v{T1}")
    a(f"s_cmp_gt_u32 s{WAVE}, 10")
    a("s_cbranch_scc1 L1_oner")
    a(f"ds_read_b128 v[28:31], v{T1} offset:{14 * 1024}")
    a(f"v_add_u32 v{T1}, {14 * 1024}, v{T0}")
    a("s_waitcnt lgkmcnt(0)")
    a(f"global_store_dwordx4 v{T1}, v[28:31], {sr(WS)}{STR_}")
    a.label("L1_oner")
    a("s_waitcnt lgkmcnt(0)")
    a(f"global_store_dwordx4 v{T0}, v[24:27], {sr(WS)}{STR_}")
    for o in OPT:
        if o.startswith("delay="):
            n = int(o[6:])
            a(f"s_movk_i32 s24, {n}")
            a.label("L1_dly")
            a("s_sleep 16")
            a("s_sub_u32 s24, s24, 1")
            a("s_cmp_lg_u32 s24, 0")
            a("s_cbranch_scc1 L1_dly")
    if "dbgt" in OPT:
        a("s_waitcnt vmcnt(0)")
    dbg_time(a, 0, 1)
    stamp(a, 10)
    if STAMPS:
        a("s_waitcnt vmcnt(0)")
    stamp(a, 11)
    stamp(a, 21, True)
    stamp_flush(a, 0)
    a.label("L1_end")
    a("s_endpgm")
    return LDS, 112


def gen_k2(a):
    a.kernel = 2
    HIST = 0
    HIST2 = HIST + 1024
    BASE2 = HIST2 + 1024
    WCNT = BASE2 + 1024
    WKEY = WCNT + 1024
    MISC = WKEY + 1024
    SCR = MISC + 256
    ZERO = SCR + 256
    PL = ZERO + 256
    PART0 = PL + NPB * ROW
    WST = (PART0 + NPB * ROW + 127) // 128 * 128
    XST = WST + 16384
    LIST = XST + NPB * XROW
    CAPK = 48
    COL = CAPK * 4
    LISTB = 228 * COL
    LDS = LIST + LISTB + 64
    assert PART0 + 64 * ROW < 65536 and LDS <= 163840, LDS
    NWIN = 50
    DUMMY_COL = 100 * COL

    TID, LANE = 0, 1
    T0, T1, T2, T3 = 2, 3, 4, 5
    RB = 6
    REM = 7
    RECS = 8
    RANK = 24
    VW_, VX_ = 32, 36
    XOP = 40
    AOP = 52
    DD = 84
    VLOC = 49
    NT = 100
    VLB = 103
    ASEL = 112
    VJ, VG4, VQ, VONE = 116, 117, 118, 119
    CV = 120
    VZ = 124
    VXA, VWA, VPA, VSH = 104, 105, 106, 107
    MASK = 40
    nd = Node(a, WST, XST, TID, LANE, VW_, VX_, NT)

    a(f".globl {K2}")
    a(".p2align 8")
    a(f".type {K2},@function")
    a.label(K2)
    a(f"s_cmp_ge_u32 s2, {NB}")
    a("s_cbranch_scc1 L2_end")
    dbg_time(a, 1, 2, True)
    for o in OPT:
        if o.startswith("nops="):
            for _ in range(int(o[5:])):
                a("s_nop 0")
        if o.startswith("slit="):
            for _ in range(int(o[5:])):
                a("s_mov_b32 s24, 0x12345678")
        if o.startswith("slil="):
            a(f"s_movk_i32 s25, {int(o[5:]) // 16}")
            a.label("L2_slil")
            for _ in range(13):
                a("s_mov_b32 s24, 0x12345678")
            a("s_sub_u32 s25, s25, 1")
            a("s_cmp_lg_u32 s25, 0")
            a("s_cbranch_scc1 L2_slil")
        if o.startswith("nopl="):
            a(f"s_movk_i32 s24, {int(o[5:]) // 16}")
            a.label("L2_nopl")
            for _ in range(13):
                a("s_nop 0")
            a("s_sub_u32 s24, s24, 1")
            a("s_cmp_lg_u32 s24, 0")
            a("s_cbranch_scc1 L2_nopl")
    stamp(a, 0)
    stamp(a, 20, True)
    load_ptrs(a)
    remap_wg(a, 2)
    a(f"v_and_b32 v{LANE}, 63, v{TID}")
    a(f"v_lshrrev_b32 v{T0}, 6, v{TID}")
    a(f"v_lshlrev_b32 v{T1}, 2, v{TID}")
    a(f"v_readfirstlane_b32 s{WAVE}, v{T0}")
    a(f"v_lshrrev_b32 v{RB}, 2, v{TID}")
    a(f"v_lshlrev_b32 v{RB}, 10, v{RB}")
    a("s_lshl_b32 s24, s2, 2")
    a(f"s_add_u32 s24, s24, {SEG_OFF}")
    a(f"v_add_u32 v{RB}, s24, v{RB}")
    a("s_waitcnt lgkmcnt(0)")
    fix_ws(a)
    stamp(a, 1)
    a(f"global_load_dword v{REM}, v{RB}, {sr(WS)}")
    nd.issue_loads(GW, 0, UW)
    a(f"v_and_b32 v{T0}, 15, v{LANE}")
    a(f"v_lshlrev_b32 v{VJ}, 4, v{T0}")
    a(f"v_lshrrev_b32 v{T2}, 1, v{VJ}")
    a(f"v_add_u32 v{T2}, {128 * 128}, v{T2}")
    a(f"global_load_dwordx2 {vr(CV + 2, 2)}, v{T2}, {sr(GW)}")
    a(f"v_mov_b32 v{T0}, 0")
    a(f"s_cmp_lt_u32 s{WAVE}, 4")
    a("s_cbranch_scc0 L2_nozero")
    a(f"ds_write_b32 v{T1}, v{T0} offset:{HIST}")
    a(f"ds_write_b32 v{T1}, v{T0} offset:{HIST2}")
    a.label("L2_nozero")
    a(f"s_cmp_eq_u32 s{WAVE}, 4")
    a("s_cbranch_scc0 L2_nozero2")
    a(f"v_lshlrev_b32 v{T2}, 2, v{LANE}")
    a(f"v_cmp_eq_u32 vcc, 2, v{LANE}")
    a("s_nop 1")
    a(f"v_cndmask_b32 v{T3}, 0, 16, vcc")
    a(f"ds_write_b32 v{T2}, v{T3} offset:{MISC}")
    a(f"ds_write_b32 v{T2}, v{T0} offset:{ZERO}")
    a.label("L2_nozero2")
    a(f"v_lshrrev_b32 v{RB}, 2, v{TID}")
    a(f"v_mul_u32_u24 v{RB}, {EPC}, v{RB}")
    a(f"v_and_b32 v{T3}, 3, v{TID}")
    a(f"v_lshlrev_b32 v{T3}, 1, v{T3}")
    a(f"v_add_u32 v{RB}, v{RB}, v{T3}")
    a(f"v_lshlrev_b32 v{RB}, 3, v{RB}")
    a(f"v_add_u32 v{RB}, {REC_OFF}, v{RB}")
    a(f"v_cmp_gt_u32 vcc, {NC * 4}, v{TID}")
    a("s_waitcnt vmcnt(3)")
    stamp(a, 2)
    a(f"v_cndmask_b32 v{REM}, 0, v{REM}, vcc")
    a(f"v_and_b32 v{T2}, 0xffff, v{REM}")
    a(f"v_lshrrev_b32 v{REM}, 16, v{REM}")
    a(f"v_lshl_add_u32 v{RB}, v{T2}, 3, v{RB}")
    a(f"v_cmp_lt_u32 s[56:57], 32, v{REM}")
    a(f"v_sub_u32 v{REM}, v{REM}, v{T3}")
    for r in range(4):
        a(f"v_cmp_gt_i32 {sr(MASK + 4 * r)}, v{REM}, {8 * r}")
    a("s_nop 1")
    a("s_mov_b32 s58, 0")
    for r in range(4):
        m = MASK + 4 * r
        a(f"s_mov_b64 exec, {sr(m)}")
        a("s_cbranch_execz L2_recs_done")
        a(f"global_load_dwordx4 {vr(RECS + 4 * r, 4)}, v{RB}, {sr(WS)} offset:{64 * r}")
        a(f"s_mov_b32 s58, {r + 1}")
    a.label("L2_recs_done")
    a("s_mov_b64 exec, -1")
    if "earlytouch" in OPT:
        a(f"s_cmp_lt_u32 s{WAVE}, {TOUCH0}")
        a("s_cbranch_scc1 L2_notouche")
        a(f"s_sub_u32 s25, s{WAVE}, {TOUCH0}")
        a(f"s_cmp_gt_u32 s25, 3")
        a("s_cbranch_scc1 L2_notouche")
        a("s_lshl_b32 s25, s25, 6")
        a(f"v_add_u32 v{T2}, s25, v{LANE}")
        a(f"v_min_u32 v{T2}, {NPB * 2 - 1}, v{T2}")
        a(f"v_lshlrev_b32 v{T2}, 7, v{T2}")
        a(f"s_mul_i32 s24, s2, {NPB * 256}")
        a(f"v_add_u32 v{T2}, s24, v{T2}")
        a(f"global_load_dword v126, v{T2}, {sr(WS)}")
        a("s_add_u32 s58, s58, 1")
        a.label("L2_notouche")
    for r in range(4):
        a(f"v_cmp_gt_i32 {sr(MASK + 4 * r + 2)}, v{REM}, {8 * r + 1}")
    for i in range(4):
        a(f"v_mov_b32 v{XOP + i}, {N}")
    a(f"v_lshlrev_b32 v{T2}, 4, v{TID}")
    a(f"v_add_u32 v{T2}, {LIST}, v{T2}")
    a(f"ds_write_b128 v{T2}, {vr(XOP, 4)}")
    a(f"ds_write_b128 v{T2}, {vr(XOP, 4)} offset:16384")
    nlast = LISTB // 16 - 2048
    a(f"v_cmp_gt_u32 vcc, {nlast}, v{TID}")
    a("s_and_saveexec_b64 s[32:33], vcc")
    a(f"ds_write_b128 v{T2}, {vr(XOP, 4)} offset:32768")
    a("s_mov_b64 exec, s[32:33]")
    a(f"v_and_b32 v{T0}, 15, v{LANE}")
    a(f"v_lshrrev_b32 v{T1}, 4, v{LANE}")
    a(f"v_lshlrev_b32 v{VG4}, 2, v{T1}")
    a(f"s_mul_i32 s24, s2, {NPB * 128}")
    a(f"v_lshrrev_b32 v{VZ}, 1, v{VJ}")
    a(f"v_add_u32 v{VZ}, s24, v{VZ}")
    a(f"v_mov_b32 v{VONE}, 1")
    a(f"v_mov_b32 v{VLB}, {LIST}")
    a(f"v_lshlrev_b32 v{VQ}, 2, v{LANE}")
    a(f"v_add_u32 v{VQ}, {SCR}, v{VQ}")
    a(f"v_cmp_eq_u32 vcc, 0, v{LANE}")
    a(f"v_mov_b32 v{T3}, {MISC + 8}")
    a(f"v_lshrrev_b32 v{T2}, 2, v{T0}")
    a(f"v_cndmask_b32 v{VQ}, v{VQ}, v{T3}, vcc")
    a(f"v_cmp_eq_u32 vcc, v{T2}, v{T1}")
    a(f"v_mov_b32 v{T3}, 0x3c00")
    a(f"v_and_b32 v{T2}, 3, v{T0}")
    a(f"v_cndmask_b32 v{T3}, 0, v{T3}, vcc")
    for q in range(4):
        a(f"v_cmp_eq_u32 vcc, {q}, v{T2}")
        a("s_nop 1")
        a(f"v_cndmask_b32 v{ASEL + q}, 0, v{T3}, vcc")
    a(f"s_mov_b32 s36, s{WS}")
    a(f"s_and_b32 s37, s{WS + 1}, 0xffff")
    a("s_or_b32 s37, s37, 0x1000000")
    a(f"s_mov_b32 s38, {N + 1}")
    a("s_mov_b32 s39, 0x20000")
    a(f"s_mov_b32 s66, {TINY:#x}")
    a(f"s_mov_b32 s67, {TINY:#x}")
    for k in range(4):
        a(f"v_mov_b32 v{76 + 4 * k + 1}, v{VJ}")
        a(f"v_mov_b32 v{76 + 4 * k + 3}, v{VJ}")
        a(f"v_mov_b32 v{92 + 2 * k}, 0")
        a(f"v_mov_b32 v{92 + 2 * k + 1}, 0")
    nd.stage_addr(NT, NT + 1, NT + 2)
    a(f"s_and_b32 s27, s{WAVE}, 3")
    a(f"s_lshr_b32 s26, s{WAVE}, 2")
    a("s_lshl_b32 s26, s26, 5")
    a(f"v_and_b32 v{T0}, 15, v{LANE}")
    a(f"v_lshrrev_b32 v{T1}, 4, v{LANE}")
    a(f"v_add_u32 v{T2}, s26, v{T0}")
    a(f"v_mul_u32_u24 v{VXA}, {XROW}, v{T2}")
    a(f"v_lshl_add_u32 v{VXA}, v{T1}, 4, v{VXA}")
    a(f"v_add_u32 v{VXA}, {XST}, v{VXA}")
    a(f"v_mul_u32_u24 v{VPA}, {ROW}, v{T2}")
    a(f"v_lshl_add_u32 v{VPA}, v{T1}, 4, v{VPA}")
    a("s_lshl_b32 s30, s27, 6")
    a(f"v_add_u32 v{VPA}, s30, v{VPA}")
    a(f"v_lshrrev_b32 v{T2}, 3, v{T0}")
    a(f"v_and_b32 v{T3}, 1, v{T1}")
    a(f"v_lshl_or_b32 v{T2}, v{T3}, 1, v{T2}")
    a(f"v_xor_b32 v{T2}, s27, v{T2}")
    a(f"v_lshlrev_b32 v{T2}, 5, v{T2}")
    a(f"v_lshrrev_b32 v{T3}, 2, v{T0}")
    a(f"v_lshl_add_u32 v{T3}, v{T1}, 3, v{T3}")
    a(f"v_lshl_add_u32 v{T2}, v{T3}, 7, v{T2}")
    a(f"v_and_b32 v{T3}, 3, v{T0}")
    a(f"v_lshl_add_u32 v{T2}, v{T3}, 3, v{T2}")
    a(f"v_add_u32 v{VWA}, {WST}, v{T2}")
    a(f"v_mov_b32 v{VSH}, {SHIFT_NEG:#x}")
    a(f"v_cmp_gt_u32 s[34:35], 4, v{T0}")
    for n in range(5 if "earlytouch" in OPT else 4, -1, -1):
        if n:
            a(f"s_cmp_lg_u32 s58, {n}")
            a(f"s_cbranch_scc1 L2_wx{n}")
        a(f"s_waitcnt vmcnt({n})")
        if n:
            a("s_branch L2_wxdone")
            a.label(f"L2_wx{n}")
    a.label("L2_wxdone")
    stamp(a, 3)
    nd.stage_write(NT, NT + 1)
    a(f"s_mov_b32 s24, {LOG2E_NEG:#x}")
    a(f"v_lshlrev_b32 v{CV}, 16, v{CV + 2}")
    a(f"v_and_b32 v{CV + 1}, 0xffff0000, v{CV + 2}")
    a(f"v_lshlrev_b32 v{CV + 2}, 16, v{CV + 3}")
    a(f"v_and_b32 v{CV + 3}, 0xffff0000, v{CV + 3}")
    for i in range(4):
        a(f"v_mul_f32 v{CV + i}, s24, v{CV + i}")
    a("s_waitcnt lgkmcnt(0)")
    a("s_barrier")
    stamp(a, 4)
    a("s_cmp_eq_u64 s[56:57], 0")
    a("s_cbranch_scc1 L2_noflag")
    a(f"v_mov_b32 v{T2}, 0")
    a(f"ds_write_b32 v{T2}, v{VONE} offset:{MISC}")
    a.label("L2_noflag")
    A0, BA, BB_ = 32, 48, 56
    DP0, DU0 = 64, 68

    def pu_block(tag, two):
        a(f"ds_read_b128 {vr(BA, 4)}, v{VXA}")
        a(f"ds_read_b128 {vr(BA + 4, 4)}, v{VXA} offset:64")
        for m in range(2):
            for ks in range(2):
                for hh in range(2):
                    a(f"ds_read_b64_tr_b16 {vr(A0 + (m * 2 + ks) * 4 + hh * 2, 2)}, v{VWA} offset:{m * 8192 + ks * 4096 + hh * 512}")
        if two:
            a(f"ds_read_b128 {vr(BB_, 4)}, v{VXA} offset:{16 * XROW}")
            a(f"ds_read_b128 {vr(BB_ + 4, 4)}, v{VXA} offset:{16 * XROW + 64}")
        a(f"s_mov_b32 s24, {LOG2E_NEG:#x}")
        a(f"s_waitcnt lgkmcnt({2 if two else 0})")
        a(f"v_mfma_f32_16x16x32_bf16 {vr(DP0, 4)}, {vr(A0, 4)}, {vr(BA, 4)}, 0")
        a(f"v_mfma_f32_16x16x32_bf16 {vr(DU0, 4)}, {vr(A0 + 8, 4)}, {vr(BA, 4)}, 0")
        a(f"v_mfma_f32_16x16x32_bf16 {vr(DP0, 4)}, {vr(A0 + 4, 4)}, {vr(BA + 4, 4)}, {vr(DP0, 4)}")
        a(f"v_mfma_f32_16x16x32_bf16 {vr(DU0, 4)}, {vr(A0 + 12, 4)}, {vr(BA + 4, 4)}, {vr(DU0, 4)}")
        if two:
            a("s_waitcnt lgkmcnt(0)")
            a(f"v_mfma_f32_16x16x32_bf16 {vr(BA, 4)}, {vr(A0, 4)}, {vr(BB_, 4)}, 0")
            a(f"v_mfma_f32_16x16x32_bf16 {vr(BA + 4, 4)}, {vr(A0 + 8, 4)}, {vr(BB_, 4)}, 0")
            a(f"v_mfma_f32_16x16x32_bf16 {vr(BA, 4)}, {vr(A0 + 4, 4)}, {vr(BB_ + 4, 4)}, {vr(BA, 4)}")
            a(f"v_mfma_f32_16x16x32_bf16 {vr(BA + 4, 4)}, {vr(A0 + 12, 4)}, {vr(BB_ + 4, 4)}, {vr(BA + 4, 4)}")
            a("s_nop 3")
        else:
            a("s_mov_b64 exec, s[34:35]")
            a("s_nop 6")
        for i in range(4):
            a(f"v_fma_f32 v{DP0 + i}, v{DP0 + i}, s24, v{VSH}")
        a(f"ds_write_b128 v{VPA}, {vr(DP0, 4)} offset:{PL}")
        a(f"ds_write_b128 v{VPA}, {vr(DU0, 4)} offset:{PART0}")
        if two:
            for i in range(4):
                a(f"v_fma_f32 v{BA + i}, v{BA + i}, s24, v{VSH}")
            a(f"ds_write_b128 v{VPA}, {vr(BA, 4)} offset:{PL + 16 * ROW}")
            a(f"ds_write_b128 v{VPA}, {vr(BA + 4, 4)} offset:{PART0 + 16 * ROW}")
        else:
            a("s_mov_b64 exec, -1")

    a(f"s_cmp_gt_u32 s{WAVE}, 11")
    a("s_cbranch_scc1 L2_pu_last")
    pu_block("a", True)
    a("s_branch L2_pu_end")
    a.label("L2_pu_last")
    pu_block("b", False)
    a.label("L2_pu_end")
    a(f"s_movk_i32 s59, {COL}")
    if "earlytouch" in OPT:
        a(f"s_sub_u32 s24, s{WAVE}, {TOUCH0}")
        a("s_cmp_lt_u32 s24, 4")
        a("s_cbranch_scc0 L2_wall")
        a("s_waitcnt vmcnt(1)")
        a("s_branch L2_wall2")
        a.label("L2_wall")
        a("s_waitcnt vmcnt(0)")
        a.label("L2_wall2")
    else:
        a("s_waitcnt vmcnt(0)")
    stamp(a, 5)
    if "ttouch" in OPT and "earlytouch" not in OPT:
        a(f"s_cmp_lt_u32 s{WAVE}, {TOUCH0}")
        a("s_cbranch_scc1 L2_notouch")
        a(f"s_sub_u32 s25, s{WAVE}, {TOUCH0}")
        a(f"s_cmp_gt_u32 s25, 3")
        a("s_cbranch_scc1 L2_notouch")
        a("s_lshl_b32 s25, s25, 6")
        a(f"v_add_u32 v{T2}, s25, v{LANE}")
        a(f"v_min_u32 v{T2}, {NPB * 2 - 1}, v{T2}")
        a(f"v_lshlrev_b32 v{T2}, 7, v{T2}")
        a(f"s_mul_i32 s24, s2, {NPB * 256}")
        a(f"v_add_u32 v{T2}, s24, v{T2}")
        a(f"global_load_dword v126, v{T2}, {sr(WS)}")
        a.label("L2_notouch")
    for r in range(4):
        if r >= 2:
            a(f"s_cmp_eq_u64 {sr(MASK + 4 * r)}, 0")
            a(f"s_cbranch_scc1 L2_h{r}")
        for s_ in range(2):
            k = 2 * r + s_
            hi = RECS + 4 * r + 2 * s_ + 1
            a(f"s_mov_b64 exec, {sr(MASK + 2 * k)}")
            a(f"v_lshlrev_b32 v{T1}, 2, v{hi}")
            a(f"ds_add_rtn_u32 v{RANK + k}, v{T1}, v{VONE} offset:{HIST}")
            a(f"v_mad_u32_u24 v{hi}, v{hi}, s59, v{VLB}")
        if r >= 2:
            a.label(f"L2_h{r}")
    a("s_mov_b64 exec, -1")
    a("s_waitcnt lgkmcnt(0)")
    for r in range(4):
        if r >= 2:
            a(f"s_cmp_eq_u64 {sr(MASK + 4 * r)}, 0")
            a(f"s_cbranch_scc1 L2_s{r}")
        for s_ in range(2):
            k = 2 * r + s_
            lo = RECS + 4 * r + 2 * s_
            hi = lo + 1
            a(f"s_mov_b64 exec, {sr(MASK + 2 * k)}")
            a(f"v_min_u32 v{RANK + k}, 63, v{RANK + k}")
            a(f"v_lshl_add_u32 v{hi}, v{RANK + k}, 2, v{hi}")
            a(f"ds_write_b32 v{hi}, v{lo}")
        if r >= 2:
            a.label(f"L2_s{r}")
    a("s_mov_b64 exec, -1")
    a("s_waitcnt lgkmcnt(0)")
    stamp(a, 6)
    a("s_barrier")
    a(f"s_cmp_eq_u32 s{WAVE}, 15")
    a("s_cbranch_scc0 L2_b2")

    a.label("L2_order")
    a("s_setprio 3")
    CN, BN, RK = 64, 68, 72
    S0 = 56
    a(f"v_lshlrev_b32 v{T0}, 4, v{LANE}")
    a(f"ds_read_b128 {vr(CN, 4)}, v{T0} offset:{HIST}")
    a(f"v_lshrrev_b32 v{T1}, 5, v{LANE}")
    a(f"v_and_b32 v{T2}, 31, v{LANE}")
    a(f"v_cmp_gt_u32 vcc, 25, v{T2}")
    a(f"v_lshlrev_b32 v{T3}, 8, v{T1}")
    a(f"v_add_u32 v{T3}, {63 * 4}, v{T3}")
    a(f"v_mov_b32 v{S0}, {(128 + 63) * 4}")
    a(f"v_cndmask_b32 v{T3}, v{S0}, v{T3}, vcc")
    a(f"v_lshlrev_b32 v{T2}, 2, v{T2}")
    a(f"v_mul_u32_u24 v{T1}, {4 * COL}, v{LANE}")
    a(f"v_lshl_or_b32 v{T1}, v{T1}, 16, v{T2}")
    a("s_waitcnt lgkmcnt(0)")
    a(f"v_max3_u32 v{S0 + 1}, v{CN}, v{CN + 1}, v{CN + 2}")
    a(f"v_max_u32 v{S0 + 1}, v{S0 + 1}, v{CN + 3}")
    for i in range(4):
        a(f"v_min_u32 v{BN + i}, 63, v{CN + i}")
        a(f"v_lshlrev_b32 v{BN + i}, 2, v{BN + i}")
        a(f"v_sub_u32 v{BN + i}, v{T3}, v{BN + i}")
        a(f"ds_add_rtn_u32 v{RK + i}, v{BN + i}, v{VONE} offset:{HIST2}")
    a(f"ds_read_b128 {vr(S0 + 4, 4)}, v{T0} offset:{HIST2}")
    a(f"v_cmp_lt_u32 vcc, {CAPK}, v{S0 + 1}")
    a("s_cbranch_vccz L2_nocap")
    a(f"v_mov_b32 v{S0}, 0")
    a(f"ds_write_b32 v{S0}, v{VONE} offset:{MISC}")
    a.label("L2_nocap")
    a("s_waitcnt lgkmcnt(0)")
    a(f"v_add_u32 v{S0 + 1}, v{S0 + 4}, v{S0 + 5}")
    a(f"v_add_u32 v{S0 + 2}, v{S0 + 1}, v{S0 + 6}")
    a(f"v_add_u32 v{S0 + 3}, v{S0 + 2}, v{S0 + 7}")
    a(f"v_mov_b32 v{S0}, v{S0 + 3}")
    wave_scan(a, S0)
    a(f"v_sub_u32 v{S0}, v{S0}, v{S0 + 3}")
    a(f"v_add_u32 v{S0 + 3}, v{S0}, v{S0 + 2}")
    a(f"v_add_u32 v{S0 + 2}, v{S0}, v{S0 + 1}")
    a(f"v_add_u32 v{S0 + 1}, v{S0}, v{S0 + 4}")
    a(f"ds_write_b128 v{T0}, {vr(S0, 4)} offset:{BASE2}")
    for i in range(4):
        a(f"ds_read_b32 v{S0 + 4 + i}, v{BN + i} offset:{BASE2}")
    a("s_waitcnt lgkmcnt(0)")
    for i in range(4):
        a(f"v_add_u32 v{RK + i}, v{RK + i}, v{S0 + 4 + i}")
        a(f"v_lshlrev_b32 v{RK + i}, 2, v{RK + i}")
        a(f"v_add_u32 v{S0}, {i * ((COL << 16) + 1)}, v{T1}")
        a(f"ds_write_b32 v{RK + i}, v{CN + i} offset:{WCNT}")
        a(f"ds_write_b32 v{RK + i}, v{S0} offset:{WKEY}")
    a("s_setprio 0")
    a.label("L2_b2")
    a("s_waitcnt lgkmcnt(0)")
    stamp(a, 7)
    a("s_barrier")
    stamp(a, 8)
    if "noprio" not in OPT:
        a("s_setprio 3")
    NP = 4
    RA = 4
    PR = 8
    ACC = 12
    UR = 16
    DN = 20
    NM = 24
    DA = 28
    VB = 44
    IX = 76
    EV = 92
    VL = 100
    VFL = 101
    VRN = 103
    VWL = 125
    SC, SNL, SI = 61, 62, 63
    STR = 64
    SP, SDONE = 58, 59
    VOC, VON = 104, 105
    a(f"s_movk_i32 s68, {ROW}")
    assert IX == 76 and EV == 92
    a(f"v_mov_b32 v{T0}, 0")
    a(f"ds_read_b32 v{T1}, v{T0} offset:{MISC}")
    a(f"v_lshlrev_b32 v{T2}, 4, v{LANE}")
    a(f"ds_read_b32 v{VWL}, v{T2} offset:{WCNT}")
    a(f"s_lshl_b32 s26, s{WAVE}, 4")
    a(f"v_add_u32 v{T2}, s26, v{VG4}")
    a(f"ds_read_b32 v{T3}, v{T2} offset:{WKEY}")
    a("s_waitcnt lgkmcnt(0)")
    a(f"v_readfirstlane_b32 s24, v{T1}")
    a(f"v_add_u32 v{VWL}, 1, v{VWL}")
    a(f"v_lshrrev_b32 v{VWL}, 1, v{VWL}")
    a(f"v_max_u32 v{VWL}, {RA}, v{VWL}")
    a(f"v_lshrrev_b32 v{VL}, 16, v{T3}")
    a(f"v_add_u32 v{VL}, {LIST}, v{VL}")
    a("s_cmp_lg_u32 s24, 0")
    a("s_cbranch_scc1 L2_slow")
    for k in range(RA):
        a(f"ds_read_u16 v{IX + 4 * k}, v{VL} offset:{8 * k}")
        a(f"ds_read_u16 v{IX + 4 * k + 2}, v{VL} offset:{8 * k + 4}")
    a(f"v_and_b32 v{VRN}, 0xffff, v{T3}")
    a(f"v_mad_u32_u24 v{VRN}, v{VRN}, s68, v{VJ}")
    a(f"v_mov_b32 v{VFL}, v{VRN}")
    a(f"s_mov_b32 s{SP}, 0")
    a(f"s_mov_b32 s{SDONE}, 0")
    a(f"s_mov_b32 s28, {LOG2E_NEG:#x}")
    a(f"s_mov_b32 s29, {LOG2E_NEG:#x}")
    a("s_mov_b32 s30, 1.0")
    a("s_mov_b32 s31, 1.0")
    a(f"v_readlane_b32 s{SC}, v{VWL}, s{WAVE}")
    a(f"s_mov_b32 s{STR}, {RA}")
    a(f"s_mov_b32 s{SI}, s{WAVE}")
    a("s_waitcnt lgkmcnt(0)")
    for k in range(RA - 1):
        for h in range(2):
            a(f"buffer_load_dwordx4 {vr(VB + 8 * k + 4 * h, 4)}, {vr(IX + 4 * k + 2 * h, 2)}, s[36:39], 0 idxen offen")
    for k in range(RA):
        a(f"ds_read_u16_d16_hi v{EV + 2 * k}, v{VL} offset:{8 * k + 2}")
        a(f"ds_read_u16_d16_hi v{EV + 2 * k + 1}, v{VL} offset:{8 * k + 6}")
    a(f"ds_read_b128 {vr(PR, 4)}, v{VRN} offset:{PL}")
    a(f"ds_read_b128 {vr(UR, 4)}, v{VRN} offset:{PART0}")
    for i in range(4):
        a(f"v_mov_b32 v{ACC + i}, 0")
    if "noprio" not in OPT:
        a("s_setprio 2")
    a("s_waitcnt lgkmcnt(0)")
    stamp(a, 9)

    def mfma1(k, h):
        d = DA + 8 * (k & 1)
        a(f"v_mfma_f32_16x16x32_f16 {vr(d + 4 * h, 4)}, {vr(ASEL, 4)}, {vr(VB + 8 * k + 4 * h, 4)}, {vr(PR, 4)}")

    def tail1(k):
        d = DA + 8 * (k & 1)
        vb = VB + 8 * k
        for h in range(2):
            a(f"v_pk_mul_f32 {vr(DN + 2 * h, 2)}, {vr(d + 2 * h, 2)}, {vr(d + 4 + 2 * h, 2)}")
        for h in range(2):
            a(f"v_pk_mul_f32 {vr(NM + 2 * h, 2)}, {vr(vb + 2 * h, 2)}, {vr(d + 4 + 2 * h, 2)}")
        for h in range(2):
            a(f"v_pk_fma_f32 {vr(NM + 2 * h, 2)}, {vr(vb + 4 + 2 * h, 2)}, {vr(d + 2 * h, 2)}, {vr(NM + 2 * h, 2)}")

    def rcp2(h):
        a(f"v_rcp_f32 v{DN + 2 * h}, v{DN + 2 * h}")
        a(f"v_rcp_f32 v{DN + 2 * h + 1}, v{DN + 2 * h + 1}")

    def tail2():
        a(f"v_pk_fma_f32 {vr(ACC, 2)}, {vr(NM, 2)}, {vr(DN, 2)}, {vr(ACC, 2)}")
        a(f"v_pk_fma_f32 {vr(ACC + 2, 2)}, {vr(NM + 2, 2)}, {vr(DN + 2, 2)}, {vr(ACC + 2, 2)}")

    def read_idx(k):
        a(f"ds_read_u16 v{IX + 4 * k}, v{VL} offset:{8 * (RA + k)}")
        a(f"ds_read_u16 v{IX + 4 * k + 2}, v{VL} offset:{8 * (RA + k) + 4}")

    def read_e(k):
        a(f"ds_read_u16_d16_hi v{EV + 2 * k}, v{VL} offset:{8 * (RA + k) + 2}")
        a(f"ds_read_u16_d16_hi v{EV + 2 * k + 1}, v{VL} offset:{8 * (RA + k) + 6}")

    def gather(k):
        p = (k - 1) % NP
        if "nogather" not in OPT:
            for h in range(2):
                a(f"buffer_load_dwordx4 {vr(VB + 8 * p + 4 * h, 4)}, {vr(IX + 4 * p + 2 * h, 2)}, s[36:39], 0 idxen offen")

    def front(k):
        d = DA + 8 * (k & 1)
        ep = EV + 2 * k
        for h in range(2):
            osel = "op_sel:[1,0,0] op_sel_hi:[1,1,1]" if h else "op_sel_hi:[0,1,1]"
            a(f"v_pk_fma_f32 {vr(d + 4 * h, 2)}, {vr(ep, 2)}, {vr(CV, 2)}, {vr(d + 4 * h, 2)} {osel}")
            a(f"v_pk_fma_f32 {vr(d + 4 * h + 2, 2)}, {vr(ep, 2)}, {vr(CV + 2, 2)}, {vr(d + 4 * h + 2, 2)} {osel}")
        read_e(k)
        for i in range(8):
            a(f"v_exp_f32_e64 v{d + i}, v{d + i} clamp")
            if i == 5:
                a(f"v_pk_add_f32 {vr(d, 2)}, {vr(d, 2)}, s[66:67]")
        a(f"v_pk_add_f32 {vr(d + 2, 2)}, {vr(d + 2, 2)}, s[66:67]")
        a(f"v_pk_add_f32 {vr(d + 4, 2)}, {vr(d + 4, 2)}, s[66:67]")
        a(f"v_pk_add_f32 {vr(d + 6, 2)}, {vr(d + 6, 2)}, s[66:67]")

    def flush(k):
        a(f"s_cmp_lg_u32 s{SP}, 0")
        a(f"s_cbranch_scc1 L2_fin{k}")
        a(f"v_pk_fma_f32 {vr(UR, 2)}, {vr(ACC, 2)}, s[66:67], {vr(UR, 2)}")
        a(f"v_pk_fma_f32 {vr(UR + 2, 2)}, {vr(ACC + 2, 2)}, s[66:67], {vr(UR + 2, 2)}")
        a(f"ds_write_b128 v{VFL}, {vr(UR, 4)} offset:{PART0}")
        a(f"ds_add_u32 v{VQ}, v{VONE} offset:4")
        a(f"s_branch L2_fld{k}")
        a.label(f"L2_fin{k}")
        a(f"s_cmp_lg_u32 s{SDONE}, 0")
        a(f"s_cbranch_scc1 L2_rdy{k}")
        a("s_mov_b32 s25, 0")
        a.label(f"L2_spin{k}")
        a(f"v_mov_b32 v{T2}, 0")
        a(f"ds_read_b32 v{T2}, v{T2} offset:{MISC + 12}")
        a("s_waitcnt lgkmcnt(0)")
        a(f"v_readfirstlane_b32 s24, v{T2}")
        a("s_nop 3")
        a(f"s_cmp_ge_u32 s24, {NWIN // 2}")
        a(f"s_cbranch_scc1 L2_seen{k}")
        a("s_sleep 2")
        a("s_add_u32 s25, s25, 1")
        a("s_cmp_lt_u32 s25, 0x400000")
        a(f"s_cbranch_scc1 L2_spin{k}")
        a.label(f"L2_seen{k}")
        a(f"s_mov_b32 s{SDONE}, 1")
        a.label(f"L2_rdy{k}")
        a(f"ds_read_b128 {vr(UR, 4)}, v{VFL} offset:{PART0}")
        a("s_waitcnt lgkmcnt(0)")
        a(f"v_pk_fma_f32 {vr(UR, 2)}, {vr(ACC, 2)}, s[66:67], {vr(UR, 2)}")
        a(f"v_pk_fma_f32 {vr(UR + 2, 2)}, {vr(ACC + 2, 2)}, s[66:67], {vr(UR + 2, 2)}")
        a(f"v_pk_mul_f32 {vr(DN, 2)}, {vr(UR, 2)}, s[28:29]")
        a(f"v_pk_mul_f32 {vr(DN + 2, 2)}, {vr(UR + 2, 2)}, s[28:29]")
        for i in range(4):
            a(f"v_exp_f32 v{DN + i}, v{DN + i}")
        a(f"v_pk_add_f32 {vr(DN, 2)}, {vr(DN, 2)}, s[30:31]")
        a(f"v_pk_add_f32 {vr(DN + 2, 2)}, {vr(DN + 2, 2)}, s[30:31]")
        for i in range(4):
            a(f"v_rcp_f32 v{DN + i}, v{DN + i}")
        a(f"v_pk_mul_f32 {vr(UR, 2)}, {vr(UR, 2)}, {vr(DN, 2)}")
        a(f"v_pk_mul_f32 {vr(UR + 2, 2)}, {vr(UR + 2, 2)}, {vr(DN + 2, 2)}")
        a(f"v_cvt_pk_bf16_f32 v{NM}, v{UR}, v{UR + 1}")
        a(f"v_cvt_pk_bf16_f32 v{NM + 1}, v{UR + 2}, v{UR + 3}")
        a(f"global_store_dwordx2 v{VOC}, {vr(NM, 2)}, {sr(OUT)}{STO}")
        a.label(f"L2_fld{k}")

    VW = 2 * (RA - 2)
    a(f"s_cmp_eq_u32 s{SC}, s{STR}")
    a("s_cbranch_scc1 L2_pop_first")
    a.label("L2_first_cont")
    if "nogather" not in OPT:
        a(f"s_waitcnt vmcnt({VW})")
    mfma1(0, 0)
    mfma1(0, 1)
    read_idx(0)
    a("s_nop 2")
    gather(0)
    a("s_branch L2_mid0")

    a.label("L2_loop")
    for k in range(NP):
        pk = (k - 1) % NP
        a(f"s_cmp_eq_u32 s{SC}, s{STR}")
        a(f"s_cbranch_scc1 L2_ev{k}")
        a.label(f"L2_cont{k}")
        tail1(pk)
        if "nogather" not in OPT:
            a(f"s_waitcnt vmcnt({VW})")
        mfma1(k, 0)
        rcp2(0)
        mfma1(k, 1)
        rcp2(1)
        read_idx(k)
        tail2()
        a("s_waitcnt lgkmcnt(4)")
        gather(k)
        a.label(f"L2_mid{k}")
        front(k)
        a(f"s_sub_u32 s{SC}, s{SC}, 1")
        if k == NP - 1:
            a(f"v_add_u32 v{VL}, {8 * NP}, v{VL}")
            a("s_branch L2_loop")

    def pop(k, cont):
        a(f"ds_add_rtn_u32 v{T2}, v{VQ}, v{VONE}")
        a(f"s_mov_b32 s{STR}, 0")
        a("s_waitcnt lgkmcnt(0)")
        a(f"v_readfirstlane_b32 s{SI}, v{T2}")
        a(f"s_mov_b32 s{SNL}, 0")
        a(f"v_mov_b32 v{VL}, {LIST + DUMMY_COL - 8 * (RA + k)}")
        a("s_nop 1")
        a(f"s_cmp_lt_u32 s{SI}, {NWIN}")
        a(f"s_cbranch_scc0 {cont}")
        a(f"s_lshl_b32 s26, s{SI}, 4")
        a(f"v_add_u32 v{T2}, s26, v{VG4}")
        a(f"ds_read_b32 v{T3}, v{T2} offset:{WKEY}")
        a(f"v_readlane_b32 s{SNL}, v{VWL}, s{SI}")
        a("s_waitcnt lgkmcnt(0)")
        a(f"v_and_b32 v{VRN}, 0xffff, v{T3}")
        a(f"v_lshrrev_b32 v{VL}, 16, v{T3}")
        a(f"v_lshl_add_u32 v{VON}, v{VRN}, 7, v{VZ}")
        a(f"v_mad_u32_u24 v{VRN}, v{VRN}, s68, v{VJ}")
        a(f"v_add_u32 v{VL}, {LIST - 8 * (RA + k)}, v{VL}")
        a(f"s_branch {cont}")

    a.label("L2_pop_first")
    pop(0, "L2_first_cont")
    for k in range(NP):
        pk = (k - 1) % NP
        a.label(f"L2_ev{k}")
        a(f"s_cmp_eq_u32 s{STR}, 0")
        a(f"s_cbranch_scc1 L2_sw{k}")
        pop(k, f"L2_cont{k}")
        a.label(f"L2_sw{k}")
        tail1(pk)
        rcp2(0)
        rcp2(1)
        a("s_nop 0")
        tail2()
        flush(k)
        a(f"s_cmp_eq_u32 s{SNL}, 0")
        a("s_cbranch_scc1 L2_exit")
        a(f"ds_read_b128 {vr(PR, 4)}, v{VRN} offset:{PL}")
        a(f"ds_read_b128 {vr(UR, 4)}, v{VRN} offset:{PART0}")
        for i in range(4):
            a(f"v_mov_b32 v{ACC + i}, 0")
        a(f"v_mov_b32 v{VFL}, v{VRN}")
        a(f"v_mov_b32 v{VOC}, v{VON}")
        a(f"s_cmp_ge_u32 s{SI}, {NWIN // 2}")
        a(f"s_cselect_b32 s{SP}, 1, 0")
        a(f"s_mov_b32 s{SC}, s{SNL}")
        a(f"s_mov_b32 s{STR}, {RA}")
        if "noprio" not in OPT:
            a(f"s_cmp_lt_u32 s{SI}, {PRIO_B}")
            a(f"s_cbranch_scc1 L2_p1_{k}")
            a("s_setprio 0")
            a(f"s_branch L2_pd_{k}")
            a.label(f"L2_p1_{k}")
            a(f"s_cmp_lt_u32 s{SI}, {PRIO_A}")
            a(f"s_cbranch_scc1 L2_pd_{k}")
            a("s_setprio 1")
            a.label(f"L2_pd_{k}")
        a(f"s_cmp_eq_u32 s{SC}, {RA}")
        a(f"s_cbranch_scc0 L2_sw2_{k}")
        pop(k, f"L2_sw2_{k}")
        a.label(f"L2_sw2_{k}")
        if "nogather" not in OPT:
            a(f"s_waitcnt vmcnt({VW}) lgkmcnt(0)")
        else:
            a("s_waitcnt lgkmcnt(0)")
        mfma1(k, 0)
        mfma1(k, 1)
        read_idx(k)
        a("s_nop 2")
        gather(k)
        a(f"s_branch L2_mid{k}")

    a.label("L2_exit")
    stamp(a, 10)
    stamp(a, 11)
    stamp(a, 12)
    if STAMPS or "dbgs" in OPT:
        a("s_waitcnt vmcnt(0)")
    stamp(a, 13)
    stamp(a, 21, True)
    stamp_flush(a, 1)
    a("s_endpgm")

    a.label("L2_slow")
    SSC, SCN, SRI = 61, 62, 63
    a(f"v_lshlrev_b32 v{T0}, 2, v{LANE}")
    a(f"v_lshlrev_b32 v{T1}, 1, v{LANE}")
    a(f"v_add_u32 v{T1}, {128 * 128}, v{T1}")
    a(f"global_load_ushort v{T2}, v{T1}, {sr(GW)}")
    a(f"s_mov_b32 s24, {LOG2E_NEG:#x}")
    a("s_waitcnt vmcnt(0) lgkmcnt(0)")
    a(f"v_lshlrev_b32 v{T2}, 16, v{T2}")
    a(f"v_mul_f32 v8, s24, v{T2}")
    a(f"s_mov_b32 s{SSC}, 0")
    a.label("L2_slow_seg")
    a(f"s_cmp_ge_u32 s{SSC}, {NC}")
    a("s_cbranch_scc1 L2_done")
    a(f"s_lshl_b32 s24, s{SSC}, 8")
    a("s_add_u32 s24, s24, s2")
    a("s_lshl_b32 s24, s24, 2")
    a(f"s_add_u32 s24, s24, {SEG_OFF}")
    a(f"v_mov_b32 v{T1}, s24")
    a(f"global_load_dword v{T2}, v{T1}, {sr(WS)}")
    a("s_waitcnt vmcnt(0)")
    a(f"v_readfirstlane_b32 s25, v{T2}")
    a("s_nop 3")
    a(f"s_lshr_b32 s{SCN}, s25, 16")
    a("s_and_b32 s25, s25, 0xffff")
    a(f"s_mul_i32 s26, s{SSC}, {EPC}")
    a("s_add_u32 s26, s26, s25")
    a("s_lshl_b32 s26, s26, 3")
    a(f"s_add_u32 s{SRI}, s26, {REC_OFF}")
    a.label("L2_slow_rec")
    a(f"s_cmp_eq_u32 s{SCN}, 0")
    a("s_cbranch_scc1 L2_slow_next")
    a(f"v_mov_b32 v{T1}, s{SRI}")
    a(f"global_load_dwordx2 v[10:11], v{T1}, {sr(WS)}")
    a(f"s_add_u32 s{SRI}, s{SRI}, 8")
    a(f"s_sub_u32 s{SCN}, s{SCN}, 1")
    a("s_waitcnt vmcnt(0)")
    a("v_and_b32 v14, 127, v11")
    a("v_and_b32 v15, 15, v14")
    a("s_nop 0")
    a("v_readfirstlane_b32 s25, v15")
    a("s_nop 3")
    a(f"s_cmp_lg_u32 s25, s{WAVE}")
    a("s_cbranch_scc1 L2_slow_rec")
    a("v_and_b32 v18, 0xffff, v10")
    a(f"v_mov_b32 v19, v{T0}")
    a("buffer_load_dword v13, v[18:19], s[36:39], 0 idxen offen")
    a(f"v_mul_u32_u24 v14, {ROW}, v14")
    a(f"v_add_u32 v14, v14, v{T0}")
    a(f"ds_read_b32 v15, v14 offset:{PL}")
    a(f"ds_read_b32 v17, v14 offset:{PART0}")
    a("v_and_b32 v11, 0xffff0000, v10")
    a("s_waitcnt vmcnt(0) lgkmcnt(0)")
    a("v_cvt_f32_f16 v16, v13")
    a("v_add_f32 v16, v16, v15")
    a("v_fmac_f32 v16, v11, v8")
    a("v_exp_f32 v16, v16")
    a(f"s_mov_b32 s25, {TINY:#x}")
    a("v_add_f32 v16, s25, v16")
    a("v_rcp_f32 v16, v16")
    a("s_nop 0")
    a("v_mul_f32 v16, s25, v16")
    a("v_fmac_f32 v17, v16, v13")
    a(f"ds_write_b32 v14, v17 offset:{PART0}")
    a("s_waitcnt lgkmcnt(0)")
    a("s_branch L2_slow_rec")
    a.label("L2_slow_next")
    a(f"s_add_u32 s{SSC}, s{SSC}, 1")
    a("s_branch L2_slow_seg")

    a.label("L2_done")
    stamp(a, 10)
    a("s_setprio 0")
    a(f"v_lshrrev_b32 v{T0}, 4, v{TID}")
    a(f"v_and_b32 v{T1}, 15, v{TID}")
    a(f"v_mul_u32_u24 v{T2}, {ROW}, v{T0}")
    a(f"v_lshl_add_u32 v{T2}, v{T1}, 4, v{T2}")
    a(f"s_mul_i32 s24, s2, {NPB * 128}")
    a(f"v_lshlrev_b32 v{T3}, 7, v{T0}")
    a(f"v_lshl_add_u32 v{T3}, v{T1}, 3, v{T3}")
    a(f"v_add_u32 v{T3}, s24, v{T3}")
    a(f"v_add_u32 v7, {64 * ROW}, v{T2}")
    a(f"v_add_u32 v6, {64 * 128}, v{T3}")
    a(f"s_mov_b32 s24, {LOG2E_NEG:#x}")
    a(f"s_mov_b32 s25, {LOG2E_NEG:#x}")
    a("s_mov_b32 s26, 1.0")
    a("s_mov_b32 s27, 1.0")
    a("s_waitcnt vmcnt(0) lgkmcnt(0)")
    a("s_barrier")
    stamp(a, 11)

    def silu_store(src, off):
        a(f"v_pk_mul_f32 {vr(src + 4, 2)}, {vr(src, 2)}, s[24:25]")
        a(f"v_pk_mul_f32 {vr(src + 6, 2)}, {vr(src + 2, 2)}, s[24:25]")
        for i in range(4):
            a(f"v_exp_f32 v{src + 4 + i}, v{src + 4 + i}")
        a(f"v_pk_add_f32 {vr(src + 4, 2)}, {vr(src + 4, 2)}, s[26:27]")
        a(f"v_pk_add_f32 {vr(src + 6, 2)}, {vr(src + 6, 2)}, s[26:27]")
        for i in range(4):
            a(f"v_rcp_f32 v{src + 4 + i}, v{src + 4 + i}")
        a(f"v_pk_mul_f32 {vr(src, 2)}, {vr(src, 2)}, {vr(src + 4, 2)}")
        a(f"v_pk_mul_f32 {vr(src + 2, 2)}, {vr(src + 2, 2)}, {vr(src + 6, 2)}")
        a(f"v_cvt_pk_bf16_f32 v{src + 4}, v{src}, v{src + 1}")
        a(f"v_cvt_pk_bf16_f32 v{src + 5}, v{src + 2}, v{src + 3}")
        a(f"global_store_dwordx2 v{off}, {vr(src + 4, 2)}, {sr(OUT)}{STO}")

    a(f"ds_read_b128 v[8:11], v{T2} offset:{PART0}")
    a(f"s_cmp_lt_u32 s{WAVE}, 9")
    a("s_cbranch_scc0 L2_ep1")
    a(f"ds_read_b128 v[16:19], v7 offset:{PART0}")
    a("s_waitcnt lgkmcnt(0)")
    silu_store(16, 6)
    a.label("L2_ep1")
    a("s_waitcnt lgkmcnt(0)")
    silu_store(8, T3)
    if "dbgt" in OPT:
        a("s_waitcnt vmcnt(0)")
    dbg_time(a, 1, 3)
    stamp(a, 12)
    if STAMPS:
        a("s_waitcnt vmcnt(0)")
    stamp(a, 13)
    stamp(a, 21, True)
    stamp_flush(a, 1)
    a.label("L2_end")
    a("s_endpgm")
    return LDS, 128


def descriptor(a, name, vgprs, sgprs=80):
    a(f".amdhsa_kernel {name}")
    a(f"  .amdhsa_next_free_vgpr {vgprs}")
    a(f"  .amdhsa_next_free_sgpr {sgprs}")
    a(f"  .amdhsa_accum_offset {vgprs}")
    a("  .amdhsa_group_segment_fixed_size 0")
    a("  .amdhsa_kernarg_size 80")
    a("  .amdhsa_user_sgpr_count 2")
    a("  .amdhsa_user_sgpr_kernarg_segment_ptr 1")
    a("  .amdhsa_system_sgpr_workgroup_id_x 1")
    a("  .amdhsa_float_denorm_mode_32 3")
    a(".end_amdhsa_kernel")


def main():
    global STAMPS, ST, STT, STR_, STO
    if "--stamps" in sys.argv:
        STAMPS = True
        sys.argv.remove("--stamps")
    for o in OPT:
        if o.startswith("st="):
            ST = STT = STR_ = " " + o[3:].replace("+", " ")
        if o.startswith("stt="):
            STT = " " + o[4:].replace("+", " ")
        if o.startswith("sto="):
            STO = " " + o[4:].replace("+", " ")
        if o.startswith("str="):
            STR_ = " " + o[4:].replace("+", " ")
    body = Asm()
    body(".amdgcn_target \"amdgcn-amd-amdhsa--gfx950\"")
    body(".text")
    lds1, v1 = gen_k1(body)
    lds2, v2 = gen_k2(body)
    body(".section .rodata,\"a\"")
    body(".p2align 6")
    descriptor(body, K1, 128 if (STAMPS or 'dbgt' in OPT) else v1)
    body(".p2align 6")
    descriptor(body, K2, v2)
    head = [
        "; Edge-gated MPNN layer in two launches (generated by a hand-written generator script).",
        "; launch 1: partitions the edges by destination bucket and builds the per-node source table",
        "; launch 2: per bucket of 100 nodes: sorts its edges, gated aggregation, SiLU epilogue",
        f"; @launch kernel={K1} grid=({NC},1,1) block=(1024,1,1) lds={lds1}",
        f"; @launch kernel={K2} grid=({NB},1,1) block=(1024,1,1) lds={lds2}",
    ]
    out = "\n".join(head) + "\n" + body.text()
    path = sys.argv[1] if len(sys.argv) > 1 else "standalone__edge_featured_mpnn_egc__graph.s"
    open(path, "w").write(out)
    print("wrote", path, "lds", lds1, lds2)


if __name__ == "__main__":
    main()
```

```python
import os
import sys

N = 25000
E = 800000
NB = 250
NPB = 100
NC = 250
EPC = 3200
HALF = 12500

T_OFF = 0
REC_OFF = int(os.environ.get('REC_OFF', '0x700000'), 0)
SEG_OFF = REC_OFF + 0x700000

LOG2E_NEG = 0xBFB8AA3B
SHIFT_NEG = 0xC2700000
TINY = 0x21800000
ROW = 272
XROW = 144

K1 = "egc_part_kernel"
K2 = "standalone__edge_featured_mpnn_egc__graph_kernel"

OPT = set(os.environ.get("OPT", "").split(","))
TOUCH0 = int(os.environ.get('TOUCH0', '12'))
PRIO_A = int(os.environ.get('PRIO_A', '25'))
PRIO_B = int(os.environ.get('PRIO_B', '38'))
STAMPS = False
STAMP_OFF = 0x2000000
SV = 127

X, EA, SRC, DST, UW, VW, GW, OUT, WS = 4, 6, 8, 10, 12, 14, 16, 18, 20
WAVE = 22


DBGS_SLOTS = {0: None, 1: 0, 3: 1, 4: 2, 5: 3, 6: 4, 8: 5, 9: 6, 10: 7}


def stamp(a, i, real=False):
    if "dbgs" in OPT and a.kernel == 2 and not real:
        a("s_memtime s[70:71]")
        a("s_waitcnt lgkmcnt(0)")
        a(f"v_writelane_b32 v127, s70, {i}")
        return
    if not STAMPS:
        return
    a(f"s_mem{'real' if real else ''}time s[70:71]")
    a("s_waitcnt lgkmcnt(0)")
    a(f"v_writelane_b32 v{SV}, s70, {i}")


TIME_OFF = 0x2800000


def dbg_time(a, which, slot, neg=False, tag=""):
    if "dbgt" not in OPT:
        return
    a("v_readfirstlane_b32 s78, v0")
    a("s_nop 3")
    a("s_cmp_lg_u32 s78, 0")
    a(f"s_cbranch_scc1 L_dbg_{which}_{slot}")
    a("s_memrealtime s[70:71]")
    a(f"s_load_dwordx2 s[74:75], s[0:1], {72 if which == 0 else 64}")
    a("s_waitcnt lgkmcnt(0)")
    if neg:
        a("s_not_b32 s70, s70")
    a("v_mov_b32 v125, s70")
    a("s_mov_b64 s[76:77], exec")
    a("s_mov_b64 exec, 1")
    if which == 0:
        a("s_lshl_b32 s78, s2, 3")
        a(f"s_add_u32 s78, s78, {TIME_OFF + slot * 4}")
        a("v_mov_b32 v126, s78")
        a("global_store_dword v126, v125, s[74:75]")
    else:
        a(f"v_mov_b32 v126, {slot * 4}")
        a("global_atomic_umax v126, v125, s[74:75]")
    a("s_mov_b64 exec, s[76:77]")
    if which == 1 and slot == 2:
        a("s_cmp_lg_u32 s2, 0")
        a(f"s_cbranch_scc1 L_dbg_{which}_{slot}")
        a("s_load_dwordx2 s[76:77], s[0:1], 72")
        a("s_waitcnt lgkmcnt(0)")
        for r in range(4):
            a(f"v_add_u32 v124, {64 * r}, v0")
            a("v_min_u32 v124, 249, v124")
            a("v_lshlrev_b32 v124, 3, v124")
            a(f"v_add_u32 v124, {TIME_OFF}, v124")
            a("global_load_dwordx2 v[122:123], v124, s[76:77]")
            a("s_waitcnt vmcnt(0)")
            a("v_mov_b32 v126, 16")
            a("global_atomic_umax v126, v122, s[74:75]")
            a("v_mov_b32 v126, 20")
            a("global_atomic_umax v126, v123, s[74:75]")
        a("s_waitcnt vmcnt(0)")
    a.label(f"L_dbg_{which}_{slot}")


def stamp_flush(a, which):
    if "dbgs" in OPT and which == 1:
        a.nflush = getattr(a, "nflush", 0) + 1
        a(f"s_cmp_lg_u32 s{WAVE}, 12")
        a(f"s_cbranch_scc1 L_dbgs_skip{a.nflush}")
        a("s_load_dwordx2 s[74:75], s[0:1], 64")
        a("v_readlane_b32 s70, v127, 0")
        a("s_waitcnt lgkmcnt(0)")
        a("v_subrev_u32 v126, s70, v127")
        a("v_and_b32 v125, 63, v0")
        a("v_cmp_gt_u32 vcc, 16, v125")
        a("v_lshlrev_b32 v125, 2, v125")
        a("s_and_saveexec_b64 s[76:77], vcc")
        a("global_atomic_umax v125, v126, s[74:75]")
        a("s_mov_b64 exec, s[76:77]")
        a.label(f"L_dbgs_skip{a.nflush}")
        return
    if not STAMPS:
        return
    a("s_lshl_b32 s72, s2, 4")
    a(f"s_add_u32 s72, s72, s{WAVE}")
    a("s_lshl_b32 s72, s72, 8")
    a(f"s_add_u32 s72, s72, {STAMP_OFF + which * 0x200000}")
    a("v_and_b32 v126, 63, v0")
    a("v_lshlrev_b32 v126, 2, v126")
    a("v_add_u32 v126, s72, v126")
    a(f"global_store_dword v126, v{SV}, s[20:21]")


class Asm:
    def __init__(self):
        self.lines = []
        self.kernel = 1

    def __call__(self, s=""):
        for ln in s.split("\n"):
            self.lines.append(ln if ln.strip().endswith(":") else "    " + ln.strip())

    def label(self, s):
        self.lines.append(s + ":")

    def text(self):
        return "\n".join(self.lines) + "\n"


def vr(a, n):
    return f"v[{a}:{a + n - 1}]"


def sr(a, n=2):
    return f"s[{a}:{a + n - 1}]"


def wave_scan(a, v):
    for sh in (1, 2, 4, 8):
        a("s_nop 1")
        a(f"v_add_u32_dpp v{v}, v{v}, v{v} row_shr:{sh} row_mask:0xf bank_mask:0xf bound_ctrl:0")
    a("s_nop 1")
    a(f"v_add_u32_dpp v{v}, v{v}, v{v} row_bcast:15 row_mask:0xa bank_mask:0xf")
    a("s_nop 1")
    a(f"v_add_u32_dpp v{v}, v{v}, v{v} row_bcast:31 row_mask:0xc bank_mask:0xf")
    a("s_nop 1")


WSBASE = int(os.environ.get("WSBASE", "0"), 0)


def remap_wg(a, which):
    if f"noremap{which}" in OPT:
        return
    a("s_and_b32 s24, s2, 7")
    a("s_lshr_b32 s2, s2, 3")
    a("s_mov_b32 s23, s2")
    a("s_mul_i32 s25, s24, 31")
    a("s_min_u32 s24, s24, 2")
    a("s_add_u32 s2, s2, s25")
    a("s_add_u32 s2, s2, s24")


def warm_l2(a, lane, t0, t1, dst):
    for n in range(2):
        a(f"s_lshl_b32 s24, s{WAVE}, 7")
        a(f"s_add_u32 s24, s24, {n * 64}")
        a(f"v_add_u32 v{t0}, s24, v{lane}")
        a(f"v_min_u32 v{t0}, 1599, v{t0}")
        a(f"v_lshrrev_b32 v{t1}, 2, v{t0}")
        a("s_mul_i32 s24, s23, 400")
        a(f"v_add_u32 v{t1}, s24, v{t1}")
        a(f"v_min_u32 v{t1}, 12711, v{t1}")
        a(f"v_and_b32 v{t0}, 3, v{t0}")
        a(f"v_lshlrev_b32 v{t0}, 6, v{t0}")
        a(f"v_and_b32 v125, 0xfffff000, v{t1}")
        a(f"v_add_u32 v{t1}, v{t1}, v125")
        a(f"v_lshl_add_u32 v{t0}, v{t1}, 8, v{t0}")
        a(f"global_load_dword v{dst}, v{t0}, {sr(WS)}")


def load_ptrs(a):
    a("s_load_dwordx16 s[4:19], s[0:1], 0")
    a("s_load_dwordx2 s[20:21], s[0:1], 72")


def fix_ws(a):
    if WSBASE:
        a(f"s_add_u32 s20, s20, {WSBASE}")
        a("s_addc_u32 s21, s21, 0")


ST = ""
STT = ""
STR_ = ""
STO = ""


class Node:
    def __init__(self, a, WST, XST, tid, lane, vw, vx, t):
        self.a, self.WST, self.XST = a, WST, XST
        self.tid, self.lane, self.vw, self.vx, self.t = tid, lane, vw, vx, t

    def issue_loads(self, p0, off0, p1):
        a, t = self.a, self.t
        a(f"s_cmp_lt_u32 s{WAVE}, 8")
        a(f"s_cselect_b32 s24, s{p0}, s{p1}")
        a(f"s_cselect_b32 s25, s{p0 + 1}, s{p1 + 1}")
        if off0:
            a(f"s_cselect_b32 s26, {off0}, 0")
            a("s_add_u32 s24, s24, s26")
            a("s_addc_u32 s25, s25, 0")
        a(f"v_and_b32 v{t}, 511, v{self.tid}")
        a(f"v_lshlrev_b32 v{t}, 4, v{t}")
        a(f"global_load_dwordx4 {vr(self.vw, 4)}, v{t}, s[24:25]")
        a(f"v_min_u32 v{t}, {NPB * 8 - 1}, v{self.tid}")
        a(f"v_lshlrev_b32 v{t}, 4, v{t}")
        a(f"s_mul_i32 s26, s2, {NPB * 128}")
        a(f"v_add_u32 v{t}, s26, v{t}")
        a(f"global_load_dwordx4 {vr(self.vx, 4)}, v{t}, {sr(X)}")

    def stage(self):
        a, t, tid = self.a, self.t, self.tid
        a(f"v_bfe_u32 v{t}, v{tid}, 4, 1")
        a(f"v_bfe_u32 v{t + 1}, v{tid}, 6, 1")
        a(f"v_lshl_or_b32 v{t}, v{t + 1}, 1, v{t}")
        a(f"v_lshlrev_b32 v{t}, 5, v{t}")
        a(f"v_lshlrev_b32 v{t + 1}, 4, v{tid}")
        a(f"v_xor_b32 v{t}, v{t}, v{t + 1}")
        a(f"v_add_u32 v{t}, {self.WST}, v{t}")
        a(f"ds_write_b128 v{t}, {vr(self.vw, 4)}")
        a(f"v_lshrrev_b32 v{t}, 3, v{tid}")
        a(f"v_mul_u32_u24 v{t}, {XROW}, v{t}")
        a(f"v_and_b32 v{t + 1}, 7, v{tid}")
        a(f"v_lshl_add_u32 v{t}, v{t + 1}, 4, v{t}")
        a(f"v_add_u32 v{t}, {self.XST}, v{t}")
        a(f"v_cmp_gt_u32 vcc, {NPB * 8}, v{tid}")
        a("s_and_saveexec_b64 s[32:33], vcc")
        a(f"ds_write_b128 v{t}, {vr(self.vx, 4)}")
        a("s_mov_b64 exec, s[32:33]")

    def stage_addr(self, vw_a, vx_a, t):
        a, tid = self.a, self.tid
        a(f"v_bfe_u32 v{vw_a}, v{tid}, 4, 1")
        a(f"v_bfe_u32 v{t}, v{tid}, 6, 1")
        a(f"v_lshl_or_b32 v{vw_a}, v{t}, 1, v{vw_a}")
        a(f"v_lshlrev_b32 v{vw_a}, 5, v{vw_a}")
        a(f"v_lshlrev_b32 v{t}, 4, v{tid}")
        a(f"v_xor_b32 v{vw_a}, v{vw_a}, v{t}")
        a(f"v_add_u32 v{vw_a}, {self.WST}, v{vw_a}")
        a(f"v_lshrrev_b32 v{vx_a}, 3, v{tid}")
        a(f"v_mul_u32_u24 v{vx_a}, {XROW}, v{vx_a}")
        a(f"v_and_b32 v{t}, 7, v{tid}")
        a(f"v_lshl_add_u32 v{vx_a}, v{t}, 4, v{vx_a}")
        a(f"v_add_u32 v{vx_a}, {self.XST}, v{vx_a}")

    def stage_write(self, vw_a, vx_a):
        a, tid = self.a, self.tid
        a(f"ds_write_b128 v{vw_a}, {vr(self.vw, 4)}")
        a(f"v_cmp_gt_u32 vcc, {NPB * 8}, v{tid}")
        a("s_and_saveexec_b64 s[32:33], vcc")
        a(f"ds_write_b128 v{vx_a}, {vr(self.vx, 4)}")
        a("s_mov_b64 exec, s[32:33]")

    def pair_reads(self, aop, xop, vloc):
        a, t, lane = self.a, self.t, self.lane
        a(f"s_and_b32 s27, s{WAVE}, 1")
        a("s_lshl_b32 s27, s27, 1")
        a(f"s_lshr_b32 s26, s{WAVE}, 1")
        a(f"v_and_b32 v{t}, 15, v{lane}")
        a(f"v_lshrrev_b32 v{t + 1}, 4, v{lane}")
        a("s_lshl_b32 s26, s26, 4")
        a(f"v_add_u32 v{vloc}, s26, v{t}")
        a(f"v_mul_u32_u24 v{t + 2}, {XROW}, v{vloc}")
        a(f"v_lshl_add_u32 v{t + 2}, v{t + 1}, 4, v{t + 2}")
        a(f"v_add_u32 v{t + 2}, {self.XST}, v{t + 2}")
        a(f"ds_read_b128 {vr(xop, 4)}, v{t + 2}")
        a(f"ds_read_b128 {vr(xop + 4, 4)}, v{t + 2} offset:64")
        a(f"v_lshrrev_b32 v{t + 2}, 3, v{t}")
        a(f"v_and_b32 v{xop + 8}, 1, v{t + 1}")
        a(f"v_lshl_or_b32 v{t + 2}, v{xop + 8}, 1, v{t + 2}")
        a(f"v_xor_b32 v{t + 2}, s27, v{t + 2}")
        a(f"v_lshlrev_b32 v{t + 2}, 5, v{t + 2}")
        a(f"v_lshrrev_b32 v{xop + 8}, 2, v{t}")
        a(f"v_lshl_add_u32 v{xop + 8}, v{t + 1}, 3, v{xop + 8}")
        a(f"v_lshl_add_u32 v{t + 2}, v{xop + 8}, 7, v{t + 2}")
        a(f"v_and_b32 v{xop + 8}, 3, v{t}")
        a(f"v_lshl_add_u32 v{t + 2}, v{xop + 8}, 3, v{t + 2}")
        a(f"v_add_u32 v{t + 2}, {self.WST}, v{t + 2}")
        assert self.WST % 128 == 0
        for c in range(2):
            if c:
                a("s_waitcnt lgkmcnt(6)")
                a(f"v_xor_b32 v{t + 2}, 32, v{t + 2}")
            for m in range(2):
                for ks in range(2):
                    for hh in range(2):
                        r = aop + c * 16 + (m * 2 + ks) * 4 + hh * 2
                        a(f"ds_read_b64_tr_b16 {vr(r, 2)}, v{t + 2} offset:{m * 8192 + ks * 4096 + hh * 512}")

    def pair_mfma(self, aop, xop, dd):
        a = self.a
        for ks in range(2):
            for c in range(2):
                for m in range(2):
                    d = dd + (c * 2 + m) * 4
                    cop = "0" if ks == 0 else vr(d, 4)
                    a(f"v_mfma_f32_16x16x32_bf16 {vr(d, 4)}, {vr(aop + c * 16 + (m * 2 + ks) * 4, 4)}, {vr(xop + 4 * ks, 4)}, {cop}")


def copy_out(a, lds_addr_fn, goff_sgpr, t0, t1, d0, d1, tag):
    ST = STT if tag == "t" else STR_
    lds_addr_fn(0, t1)
    a(f"ds_read_b128 {vr(d0, 4)}, v{t1}")
    a(f"v_lshlrev_b32 v{t0}, 4, v0")
    a(f"v_add_u32 v{t0}, s{goff_sgpr}, v{t0}")
    a(f"s_cmp_gt_u32 s{WAVE}, 8")
    a(f"s_cbranch_scc1 L1_one{tag}")
    a(f"v_add_u32 v{t1}, 1024, v0")
    lds_addr_fn(t1, t1)
    a(f"ds_read_b128 {vr(d1, 4)}, v{t1}")
    a(f"v_add_u32 v{t1}, 16384, v{t0}")
    a("s_waitcnt lgkmcnt(0)")
    a(f"global_store_dwordx4 v{t1}, {vr(d1, 4)}, {sr(WS)}{ST}")
    a.label(f"L1_one{tag}")
    a("s_waitcnt lgkmcnt(0)")
    a(f"global_store_dwordx4 v{t0}, {vr(d0, 4)}, {sr(WS)}{ST}")


def gen_k1(a):
    HIST, BASE = 0, 1024
    WST = 2048
    XST = WST + 16384
    TST = XST + 112 * XROW
    STG = TST + NPB * ROW
    LDS = STG + EPC * 8
    TID, LANE = 0, 1
    T0, T1, T2, T3 = 2, 3, 14, 15
    VD, VS, VE = 4, 8, 12
    VW_, VX_ = 16, 20
    XOP = 24
    AOP = 36
    DD = 68
    PK = 84
    VLOC = 87
    VB, VR = 88, 92
    RP = 104
    NT = 100
    nd = Node(a, WST, XST, TID, LANE, VW_, VX_, NT)

    a(f".globl {K1}")
    a(".p2align 8")
    a(f".type {K1},@function")
    a.label(K1)
    a(f"s_cmp_ge_u32 s2, {NC}")
    a("s_cbranch_scc1 L1_end")
    dbg_time(a, 0, 0, True)
    stamp(a, 0)
    stamp(a, 20, True)
    load_ptrs(a)
    remap_wg(a, 1)
    a(f"v_and_b32 v{LANE}, 63, v{TID}")
    a(f"v_lshrrev_b32 v{T0}, 6, v{TID}")
    a(f"v_lshlrev_b32 v{T1}, 2, v{TID}")
    a(f"v_readfirstlane_b32 s{WAVE}, v{T0}")
    a(f"v_mov_b32 v{T0}, 0")
    a(f"s_cmp_lt_u32 s{WAVE}, 4")
    a("s_cbranch_scc0 L1_nozero")
    a(f"ds_write_b32 v{T1}, v{T0} offset:{HIST}")
    a.label("L1_nozero")
    a("s_waitcnt lgkmcnt(0)")
    fix_ws(a)
    stamp(a, 1)
    nd.issue_loads(GW, 8192, VW)
    a("s_barrier")
    a(f"s_cmp_gt_u32 s{WAVE}, 12")
    a("s_cbranch_scc1 L1_noedge0")
    a(f"s_mul_i32 s24, s2, {EPC * 4}")
    a(f"v_lshlrev_b32 v{T0}, 4, v{TID}")
    a(f"v_add_u32 v{T0}, s24, v{T0}")
    a(f"v_lshrrev_b32 v{T1}, 1, v{T0}")
    a(f"v_cmp_gt_u32 vcc, {EPC // 4}, v{TID}")
    a("s_and_saveexec_b64 s[32:33], vcc")
    a(f"global_load_dwordx4 {vr(VD, 4)}, v{T0}, {sr(DST)}")
    a(f"global_load_dwordx4 {vr(VS, 4)}, v{T0}, {sr(SRC)}")
    a(f"global_load_dwordx2 {vr(VE, 2)}, v{T1}, {sr(EA)}")
    a("s_mov_b64 exec, s[32:33]")
    a("s_waitcnt vmcnt(3)")
    a("s_branch L1_wx")
    a.label("L1_noedge0")
    a("s_waitcnt vmcnt(0)")
    a.label("L1_wx")
    stamp(a, 2)
    nd.stage()
    a("s_waitcnt lgkmcnt(0)")
    a("s_barrier")
    stamp(a, 3)
    a(f"s_cmp_gt_u32 s{WAVE}, 13")
    a("s_cbranch_scc1 L1_notask")
    nd.pair_reads(AOP, XOP, VLOC)
    a(f"v_mul_u32_u24 v{T0}, {ROW}, v{VLOC}")
    a(f"v_lshrrev_b32 v{T1}, 4, v{LANE}")
    a(f"v_lshl_add_u32 v{T0}, v{T1}, 4, v{T0}")
    a("s_lshl_b32 s30, s27, 6")
    a(f"s_add_u32 s30, s30, {TST}")
    a(f"v_add_u32 v{T0}, s30, v{T0}")
    a(f"s_mov_b32 s24, {LOG2E_NEG:#x}")
    a("s_mov_b32 s25, 0x7fff0000")
    a("s_mov_b32 s30, 0x7fffffff")
    VLO, VHI = 33, 34
    a(f"v_mov_b32 v{VLO}, 0xc77fe000")
    a(f"v_mov_b32 v{VHI}, 0x477fe000")
    a(f"v_cmp_gt_u32 vcc, {NPB}, v{VLOC}")
    a("s_waitcnt lgkmcnt(0)")
    nd.pair_mfma(AOP, XOP, DD)
    a("s_nop 5")
    for c in range(2):
        DQ, DH = DD + c * 8, DD + c * 8 + 4
        if c == 1:
            pass
        for i in range(4):
            a(f"v_mul_f32 v{DQ + i}, s24, v{DQ + i}")
        for i in range(4):
            a(f"v_med3_f32 v{DQ + i}, v{DQ + i}, v{VLO}, v{VHI}")
        a(f"v_cvt_pk_f16_f32 v{PK}, v{DQ}, v{DQ + 1}")
        a(f"v_cvt_pk_f16_f32 v{PK + 1}, v{DQ + 2}, v{DQ + 3}")
        for i in range(4):
            h = DH + i
            sel = "WORD_1" if i % 2 else "WORD_0"
            a(f"v_and_b32 v{DQ + i}, s30, v{h}")
            a(f"v_add_u32 v{DQ + i}, 0x8000, v{DQ + i}")
            a(f"v_sub_u32_sdwa v{DQ + i}, v{DQ + i}, v{PK + i // 2} clamp dst_sel:DWORD dst_unused:UNUSED_PAD src0_sel:DWORD src1_sel:{sel}")
        for i in range(4):
            h = DH + i
            a(f"v_bfi_b32 v{h}, s25, v{DQ + i}, v{h}")
        for i in range(4):
            h = DH + i
            sel = "WORD_1" if i % 2 else "WORD_0"
            a(f"v_mov_b32_sdwa v{h}, v{PK + i // 2} dst_sel:WORD_0 dst_unused:UNUSED_PRESERVE src0_sel:{sel}")
        a("s_and_saveexec_b64 s[32:33], vcc")
        a(f"ds_write_b128 v{T0}, {vr(DH, 4)} offset:{c * 64}")
        a("s_mov_b64 exec, s[32:33]")
    a.label("L1_notask")
    a("s_waitcnt lgkmcnt(0)")
    stamp(a, 4)
    a("s_barrier")

    if "tall" in OPT:
        a(f"v_lshrrev_b32 v{T0}, 4, v{TID}")
        a(f"v_mul_u32_u24 v{T0}, {ROW}, v{T0}")
        a(f"v_and_b32 v{T1}, 15, v{TID}")
        a(f"v_lshl_add_u32 v{T0}, v{T1}, 4, v{T0}")
        a(f"v_add_u32 v{T0}, {TST}, v{T0}")
        a(f"ds_read_b128 v[16:19], v{T0}")
        a(f"s_mul_i32 s26, s2, {NPB * 256}")
        a(f"v_lshlrev_b32 v{T1}, 4, v{TID}")
        a(f"v_add_u32 v{T1}, s26, v{T1}")
        a(f"s_cmp_gt_u32 s{WAVE}, 8")
        a("s_cbranch_scc1 L1_t1")
        a(f"ds_read_b128 v[20:23], v{T0} offset:{64 * ROW}")
        a(f"v_add_u32 v{T2}, 16384, v{T1}")
        a("s_waitcnt lgkmcnt(0)")
        a(f"global_store_dwordx4 v{T2}, v[20:23], {sr(WS)}{STT}")
        a.label("L1_t1")
        a("s_waitcnt lgkmcnt(0)")
        a(f"global_store_dwordx4 v{T1}, v[16:19], {sr(WS)}{STT}")
        a(f"s_sub_u32 s24, s{WAVE}, 13")
        a("s_cmp_lt_u32 s24, 2")
        a("s_cbranch_scc0 L1_not")
        stamp(a, 5)
        if STAMPS:
            a("s_waitcnt vmcnt(0)")
        stamp(a, 11)
        stamp(a, 21, True)
        stamp_flush(a, 0)
        a("s_endpgm")
    else:
        a(f"s_sub_u32 s24, s{WAVE}, 13")
        a("s_cmp_lt_u32 s24, 2")
        a("s_cbranch_scc0 L1_not")
        a(f"v_lshrrev_b32 v{T0}, 4, v{LANE}")
        a(f"v_mul_u32_u24 v{T0}, {ROW}, v{T0}")
        a(f"v_and_b32 v{T1}, 15, v{LANE}")
        a(f"v_lshl_add_u32 v{T0}, v{T1}, 4, v{T0}")
        a(f"s_mul_i32 s25, s24, {13 * 4 * ROW}")
        a(f"s_add_u32 s25, s25, {TST}")
        a(f"v_add_u32 v{T0}, s25, v{T0}")
        a(f"s_mul_i32 s26, s2, {NPB * 256}")
        a(f"s_mul_i32 s25, s24, {13 * 1024}")
        a("s_add_u32 s26, s26, s25")
        a(f"v_lshlrev_b32 v{T1}, 4, v{LANE}")
        a(f"v_add_u32 v{T1}, s26, v{T1}")
        for n in range(12):
            a(f"ds_read_b128 {vr(16 + 4 * n, 4)}, v{T0} offset:{n * 4 * ROW}")
        a(f"v_add_u32 v{T2}, {12 * 1024}, v{T1}")
        a("s_cmp_eq_u32 s24, 0")
        a("s_cbranch_scc0 L1_t12")
        a(f"ds_read_b128 {vr(64, 4)}, v{T0} offset:{12 * 4 * ROW}")
        a("s_waitcnt lgkmcnt(0)")
        a(f"global_store_dwordx4 v{T2}, {vr(64, 4)}, {sr(WS)}{STT}")
        a.label("L1_t12")
        for n in range(12):
            a(f"s_waitcnt lgkmcnt({max(0, 11 - n)})")
            a(f"global_store_dwordx4 v{T1}, {vr(16 + 4 * n, 4)}, {sr(WS)} offset:{(n % 4) * 1024}{STT}")
            if n % 4 == 3:
                a(f"v_add_u32 v{T1}, 4096, v{T1}")
        if "readback" in OPT:
            a("s_waitcnt vmcnt(0)")
            a(f"v_subrev_u32 v{T1}, {3 * 4096}, v{T1}")
            for n in range(12):
                a(f"global_load_dwordx4 {vr(16 + 4 * n, 4)}, v{T1}, {sr(WS)} offset:{(n % 4) * 1024}")
                if n % 4 == 3:
                    a(f"v_add_u32 v{T1}, 4096, v{T1}")
            a(f"global_load_dwordx4 {vr(64, 4)}, v{T2}, {sr(WS)}")
            a("s_waitcnt vmcnt(0)")
        if "wbl2" in OPT:
            a("s_waitcnt vmcnt(0)")
            a("buffer_wbl2 sc1")
            a("s_waitcnt vmcnt(0)")
        stamp(a, 5)
        if STAMPS:
            a("s_waitcnt vmcnt(0)")
        stamp(a, 11)
        stamp(a, 21, True)
        stamp_flush(a, 0)
        a("s_endpgm")
    a.label("L1_not")
    stamp(a, 5)
    a(f"s_cmp_gt_u32 s{WAVE}, 12")
    a("s_cbranch_scc1 L1_noedge1")
    a(f"v_cmp_gt_u32 vcc, {EPC // 4}, v{TID}")
    a("s_and_saveexec_b64 s[32:33], vcc")
    a(f"v_mov_b32 v{T1}, 1")
    a("s_movk_i32 s24, -100")
    a("s_mov_b32 s25, 0xffff0000")
    a("s_movk_i32 s30, 128")
    if "tall" in OPT:
        a(f"s_cmp_gt_u32 s{WAVE}, 8")
        a("s_cbranch_scc1 L1_w1")
        a("s_waitcnt vmcnt(2)")
        a("s_branch L1_w2")
        a.label("L1_w1")
        a("s_waitcnt vmcnt(1)")
        a.label("L1_w2")
    else:
        a("s_waitcnt vmcnt(0)")
    for i in range(4):
        a(f"v_mul_u32_u24 v{T0}, 5243, v{VD + i}")
        a(f"v_lshrrev_b32 v{T0}, 19, v{T0}")
        a(f"v_lshlrev_b32 v{VB + i}, 2, v{T0}")
        a(f"ds_add_rtn_u32 v{VR + i}, v{VB + i}, v{T1} offset:{HIST}")
        a(f"v_mad_i32_i24 v{T2}, v{T0}, s24, v{VD + i}")
        a(f"v_lshrrev_b32 v{T3}, 5, v{VS + i}")
        a(f"v_and_or_b32 v{RP + 2 * i + 1}, v{T3}, s30, v{T2}")
        if "smallsrc" in OPT:
            a(f"v_and_b32 v{VS + i}, 0x7ff, v{VS + i}")
        if i % 2 == 0:
            a(f"v_lshl_or_b32 v{RP + 2 * i}, v{VE + i // 2}, 16, v{VS + i}")
        else:
            a(f"v_and_or_b32 v{RP + 2 * i}, v{VE + i // 2}, s25, v{VS + i}")
    a("s_mov_b64 exec, s[32:33]")
    a.label("L1_noedge1")
    a("s_waitcnt lgkmcnt(0)")
    stamp(a, 6)
    a("s_barrier")
    stamp(a, 7)
    a(f"s_cmp_eq_u32 s{WAVE}, 15")
    a("s_cbranch_scc0 L1_b2")
    C0 = 24
    a(f"v_lshlrev_b32 v{T0}, 4, v{LANE}")
    a(f"ds_read_b128 {vr(C0, 4)}, v{T0} offset:{HIST}")
    a("s_waitcnt lgkmcnt(0)")
    P = 28
    a(f"v_add_u32 v{P + 2}, v{C0}, v{C0 + 1}")
    a(f"v_add_u32 v{P + 3}, v{P + 2}, v{C0 + 2}")
    a(f"v_add_u32 v32, v{P + 3}, v{C0 + 3}")
    a("v_mov_b32 v33, v32")
    wave_scan(a, 33)
    a(f"v_sub_u32 v{P}, v33, v32")
    a(f"v_add_u32 v{P + 1}, v{P}, v{C0}")
    a(f"v_add_u32 v{P + 2}, v{P}, v{P + 2}")
    a(f"v_add_u32 v{P + 3}, v{P}, v{P + 3}")
    a(f"ds_write_b128 v{T0}, {vr(P, 4)} offset:{BASE}")
    a("s_lshl_b32 s24, s2, 10")
    a(f"s_add_u32 s24, s24, {SEG_OFF}")
    a(f"v_add_u32 v{T1}, s24, v{T0}")
    for i in range(4):
        a(f"v_lshl_or_b32 v{36 + i}, v{C0 + i}, 16, v{P + i}")
    a(f"global_store_dwordx4 v{T1}, v[36:39], {sr(WS)}{ST}")
    a("s_cmp_lg_u32 s2, 0")
    a("s_cbranch_scc1 L1_b2")
    a(f"v_mov_b32 v{T2}, 0")
    a(f"v_lshlrev_b32 v{T3}, 2, v{LANE}")
    a(f"v_add_u32 v{T3}, {N * 256}, v{T3}")
    a(f"global_store_dword v{T3}, v{T2}, {sr(WS)}{ST}")
    a.label("L1_b2")
    a("s_waitcnt lgkmcnt(0)")
    stamp(a, 8)
    a("s_barrier")
    a(f"s_cmp_gt_u32 s{WAVE}, 12")
    a("s_cbranch_scc1 L1_noedge2")
    a(f"v_cmp_gt_u32 vcc, {EPC // 4}, v{TID}")
    a("s_and_saveexec_b64 s[32:33], vcc")
    for i in range(4):
        a(f"ds_read_b32 v{VD + i}, v{VB + i} offset:{BASE}")
    a(f"s_mov_b32 s24, {STG}")
    for i in range(4):
        a("s_waitcnt lgkmcnt(3)")
        a(f"v_add_u32 v{VD + i}, v{VD + i}, v{VR + i}")
        a(f"v_lshl_add_u32 v{VD + i}, v{VD + i}, 3, s24")
        a(f"ds_write_b64 v{VD + i}, {vr(RP + 2 * i, 2)}")
    a("s_mov_b64 exec, s[32:33]")
    a.label("L1_noedge2")
    a(f"s_min_u32 s25, s{WAVE}, 13")
    a("s_lshl_b32 s25, s25, 10")
    a(f"v_lshlrev_b32 v{T0}, 4, v{LANE}")
    a(f"v_add_u32 v{T0}, s25, v{T0}")
    a(f"v_add_u32 v{T1}, {STG}, v{T0}")
    a(f"s_mul_i32 s24, s2, {EPC * 8}")
    a(f"s_add_u32 s24, s24, {REC_OFF}")
    a(f"v_add_u32 v{T0}, s24, v{T0}")
    a("s_waitcnt lgkmcnt(0)")
    stamp(a, 9)
    a("s_barrier")
    a(f"ds_read_b128 v[24:27], v{T1}")
    a(f"s_cmp_gt_u32 s{WAVE}, 10")
    a("s_cbranch_scc1 L1_oner")
    a(f"ds_read_b128 v[28:31], v{T1} offset:{14 * 1024}")
    a(f"v_add_u32 v{T1}, {14 * 1024}, v{T0}")
    a("s_waitcnt lgkmcnt(0)")
    a(f"global_store_dwordx4 v{T1}, v[28:31], {sr(WS)}{STR_}")
    a.label("L1_oner")
    a("s_waitcnt lgkmcnt(0)")
    a(f"global_store_dwordx4 v{T0}, v[24:27], {sr(WS)}{STR_}")
    for o in OPT:
        if o.startswith("delay="):
            n = int(o[6:])
            a(f"s_movk_i32 s24, {n}")
            a.label("L1_dly")
            a("s_sleep 16")
            a("s_sub_u32 s24, s24, 1")
            a("s_cmp_lg_u32 s24, 0")
            a("s_cbranch_scc1 L1_dly")
    if "dbgt" in OPT:
        a("s_waitcnt vmcnt(0)")
    dbg_time(a, 0, 1)
    stamp(a, 10)
    if STAMPS:
        a("s_waitcnt vmcnt(0)")
    stamp(a, 11)
    stamp(a, 21, True)
    stamp_flush(a, 0)
    a.label("L1_end")
    a("s_endpgm")
    return LDS, 112


def gen_k2(a):
    a.kernel = 2
    HIST = 0
    HIST2 = HIST + 1024
    BASE2 = HIST2 + 1024
    WCNT = BASE2 + 1024
    WKEY = WCNT + 1024
    MISC = WKEY + 1024
    SCR = MISC + 256
    ZERO = SCR + 256
    PL = ZERO + 256
    PART0 = PL + NPB * ROW
    WST = (PART0 + NPB * ROW + 127) // 128 * 128
    XST = WST + 16384
    LIST = XST + NPB * XROW
    CAPK = 48
    COL = CAPK * 4
    LISTB = 228 * COL
    LDS = LIST + LISTB + 64
    assert PART0 + 64 * ROW < 65536 and LDS <= 163840, LDS
    NWIN = 50
    DUMMY_COL = 100 * COL

    TID, LANE = 0, 1
    T0, T1, T2, T3 = 2, 3, 4, 5
    RB = 6
    REM = 7
    RECS = 8
    RANK = 24
    VW_, VX_ = 32, 36
    XOP = 40
    AOP = 52
    DD = 84
    VLOC = 49
    NT = 100
    VLB = 103
    ASEL = 112
    VJ, VG4, VQ, VONE = 116, 117, 118, 119
    CV = 120
    VZ = 124
    VXA, VWA, VPA, VSH = 104, 105, 106, 107
    MASK = 40
    NRND = 5
    rec_reg = lambda r: RECS + 4 * r if r < 4 else 72
    rank_reg = lambda k: RANK + k if k < 8 else 100 + (k - 8)
    mask_s = lambda k: MASK + 2 * k if k < 8 else 60 + 2 * (k - 8)
    nd = Node(a, WST, XST, TID, LANE, VW_, VX_, NT)

    a(f".globl {K2}")
    a(".p2align 8")
    a(f".type {K2},@function")
    a.label(K2)
    a(f"s_cmp_ge_u32 s2, {NB}")
    a("s_cbranch_scc1 L2_end")
    dbg_time(a, 1, 2, True)
    for o in OPT:
        if o.startswith("nops="):
            for _ in range(int(o[5:])):
                a("s_nop 0")
        if o.startswith("slit="):
            for _ in range(int(o[5:])):
                a("s_mov_b32 s24, 0x12345678")
        if o.startswith("slil="):
            a(f"s_movk_i32 s25, {int(o[5:]) // 16}")
            a.label("L2_slil")
            for _ in range(13):
                a("s_mov_b32 s24, 0x12345678")
            a("s_sub_u32 s25, s25, 1")
            a("s_cmp_lg_u32 s25, 0")
            a("s_cbranch_scc1 L2_slil")
        if o.startswith("nopl="):
            a(f"s_movk_i32 s24, {int(o[5:]) // 16}")
            a.label("L2_nopl")
            for _ in range(13):
                a("s_nop 0")
            a("s_sub_u32 s24, s24, 1")
            a("s_cmp_lg_u32 s24, 0")
            a("s_cbranch_scc1 L2_nopl")
    stamp(a, 0)
    stamp(a, 20, True)
    load_ptrs(a)
    remap_wg(a, 2)
    a(f"v_and_b32 v{LANE}, 63, v{TID}")
    a(f"v_lshrrev_b32 v{T0}, 6, v{TID}")
    a(f"v_lshlrev_b32 v{T1}, 2, v{TID}")
    a(f"v_readfirstlane_b32 s{WAVE}, v{T0}")
    a(f"v_lshrrev_b32 v{RB}, 2, v{TID}")
    a(f"v_lshlrev_b32 v{RB}, 10, v{RB}")
    a("s_lshl_b32 s24, s2, 2")
    a(f"s_add_u32 s24, s24, {SEG_OFF}")
    a(f"v_add_u32 v{RB}, s24, v{RB}")
    a("s_waitcnt lgkmcnt(0)")
    fix_ws(a)
    stamp(a, 1)
    a(f"global_load_dword v{REM}, v{RB}, {sr(WS)}")
    nd.issue_loads(GW, 0, UW)
    a(f"v_and_b32 v{T0}, 15, v{LANE}")
    a(f"v_lshlrev_b32 v{VJ}, 4, v{T0}")
    a(f"v_lshrrev_b32 v{T2}, 1, v{VJ}")
    a(f"v_add_u32 v{T2}, {128 * 128}, v{T2}")
    a(f"global_load_dwordx2 {vr(CV + 2, 2)}, v{T2}, {sr(GW)}")
    a(f"v_mov_b32 v{T0}, 0")
    a(f"s_cmp_lt_u32 s{WAVE}, 4")
    a("s_cbranch_scc0 L2_nozero")
    a(f"ds_write_b32 v{T1}, v{T0} offset:{HIST}")
    a(f"ds_write_b32 v{T1}, v{T0} offset:{HIST2}")
    a.label("L2_nozero")
    a(f"s_cmp_eq_u32 s{WAVE}, 4")
    a("s_cbranch_scc0 L2_nozero2")
    a(f"v_lshlrev_b32 v{T2}, 2, v{LANE}")
    a(f"v_cmp_eq_u32 vcc, 2, v{LANE}")
    a("s_nop 1")
    a(f"v_cndmask_b32 v{T3}, 0, 16, vcc")
    a(f"ds_write_b32 v{T2}, v{T3} offset:{MISC}")
    a(f"ds_write_b32 v{T2}, v{T0} offset:{ZERO}")
    a.label("L2_nozero2")
    a(f"v_lshrrev_b32 v{RB}, 2, v{TID}")
    a(f"v_mul_u32_u24 v{RB}, {EPC}, v{RB}")
    a(f"v_and_b32 v{T3}, 3, v{TID}")
    a(f"v_lshlrev_b32 v{T3}, 1, v{T3}")
    a(f"v_add_u32 v{RB}, v{RB}, v{T3}")
    a(f"v_lshlrev_b32 v{RB}, 3, v{RB}")
    a(f"v_add_u32 v{RB}, {REC_OFF}, v{RB}")
    a(f"v_cmp_gt_u32 vcc, {NC * 4}, v{TID}")
    a("s_waitcnt vmcnt(3)")
    stamp(a, 2)
    a(f"v_cndmask_b32 v{REM}, 0, v{REM}, vcc")
    a(f"v_and_b32 v{T2}, 0xffff, v{REM}")
    a(f"v_lshrrev_b32 v{REM}, 16, v{REM}")
    a(f"v_lshl_add_u32 v{RB}, v{T2}, 3, v{RB}")
    a(f"v_cmp_lt_u32 s[56:57], {8 * NRND}, v{REM}")
    a(f"v_sub_u32 v{REM}, v{REM}, v{T3}")
    for r in range(NRND):
        a(f"v_cmp_gt_i32 {sr(mask_s(2 * r))}, v{REM}, {8 * r}")
    a("s_nop 1")
    a("s_mov_b32 s58, 0")
    for r in range(NRND):
        m = mask_s(2 * r)
        a(f"s_mov_b64 exec, {sr(m)}")
        a("s_cbranch_execz L2_recs_done")
        a(f"global_load_dwordx4 {vr(rec_reg(r), 4)}, v{RB}, {sr(WS)} offset:{64 * r}")
        a(f"s_mov_b32 s58, {r + 1}")
    a.label("L2_recs_done")
    a("s_mov_b64 exec, -1")
    if "earlytouch" in OPT:
        a(f"s_cmp_lt_u32 s{WAVE}, {TOUCH0}")
        a("s_cbranch_scc1 L2_notouche")
        a(f"s_sub_u32 s25, s{WAVE}, {TOUCH0}")
        a(f"s_cmp_gt_u32 s25, 3")
        a("s_cbranch_scc1 L2_notouche")
        a("s_lshl_b32 s25, s25, 6")
        a(f"v_add_u32 v{T2}, s25, v{LANE}")
        a(f"v_min_u32 v{T2}, {NPB * 2 - 1}, v{T2}")
        a(f"v_lshlrev_b32 v{T2}, 7, v{T2}")
        a(f"s_mul_i32 s24, s2, {NPB * 256}")
        a(f"v_add_u32 v{T2}, s24, v{T2}")
        a(f"global_load_dword v126, v{T2}, {sr(WS)}")
        a("s_add_u32 s58, s58, 1")
        a.label("L2_notouche")
    for r in range(NRND):
        a(f"v_cmp_gt_i32 {sr(mask_s(2 * r + 1))}, v{REM}, {8 * r + 1}")
    for i in range(4):
        a(f"v_mov_b32 v{XOP + i}, {N}")
    a(f"v_lshlrev_b32 v{T2}, 4, v{TID}")
    a(f"v_add_u32 v{T2}, {LIST}, v{T2}")
    a(f"ds_write_b128 v{T2}, {vr(XOP, 4)}")
    a(f"ds_write_b128 v{T2}, {vr(XOP, 4)} offset:16384")
    nlast = LISTB // 16 - 2048
    a(f"v_cmp_gt_u32 vcc, {nlast}, v{TID}")
    a("s_and_saveexec_b64 s[32:33], vcc")
    a(f"ds_write_b128 v{T2}, {vr(XOP, 4)} offset:32768")
    a("s_mov_b64 exec, s[32:33]")
    a(f"v_and_b32 v{T0}, 15, v{LANE}")
    a(f"v_lshrrev_b32 v{T1}, 4, v{LANE}")
    a(f"v_lshlrev_b32 v{VG4}, 2, v{T1}")
    a(f"s_mul_i32 s24, s2, {NPB * 128}")
    a(f"v_lshrrev_b32 v{VZ}, 1, v{VJ}")
    a(f"v_add_u32 v{VZ}, s24, v{VZ}")
    a(f"v_mov_b32 v{VONE}, 1")
    a(f"v_mov_b32 v{VLB}, {LIST}")
    a(f"v_lshlrev_b32 v{VQ}, 2, v{LANE}")
    a(f"v_add_u32 v{VQ}, {SCR}, v{VQ}")
    a(f"v_cmp_eq_u32 vcc, 0, v{LANE}")
    a(f"v_mov_b32 v{T3}, {MISC + 8}")
    a(f"v_lshrrev_b32 v{T2}, 2, v{T0}")
    a(f"v_cndmask_b32 v{VQ}, v{VQ}, v{T3}, vcc")
    a(f"v_cmp_eq_u32 vcc, v{T2}, v{T1}")
    a(f"v_mov_b32 v{T3}, 0x3c00")
    a(f"v_and_b32 v{T2}, 3, v{T0}")
    a(f"v_cndmask_b32 v{T3}, 0, v{T3}, vcc")
    for q in range(4):
        a(f"v_cmp_eq_u32 vcc, {q}, v{T2}")
        a("s_nop 1")
        a(f"v_cndmask_b32 v{ASEL + q}, 0, v{T3}, vcc")
    a(f"s_mov_b32 s36, s{WS}")
    a(f"s_and_b32 s37, s{WS + 1}, 0xffff")
    a("s_or_b32 s37, s37, 0x1000000")
    a(f"s_mov_b32 s38, {N + 1}")
    a("s_mov_b32 s39, 0x20000")
    a(f"s_mov_b32 s66, {TINY:#x}")
    a(f"s_mov_b32 s67, {TINY:#x}")
    for k in range(4):
        a(f"v_mov_b32 v{76 + 4 * k + 1}, v{VJ}")
        a(f"v_mov_b32 v{76 + 4 * k + 3}, v{VJ}")
        a(f"v_mov_b32 v{92 + 2 * k}, 0")
        a(f"v_mov_b32 v{92 + 2 * k + 1}, 0")
    nd.stage_addr(NT, NT + 1, NT + 2)
    a(f"s_and_b32 s27, s{WAVE}, 3")
    a(f"s_lshr_b32 s26, s{WAVE}, 2")
    a("s_lshl_b32 s26, s26, 5")
    a(f"v_and_b32 v{T0}, 15, v{LANE}")
    a(f"v_lshrrev_b32 v{T1}, 4, v{LANE}")
    a(f"v_add_u32 v{T2}, s26, v{T0}")
    a(f"v_mul_u32_u24 v{VXA}, {XROW}, v{T2}")
    a(f"v_lshl_add_u32 v{VXA}, v{T1}, 4, v{VXA}")
    a(f"v_add_u32 v{VXA}, {XST}, v{VXA}")
    a(f"v_mul_u32_u24 v{VPA}, {ROW}, v{T2}")
    a(f"v_lshl_add_u32 v{VPA}, v{T1}, 4, v{VPA}")
    a("s_lshl_b32 s30, s27, 6")
    a(f"v_add_u32 v{VPA}, s30, v{VPA}")
    a(f"v_lshrrev_b32 v{T2}, 3, v{T0}")
    a(f"v_and_b32 v{T3}, 1, v{T1}")
    a(f"v_lshl_or_b32 v{T2}, v{T3}, 1, v{T2}")
    a(f"v_xor_b32 v{T2}, s27, v{T2}")
    a(f"v_lshlrev_b32 v{T2}, 5, v{T2}")
    a(f"v_lshrrev_b32 v{T3}, 2, v{T0}")
    a(f"v_lshl_add_u32 v{T3}, v{T1}, 3, v{T3}")
    a(f"v_lshl_add_u32 v{T2}, v{T3}, 7, v{T2}")
    a(f"v_and_b32 v{T3}, 3, v{T0}")
    a(f"v_lshl_add_u32 v{T2}, v{T3}, 3, v{T2}")
    a(f"v_add_u32 v{VWA}, {WST}, v{T2}")
    a(f"v_mov_b32 v{VSH}, {SHIFT_NEG:#x}")
    a(f"v_cmp_gt_u32 s[34:35], 4, v{T0}")
    for n in range(NRND + 1 if "earlytouch" in OPT else NRND, -1, -1):
        if n:
            a(f"s_cmp_lg_u32 s58, {n}")
            a(f"s_cbranch_scc1 L2_wx{n}")
        a(f"s_waitcnt vmcnt({n})")
        if n:
            a("s_branch L2_wxdone")
            a.label(f"L2_wx{n}")
    a.label("L2_wxdone")
    stamp(a, 3)
    nd.stage_write(NT, NT + 1)
    a(f"s_mov_b32 s24, {LOG2E_NEG:#x}")
    a(f"v_lshlrev_b32 v{CV}, 16, v{CV + 2}")
    a(f"v_and_b32 v{CV + 1}, 0xffff0000, v{CV + 2}")
    a(f"v_lshlrev_b32 v{CV + 2}, 16, v{CV + 3}")
    a(f"v_and_b32 v{CV + 3}, 0xffff0000, v{CV + 3}")
    for i in range(4):
        a(f"v_mul_f32 v{CV + i}, s24, v{CV + i}")
    a("s_waitcnt lgkmcnt(0)")
    a("s_barrier")
    stamp(a, 4)
    a("s_cmp_eq_u64 s[56:57], 0")
    a("s_cbranch_scc1 L2_noflag")
    a(f"v_mov_b32 v{T2}, 0")
    a(f"ds_write_b32 v{T2}, v{VONE} offset:{MISC}")
    a.label("L2_noflag")
    A0, BA, BB_ = 32, 48, 56
    DP0, DU0 = 64, 68

    def pu_block(tag, two):
        a(f"ds_read_b128 {vr(BA, 4)}, v{VXA}")
        a(f"ds_read_b128 {vr(BA + 4, 4)}, v{VXA} offset:64")
        for m in range(2):
            for ks in range(2):
                for hh in range(2):
                    a(f"ds_read_b64_tr_b16 {vr(A0 + (m * 2 + ks) * 4 + hh * 2, 2)}, v{VWA} offset:{m * 8192 + ks * 4096 + hh * 512}")
        if two:
            a(f"ds_read_b128 {vr(BB_, 4)}, v{VXA} offset:{16 * XROW}")
            a(f"ds_read_b128 {vr(BB_ + 4, 4)}, v{VXA} offset:{16 * XROW + 64}")
        a(f"s_mov_b32 s24, {LOG2E_NEG:#x}")
        a(f"s_waitcnt lgkmcnt({2 if two else 0})")
        a(f"v_mfma_f32_16x16x32_bf16 {vr(DP0, 4)}, {vr(A0, 4)}, {vr(BA, 4)}, 0")
        a(f"v_mfma_f32_16x16x32_bf16 {vr(DU0, 4)}, {vr(A0 + 8, 4)}, {vr(BA, 4)}, 0")
        a(f"v_mfma_f32_16x16x32_bf16 {vr(DP0, 4)}, {vr(A0 + 4, 4)}, {vr(BA + 4, 4)}, {vr(DP0, 4)}")
        a(f"v_mfma_f32_16x16x32_bf16 {vr(DU0, 4)}, {vr(A0 + 12, 4)}, {vr(BA + 4, 4)}, {vr(DU0, 4)}")
        if two:
            a("s_waitcnt lgkmcnt(0)")
            a(f"v_mfma_f32_16x16x32_bf16 {vr(BA, 4)}, {vr(A0, 4)}, {vr(BB_, 4)}, 0")
            a(f"v_mfma_f32_16x16x32_bf16 {vr(BA + 4, 4)}, {vr(A0 + 8, 4)}, {vr(BB_, 4)}, 0")
            a(f"v_mfma_f32_16x16x32_bf16 {vr(BA, 4)}, {vr(A0 + 4, 4)}, {vr(BB_ + 4, 4)}, {vr(BA, 4)}")
            a(f"v_mfma_f32_16x16x32_bf16 {vr(BA + 4, 4)}, {vr(A0 + 12, 4)}, {vr(BB_ + 4, 4)}, {vr(BA + 4, 4)}")
            a("s_nop 3")
        else:
            a("s_mov_b64 exec, s[34:35]")
            a("s_nop 6")
        for i in range(4):
            a(f"v_fma_f32 v{DP0 + i}, v{DP0 + i}, s24, v{VSH}")
        a(f"ds_write_b128 v{VPA}, {vr(DP0, 4)} offset:{PL}")
        a(f"ds_write_b128 v{VPA}, {vr(DU0, 4)} offset:{PART0}")
        if two:
            for i in range(4):
                a(f"v_fma_f32 v{BA + i}, v{BA + i}, s24, v{VSH}")
            a(f"ds_write_b128 v{VPA}, {vr(BA, 4)} offset:{PL + 16 * ROW}")
            a(f"ds_write_b128 v{VPA}, {vr(BA + 4, 4)} offset:{PART0 + 16 * ROW}")
        else:
            a("s_mov_b64 exec, -1")

    a(f"s_cmp_gt_u32 s{WAVE}, 11")
    a("s_cbranch_scc1 L2_pu_last")
    pu_block("a", True)
    a("s_branch L2_pu_end")
    a.label("L2_pu_last")
    pu_block("b", False)
    a.label("L2_pu_end")
    a(f"s_movk_i32 s59, {COL}")
    if "earlytouch" in OPT:
        a(f"s_sub_u32 s24, s{WAVE}, {TOUCH0}")
        a("s_cmp_lt_u32 s24, 4")
        a("s_cbranch_scc0 L2_wall")
        a("s_waitcnt vmcnt(1)")
        a("s_branch L2_wall2")
        a.label("L2_wall")
        a("s_waitcnt vmcnt(0)")
        a.label("L2_wall2")
    else:
        a("s_waitcnt vmcnt(0)")
    stamp(a, 5)
    if "ttouch" in OPT and "earlytouch" not in OPT:
        a(f"s_cmp_lt_u32 s{WAVE}, {TOUCH0}")
        a("s_cbranch_scc1 L2_notouch")
        a(f"s_sub_u32 s25, s{WAVE}, {TOUCH0}")
        a(f"s_cmp_gt_u32 s25, 3")
        a("s_cbranch_scc1 L2_notouch")
        a("s_lshl_b32 s25, s25, 6")
        a(f"v_add_u32 v{T2}, s25, v{LANE}")
        a(f"v_min_u32 v{T2}, {NPB * 2 - 1}, v{T2}")
        a(f"v_lshlrev_b32 v{T2}, 7, v{T2}")
        a(f"s_mul_i32 s24, s2, {NPB * 256}")
        a(f"v_add_u32 v{T2}, s24, v{T2}")
        a(f"global_load_dword v126, v{T2}, {sr(WS)}")
        a.label("L2_notouch")
    for r in range(NRND):
        if r >= 2:
            a(f"s_cmp_eq_u64 {sr(mask_s(2 * r))}, 0")
            a(f"s_cbranch_scc1 L2_hdone")
        for s_ in range(2):
            k = 2 * r + s_
            hi = rec_reg(r) + 2 * s_ + 1
            a(f"s_mov_b64 exec, {sr(mask_s(k))}")
            a(f"v_lshlrev_b32 v{T1}, 2, v{hi}")
            a(f"ds_add_rtn_u32 v{rank_reg(k)}, v{T1}, v{VONE} offset:{HIST}")
            a(f"v_mad_u32_u24 v{hi}, v{hi}, s59, v{VLB}")
    a.label("L2_hdone")
    a("s_mov_b64 exec, -1")
    a("s_waitcnt lgkmcnt(0)")
    for r in range(NRND):
        if r >= 2:
            a(f"s_cmp_eq_u64 {sr(mask_s(2 * r))}, 0")
            a(f"s_cbranch_scc1 L2_sdone")
        for s_ in range(2):
            k = 2 * r + s_
            lo = rec_reg(r) + 2 * s_
            hi = lo + 1
            a(f"s_mov_b64 exec, {sr(mask_s(k))}")
            a(f"v_min_u32 v{rank_reg(k)}, 63, v{rank_reg(k)}")
            a(f"v_lshl_add_u32 v{hi}, v{rank_reg(k)}, 2, v{hi}")
            a(f"ds_write_b32 v{hi}, v{lo}")
    a.label("L2_sdone")
    a("s_mov_b64 exec, -1")
    a("s_waitcnt lgkmcnt(0)")
    stamp(a, 6)
    a("s_barrier")
    a(f"s_cmp_eq_u32 s{WAVE}, 15")
    a("s_cbranch_scc0 L2_b2")

    a.label("L2_order")
    a("s_setprio 3")
    CN, BN, RK = 64, 68, 72
    S0 = 56
    a(f"v_lshlrev_b32 v{T0}, 4, v{LANE}")
    a(f"ds_read_b128 {vr(CN, 4)}, v{T0} offset:{HIST}")
    a(f"v_lshrrev_b32 v{T1}, 5, v{LANE}")
    a(f"v_and_b32 v{T2}, 31, v{LANE}")
    a(f"v_cmp_gt_u32 vcc, 25, v{T2}")
    a(f"v_lshlrev_b32 v{T3}, 8, v{T1}")
    a(f"v_add_u32 v{T3}, {63 * 4}, v{T3}")
    a(f"v_mov_b32 v{S0}, {(128 + 63) * 4}")
    a(f"v_cndmask_b32 v{T3}, v{S0}, v{T3}, vcc")
    a(f"v_lshlrev_b32 v{T2}, 2, v{T2}")
    a(f"v_mul_u32_u24 v{T1}, {4 * COL}, v{LANE}")
    a(f"v_lshl_or_b32 v{T1}, v{T1}, 16, v{T2}")
    a("s_waitcnt lgkmcnt(0)")
    a(f"v_max3_u32 v{S0 + 1}, v{CN}, v{CN + 1}, v{CN + 2}")
    a(f"v_max_u32 v{S0 + 1}, v{S0 + 1}, v{CN + 3}")
    for i in range(4):
        a(f"v_min_u32 v{BN + i}, 63, v{CN + i}")
        a(f"v_lshlrev_b32 v{BN + i}, 2, v{BN + i}")
        a(f"v_sub_u32 v{BN + i}, v{T3}, v{BN + i}")
        a(f"ds_add_rtn_u32 v{RK + i}, v{BN + i}, v{VONE} offset:{HIST2}")
    a(f"ds_read_b128 {vr(S0 + 4, 4)}, v{T0} offset:{HIST2}")
    a(f"v_cmp_lt_u32 vcc, {CAPK}, v{S0 + 1}")
    a("s_cbranch_vccz L2_nocap")
    a(f"v_mov_b32 v{S0}, 0")
    a(f"ds_write_b32 v{S0}, v{VONE} offset:{MISC}")
    a.label("L2_nocap")
    a("s_waitcnt lgkmcnt(0)")
    a(f"v_add_u32 v{S0 + 1}, v{S0 + 4}, v{S0 + 5}")
    a(f"v_add_u32 v{S0 + 2}, v{S0 + 1}, v{S0 + 6}")
    a(f"v_add_u32 v{S0 + 3}, v{S0 + 2}, v{S0 + 7}")
    a(f"v_mov_b32 v{S0}, v{S0 + 3}")
    wave_scan(a, S0)
    a(f"v_sub_u32 v{S0}, v{S0}, v{S0 + 3}")
    a(f"v_add_u32 v{S0 + 3}, v{S0}, v{S0 + 2}")
    a(f"v_add_u32 v{S0 + 2}, v{S0}, v{S0 + 1}")
    a(f"v_add_u32 v{S0 + 1}, v{S0}, v{S0 + 4}")
    a(f"ds_write_b128 v{T0}, {vr(S0, 4)} offset:{BASE2}")
    for i in range(4):
        a(f"ds_read_b32 v{S0 + 4 + i}, v{BN + i} offset:{BASE2}")
    a("s_waitcnt lgkmcnt(0)")
    for i in range(4):
        a(f"v_add_u32 v{RK + i}, v{RK + i}, v{S0 + 4 + i}")
        a(f"v_lshlrev_b32 v{RK + i}, 2, v{RK + i}")
        a(f"v_add_u32 v{S0}, {i * ((COL << 16) + 1)}, v{T1}")
        a(f"ds_write_b32 v{RK + i}, v{CN + i} offset:{WCNT}")
        a(f"ds_write_b32 v{RK + i}, v{S0} offset:{WKEY}")
    a("s_setprio 0")
    a.label("L2_b2")
    a("s_waitcnt lgkmcnt(0)")
    stamp(a, 7)
    a("s_barrier")
    stamp(a, 8)
    if "noprio" not in OPT:
        a("s_setprio 3")
    NP = 4
    RA = 4
    PR = 8
    ACC = 12
    UR = 16
    DN = 20
    NM = 24
    DA = 28
    VB = 44
    IX = 76
    EV = 92
    VL = 100
    VFL = 101
    VRN = 103
    VWL = 125
    SC, SNL, SI = 61, 62, 63
    STR = 64
    SP, SDONE = 58, 59
    SODD, SHALF = 69, 57
    VOC, VON = 104, 105
    a(f"s_movk_i32 s68, {ROW}")
    assert IX == 76 and EV == 92
    a(f"v_mov_b32 v{T0}, 0")
    a(f"ds_read_b32 v{T1}, v{T0} offset:{MISC}")
    a(f"v_lshlrev_b32 v{T2}, 4, v{LANE}")
    a(f"ds_read_b32 v{VWL}, v{T2} offset:{WCNT}")
    a(f"s_lshl_b32 s26, s{WAVE}, 4")
    a(f"v_add_u32 v{T2}, s26, v{VG4}")
    a(f"ds_read_b32 v{T3}, v{T2} offset:{WKEY}")
    a("s_waitcnt lgkmcnt(0)")
    a(f"v_readfirstlane_b32 s24, v{T1}")
    a(f"v_max_u32 v{VWL}, {2 * RA}, v{VWL}")
    a(f"v_lshrrev_b32 v{VL}, 16, v{T3}")
    a(f"v_add_u32 v{VL}, {LIST}, v{VL}")
    a("s_cmp_lg_u32 s24, 0")
    a("s_cbranch_scc1 L2_slow")
    for k in range(RA):
        a(f"ds_read_u16 v{IX + 4 * k}, v{VL} offset:{8 * k}")
        a(f"ds_read_u16 v{IX + 4 * k + 2}, v{VL} offset:{8 * k + 4}")
    a(f"v_and_b32 v{VRN}, 0xffff, v{T3}")
    a(f"v_mad_u32_u24 v{VRN}, v{VRN}, s68, v{VJ}")
    a(f"v_mov_b32 v{VFL}, v{VRN}")
    a(f"s_mov_b32 s{SP}, 0")
    a(f"s_mov_b32 s{SDONE}, 0")
    a(f"s_mov_b32 s28, {LOG2E_NEG:#x}")
    a(f"s_mov_b32 s29, {LOG2E_NEG:#x}")
    a("s_mov_b32 s30, 1.0")
    a("s_mov_b32 s31, 1.0")
    a(f"v_readlane_b32 s{SNL}, v{VWL}, s{WAVE}")
    a(f"s_mov_b32 s{STR}, {RA}")
    a(f"s_mov_b32 s{SI}, s{WAVE}")
    a(f"s_mov_b32 s{SHALF}, 0")
    a(f"s_and_b32 s{SODD}, s{SNL}, 1")
    a(f"s_add_u32 s{SC}, s{SNL}, 1")
    a(f"s_lshr_b32 s{SC}, s{SC}, 1")
    a("s_waitcnt lgkmcnt(0)")
    for k in range(RA - 1):
        for h in range(2):
            a(f"buffer_load_dwordx4 {vr(VB + 8 * k + 4 * h, 4)}, {vr(IX + 4 * k + 2 * h, 2)}, s[36:39], 0 idxen offen")
    for k in range(RA):
        a(f"ds_read_u16_d16_hi v{EV + 2 * k}, v{VL} offset:{8 * k + 2}")
        a(f"ds_read_u16_d16_hi v{EV + 2 * k + 1}, v{VL} offset:{8 * k + 6}")
    a(f"ds_read_b128 {vr(PR, 4)}, v{VRN} offset:{PL}")
    a(f"ds_read_b128 {vr(UR, 4)}, v{VRN} offset:{PART0}")
    for i in range(4):
        a(f"v_mov_b32 v{ACC + i}, 0")
    if "noprio" not in OPT:
        a("s_setprio 2")
    a("s_waitcnt lgkmcnt(0)")
    stamp(a, 9)

    def mfma1(k, h):
        d = DA + 8 * (k & 1)
        a(f"v_mfma_f32_16x16x32_f16 {vr(d + 4 * h, 4)}, {vr(ASEL, 4)}, {vr(VB + 8 * k + 4 * h, 4)}, {vr(PR, 4)}")

    def tail1(k):
        d = DA + 8 * (k & 1)
        vb = VB + 8 * k
        for h in range(2):
            a(f"v_pk_mul_f32 {vr(DN + 2 * h, 2)}, {vr(d + 2 * h, 2)}, {vr(d + 4 + 2 * h, 2)}")
        for h in range(2):
            a(f"v_pk_mul_f32 {vr(NM + 2 * h, 2)}, {vr(vb + 2 * h, 2)}, {vr(d + 4 + 2 * h, 2)}")
        for h in range(2):
            a(f"v_pk_fma_f32 {vr(NM + 2 * h, 2)}, {vr(vb + 4 + 2 * h, 2)}, {vr(d + 2 * h, 2)}, {vr(NM + 2 * h, 2)}")

    def rcp2(h):
        a(f"v_rcp_f32 v{DN + 2 * h}, v{DN + 2 * h}")
        a(f"v_rcp_f32 v{DN + 2 * h + 1}, v{DN + 2 * h + 1}")

    def tail2():
        a(f"v_pk_fma_f32 {vr(ACC, 2)}, {vr(NM, 2)}, {vr(DN, 2)}, {vr(ACC, 2)}")
        a(f"v_pk_fma_f32 {vr(ACC + 2, 2)}, {vr(NM + 2, 2)}, {vr(DN + 2, 2)}, {vr(ACC + 2, 2)}")

    def read_idx(k):
        a(f"ds_read_u16 v{IX + 4 * k}, v{VL} offset:{8 * (RA + k)}")
        a(f"ds_read_u16 v{IX + 4 * k + 2}, v{VL} offset:{8 * (RA + k) + 4}")

    def read_e(k):
        a(f"ds_read_u16_d16_hi v{EV + 2 * k}, v{VL} offset:{8 * (RA + k) + 2}")
        a(f"ds_read_u16_d16_hi v{EV + 2 * k + 1}, v{VL} offset:{8 * (RA + k) + 6}")

    def gather(k):
        p = (k - 1) % NP
        if "nogather" not in OPT:
            for h in range(2):
                a(f"buffer_load_dwordx4 {vr(VB + 8 * p + 4 * h, 4)}, {vr(IX + 4 * p + 2 * h, 2)}, s[36:39], 0 idxen offen")

    def front(k):
        d = DA + 8 * (k & 1)
        ep = EV + 2 * k
        for h in range(2):
            osel = "op_sel:[1,0,0] op_sel_hi:[1,1,1]" if h else "op_sel_hi:[0,1,1]"
            a(f"v_pk_fma_f32 {vr(d + 4 * h, 2)}, {vr(ep, 2)}, {vr(CV, 2)}, {vr(d + 4 * h, 2)} {osel}")
            a(f"v_pk_fma_f32 {vr(d + 4 * h + 2, 2)}, {vr(ep, 2)}, {vr(CV + 2, 2)}, {vr(d + 4 * h + 2, 2)} {osel}")
        read_e(k)
        for i in range(8):
            a(f"v_exp_f32_e64 v{d + i}, v{d + i} clamp")
            if i == 5:
                a(f"v_pk_add_f32 {vr(d, 2)}, {vr(d, 2)}, s[66:67]")
        a(f"v_pk_add_f32 {vr(d + 2, 2)}, {vr(d + 2, 2)}, s[66:67]")
        a(f"v_pk_add_f32 {vr(d + 4, 2)}, {vr(d + 4, 2)}, s[66:67]")
        a(f"v_pk_add_f32 {vr(d + 6, 2)}, {vr(d + 6, 2)}, s[66:67]")

    def flush(k):
        a(f"s_cmp_lg_u32 s{SP}, 0")
        a(f"s_cbranch_scc1 L2_fin{k}")
        a(f"v_pk_fma_f32 {vr(UR, 2)}, {vr(ACC, 2)}, s[66:67], {vr(UR, 2)}")
        a(f"v_pk_fma_f32 {vr(UR + 2, 2)}, {vr(ACC + 2, 2)}, s[66:67], {vr(UR + 2, 2)}")
        a(f"ds_write_b128 v{VFL}, {vr(UR, 4)} offset:{PART0}")
        a(f"ds_add_u32 v{VQ}, v{VONE} offset:4")
        a(f"s_branch L2_fld{k}")
        a.label(f"L2_fin{k}")
        a(f"s_cmp_lg_u32 s{SDONE}, 0")
        a(f"s_cbranch_scc1 L2_rdy{k}")
        a("s_mov_b32 s25, 0")
        a.label(f"L2_spin{k}")
        a(f"v_mov_b32 v{T2}, 0")
        a(f"ds_read_b32 v{T2}, v{T2} offset:{MISC + 12}")
        a("s_waitcnt lgkmcnt(0)")
        a(f"v_readfirstlane_b32 s24, v{T2}")
        a("s_nop 3")
        a(f"s_cmp_ge_u32 s24, {NWIN // 2}")
        a(f"s_cbranch_scc1 L2_seen{k}")
        a("s_sleep 2")
        a("s_add_u32 s25, s25, 1")
        a("s_cmp_lt_u32 s25, 0x400000")
        a(f"s_cbranch_scc1 L2_spin{k}")
        a.label(f"L2_seen{k}")
        a(f"s_mov_b32 s{SDONE}, 1")
        a.label(f"L2_rdy{k}")
        a(f"ds_read_b128 {vr(UR, 4)}, v{VFL} offset:{PART0}")
        a("s_waitcnt lgkmcnt(0)")
        a(f"v_pk_fma_f32 {vr(UR, 2)}, {vr(ACC, 2)}, s[66:67], {vr(UR, 2)}")
        a(f"v_pk_fma_f32 {vr(UR + 2, 2)}, {vr(ACC + 2, 2)}, s[66:67], {vr(UR + 2, 2)}")
        a(f"v_pk_mul_f32 {vr(DN, 2)}, {vr(UR, 2)}, s[28:29]")
        a(f"v_pk_mul_f32 {vr(DN + 2, 2)}, {vr(UR + 2, 2)}, s[28:29]")
        for i in range(4):
            a(f"v_exp_f32 v{DN + i}, v{DN + i}")
        a(f"v_pk_add_f32 {vr(DN, 2)}, {vr(DN, 2)}, s[30:31]")
        a(f"v_pk_add_f32 {vr(DN + 2, 2)}, {vr(DN + 2, 2)}, s[30:31]")
        for i in range(4):
            a(f"v_rcp_f32 v{DN + i}, v{DN + i}")
        a(f"v_pk_mul_f32 {vr(UR, 2)}, {vr(UR, 2)}, {vr(DN, 2)}")
        a(f"v_pk_mul_f32 {vr(UR + 2, 2)}, {vr(UR + 2, 2)}, {vr(DN + 2, 2)}")
        a(f"v_cvt_pk_bf16_f32 v{NM}, v{UR}, v{UR + 1}")
        a(f"v_cvt_pk_bf16_f32 v{NM + 1}, v{UR + 2}, v{UR + 3}")
        a(f"global_store_dwordx2 v{VOC}, {vr(NM, 2)}, {sr(OUT)}{STO}")
        a.label(f"L2_fld{k}")

    VW = 2 * (RA - 2)
    a(f"s_cmp_eq_u32 s{SC}, s{STR}")
    a("s_cbranch_scc1 L2_pop_first")
    a.label("L2_first_cont")
    if "nogather" not in OPT:
        a(f"s_waitcnt vmcnt({VW})")
    mfma1(0, 0)
    mfma1(0, 1)
    read_idx(0)
    a("s_nop 2")
    gather(0)
    a("s_branch L2_mid0")

    a.label("L2_loop")
    for k in range(NP):
        pk = (k - 1) % NP
        a.label(f"L2_top{k}")
        a(f"s_cmp_eq_u32 s{SC}, s{STR}")
        a(f"s_cbranch_scc1 L2_ev{k}")
        a.label(f"L2_cont{k}")
        tail1(pk)
        if "nogather" not in OPT:
            a(f"s_waitcnt vmcnt({VW})")
        mfma1(k, 0)
        rcp2(0)
        mfma1(k, 1)
        rcp2(1)
        read_idx(k)
        tail2()
        a("s_waitcnt lgkmcnt(4)")
        gather(k)
        a.label(f"L2_mid{k}")
        front(k)
        a(f"s_sub_u32 s{SC}, s{SC}, 1")
        if k == NP - 1:
            a(f"v_add_u32 v{VL}, {8 * NP}, v{VL}")
            a("s_branch L2_loop")

    def pop(k, cont):
        a(f"ds_add_rtn_u32 v{T2}, v{VQ}, v{VONE}")
        a(f"s_mov_b32 s{STR}, s{SODD}")
        a("s_waitcnt lgkmcnt(0)")
        a(f"v_readfirstlane_b32 s{SI}, v{T2}")
        a(f"s_mov_b32 s{SNL}, 0")
        a(f"v_mov_b32 v{VL}, {LIST + DUMMY_COL - 8 * (RA + k)}")
        a("s_nop 1")
        a(f"s_cmp_lt_u32 s{SI}, {NWIN}")
        a(f"s_cbranch_scc0 {cont}")
        a(f"s_lshl_b32 s26, s{SI}, 4")
        a(f"v_add_u32 v{T2}, s26, v{VG4}")
        a(f"ds_read_b32 v{T3}, v{T2} offset:{WKEY}")
        a(f"v_readlane_b32 s{SNL}, v{VWL}, s{SI}")
        a("s_waitcnt lgkmcnt(0)")
        a(f"v_and_b32 v{VRN}, 0xffff, v{T3}")
        a(f"v_lshrrev_b32 v{VL}, 16, v{T3}")
        a(f"v_lshl_add_u32 v{VON}, v{VRN}, 7, v{VZ}")
        a(f"v_mad_u32_u24 v{VRN}, v{VRN}, s68, v{VJ}")
        a(f"v_add_u32 v{VL}, {LIST - 8 * (RA + k)}, v{VL}")
        a(f"s_branch {cont}")

    a.label("L2_pop_first")
    pop(0, "L2_first_cont")
    for k in range(NP):
        pk = (k - 1) % NP
        a.label(f"L2_ev{k}")
        a(f"s_cmp_eq_u32 s{STR}, 0")
        a(f"s_cbranch_scc1 L2_sw{k}")
        a(f"s_cmp_eq_u32 s{STR}, 1")
        a(f"s_cbranch_scc1 L2_half{k}")
        pop(k, f"L2_cont{k}")
        a.label(f"L2_half{k}")
        tail1(pk)
        if "nogather" not in OPT:
            a(f"s_waitcnt vmcnt({VW})")
        mfma1(k, 0)
        rcp2(0)
        rcp2(1)
        read_idx(k)
        tail2()
        a("s_waitcnt lgkmcnt(4)")
        gather(k)
        d = DA + 8 * (k & 1)
        ep = EV + 2 * k
        a(f"v_pk_fma_f32 {vr(d, 2)}, {vr(ep, 2)}, {vr(CV, 2)}, {vr(d, 2)} op_sel_hi:[0,1,1]")
        a(f"v_pk_fma_f32 {vr(d + 2, 2)}, {vr(ep, 2)}, {vr(CV + 2, 2)}, {vr(d + 2, 2)} op_sel_hi:[0,1,1]")
        read_e(k)
        for i in range(4):
            a(f"v_exp_f32_e64 v{d + i}, v{d + i} clamp")
        a(f"v_pk_add_f32 {vr(d, 2)}, {vr(d, 2)}, s[66:67]")
        a(f"v_pk_add_f32 {vr(d + 2, 2)}, {vr(d + 2, 2)}, s[66:67]")
        a(f"s_mov_b32 s{SC}, 0")
        a(f"s_mov_b32 s{STR}, 0")
        a(f"s_mov_b32 s{SHALF}, 1")
        if k == NP - 1:
            a(f"v_add_u32 v{VL}, {8 * NP}, v{VL}")
        a(f"s_branch L2_top{(k + 1) % NP}")
        a.label(f"L2_sw{k}")
        a(f"s_cmp_lg_u32 s{SHALF}, 0")
        a(f"s_cbranch_scc1 L2_swh{k}")
        tail1(pk)
        rcp2(0)
        rcp2(1)
        a("s_nop 0")
        tail2()
        a(f"s_branch L2_swf{k}")
        a.label(f"L2_swh{k}")
        dp = DA + 8 * (pk & 1)
        vbp = VB + 8 * pk
        for i in range(4):
            a(f"v_rcp_f32 v{dp + i}, v{dp + i}")
        a(f"s_mov_b32 s{SHALF}, 0")
        a(f"v_pk_fma_f32 {vr(ACC, 2)}, {vr(dp, 2)}, {vr(vbp, 2)}, {vr(ACC, 2)}")
        a(f"v_pk_fma_f32 {vr(ACC + 2, 2)}, {vr(dp + 2, 2)}, {vr(vbp + 2, 2)}, {vr(ACC + 2, 2)}")
        a.label(f"L2_swf{k}")
        flush(k)
        a(f"s_cmp_eq_u32 s{SNL}, 0")
        a("s_cbranch_scc1 L2_exit")
        a(f"ds_read_b128 {vr(PR, 4)}, v{VRN} offset:{PL}")
        a(f"ds_read_b128 {vr(UR, 4)}, v{VRN} offset:{PART0}")
        for i in range(4):
            a(f"v_mov_b32 v{ACC + i}, 0")
        a(f"v_mov_b32 v{VFL}, v{VRN}")
        a(f"v_mov_b32 v{VOC}, v{VON}")
        a(f"s_cmp_ge_u32 s{SI}, {NWIN // 2}")
        a(f"s_cselect_b32 s{SP}, 1, 0")
        a(f"s_and_b32 s{SODD}, s{SNL}, 1")
        a(f"s_add_u32 s{SC}, s{SNL}, 1")
        a(f"s_lshr_b32 s{SC}, s{SC}, 1")
        a(f"s_mov_b32 s{STR}, {RA}")
        if "noprio" not in OPT:
            a(f"s_cmp_lt_u32 s{SI}, {PRIO_B}")
            a(f"s_cbranch_scc1 L2_p1_{k}")
            a("s_setprio 0")
            a(f"s_branch L2_pd_{k}")
            a.label(f"L2_p1_{k}")
            a(f"s_cmp_lt_u32 s{SI}, {PRIO_A}")
            a(f"s_cbranch_scc1 L2_pd_{k}")
            a("s_setprio 1")
            a.label(f"L2_pd_{k}")
        a(f"s_cmp_eq_u32 s{SC}, {RA}")
        a(f"s_cbranch_scc0 L2_sw2_{k}")
        pop(k, f"L2_sw2_{k}")
        a.label(f"L2_sw2_{k}")
        if "nogather" not in OPT:
            a(f"s_waitcnt vmcnt({VW}) lgkmcnt(0)")
        else:
            a("s_waitcnt lgkmcnt(0)")
        mfma1(k, 0)
        mfma1(k, 1)
        read_idx(k)
        a("s_nop 2")
        gather(k)
        a(f"s_branch L2_mid{k}")

    a.label("L2_exit")
    stamp(a, 10)
    stamp(a, 11)
    stamp(a, 12)
    if STAMPS or "dbgs" in OPT:
        a("s_waitcnt vmcnt(0)")
    stamp(a, 13)
    stamp(a, 21, True)
    stamp_flush(a, 1)
    a("s_endpgm")

    a.label("L2_slow")
    SSC, SCN, SRI = 61, 62, 63
    a(f"v_lshlrev_b32 v{T0}, 2, v{LANE}")
    a(f"v_lshlrev_b32 v{T1}, 1, v{LANE}")
    a(f"v_add_u32 v{T1}, {128 * 128}, v{T1}")
    a(f"global_load_ushort v{T2}, v{T1}, {sr(GW)}")
    a(f"s_mov_b32 s24, {LOG2E_NEG:#x}")
    a("s_waitcnt vmcnt(0) lgkmcnt(0)")
    a(f"v_lshlrev_b32 v{T2}, 16, v{T2}")
    a(f"v_mul_f32 v8, s24, v{T2}")
    a(f"s_mov_b32 s{SSC}, 0")
    a.label("L2_slow_seg")
    a(f"s_cmp_ge_u32 s{SSC}, {NC}")
    a("s_cbranch_scc1 L2_done")
    a(f"s_lshl_b32 s24, s{SSC}, 8")
    a("s_add_u32 s24, s24, s2")
    a("s_lshl_b32 s24, s24, 2")
    a(f"s_add_u32 s24, s24, {SEG_OFF}")
    a(f"v_mov_b32 v{T1}, s24")
    a(f"global_load_dword v{T2}, v{T1}, {sr(WS)}")
    a("s_waitcnt vmcnt(0)")
    a(f"v_readfirstlane_b32 s25, v{T2}")
    a("s_nop 3")
    a(f"s_lshr_b32 s{SCN}, s25, 16")
    a("s_and_b32 s25, s25, 0xffff")
    a(f"s_mul_i32 s26, s{SSC}, {EPC}")
    a("s_add_u32 s26, s26, s25")
    a("s_lshl_b32 s26, s26, 3")
    a(f"s_add_u32 s{SRI}, s26, {REC_OFF}")
    a.label("L2_slow_rec")
    a(f"s_cmp_eq_u32 s{SCN}, 0")
    a("s_cbranch_scc1 L2_slow_next")
    a(f"v_mov_b32 v{T1}, s{SRI}")
    a(f"global_load_dwordx2 v[10:11], v{T1}, {sr(WS)}")
    a(f"s_add_u32 s{SRI}, s{SRI}, 8")
    a(f"s_sub_u32 s{SCN}, s{SCN}, 1")
    a("s_waitcnt vmcnt(0)")
    a("v_and_b32 v14, 127, v11")
    a("v_and_b32 v15, 15, v14")
    a("s_nop 0")
    a("v_readfirstlane_b32 s25, v15")
    a("s_nop 3")
    a(f"s_cmp_lg_u32 s25, s{WAVE}")
    a("s_cbranch_scc1 L2_slow_rec")
    a("v_and_b32 v18, 0xffff, v10")
    a(f"v_mov_b32 v19, v{T0}")
    a("buffer_load_dword v13, v[18:19], s[36:39], 0 idxen offen")
    a(f"v_mul_u32_u24 v14, {ROW}, v14")
    a(f"v_add_u32 v14, v14, v{T0}")
    a(f"ds_read_b32 v15, v14 offset:{PL}")
    a(f"ds_read_b32 v17, v14 offset:{PART0}")
    a("v_and_b32 v11, 0xffff0000, v10")
    a("s_waitcnt vmcnt(0) lgkmcnt(0)")
    a("v_cvt_f32_f16 v16, v13")
    a("v_add_f32 v16, v16, v15")
    a("v_fmac_f32 v16, v11, v8")
    a("v_exp_f32 v16, v16")
    a(f"s_mov_b32 s25, {TINY:#x}")
    a("v_add_f32 v16, s25, v16")
    a("v_rcp_f32 v16, v16")
    a("s_nop 0")
    a("v_mul_f32 v16, s25, v16")
    a("v_fmac_f32 v17, v16, v13")
    a(f"ds_write_b32 v14, v17 offset:{PART0}")
    a("s_waitcnt lgkmcnt(0)")
    a("s_branch L2_slow_rec")
    a.label("L2_slow_next")
    a(f"s_add_u32 s{SSC}, s{SSC}, 1")
    a("s_branch L2_slow_seg")

    a.label("L2_done")
    stamp(a, 10)
    a("s_setprio 0")
    a(f"v_lshrrev_b32 v{T0}, 4, v{TID}")
    a(f"v_and_b32 v{T1}, 15, v{TID}")
    a(f"v_mul_u32_u24 v{T2}, {ROW}, v{T0}")
    a(f"v_lshl_add_u32 v{T2}, v{T1}, 4, v{T2}")
    a(f"s_mul_i32 s24, s2, {NPB * 128}")
    a(f"v_lshlrev_b32 v{T3}, 7, v{T0}")
    a(f"v_lshl_add_u32 v{T3}, v{T1}, 3, v{T3}")
    a(f"v_add_u32 v{T3}, s24, v{T3}")
    a(f"v_add_u32 v7, {64 * ROW}, v{T2}")
    a(f"v_add_u32 v6, {64 * 128}, v{T3}")
    a(f"s_mov_b32 s24, {LOG2E_NEG:#x}")
    a(f"s_mov_b32 s25, {LOG2E_NEG:#x}")
    a("s_mov_b32 s26, 1.0")
    a("s_mov_b32 s27, 1.0")
    a("s_waitcnt vmcnt(0) lgkmcnt(0)")
    a("s_barrier")
    stamp(a, 11)

    def silu_store(src, off):
        a(f"v_pk_mul_f32 {vr(src + 4, 2)}, {vr(src, 2)}, s[24:25]")
        a(f"v_pk_mul_f32 {vr(src + 6, 2)}, {vr(src + 2, 2)}, s[24:25]")
        for i in range(4):
            a(f"v_exp_f32 v{src + 4 + i}, v{src + 4 + i}")
        a(f"v_pk_add_f32 {vr(src + 4, 2)}, {vr(src + 4, 2)}, s[26:27]")
        a(f"v_pk_add_f32 {vr(src + 6, 2)}, {vr(src + 6, 2)}, s[26:27]")
        for i in range(4):
            a(f"v_rcp_f32 v{src + 4 + i}, v{src + 4 + i}")
        a(f"v_pk_mul_f32 {vr(src, 2)}, {vr(src, 2)}, {vr(src + 4, 2)}")
        a(f"v_pk_mul_f32 {vr(src + 2, 2)}, {vr(src + 2, 2)}, {vr(src + 6, 2)}")
        a(f"v_cvt_pk_bf16_f32 v{src + 4}, v{src}, v{src + 1}")
        a(f"v_cvt_pk_bf16_f32 v{src + 5}, v{src + 2}, v{src + 3}")
        a(f"global_store_dwordx2 v{off}, {vr(src + 4, 2)}, {sr(OUT)}{STO}")

    a(f"ds_read_b128 v[8:11], v{T2} offset:{PART0}")
    a(f"s_cmp_lt_u32 s{WAVE}, 9")
    a("s_cbranch_scc0 L2_ep1")
    a(f"ds_read_b128 v[16:19], v7 offset:{PART0}")
    a("s_waitcnt lgkmcnt(0)")
    silu_store(16, 6)
    a.label("L2_ep1")
    a("s_waitcnt lgkmcnt(0)")
    silu_store(8, T3)
    if "dbgt" in OPT:
        a("s_waitcnt vmcnt(0)")
    dbg_time(a, 1, 3)
    stamp(a, 12)
    if STAMPS:
        a("s_waitcnt vmcnt(0)")
    stamp(a, 13)
    stamp(a, 21, True)
    stamp_flush(a, 1)
    a.label("L2_end")
    a("s_endpgm")
    return LDS, 128


def descriptor(a, name, vgprs, sgprs=80):
    a(f".amdhsa_kernel {name}")
    a(f"  .amdhsa_next_free_vgpr {vgprs}")
    a(f"  .amdhsa_next_free_sgpr {sgprs}")
    a(f"  .amdhsa_accum_offset {vgprs}")
    a("  .amdhsa_group_segment_fixed_size 0")
    a("  .amdhsa_kernarg_size 80")
    a("  .amdhsa_user_sgpr_count 2")
    a("  .amdhsa_user_sgpr_kernarg_segment_ptr 1")
    a("  .amdhsa_system_sgpr_workgroup_id_x 1")
    a("  .amdhsa_float_denorm_mode_32 3")
    a(".end_amdhsa_kernel")


def main():
    global STAMPS, ST, STT, STR_, STO
    if "--stamps" in sys.argv:
        STAMPS = True
        sys.argv.remove("--stamps")
    for o in OPT:
        if o.startswith("st="):
            ST = STT = STR_ = " " + o[3:].replace("+", " ")
        if o.startswith("stt="):
            STT = " " + o[4:].replace("+", " ")
        if o.startswith("sto="):
            STO = " " + o[4:].replace("+", " ")
        if o.startswith("str="):
            STR_ = " " + o[4:].replace("+", " ")
    body = Asm()
    body(".amdgcn_target \"amdgcn-amd-amdhsa--gfx950\"")
    body(".text")
    lds1, v1 = gen_k1(body)
    lds2, v2 = gen_k2(body)
    body(".section .rodata,\"a\"")
    body(".p2align 6")
    descriptor(body, K1, 128 if (STAMPS or 'dbgt' in OPT) else v1)
    body(".p2align 6")
    descriptor(body, K2, v2)
    head = [
        "; Edge-gated MPNN layer in two launches (generated by a hand-written generator script).",
        "; launch 1: partitions the edges by destination bucket and builds the per-node source table",
        "; launch 2: per bucket of 100 nodes: sorts its edges, gated aggregation, SiLU epilogue",
        f"; @launch kernel={K1} grid=({NC},1,1) block=(1024,1,1) lds={lds1}",
        f"; @launch kernel={K2} grid=({NB},1,1) block=(1024,1,1) lds={lds2}",
    ]
    out = "\n".join(head) + "\n" + body.text()
    path = sys.argv[1] if len(sys.argv) > 1 else "standalone__edge_featured_mpnn_egc__graph.s"
    open(path, "w").write(out)
    print("wrote", path, "lds", lds1, lds2)


if __name__ == "__main__":
    main()
```

```python
import os
import sys

N = 25000
E = 800000
NB = 250
NPB = 100
NC = 250
EPC = 3200
HALF = 12500

T_OFF = 0
REC_OFF = int(os.environ.get('REC_OFF', '0x700000'), 0)
SEG_OFF = REC_OFF + 0x700000

LOG2E_NEG = 0xBFB8AA3B
SHIFT_NEG = 0xC2700000
TINY = 0x21800000
ROW = 272
XROW = 144

K1 = "egc_part_kernel"
K2 = "standalone__edge_featured_mpnn_egc__graph_kernel"

OPT = set(os.environ.get("OPT", "").split(","))
TOUCH0 = int(os.environ.get('TOUCH0', '12'))
PRIO_A = int(os.environ.get('PRIO_A', '25'))
PRIO_B = int(os.environ.get('PRIO_B', '38'))
STAMPS = False
STAMP_OFF = 0x2000000
SV = 127

X, EA, SRC, DST, UW, VW, GW, OUT, WS = 4, 6, 8, 10, 12, 14, 16, 18, 20
WAVE = 22


DBGS_SLOTS = {0: None, 1: 0, 3: 1, 4: 2, 5: 3, 6: 4, 8: 5, 9: 6, 10: 7}


def stamp(a, i, real=False):
    if "dbgs" in OPT and a.kernel == 2 and not real:
        a("s_memtime s[70:71]")
        a("s_waitcnt lgkmcnt(0)")
        a(f"v_writelane_b32 v127, s70, {i}")
        return
    if not STAMPS:
        return
    a(f"s_mem{'real' if real else ''}time s[70:71]")
    a("s_waitcnt lgkmcnt(0)")
    a(f"v_writelane_b32 v{SV}, s70, {i}")


TIME_OFF = 0x2800000


def dbg_time(a, which, slot, neg=False, tag=""):
    if "dbgt" not in OPT:
        return
    a("v_readfirstlane_b32 s78, v0")
    a("s_nop 3")
    a("s_cmp_lg_u32 s78, 0")
    a(f"s_cbranch_scc1 L_dbg_{which}_{slot}")
    a("s_memrealtime s[70:71]")
    a(f"s_load_dwordx2 s[74:75], s[0:1], {72 if which == 0 else 64}")
    a("s_waitcnt lgkmcnt(0)")
    if neg:
        a("s_not_b32 s70, s70")
    a("v_mov_b32 v125, s70")
    a("s_mov_b64 s[76:77], exec")
    a("s_mov_b64 exec, 1")
    if which == 0:
        a("s_lshl_b32 s78, s2, 3")
        a(f"s_add_u32 s78, s78, {TIME_OFF + slot * 4}")
        a("v_mov_b32 v126, s78")
        a("global_store_dword v126, v125, s[74:75]")
    else:
        a(f"v_mov_b32 v126, {slot * 4}")
        a("global_atomic_umax v126, v125, s[74:75]")
    a("s_mov_b64 exec, s[76:77]")
    if which == 1 and slot == 2:
        a("s_cmp_lg_u32 s2, 0")
        a(f"s_cbranch_scc1 L_dbg_{which}_{slot}")
        a("s_load_dwordx2 s[76:77], s[0:1], 72")
        a("s_waitcnt lgkmcnt(0)")
        for r in range(4):
            a(f"v_add_u32 v124, {64 * r}, v0")
            a("v_min_u32 v124, 249, v124")
            a("v_lshlrev_b32 v124, 3, v124")
            a(f"v_add_u32 v124, {TIME_OFF}, v124")
            a("global_load_dwordx2 v[122:123], v124, s[76:77]")
            a("s_waitcnt vmcnt(0)")
            a("v_mov_b32 v126, 16")
            a("global_atomic_umax v126, v122, s[74:75]")
            a("v_mov_b32 v126, 20")
            a("global_atomic_umax v126, v123, s[74:75]")
        a("s_waitcnt vmcnt(0)")
    a.label(f"L_dbg_{which}_{slot}")


def stamp_flush(a, which):
    if "dbgs" in OPT and which == 1:
        a.nflush = getattr(a, "nflush", 0) + 1
        a(f"s_cmp_lg_u32 s{WAVE}, 12")
        a(f"s_cbranch_scc1 L_dbgs_skip{a.nflush}")
        a("s_load_dwordx2 s[74:75], s[0:1], 64")
        a("v_readlane_b32 s70, v127, 0")
        a("s_waitcnt lgkmcnt(0)")
        a("v_subrev_u32 v126, s70, v127")
        a("v_and_b32 v125, 63, v0")
        a("v_cmp_gt_u32 vcc, 16, v125")
        a("v_lshlrev_b32 v125, 2, v125")
        a("s_and_saveexec_b64 s[76:77], vcc")
        a("global_atomic_umax v125, v126, s[74:75]")
        a("s_mov_b64 exec, s[76:77]")
        a.label(f"L_dbgs_skip{a.nflush}")
        return
    if not STAMPS:
        return
    a("s_lshl_b32 s72, s2, 4")
    a(f"s_add_u32 s72, s72, s{WAVE}")
    a("s_lshl_b32 s72, s72, 8")
    a(f"s_add_u32 s72, s72, {STAMP_OFF + which * 0x200000}")
    a("v_and_b32 v126, 63, v0")
    a("v_lshlrev_b32 v126, 2, v126")
    a("v_add_u32 v126, s72, v126")
    a(f"global_store_dword v126, v{SV}, s[20:21]")


class Asm:
    def __init__(self):
        self.lines = []
        self.kernel = 1

    def __call__(self, s=""):
        for ln in s.split("\n"):
            self.lines.append(ln if ln.strip().endswith(":") else "    " + ln.strip())

    def label(self, s):
        self.lines.append(s + ":")

    def text(self):
        return "\n".join(self.lines) + "\n"


def vr(a, n):
    return f"v[{a}:{a + n - 1}]"


def sr(a, n=2):
    return f"s[{a}:{a + n - 1}]"


def wave_scan(a, v):
    for sh in (1, 2, 4, 8):
        a("s_nop 1")
        a(f"v_add_u32_dpp v{v}, v{v}, v{v} row_shr:{sh} row_mask:0xf bank_mask:0xf bound_ctrl:0")
    a("s_nop 1")
    a(f"v_add_u32_dpp v{v}, v{v}, v{v} row_bcast:15 row_mask:0xa bank_mask:0xf")
    a("s_nop 1")
    a(f"v_add_u32_dpp v{v}, v{v}, v{v} row_bcast:31 row_mask:0xc bank_mask:0xf")
    a("s_nop 1")


WSBASE = int(os.environ.get("WSBASE", "0"), 0)


def remap_wg(a, which):
    if f"noremap{which}" in OPT:
        return
    a("s_and_b32 s24, s2, 7")
    a("s_lshr_b32 s2, s2, 3")
    a("s_mov_b32 s23, s2")
    a("s_mul_i32 s25, s24, 31")
    a("s_min_u32 s24, s24, 2")
    a("s_add_u32 s2, s2, s25")
    a("s_add_u32 s2, s2, s24")


def warm_l2(a, lane, t0, t1, dst):
    for n in range(2):
        a(f"s_lshl_b32 s24, s{WAVE}, 7")
        a(f"s_add_u32 s24, s24, {n * 64}")
        a(f"v_add_u32 v{t0}, s24, v{lane}")
        a(f"v_min_u32 v{t0}, 1599, v{t0}")
        a(f"v_lshrrev_b32 v{t1}, 2, v{t0}")
        a("s_mul_i32 s24, s23, 400")
        a(f"v_add_u32 v{t1}, s24, v{t1}")
        a(f"v_min_u32 v{t1}, 12711, v{t1}")
        a(f"v_and_b32 v{t0}, 3, v{t0}")
        a(f"v_lshlrev_b32 v{t0}, 6, v{t0}")
        a(f"v_and_b32 v125, 0xfffff000, v{t1}")
        a(f"v_add_u32 v{t1}, v{t1}, v125")
        a(f"v_lshl_add_u32 v{t0}, v{t1}, 8, v{t0}")
        a(f"global_load_dword v{dst}, v{t0}, {sr(WS)}")


def load_ptrs(a):
    a("s_load_dwordx16 s[4:19], s[0:1], 0")
    a("s_load_dwordx2 s[20:21], s[0:1], 72")


def fix_ws(a):
    if WSBASE:
        a(f"s_add_u32 s20, s20, {WSBASE}")
        a("s_addc_u32 s21, s21, 0")


ST = ""
STT = ""
STR_ = ""
STO = ""


class Node:
    def __init__(self, a, WST, XST, tid, lane, vw, vx, t):
        self.a, self.WST, self.XST = a, WST, XST
        self.tid, self.lane, self.vw, self.vx, self.t = tid, lane, vw, vx, t

    def issue_loads(self, p0, off0, p1):
        a, t = self.a, self.t
        a(f"s_cmp_lt_u32 s{WAVE}, 8")
        a(f"s_cselect_b32 s24, s{p0}, s{p1}")
        a(f"s_cselect_b32 s25, s{p0 + 1}, s{p1 + 1}")
        if off0:
            a(f"s_cselect_b32 s26, {off0}, 0")
            a("s_add_u32 s24, s24, s26")
            a("s_addc_u32 s25, s25, 0")
        a(f"v_and_b32 v{t}, 511, v{self.tid}")
        a(f"v_lshlrev_b32 v{t}, 4, v{t}")
        a(f"global_load_dwordx4 {vr(self.vw, 4)}, v{t}, s[24:25]")
        a(f"v_min_u32 v{t}, {NPB * 8 - 1}, v{self.tid}")
        a(f"v_lshlrev_b32 v{t}, 4, v{t}")
        a(f"s_mul_i32 s26, s2, {NPB * 128}")
        a(f"v_add_u32 v{t}, s26, v{t}")
        a(f"global_load_dwordx4 {vr(self.vx, 4)}, v{t}, {sr(X)}")

    def stage(self):
        a, t, tid = self.a, self.t, self.tid
        a(f"v_bfe_u32 v{t}, v{tid}, 4, 1")
        a(f"v_bfe_u32 v{t + 1}, v{tid}, 6, 1")
        a(f"v_lshl_or_b32 v{t}, v{t + 1}, 1, v{t}")
        a(f"v_lshlrev_b32 v{t}, 5, v{t}")
        a(f"v_lshlrev_b32 v{t + 1}, 4, v{tid}")
        a(f"v_xor_b32 v{t}, v{t}, v{t + 1}")
        a(f"v_add_u32 v{t}, {self.WST}, v{t}")
        a(f"ds_write_b128 v{t}, {vr(self.vw, 4)}")
        a(f"v_lshrrev_b32 v{t}, 3, v{tid}")
        a(f"v_mul_u32_u24 v{t}, {XROW}, v{t}")
        a(f"v_and_b32 v{t + 1}, 7, v{tid}")
        a(f"v_lshl_add_u32 v{t}, v{t + 1}, 4, v{t}")
        a(f"v_add_u32 v{t}, {self.XST}, v{t}")
        a(f"v_cmp_gt_u32 vcc, {NPB * 8}, v{tid}")
        a("s_and_saveexec_b64 s[32:33], vcc")
        a(f"ds_write_b128 v{t}, {vr(self.vx, 4)}")
        a("s_mov_b64 exec, s[32:33]")

    def stage_addr(self, vw_a, vx_a, t):
        a, tid = self.a, self.tid
        a(f"v_bfe_u32 v{vw_a}, v{tid}, 4, 1")
        a(f"v_bfe_u32 v{t}, v{tid}, 6, 1")
        a(f"v_lshl_or_b32 v{vw_a}, v{t}, 1, v{vw_a}")
        a(f"v_lshlrev_b32 v{vw_a}, 5, v{vw_a}")
        a(f"v_lshlrev_b32 v{t}, 4, v{tid}")
        a(f"v_xor_b32 v{vw_a}, v{vw_a}, v{t}")
        a(f"v_add_u32 v{vw_a}, {self.WST}, v{vw_a}")
        a(f"v_lshrrev_b32 v{vx_a}, 3, v{tid}")
        a(f"v_mul_u32_u24 v{vx_a}, {XROW}, v{vx_a}")
        a(f"v_and_b32 v{t}, 7, v{tid}")
        a(f"v_lshl_add_u32 v{vx_a}, v{t}, 4, v{vx_a}")
        a(f"v_add_u32 v{vx_a}, {self.XST}, v{vx_a}")

    def stage_write(self, vw_a, vx_a):
        a, tid = self.a, self.tid
        a(f"ds_write_b128 v{vw_a}, {vr(self.vw, 4)}")
        a(f"v_cmp_gt_u32 vcc, {NPB * 8}, v{tid}")
        a("s_and_saveexec_b64 s[32:33], vcc")
        a(f"ds_write_b128 v{vx_a}, {vr(self.vx, 4)}")
        a("s_mov_b64 exec, s[32:33]")

    def pair_reads(self, aop, xop, vloc):
        a, t, lane = self.a, self.t, self.lane
        a(f"s_and_b32 s27, s{WAVE}, 1")
        a("s_lshl_b32 s27, s27, 1")
        a(f"s_lshr_b32 s26, s{WAVE}, 1")
        a(f"v_and_b32 v{t}, 15, v{lane}")
        a(f"v_lshrrev_b32 v{t + 1}, 4, v{lane}")
        a("s_lshl_b32 s26, s26, 4")
        a(f"v_add_u32 v{vloc}, s26, v{t}")
        a(f"v_mul_u32_u24 v{t + 2}, {XROW}, v{vloc}")
        a(f"v_lshl_add_u32 v{t + 2}, v{t + 1}, 4, v{t + 2}")
        a(f"v_add_u32 v{t + 2}, {self.XST}, v{t + 2}")
        a(f"ds_read_b128 {vr(xop, 4)}, v{t + 2}")
        a(f"ds_read_b128 {vr(xop + 4, 4)}, v{t + 2} offset:64")
        a(f"v_lshrrev_b32 v{t + 2}, 3, v{t}")
        a(f"v_and_b32 v{xop + 8}, 1, v{t + 1}")
        a(f"v_lshl_or_b32 v{t + 2}, v{xop + 8}, 1, v{t + 2}")
        a(f"v_xor_b32 v{t + 2}, s27, v{t + 2}")
        a(f"v_lshlrev_b32 v{t + 2}, 5, v{t + 2}")
        a(f"v_lshrrev_b32 v{xop + 8}, 2, v{t}")
        a(f"v_lshl_add_u32 v{xop + 8}, v{t + 1}, 3, v{xop + 8}")
        a(f"v_lshl_add_u32 v{t + 2}, v{xop + 8}, 7, v{t + 2}")
        a(f"v_and_b32 v{xop + 8}, 3, v{t}")
        a(f"v_lshl_add_u32 v{t + 2}, v{xop + 8}, 3, v{t + 2}")
        a(f"v_add_u32 v{t + 2}, {self.WST}, v{t + 2}")
        assert self.WST % 128 == 0
        for c in range(2):
            if c:
                a("s_waitcnt lgkmcnt(6)")
                a(f"v_xor_b32 v{t + 2}, 32, v{t + 2}")
            for m in range(2):
                for ks in range(2):
                    for hh in range(2):
                        r = aop + c * 16 + (m * 2 + ks) * 4 + hh * 2
                        a(f"ds_read_b64_tr_b16 {vr(r, 2)}, v{t + 2} offset:{m * 8192 + ks * 4096 + hh * 512}")

    def pair_mfma(self, aop, xop, dd):
        a = self.a
        for ks in range(2):
            for c in range(2):
                for m in range(2):
                    d = dd + (c * 2 + m) * 4
                    cop = "0" if ks == 0 else vr(d, 4)
                    a(f"v_mfma_f32_16x16x32_bf16 {vr(d, 4)}, {vr(aop + c * 16 + (m * 2 + ks) * 4, 4)}, {vr(xop + 4 * ks, 4)}, {cop}")


def copy_out(a, lds_addr_fn, goff_sgpr, t0, t1, d0, d1, tag):
    ST = STT if tag == "t" else STR_
    lds_addr_fn(0, t1)
    a(f"ds_read_b128 {vr(d0, 4)}, v{t1}")
    a(f"v_lshlrev_b32 v{t0}, 4, v0")
    a(f"v_add_u32 v{t0}, s{goff_sgpr}, v{t0}")
    a(f"s_cmp_gt_u32 s{WAVE}, 8")
    a(f"s_cbranch_scc1 L1_one{tag}")
    a(f"v_add_u32 v{t1}, 1024, v0")
    lds_addr_fn(t1, t1)
    a(f"ds_read_b128 {vr(d1, 4)}, v{t1}")
    a(f"v_add_u32 v{t1}, 16384, v{t0}")
    a("s_waitcnt lgkmcnt(0)")
    a(f"global_store_dwordx4 v{t1}, {vr(d1, 4)}, {sr(WS)}{ST}")
    a.label(f"L1_one{tag}")
    a("s_waitcnt lgkmcnt(0)")
    a(f"global_store_dwordx4 v{t0}, {vr(d0, 4)}, {sr(WS)}{ST}")


def gen_k1(a):
    HIST, BASE = 0, 1024
    WST = 2048
    XST = WST + 16384
    TST = XST + 112 * XROW
    STG = TST + NPB * ROW
    LDS = STG + EPC * 8
    TID, LANE = 0, 1
    T0, T1, T2, T3 = 2, 3, 14, 15
    VD, VS, VE = 4, 8, 12
    VW_, VX_ = 16, 20
    XOP = 24
    AOP = 36
    DD = 68
    PK = 84
    VLOC = 87
    VB, VR = 88, 92
    RP = 104
    NT = 100
    nd = Node(a, WST, XST, TID, LANE, VW_, VX_, NT)

    a(f".globl {K1}")
    a(".p2align 8")
    a(f".type {K1},@function")
    a.label(K1)
    a(f"s_cmp_ge_u32 s2, {NC}")
    a("s_cbranch_scc1 L1_end")
    dbg_time(a, 0, 0, True)
    stamp(a, 0)
    stamp(a, 20, True)
    load_ptrs(a)
    remap_wg(a, 1)
    a(f"v_and_b32 v{LANE}, 63, v{TID}")
    a(f"v_lshrrev_b32 v{T0}, 6, v{TID}")
    a(f"v_lshlrev_b32 v{T1}, 2, v{TID}")
    a(f"v_readfirstlane_b32 s{WAVE}, v{T0}")
    a(f"v_mov_b32 v{T0}, 0")
    a(f"s_cmp_lt_u32 s{WAVE}, 4")
    a("s_cbranch_scc0 L1_nozero")
    a(f"ds_write_b32 v{T1}, v{T0} offset:{HIST}")
    a.label("L1_nozero")
    a("s_waitcnt lgkmcnt(0)")
    fix_ws(a)
    stamp(a, 1)
    nd.issue_loads(GW, 8192, VW)
    a("s_barrier")
    a(f"s_cmp_gt_u32 s{WAVE}, 12")
    a("s_cbranch_scc1 L1_noedge0")
    a(f"s_mul_i32 s24, s2, {EPC * 4}")
    a(f"v_lshlrev_b32 v{T0}, 4, v{TID}")
    a(f"v_add_u32 v{T0}, s24, v{T0}")
    a(f"v_lshrrev_b32 v{T1}, 1, v{T0}")
    a(f"v_cmp_gt_u32 vcc, {EPC // 4}, v{TID}")
    a("s_and_saveexec_b64 s[32:33], vcc")
    a(f"global_load_dwordx4 {vr(VD, 4)}, v{T0}, {sr(DST)}")
    a(f"global_load_dwordx4 {vr(VS, 4)}, v{T0}, {sr(SRC)}")
    a(f"global_load_dwordx2 {vr(VE, 2)}, v{T1}, {sr(EA)}")
    a("s_mov_b64 exec, s[32:33]")
    a("s_waitcnt vmcnt(3)")
    a("s_branch L1_wx")
    a.label("L1_noedge0")
    a("s_waitcnt vmcnt(0)")
    a.label("L1_wx")
    stamp(a, 2)
    nd.stage()
    a("s_waitcnt lgkmcnt(0)")
    a("s_barrier")
    stamp(a, 3)
    a(f"s_cmp_gt_u32 s{WAVE}, 13")
    a("s_cbranch_scc1 L1_notask")
    nd.pair_reads(AOP, XOP, VLOC)
    a(f"v_mul_u32_u24 v{T0}, {ROW}, v{VLOC}")
    a(f"v_lshrrev_b32 v{T1}, 4, v{LANE}")
    a(f"v_lshl_add_u32 v{T0}, v{T1}, 4, v{T0}")
    a("s_lshl_b32 s30, s27, 6")
    a(f"s_add_u32 s30, s30, {TST}")
    a(f"v_add_u32 v{T0}, s30, v{T0}")
    a(f"s_mov_b32 s24, {LOG2E_NEG:#x}")
    a("s_mov_b32 s25, 0x7fff0000")
    a("s_mov_b32 s30, 0x7fffffff")
    VLO, VHI = 33, 34
    a(f"v_mov_b32 v{VLO}, 0xc77fe000")
    a(f"v_mov_b32 v{VHI}, 0x477fe000")
    a(f"v_cmp_gt_u32 vcc, {NPB}, v{VLOC}")
    a("s_waitcnt lgkmcnt(0)")
    nd.pair_mfma(AOP, XOP, DD)
    a("s_nop 5")
    for c in range(2):
        DQ, DH = DD + c * 8, DD + c * 8 + 4
        if c == 1:
            pass
        for i in range(4):
            a(f"v_mul_f32 v{DQ + i}, s24, v{DQ + i}")
        for i in range(4):
            a(f"v_med3_f32 v{DQ + i}, v{DQ + i}, v{VLO}, v{VHI}")
        a(f"v_cvt_pk_f16_f32 v{PK}, v{DQ}, v{DQ + 1}")
        a(f"v_cvt_pk_f16_f32 v{PK + 1}, v{DQ + 2}, v{DQ + 3}")
        for i in range(4):
            h = DH + i
            sel = "WORD_1" if i % 2 else "WORD_0"
            a(f"v_and_b32 v{DQ + i}, s30, v{h}")
            a(f"v_add_u32 v{DQ + i}, 0x8000, v{DQ + i}")
            a(f"v_sub_u32_sdwa v{DQ + i}, v{DQ + i}, v{PK + i // 2} clamp dst_sel:DWORD dst_unused:UNUSED_PAD src0_sel:DWORD src1_sel:{sel}")
        for i in range(4):
            h = DH + i
            a(f"v_bfi_b32 v{h}, s25, v{DQ + i}, v{h}")
        for i in range(4):
            h = DH + i
            sel = "WORD_1" if i % 2 else "WORD_0"
            a(f"v_mov_b32_sdwa v{h}, v{PK + i // 2} dst_sel:WORD_0 dst_unused:UNUSED_PRESERVE src0_sel:{sel}")
        a("s_and_saveexec_b64 s[32:33], vcc")
        a(f"ds_write_b128 v{T0}, {vr(DH, 4)} offset:{c * 64}")
        a("s_mov_b64 exec, s[32:33]")
    a.label("L1_notask")
    a("s_waitcnt lgkmcnt(0)")
    stamp(a, 4)
    a("s_barrier")

    if "tall" in OPT:
        a(f"v_lshrrev_b32 v{T0}, 4, v{TID}")
        a(f"v_mul_u32_u24 v{T0}, {ROW}, v{T0}")
        a(f"v_and_b32 v{T1}, 15, v{TID}")
        a(f"v_lshl_add_u32 v{T0}, v{T1}, 4, v{T0}")
        a(f"v_add_u32 v{T0}, {TST}, v{T0}")
        a(f"ds_read_b128 v[16:19], v{T0}")
        a(f"s_mul_i32 s26, s2, {NPB * 256}")
        a(f"v_lshlrev_b32 v{T1}, 4, v{TID}")
        a(f"v_add_u32 v{T1}, s26, v{T1}")
        a(f"s_cmp_gt_u32 s{WAVE}, 8")
        a("s_cbranch_scc1 L1_t1")
        a(f"ds_read_b128 v[20:23], v{T0} offset:{64 * ROW}")
        a(f"v_add_u32 v{T2}, 16384, v{T1}")
        a("s_waitcnt lgkmcnt(0)")
        a(f"global_store_dwordx4 v{T2}, v[20:23], {sr(WS)}{STT}")
        a.label("L1_t1")
        a("s_waitcnt lgkmcnt(0)")
        a(f"global_store_dwordx4 v{T1}, v[16:19], {sr(WS)}{STT}")
        a(f"s_sub_u32 s24, s{WAVE}, 13")
        a("s_cmp_lt_u32 s24, 2")
        a("s_cbranch_scc0 L1_not")
        stamp(a, 5)
        if STAMPS:
            a("s_waitcnt vmcnt(0)")
        stamp(a, 11)
        stamp(a, 21, True)
        stamp_flush(a, 0)
        a("s_endpgm")
    else:
        a(f"s_sub_u32 s24, s{WAVE}, 13")
        a("s_cmp_lt_u32 s24, 2")
        a("s_cbranch_scc0 L1_not")
        a(f"v_lshrrev_b32 v{T0}, 4, v{LANE}")
        a(f"v_mul_u32_u24 v{T0}, {ROW}, v{T0}")
        a(f"v_and_b32 v{T1}, 15, v{LANE}")
        a(f"v_lshl_add_u32 v{T0}, v{T1}, 4, v{T0}")
        a(f"s_mul_i32 s25, s24, {13 * 4 * ROW}")
        a(f"s_add_u32 s25, s25, {TST}")
        a(f"v_add_u32 v{T0}, s25, v{T0}")
        a(f"s_mul_i32 s26, s2, {NPB * 256}")
        a(f"s_mul_i32 s25, s24, {13 * 1024}")
        a("s_add_u32 s26, s26, s25")
        a(f"v_lshlrev_b32 v{T1}, 4, v{LANE}")
        a(f"v_add_u32 v{T1}, s26, v{T1}")
        for n in range(12):
            a(f"ds_read_b128 {vr(16 + 4 * n, 4)}, v{T0} offset:{n * 4 * ROW}")
        a(f"v_add_u32 v{T2}, {12 * 1024}, v{T1}")
        a("s_cmp_eq_u32 s24, 0")
        a("s_cbranch_scc0 L1_t12")
        a(f"ds_read_b128 {vr(64, 4)}, v{T0} offset:{12 * 4 * ROW}")
        a("s_waitcnt lgkmcnt(0)")
        a(f"global_store_dwordx4 v{T2}, {vr(64, 4)}, {sr(WS)}{STT}")
        a.label("L1_t12")
        for n in range(12):
            a(f"s_waitcnt lgkmcnt({max(0, 11 - n)})")
            a(f"global_store_dwordx4 v{T1}, {vr(16 + 4 * n, 4)}, {sr(WS)} offset:{(n % 4) * 1024}{STT}")
            if n % 4 == 3:
                a(f"v_add_u32 v{T1}, 4096, v{T1}")
        if "readback" in OPT:
            a("s_waitcnt vmcnt(0)")
            a(f"v_subrev_u32 v{T1}, {3 * 4096}, v{T1}")
            for n in range(12):
                a(f"global_load_dwordx4 {vr(16 + 4 * n, 4)}, v{T1}, {sr(WS)} offset:{(n % 4) * 1024}")
                if n % 4 == 3:
                    a(f"v_add_u32 v{T1}, 4096, v{T1}")
            a(f"global_load_dwordx4 {vr(64, 4)}, v{T2}, {sr(WS)}")
            a("s_waitcnt vmcnt(0)")
        if "wbl2" in OPT:
            a("s_waitcnt vmcnt(0)")
            a("buffer_wbl2 sc1")
            a("s_waitcnt vmcnt(0)")
        stamp(a, 5)
        if STAMPS:
            a("s_waitcnt vmcnt(0)")
        stamp(a, 11)
        stamp(a, 21, True)
        stamp_flush(a, 0)
        a("s_endpgm")
    a.label("L1_not")
    stamp(a, 5)
    a(f"s_cmp_gt_u32 s{WAVE}, 12")
    a("s_cbranch_scc1 L1_noedge1")
    a(f"v_cmp_gt_u32 vcc, {EPC // 4}, v{TID}")
    a("s_and_saveexec_b64 s[32:33], vcc")
    a(f"v_mov_b32 v{T1}, 1")
    a("s_movk_i32 s24, -100")
    a("s_mov_b32 s25, 0xffff0000")
    a("s_movk_i32 s30, 128")
    if "tall" in OPT:
        a(f"s_cmp_gt_u32 s{WAVE}, 8")
        a("s_cbranch_scc1 L1_w1")
        a("s_waitcnt vmcnt(2)")
        a("s_branch L1_w2")
        a.label("L1_w1")
        a("s_waitcnt vmcnt(1)")
        a.label("L1_w2")
    else:
        a("s_waitcnt vmcnt(0)")
    for i in range(4):
        a(f"v_mul_u32_u24 v{T0}, 5243, v{VD + i}")
        a(f"v_lshrrev_b32 v{T0}, 19, v{T0}")
        a(f"v_lshlrev_b32 v{VB + i}, 2, v{T0}")
        a(f"ds_add_rtn_u32 v{VR + i}, v{VB + i}, v{T1} offset:{HIST}")
        a(f"v_mad_i32_i24 v{T2}, v{T0}, s24, v{VD + i}")
        a(f"v_lshrrev_b32 v{T3}, 5, v{VS + i}")
        a(f"v_and_or_b32 v{RP + 2 * i + 1}, v{T3}, s30, v{T2}")
        if "smallsrc" in OPT:
            a(f"v_and_b32 v{VS + i}, 0x7ff, v{VS + i}")
        if i % 2 == 0:
            a(f"v_lshl_or_b32 v{RP + 2 * i}, v{VE + i // 2}, 16, v{VS + i}")
        else:
            a(f"v_and_or_b32 v{RP + 2 * i}, v{VE + i // 2}, s25, v{VS + i}")
    a("s_mov_b64 exec, s[32:33]")
    a.label("L1_noedge1")
    a("s_waitcnt lgkmcnt(0)")
    stamp(a, 6)
    a("s_barrier")
    stamp(a, 7)
    a(f"s_cmp_eq_u32 s{WAVE}, 15")
    a("s_cbranch_scc0 L1_b2")
    C0 = 24
    a(f"v_lshlrev_b32 v{T0}, 4, v{LANE}")
    a(f"ds_read_b128 {vr(C0, 4)}, v{T0} offset:{HIST}")
    a("s_waitcnt lgkmcnt(0)")
    P = 28
    a(f"v_add_u32 v{P + 2}, v{C0}, v{C0 + 1}")
    a(f"v_add_u32 v{P + 3}, v{P + 2}, v{C0 + 2}")
    a(f"v_add_u32 v32, v{P + 3}, v{C0 + 3}")
    a("v_mov_b32 v33, v32")
    wave_scan(a, 33)
    a(f"v_sub_u32 v{P}, v33, v32")
    a(f"v_add_u32 v{P + 1}, v{P}, v{C0}")
    a(f"v_add_u32 v{P + 2}, v{P}, v{P + 2}")
    a(f"v_add_u32 v{P + 3}, v{P}, v{P + 3}")
    a(f"ds_write_b128 v{T0}, {vr(P, 4)} offset:{BASE}")
    a("s_lshl_b32 s24, s2, 10")
    a(f"s_add_u32 s24, s24, {SEG_OFF}")
    a(f"v_add_u32 v{T1}, s24, v{T0}")
    for i in range(4):
        a(f"v_lshl_or_b32 v{36 + i}, v{C0 + i}, 16, v{P + i}")
    a(f"global_store_dwordx4 v{T1}, v[36:39], {sr(WS)}{ST}")
    a("s_cmp_lg_u32 s2, 0")
    a("s_cbranch_scc1 L1_b2")
    a(f"v_mov_b32 v{T2}, 0")
    a(f"v_lshlrev_b32 v{T3}, 2, v{LANE}")
    a(f"v_add_u32 v{T3}, {N * 256}, v{T3}")
    a(f"global_store_dword v{T3}, v{T2}, {sr(WS)}{ST}")
    a.label("L1_b2")
    a("s_waitcnt lgkmcnt(0)")
    stamp(a, 8)
    a("s_barrier")
    a(f"s_cmp_gt_u32 s{WAVE}, 12")
    a("s_cbranch_scc1 L1_noedge2")
    a(f"v_cmp_gt_u32 vcc, {EPC // 4}, v{TID}")
    a("s_and_saveexec_b64 s[32:33], vcc")
    for i in range(4):
        a(f"ds_read_b32 v{VD + i}, v{VB + i} offset:{BASE}")
    a(f"s_mov_b32 s24, {STG}")
    for i in range(4):
        a("s_waitcnt lgkmcnt(3)")
        a(f"v_add_u32 v{VD + i}, v{VD + i}, v{VR + i}")
        a(f"v_lshl_add_u32 v{VD + i}, v{VD + i}, 3, s24")
        a(f"ds_write_b64 v{VD + i}, {vr(RP + 2 * i, 2)}")
    a("s_mov_b64 exec, s[32:33]")
    a.label("L1_noedge2")
    a(f"s_min_u32 s25, s{WAVE}, 13")
    a("s_lshl_b32 s25, s25, 10")
    a(f"v_lshlrev_b32 v{T0}, 4, v{LANE}")
    a(f"v_add_u32 v{T0}, s25, v{T0}")
    a(f"v_add_u32 v{T1}, {STG}, v{T0}")
    a(f"s_mul_i32 s24, s2, {EPC * 8}")
    a(f"s_add_u32 s24, s24, {REC_OFF}")
    a(f"v_add_u32 v{T0}, s24, v{T0}")
    a("s_waitcnt lgkmcnt(0)")
    stamp(a, 9)
    a("s_barrier")
    a(f"ds_read_b128 v[24:27], v{T1}")
    a(f"s_cmp_gt_u32 s{WAVE}, 10")
    a("s_cbranch_scc1 L1_oner")
    a(f"ds_read_b128 v[28:31], v{T1} offset:{14 * 1024}")
    a(f"v_add_u32 v{T1}, {14 * 1024}, v{T0}")
    a("s_waitcnt lgkmcnt(0)")
    a(f"global_store_dwordx4 v{T1}, v[28:31], {sr(WS)}{STR_}")
    a.label("L1_oner")
    a("s_waitcnt lgkmcnt(0)")
    a(f"global_store_dwordx4 v{T0}, v[24:27], {sr(WS)}{STR_}")
    for o in OPT:
        if o.startswith("delay="):
            n = int(o[6:])
            a(f"s_movk_i32 s24, {n}")
            a.label("L1_dly")
            a("s_sleep 16")
            a("s_sub_u32 s24, s24, 1")
            a("s_cmp_lg_u32 s24, 0")
            a("s_cbranch_scc1 L1_dly")
    if "dbgt" in OPT:
        a("s_waitcnt vmcnt(0)")
    dbg_time(a, 0, 1)
    stamp(a, 10)
    if STAMPS:
        a("s_waitcnt vmcnt(0)")
    stamp(a, 11)
    stamp(a, 21, True)
    stamp_flush(a, 0)
    a.label("L1_end")
    a("s_endpgm")
    return LDS, 112


def gen_k2(a):
    a.kernel = 2
    HIST = 0
    HIST2 = HIST + 1024
    BASE2 = HIST2 + 1024
    WCNT = BASE2 + 1024
    WKEY = WCNT + 1024
    MISC = WKEY + 1024
    SCR = MISC + 256
    ZERO = SCR + 256
    PL = ZERO + 256
    PART0 = PL + NPB * ROW
    WST = (PART0 + NPB * ROW + 127) // 128 * 128
    XST = WST + 16384
    LIST = XST + NPB * XROW
    CAPK = 48
    COL = CAPK * 4
    LISTB = 228 * COL
    LDS = LIST + LISTB + 64
    assert PART0 + 64 * ROW < 65536 and LDS <= 163840, LDS
    NWIN = 50
    DUMMY_COL = 100 * COL

    TID, LANE = 0, 1
    T0, T1, T2, T3 = 2, 3, 4, 5
    RB = 6
    REM = 7
    RECS = 8
    RANK = 24
    VW_, VX_ = 32, 36
    XOP = 40
    AOP = 52
    DD = 84
    VLOC = 49
    NT = 100
    VLB = 103
    ASEL = 112
    VJ, VG4, VQ, VONE = 116, 117, 118, 119
    CV = 120
    VZ = 124
    VXA, VWA, VPA, VSH = 104, 105, 106, 107
    MASK = 40
    NRND = 5
    rec_reg = lambda r: RECS + 4 * r if r < 4 else 72
    rank_reg = lambda k: RANK + k if k < 8 else 100 + (k - 8)
    mask_s = lambda k: MASK + 2 * k if k < 8 else 60 + 2 * (k - 8)
    nd = Node(a, WST, XST, TID, LANE, VW_, VX_, NT)

    a(f".globl {K2}")
    a(".p2align 8")
    a(f".type {K2},@function")
    a.label(K2)
    a(f"s_cmp_ge_u32 s2, {NB}")
    a("s_cbranch_scc1 L2_end")
    dbg_time(a, 1, 2, True)
    for o in OPT:
        if o.startswith("nops="):
            for _ in range(int(o[5:])):
                a("s_nop 0")
        if o.startswith("slit="):
            for _ in range(int(o[5:])):
                a("s_mov_b32 s24, 0x12345678")
        if o.startswith("slil="):
            a(f"s_movk_i32 s25, {int(o[5:]) // 16}")
            a.label("L2_slil")
            for _ in range(13):
                a("s_mov_b32 s24, 0x12345678")
            a("s_sub_u32 s25, s25, 1")
            a("s_cmp_lg_u32 s25, 0")
            a("s_cbranch_scc1 L2_slil")
        if o.startswith("nopl="):
            a(f"s_movk_i32 s24, {int(o[5:]) // 16}")
            a.label("L2_nopl")
            for _ in range(13):
                a("s_nop 0")
            a("s_sub_u32 s24, s24, 1")
            a("s_cmp_lg_u32 s24, 0")
            a("s_cbranch_scc1 L2_nopl")
    stamp(a, 0)
    stamp(a, 20, True)
    load_ptrs(a)
    remap_wg(a, 2)
    a(f"v_and_b32 v{LANE}, 63, v{TID}")
    a(f"v_lshrrev_b32 v{T0}, 6, v{TID}")
    a(f"v_lshlrev_b32 v{T1}, 2, v{TID}")
    a(f"v_readfirstlane_b32 s{WAVE}, v{T0}")
    a(f"v_lshrrev_b32 v{RB}, 2, v{TID}")
    a(f"v_lshlrev_b32 v{RB}, 10, v{RB}")
    a("s_lshl_b32 s24, s2, 2")
    a(f"s_add_u32 s24, s24, {SEG_OFF}")
    a(f"v_add_u32 v{RB}, s24, v{RB}")
    a("s_waitcnt lgkmcnt(0)")
    fix_ws(a)
    stamp(a, 1)
    if "wfirst" not in OPT:
        a(f"global_load_dword v{REM}, v{RB}, {sr(WS)}")
        if "segbar" in OPT:
            a("s_barrier")
    nd.issue_loads(GW, 0, UW)
    a(f"v_and_b32 v{T0}, 15, v{LANE}")
    a(f"v_lshlrev_b32 v{VJ}, 4, v{T0}")
    a(f"v_lshrrev_b32 v{T2}, 1, v{VJ}")
    a(f"v_add_u32 v{T2}, {128 * 128}, v{T2}")
    a(f"global_load_dwordx2 {vr(CV + 2, 2)}, v{T2}, {sr(GW)}")
    if "wfirst" in OPT:
        a(f"global_load_dword v{REM}, v{RB}, {sr(WS)}")
    a(f"v_mov_b32 v{T0}, 0")
    a(f"s_cmp_lt_u32 s{WAVE}, 4")
    a("s_cbranch_scc0 L2_nozero")
    a(f"ds_write_b32 v{T1}, v{T0} offset:{HIST}")
    a(f"ds_write_b32 v{T1}, v{T0} offset:{HIST2}")
    a.label("L2_nozero")
    a(f"s_cmp_eq_u32 s{WAVE}, 4")
    a("s_cbranch_scc0 L2_nozero2")
    a(f"v_lshlrev_b32 v{T2}, 2, v{LANE}")
    a(f"v_cmp_eq_u32 vcc, 2, v{LANE}")
    a("s_nop 1")
    a(f"v_cndmask_b32 v{T3}, 0, 16, vcc")
    a(f"ds_write_b32 v{T2}, v{T3} offset:{MISC}")
    a(f"ds_write_b32 v{T2}, v{T0} offset:{ZERO}")
    a.label("L2_nozero2")
    if "constearly" in OPT:
        for i in range(4):
            a(f"v_mov_b32 v{XOP + i}, {N}")
        a(f"v_lshlrev_b32 v{T2}, 4, v{TID}")
        a(f"v_add_u32 v{T2}, {LIST}, v{T2}")
        a(f"ds_write_b128 v{T2}, {vr(XOP, 4)}")
        a(f"ds_write_b128 v{T2}, {vr(XOP, 4)} offset:16384")
        nlast = LISTB // 16 - 2048
        a(f"v_cmp_gt_u32 vcc, {nlast}, v{TID}")
        a("s_and_saveexec_b64 s[32:33], vcc")
        a(f"ds_write_b128 v{T2}, {vr(XOP, 4)} offset:32768")
        a("s_mov_b64 exec, s[32:33]")
        a(f"v_mov_b32 v{VONE}, 1")
        a(f"v_mov_b32 v{VLB}, {LIST}")
        nd.stage_addr(NT, NT + 1, NT + 2)
        a(f"s_and_b32 s27, s{WAVE}, 3")
        a(f"s_lshr_b32 s26, s{WAVE}, 2")
        a("s_lshl_b32 s26, s26, 5")
        a(f"v_and_b32 v{T0}, 15, v{LANE}")
        a(f"v_lshrrev_b32 v{T1}, 4, v{LANE}")
        a(f"v_add_u32 v{T2}, s26, v{T0}")
        a(f"v_mul_u32_u24 v{VXA}, {XROW}, v{T2}")
        a(f"v_lshl_add_u32 v{VXA}, v{T1}, 4, v{VXA}")
        a(f"v_add_u32 v{VXA}, {XST}, v{VXA}")
        a(f"v_mul_u32_u24 v{VPA}, {ROW}, v{T2}")
        a(f"v_lshl_add_u32 v{VPA}, v{T1}, 4, v{VPA}")
        a("s_lshl_b32 s30, s27, 6")
        a(f"v_add_u32 v{VPA}, s30, v{VPA}")
        a(f"v_lshrrev_b32 v{T2}, 3, v{T0}")
        a(f"v_and_b32 v{T3}, 1, v{T1}")
        a(f"v_lshl_or_b32 v{T2}, v{T3}, 1, v{T2}")
        a(f"v_xor_b32 v{T2}, s27, v{T2}")
        a(f"v_lshlrev_b32 v{T2}, 5, v{T2}")
        a(f"v_lshrrev_b32 v{T3}, 2, v{T0}")
        a(f"v_lshl_add_u32 v{T3}, v{T1}, 3, v{T3}")
        a(f"v_lshl_add_u32 v{T2}, v{T3}, 7, v{T2}")
        a(f"v_and_b32 v{T3}, 3, v{T0}")
        a(f"v_lshl_add_u32 v{T2}, v{T3}, 3, v{T2}")
        a(f"v_add_u32 v{VWA}, {WST}, v{T2}")
        a(f"v_mov_b32 v{VSH}, {SHIFT_NEG:#x}")
        a(f"v_cmp_gt_u32 s[34:35], 4, v{T0}")
    a(f"v_lshrrev_b32 v{RB}, 2, v{TID}")
    a(f"v_mul_u32_u24 v{RB}, {EPC}, v{RB}")
    a(f"v_and_b32 v{T3}, 3, v{TID}")
    a(f"v_lshlrev_b32 v{T3}, 1, v{T3}")
    a(f"v_add_u32 v{RB}, v{RB}, v{T3}")
    a(f"v_lshlrev_b32 v{RB}, 3, v{RB}")
    a(f"v_add_u32 v{RB}, {REC_OFF}, v{RB}")
    a(f"v_cmp_gt_u32 vcc, {NC * 4}, v{TID}")
    a(f"s_waitcnt vmcnt({0 if 'wfirst' in OPT else 3})")
    stamp(a, 2)
    a(f"v_cndmask_b32 v{REM}, 0, v{REM}, vcc")
    a(f"v_and_b32 v{T2}, 0xffff, v{REM}")
    a(f"v_lshrrev_b32 v{REM}, 16, v{REM}")
    a(f"v_lshl_add_u32 v{RB}, v{T2}, 3, v{RB}")
    a(f"v_cmp_lt_u32 s[56:57], {8 * NRND}, v{REM}")
    a(f"v_sub_u32 v{REM}, v{REM}, v{T3}")
    for r in range(NRND):
        a(f"v_cmp_gt_i32 {sr(mask_s(2 * r))}, v{REM}, {8 * r}")
    a("s_nop 1")
    a("s_mov_b32 s58, 0")
    for r in range(NRND):
        m = mask_s(2 * r)
        a(f"s_mov_b64 exec, {sr(m)}")
        a("s_cbranch_execz L2_recs_done")
        a(f"global_load_dwordx4 {vr(rec_reg(r), 4)}, v{RB}, {sr(WS)} offset:{64 * r}")
        a(f"s_mov_b32 s58, {r + 1}")
    a.label("L2_recs_done")
    a("s_mov_b64 exec, -1")
    if "earlytouch" in OPT:
        a(f"s_cmp_lt_u32 s{WAVE}, {TOUCH0}")
        a("s_cbranch_scc1 L2_notouche")
        a(f"s_sub_u32 s25, s{WAVE}, {TOUCH0}")
        a(f"s_cmp_gt_u32 s25, {7 if 'touch64' in OPT else 3}")
        a("s_cbranch_scc1 L2_notouche")
        a("s_lshl_b32 s25, s25, 6")
        a(f"v_add_u32 v{T2}, s25, v{LANE}")
        a(f"v_min_u32 v{T2}, {(NPB * 4 if 'touch64' in OPT else NPB * 2) - 1}, v{T2}")
        a(f"v_lshlrev_b32 v{T2}, {6 if 'touch64' in OPT else 7}, v{T2}")
        a(f"s_mul_i32 s24, {'s23' if 'touchp' in OPT else 's2'}, {NPB * 256}")
        a(f"v_add_u32 v{T2}, s24, v{T2}")
        a(f"global_load_dword v126, v{T2}, {sr(WS)}")
        a("s_add_u32 s58, s58, 1")
        a.label("L2_notouche")
    for r in range(NRND):
        a(f"v_cmp_gt_i32 {sr(mask_s(2 * r + 1))}, v{REM}, {8 * r + 1}")
    if "constearly" not in OPT:
        for i in range(4):
            a(f"v_mov_b32 v{XOP + i}, {N}")
        a(f"v_lshlrev_b32 v{T2}, 4, v{TID}")
        a(f"v_add_u32 v{T2}, {LIST}, v{T2}")
        a(f"ds_write_b128 v{T2}, {vr(XOP, 4)}")
        a(f"ds_write_b128 v{T2}, {vr(XOP, 4)} offset:16384")
        nlast = LISTB // 16 - 2048
        a(f"v_cmp_gt_u32 vcc, {nlast}, v{TID}")
        a("s_and_saveexec_b64 s[32:33], vcc")
        a(f"ds_write_b128 v{T2}, {vr(XOP, 4)} offset:32768")
        a("s_mov_b64 exec, s[32:33]")
        a(f"v_and_b32 v{T0}, 15, v{LANE}")
        a(f"v_lshrrev_b32 v{T1}, 4, v{LANE}")
        a(f"v_lshlrev_b32 v{VG4}, 2, v{T1}")
        a(f"s_mul_i32 s24, s2, {NPB * 128}")
        a(f"v_lshrrev_b32 v{VZ}, 1, v{VJ}")
        a(f"v_add_u32 v{VZ}, s24, v{VZ}")
        a(f"v_mov_b32 v{VONE}, 1")
        a(f"v_mov_b32 v{VLB}, {LIST}")
        a(f"v_lshlrev_b32 v{VQ}, 2, v{LANE}")
        a(f"v_add_u32 v{VQ}, {SCR}, v{VQ}")
        a(f"v_cmp_eq_u32 vcc, 0, v{LANE}")
        a(f"v_mov_b32 v{T3}, {MISC + 8}")
        a(f"v_lshrrev_b32 v{T2}, 2, v{T0}")
        a(f"v_cndmask_b32 v{VQ}, v{VQ}, v{T3}, vcc")
        a(f"v_cmp_eq_u32 vcc, v{T2}, v{T1}")
        a(f"v_mov_b32 v{T3}, 0x3c00")
        a(f"v_and_b32 v{T2}, 3, v{T0}")
        a(f"v_cndmask_b32 v{T3}, 0, v{T3}, vcc")
        for q in range(4):
            a(f"v_cmp_eq_u32 vcc, {q}, v{T2}")
            a("s_nop 1")
            a(f"v_cndmask_b32 v{ASEL + q}, 0, v{T3}, vcc")
        a(f"s_mov_b32 s36, s{WS}")
        a(f"s_and_b32 s37, s{WS + 1}, 0xffff")
        a("s_or_b32 s37, s37, 0x1000000")
        a(f"s_mov_b32 s38, {N + 1}")
        a("s_mov_b32 s39, 0x20000")
        a(f"s_mov_b32 s66, {TINY:#x}")
        a(f"s_mov_b32 s67, {TINY:#x}")
        for k in range(4):
            a(f"v_mov_b32 v{76 + 4 * k + 1}, v{VJ}")
            a(f"v_mov_b32 v{76 + 4 * k + 3}, v{VJ}")
            a(f"v_mov_b32 v{92 + 2 * k}, 0")
            a(f"v_mov_b32 v{92 + 2 * k + 1}, 0")
        nd.stage_addr(NT, NT + 1, NT + 2)
        a(f"s_and_b32 s27, s{WAVE}, 3")
        a(f"s_lshr_b32 s26, s{WAVE}, 2")
        a("s_lshl_b32 s26, s26, 5")
        a(f"v_and_b32 v{T0}, 15, v{LANE}")
        a(f"v_lshrrev_b32 v{T1}, 4, v{LANE}")
        a(f"v_add_u32 v{T2}, s26, v{T0}")
        a(f"v_mul_u32_u24 v{VXA}, {XROW}, v{T2}")
        a(f"v_lshl_add_u32 v{VXA}, v{T1}, 4, v{VXA}")
        a(f"v_add_u32 v{VXA}, {XST}, v{VXA}")
        a(f"v_mul_u32_u24 v{VPA}, {ROW}, v{T2}")
        a(f"v_lshl_add_u32 v{VPA}, v{T1}, 4, v{VPA}")
        a("s_lshl_b32 s30, s27, 6")
        a(f"v_add_u32 v{VPA}, s30, v{VPA}")
        a(f"v_lshrrev_b32 v{T2}, 3, v{T0}")
        a(f"v_and_b32 v{T3}, 1, v{T1}")
        a(f"v_lshl_or_b32 v{T2}, v{T3}, 1, v{T2}")
        a(f"v_xor_b32 v{T2}, s27, v{T2}")
        a(f"v_lshlrev_b32 v{T2}, 5, v{T2}")
        a(f"v_lshrrev_b32 v{T3}, 2, v{T0}")
        a(f"v_lshl_add_u32 v{T3}, v{T1}, 3, v{T3}")
        a(f"v_lshl_add_u32 v{T2}, v{T3}, 7, v{T2}")
        a(f"v_and_b32 v{T3}, 3, v{T0}")
        a(f"v_lshl_add_u32 v{T2}, v{T3}, 3, v{T2}")
        a(f"v_add_u32 v{VWA}, {WST}, v{T2}")
        a(f"v_mov_b32 v{VSH}, {SHIFT_NEG:#x}")
        a(f"v_cmp_gt_u32 s[34:35], 4, v{T0}")
    for n in range(NRND + 1 if "earlytouch" in OPT else NRND, -1, -1) if "wfirst" not in OPT else ():
        if n:
            a(f"s_cmp_lg_u32 s58, {n}")
            a(f"s_cbranch_scc1 L2_wx{n}")
        a(f"s_waitcnt vmcnt({n})")
        if n:
            a("s_branch L2_wxdone")
            a.label(f"L2_wx{n}")
    a.label("L2_wxdone")
    stamp(a, 3)
    nd.stage_write(NT, NT + 1)
    a(f"s_mov_b32 s24, {LOG2E_NEG:#x}")
    a(f"v_lshlrev_b32 v{CV}, 16, v{CV + 2}")
    a(f"v_and_b32 v{CV + 1}, 0xffff0000, v{CV + 2}")
    a(f"v_lshlrev_b32 v{CV + 2}, 16, v{CV + 3}")
    a(f"v_and_b32 v{CV + 3}, 0xffff0000, v{CV + 3}")
    for i in range(4):
        a(f"v_mul_f32 v{CV + i}, s24, v{CV + i}")
    a("s_waitcnt lgkmcnt(0)")
    a("s_barrier")
    stamp(a, 4)
    a("s_cmp_eq_u64 s[56:57], 0")
    a("s_cbranch_scc1 L2_noflag")
    a(f"v_mov_b32 v{T2}, 0")
    a(f"ds_write_b32 v{T2}, v{VONE} offset:{MISC}")
    a.label("L2_noflag")
    A0, BA, BB_ = 32, 48, 56
    DP0, DU0 = 64, 68

    def pu_block(tag, two):
        a(f"ds_read_b128 {vr(BA, 4)}, v{VXA}")
        a(f"ds_read_b128 {vr(BA + 4, 4)}, v{VXA} offset:64")
        for m in range(2):
            for ks in range(2):
                for hh in range(2):
                    a(f"ds_read_b64_tr_b16 {vr(A0 + (m * 2 + ks) * 4 + hh * 2, 2)}, v{VWA} offset:{m * 8192 + ks * 4096 + hh * 512}")
        if two:
            a(f"ds_read_b128 {vr(BB_, 4)}, v{VXA} offset:{16 * XROW}")
            a(f"ds_read_b128 {vr(BB_ + 4, 4)}, v{VXA} offset:{16 * XROW + 64}")
        a(f"s_mov_b32 s24, {LOG2E_NEG:#x}")
        a(f"s_waitcnt lgkmcnt({2 if two else 0})")
        a(f"v_mfma_f32_16x16x32_bf16 {vr(DP0, 4)}, {vr(A0, 4)}, {vr(BA, 4)}, 0")
        a(f"v_mfma_f32_16x16x32_bf16 {vr(DU0, 4)}, {vr(A0 + 8, 4)}, {vr(BA, 4)}, 0")
        a(f"v_mfma_f32_16x16x32_bf16 {vr(DP0, 4)}, {vr(A0 + 4, 4)}, {vr(BA + 4, 4)}, {vr(DP0, 4)}")
        a(f"v_mfma_f32_16x16x32_bf16 {vr(DU0, 4)}, {vr(A0 + 12, 4)}, {vr(BA + 4, 4)}, {vr(DU0, 4)}")
        if two:
            a("s_waitcnt lgkmcnt(0)")
            a(f"v_mfma_f32_16x16x32_bf16 {vr(BA, 4)}, {vr(A0, 4)}, {vr(BB_, 4)}, 0")
            a(f"v_mfma_f32_16x16x32_bf16 {vr(BA + 4, 4)}, {vr(A0 + 8, 4)}, {vr(BB_, 4)}, 0")
            a(f"v_mfma_f32_16x16x32_bf16 {vr(BA, 4)}, {vr(A0 + 4, 4)}, {vr(BB_ + 4, 4)}, {vr(BA, 4)}")
            a(f"v_mfma_f32_16x16x32_bf16 {vr(BA + 4, 4)}, {vr(A0 + 12, 4)}, {vr(BB_ + 4, 4)}, {vr(BA + 4, 4)}")
            a("s_nop 3")
        else:
            a("s_mov_b64 exec, s[34:35]")
            a("s_nop 6")
        for i in range(4):
            a(f"v_fma_f32 v{DP0 + i}, v{DP0 + i}, s24, v{VSH}")
        a(f"ds_write_b128 v{VPA}, {vr(DP0, 4)} offset:{PL}")
        a(f"ds_write_b128 v{VPA}, {vr(DU0, 4)} offset:{PART0}")
        if two:
            for i in range(4):
                a(f"v_fma_f32 v{BA + i}, v{BA + i}, s24, v{VSH}")
            a(f"ds_write_b128 v{VPA}, {vr(BA, 4)} offset:{PL + 16 * ROW}")
            a(f"ds_write_b128 v{VPA}, {vr(BA + 4, 4)} offset:{PART0 + 16 * ROW}")
        else:
            a("s_mov_b64 exec, -1")

    a(f"s_cmp_gt_u32 s{WAVE}, 11")
    a("s_cbranch_scc1 L2_pu_last")
    pu_block("a", True)
    a("s_branch L2_pu_end")
    a.label("L2_pu_last")
    pu_block("b", False)
    a.label("L2_pu_end")
    if "constearly" in OPT:
        a(f"v_and_b32 v{T0}, 15, v{LANE}")
        a(f"v_lshrrev_b32 v{T1}, 4, v{LANE}")
        a(f"v_lshlrev_b32 v{VG4}, 2, v{T1}")
        a(f"s_mul_i32 s24, s2, {NPB * 128}")
        a(f"v_lshrrev_b32 v{VZ}, 1, v{VJ}")
        a(f"v_add_u32 v{VZ}, s24, v{VZ}")
        a(f"v_lshlrev_b32 v{VQ}, 2, v{LANE}")
        a(f"v_add_u32 v{VQ}, {SCR}, v{VQ}")
        a(f"v_cmp_eq_u32 vcc, 0, v{LANE}")
        a(f"v_mov_b32 v{T3}, {MISC + 8}")
        a(f"v_lshrrev_b32 v{T2}, 2, v{T0}")
        a(f"v_cndmask_b32 v{VQ}, v{VQ}, v{T3}, vcc")
        a(f"v_cmp_eq_u32 vcc, v{T2}, v{T1}")
        a(f"v_mov_b32 v{T3}, 0x3c00")
        a(f"v_and_b32 v{T2}, 3, v{T0}")
        a(f"v_cndmask_b32 v{T3}, 0, v{T3}, vcc")
        for q in range(4):
            a(f"v_cmp_eq_u32 vcc, {q}, v{T2}")
            a("s_nop 1")
            a(f"v_cndmask_b32 v{ASEL + q}, 0, v{T3}, vcc")
        a(f"s_mov_b32 s36, s{WS}")
        a(f"s_and_b32 s37, s{WS + 1}, 0xffff")
        a("s_or_b32 s37, s37, 0x1000000")
        a(f"s_mov_b32 s38, {N + 1}")
        a("s_mov_b32 s39, 0x20000")
        a(f"s_mov_b32 s66, {TINY:#x}")
        a(f"s_mov_b32 s67, {TINY:#x}")
        for k in range(4):
            a(f"v_mov_b32 v{76 + 4 * k + 1}, v{VJ}")
            a(f"v_mov_b32 v{76 + 4 * k + 3}, v{VJ}")
            a(f"v_mov_b32 v{92 + 2 * k}, 0")
            a(f"v_mov_b32 v{92 + 2 * k + 1}, 0")
    a(f"s_movk_i32 s59, {COL}")
    if "earlytouch" in OPT:
        a(f"s_sub_u32 s24, s{WAVE}, {TOUCH0}")
        a(f"s_cmp_lt_u32 s24, {8 if 'touch64' in OPT else 4}")
        a("s_cbranch_scc0 L2_wall")
        a("s_waitcnt vmcnt(1)")
        a("s_branch L2_wall2")
        a.label("L2_wall")
        a("s_waitcnt vmcnt(0)")
        a.label("L2_wall2")
    else:
        a("s_waitcnt vmcnt(0)")
    stamp(a, 5)
    if "ttouch" in OPT and "earlytouch" not in OPT:
        a(f"s_cmp_lt_u32 s{WAVE}, {TOUCH0}")
        a("s_cbranch_scc1 L2_notouch")
        a(f"s_sub_u32 s25, s{WAVE}, {TOUCH0}")
        a(f"s_cmp_gt_u32 s25, 3")
        a("s_cbranch_scc1 L2_notouch")
        a("s_lshl_b32 s25, s25, 6")
        a(f"v_add_u32 v{T2}, s25, v{LANE}")
        a(f"v_min_u32 v{T2}, {NPB * 2 - 1}, v{T2}")
        a(f"v_lshlrev_b32 v{T2}, 7, v{T2}")
        a(f"s_mul_i32 s24, s2, {NPB * 256}")
        a(f"v_add_u32 v{T2}, s24, v{T2}")
        a(f"global_load_dword v126, v{T2}, {sr(WS)}")
        a.label("L2_notouch")
    for r in range(NRND):
        if r >= 2:
            a(f"s_cmp_eq_u64 {sr(mask_s(2 * r))}, 0")
            a(f"s_cbranch_scc1 L2_hdone")
        for s_ in range(2):
            k = 2 * r + s_
            hi = rec_reg(r) + 2 * s_ + 1
            a(f"s_mov_b64 exec, {sr(mask_s(k))}")
            a(f"v_lshlrev_b32 v{T1}, 2, v{hi}")
            a(f"ds_add_rtn_u32 v{rank_reg(k)}, v{T1}, v{VONE} offset:{HIST}")
            a(f"v_mad_u32_u24 v{hi}, v{hi}, s59, v{VLB}")
    a.label("L2_hdone")
    a("s_mov_b64 exec, -1")
    a("s_waitcnt lgkmcnt(0)")
    for r in range(NRND):
        if r >= 2:
            a(f"s_cmp_eq_u64 {sr(mask_s(2 * r))}, 0")
            a(f"s_cbranch_scc1 L2_sdone")
        for s_ in range(2):
            k = 2 * r + s_
            lo = rec_reg(r) + 2 * s_
            hi = lo + 1
            a(f"s_mov_b64 exec, {sr(mask_s(k))}")
            a(f"v_min_u32 v{rank_reg(k)}, 63, v{rank_reg(k)}")
            a(f"v_lshl_add_u32 v{hi}, v{rank_reg(k)}, 2, v{hi}")
            a(f"ds_write_b32 v{hi}, v{lo}")
    a.label("L2_sdone")
    a("s_mov_b64 exec, -1")
    a("s_waitcnt lgkmcnt(0)")
    stamp(a, 6)
    a("s_barrier")
    a(f"s_cmp_eq_u32 s{WAVE}, 15")
    a("s_cbranch_scc0 L2_b2")

    a.label("L2_order")
    a("s_setprio 3")
    CN, BN, RK = 64, 68, 72
    S0 = 56
    a(f"v_lshlrev_b32 v{T0}, 4, v{LANE}")
    a(f"ds_read_b128 {vr(CN, 4)}, v{T0} offset:{HIST}")
    a(f"v_lshrrev_b32 v{T1}, 5, v{LANE}")
    a(f"v_and_b32 v{T2}, 31, v{LANE}")
    a(f"v_cmp_gt_u32 vcc, 25, v{T2}")
    a(f"v_lshlrev_b32 v{T3}, 8, v{T1}")
    a(f"v_add_u32 v{T3}, {63 * 4}, v{T3}")
    a(f"v_mov_b32 v{S0}, {(128 + 63) * 4}")
    a(f"v_cndmask_b32 v{T3}, v{S0}, v{T3}, vcc")
    a(f"v_lshlrev_b32 v{T2}, 2, v{T2}")
    a(f"v_mul_u32_u24 v{T1}, {4 * COL}, v{LANE}")
    a(f"v_lshl_or_b32 v{T1}, v{T1}, 16, v{T2}")
    a("s_waitcnt lgkmcnt(0)")
    a(f"v_max3_u32 v{S0 + 1}, v{CN}, v{CN + 1}, v{CN + 2}")
    a(f"v_max_u32 v{S0 + 1}, v{S0 + 1}, v{CN + 3}")
    for i in range(4):
        a(f"v_min_u32 v{BN + i}, 63, v{CN + i}")
        a(f"v_lshlrev_b32 v{BN + i}, 2, v{BN + i}")
        a(f"v_sub_u32 v{BN + i}, v{T3}, v{BN + i}")
        a(f"ds_add_rtn_u32 v{RK + i}, v{BN + i}, v{VONE} offset:{HIST2}")
    a(f"ds_read_b128 {vr(S0 + 4, 4)}, v{T0} offset:{HIST2}")
    a(f"v_cmp_lt_u32 vcc, {CAPK}, v{S0 + 1}")
    a("s_cbranch_vccz L2_nocap")
    a(f"v_mov_b32 v{S0}, 0")
    a(f"ds_write_b32 v{S0}, v{VONE} offset:{MISC}")
    a.label("L2_nocap")
    a("s_waitcnt lgkmcnt(0)")
    a(f"v_add_u32 v{S0 + 1}, v{S0 + 4}, v{S0 + 5}")
    a(f"v_add_u32 v{S0 + 2}, v{S0 + 1}, v{S0 + 6}")
    a(f"v_add_u32 v{S0 + 3}, v{S0 + 2}, v{S0 + 7}")
    a(f"v_mov_b32 v{S0}, v{S0 + 3}")
    wave_scan(a, S0)
    a(f"v_sub_u32 v{S0}, v{S0}, v{S0 + 3}")
    a(f"v_add_u32 v{S0 + 3}, v{S0}, v{S0 + 2}")
    a(f"v_add_u32 v{S0 + 2}, v{S0}, v{S0 + 1}")
    a(f"v_add_u32 v{S0 + 1}, v{S0}, v{S0 + 4}")
    a(f"ds_write_b128 v{T0}, {vr(S0, 4)} offset:{BASE2}")
    for i in range(4):
        a(f"ds_read_b32 v{S0 + 4 + i}, v{BN + i} offset:{BASE2}")
    a("s_waitcnt lgkmcnt(0)")
    for i in range(4):
        a(f"v_add_u32 v{RK + i}, v{RK + i}, v{S0 + 4 + i}")
        a(f"v_lshlrev_b32 v{RK + i}, 2, v{RK + i}")
        a(f"v_add_u32 v{S0}, {i * ((COL << 16) + 1)}, v{T1}")
        a(f"ds_write_b32 v{RK + i}, v{CN + i} offset:{WCNT}")
        a(f"ds_write_b32 v{RK + i}, v{S0} offset:{WKEY}")
    a("s_setprio 0")
    a.label("L2_b2")
    a("s_waitcnt lgkmcnt(0)")
    stamp(a, 7)
    a("s_barrier")
    stamp(a, 8)
    if "noprio" not in OPT:
        a("s_setprio 3")
    NP = 4
    RA = 4
    PR = 8
    ACC = 12
    UR = 16
    DN = 20
    NM = 24
    DA = 28
    VB = 44
    IX = 76
    EV = 92
    VL = 100
    VFL = 101
    VRN = 103
    VWL = 125
    SC, SNL, SI = 61, 62, 63
    STR = 64
    SP, SDONE = 58, 59
    SODD, SHALF = 69, 57
    VOC, VON = 104, 105
    a(f"s_movk_i32 s68, {ROW}")
    assert IX == 76 and EV == 92
    a(f"v_mov_b32 v{T0}, 0")
    a(f"ds_read_b32 v{T1}, v{T0} offset:{MISC}")
    a(f"v_lshlrev_b32 v{T2}, 4, v{LANE}")
    a(f"ds_read_b32 v{VWL}, v{T2} offset:{WCNT}")
    a(f"s_lshl_b32 s26, s{WAVE}, 4")
    a(f"v_add_u32 v{T2}, s26, v{VG4}")
    a(f"ds_read_b32 v{T3}, v{T2} offset:{WKEY}")
    a("s_waitcnt lgkmcnt(0)")
    a(f"v_readfirstlane_b32 s24, v{T1}")
    a(f"v_max_u32 v{VWL}, {2 * RA}, v{VWL}")
    a(f"v_lshrrev_b32 v{VL}, 16, v{T3}")
    a(f"v_add_u32 v{VL}, {LIST}, v{VL}")
    a("s_cmp_lg_u32 s24, 0")
    a("s_cbranch_scc1 L2_slow")
    for k in range(RA):
        a(f"ds_read_u16 v{IX + 4 * k}, v{VL} offset:{8 * k}")
        a(f"ds_read_u16 v{IX + 4 * k + 2}, v{VL} offset:{8 * k + 4}")
    a(f"v_and_b32 v{VRN}, 0xffff, v{T3}")
    a(f"v_mad_u32_u24 v{VRN}, v{VRN}, s68, v{VJ}")
    a(f"v_mov_b32 v{VFL}, v{VRN}")
    a(f"s_mov_b32 s{SP}, 0")
    a(f"s_mov_b32 s{SDONE}, 0")
    a(f"s_mov_b32 s28, {LOG2E_NEG:#x}")
    a(f"s_mov_b32 s29, {LOG2E_NEG:#x}")
    a("s_mov_b32 s30, 1.0")
    a("s_mov_b32 s31, 1.0")
    a(f"v_readlane_b32 s{SNL}, v{VWL}, s{WAVE}")
    a(f"s_mov_b32 s{STR}, {RA}")
    a(f"s_mov_b32 s{SI}, s{WAVE}")
    a(f"s_mov_b32 s{SHALF}, 0")
    a(f"s_and_b32 s{SODD}, s{SNL}, 1")
    a(f"s_add_u32 s{SC}, s{SNL}, 1")
    a(f"s_lshr_b32 s{SC}, s{SC}, 1")
    a("s_waitcnt lgkmcnt(0)")
    for k in range(RA - 1):
        for h in range(2):
            a(f"buffer_load_dwordx4 {vr(VB + 8 * k + 4 * h, 4)}, {vr(IX + 4 * k + 2 * h, 2)}, s[36:39], 0 idxen offen")
    for k in range(RA):
        a(f"ds_read_u16_d16_hi v{EV + 2 * k}, v{VL} offset:{8 * k + 2}")
        a(f"ds_read_u16_d16_hi v{EV + 2 * k + 1}, v{VL} offset:{8 * k + 6}")
    a(f"ds_read_b128 {vr(PR, 4)}, v{VRN} offset:{PL}")
    a(f"ds_read_b128 {vr(UR, 4)}, v{VRN} offset:{PART0}")
    for i in range(4):
        a(f"v_mov_b32 v{ACC + i}, 0")
    if "noprio" not in OPT:
        a("s_setprio 2")
    a("s_waitcnt lgkmcnt(0)")
    stamp(a, 9)

    def mfma1(k, h):
        d = DA + 8 * (k & 1)
        a(f"v_mfma_f32_16x16x32_f16 {vr(d + 4 * h, 4)}, {vr(ASEL, 4)}, {vr(VB + 8 * k + 4 * h, 4)}, {vr(PR, 4)}")

    def tail1(k):
        d = DA + 8 * (k & 1)
        vb = VB + 8 * k
        for h in range(2):
            a(f"v_pk_mul_f32 {vr(DN + 2 * h, 2)}, {vr(d + 2 * h, 2)}, {vr(d + 4 + 2 * h, 2)}")
        for h in range(2):
            a(f"v_pk_mul_f32 {vr(NM + 2 * h, 2)}, {vr(vb + 2 * h, 2)}, {vr(d + 4 + 2 * h, 2)}")
        for h in range(2):
            a(f"v_pk_fma_f32 {vr(NM + 2 * h, 2)}, {vr(vb + 4 + 2 * h, 2)}, {vr(d + 2 * h, 2)}, {vr(NM + 2 * h, 2)}")

    def rcp2(h):
        a(f"v_rcp_f32 v{DN + 2 * h}, v{DN + 2 * h}")
        a(f"v_rcp_f32 v{DN + 2 * h + 1}, v{DN + 2 * h + 1}")

    def tail2():
        a(f"v_pk_fma_f32 {vr(ACC, 2)}, {vr(NM, 2)}, {vr(DN, 2)}, {vr(ACC, 2)}")
        a(f"v_pk_fma_f32 {vr(ACC + 2, 2)}, {vr(NM + 2, 2)}, {vr(DN + 2, 2)}, {vr(ACC + 2, 2)}")

    def read_idx(k):
        a(f"ds_read_u16 v{IX + 4 * k}, v{VL} offset:{8 * (RA + k)}")
        a(f"ds_read_u16 v{IX + 4 * k + 2}, v{VL} offset:{8 * (RA + k) + 4}")

    def read_e(k):
        a(f"ds_read_u16_d16_hi v{EV + 2 * k}, v{VL} offset:{8 * (RA + k) + 2}")
        a(f"ds_read_u16_d16_hi v{EV + 2 * k + 1}, v{VL} offset:{8 * (RA + k) + 6}")

    def gather(k):
        p = (k - 1) % NP
        if "nogather" not in OPT:
            for h in range(2):
                a(f"buffer_load_dwordx4 {vr(VB + 8 * p + 4 * h, 4)}, {vr(IX + 4 * p + 2 * h, 2)}, s[36:39], 0 idxen offen")

    def front(k):
        d = DA + 8 * (k & 1)
        ep = EV + 2 * k
        for h in range(2):
            osel = "op_sel:[1,0,0] op_sel_hi:[1,1,1]" if h else "op_sel_hi:[0,1,1]"
            a(f"v_pk_fma_f32 {vr(d + 4 * h, 2)}, {vr(ep, 2)}, {vr(CV, 2)}, {vr(d + 4 * h, 2)} {osel}")
            a(f"v_pk_fma_f32 {vr(d + 4 * h + 2, 2)}, {vr(ep, 2)}, {vr(CV + 2, 2)}, {vr(d + 4 * h + 2, 2)} {osel}")
        read_e(k)
        for i in range(8):
            a(f"v_exp_f32_e64 v{d + i}, v{d + i} clamp")
            if i == 5:
                a(f"v_pk_add_f32 {vr(d, 2)}, {vr(d, 2)}, s[66:67]")
        a(f"v_pk_add_f32 {vr(d + 2, 2)}, {vr(d + 2, 2)}, s[66:67]")
        a(f"v_pk_add_f32 {vr(d + 4, 2)}, {vr(d + 4, 2)}, s[66:67]")
        a(f"v_pk_add_f32 {vr(d + 6, 2)}, {vr(d + 6, 2)}, s[66:67]")

    def flush(k):
        a(f"s_cmp_lg_u32 s{SP}, 0")
        a(f"s_cbranch_scc1 L2_fin{k}")
        a(f"v_pk_fma_f32 {vr(UR, 2)}, {vr(ACC, 2)}, s[66:67], {vr(UR, 2)}")
        a(f"v_pk_fma_f32 {vr(UR + 2, 2)}, {vr(ACC + 2, 2)}, s[66:67], {vr(UR + 2, 2)}")
        a(f"ds_write_b128 v{VFL}, {vr(UR, 4)} offset:{PART0}")
        a(f"ds_add_u32 v{VQ}, v{VONE} offset:4")
        a(f"s_branch L2_fld{k}")
        a.label(f"L2_fin{k}")
        a(f"s_cmp_lg_u32 s{SDONE}, 0")
        a(f"s_cbranch_scc1 L2_rdy{k}")
        a("s_mov_b32 s25, 0")
        a.label(f"L2_spin{k}")
        a(f"v_mov_b32 v{T2}, 0")
        a(f"ds_read_b32 v{T2}, v{T2} offset:{MISC + 12}")
        a("s_waitcnt lgkmcnt(0)")
        a(f"v_readfirstlane_b32 s24, v{T2}")
        a("s_nop 3")
        a(f"s_cmp_ge_u32 s24, {NWIN // 2}")
        a(f"s_cbranch_scc1 L2_seen{k}")
        a("s_sleep 2")
        a("s_add_u32 s25, s25, 1")
        a("s_cmp_lt_u32 s25, 0x400000")
        a(f"s_cbranch_scc1 L2_spin{k}")
        a.label(f"L2_seen{k}")
        a(f"s_mov_b32 s{SDONE}, 1")
        a.label(f"L2_rdy{k}")
        a(f"ds_read_b128 {vr(UR, 4)}, v{VFL} offset:{PART0}")
        a("s_waitcnt lgkmcnt(0)")
        a(f"v_pk_fma_f32 {vr(UR, 2)}, {vr(ACC, 2)}, s[66:67], {vr(UR, 2)}")
        a(f"v_pk_fma_f32 {vr(UR + 2, 2)}, {vr(ACC + 2, 2)}, s[66:67], {vr(UR + 2, 2)}")
        a(f"v_pk_mul_f32 {vr(DN, 2)}, {vr(UR, 2)}, s[28:29]")
        a(f"v_pk_mul_f32 {vr(DN + 2, 2)}, {vr(UR + 2, 2)}, s[28:29]")
        for i in range(4):
            a(f"v_exp_f32 v{DN + i}, v{DN + i}")
        a(f"v_pk_add_f32 {vr(DN, 2)}, {vr(DN, 2)}, s[30:31]")
        a(f"v_pk_add_f32 {vr(DN + 2, 2)}, {vr(DN + 2, 2)}, s[30:31]")
        for i in range(4):
            a(f"v_rcp_f32 v{DN + i}, v{DN + i}")
        a(f"v_pk_mul_f32 {vr(UR, 2)}, {vr(UR, 2)}, {vr(DN, 2)}")
        a(f"v_pk_mul_f32 {vr(UR + 2, 2)}, {vr(UR + 2, 2)}, {vr(DN + 2, 2)}")
        a(f"v_cvt_pk_bf16_f32 v{NM}, v{UR}, v{UR + 1}")
        a(f"v_cvt_pk_bf16_f32 v{NM + 1}, v{UR + 2}, v{UR + 3}")
        a(f"global_store_dwordx2 v{VOC}, {vr(NM, 2)}, {sr(OUT)}{STO}")
        a.label(f"L2_fld{k}")

    VW = 2 * (RA - 2)
    a(f"s_cmp_eq_u32 s{SC}, s{STR}")
    a("s_cbranch_scc1 L2_pop_first")
    a.label("L2_first_cont")
    if "nogather" not in OPT:
        a(f"s_waitcnt vmcnt({VW})")
    mfma1(0, 0)
    mfma1(0, 1)
    read_idx(0)
    a("s_nop 2")
    gather(0)
    a("s_branch L2_mid0")

    a.label("L2_loop")
    for k in range(NP):
        pk = (k - 1) % NP
        a.label(f"L2_top{k}")
        a(f"s_cmp_eq_u32 s{SC}, s{STR}")
        a(f"s_cbranch_scc1 L2_ev{k}")
        a.label(f"L2_cont{k}")
        tail1(pk)
        if "nogather" not in OPT:
            a(f"s_waitcnt vmcnt({VW})")
        mfma1(k, 0)
        rcp2(0)
        mfma1(k, 1)
        rcp2(1)
        read_idx(k)
        tail2()
        a("s_waitcnt lgkmcnt(4)")
        gather(k)
        a.label(f"L2_mid{k}")
        front(k)
        a(f"s_sub_u32 s{SC}, s{SC}, 1")
        if k == NP - 1:
            a(f"v_add_u32 v{VL}, {8 * NP}, v{VL}")
            a("s_branch L2_loop")

    def pop(k, cont):
        a(f"ds_add_rtn_u32 v{T2}, v{VQ}, v{VONE}")
        a(f"s_mov_b32 s{STR}, s{SODD}")
        a("s_waitcnt lgkmcnt(0)")
        a(f"v_readfirstlane_b32 s{SI}, v{T2}")
        a(f"s_mov_b32 s{SNL}, 0")
        a(f"v_mov_b32 v{VL}, {LIST + DUMMY_COL - 8 * (RA + k)}")
        a("s_nop 1")
        a(f"s_cmp_lt_u32 s{SI}, {NWIN}")
        a(f"s_cbranch_scc0 {cont}")
        a(f"s_lshl_b32 s26, s{SI}, 4")
        a(f"v_add_u32 v{T2}, s26, v{VG4}")
        a(f"ds_read_b32 v{T3}, v{T2} offset:{WKEY}")
        a(f"v_readlane_b32 s{SNL}, v{VWL}, s{SI}")
        a("s_waitcnt lgkmcnt(0)")
        a(f"v_and_b32 v{VRN}, 0xffff, v{T3}")
        a(f"v_lshrrev_b32 v{VL}, 16, v{T3}")
        a(f"v_lshl_add_u32 v{VON}, v{VRN}, 7, v{VZ}")
        a(f"v_mad_u32_u24 v{VRN}, v{VRN}, s68, v{VJ}")
        a(f"v_add_u32 v{VL}, {LIST - 8 * (RA + k)}, v{VL}")
        a(f"s_branch {cont}")

    a.label("L2_pop_first")
    pop(0, "L2_first_cont")
    for k in range(NP):
        pk = (k - 1) % NP
        a.label(f"L2_ev{k}")
        a(f"s_cmp_eq_u32 s{STR}, 0")
        a(f"s_cbranch_scc1 L2_sw{k}")
        a(f"s_cmp_eq_u32 s{STR}, 1")
        a(f"s_cbranch_scc1 L2_half{k}")
        pop(k, f"L2_cont{k}")
        a.label(f"L2_half{k}")
        tail1(pk)
        if "nogather" not in OPT:
            a(f"s_waitcnt vmcnt({VW})")
        mfma1(k, 0)
        rcp2(0)
        rcp2(1)
        read_idx(k)
        tail2()
        a("s_waitcnt lgkmcnt(4)")
        gather(k)
        d = DA + 8 * (k & 1)
        ep = EV + 2 * k
        a(f"v_pk_fma_f32 {vr(d, 2)}, {vr(ep, 2)}, {vr(CV, 2)}, {vr(d, 2)} op_sel_hi:[0,1,1]")
        a(f"v_pk_fma_f32 {vr(d + 2, 2)}, {vr(ep, 2)}, {vr(CV + 2, 2)}, {vr(d + 2, 2)} op_sel_hi:[0,1,1]")
        read_e(k)
        for i in range(4):
            a(f"v_exp_f32_e64 v{d + i}, v{d + i} clamp")
        a(f"v_pk_add_f32 {vr(d, 2)}, {vr(d, 2)}, s[66:67]")
        a(f"v_pk_add_f32 {vr(d + 2, 2)}, {vr(d + 2, 2)}, s[66:67]")
        a(f"s_mov_b32 s{SC}, 0")
        a(f"s_mov_b32 s{STR}, 0")
        a(f"s_mov_b32 s{SHALF}, 1")
        if k == NP - 1:
            a(f"v_add_u32 v{VL}, {8 * NP}, v{VL}")
        a(f"s_branch L2_top{(k + 1) % NP}")
        a.label(f"L2_sw{k}")
        a(f"s_cmp_lg_u32 s{SHALF}, 0")
        a(f"s_cbranch_scc1 L2_swh{k}")
        tail1(pk)
        rcp2(0)
        rcp2(1)
        a("s_nop 0")
        tail2()
        a(f"s_branch L2_swf{k}")
        a.label(f"L2_swh{k}")
        dp = DA + 8 * (pk & 1)
        vbp = VB + 8 * pk
        for i in range(4):
            a(f"v_rcp_f32 v{dp + i}, v{dp + i}")
        a(f"s_mov_b32 s{SHALF}, 0")
        a(f"v_pk_fma_f32 {vr(ACC, 2)}, {vr(dp, 2)}, {vr(vbp, 2)}, {vr(ACC, 2)}")
        a(f"v_pk_fma_f32 {vr(ACC + 2, 2)}, {vr(dp + 2, 2)}, {vr(vbp + 2, 2)}, {vr(ACC + 2, 2)}")
        a.label(f"L2_swf{k}")
        flush(k)
        a(f"s_cmp_eq_u32 s{SNL}, 0")
        a("s_cbranch_scc1 L2_exit")
        a(f"ds_read_b128 {vr(PR, 4)}, v{VRN} offset:{PL}")
        a(f"ds_read_b128 {vr(UR, 4)}, v{VRN} offset:{PART0}")
        for i in range(4):
            a(f"v_mov_b32 v{ACC + i}, 0")
        a(f"v_mov_b32 v{VFL}, v{VRN}")
        a(f"v_mov_b32 v{VOC}, v{VON}")
        a(f"s_cmp_ge_u32 s{SI}, {NWIN // 2}")
        a(f"s_cselect_b32 s{SP}, 1, 0")
        a(f"s_and_b32 s{SODD}, s{SNL}, 1")
        a(f"s_add_u32 s{SC}, s{SNL}, 1")
        a(f"s_lshr_b32 s{SC}, s{SC}, 1")
        a(f"s_mov_b32 s{STR}, {RA}")
        if "noprio" not in OPT:
            a(f"s_cmp_lt_u32 s{SI}, {PRIO_B}")
            a(f"s_cbranch_scc1 L2_p1_{k}")
            a("s_setprio 0")
            a(f"s_branch L2_pd_{k}")
            a.label(f"L2_p1_{k}")
            a(f"s_cmp_lt_u32 s{SI}, {PRIO_A}")
            a(f"s_cbranch_scc1 L2_pd_{k}")
            a("s_setprio 1")
            a.label(f"L2_pd_{k}")
        a(f"s_cmp_eq_u32 s{SC}, {RA}")
        a(f"s_cbranch_scc0 L2_sw2_{k}")
        pop(k, f"L2_sw2_{k}")
        a.label(f"L2_sw2_{k}")
        if "nogather" not in OPT:
            a(f"s_waitcnt vmcnt({VW}) lgkmcnt(0)")
        else:
            a("s_waitcnt lgkmcnt(0)")
        mfma1(k, 0)
        mfma1(k, 1)
        read_idx(k)
        a("s_nop 2")
        gather(k)
        a(f"s_branch L2_mid{k}")

    a.label("L2_exit")
    stamp(a, 10)
    stamp(a, 11)
    stamp(a, 12)
    if STAMPS or "dbgs" in OPT:
        a("s_waitcnt vmcnt(0)")
    stamp(a, 13)
    stamp(a, 21, True)
    stamp_flush(a, 1)
    a("s_endpgm")

    a.label("L2_slow")
    SSC, SCN, SRI = 61, 62, 63
    a(f"v_lshlrev_b32 v{T0}, 2, v{LANE}")
    a(f"v_lshlrev_b32 v{T1}, 1, v{LANE}")
    a(f"v_add_u32 v{T1}, {128 * 128}, v{T1}")
    a(f"global_load_ushort v{T2}, v{T1}, {sr(GW)}")
    a(f"s_mov_b32 s24, {LOG2E_NEG:#x}")
    a("s_waitcnt vmcnt(0) lgkmcnt(0)")
    a(f"v_lshlrev_b32 v{T2}, 16, v{T2}")
    a(f"v_mul_f32 v8, s24, v{T2}")
    a(f"s_mov_b32 s{SSC}, 0")
    a.label("L2_slow_seg")
    a(f"s_cmp_ge_u32 s{SSC}, {NC}")
    a("s_cbranch_scc1 L2_done")
    a(f"s_lshl_b32 s24, s{SSC}, 8")
    a("s_add_u32 s24, s24, s2")
    a("s_lshl_b32 s24, s24, 2")
    a(f"s_add_u32 s24, s24, {SEG_OFF}")
    a(f"v_mov_b32 v{T1}, s24")
    a(f"global_load_dword v{T2}, v{T1}, {sr(WS)}")
    a("s_waitcnt vmcnt(0)")
    a(f"v_readfirstlane_b32 s25, v{T2}")
    a("s_nop 3")
    a(f"s_lshr_b32 s{SCN}, s25, 16")
    a("s_and_b32 s25, s25, 0xffff")
    a(f"s_mul_i32 s26, s{SSC}, {EPC}")
    a("s_add_u32 s26, s26, s25")
    a("s_lshl_b32 s26, s26, 3")
    a(f"s_add_u32 s{SRI}, s26, {REC_OFF}")
    a.label("L2_slow_rec")
    a(f"s_cmp_eq_u32 s{SCN}, 0")
    a("s_cbranch_scc1 L2_slow_next")
    a(f"v_mov_b32 v{T1}, s{SRI}")
    a(f"global_load_dwordx2 v[10:11], v{T1}, {sr(WS)}")
    a(f"s_add_u32 s{SRI}, s{SRI}, 8")
    a(f"s_sub_u32 s{SCN}, s{SCN}, 1")
    a("s_waitcnt vmcnt(0)")
    a("v_and_b32 v14, 127, v11")
    a("v_and_b32 v15, 15, v14")
    a("s_nop 0")
    a("v_readfirstlane_b32 s25, v15")
    a("s_nop 3")
    a(f"s_cmp_lg_u32 s25, s{WAVE}")
    a("s_cbranch_scc1 L2_slow_rec")
    a("v_and_b32 v18, 0xffff, v10")
    a(f"v_mov_b32 v19, v{T0}")
    a("buffer_load_dword v13, v[18:19], s[36:39], 0 idxen offen")
    a(f"v_mul_u32_u24 v14, {ROW}, v14")
    a(f"v_add_u32 v14, v14, v{T0}")
    a(f"ds_read_b32 v15, v14 offset:{PL}")
    a(f"ds_read_b32 v17, v14 offset:{PART0}")
    a("v_and_b32 v11, 0xffff0000, v10")
    a("s_waitcnt vmcnt(0) lgkmcnt(0)")
    a("v_cvt_f32_f16 v16, v13")
    a("v_add_f32 v16, v16, v15")
    a("v_fmac_f32 v16, v11, v8")
    a("v_exp_f32 v16, v16")
    a(f"s_mov_b32 s25, {TINY:#x}")
    a("v_add_f32 v16, s25, v16")
    a("v_rcp_f32 v16, v16")
    a("s_nop 0")
    a("v_mul_f32 v16, s25, v16")
    a("v_fmac_f32 v17, v16, v13")
    a(f"ds_write_b32 v14, v17 offset:{PART0}")
    a("s_waitcnt lgkmcnt(0)")
    a("s_branch L2_slow_rec")
    a.label("L2_slow_next")
    a(f"s_add_u32 s{SSC}, s{SSC}, 1")
    a("s_branch L2_slow_seg")

    a.label("L2_done")
    stamp(a, 10)
    a("s_setprio 0")
    a(f"v_lshrrev_b32 v{T0}, 4, v{TID}")
    a(f"v_and_b32 v{T1}, 15, v{TID}")
    a(f"v_mul_u32_u24 v{T2}, {ROW}, v{T0}")
    a(f"v_lshl_add_u32 v{T2}, v{T1}, 4, v{T2}")
    a(f"s_mul_i32 s24, s2, {NPB * 128}")
    a(f"v_lshlrev_b32 v{T3}, 7, v{T0}")
    a(f"v_lshl_add_u32 v{T3}, v{T1}, 3, v{T3}")
    a(f"v_add_u32 v{T3}, s24, v{T3}")
    a(f"v_add_u32 v7, {64 * ROW}, v{T2}")
    a(f"v_add_u32 v6, {64 * 128}, v{T3}")
    a(f"s_mov_b32 s24, {LOG2E_NEG:#x}")
    a(f"s_mov_b32 s25, {LOG2E_NEG:#x}")
    a("s_mov_b32 s26, 1.0")
    a("s_mov_b32 s27, 1.0")
    a("s_waitcnt vmcnt(0) lgkmcnt(0)")
    a("s_barrier")
    stamp(a, 11)

    def silu_store(src, off):
        a(f"v_pk_mul_f32 {vr(src + 4, 2)}, {vr(src, 2)}, s[24:25]")
        a(f"v_pk_mul_f32 {vr(src + 6, 2)}, {vr(src + 2, 2)}, s[24:25]")
        for i in range(4):
            a(f"v_exp_f32 v{src + 4 + i}, v{src + 4 + i}")
        a(f"v_pk_add_f32 {vr(src + 4, 2)}, {vr(src + 4, 2)}, s[26:27]")
        a(f"v_pk_add_f32 {vr(src + 6, 2)}, {vr(src + 6, 2)}, s[26:27]")
        for i in range(4):
            a(f"v_rcp_f32 v{src + 4 + i}, v{src + 4 + i}")
        a(f"v_pk_mul_f32 {vr(src, 2)}, {vr(src, 2)}, {vr(src + 4, 2)}")
        a(f"v_pk_mul_f32 {vr(src + 2, 2)}, {vr(src + 2, 2)}, {vr(src + 6, 2)}")
        a(f"v_cvt_pk_bf16_f32 v{src + 4}, v{src}, v{src + 1}")
        a(f"v_cvt_pk_bf16_f32 v{src + 5}, v{src + 2}, v{src + 3}")
        a(f"global_store_dwordx2 v{off}, {vr(src + 4, 2)}, {sr(OUT)}{STO}")

    a(f"ds_read_b128 v[8:11], v{T2} offset:{PART0}")
    a(f"s_cmp_lt_u32 s{WAVE}, 9")
    a("s_cbranch_scc0 L2_ep1")
    a(f"ds_read_b128 v[16:19], v7 offset:{PART0}")
    a("s_waitcnt lgkmcnt(0)")
    silu_store(16, 6)
    a.label("L2_ep1")
    a("s_waitcnt lgkmcnt(0)")
    silu_store(8, T3)
    if "dbgt" in OPT:
        a("s_waitcnt vmcnt(0)")
    dbg_time(a, 1, 3)
    stamp(a, 12)
    if STAMPS:
        a("s_waitcnt vmcnt(0)")
    stamp(a, 13)
    stamp(a, 21, True)
    stamp_flush(a, 1)
    a.label("L2_end")
    a("s_endpgm")
    return LDS, 128


def descriptor(a, name, vgprs, sgprs=80):
    a(f".amdhsa_kernel {name}")
    a(f"  .amdhsa_next_free_vgpr {vgprs}")
    a(f"  .amdhsa_next_free_sgpr {sgprs}")
    a(f"  .amdhsa_accum_offset {vgprs}")
    a("  .amdhsa_group_segment_fixed_size 0")
    a("  .amdhsa_kernarg_size 80")
    a("  .amdhsa_user_sgpr_count 2")
    a("  .amdhsa_user_sgpr_kernarg_segment_ptr 1")
    a("  .amdhsa_system_sgpr_workgroup_id_x 1")
    a("  .amdhsa_float_denorm_mode_32 3")
    a(".end_amdhsa_kernel")


def main():
    global STAMPS, ST, STT, STR_, STO
    if "--stamps" in sys.argv:
        STAMPS = True
        sys.argv.remove("--stamps")
    for o in OPT:
        if o.startswith("st="):
            ST = STT = STR_ = " " + o[3:].replace("+", " ")
        if o.startswith("stt="):
            STT = " " + o[4:].replace("+", " ")
        if o.startswith("sto="):
            STO = " " + o[4:].replace("+", " ")
        if o.startswith("str="):
            STR_ = " " + o[4:].replace("+", " ")
    body = Asm()
    body(".amdgcn_target \"amdgcn-amd-amdhsa--gfx950\"")
    body(".text")
    lds1, v1 = gen_k1(body)
    lds2, v2 = gen_k2(body)
    body(".section .rodata,\"a\"")
    body(".p2align 6")
    descriptor(body, K1, 128 if (STAMPS or 'dbgt' in OPT) else v1)
    body(".p2align 6")
    descriptor(body, K2, v2)
    head = [
        "; Edge-gated MPNN layer in two launches (generated by a hand-written generator script).",
        "; launch 1: partitions the edges by destination bucket and builds the per-node source table",
        "; launch 2: per bucket of 100 nodes: sorts its edges, gated aggregation, SiLU epilogue",
        f"; @launch kernel={K1} grid=({NC},1,1) block=(1024,1,1) lds={lds1}",
        f"; @launch kernel={K2} grid=({NB},1,1) block=(1024,1,1) lds={lds2}",
    ]
    out = "\n".join(head) + "\n" + body.text()
    path = sys.argv[1] if len(sys.argv) > 1 else "standalone__edge_featured_mpnn_egc__graph.s"
    open(path, "w").write(out)
    print("wrote", path, "lds", lds1, lds2)


if __name__ == "__main__":
    main()
```

```python
import os
import sys

N = 25000
E = 800000
NB = 250
NPB = 100
NC = 250
EPC = 3200
HALF = 12500

T_OFF = 0
REC_OFF = int(os.environ.get('REC_OFF', '0x700000'), 0)
SEG_OFF = REC_OFF + 0x700000

LOG2E_NEG = 0xBFB8AA3B
SHIFT_NEG = 0xC2700000
TINY = 0x21800000
ROW = 272
XROW = 144

K1 = "egc_part_kernel"
K2 = "standalone__edge_featured_mpnn_egc__graph_kernel"

OPT = set(os.environ.get("OPT", "").split(","))
TOUCH0 = int(os.environ.get('TOUCH0', '12'))
PRIO_A = int(os.environ.get('PRIO_A', '25'))
PRIO_B = int(os.environ.get('PRIO_B', '38'))
STAMPS = False
STAMP_OFF = 0x2000000
SV = 127

X, EA, SRC, DST, UW, VW, GW, OUT, WS = 4, 6, 8, 10, 12, 14, 16, 18, 20
WAVE = 22


DBGS_SLOTS = {0: None, 1: 0, 3: 1, 4: 2, 5: 3, 6: 4, 8: 5, 9: 6, 10: 7}


def stamp(a, i, real=False):
    if "dbgs" in OPT and a.kernel == 2 and not real:
        a("s_memtime s[70:71]")
        a("s_waitcnt lgkmcnt(0)")
        a(f"v_writelane_b32 v127, s70, {i}")
        return
    if not STAMPS:
        return
    a(f"s_mem{'real' if real else ''}time s[70:71]")
    a("s_waitcnt lgkmcnt(0)")
    a(f"v_writelane_b32 v{SV}, s70, {i}")


TIME_OFF = 0x2800000


def dbg_time(a, which, slot, neg=False, tag=""):
    if "dbgt" not in OPT:
        return
    a("v_readfirstlane_b32 s78, v0")
    a("s_nop 3")
    a("s_cmp_lg_u32 s78, 0")
    a(f"s_cbranch_scc1 L_dbg_{which}_{slot}")
    a("s_memrealtime s[70:71]")
    a(f"s_load_dwordx2 s[74:75], s[0:1], {72 if which == 0 else 64}")
    a("s_waitcnt lgkmcnt(0)")
    if neg:
        a("s_not_b32 s70, s70")
    a("v_mov_b32 v125, s70")
    a("s_mov_b64 s[76:77], exec")
    a("s_mov_b64 exec, 1")
    if which == 0:
        a("s_lshl_b32 s78, s2, 3")
        a(f"s_add_u32 s78, s78, {TIME_OFF + slot * 4}")
        a("v_mov_b32 v126, s78")
        a("global_store_dword v126, v125, s[74:75]")
    else:
        a(f"v_mov_b32 v126, {slot * 4}")
        a("global_atomic_umax v126, v125, s[74:75]")
    a("s_mov_b64 exec, s[76:77]")
    if which == 1 and slot == 2:
        a("s_cmp_lg_u32 s2, 0")
        a(f"s_cbranch_scc1 L_dbg_{which}_{slot}")
        a("s_load_dwordx2 s[76:77], s[0:1], 72")
        a("s_waitcnt lgkmcnt(0)")
        for r in range(4):
            a(f"v_add_u32 v124, {64 * r}, v0")
            a("v_min_u32 v124, 249, v124")
            a("v_lshlrev_b32 v124, 3, v124")
            a(f"v_add_u32 v124, {TIME_OFF}, v124")
            a("global_load_dwordx2 v[122:123], v124, s[76:77]")
            a("s_waitcnt vmcnt(0)")
            a("v_mov_b32 v126, 16")
            a("global_atomic_umax v126, v122, s[74:75]")
            a("v_mov_b32 v126, 20")
            a("global_atomic_umax v126, v123, s[74:75]")
        a("s_waitcnt vmcnt(0)")
    a.label(f"L_dbg_{which}_{slot}")


def stamp_flush(a, which):
    if "dbgs" in OPT and which == 1:
        a.nflush = getattr(a, "nflush", 0) + 1
        a(f"s_cmp_lg_u32 s{WAVE}, 12")
        a(f"s_cbranch_scc1 L_dbgs_skip{a.nflush}")
        a("s_load_dwordx2 s[74:75], s[0:1], 64")
        a("v_readlane_b32 s70, v127, 0")
        a("s_waitcnt lgkmcnt(0)")
        a("v_subrev_u32 v126, s70, v127")
        a("v_and_b32 v125, 63, v0")
        a("v_cmp_gt_u32 vcc, 16, v125")
        a("v_lshlrev_b32 v125, 2, v125")
        a("s_and_saveexec_b64 s[76:77], vcc")
        a("global_atomic_umax v125, v126, s[74:75]")
        a("s_mov_b64 exec, s[76:77]")
        a.label(f"L_dbgs_skip{a.nflush}")
        return
    if not STAMPS:
        return
    a("s_lshl_b32 s72, s2, 4")
    a(f"s_add_u32 s72, s72, s{WAVE}")
    a("s_lshl_b32 s72, s72, 8")
    a(f"s_add_u32 s72, s72, {STAMP_OFF + which * 0x200000}")
    a("v_and_b32 v126, 63, v0")
    a("v_lshlrev_b32 v126, 2, v126")
    a("v_add_u32 v126, s72, v126")
    a(f"global_store_dword v126, v{SV}, s[20:21]")


class Asm:
    def __init__(self):
        self.lines = []
        self.kernel = 1

    def __call__(self, s=""):
        for ln in s.split("\n"):
            self.lines.append(ln if ln.strip().endswith(":") else "    " + ln.strip())

    def label(self, s):
        self.lines.append(s + ":")

    def text(self):
        return "\n".join(self.lines) + "\n"


def vr(a, n):
    return f"v[{a}:{a + n - 1}]"


def sr(a, n=2):
    return f"s[{a}:{a + n - 1}]"


def wave_scan(a, v):
    for sh in (1, 2, 4, 8):
        a("s_nop 1")
        a(f"v_add_u32_dpp v{v}, v{v}, v{v} row_shr:{sh} row_mask:0xf bank_mask:0xf bound_ctrl:0")
    a("s_nop 1")
    a(f"v_add_u32_dpp v{v}, v{v}, v{v} row_bcast:15 row_mask:0xa bank_mask:0xf")
    a("s_nop 1")
    a(f"v_add_u32_dpp v{v}, v{v}, v{v} row_bcast:31 row_mask:0xc bank_mask:0xf")
    a("s_nop 1")


WSBASE = int(os.environ.get("WSBASE", "0"), 0)


def remap_wg(a, which):
    if f"noremap{which}" in OPT:
        return
    a("s_and_b32 s24, s2, 7")
    a("s_lshr_b32 s2, s2, 3")
    a("s_mov_b32 s23, s2")
    a("s_mul_i32 s25, s24, 31")
    a("s_min_u32 s24, s24, 2")
    a("s_add_u32 s2, s2, s25")
    a("s_add_u32 s2, s2, s24")


def warm_l2(a, lane, t0, t1, dst):
    for n in range(2):
        a(f"s_lshl_b32 s24, s{WAVE}, 7")
        a(f"s_add_u32 s24, s24, {n * 64}")
        a(f"v_add_u32 v{t0}, s24, v{lane}")
        a(f"v_min_u32 v{t0}, 1599, v{t0}")
        a(f"v_lshrrev_b32 v{t1}, 2, v{t0}")
        a("s_mul_i32 s24, s23, 400")
        a(f"v_add_u32 v{t1}, s24, v{t1}")
        a(f"v_min_u32 v{t1}, 12711, v{t1}")
        a(f"v_and_b32 v{t0}, 3, v{t0}")
        a(f"v_lshlrev_b32 v{t0}, 6, v{t0}")
        a(f"v_and_b32 v125, 0xfffff000, v{t1}")
        a(f"v_add_u32 v{t1}, v{t1}, v125")
        a(f"v_lshl_add_u32 v{t0}, v{t1}, 8, v{t0}")
        a(f"global_load_dword v{dst}, v{t0}, {sr(WS)}")


def load_ptrs(a):
    a("s_load_dwordx16 s[4:19], s[0:1], 0")
    a("s_load_dwordx2 s[20:21], s[0:1], 72")


def fix_ws(a):
    if WSBASE:
        a(f"s_add_u32 s20, s20, {WSBASE}")
        a("s_addc_u32 s21, s21, 0")


ST = ""
STT = ""
STR_ = ""
STO = ""


class Node:
    def __init__(self, a, WST, XST, tid, lane, vw, vx, t):
        self.a, self.WST, self.XST = a, WST, XST
        self.tid, self.lane, self.vw, self.vx, self.t = tid, lane, vw, vx, t

    def issue_loads(self, p0, off0, p1):
        a, t = self.a, self.t
        a(f"s_cmp_lt_u32 s{WAVE}, 8")
        a(f"s_cselect_b32 s24, s{p0}, s{p1}")
        a(f"s_cselect_b32 s25, s{p0 + 1}, s{p1 + 1}")
        if off0:
            a(f"s_cselect_b32 s26, {off0}, 0")
            a("s_add_u32 s24, s24, s26")
            a("s_addc_u32 s25, s25, 0")
        a(f"v_and_b32 v{t}, 511, v{self.tid}")
        a(f"v_lshlrev_b32 v{t}, 4, v{t}")
        a(f"global_load_dwordx4 {vr(self.vw, 4)}, v{t}, s[24:25]")
        a(f"v_min_u32 v{t}, {NPB * 8 - 1}, v{self.tid}")
        a(f"v_lshlrev_b32 v{t}, 4, v{t}")
        a(f"s_mul_i32 s26, s2, {NPB * 128}")
        a(f"v_add_u32 v{t}, s26, v{t}")
        a(f"global_load_dwordx4 {vr(self.vx, 4)}, v{t}, {sr(X)}")

    def stage(self):
        a, t, tid = self.a, self.t, self.tid
        a(f"v_bfe_u32 v{t}, v{tid}, 4, 1")
        a(f"v_bfe_u32 v{t + 1}, v{tid}, 6, 1")
        a(f"v_lshl_or_b32 v{t}, v{t + 1}, 1, v{t}")
        a(f"v_lshlrev_b32 v{t}, 5, v{t}")
        a(f"v_lshlrev_b32 v{t + 1}, 4, v{tid}")
        a(f"v_xor_b32 v{t}, v{t}, v{t + 1}")
        a(f"v_add_u32 v{t}, {self.WST}, v{t}")
        a(f"ds_write_b128 v{t}, {vr(self.vw, 4)}")
        a(f"v_lshrrev_b32 v{t}, 3, v{tid}")
        a(f"v_mul_u32_u24 v{t}, {XROW}, v{t}")
        a(f"v_and_b32 v{t + 1}, 7, v{tid}")
        a(f"v_lshl_add_u32 v{t}, v{t + 1}, 4, v{t}")
        a(f"v_add_u32 v{t}, {self.XST}, v{t}")
        a(f"v_cmp_gt_u32 vcc, {NPB * 8}, v{tid}")
        a("s_and_saveexec_b64 s[32:33], vcc")
        a(f"ds_write_b128 v{t}, {vr(self.vx, 4)}")
        a("s_mov_b64 exec, s[32:33]")

    def stage_addr(self, vw_a, vx_a, t):
        a, tid = self.a, self.tid
        a(f"v_bfe_u32 v{vw_a}, v{tid}, 4, 1")
        a(f"v_bfe_u32 v{t}, v{tid}, 6, 1")
        a(f"v_lshl_or_b32 v{vw_a}, v{t}, 1, v{vw_a}")
        a(f"v_lshlrev_b32 v{vw_a}, 5, v{vw_a}")
        a(f"v_lshlrev_b32 v{t}, 4, v{tid}")
        a(f"v_xor_b32 v{vw_a}, v{vw_a}, v{t}")
        a(f"v_add_u32 v{vw_a}, {self.WST}, v{vw_a}")
        a(f"v_lshrrev_b32 v{vx_a}, 3, v{tid}")
        a(f"v_mul_u32_u24 v{vx_a}, {XROW}, v{vx_a}")
        a(f"v_and_b32 v{t}, 7, v{tid}")
        a(f"v_lshl_add_u32 v{vx_a}, v{t}, 4, v{vx_a}")
        a(f"v_add_u32 v{vx_a}, {self.XST}, v{vx_a}")

    def stage_write(self, vw_a, vx_a):
        a, tid = self.a, self.tid
        a(f"ds_write_b128 v{vw_a}, {vr(self.vw, 4)}")
        a(f"v_cmp_gt_u32 vcc, {NPB * 8}, v{tid}")
        a("s_and_saveexec_b64 s[32:33], vcc")
        a(f"ds_write_b128 v{vx_a}, {vr(self.vx, 4)}")
        a("s_mov_b64 exec, s[32:33]")

    def pair_reads(self, aop, xop, vloc):
        a, t, lane = self.a, self.t, self.lane
        a(f"s_and_b32 s27, s{WAVE}, 1")
        a("s_lshl_b32 s27, s27, 1")
        a(f"s_lshr_b32 s26, s{WAVE}, 1")
        a(f"v_and_b32 v{t}, 15, v{lane}")
        a(f"v_lshrrev_b32 v{t + 1}, 4, v{lane}")
        a("s_lshl_b32 s26, s26, 4")
        a(f"v_add_u32 v{vloc}, s26, v{t}")
        a(f"v_mul_u32_u24 v{t + 2}, {XROW}, v{vloc}")
        a(f"v_lshl_add_u32 v{t + 2}, v{t + 1}, 4, v{t + 2}")
        a(f"v_add_u32 v{t + 2}, {self.XST}, v{t + 2}")
        a(f"ds_read_b128 {vr(xop, 4)}, v{t + 2}")
        a(f"ds_read_b128 {vr(xop + 4, 4)}, v{t + 2} offset:64")
        a(f"v_lshrrev_b32 v{t + 2}, 3, v{t}")
        a(f"v_and_b32 v{xop + 8}, 1, v{t + 1}")
        a(f"v_lshl_or_b32 v{t + 2}, v{xop + 8}, 1, v{t + 2}")
        a(f"v_xor_b32 v{t + 2}, s27, v{t + 2}")
        a(f"v_lshlrev_b32 v{t + 2}, 5, v{t + 2}")
        a(f"v_lshrrev_b32 v{xop + 8}, 2, v{t}")
        a(f"v_lshl_add_u32 v{xop + 8}, v{t + 1}, 3, v{xop + 8}")
        a(f"v_lshl_add_u32 v{t + 2}, v{xop + 8}, 7, v{t + 2}")
        a(f"v_and_b32 v{xop + 8}, 3, v{t}")
        a(f"v_lshl_add_u32 v{t + 2}, v{xop + 8}, 3, v{t + 2}")
        a(f"v_add_u32 v{t + 2}, {self.WST}, v{t + 2}")
        assert self.WST % 128 == 0
        for c in range(2):
            if c:
                a("s_waitcnt lgkmcnt(6)")
                a(f"v_xor_b32 v{t + 2}, 32, v{t + 2}")
            for m in range(2):
                for ks in range(2):
                    for hh in range(2):
                        r = aop + c * 16 + (m * 2 + ks) * 4 + hh * 2
                        a(f"ds_read_b64_tr_b16 {vr(r, 2)}, v{t + 2} offset:{m * 8192 + ks * 4096 + hh * 512}")

    def pair_mfma(self, aop, xop, dd):
        a = self.a
        for ks in range(2):
            for c in range(2):
                for m in range(2):
                    d = dd + (c * 2 + m) * 4
                    cop = "0" if ks == 0 else vr(d, 4)
                    a(f"v_mfma_f32_16x16x32_bf16 {vr(d, 4)}, {vr(aop + c * 16 + (m * 2 + ks) * 4, 4)}, {vr(xop + 4 * ks, 4)}, {cop}")


def copy_out(a, lds_addr_fn, goff_sgpr, t0, t1, d0, d1, tag):
    ST = STT if tag == "t" else STR_
    lds_addr_fn(0, t1)
    a(f"ds_read_b128 {vr(d0, 4)}, v{t1}")
    a(f"v_lshlrev_b32 v{t0}, 4, v0")
    a(f"v_add_u32 v{t0}, s{goff_sgpr}, v{t0}")
    a(f"s_cmp_gt_u32 s{WAVE}, 8")
    a(f"s_cbranch_scc1 L1_one{tag}")
    a(f"v_add_u32 v{t1}, 1024, v0")
    lds_addr_fn(t1, t1)
    a(f"ds_read_b128 {vr(d1, 4)}, v{t1}")
    a(f"v_add_u32 v{t1}, 16384, v{t0}")
    a("s_waitcnt lgkmcnt(0)")
    a(f"global_store_dwordx4 v{t1}, {vr(d1, 4)}, {sr(WS)}{ST}")
    a.label(f"L1_one{tag}")
    a("s_waitcnt lgkmcnt(0)")
    a(f"global_store_dwordx4 v{t0}, {vr(d0, 4)}, {sr(WS)}{ST}")


def gen_k1(a):
    HIST, BASE = 0, 1024
    WST = 2048
    XST = WST + 16384
    TST = XST + 112 * XROW
    STG = TST + NPB * ROW
    LDS = STG + EPC * 8
    TID, LANE = 0, 1
    T0, T1, T2, T3 = 2, 3, 14, 15
    VD, VS, VE = 4, 8, 12
    VW_, VX_ = 16, 20
    XOP = 24
    AOP = 36
    DD = 68
    PK = 84
    VLOC = 87
    VB, VR = 88, 92
    RP = 104
    NT = 100
    nd = Node(a, WST, XST, TID, LANE, VW_, VX_, NT)

    a(f".globl {K1}")
    a(".p2align 8")
    a(f".type {K1},@function")
    a.label(K1)
    a(f"s_cmp_ge_u32 s2, {NC}")
    a("s_cbranch_scc1 L1_end")
    dbg_time(a, 0, 0, True)
    stamp(a, 0)
    stamp(a, 20, True)
    load_ptrs(a)
    remap_wg(a, 1)
    a(f"v_and_b32 v{LANE}, 63, v{TID}")
    a(f"v_lshrrev_b32 v{T0}, 6, v{TID}")
    a(f"v_lshlrev_b32 v{T1}, 2, v{TID}")
    a(f"v_readfirstlane_b32 s{WAVE}, v{T0}")
    a(f"v_mov_b32 v{T0}, 0")
    a(f"s_cmp_lt_u32 s{WAVE}, 4")
    a("s_cbranch_scc0 L1_nozero")
    a(f"ds_write_b32 v{T1}, v{T0} offset:{HIST}")
    a.label("L1_nozero")
    a("s_waitcnt lgkmcnt(0)")
    fix_ws(a)
    stamp(a, 1)
    nd.issue_loads(GW, 8192, VW)
    if "nok1bq" not in OPT:
        a("s_barrier")
    a(f"s_cmp_gt_u32 s{WAVE}, 12")
    a("s_cbranch_scc1 L1_noedge0")
    a(f"s_mul_i32 s24, s2, {EPC * 4}")
    a(f"v_lshlrev_b32 v{T0}, 4, v{TID}")
    a(f"v_add_u32 v{T0}, s24, v{T0}")
    a(f"v_lshrrev_b32 v{T1}, 1, v{T0}")
    a(f"v_cmp_gt_u32 vcc, {EPC // 4}, v{TID}")
    a("s_and_saveexec_b64 s[32:33], vcc")
    a(f"global_load_dwordx4 {vr(VD, 4)}, v{T0}, {sr(DST)}")
    a(f"global_load_dwordx4 {vr(VS, 4)}, v{T0}, {sr(SRC)}")
    a(f"global_load_dwordx2 {vr(VE, 2)}, v{T1}, {sr(EA)}")
    a("s_mov_b64 exec, s[32:33]")
    a("s_waitcnt vmcnt(3)")
    a("s_branch L1_wx")
    a.label("L1_noedge0")
    a("s_waitcnt vmcnt(0)")
    a.label("L1_wx")
    stamp(a, 2)
    nd.stage()
    a("s_waitcnt lgkmcnt(0)")
    a("s_barrier")
    stamp(a, 3)
    a(f"s_cmp_gt_u32 s{WAVE}, 13")
    a("s_cbranch_scc1 L1_notask")
    nd.pair_reads(AOP, XOP, VLOC)
    a(f"v_mul_u32_u24 v{T0}, {ROW}, v{VLOC}")
    a(f"v_lshrrev_b32 v{T1}, 4, v{LANE}")
    a(f"v_lshl_add_u32 v{T0}, v{T1}, 4, v{T0}")
    a("s_lshl_b32 s30, s27, 6")
    a(f"s_add_u32 s30, s30, {TST}")
    a(f"v_add_u32 v{T0}, s30, v{T0}")
    a(f"s_mov_b32 s24, {LOG2E_NEG:#x}")
    a("s_mov_b32 s25, 0x7fff0000")
    a("s_mov_b32 s30, 0x7fffffff")
    VLO, VHI = 33, 34
    a(f"v_mov_b32 v{VLO}, 0xc77fe000")
    a(f"v_mov_b32 v{VHI}, 0x477fe000")
    a(f"v_cmp_gt_u32 vcc, {NPB}, v{VLOC}")
    a("s_waitcnt lgkmcnt(0)")
    nd.pair_mfma(AOP, XOP, DD)
    a("s_nop 5")
    for c in range(2):
        DQ, DH = DD + c * 8, DD + c * 8 + 4
        if c == 1:
            pass
        for i in range(4):
            a(f"v_mul_f32 v{DQ + i}, s24, v{DQ + i}")
        for i in range(4):
            a(f"v_med3_f32 v{DQ + i}, v{DQ + i}, v{VLO}, v{VHI}")
        a(f"v_cvt_pk_f16_f32 v{PK}, v{DQ}, v{DQ + 1}")
        a(f"v_cvt_pk_f16_f32 v{PK + 1}, v{DQ + 2}, v{DQ + 3}")
        for i in range(4):
            h = DH + i
            sel = "WORD_1" if i % 2 else "WORD_0"
            a(f"v_and_b32 v{DQ + i}, s30, v{h}")
            a(f"v_add_u32 v{DQ + i}, 0x8000, v{DQ + i}")
            a(f"v_sub_u32_sdwa v{DQ + i}, v{DQ + i}, v{PK + i // 2} clamp dst_sel:DWORD dst_unused:UNUSED_PAD src0_sel:DWORD src1_sel:{sel}")
        for i in range(4):
            h = DH + i
            a(f"v_bfi_b32 v{h}, s25, v{DQ + i}, v{h}")
        for i in range(4):
            h = DH + i
            sel = "WORD_1" if i % 2 else "WORD_0"
            a(f"v_mov_b32_sdwa v{h}, v{PK + i // 2} dst_sel:WORD_0 dst_unused:UNUSED_PRESERVE src0_sel:{sel}")
        a("s_and_saveexec_b64 s[32:33], vcc")
        a(f"ds_write_b128 v{T0}, {vr(DH, 4)} offset:{c * 64}")
        a("s_mov_b64 exec, s[32:33]")
    a.label("L1_notask")
    a("s_waitcnt lgkmcnt(0)")
    stamp(a, 4)
    a("s_barrier")

    if "tall" in OPT:
        a(f"v_lshrrev_b32 v{T0}, 4, v{TID}")
        a(f"v_mul_u32_u24 v{T0}, {ROW}, v{T0}")
        a(f"v_and_b32 v{T1}, 15, v{TID}")
        a(f"v_lshl_add_u32 v{T0}, v{T1}, 4, v{T0}")
        a(f"v_add_u32 v{T0}, {TST}, v{T0}")
        a(f"ds_read_b128 v[16:19], v{T0}")
        a(f"s_mul_i32 s26, s2, {NPB * 256}")
        a(f"v_lshlrev_b32 v{T1}, 4, v{TID}")
        a(f"v_add_u32 v{T1}, s26, v{T1}")
        a(f"s_cmp_gt_u32 s{WAVE}, 8")
        a("s_cbranch_scc1 L1_t1")
        a(f"ds_read_b128 v[20:23], v{T0} offset:{64 * ROW}")
        a(f"v_add_u32 v{T2}, 16384, v{T1}")
        a("s_waitcnt lgkmcnt(0)")
        a(f"global_store_dwordx4 v{T2}, v[20:23], {sr(WS)}{STT}")
        a.label("L1_t1")
        a("s_waitcnt lgkmcnt(0)")
        a(f"global_store_dwordx4 v{T1}, v[16:19], {sr(WS)}{STT}")
        a(f"s_sub_u32 s24, s{WAVE}, 13")
        a("s_cmp_lt_u32 s24, 2")
        a("s_cbranch_scc0 L1_not")
        stamp(a, 5)
        if STAMPS:
            a("s_waitcnt vmcnt(0)")
        stamp(a, 11)
        stamp(a, 21, True)
        stamp_flush(a, 0)
        a("s_endpgm")
    else:
        a(f"s_sub_u32 s24, s{WAVE}, 13")
        a("s_cmp_lt_u32 s24, 2")
        a("s_cbranch_scc0 L1_not")
        a(f"v_lshrrev_b32 v{T0}, 4, v{LANE}")
        a(f"v_mul_u32_u24 v{T0}, {ROW}, v{T0}")
        a(f"v_and_b32 v{T1}, 15, v{LANE}")
        a(f"v_lshl_add_u32 v{T0}, v{T1}, 4, v{T0}")
        a(f"s_mul_i32 s25, s24, {13 * 4 * ROW}")
        a(f"s_add_u32 s25, s25, {TST}")
        a(f"v_add_u32 v{T0}, s25, v{T0}")
        a(f"s_mul_i32 s26, s2, {NPB * 256}")
        a(f"s_mul_i32 s25, s24, {13 * 1024}")
        a("s_add_u32 s26, s26, s25")
        a(f"v_lshlrev_b32 v{T1}, 4, v{LANE}")
        a(f"v_add_u32 v{T1}, s26, v{T1}")
        for n in range(12):
            a(f"ds_read_b128 {vr(16 + 4 * n, 4)}, v{T0} offset:{n * 4 * ROW}")
        a(f"v_add_u32 v{T2}, {12 * 1024}, v{T1}")
        a("s_cmp_eq_u32 s24, 0")
        a("s_cbranch_scc0 L1_t12")
        a(f"ds_read_b128 {vr(64, 4)}, v{T0} offset:{12 * 4 * ROW}")
        a("s_waitcnt lgkmcnt(0)")
        a(f"global_store_dwordx4 v{T2}, {vr(64, 4)}, {sr(WS)}{STT}")
        a.label("L1_t12")
        for n in range(12):
            a(f"s_waitcnt lgkmcnt({max(0, 11 - n)})")
            a(f"global_store_dwordx4 v{T1}, {vr(16 + 4 * n, 4)}, {sr(WS)} offset:{(n % 4) * 1024}{STT}")
            if n % 4 == 3:
                a(f"v_add_u32 v{T1}, 4096, v{T1}")
        if "readback" in OPT:
            a("s_waitcnt vmcnt(0)")
            a(f"v_subrev_u32 v{T1}, {3 * 4096}, v{T1}")
            for n in range(12):
                a(f"global_load_dwordx4 {vr(16 + 4 * n, 4)}, v{T1}, {sr(WS)} offset:{(n % 4) * 1024}")
                if n % 4 == 3:
                    a(f"v_add_u32 v{T1}, 4096, v{T1}")
            a(f"global_load_dwordx4 {vr(64, 4)}, v{T2}, {sr(WS)}")
            a("s_waitcnt vmcnt(0)")
        if "wbl2" in OPT:
            a("s_waitcnt vmcnt(0)")
            a("buffer_wbl2 sc1")
            a("s_waitcnt vmcnt(0)")
        stamp(a, 5)
        if STAMPS:
            a("s_waitcnt vmcnt(0)")
        stamp(a, 11)
        stamp(a, 21, True)
        stamp_flush(a, 0)
        a("s_endpgm")
    a.label("L1_not")
    stamp(a, 5)
    a(f"s_cmp_gt_u32 s{WAVE}, 12")
    a("s_cbranch_scc1 L1_noedge1")
    a(f"v_cmp_gt_u32 vcc, {EPC // 4}, v{TID}")
    a("s_and_saveexec_b64 s[32:33], vcc")
    a(f"v_mov_b32 v{T1}, 1")
    a("s_movk_i32 s24, -100")
    a("s_mov_b32 s25, 0xffff0000")
    a("s_movk_i32 s30, 128")
    if "tall" in OPT:
        a(f"s_cmp_gt_u32 s{WAVE}, 8")
        a("s_cbranch_scc1 L1_w1")
        a("s_waitcnt vmcnt(2)")
        a("s_branch L1_w2")
        a.label("L1_w1")
        a("s_waitcnt vmcnt(1)")
        a.label("L1_w2")
    else:
        a("s_waitcnt vmcnt(0)")
    for i in range(4):
        a(f"v_mul_u32_u24 v{T0}, 5243, v{VD + i}")
        a(f"v_lshrrev_b32 v{T0}, 19, v{T0}")
        a(f"v_lshlrev_b32 v{VB + i}, 2, v{T0}")
        a(f"ds_add_rtn_u32 v{VR + i}, v{VB + i}, v{T1} offset:{HIST}")
        a(f"v_mad_i32_i24 v{T2}, v{T0}, s24, v{VD + i}")
        a(f"v_lshrrev_b32 v{T3}, 5, v{VS + i}")
        a(f"v_and_or_b32 v{RP + 2 * i + 1}, v{T3}, s30, v{T2}")
        if "smallsrc" in OPT:
            a(f"v_and_b32 v{VS + i}, 0x7ff, v{VS + i}")
        if i % 2 == 0:
            a(f"v_lshl_or_b32 v{RP + 2 * i}, v{VE + i // 2}, 16, v{VS + i}")
        else:
            a(f"v_and_or_b32 v{RP + 2 * i}, v{VE + i // 2}, s25, v{VS + i}")
    a("s_mov_b64 exec, s[32:33]")
    a.label("L1_noedge1")
    a("s_waitcnt lgkmcnt(0)")
    stamp(a, 6)
    a("s_barrier")
    stamp(a, 7)
    a(f"s_cmp_eq_u32 s{WAVE}, 15")
    a("s_cbranch_scc0 L1_b2")
    C0 = 24
    a(f"v_lshlrev_b32 v{T0}, 4, v{LANE}")
    a(f"ds_read_b128 {vr(C0, 4)}, v{T0} offset:{HIST}")
    a("s_waitcnt lgkmcnt(0)")
    P = 28
    a(f"v_add_u32 v{P + 2}, v{C0}, v{C0 + 1}")
    a(f"v_add_u32 v{P + 3}, v{P + 2}, v{C0 + 2}")
    a(f"v_add_u32 v32, v{P + 3}, v{C0 + 3}")
    a("v_mov_b32 v33, v32")
    wave_scan(a, 33)
    a(f"v_sub_u32 v{P}, v33, v32")
    a(f"v_add_u32 v{P + 1}, v{P}, v{C0}")
    a(f"v_add_u32 v{P + 2}, v{P}, v{P + 2}")
    a(f"v_add_u32 v{P + 3}, v{P}, v{P + 3}")
    a(f"ds_write_b128 v{T0}, {vr(P, 4)} offset:{BASE}")
    a("s_lshl_b32 s24, s2, 10")
    a(f"s_add_u32 s24, s24, {SEG_OFF}")
    a(f"v_add_u32 v{T1}, s24, v{T0}")
    for i in range(4):
        a(f"v_lshl_or_b32 v{36 + i}, v{C0 + i}, 16, v{P + i}")
    a(f"global_store_dwordx4 v{T1}, v[36:39], {sr(WS)}{ST}")
    a("s_cmp_lg_u32 s2, 0")
    a("s_cbranch_scc1 L1_b2")
    a(f"v_mov_b32 v{T2}, 0")
    a(f"v_lshlrev_b32 v{T3}, 2, v{LANE}")
    a(f"v_add_u32 v{T3}, {N * 256}, v{T3}")
    a(f"global_store_dword v{T3}, v{T2}, {sr(WS)}{ST}")
    a.label("L1_b2")
    a("s_waitcnt lgkmcnt(0)")
    stamp(a, 8)
    a("s_barrier")
    a(f"s_cmp_gt_u32 s{WAVE}, 12")
    a("s_cbranch_scc1 L1_noedge2")
    a(f"v_cmp_gt_u32 vcc, {EPC // 4}, v{TID}")
    a("s_and_saveexec_b64 s[32:33], vcc")
    for i in range(4):
        a(f"ds_read_b32 v{VD + i}, v{VB + i} offset:{BASE}")
    a(f"s_mov_b32 s24, {STG}")
    for i in range(4):
        a("s_waitcnt lgkmcnt(3)")
        a(f"v_add_u32 v{VD + i}, v{VD + i}, v{VR + i}")
        a(f"v_lshl_add_u32 v{VD + i}, v{VD + i}, 3, s24")
        a(f"ds_write_b64 v{VD + i}, {vr(RP + 2 * i, 2)}")
    a("s_mov_b64 exec, s[32:33]")
    a.label("L1_noedge2")
    a(f"s_min_u32 s25, s{WAVE}, 13")
    a("s_lshl_b32 s25, s25, 10")
    a(f"v_lshlrev_b32 v{T0}, 4, v{LANE}")
    a(f"v_add_u32 v{T0}, s25, v{T0}")
    a(f"v_add_u32 v{T1}, {STG}, v{T0}")
    a(f"s_mul_i32 s24, s2, {EPC * 8}")
    a(f"s_add_u32 s24, s24, {REC_OFF}")
    a(f"v_add_u32 v{T0}, s24, v{T0}")
    a("s_waitcnt lgkmcnt(0)")
    stamp(a, 9)
    a("s_barrier")
    a(f"ds_read_b128 v[24:27], v{T1}")
    a(f"s_cmp_gt_u32 s{WAVE}, 10")
    a("s_cbranch_scc1 L1_oner")
    a(f"ds_read_b128 v[28:31], v{T1} offset:{14 * 1024}")
    a(f"v_add_u32 v{T1}, {14 * 1024}, v{T0}")
    a("s_waitcnt lgkmcnt(0)")
    a(f"global_store_dwordx4 v{T1}, v[28:31], {sr(WS)}{STR_}")
    a.label("L1_oner")
    a("s_waitcnt lgkmcnt(0)")
    a(f"global_store_dwordx4 v{T0}, v[24:27], {sr(WS)}{STR_}")
    for o in OPT:
        if o.startswith("delay="):
            n = int(o[6:])
            a(f"s_movk_i32 s24, {n}")
            a.label("L1_dly")
            a("s_sleep 16")
            a("s_sub_u32 s24, s24, 1")
            a("s_cmp_lg_u32 s24, 0")
            a("s_cbranch_scc1 L1_dly")
    if "dbgt" in OPT:
        a("s_waitcnt vmcnt(0)")
    dbg_time(a, 0, 1)
    stamp(a, 10)
    if STAMPS:
        a("s_waitcnt vmcnt(0)")
    stamp(a, 11)
    stamp(a, 21, True)
    stamp_flush(a, 0)
    a.label("L1_end")
    a("s_endpgm")
    return LDS, 112


def gen_k2(a):
    a.kernel = 2
    HIST = 0
    HIST2 = HIST + 1024
    BASE2 = HIST2 + 1024
    WCNT = BASE2 + 1024
    WKEY = WCNT + 1024
    MISC = WKEY + 1024
    SCR = MISC + 256
    ZERO = SCR + 256
    PL = ZERO + 256
    PART0 = PL + NPB * ROW
    WST = (PART0 + NPB * ROW + 127) // 128 * 128
    XST = WST + 16384
    LIST = XST + NPB * XROW
    CAPK = 48
    COL = CAPK * 4
    LISTB = 228 * COL
    LDS = LIST + LISTB + 64
    assert PART0 + 64 * ROW < 65536 and LDS <= 163840, LDS
    NWIN = 50
    DUMMY_COL = 100 * COL

    TID, LANE = 0, 1
    T0, T1, T2, T3 = 2, 3, 4, 5
    RB = 6
    REM = 7
    RECS = 8
    RANK = 24
    VW_, VX_ = 32, 36
    XOP = 40
    AOP = 52
    DD = 84
    VLOC = 49
    NT = 100
    VLB = 103
    ASEL = 112
    VJ, VG4, VQ, VONE = 116, 117, 118, 119
    CV = 120
    VZ = 124
    VXA, VWA, VPA, VSH = 104, 105, 106, 107
    MASK = 40
    NRND = 5
    rec_reg = lambda r: RECS + 4 * r if r < 4 else 72
    rank_reg = lambda k: RANK + k if k < 8 else 100 + (k - 8)
    mask_s = lambda k: MASK + 2 * k if k < 8 else 60 + 2 * (k - 8)
    nd = Node(a, WST, XST, TID, LANE, VW_, VX_, NT)

    a(f".globl {K2}")
    a(".p2align 8")
    a(f".type {K2},@function")
    a.label(K2)
    a(f"s_cmp_ge_u32 s2, {NB}")
    a("s_cbranch_scc1 L2_end")
    dbg_time(a, 1, 2, True)
    for o in OPT:
        if o.startswith("nops="):
            for _ in range(int(o[5:])):
                a("s_nop 0")
        if o.startswith("slit="):
            for _ in range(int(o[5:])):
                a("s_mov_b32 s24, 0x12345678")
        if o.startswith("slil="):
            a(f"s_movk_i32 s25, {int(o[5:]) // 16}")
            a.label("L2_slil")
            for _ in range(13):
                a("s_mov_b32 s24, 0x12345678")
            a("s_sub_u32 s25, s25, 1")
            a("s_cmp_lg_u32 s25, 0")
            a("s_cbranch_scc1 L2_slil")
        if o.startswith("nopl="):
            a(f"s_movk_i32 s24, {int(o[5:]) // 16}")
            a.label("L2_nopl")
            for _ in range(13):
                a("s_nop 0")
            a("s_sub_u32 s24, s24, 1")
            a("s_cmp_lg_u32 s24, 0")
            a("s_cbranch_scc1 L2_nopl")
    stamp(a, 0)
    stamp(a, 20, True)
    load_ptrs(a)
    remap_wg(a, 2)
    a(f"v_and_b32 v{LANE}, 63, v{TID}")
    a(f"v_lshrrev_b32 v{T0}, 6, v{TID}")
    a(f"v_lshlrev_b32 v{T1}, 2, v{TID}")
    a(f"v_readfirstlane_b32 s{WAVE}, v{T0}")
    a(f"v_lshrrev_b32 v{RB}, 2, v{TID}")
    a(f"v_lshlrev_b32 v{RB}, 10, v{RB}")
    a("s_lshl_b32 s24, s2, 2")
    a(f"s_add_u32 s24, s24, {SEG_OFF}")
    a(f"v_add_u32 v{RB}, s24, v{RB}")
    a("s_waitcnt lgkmcnt(0)")
    fix_ws(a)
    stamp(a, 1)
    if "wfirst" not in OPT:
        a(f"global_load_dword v{REM}, v{RB}, {sr(WS)}")
        if "segbar" in OPT:
            a("s_barrier")
    nd.issue_loads(GW, 0, UW)
    a(f"v_and_b32 v{T0}, 15, v{LANE}")
    a(f"v_lshlrev_b32 v{VJ}, 4, v{T0}")
    a(f"v_lshrrev_b32 v{T2}, 1, v{VJ}")
    a(f"v_add_u32 v{T2}, {128 * 128}, v{T2}")
    a(f"global_load_dwordx2 {vr(CV + 2, 2)}, v{T2}, {sr(GW)}")
    if "wfirst" in OPT:
        a(f"global_load_dword v{REM}, v{RB}, {sr(WS)}")
    a(f"v_mov_b32 v{T0}, 0")
    a(f"s_cmp_lt_u32 s{WAVE}, 4")
    a("s_cbranch_scc0 L2_nozero")
    a(f"ds_write_b32 v{T1}, v{T0} offset:{HIST}")
    a(f"ds_write_b32 v{T1}, v{T0} offset:{HIST2}")
    a.label("L2_nozero")
    a(f"s_cmp_eq_u32 s{WAVE}, 4")
    a("s_cbranch_scc0 L2_nozero2")
    a(f"v_lshlrev_b32 v{T2}, 2, v{LANE}")
    a(f"v_cmp_eq_u32 vcc, 2, v{LANE}")
    a("s_nop 1")
    a(f"v_cndmask_b32 v{T3}, 0, 16, vcc")
    a(f"ds_write_b32 v{T2}, v{T3} offset:{MISC}")
    a(f"ds_write_b32 v{T2}, v{T0} offset:{ZERO}")
    a.label("L2_nozero2")
    if "constearly" in OPT:
        for i in range(4):
            a(f"v_mov_b32 v{XOP + i}, {N}")
        a(f"v_lshlrev_b32 v{T2}, 4, v{TID}")
        a(f"v_add_u32 v{T2}, {LIST}, v{T2}")
        a(f"ds_write_b128 v{T2}, {vr(XOP, 4)}")
        a(f"ds_write_b128 v{T2}, {vr(XOP, 4)} offset:16384")
        nlast = LISTB // 16 - 2048
        a(f"v_cmp_gt_u32 vcc, {nlast}, v{TID}")
        a("s_and_saveexec_b64 s[32:33], vcc")
        a(f"ds_write_b128 v{T2}, {vr(XOP, 4)} offset:32768")
        a("s_mov_b64 exec, s[32:33]")
        a(f"v_mov_b32 v{VONE}, 1")
        a(f"v_mov_b32 v{VLB}, {LIST}")
        nd.stage_addr(NT, NT + 1, NT + 2)
        a(f"s_and_b32 s27, s{WAVE}, 3")
        a(f"s_lshr_b32 s26, s{WAVE}, 2")
        a("s_lshl_b32 s26, s26, 5")
        a(f"v_and_b32 v{T0}, 15, v{LANE}")
        a(f"v_lshrrev_b32 v{T1}, 4, v{LANE}")
        a(f"v_add_u32 v{T2}, s26, v{T0}")
        a(f"v_mul_u32_u24 v{VXA}, {XROW}, v{T2}")
        a(f"v_lshl_add_u32 v{VXA}, v{T1}, 4, v{VXA}")
        a(f"v_add_u32 v{VXA}, {XST}, v{VXA}")
        a(f"v_mul_u32_u24 v{VPA}, {ROW}, v{T2}")
        a(f"v_lshl_add_u32 v{VPA}, v{T1}, 4, v{VPA}")
        a("s_lshl_b32 s30, s27, 6")
        a(f"v_add_u32 v{VPA}, s30, v{VPA}")
        a(f"v_lshrrev_b32 v{T2}, 3, v{T0}")
        a(f"v_and_b32 v{T3}, 1, v{T1}")
        a(f"v_lshl_or_b32 v{T2}, v{T3}, 1, v{T2}")
        a(f"v_xor_b32 v{T2}, s27, v{T2}")
        a(f"v_lshlrev_b32 v{T2}, 5, v{T2}")
        a(f"v_lshrrev_b32 v{T3}, 2, v{T0}")
        a(f"v_lshl_add_u32 v{T3}, v{T1}, 3, v{T3}")
        a(f"v_lshl_add_u32 v{T2}, v{T3}, 7, v{T2}")
        a(f"v_and_b32 v{T3}, 3, v{T0}")
        a(f"v_lshl_add_u32 v{T2}, v{T3}, 3, v{T2}")
        a(f"v_add_u32 v{VWA}, {WST}, v{T2}")
        a(f"v_mov_b32 v{VSH}, {SHIFT_NEG:#x}")
        a(f"v_cmp_gt_u32 s[34:35], 4, v{T0}")
    a(f"v_lshrrev_b32 v{RB}, 2, v{TID}")
    a(f"v_mul_u32_u24 v{RB}, {EPC}, v{RB}")
    a(f"v_and_b32 v{T3}, 3, v{TID}")
    a(f"v_lshlrev_b32 v{T3}, 1, v{T3}")
    a(f"v_add_u32 v{RB}, v{RB}, v{T3}")
    a(f"v_lshlrev_b32 v{RB}, 3, v{RB}")
    a(f"v_add_u32 v{RB}, {REC_OFF}, v{RB}")
    a(f"v_cmp_gt_u32 vcc, {NC * 4}, v{TID}")
    a(f"s_waitcnt vmcnt({0 if 'wfirst' in OPT else 3})")
    stamp(a, 2)
    a(f"v_cndmask_b32 v{REM}, 0, v{REM}, vcc")
    a(f"v_and_b32 v{T2}, 0xffff, v{REM}")
    a(f"v_lshrrev_b32 v{REM}, 16, v{REM}")
    a(f"v_lshl_add_u32 v{RB}, v{T2}, 3, v{RB}")
    a(f"v_cmp_lt_u32 s[56:57], {8 * NRND}, v{REM}")
    a(f"v_sub_u32 v{REM}, v{REM}, v{T3}")
    for r in range(NRND):
        a(f"v_cmp_gt_i32 {sr(mask_s(2 * r))}, v{REM}, {8 * r}")
    a("s_nop 1")
    a("s_mov_b32 s58, 0")
    for r in range(NRND):
        m = mask_s(2 * r)
        a(f"s_mov_b64 exec, {sr(m)}")
        a("s_cbranch_execz L2_recs_done")
        a(f"global_load_dwordx4 {vr(rec_reg(r), 4)}, v{RB}, {sr(WS)} offset:{64 * r}")
        a(f"s_mov_b32 s58, {r + 1}")
    a.label("L2_recs_done")
    a("s_mov_b64 exec, -1")
    if "earlytouch" in OPT:
        a(f"s_cmp_lt_u32 s{WAVE}, {TOUCH0}")
        a("s_cbranch_scc1 L2_notouche")
        a(f"s_sub_u32 s25, s{WAVE}, {TOUCH0}")
        a(f"s_cmp_gt_u32 s25, {7 if 'touch64' in OPT else 3}")
        a("s_cbranch_scc1 L2_notouche")
        a("s_lshl_b32 s25, s25, 6")
        a(f"v_add_u32 v{T2}, s25, v{LANE}")
        a(f"v_min_u32 v{T2}, {(NPB * 4 if 'touch64' in OPT else NPB * 2) - 1}, v{T2}")
        a(f"v_lshlrev_b32 v{T2}, {6 if 'touch64' in OPT else 7}, v{T2}")
        a(f"s_mul_i32 s24, {'s23' if 'touchp' in OPT else 's2'}, {NPB * 256}")
        a(f"v_add_u32 v{T2}, s24, v{T2}")
        a(f"global_load_dword v126, v{T2}, {sr(WS)}")
        a("s_add_u32 s58, s58, 1")
        a.label("L2_notouche")
    for r in range(NRND):
        a(f"v_cmp_gt_i32 {sr(mask_s(2 * r + 1))}, v{REM}, {8 * r + 1}")
    if "constearly" not in OPT:
        for i in range(4):
            a(f"v_mov_b32 v{XOP + i}, {N}")
        a(f"v_lshlrev_b32 v{T2}, 4, v{TID}")
        a(f"v_add_u32 v{T2}, {LIST}, v{T2}")
        a(f"ds_write_b128 v{T2}, {vr(XOP, 4)}")
        a(f"ds_write_b128 v{T2}, {vr(XOP, 4)} offset:16384")
        nlast = LISTB // 16 - 2048
        a(f"v_cmp_gt_u32 vcc, {nlast}, v{TID}")
        a("s_and_saveexec_b64 s[32:33], vcc")
        a(f"ds_write_b128 v{T2}, {vr(XOP, 4)} offset:32768")
        a("s_mov_b64 exec, s[32:33]")
        a(f"v_and_b32 v{T0}, 15, v{LANE}")
        a(f"v_lshrrev_b32 v{T1}, 4, v{LANE}")
        a(f"v_lshlrev_b32 v{VG4}, 2, v{T1}")
        a(f"s_mul_i32 s24, s2, {NPB * 128}")
        a(f"v_lshrrev_b32 v{VZ}, 1, v{VJ}")
        a(f"v_add_u32 v{VZ}, s24, v{VZ}")
        a(f"v_mov_b32 v{VONE}, 1")
        a(f"v_mov_b32 v{VLB}, {LIST}")
        a(f"v_lshlrev_b32 v{VQ}, 2, v{LANE}")
        a(f"v_add_u32 v{VQ}, {SCR}, v{VQ}")
        a(f"v_cmp_eq_u32 vcc, 0, v{LANE}")
        a(f"v_mov_b32 v{T3}, {MISC + 8}")
        a(f"v_lshrrev_b32 v{T2}, 2, v{T0}")
        a(f"v_cndmask_b32 v{VQ}, v{VQ}, v{T3}, vcc")
        a(f"v_cmp_eq_u32 vcc, v{T2}, v{T1}")
        a(f"v_mov_b32 v{T3}, 0x3c00")
        a(f"v_and_b32 v{T2}, 3, v{T0}")
        a(f"v_cndmask_b32 v{T3}, 0, v{T3}, vcc")
        for q in range(4):
            a(f"v_cmp_eq_u32 vcc, {q}, v{T2}")
            a("s_nop 1")
            a(f"v_cndmask_b32 v{ASEL + q}, 0, v{T3}, vcc")
        a(f"s_mov_b32 s36, s{WS}")
        a(f"s_and_b32 s37, s{WS + 1}, 0xffff")
        a("s_or_b32 s37, s37, 0x1000000")
        a(f"s_mov_b32 s38, {N + 1}")
        a("s_mov_b32 s39, 0x20000")
        a(f"s_mov_b32 s66, {TINY:#x}")
        a(f"s_mov_b32 s67, {TINY:#x}")
        for k in range(4):
            a(f"v_mov_b32 v{76 + 4 * k + 1}, v{VJ}")
            a(f"v_mov_b32 v{76 + 4 * k + 3}, v{VJ}")
            a(f"v_mov_b32 v{92 + 2 * k}, 0")
            a(f"v_mov_b32 v{92 + 2 * k + 1}, 0")
        nd.stage_addr(NT, NT + 1, NT + 2)
        a(f"s_and_b32 s27, s{WAVE}, 3")
        a(f"s_lshr_b32 s26, s{WAVE}, 2")
        a("s_lshl_b32 s26, s26, 5")
        a(f"v_and_b32 v{T0}, 15, v{LANE}")
        a(f"v_lshrrev_b32 v{T1}, 4, v{LANE}")
        a(f"v_add_u32 v{T2}, s26, v{T0}")
        a(f"v_mul_u32_u24 v{VXA}, {XROW}, v{T2}")
        a(f"v_lshl_add_u32 v{VXA}, v{T1}, 4, v{VXA}")
        a(f"v_add_u32 v{VXA}, {XST}, v{VXA}")
        a(f"v_mul_u32_u24 v{VPA}, {ROW}, v{T2}")
        a(f"v_lshl_add_u32 v{VPA}, v{T1}, 4, v{VPA}")
        a("s_lshl_b32 s30, s27, 6")
        a(f"v_add_u32 v{VPA}, s30, v{VPA}")
        a(f"v_lshrrev_b32 v{T2}, 3, v{T0}")
        a(f"v_and_b32 v{T3}, 1, v{T1}")
        a(f"v_lshl_or_b32 v{T2}, v{T3}, 1, v{T2}")
        a(f"v_xor_b32 v{T2}, s27, v{T2}")
        a(f"v_lshlrev_b32 v{T2}, 5, v{T2}")
        a(f"v_lshrrev_b32 v{T3}, 2, v{T0}")
        a(f"v_lshl_add_u32 v{T3}, v{T1}, 3, v{T3}")
        a(f"v_lshl_add_u32 v{T2}, v{T3}, 7, v{T2}")
        a(f"v_and_b32 v{T3}, 3, v{T0}")
        a(f"v_lshl_add_u32 v{T2}, v{T3}, 3, v{T2}")
        a(f"v_add_u32 v{VWA}, {WST}, v{T2}")
        a(f"v_mov_b32 v{VSH}, {SHIFT_NEG:#x}")
        a(f"v_cmp_gt_u32 s[34:35], 4, v{T0}")
    for n in range(NRND + 1 if "earlytouch" in OPT else NRND, -1, -1) if "wfirst" not in OPT else ():
        if n:
            a(f"s_cmp_lg_u32 s58, {n}")
            a(f"s_cbranch_scc1 L2_wx{n}")
        a(f"s_waitcnt vmcnt({n})")
        if n:
            a("s_branch L2_wxdone")
            a.label(f"L2_wx{n}")
    a.label("L2_wxdone")
    stamp(a, 3)
    nd.stage_write(NT, NT + 1)
    a(f"s_mov_b32 s24, {LOG2E_NEG:#x}")
    a(f"v_lshlrev_b32 v{CV}, 16, v{CV + 2}")
    a(f"v_and_b32 v{CV + 1}, 0xffff0000, v{CV + 2}")
    a(f"v_lshlrev_b32 v{CV + 2}, 16, v{CV + 3}")
    a(f"v_and_b32 v{CV + 3}, 0xffff0000, v{CV + 3}")
    for i in range(4):
        a(f"v_mul_f32 v{CV + i}, s24, v{CV + i}")
    a("s_waitcnt lgkmcnt(0)")
    a("s_barrier")
    stamp(a, 4)
    a("s_cmp_eq_u64 s[56:57], 0")
    a("s_cbranch_scc1 L2_noflag")
    a(f"v_mov_b32 v{T2}, 0")
    a(f"ds_write_b32 v{T2}, v{VONE} offset:{MISC}")
    a.label("L2_noflag")
    A0, BA, BB_ = 32, 48, 56
    DP0, DU0 = 64, 68

    def pu_block(tag, two):
        a(f"ds_read_b128 {vr(BA, 4)}, v{VXA}")
        a(f"ds_read_b128 {vr(BA + 4, 4)}, v{VXA} offset:64")
        for m in range(2):
            for ks in range(2):
                for hh in range(2):
                    a(f"ds_read_b64_tr_b16 {vr(A0 + (m * 2 + ks) * 4 + hh * 2, 2)}, v{VWA} offset:{m * 8192 + ks * 4096 + hh * 512}")
        if two:
            a(f"ds_read_b128 {vr(BB_, 4)}, v{VXA} offset:{16 * XROW}")
            a(f"ds_read_b128 {vr(BB_ + 4, 4)}, v{VXA} offset:{16 * XROW + 64}")
        a(f"s_mov_b32 s24, {LOG2E_NEG:#x}")
        a(f"s_waitcnt lgkmcnt({2 if two else 0})")
        a(f"v_mfma_f32_16x16x32_bf16 {vr(DP0, 4)}, {vr(A0, 4)}, {vr(BA, 4)}, 0")
        a(f"v_mfma_f32_16x16x32_bf16 {vr(DU0, 4)}, {vr(A0 + 8, 4)}, {vr(BA, 4)}, 0")
        a(f"v_mfma_f32_16x16x32_bf16 {vr(DP0, 4)}, {vr(A0 + 4, 4)}, {vr(BA + 4, 4)}, {vr(DP0, 4)}")
        a(f"v_mfma_f32_16x16x32_bf16 {vr(DU0, 4)}, {vr(A0 + 12, 4)}, {vr(BA + 4, 4)}, {vr(DU0, 4)}")
        if two:
            a("s_waitcnt lgkmcnt(0)")
            a(f"v_mfma_f32_16x16x32_bf16 {vr(BA, 4)}, {vr(A0, 4)}, {vr(BB_, 4)}, 0")
            a(f"v_mfma_f32_16x16x32_bf16 {vr(BA + 4, 4)}, {vr(A0 + 8, 4)}, {vr(BB_, 4)}, 0")
            a(f"v_mfma_f32_16x16x32_bf16 {vr(BA, 4)}, {vr(A0 + 4, 4)}, {vr(BB_ + 4, 4)}, {vr(BA, 4)}")
            a(f"v_mfma_f32_16x16x32_bf16 {vr(BA + 4, 4)}, {vr(A0 + 12, 4)}, {vr(BB_ + 4, 4)}, {vr(BA + 4, 4)}")
            a("s_nop 3")
        else:
            a("s_mov_b64 exec, s[34:35]")
            a("s_nop 6")
        for i in range(4):
            a(f"v_fma_f32 v{DP0 + i}, v{DP0 + i}, s24, v{VSH}")
        a(f"ds_write_b128 v{VPA}, {vr(DP0, 4)} offset:{PL}")
        a(f"ds_write_b128 v{VPA}, {vr(DU0, 4)} offset:{PART0}")
        if two:
            for i in range(4):
                a(f"v_fma_f32 v{BA + i}, v{BA + i}, s24, v{VSH}")
            a(f"ds_write_b128 v{VPA}, {vr(BA, 4)} offset:{PL + 16 * ROW}")
            a(f"ds_write_b128 v{VPA}, {vr(BA + 4, 4)} offset:{PART0 + 16 * ROW}")
        else:
            a("s_mov_b64 exec, -1")

    a(f"s_cmp_gt_u32 s{WAVE}, 11")
    a("s_cbranch_scc1 L2_pu_last")
    pu_block("a", True)
    a("s_branch L2_pu_end")
    a.label("L2_pu_last")
    pu_block("b", False)
    a.label("L2_pu_end")
    if "constearly" in OPT:
        a(f"v_and_b32 v{T0}, 15, v{LANE}")
        a(f"v_lshrrev_b32 v{T1}, 4, v{LANE}")
        a(f"v_lshlrev_b32 v{VG4}, 2, v{T1}")
        a(f"s_mul_i32 s24, s2, {NPB * 128}")
        a(f"v_lshrrev_b32 v{VZ}, 1, v{VJ}")
        a(f"v_add_u32 v{VZ}, s24, v{VZ}")
        a(f"v_lshlrev_b32 v{VQ}, 2, v{LANE}")
        a(f"v_add_u32 v{VQ}, {SCR}, v{VQ}")
        a(f"v_cmp_eq_u32 vcc, 0, v{LANE}")
        a(f"v_mov_b32 v{T3}, {MISC + 8}")
        a(f"v_lshrrev_b32 v{T2}, 2, v{T0}")
        a(f"v_cndmask_b32 v{VQ}, v{VQ}, v{T3}, vcc")
        a(f"v_cmp_eq_u32 vcc, v{T2}, v{T1}")
        a(f"v_mov_b32 v{T3}, 0x3c00")
        a(f"v_and_b32 v{T2}, 3, v{T0}")
        a(f"v_cndmask_b32 v{T3}, 0, v{T3}, vcc")
        for q in range(4):
            a(f"v_cmp_eq_u32 vcc, {q}, v{T2}")
            a("s_nop 1")
            a(f"v_cndmask_b32 v{ASEL + q}, 0, v{T3}, vcc")
        a(f"s_mov_b32 s36, s{WS}")
        a(f"s_and_b32 s37, s{WS + 1}, 0xffff")
        a("s_or_b32 s37, s37, 0x1000000")
        a(f"s_mov_b32 s38, {N + 1}")
        a("s_mov_b32 s39, 0x20000")
        a(f"s_mov_b32 s66, {TINY:#x}")
        a(f"s_mov_b32 s67, {TINY:#x}")
        for k in range(4):
            a(f"v_mov_b32 v{76 + 4 * k + 1}, v{VJ}")
            a(f"v_mov_b32 v{76 + 4 * k + 3}, v{VJ}")
            a(f"v_mov_b32 v{92 + 2 * k}, 0")
            a(f"v_mov_b32 v{92 + 2 * k + 1}, 0")
    a(f"s_movk_i32 s59, {COL}")
    if "earlytouch" in OPT:
        a(f"s_sub_u32 s24, s{WAVE}, {TOUCH0}")
        a(f"s_cmp_lt_u32 s24, {8 if 'touch64' in OPT else 4}")
        a("s_cbranch_scc0 L2_wall")
        a("s_waitcnt vmcnt(1)")
        a("s_branch L2_wall2")
        a.label("L2_wall")
        a("s_waitcnt vmcnt(0)")
        a.label("L2_wall2")
    else:
        a("s_waitcnt vmcnt(0)")
    stamp(a, 5)
    if "ttouch" in OPT and "earlytouch" not in OPT:
        a(f"s_cmp_lt_u32 s{WAVE}, {TOUCH0}")
        a("s_cbranch_scc1 L2_notouch")
        a(f"s_sub_u32 s25, s{WAVE}, {TOUCH0}")
        a(f"s_cmp_gt_u32 s25, 3")
        a("s_cbranch_scc1 L2_notouch")
        a("s_lshl_b32 s25, s25, 6")
        a(f"v_add_u32 v{T2}, s25, v{LANE}")
        a(f"v_min_u32 v{T2}, {NPB * 2 - 1}, v{T2}")
        a(f"v_lshlrev_b32 v{T2}, 7, v{T2}")
        a(f"s_mul_i32 s24, s2, {NPB * 256}")
        a(f"v_add_u32 v{T2}, s24, v{T2}")
        a(f"global_load_dword v126, v{T2}, {sr(WS)}")
        a.label("L2_notouch")
    for r in range(NRND):
        if r >= 2:
            a(f"s_cmp_eq_u64 {sr(mask_s(2 * r))}, 0")
            a(f"s_cbranch_scc1 L2_hdone")
        for s_ in range(2):
            k = 2 * r + s_
            hi = rec_reg(r) + 2 * s_ + 1
            a(f"s_mov_b64 exec, {sr(mask_s(k))}")
            a(f"v_lshlrev_b32 v{T1}, 2, v{hi}")
            a(f"ds_add_rtn_u32 v{rank_reg(k)}, v{T1}, v{VONE} offset:{HIST}")
            a(f"v_mad_u32_u24 v{hi}, v{hi}, s59, v{VLB}")
    a.label("L2_hdone")
    a("s_mov_b64 exec, -1")
    a("s_waitcnt lgkmcnt(0)")
    for r in range(NRND):
        if r >= 2:
            a(f"s_cmp_eq_u64 {sr(mask_s(2 * r))}, 0")
            a(f"s_cbranch_scc1 L2_sdone")
        for s_ in range(2):
            k = 2 * r + s_
            lo = rec_reg(r) + 2 * s_
            hi = lo + 1
            a(f"s_mov_b64 exec, {sr(mask_s(k))}")
            a(f"v_min_u32 v{rank_reg(k)}, 63, v{rank_reg(k)}")
            a(f"v_lshl_add_u32 v{hi}, v{rank_reg(k)}, 2, v{hi}")
            a(f"ds_write_b32 v{hi}, v{lo}")
    a.label("L2_sdone")
    a("s_mov_b64 exec, -1")
    a("s_waitcnt lgkmcnt(0)")
    stamp(a, 6)
    a("s_barrier")
    a(f"s_cmp_eq_u32 s{WAVE}, 15")
    a("s_cbranch_scc0 L2_b2")

    a.label("L2_order")
    a("s_setprio 3")
    CN, BN, RK = 64, 68, 72
    S0 = 56
    a(f"v_lshlrev_b32 v{T0}, 4, v{LANE}")
    a(f"ds_read_b128 {vr(CN, 4)}, v{T0} offset:{HIST}")
    a(f"v_lshrrev_b32 v{T1}, 5, v{LANE}")
    a(f"v_and_b32 v{T2}, 31, v{LANE}")
    a(f"v_cmp_gt_u32 vcc, 25, v{T2}")
    a(f"v_lshlrev_b32 v{T3}, 8, v{T1}")
    a(f"v_add_u32 v{T3}, {63 * 4}, v{T3}")
    a(f"v_mov_b32 v{S0}, {(128 + 63) * 4}")
    a(f"v_cndmask_b32 v{T3}, v{S0}, v{T3}, vcc")
    a(f"v_lshlrev_b32 v{T2}, 2, v{T2}")
    a(f"v_mul_u32_u24 v{T1}, {4 * COL}, v{LANE}")
    a(f"v_lshl_or_b32 v{T1}, v{T1}, 16, v{T2}")
    a("s_waitcnt lgkmcnt(0)")
    a(f"v_max3_u32 v{S0 + 1}, v{CN}, v{CN + 1}, v{CN + 2}")
    a(f"v_max_u32 v{S0 + 1}, v{S0 + 1}, v{CN + 3}")
    for i in range(4):
        a(f"v_min_u32 v{BN + i}, 63, v{CN + i}")
        a(f"v_lshlrev_b32 v{BN + i}, 2, v{BN + i}")
        a(f"v_sub_u32 v{BN + i}, v{T3}, v{BN + i}")
        a(f"ds_add_rtn_u32 v{RK + i}, v{BN + i}, v{VONE} offset:{HIST2}")
    a(f"ds_read_b128 {vr(S0 + 4, 4)}, v{T0} offset:{HIST2}")
    a(f"v_cmp_lt_u32 vcc, {CAPK}, v{S0 + 1}")
    a("s_cbranch_vccz L2_nocap")
    a(f"v_mov_b32 v{S0}, 0")
    a(f"ds_write_b32 v{S0}, v{VONE} offset:{MISC}")
    a.label("L2_nocap")
    a("s_waitcnt lgkmcnt(0)")
    a(f"v_add_u32 v{S0 + 1}, v{S0 + 4}, v{S0 + 5}")
    a(f"v_add_u32 v{S0 + 2}, v{S0 + 1}, v{S0 + 6}")
    a(f"v_add_u32 v{S0 + 3}, v{S0 + 2}, v{S0 + 7}")
    a(f"v_mov_b32 v{S0}, v{S0 + 3}")
    wave_scan(a, S0)
    a(f"v_sub_u32 v{S0}, v{S0}, v{S0 + 3}")
    a(f"v_add_u32 v{S0 + 3}, v{S0}, v{S0 + 2}")
    a(f"v_add_u32 v{S0 + 2}, v{S0}, v{S0 + 1}")
    a(f"v_add_u32 v{S0 + 1}, v{S0}, v{S0 + 4}")
    a(f"ds_write_b128 v{T0}, {vr(S0, 4)} offset:{BASE2}")
    for i in range(4):
        a(f"ds_read_b32 v{S0 + 4 + i}, v{BN + i} offset:{BASE2}")
    a("s_waitcnt lgkmcnt(0)")
    for i in range(4):
        a(f"v_add_u32 v{RK + i}, v{RK + i}, v{S0 + 4 + i}")
        a(f"v_lshlrev_b32 v{RK + i}, 2, v{RK + i}")
        a(f"v_add_u32 v{S0}, {i * ((COL << 16) + 1)}, v{T1}")
        a(f"ds_write_b32 v{RK + i}, v{CN + i} offset:{WCNT}")
        a(f"ds_write_b32 v{RK + i}, v{S0} offset:{WKEY}")
    a("s_setprio 0")
    a.label("L2_b2")
    a("s_waitcnt lgkmcnt(0)")
    stamp(a, 7)
    a("s_barrier")
    stamp(a, 8)
    if "noprio" not in OPT:
        a("s_setprio 3")
    NP = 4
    RA = 4
    PR = 8
    ACC = 12
    UR = 16
    DN = 20
    NM = 24
    DA = 28
    VB = 44
    IX = 76
    EV = 92
    VL = 100
    VFL = 101
    VRN = 103
    VWL = 125
    SC, SNL, SI = 61, 62, 63
    STR = 64
    SP, SDONE = 58, 59
    SODD, SHALF = 69, 57
    VOC, VON = 104, 105
    a(f"s_movk_i32 s68, {ROW}")
    assert IX == 76 and EV == 92
    a(f"v_mov_b32 v{T0}, 0")
    a(f"ds_read_b32 v{T1}, v{T0} offset:{MISC}")
    a(f"v_lshlrev_b32 v{T2}, 4, v{LANE}")
    a(f"ds_read_b32 v{VWL}, v{T2} offset:{WCNT}")
    a(f"s_lshl_b32 s26, s{WAVE}, 4")
    a(f"v_add_u32 v{T2}, s26, v{VG4}")
    a(f"ds_read_b32 v{T3}, v{T2} offset:{WKEY}")
    a("s_waitcnt lgkmcnt(0)")
    a(f"v_readfirstlane_b32 s24, v{T1}")
    a(f"v_max_u32 v{VWL}, {2 * RA}, v{VWL}")
    a(f"v_lshrrev_b32 v{VL}, 16, v{T3}")
    a(f"v_add_u32 v{VL}, {LIST}, v{VL}")
    a("s_cmp_lg_u32 s24, 0")
    a("s_cbranch_scc1 L2_slow")
    for k in range(RA):
        a(f"ds_read_u16 v{IX + 4 * k}, v{VL} offset:{8 * k}")
        a(f"ds_read_u16 v{IX + 4 * k + 2}, v{VL} offset:{8 * k + 4}")
    a(f"v_and_b32 v{VRN}, 0xffff, v{T3}")
    a(f"v_mad_u32_u24 v{VRN}, v{VRN}, s68, v{VJ}")
    a(f"v_mov_b32 v{VFL}, v{VRN}")
    a(f"s_mov_b32 s{SP}, 0")
    a(f"s_mov_b32 s{SDONE}, 0")
    a(f"s_mov_b32 s28, {LOG2E_NEG:#x}")
    a(f"s_mov_b32 s29, {LOG2E_NEG:#x}")
    a("s_mov_b32 s30, 1.0")
    a("s_mov_b32 s31, 1.0")
    a(f"v_readlane_b32 s{SNL}, v{VWL}, s{WAVE}")
    a(f"s_mov_b32 s{STR}, {RA}")
    a(f"s_mov_b32 s{SI}, s{WAVE}")
    a(f"s_mov_b32 s{SHALF}, 0")
    a(f"s_and_b32 s{SODD}, s{SNL}, 1")
    a(f"s_add_u32 s{SC}, s{SNL}, 1")
    a(f"s_lshr_b32 s{SC}, s{SC}, 1")
    a("s_waitcnt lgkmcnt(0)")
    for k in range(RA - 1):
        for h in range(2):
            a(f"buffer_load_dwordx4 {vr(VB + 8 * k + 4 * h, 4)}, {vr(IX + 4 * k + 2 * h, 2)}, s[36:39], 0 idxen offen")
    for k in range(RA):
        a(f"ds_read_u16_d16_hi v{EV + 2 * k}, v{VL} offset:{8 * k + 2}")
        a(f"ds_read_u16_d16_hi v{EV + 2 * k + 1}, v{VL} offset:{8 * k + 6}")
    a(f"ds_read_b128 {vr(PR, 4)}, v{VRN} offset:{PL}")
    a(f"ds_read_b128 {vr(UR, 4)}, v{VRN} offset:{PART0}")
    for i in range(4):
        a(f"v_mov_b32 v{ACC + i}, 0")
    if "noprio" not in OPT:
        a("s_setprio 2")
    a("s_waitcnt lgkmcnt(0)")
    stamp(a, 9)

    def mfma1(k, h):
        d = DA + 8 * (k & 1)
        a(f"v_mfma_f32_16x16x32_f16 {vr(d + 4 * h, 4)}, {vr(ASEL, 4)}, {vr(VB + 8 * k + 4 * h, 4)}, {vr(PR, 4)}")

    def tail1(k):
        d = DA + 8 * (k & 1)
        vb = VB + 8 * k
        for h in range(2):
            a(f"v_pk_mul_f32 {vr(DN + 2 * h, 2)}, {vr(d + 2 * h, 2)}, {vr(d + 4 + 2 * h, 2)}")
        for h in range(2):
            a(f"v_pk_mul_f32 {vr(NM + 2 * h, 2)}, {vr(vb + 2 * h, 2)}, {vr(d + 4 + 2 * h, 2)}")
        for h in range(2):
            a(f"v_pk_fma_f32 {vr(NM + 2 * h, 2)}, {vr(vb + 4 + 2 * h, 2)}, {vr(d + 2 * h, 2)}, {vr(NM + 2 * h, 2)}")

    def rcp2(h):
        a(f"v_rcp_f32 v{DN + 2 * h}, v{DN + 2 * h}")
        a(f"v_rcp_f32 v{DN + 2 * h + 1}, v{DN + 2 * h + 1}")

    def tail2():
        a(f"v_pk_fma_f32 {vr(ACC, 2)}, {vr(NM, 2)}, {vr(DN, 2)}, {vr(ACC, 2)}")
        a(f"v_pk_fma_f32 {vr(ACC + 2, 2)}, {vr(NM + 2, 2)}, {vr(DN + 2, 2)}, {vr(ACC + 2, 2)}")

    def read_idx(k):
        a(f"ds_read_u16 v{IX + 4 * k}, v{VL} offset:{8 * (RA + k)}")
        a(f"ds_read_u16 v{IX + 4 * k + 2}, v{VL} offset:{8 * (RA + k) + 4}")

    def read_e(k):
        a(f"ds_read_u16_d16_hi v{EV + 2 * k}, v{VL} offset:{8 * (RA + k) + 2}")
        a(f"ds_read_u16_d16_hi v{EV + 2 * k + 1}, v{VL} offset:{8 * (RA + k) + 6}")

    def gather(k):
        p = (k - 1) % NP
        if "nogather" not in OPT:
            for h in range(2):
                a(f"buffer_load_dwordx4 {vr(VB + 8 * p + 4 * h, 4)}, {vr(IX + 4 * p + 2 * h, 2)}, s[36:39], 0 idxen offen")

    def front(k):
        d = DA + 8 * (k & 1)
        ep = EV + 2 * k
        for h in range(2):
            osel = "op_sel:[1,0,0] op_sel_hi:[1,1,1]" if h else "op_sel_hi:[0,1,1]"
            a(f"v_pk_fma_f32 {vr(d + 4 * h, 2)}, {vr(ep, 2)}, {vr(CV, 2)}, {vr(d + 4 * h, 2)} {osel}")
            a(f"v_pk_fma_f32 {vr(d + 4 * h + 2, 2)}, {vr(ep, 2)}, {vr(CV + 2, 2)}, {vr(d + 4 * h + 2, 2)} {osel}")
        read_e(k)
        for i in range(8):
            a(f"v_exp_f32_e64 v{d + i}, v{d + i} clamp")
            if i == 5:
                a(f"v_pk_add_f32 {vr(d, 2)}, {vr(d, 2)}, s[66:67]")
        a(f"v_pk_add_f32 {vr(d + 2, 2)}, {vr(d + 2, 2)}, s[66:67]")
        a(f"v_pk_add_f32 {vr(d + 4, 2)}, {vr(d + 4, 2)}, s[66:67]")
        a(f"v_pk_add_f32 {vr(d + 6, 2)}, {vr(d + 6, 2)}, s[66:67]")

    def flush(k):
        a(f"s_cmp_lg_u32 s{SP}, 0")
        a(f"s_cbranch_scc1 L2_fin{k}")
        a(f"v_pk_fma_f32 {vr(UR, 2)}, {vr(ACC, 2)}, s[66:67], {vr(UR, 2)}")
        a(f"v_pk_fma_f32 {vr(UR + 2, 2)}, {vr(ACC + 2, 2)}, s[66:67], {vr(UR + 2, 2)}")
        a(f"ds_write_b128 v{VFL}, {vr(UR, 4)} offset:{PART0}")
        a(f"ds_add_u32 v{VQ}, v{VONE} offset:4")
        a(f"s_branch L2_fld{k}")
        a.label(f"L2_fin{k}")
        a(f"s_cmp_lg_u32 s{SDONE}, 0")
        a(f"s_cbranch_scc1 L2_rdy{k}")
        a("s_mov_b32 s25, 0")
        a.label(f"L2_spin{k}")
        a(f"v_mov_b32 v{T2}, 0")
        a(f"ds_read_b32 v{T2}, v{T2} offset:{MISC + 12}")
        a("s_waitcnt lgkmcnt(0)")
        a(f"v_readfirstlane_b32 s24, v{T2}")
        a("s_nop 3")
        a(f"s_cmp_ge_u32 s24, {NWIN // 2}")
        a(f"s_cbranch_scc1 L2_seen{k}")
        a("s_sleep 2")
        a("s_add_u32 s25, s25, 1")
        a("s_cmp_lt_u32 s25, 0x400000")
        a(f"s_cbranch_scc1 L2_spin{k}")
        a.label(f"L2_seen{k}")
        a(f"s_mov_b32 s{SDONE}, 1")
        a.label(f"L2_rdy{k}")
        a(f"ds_read_b128 {vr(UR, 4)}, v{VFL} offset:{PART0}")
        a("s_waitcnt lgkmcnt(0)")
        a(f"v_pk_fma_f32 {vr(UR, 2)}, {vr(ACC, 2)}, s[66:67], {vr(UR, 2)}")
        a(f"v_pk_fma_f32 {vr(UR + 2, 2)}, {vr(ACC + 2, 2)}, s[66:67], {vr(UR + 2, 2)}")
        a(f"v_pk_mul_f32 {vr(DN, 2)}, {vr(UR, 2)}, s[28:29]")
        a(f"v_pk_mul_f32 {vr(DN + 2, 2)}, {vr(UR + 2, 2)}, s[28:29]")
        for i in range(4):
            a(f"v_exp_f32 v{DN + i}, v{DN + i}")
        a(f"v_pk_add_f32 {vr(DN, 2)}, {vr(DN, 2)}, s[30:31]")
        a(f"v_pk_add_f32 {vr(DN + 2, 2)}, {vr(DN + 2, 2)}, s[30:31]")
        for i in range(4):
            a(f"v_rcp_f32 v{DN + i}, v{DN + i}")
        a(f"v_pk_mul_f32 {vr(UR, 2)}, {vr(UR, 2)}, {vr(DN, 2)}")
        a(f"v_pk_mul_f32 {vr(UR + 2, 2)}, {vr(UR + 2, 2)}, {vr(DN + 2, 2)}")
        a(f"v_cvt_pk_bf16_f32 v{NM}, v{UR}, v{UR + 1}")
        a(f"v_cvt_pk_bf16_f32 v{NM + 1}, v{UR + 2}, v{UR + 3}")
        a(f"global_store_dwordx2 v{VOC}, {vr(NM, 2)}, {sr(OUT)}{STO}")
        a.label(f"L2_fld{k}")

    VW = 2 * (RA - 2)
    a(f"s_cmp_eq_u32 s{SC}, s{STR}")
    a("s_cbranch_scc1 L2_pop_first")
    a.label("L2_first_cont")
    if "nogather" not in OPT:
        a(f"s_waitcnt vmcnt({VW})")
    mfma1(0, 0)
    mfma1(0, 1)
    read_idx(0)
    a("s_nop 2")
    gather(0)
    a("s_branch L2_mid0")

    a.label("L2_loop")
    for k in range(NP):
        pk = (k - 1) % NP
        a.label(f"L2_top{k}")
        a(f"s_cmp_eq_u32 s{SC}, s{STR}")
        a(f"s_cbranch_scc1 L2_ev{k}")
        a.label(f"L2_cont{k}")
        tail1(pk)
        if "nogather" not in OPT:
            a(f"s_waitcnt vmcnt({VW})")
        mfma1(k, 0)
        rcp2(0)
        mfma1(k, 1)
        rcp2(1)
        read_idx(k)
        tail2()
        a("s_waitcnt lgkmcnt(4)")
        gather(k)
        a.label(f"L2_mid{k}")
        front(k)
        a(f"s_sub_u32 s{SC}, s{SC}, 1")
        if k == NP - 1:
            a(f"v_add_u32 v{VL}, {8 * NP}, v{VL}")
            a("s_branch L2_loop")

    def pop(k, cont):
        a(f"ds_add_rtn_u32 v{T2}, v{VQ}, v{VONE}")
        a(f"s_mov_b32 s{STR}, s{SODD}")
        a("s_waitcnt lgkmcnt(0)")
        a(f"v_readfirstlane_b32 s{SI}, v{T2}")
        a(f"s_mov_b32 s{SNL}, 0")
        a(f"v_mov_b32 v{VL}, {LIST + DUMMY_COL - 8 * (RA + k)}")
        a("s_nop 1")
        a(f"s_cmp_lt_u32 s{SI}, {NWIN}")
        a(f"s_cbranch_scc0 {cont}")
        a(f"s_lshl_b32 s26, s{SI}, 4")
        a(f"v_add_u32 v{T2}, s26, v{VG4}")
        a(f"ds_read_b32 v{T3}, v{T2} offset:{WKEY}")
        a(f"v_readlane_b32 s{SNL}, v{VWL}, s{SI}")
        a("s_waitcnt lgkmcnt(0)")
        a(f"v_and_b32 v{VRN}, 0xffff, v{T3}")
        a(f"v_lshrrev_b32 v{VL}, 16, v{T3}")
        a(f"v_lshl_add_u32 v{VON}, v{VRN}, 7, v{VZ}")
        a(f"v_mad_u32_u24 v{VRN}, v{VRN}, s68, v{VJ}")
        a(f"v_add_u32 v{VL}, {LIST - 8 * (RA + k)}, v{VL}")
        a(f"s_branch {cont}")

    a.label("L2_pop_first")
    pop(0, "L2_first_cont")
    for k in range(NP):
        pk = (k - 1) % NP
        a.label(f"L2_ev{k}")
        a(f"s_cmp_eq_u32 s{STR}, 0")
        a(f"s_cbranch_scc1 L2_sw{k}")
        a(f"s_cmp_eq_u32 s{STR}, 1")
        a(f"s_cbranch_scc1 L2_half{k}")
        pop(k, f"L2_cont{k}")
        a.label(f"L2_half{k}")
        tail1(pk)
        if "nogather" not in OPT:
            a(f"s_waitcnt vmcnt({VW})")
        mfma1(k, 0)
        rcp2(0)
        rcp2(1)
        read_idx(k)
        tail2()
        a("s_waitcnt lgkmcnt(4)")
        gather(k)
        d = DA + 8 * (k & 1)
        ep = EV + 2 * k
        a(f"v_pk_fma_f32 {vr(d, 2)}, {vr(ep, 2)}, {vr(CV, 2)}, {vr(d, 2)} op_sel_hi:[0,1,1]")
        a(f"v_pk_fma_f32 {vr(d + 2, 2)}, {vr(ep, 2)}, {vr(CV + 2, 2)}, {vr(d + 2, 2)} op_sel_hi:[0,1,1]")
        read_e(k)
        for i in range(4):
            a(f"v_exp_f32_e64 v{d + i}, v{d + i} clamp")
        a(f"v_pk_add_f32 {vr(d, 2)}, {vr(d, 2)}, s[66:67]")
        a(f"v_pk_add_f32 {vr(d + 2, 2)}, {vr(d + 2, 2)}, s[66:67]")
        a(f"s_mov_b32 s{SC}, 0")
        a(f"s_mov_b32 s{STR}, 0")
        a(f"s_mov_b32 s{SHALF}, 1")
        if k == NP - 1:
            a(f"v_add_u32 v{VL}, {8 * NP}, v{VL}")
        a(f"s_branch L2_top{(k + 1) % NP}")
        a.label(f"L2_sw{k}")
        a(f"s_cmp_lg_u32 s{SHALF}, 0")
        a(f"s_cbranch_scc1 L2_swh{k}")
        tail1(pk)
        rcp2(0)
        rcp2(1)
        a("s_nop 0")
        tail2()
        a(f"s_branch L2_swf{k}")
        a.label(f"L2_swh{k}")
        dp = DA + 8 * (pk & 1)
        vbp = VB + 8 * pk
        for i in range(4):
            a(f"v_rcp_f32 v{dp + i}, v{dp + i}")
        a(f"s_mov_b32 s{SHALF}, 0")
        a(f"v_pk_fma_f32 {vr(ACC, 2)}, {vr(dp, 2)}, {vr(vbp, 2)}, {vr(ACC, 2)}")
        a(f"v_pk_fma_f32 {vr(ACC + 2, 2)}, {vr(dp + 2, 2)}, {vr(vbp + 2, 2)}, {vr(ACC + 2, 2)}")
        a.label(f"L2_swf{k}")
        flush(k)
        a(f"s_cmp_eq_u32 s{SNL}, 0")
        a("s_cbranch_scc1 L2_exit")
        a(f"ds_read_b128 {vr(PR, 4)}, v{VRN} offset:{PL}")
        a(f"ds_read_b128 {vr(UR, 4)}, v{VRN} offset:{PART0}")
        for i in range(4):
            a(f"v_mov_b32 v{ACC + i}, 0")
        a(f"v_mov_b32 v{VFL}, v{VRN}")
        a(f"v_mov_b32 v{VOC}, v{VON}")
        a(f"s_cmp_ge_u32 s{SI}, {NWIN // 2}")
        a(f"s_cselect_b32 s{SP}, 1, 0")
        a(f"s_and_b32 s{SODD}, s{SNL}, 1")
        a(f"s_add_u32 s{SC}, s{SNL}, 1")
        a(f"s_lshr_b32 s{SC}, s{SC}, 1")
        a(f"s_mov_b32 s{STR}, {RA}")
        if "noprio" not in OPT:
            a(f"s_cmp_lt_u32 s{SI}, {PRIO_B}")
            a(f"s_cbranch_scc1 L2_p1_{k}")
            a("s_setprio 0")
            a(f"s_branch L2_pd_{k}")
            a.label(f"L2_p1_{k}")
            a(f"s_cmp_lt_u32 s{SI}, {PRIO_A}")
            a(f"s_cbranch_scc1 L2_pd_{k}")
            a("s_setprio 1")
            a.label(f"L2_pd_{k}")
        a(f"s_cmp_eq_u32 s{SC}, {RA}")
        a(f"s_cbranch_scc0 L2_sw2_{k}")
        pop(k, f"L2_sw2_{k}")
        a.label(f"L2_sw2_{k}")
        if "nogather" not in OPT:
            a(f"s_waitcnt vmcnt({VW}) lgkmcnt(0)")
        else:
            a("s_waitcnt lgkmcnt(0)")
        mfma1(k, 0)
        mfma1(k, 1)
        read_idx(k)
        a("s_nop 2")
        gather(k)
        a(f"s_branch L2_mid{k}")

    a.label("L2_exit")
    stamp(a, 10)
    stamp(a, 11)
    stamp(a, 12)
    if STAMPS or "dbgs" in OPT:
        a("s_waitcnt vmcnt(0)")
    stamp(a, 13)
    stamp(a, 21, True)
    stamp_flush(a, 1)
    a("s_endpgm")

    a.label("L2_slow")
    SSC, SCN, SRI = 61, 62, 63
    a(f"v_lshlrev_b32 v{T0}, 2, v{LANE}")
    a(f"v_lshlrev_b32 v{T1}, 1, v{LANE}")
    a(f"v_add_u32 v{T1}, {128 * 128}, v{T1}")
    a(f"global_load_ushort v{T2}, v{T1}, {sr(GW)}")
    a(f"s_mov_b32 s24, {LOG2E_NEG:#x}")
    a("s_waitcnt vmcnt(0) lgkmcnt(0)")
    a(f"v_lshlrev_b32 v{T2}, 16, v{T2}")
    a(f"v_mul_f32 v8, s24, v{T2}")
    a(f"s_mov_b32 s{SSC}, 0")
    a.label("L2_slow_seg")
    a(f"s_cmp_ge_u32 s{SSC}, {NC}")
    a("s_cbranch_scc1 L2_done")
    a(f"s_lshl_b32 s24, s{SSC}, 8")
    a("s_add_u32 s24, s24, s2")
    a("s_lshl_b32 s24, s24, 2")
    a(f"s_add_u32 s24, s24, {SEG_OFF}")
    a(f"v_mov_b32 v{T1}, s24")
    a(f"global_load_dword v{T2}, v{T1}, {sr(WS)}")
    a("s_waitcnt vmcnt(0)")
    a(f"v_readfirstlane_b32 s25, v{T2}")
    a("s_nop 3")
    a(f"s_lshr_b32 s{SCN}, s25, 16")
    a("s_and_b32 s25, s25, 0xffff")
    a(f"s_mul_i32 s26, s{SSC}, {EPC}")
    a("s_add_u32 s26, s26, s25")
    a("s_lshl_b32 s26, s26, 3")
    a(f"s_add_u32 s{SRI}, s26, {REC_OFF}")
    a.label("L2_slow_rec")
    a(f"s_cmp_eq_u32 s{SCN}, 0")
    a("s_cbranch_scc1 L2_slow_next")
    a(f"v_mov_b32 v{T1}, s{SRI}")
    a(f"global_load_dwordx2 v[10:11], v{T1}, {sr(WS)}")
    a(f"s_add_u32 s{SRI}, s{SRI}, 8")
    a(f"s_sub_u32 s{SCN}, s{SCN}, 1")
    a("s_waitcnt vmcnt(0)")
    a("v_and_b32 v14, 127, v11")
    a("v_and_b32 v15, 15, v14")
    a("s_nop 0")
    a("v_readfirstlane_b32 s25, v15")
    a("s_nop 3")
    a(f"s_cmp_lg_u32 s25, s{WAVE}")
    a("s_cbranch_scc1 L2_slow_rec")
    a("v_and_b32 v18, 0xffff, v10")
    a(f"v_mov_b32 v19, v{T0}")
    a("buffer_load_dword v13, v[18:19], s[36:39], 0 idxen offen")
    a(f"v_mul_u32_u24 v14, {ROW}, v14")
    a(f"v_add_u32 v14, v14, v{T0}")
    a(f"ds_read_b32 v15, v14 offset:{PL}")
    a(f"ds_read_b32 v17, v14 offset:{PART0}")
    a("v_and_b32 v11, 0xffff0000, v10")
    a("s_waitcnt vmcnt(0) lgkmcnt(0)")
    a("v_cvt_f32_f16 v16, v13")
    a("v_add_f32 v16, v16, v15")
    a("v_fmac_f32 v16, v11, v8")
    a("v_exp_f32 v16, v16")
    a(f"s_mov_b32 s25, {TINY:#x}")
    a("v_add_f32 v16, s25, v16")
    a("v_rcp_f32 v16, v16")
    a("s_nop 0")
    a("v_mul_f32 v16, s25, v16")
    a("v_fmac_f32 v17, v16, v13")
    a(f"ds_write_b32 v14, v17 offset:{PART0}")
    a("s_waitcnt lgkmcnt(0)")
    a("s_branch L2_slow_rec")
    a.label("L2_slow_next")
    a(f"s_add_u32 s{SSC}, s{SSC}, 1")
    a("s_branch L2_slow_seg")

    a.label("L2_done")
    stamp(a, 10)
    a("s_setprio 0")
    a(f"v_lshrrev_b32 v{T0}, 4, v{TID}")
    a(f"v_and_b32 v{T1}, 15, v{TID}")
    a(f"v_mul_u32_u24 v{T2}, {ROW}, v{T0}")
    a(f"v_lshl_add_u32 v{T2}, v{T1}, 4, v{T2}")
    a(f"s_mul_i32 s24, s2, {NPB * 128}")
    a(f"v_lshlrev_b32 v{T3}, 7, v{T0}")
    a(f"v_lshl_add_u32 v{T3}, v{T1}, 3, v{T3}")
    a(f"v_add_u32 v{T3}, s24, v{T3}")
    a(f"v_add_u32 v7, {64 * ROW}, v{T2}")
    a(f"v_add_u32 v6, {64 * 128}, v{T3}")
    a(f"s_mov_b32 s24, {LOG2E_NEG:#x}")
    a(f"s_mov_b32 s25, {LOG2E_NEG:#x}")
    a("s_mov_b32 s26, 1.0")
    a("s_mov_b32 s27, 1.0")
    a("s_waitcnt vmcnt(0) lgkmcnt(0)")
    a("s_barrier")
    stamp(a, 11)

    def silu_store(src, off):
        a(f"v_pk_mul_f32 {vr(src + 4, 2)}, {vr(src, 2)}, s[24:25]")
        a(f"v_pk_mul_f32 {vr(src + 6, 2)}, {vr(src + 2, 2)}, s[24:25]")
        for i in range(4):
            a(f"v_exp_f32 v{src + 4 + i}, v{src + 4 + i}")
        a(f"v_pk_add_f32 {vr(src + 4, 2)}, {vr(src + 4, 2)}, s[26:27]")
        a(f"v_pk_add_f32 {vr(src + 6, 2)}, {vr(src + 6, 2)}, s[26:27]")
        for i in range(4):
            a(f"v_rcp_f32 v{src + 4 + i}, v{src + 4 + i}")
        a(f"v_pk_mul_f32 {vr(src, 2)}, {vr(src, 2)}, {vr(src + 4, 2)}")
        a(f"v_pk_mul_f32 {vr(src + 2, 2)}, {vr(src + 2, 2)}, {vr(src + 6, 2)}")
        a(f"v_cvt_pk_bf16_f32 v{src + 4}, v{src}, v{src + 1}")
        a(f"v_cvt_pk_bf16_f32 v{src + 5}, v{src + 2}, v{src + 3}")
        a(f"global_store_dwordx2 v{off}, {vr(src + 4, 2)}, {sr(OUT)}{STO}")

    a(f"ds_read_b128 v[8:11], v{T2} offset:{PART0}")
    a(f"s_cmp_lt_u32 s{WAVE}, 9")
    a("s_cbranch_scc0 L2_ep1")
    a(f"ds_read_b128 v[16:19], v7 offset:{PART0}")
    a("s_waitcnt lgkmcnt(0)")
    silu_store(16, 6)
    a.label("L2_ep1")
    a("s_waitcnt lgkmcnt(0)")
    silu_store(8, T3)
    if "dbgt" in OPT:
        a("s_waitcnt vmcnt(0)")
    dbg_time(a, 1, 3)
    stamp(a, 12)
    if STAMPS:
        a("s_waitcnt vmcnt(0)")
    stamp(a, 13)
    stamp(a, 21, True)
    stamp_flush(a, 1)
    a.label("L2_end")
    a("s_endpgm")
    return LDS, 128


def descriptor(a, name, vgprs, sgprs=80):
    a(f".amdhsa_kernel {name}")
    a(f"  .amdhsa_next_free_vgpr {vgprs}")
    a(f"  .amdhsa_next_free_sgpr {sgprs}")
    a(f"  .amdhsa_accum_offset {vgprs}")
    a("  .amdhsa_group_segment_fixed_size 0")
    a("  .amdhsa_kernarg_size 80")
    a("  .amdhsa_user_sgpr_count 2")
    a("  .amdhsa_user_sgpr_kernarg_segment_ptr 1")
    a("  .amdhsa_system_sgpr_workgroup_id_x 1")
    a("  .amdhsa_float_denorm_mode_32 3")
    a(".end_amdhsa_kernel")


def main():
    global STAMPS, ST, STT, STR_, STO
    if "--stamps" in sys.argv:
        STAMPS = True
        sys.argv.remove("--stamps")
    for o in OPT:
        if o.startswith("st="):
            ST = STT = STR_ = " " + o[3:].replace("+", " ")
        if o.startswith("stt="):
            STT = " " + o[4:].replace("+", " ")
        if o.startswith("sto="):
            STO = " " + o[4:].replace("+", " ")
        if o.startswith("str="):
            STR_ = " " + o[4:].replace("+", " ")
    body = Asm()
    body(".amdgcn_target \"amdgcn-amd-amdhsa--gfx950\"")
    body(".text")
    lds1, v1 = gen_k1(body)
    lds2, v2 = gen_k2(body)
    body(".section .rodata,\"a\"")
    body(".p2align 6")
    descriptor(body, K1, 128 if (STAMPS or 'dbgt' in OPT) else v1)
    body(".p2align 6")
    descriptor(body, K2, v2)
    head = [
        "; Edge-gated MPNN layer  out = silu(x U + sum_{e: dst(e)=i} sigmoid(x_i A + x_j B + e c) * (x_j V))",
        "; in two launches of 250 workgroups x 1024 threads (written with a hand-made generator script).",
        ";",
        "; launch 1 (egc_part_kernel): workgroup c",
        ";   - builds 100 rows of the source table T[n][ch] (one dword per channel): low half = f16(-log2e * (x B)),",
        ";     the dword read as f32 = x V rounded to the nearest value with that low half (half an ulp of bf16, like the",
        ";     reference's bf16 rounding of x V); row N is all zero (padding target)",
        ";   - sorts its 3200 edges by destination bucket (100 nodes) in LDS and writes (e | src, key) records",
        ";     plus a (start, count) word per bucket; key = local node | source half << 7",
        "; launch 2 (..._graph_kernel): workgroup b owns nodes 100b .. 100b+99",
        ";   - gathers its records, bins them per key in LDS, orders the keys by count and forms windows of 4 keys",
        ";     (one per 16-lane group; lane = 4 channels); P = -log2e * (x A) - 60 and U = x U come from MFMAs",
        ";   - per edge quad: t = P + Q' + e c' (an MFMA with a 0/1 matrix unpacks the f16 halves and adds P),",
        ";     D = min(2^t, 1) + 2^-60 = 2^-60 (1 + exp(-z)), and two edges share one reciprocal:",
        ";     hv_a/D_a + hv_b/D_b = (hv_a D_b + hv_b D_a) / (D_a D_b); the 2^-60 is removed when a window is flushed",
        ";   - sources are visited in two passes (bit 12 of the source id) so that the gathered table half stays in L2",
        ";   - a bucket whose lists do not fit the LDS layout takes a slow generic path",
        ";",
        "; workspace: T at 0, records at 0x700000, (start,count) words at 0xE00000",
        f"; @launch kernel={K1} grid=({NC},1,1) block=(1024,1,1) lds={lds1}",
        f"; @launch kernel={K2} grid=({NB},1,1) block=(1024,1,1) lds={lds2}",
    ]
    out = "\n".join(head) + "\n" + body.text()
    path = sys.argv[1] if len(sys.argv) > 1 else "standalone__edge_featured_mpnn_egc__graph.s"
    open(path, "w").write(out)
    print("wrote", path, "lds", lds1, lds2)


if __name__ == "__main__":
    main()
```

```python
import os
import sys

N = 25000
E = 800000
NB = 250
NPB = 100
NC = 250
EPC = 3200
HALF = 12500

T_OFF = 0
REC_OFF = int(os.environ.get('REC_OFF', '0x700000'), 0)
SEG_OFF = REC_OFF + 0x700000

LOG2E_NEG = 0xBFB8AA3B
SHIFT_NEG = 0xC2700000
TINY = 0x21800000
ROW = 272
XROW = 144

K1 = "egc_part_kernel"
K2 = "standalone__edge_featured_mpnn_egc__graph_kernel"

OPT = set(os.environ.get("OPT", "").split(","))
TOUCH0 = int(os.environ.get('TOUCH0', '12'))
PRIO_A = int(os.environ.get('PRIO_A', '25'))
PRIO_B = int(os.environ.get('PRIO_B', '38'))
STAMPS = False
STAMP_OFF = 0x2000000
SV = 127

X, EA, SRC, DST, UW, VW, GW, OUT, WS = 4, 6, 8, 10, 12, 14, 16, 18, 20
WAVE = 22


DBGS_SLOTS = {0: None, 1: 0, 3: 1, 4: 2, 5: 3, 6: 4, 8: 5, 9: 6, 10: 7}


def stamp(a, i, real=False):
    if "dbgs" in OPT and a.kernel == 2 and not real:
        a("s_memtime s[70:71]")
        a("s_waitcnt lgkmcnt(0)")
        a(f"v_writelane_b32 v127, s70, {i}")
        return
    if not STAMPS:
        return
    a(f"s_mem{'real' if real else ''}time s[70:71]")
    a("s_waitcnt lgkmcnt(0)")
    a(f"v_writelane_b32 v{SV}, s70, {i}")


TIME_OFF = 0x2800000


def dbg_time(a, which, slot, neg=False, tag=""):
    if "dbgt" not in OPT:
        return
    a("v_readfirstlane_b32 s78, v0")
    a("s_nop 3")
    a("s_cmp_lg_u32 s78, 0")
    a(f"s_cbranch_scc1 L_dbg_{which}_{slot}")
    a("s_memrealtime s[70:71]")
    a(f"s_load_dwordx2 s[74:75], s[0:1], {72 if which == 0 else 64}")
    a("s_waitcnt lgkmcnt(0)")
    if neg:
        a("s_not_b32 s70, s70")
    a("v_mov_b32 v125, s70")
    a("s_mov_b64 s[76:77], exec")
    a("s_mov_b64 exec, 1")
    if which == 0:
        a("s_lshl_b32 s78, s2, 3")
        a(f"s_add_u32 s78, s78, {TIME_OFF + slot * 4}")
        a("v_mov_b32 v126, s78")
        a("global_store_dword v126, v125, s[74:75]")
    else:
        a(f"v_mov_b32 v126, {slot * 4}")
        a("global_atomic_umax v126, v125, s[74:75]")
    a("s_mov_b64 exec, s[76:77]")
    if which == 1 and slot == 2:
        a("s_cmp_lg_u32 s2, 0")
        a(f"s_cbranch_scc1 L_dbg_{which}_{slot}")
        a("s_load_dwordx2 s[76:77], s[0:1], 72")
        a("s_waitcnt lgkmcnt(0)")
        for r in range(4):
            a(f"v_add_u32 v124, {64 * r}, v0")
            a("v_min_u32 v124, 249, v124")
            a("v_lshlrev_b32 v124, 3, v124")
            a(f"v_add_u32 v124, {TIME_OFF}, v124")
            a("global_load_dwordx2 v[122:123], v124, s[76:77]")
            a("s_waitcnt vmcnt(0)")
            a("v_mov_b32 v126, 16")
            a("global_atomic_umax v126, v122, s[74:75]")
            a("v_mov_b32 v126, 20")
            a("global_atomic_umax v126, v123, s[74:75]")
        a("s_waitcnt vmcnt(0)")
    a.label(f"L_dbg_{which}_{slot}")


def stamp_flush(a, which):
    if "dbgs" in OPT and which == 1:
        a.nflush = getattr(a, "nflush", 0) + 1
        a(f"s_cmp_lg_u32 s{WAVE}, 12")
        a(f"s_cbranch_scc1 L_dbgs_skip{a.nflush}")
        a("s_load_dwordx2 s[74:75], s[0:1], 64")
        a("v_readlane_b32 s70, v127, 0")
        a("s_waitcnt lgkmcnt(0)")
        a("v_subrev_u32 v126, s70, v127")
        a("v_and_b32 v125, 63, v0")
        a("v_cmp_gt_u32 vcc, 16, v125")
        a("v_lshlrev_b32 v125, 2, v125")
        a("s_and_saveexec_b64 s[76:77], vcc")
        a("global_atomic_umax v125, v126, s[74:75]")
        a("s_mov_b64 exec, s[76:77]")
        a.label(f"L_dbgs_skip{a.nflush}")
        return
    if not STAMPS:
        return
    a("s_lshl_b32 s72, s2, 4")
    a(f"s_add_u32 s72, s72, s{WAVE}")
    a("s_lshl_b32 s72, s72, 8")
    a(f"s_add_u32 s72, s72, {STAMP_OFF + which * 0x200000}")
    a("v_and_b32 v126, 63, v0")
    a("v_lshlrev_b32 v126, 2, v126")
    a("v_add_u32 v126, s72, v126")
    a(f"global_store_dword v126, v{SV}, s[20:21]")


class Asm:
    def __init__(self):
        self.lines = []
        self.kernel = 1

    def __call__(self, s=""):
        for ln in s.split("\n"):
            self.lines.append(ln if ln.strip().endswith(":") else "    " + ln.strip())

    def label(self, s):
        self.lines.append(s + ":")

    def text(self):
        return "\n".join(self.lines) + "\n"


def vr(a, n):
    return f"v[{a}:{a + n - 1}]"


def sr(a, n=2):
    return f"s[{a}:{a + n - 1}]"


def wave_scan(a, v):
    for sh in (1, 2, 4, 8):
        a("s_nop 1")
        a(f"v_add_u32_dpp v{v}, v{v}, v{v} row_shr:{sh} row_mask:0xf bank_mask:0xf bound_ctrl:0")
    a("s_nop 1")
    a(f"v_add_u32_dpp v{v}, v{v}, v{v} row_bcast:15 row_mask:0xa bank_mask:0xf")
    a("s_nop 1")
    a(f"v_add_u32_dpp v{v}, v{v}, v{v} row_bcast:31 row_mask:0xc bank_mask:0xf")
    a("s_nop 1")


WSBASE = int(os.environ.get("WSBASE", "0"), 0)


def remap_wg(a, which):
    if f"noremap{which}" in OPT:
        return
    a("s_and_b32 s24, s2, 7")
    a("s_lshr_b32 s2, s2, 3")
    a("s_mov_b32 s23, s2")
    a("s_mul_i32 s25, s24, 31")
    a("s_min_u32 s24, s24, 2")
    a("s_add_u32 s2, s2, s25")
    a("s_add_u32 s2, s2, s24")


def warm_l2(a, lane, t0, t1, dst):
    for n in range(2):
        a(f"s_lshl_b32 s24, s{WAVE}, 7")
        a(f"s_add_u32 s24, s24, {n * 64}")
        a(f"v_add_u32 v{t0}, s24, v{lane}")
        a(f"v_min_u32 v{t0}, 1599, v{t0}")
        a(f"v_lshrrev_b32 v{t1}, 2, v{t0}")
        a("s_mul_i32 s24, s23, 400")
        a(f"v_add_u32 v{t1}, s24, v{t1}")
        a(f"v_min_u32 v{t1}, 12711, v{t1}")
        a(f"v_and_b32 v{t0}, 3, v{t0}")
        a(f"v_lshlrev_b32 v{t0}, 6, v{t0}")
        a(f"v_and_b32 v125, 0xfffff000, v{t1}")
        a(f"v_add_u32 v{t1}, v{t1}, v125")
        a(f"v_lshl_add_u32 v{t0}, v{t1}, 8, v{t0}")
        a(f"global_load_dword v{dst}, v{t0}, {sr(WS)}")


def load_ptrs(a):
    a("s_load_dwordx16 s[4:19], s[0:1], 0")
    a("s_load_dwordx2 s[20:21], s[0:1], 72")


def fix_ws(a):
    if WSBASE:
        a(f"s_add_u32 s20, s20, {WSBASE}")
        a("s_addc_u32 s21, s21, 0")


ST = ""
STT = ""
STR_ = ""
STO = ""


class Node:
    def __init__(self, a, WST, XST, tid, lane, vw, vx, t):
        self.a, self.WST, self.XST = a, WST, XST
        self.tid, self.lane, self.vw, self.vx, self.t = tid, lane, vw, vx, t

    def issue_loads(self, p0, off0, p1):
        a, t = self.a, self.t
        a(f"s_cmp_lt_u32 s{WAVE}, 8")
        a(f"s_cselect_b32 s24, s{p0}, s{p1}")
        a(f"s_cselect_b32 s25, s{p0 + 1}, s{p1 + 1}")
        if off0:
            a(f"s_cselect_b32 s26, {off0}, 0")
            a("s_add_u32 s24, s24, s26")
            a("s_addc_u32 s25, s25, 0")
        a(f"v_and_b32 v{t}, 511, v{self.tid}")
        a(f"v_lshlrev_b32 v{t}, 4, v{t}")
        a(f"global_load_dwordx4 {vr(self.vw, 4)}, v{t}, s[24:25]")
        a(f"v_min_u32 v{t}, {NPB * 8 - 1}, v{self.tid}")
        a(f"v_lshlrev_b32 v{t}, 4, v{t}")
        a(f"s_mul_i32 s26, s2, {NPB * 128}")
        a(f"v_add_u32 v{t}, s26, v{t}")
        a(f"global_load_dwordx4 {vr(self.vx, 4)}, v{t}, {sr(X)}")

    def stage(self):
        a, t, tid = self.a, self.t, self.tid
        a(f"v_bfe_u32 v{t}, v{tid}, 4, 1")
        a(f"v_bfe_u32 v{t + 1}, v{tid}, 6, 1")
        a(f"v_lshl_or_b32 v{t}, v{t + 1}, 1, v{t}")
        a(f"v_lshlrev_b32 v{t}, 5, v{t}")
        a(f"v_lshlrev_b32 v{t + 1}, 4, v{tid}")
        a(f"v_xor_b32 v{t}, v{t}, v{t + 1}")
        a(f"v_add_u32 v{t}, {self.WST}, v{t}")
        a(f"ds_write_b128 v{t}, {vr(self.vw, 4)}")
        a(f"v_lshrrev_b32 v{t}, 3, v{tid}")
        a(f"v_mul_u32_u24 v{t}, {XROW}, v{t}")
        a(f"v_and_b32 v{t + 1}, 7, v{tid}")
        a(f"v_lshl_add_u32 v{t}, v{t + 1}, 4, v{t}")
        a(f"v_add_u32 v{t}, {self.XST}, v{t}")
        a(f"v_cmp_gt_u32 vcc, {NPB * 8}, v{tid}")
        a("s_and_saveexec_b64 s[32:33], vcc")
        a(f"ds_write_b128 v{t}, {vr(self.vx, 4)}")
        a("s_mov_b64 exec, s[32:33]")

    def stage_addr(self, vw_a, vx_a, t):
        a, tid = self.a, self.tid
        a(f"v_bfe_u32 v{vw_a}, v{tid}, 4, 1")
        a(f"v_bfe_u32 v{t}, v{tid}, 6, 1")
        a(f"v_lshl_or_b32 v{vw_a}, v{t}, 1, v{vw_a}")
        a(f"v_lshlrev_b32 v{vw_a}, 5, v{vw_a}")
        a(f"v_lshlrev_b32 v{t}, 4, v{tid}")
        a(f"v_xor_b32 v{vw_a}, v{vw_a}, v{t}")
        a(f"v_add_u32 v{vw_a}, {self.WST}, v{vw_a}")
        a(f"v_lshrrev_b32 v{vx_a}, 3, v{tid}")
        a(f"v_mul_u32_u24 v{vx_a}, {XROW}, v{vx_a}")
        a(f"v_and_b32 v{t}, 7, v{tid}")
        a(f"v_lshl_add_u32 v{vx_a}, v{t}, 4, v{vx_a}")
        a(f"v_add_u32 v{vx_a}, {self.XST}, v{vx_a}")

    def stage_write(self, vw_a, vx_a):
        a, tid = self.a, self.tid
        a(f"ds_write_b128 v{vw_a}, {vr(self.vw, 4)}")
        a(f"v_cmp_gt_u32 vcc, {NPB * 8}, v{tid}")
        a("s_and_saveexec_b64 s[32:33], vcc")
        a(f"ds_write_b128 v{vx_a}, {vr(self.vx, 4)}")
        a("s_mov_b64 exec, s[32:33]")

    def pair_reads(self, aop, xop, vloc):
        a, t, lane = self.a, self.t, self.lane
        a(f"s_and_b32 s27, s{WAVE}, 1")
        a("s_lshl_b32 s27, s27, 1")
        a(f"s_lshr_b32 s26, s{WAVE}, 1")
        a(f"v_and_b32 v{t}, 15, v{lane}")
        a(f"v_lshrrev_b32 v{t + 1}, 4, v{lane}")
        a("s_lshl_b32 s26, s26, 4")
        a(f"v_add_u32 v{vloc}, s26, v{t}")
        a(f"v_mul_u32_u24 v{t + 2}, {XROW}, v{vloc}")
        a(f"v_lshl_add_u32 v{t + 2}, v{t + 1}, 4, v{t + 2}")
        a(f"v_add_u32 v{t + 2}, {self.XST}, v{t + 2}")
        a(f"ds_read_b128 {vr(xop, 4)}, v{t + 2}")
        a(f"ds_read_b128 {vr(xop + 4, 4)}, v{t + 2} offset:64")
        a(f"v_lshrrev_b32 v{t + 2}, 3, v{t}")
        a(f"v_and_b32 v{xop + 8}, 1, v{t + 1}")
        a(f"v_lshl_or_b32 v{t + 2}, v{xop + 8}, 1, v{t + 2}")
        a(f"v_xor_b32 v{t + 2}, s27, v{t + 2}")
        a(f"v_lshlrev_b32 v{t + 2}, 5, v{t + 2}")
        a(f"v_lshrrev_b32 v{xop + 8}, 2, v{t}")
        a(f"v_lshl_add_u32 v{xop + 8}, v{t + 1}, 3, v{xop + 8}")
        a(f"v_lshl_add_u32 v{t + 2}, v{xop + 8}, 7, v{t + 2}")
        a(f"v_and_b32 v{xop + 8}, 3, v{t}")
        a(f"v_lshl_add_u32 v{t + 2}, v{xop + 8}, 3, v{t + 2}")
        a(f"v_add_u32 v{t + 2}, {self.WST}, v{t + 2}")
        assert self.WST % 128 == 0
        for c in range(2):
            if c:
                a("s_waitcnt lgkmcnt(6)")
                a(f"v_xor_b32 v{t + 2}, 32, v{t + 2}")
            for m in range(2):
                for ks in range(2):
                    for hh in range(2):
                        r = aop + c * 16 + (m * 2 + ks) * 4 + hh * 2
                        a(f"ds_read_b64_tr_b16 {vr(r, 2)}, v{t + 2} offset:{m * 8192 + ks * 4096 + hh * 512}")

    def pair_mfma(self, aop, xop, dd):
        a = self.a
        for ks in range(2):
            for c in range(2):
                for m in range(2):
                    d = dd + (c * 2 + m) * 4
                    cop = "0" if ks == 0 else vr(d, 4)
                    a(f"v_mfma_f32_16x16x32_bf16 {vr(d, 4)}, {vr(aop + c * 16 + (m * 2 + ks) * 4, 4)}, {vr(xop + 4 * ks, 4)}, {cop}")


def copy_out(a, lds_addr_fn, goff_sgpr, t0, t1, d0, d1, tag):
    ST = STT if tag == "t" else STR_
    lds_addr_fn(0, t1)
    a(f"ds_read_b128 {vr(d0, 4)}, v{t1}")
    a(f"v_lshlrev_b32 v{t0}, 4, v0")
    a(f"v_add_u32 v{t0}, s{goff_sgpr}, v{t0}")
    a(f"s_cmp_gt_u32 s{WAVE}, 8")
    a(f"s_cbranch_scc1 L1_one{tag}")
    a(f"v_add_u32 v{t1}, 1024, v0")
    lds_addr_fn(t1, t1)
    a(f"ds_read_b128 {vr(d1, 4)}, v{t1}")
    a(f"v_add_u32 v{t1}, 16384, v{t0}")
    a("s_waitcnt lgkmcnt(0)")
    a(f"global_store_dwordx4 v{t1}, {vr(d1, 4)}, {sr(WS)}{ST}")
    a.label(f"L1_one{tag}")
    a("s_waitcnt lgkmcnt(0)")
    a(f"global_store_dwordx4 v{t0}, {vr(d0, 4)}, {sr(WS)}{ST}")


def gen_k1(a):
    HIST, BASE = 0, 1024
    WST = 2048
    XST = WST + 16384
    TST = XST + 112 * XROW
    STG = TST + NPB * ROW
    LDS = STG + EPC * 8
    TID, LANE = 0, 1
    T0, T1, T2, T3 = 2, 3, 14, 15
    VD, VS, VE = 4, 8, 12
    VW_, VX_ = 16, 20
    XOP = 24
    AOP = 36
    DD = 68
    PK = 84
    VLOC = 87
    VB, VR = 88, 92
    RP = 104
    NT = 100
    nd = Node(a, WST, XST, TID, LANE, VW_, VX_, NT)

    a(f".globl {K1}")
    a(".p2align 8")
    a(f".type {K1},@function")
    a.label(K1)
    a(f"s_cmp_ge_u32 s2, {NC}")
    a("s_cbranch_scc1 L1_end")
    dbg_time(a, 0, 0, True)
    stamp(a, 0)
    stamp(a, 20, True)
    load_ptrs(a)
    remap_wg(a, 1)
    a(f"v_and_b32 v{LANE}, 63, v{TID}")
    a(f"v_lshrrev_b32 v{T0}, 6, v{TID}")
    a(f"v_lshlrev_b32 v{T1}, 2, v{TID}")
    a(f"v_readfirstlane_b32 s{WAVE}, v{T0}")
    a(f"v_mov_b32 v{T0}, 0")
    a(f"s_cmp_lt_u32 s{WAVE}, 4")
    a("s_cbranch_scc0 L1_nozero")
    a(f"ds_write_b32 v{T1}, v{T0} offset:{HIST}")
    a.label("L1_nozero")
    a("s_waitcnt lgkmcnt(0)")
    fix_ws(a)
    stamp(a, 1)
    nd.issue_loads(GW, 8192, VW)
    if "nok1bq" not in OPT:
        a("s_barrier")
    a(f"s_cmp_gt_u32 s{WAVE}, 12")
    a("s_cbranch_scc1 L1_noedge0")
    a(f"s_mul_i32 s24, s2, {EPC * 4}")
    a(f"v_lshlrev_b32 v{T0}, 4, v{TID}")
    a(f"v_add_u32 v{T0}, s24, v{T0}")
    a(f"v_lshrrev_b32 v{T1}, 1, v{T0}")
    a(f"v_cmp_gt_u32 vcc, {EPC // 4}, v{TID}")
    a("s_and_saveexec_b64 s[32:33], vcc")
    a(f"global_load_dwordx4 {vr(VD, 4)}, v{T0}, {sr(DST)}")
    a(f"global_load_dwordx4 {vr(VS, 4)}, v{T0}, {sr(SRC)}")
    a(f"global_load_dwordx2 {vr(VE, 2)}, v{T1}, {sr(EA)}")
    a("s_mov_b64 exec, s[32:33]")
    a("s_waitcnt vmcnt(3)")
    a("s_branch L1_wx")
    a.label("L1_noedge0")
    a("s_waitcnt vmcnt(0)")
    a.label("L1_wx")
    stamp(a, 2)
    nd.stage()
    a("s_waitcnt lgkmcnt(0)")
    a("s_barrier")
    stamp(a, 3)
    a(f"s_cmp_gt_u32 s{WAVE}, 13")
    a("s_cbranch_scc1 L1_notask")
    nd.pair_reads(AOP, XOP, VLOC)
    a(f"v_mul_u32_u24 v{T0}, {ROW}, v{VLOC}")
    a(f"v_lshrrev_b32 v{T1}, 4, v{LANE}")
    a(f"v_lshl_add_u32 v{T0}, v{T1}, 4, v{T0}")
    a("s_lshl_b32 s30, s27, 6")
    a(f"s_add_u32 s30, s30, {TST}")
    a(f"v_add_u32 v{T0}, s30, v{T0}")
    a(f"s_mov_b32 s24, {LOG2E_NEG:#x}")
    a("s_mov_b32 s25, 0x7fff0000")
    a("s_mov_b32 s30, 0x7fffffff")
    VLO, VHI = 33, 34
    a(f"v_mov_b32 v{VLO}, 0xc77fe000")
    a(f"v_mov_b32 v{VHI}, 0x477fe000")
    a(f"v_cmp_gt_u32 vcc, {NPB}, v{VLOC}")
    a("s_waitcnt lgkmcnt(0)")
    nd.pair_mfma(AOP, XOP, DD)
    a("s_nop 5")
    for c in range(2):
        DQ, DH = DD + c * 8, DD + c * 8 + 4
        if c == 1:
            pass
        for i in range(4):
            a(f"v_mul_f32 v{DQ + i}, s24, v{DQ + i}")
        for i in range(4):
            a(f"v_med3_f32 v{DQ + i}, v{DQ + i}, v{VLO}, v{VHI}")
        a(f"v_cvt_pk_f16_f32 v{PK}, v{DQ}, v{DQ + 1}")
        a(f"v_cvt_pk_f16_f32 v{PK + 1}, v{DQ + 2}, v{DQ + 3}")
        for i in range(4):
            h = DH + i
            sel = "WORD_1" if i % 2 else "WORD_0"
            a(f"v_and_b32 v{DQ + i}, s30, v{h}")
            a(f"v_add_u32 v{DQ + i}, 0x8000, v{DQ + i}")
            a(f"v_sub_u32_sdwa v{DQ + i}, v{DQ + i}, v{PK + i // 2} clamp dst_sel:DWORD dst_unused:UNUSED_PAD src0_sel:DWORD src1_sel:{sel}")
        for i in range(4):
            h = DH + i
            a(f"v_bfi_b32 v{h}, s25, v{DQ + i}, v{h}")
        for i in range(4):
            h = DH + i
            sel = "WORD_1" if i % 2 else "WORD_0"
            a(f"v_mov_b32_sdwa v{h}, v{PK + i // 2} dst_sel:WORD_0 dst_unused:UNUSED_PRESERVE src0_sel:{sel}")
        a("s_and_saveexec_b64 s[32:33], vcc")
        a(f"ds_write_b128 v{T0}, {vr(DH, 4)} offset:{c * 64}")
        a("s_mov_b64 exec, s[32:33]")
    a.label("L1_notask")
    a("s_waitcnt lgkmcnt(0)")
    stamp(a, 4)
    a("s_barrier")

    if "tall" in OPT:
        a(f"v_lshrrev_b32 v{T0}, 4, v{TID}")
        a(f"v_mul_u32_u24 v{T0}, {ROW}, v{T0}")
        a(f"v_and_b32 v{T1}, 15, v{TID}")
        a(f"v_lshl_add_u32 v{T0}, v{T1}, 4, v{T0}")
        a(f"v_add_u32 v{T0}, {TST}, v{T0}")
        a(f"ds_read_b128 v[16:19], v{T0}")
        a(f"s_mul_i32 s26, s2, {NPB * 256}")
        a(f"v_lshlrev_b32 v{T1}, 4, v{TID}")
        a(f"v_add_u32 v{T1}, s26, v{T1}")
        a(f"s_cmp_gt_u32 s{WAVE}, 8")
        a("s_cbranch_scc1 L1_t1")
        a(f"ds_read_b128 v[20:23], v{T0} offset:{64 * ROW}")
        a(f"v_add_u32 v{T2}, 16384, v{T1}")
        a("s_waitcnt lgkmcnt(0)")
        a(f"global_store_dwordx4 v{T2}, v[20:23], {sr(WS)}{STT}")
        a.label("L1_t1")
        a("s_waitcnt lgkmcnt(0)")
        a(f"global_store_dwordx4 v{T1}, v[16:19], {sr(WS)}{STT}")
        a(f"s_sub_u32 s24, s{WAVE}, 13")
        a("s_cmp_lt_u32 s24, 2")
        a("s_cbranch_scc0 L1_not")
        stamp(a, 5)
        if STAMPS:
            a("s_waitcnt vmcnt(0)")
        stamp(a, 11)
        stamp(a, 21, True)
        stamp_flush(a, 0)
        a("s_endpgm")
    else:
        a(f"s_sub_u32 s24, s{WAVE}, 13")
        a("s_cmp_lt_u32 s24, 2")
        a("s_cbranch_scc0 L1_not")
        a(f"v_lshrrev_b32 v{T0}, 4, v{LANE}")
        a(f"v_mul_u32_u24 v{T0}, {ROW}, v{T0}")
        a(f"v_and_b32 v{T1}, 15, v{LANE}")
        a(f"v_lshl_add_u32 v{T0}, v{T1}, 4, v{T0}")
        a(f"s_mul_i32 s25, s24, {13 * 4 * ROW}")
        a(f"s_add_u32 s25, s25, {TST}")
        a(f"v_add_u32 v{T0}, s25, v{T0}")
        a(f"s_mul_i32 s26, s2, {NPB * 256}")
        a(f"s_mul_i32 s25, s24, {13 * 1024}")
        a("s_add_u32 s26, s26, s25")
        a(f"v_lshlrev_b32 v{T1}, 4, v{LANE}")
        a(f"v_add_u32 v{T1}, s26, v{T1}")
        for n in range(12):
            a(f"ds_read_b128 {vr(16 + 4 * n, 4)}, v{T0} offset:{n * 4 * ROW}")
        a(f"v_add_u32 v{T2}, {12 * 1024}, v{T1}")
        a("s_cmp_eq_u32 s24, 0")
        a("s_cbranch_scc0 L1_t12")
        a(f"ds_read_b128 {vr(64, 4)}, v{T0} offset:{12 * 4 * ROW}")
        a("s_waitcnt lgkmcnt(0)")
        a(f"global_store_dwordx4 v{T2}, {vr(64, 4)}, {sr(WS)}{STT}")
        a.label("L1_t12")
        for n in range(12):
            a(f"s_waitcnt lgkmcnt({max(0, 11 - n)})")
            a(f"global_store_dwordx4 v{T1}, {vr(16 + 4 * n, 4)}, {sr(WS)} offset:{(n % 4) * 1024}{STT}")
            if n % 4 == 3:
                a(f"v_add_u32 v{T1}, 4096, v{T1}")
        if "readback" in OPT:
            a("s_waitcnt vmcnt(0)")
            a(f"v_subrev_u32 v{T1}, {3 * 4096}, v{T1}")
            for n in range(12):
                a(f"global_load_dwordx4 {vr(16 + 4 * n, 4)}, v{T1}, {sr(WS)} offset:{(n % 4) * 1024}")
                if n % 4 == 3:
                    a(f"v_add_u32 v{T1}, 4096, v{T1}")
            a(f"global_load_dwordx4 {vr(64, 4)}, v{T2}, {sr(WS)}")
            a("s_waitcnt vmcnt(0)")
        if "wbl2" in OPT:
            a("s_waitcnt vmcnt(0)")
            a("buffer_wbl2 sc1")
            a("s_waitcnt vmcnt(0)")
        stamp(a, 5)
        if STAMPS:
            a("s_waitcnt vmcnt(0)")
        stamp(a, 11)
        stamp(a, 21, True)
        stamp_flush(a, 0)
        a("s_endpgm")
    a.label("L1_not")
    stamp(a, 5)
    a(f"s_cmp_gt_u32 s{WAVE}, 12")
    a("s_cbranch_scc1 L1_noedge1")
    a(f"v_cmp_gt_u32 vcc, {EPC // 4}, v{TID}")
    a("s_and_saveexec_b64 s[32:33], vcc")
    a(f"v_mov_b32 v{T1}, 1")
    a("s_movk_i32 s24, -100")
    a("s_mov_b32 s25, 0xffff0000")
    a("s_movk_i32 s30, 128")
    if "tall" in OPT:
        a(f"s_cmp_gt_u32 s{WAVE}, 8")
        a("s_cbranch_scc1 L1_w1")
        a("s_waitcnt vmcnt(2)")
        a("s_branch L1_w2")
        a.label("L1_w1")
        a("s_waitcnt vmcnt(1)")
        a.label("L1_w2")
    else:
        a("s_waitcnt vmcnt(0)")
    for i in range(4):
        a(f"v_mul_u32_u24 v{T0}, 5243, v{VD + i}")
        a(f"v_lshrrev_b32 v{T0}, 19, v{T0}")
        a(f"v_lshlrev_b32 v{VB + i}, 2, v{T0}")
        a(f"ds_add_rtn_u32 v{VR + i}, v{VB + i}, v{T1} offset:{HIST}")
        a(f"v_mad_i32_i24 v{T2}, v{T0}, s24, v{VD + i}")
        a(f"v_lshrrev_b32 v{T3}, 5, v{VS + i}")
        a(f"v_and_or_b32 v{RP + 2 * i + 1}, v{T3}, s30, v{T2}")
        if "smallsrc" in OPT:
            a(f"v_and_b32 v{VS + i}, 0x7ff, v{VS + i}")
        if i % 2 == 0:
            a(f"v_lshl_or_b32 v{RP + 2 * i}, v{VE + i // 2}, 16, v{VS + i}")
        else:
            a(f"v_and_or_b32 v{RP + 2 * i}, v{VE + i // 2}, s25, v{VS + i}")
    a("s_mov_b64 exec, s[32:33]")
    a.label("L1_noedge1")
    a("s_waitcnt lgkmcnt(0)")
    stamp(a, 6)
    a("s_barrier")
    stamp(a, 7)
    a(f"s_cmp_eq_u32 s{WAVE}, 15")
    a("s_cbranch_scc0 L1_b2")
    C0 = 24
    a(f"v_lshlrev_b32 v{T0}, 4, v{LANE}")
    a(f"ds_read_b128 {vr(C0, 4)}, v{T0} offset:{HIST}")
    a("s_waitcnt lgkmcnt(0)")
    P = 28
    a(f"v_add_u32 v{P + 2}, v{C0}, v{C0 + 1}")
    a(f"v_add_u32 v{P + 3}, v{P + 2}, v{C0 + 2}")
    a(f"v_add_u32 v32, v{P + 3}, v{C0 + 3}")
    a("v_mov_b32 v33, v32")
    wave_scan(a, 33)
    a(f"v_sub_u32 v{P}, v33, v32")
    a(f"v_add_u32 v{P + 1}, v{P}, v{C0}")
    a(f"v_add_u32 v{P + 2}, v{P}, v{P + 2}")
    a(f"v_add_u32 v{P + 3}, v{P}, v{P + 3}")
    a(f"ds_write_b128 v{T0}, {vr(P, 4)} offset:{BASE}")
    a("s_lshl_b32 s24, s2, 10")
    a(f"s_add_u32 s24, s24, {SEG_OFF}")
    a(f"v_add_u32 v{T1}, s24, v{T0}")
    for i in range(4):
        a(f"v_lshl_or_b32 v{36 + i}, v{C0 + i}, 16, v{P + i}")
    a(f"global_store_dwordx4 v{T1}, v[36:39], {sr(WS)}{ST}")
    a("s_cmp_lg_u32 s2, 0")
    a("s_cbranch_scc1 L1_b2")
    a(f"v_mov_b32 v{T2}, 0")
    a(f"v_lshlrev_b32 v{T3}, 2, v{LANE}")
    a(f"v_add_u32 v{T3}, {N * 256}, v{T3}")
    a(f"global_store_dword v{T3}, v{T2}, {sr(WS)}{ST}")
    a.label("L1_b2")
    a("s_waitcnt lgkmcnt(0)")
    stamp(a, 8)
    a("s_barrier")
    a(f"s_cmp_gt_u32 s{WAVE}, 12")
    a("s_cbranch_scc1 L1_noedge2")
    a(f"v_cmp_gt_u32 vcc, {EPC // 4}, v{TID}")
    a("s_and_saveexec_b64 s[32:33], vcc")
    for i in range(4):
        a(f"ds_read_b32 v{VD + i}, v{VB + i} offset:{BASE}")
    a(f"s_mov_b32 s24, {STG}")
    for i in range(4):
        a("s_waitcnt lgkmcnt(3)")
        a(f"v_add_u32 v{VD + i}, v{VD + i}, v{VR + i}")
        a(f"v_lshl_add_u32 v{VD + i}, v{VD + i}, 3, s24")
        a(f"ds_write_b64 v{VD + i}, {vr(RP + 2 * i, 2)}")
    a("s_mov_b64 exec, s[32:33]")
    a.label("L1_noedge2")
    a(f"s_min_u32 s25, s{WAVE}, 13")
    a("s_lshl_b32 s25, s25, 10")
    a(f"v_lshlrev_b32 v{T0}, 4, v{LANE}")
    a(f"v_add_u32 v{T0}, s25, v{T0}")
    a(f"v_add_u32 v{T1}, {STG}, v{T0}")
    a(f"s_mul_i32 s24, s2, {EPC * 8}")
    a(f"s_add_u32 s24, s24, {REC_OFF}")
    a(f"v_add_u32 v{T0}, s24, v{T0}")
    a("s_waitcnt lgkmcnt(0)")
    stamp(a, 9)
    a("s_barrier")
    a(f"ds_read_b128 v[24:27], v{T1}")
    a(f"s_cmp_gt_u32 s{WAVE}, 10")
    a("s_cbranch_scc1 L1_oner")
    a(f"ds_read_b128 v[28:31], v{T1} offset:{14 * 1024}")
    a(f"v_add_u32 v{T1}, {14 * 1024}, v{T0}")
    a("s_waitcnt lgkmcnt(0)")
    a(f"global_store_dwordx4 v{T1}, v[28:31], {sr(WS)}{STR_}")
    a.label("L1_oner")
    a("s_waitcnt lgkmcnt(0)")
    a(f"global_store_dwordx4 v{T0}, v[24:27], {sr(WS)}{STR_}")
    for o in OPT:
        if o.startswith("delay="):
            n = int(o[6:])
            a(f"s_movk_i32 s24, {n}")
            a.label("L1_dly")
            a("s_sleep 16")
            a("s_sub_u32 s24, s24, 1")
            a("s_cmp_lg_u32 s24, 0")
            a("s_cbranch_scc1 L1_dly")
    if "dbgt" in OPT:
        a("s_waitcnt vmcnt(0)")
    dbg_time(a, 0, 1)
    stamp(a, 10)
    if STAMPS:
        a("s_waitcnt vmcnt(0)")
    stamp(a, 11)
    stamp(a, 21, True)
    stamp_flush(a, 0)
    a.label("L1_end")
    a("s_endpgm")
    return LDS, 112


def gen_k2(a):
    a.kernel = 2
    HIST = 0
    HIST2 = HIST + 1024
    BASE2 = HIST2 + 1024
    WCNT = BASE2 + 1024
    WKEY = WCNT + 1024
    MISC = WKEY + 1024
    SCR = MISC + 256
    ZERO = SCR + 256
    PL = ZERO + 256
    PART0 = PL + NPB * ROW
    WST = (PART0 + NPB * ROW + 127) // 128 * 128
    XST = WST + 16384
    LIST = XST + NPB * XROW
    CAPK = 48
    COL = CAPK * 4
    LISTB = 228 * COL
    LDS = LIST + LISTB + 64
    assert PART0 + 64 * ROW < 65536 and LDS <= 163840, LDS
    NWIN = 50
    DUMMY_COL = 100 * COL

    TID, LANE = 0, 1
    T0, T1, T2, T3 = 2, 3, 4, 5
    RB = 6
    REM = 7
    RECS = 8
    RANK = 24
    VW_, VX_ = 32, 36
    XOP = 40
    AOP = 52
    DD = 84
    VLOC = 49
    NT = 100
    VLB = 103
    ASEL = 112
    VJ, VG4, VQ, VONE = 116, 117, 118, 119
    CV = 120
    VZ = 124
    VXA, VWA, VPA, VSH = 104, 105, 106, 107
    MASK = 40
    NRND = 5
    rec_reg = lambda r: RECS + 4 * r if r < 4 else 72
    rank_reg = lambda k: RANK + k if k < 8 else 100 + (k - 8)
    mask_s = lambda k: MASK + 2 * k if k < 8 else 60 + 2 * (k - 8)
    nd = Node(a, WST, XST, TID, LANE, VW_, VX_, NT)

    a(f".globl {K2}")
    a(".p2align 8")
    a(f".type {K2},@function")
    a.label(K2)
    a(f"s_cmp_ge_u32 s2, {NB}")
    a("s_cbranch_scc1 L2_end")
    dbg_time(a, 1, 2, True)
    for o in OPT:
        if o.startswith("nops="):
            for _ in range(int(o[5:])):
                a("s_nop 0")
        if o.startswith("slit="):
            for _ in range(int(o[5:])):
                a("s_mov_b32 s24, 0x12345678")
        if o.startswith("slil="):
            a(f"s_movk_i32 s25, {int(o[5:]) // 16}")
            a.label("L2_slil")
            for _ in range(13):
                a("s_mov_b32 s24, 0x12345678")
            a("s_sub_u32 s25, s25, 1")
            a("s_cmp_lg_u32 s25, 0")
            a("s_cbranch_scc1 L2_slil")
        if o.startswith("nopl="):
            a(f"s_movk_i32 s24, {int(o[5:]) // 16}")
            a.label("L2_nopl")
            for _ in range(13):
                a("s_nop 0")
            a("s_sub_u32 s24, s24, 1")
            a("s_cmp_lg_u32 s24, 0")
            a("s_cbranch_scc1 L2_nopl")
    stamp(a, 0)
    stamp(a, 20, True)
    load_ptrs(a)
    remap_wg(a, 2)
    a(f"v_and_b32 v{LANE}, 63, v{TID}")
    a(f"v_lshrrev_b32 v{T0}, 6, v{TID}")
    a(f"v_lshlrev_b32 v{T1}, 2, v{TID}")
    a(f"v_readfirstlane_b32 s{WAVE}, v{T0}")
    a(f"v_lshrrev_b32 v{RB}, 2, v{TID}")
    a(f"v_lshlrev_b32 v{RB}, 10, v{RB}")
    a("s_lshl_b32 s24, s2, 2")
    a(f"s_add_u32 s24, s24, {SEG_OFF}")
    a(f"v_add_u32 v{RB}, s24, v{RB}")
    a("s_waitcnt lgkmcnt(0)")
    fix_ws(a)
    stamp(a, 1)
    if "wfirst" not in OPT:
        a(f"global_load_dword v{REM}, v{RB}, {sr(WS)}")
        if "segbar" in OPT:
            a("s_barrier")
    nd.issue_loads(GW, 0, UW)
    a(f"v_and_b32 v{T0}, 15, v{LANE}")
    a(f"v_lshlrev_b32 v{VJ}, 4, v{T0}")
    a(f"v_lshrrev_b32 v{T2}, 1, v{VJ}")
    a(f"v_add_u32 v{T2}, {128 * 128}, v{T2}")
    a(f"global_load_dwordx2 {vr(CV + 2, 2)}, v{T2}, {sr(GW)}")
    if "wfirst" in OPT:
        a(f"global_load_dword v{REM}, v{RB}, {sr(WS)}")
    a(f"v_mov_b32 v{T0}, 0")
    a(f"s_cmp_lt_u32 s{WAVE}, 4")
    a("s_cbranch_scc0 L2_nozero")
    a(f"ds_write_b32 v{T1}, v{T0} offset:{HIST}")
    a(f"ds_write_b32 v{T1}, v{T0} offset:{HIST2}")
    a.label("L2_nozero")
    a(f"s_cmp_eq_u32 s{WAVE}, 4")
    a("s_cbranch_scc0 L2_nozero2")
    a(f"v_lshlrev_b32 v{T2}, 2, v{LANE}")
    a(f"v_cmp_eq_u32 vcc, 2, v{LANE}")
    a("s_nop 1")
    a(f"v_cndmask_b32 v{T3}, 0, 16, vcc")
    a(f"ds_write_b32 v{T2}, v{T3} offset:{MISC}")
    a(f"ds_write_b32 v{T2}, v{T0} offset:{ZERO}")
    a.label("L2_nozero2")
    if "constearly" in OPT:
        for i in range(4):
            a(f"v_mov_b32 v{XOP + i}, {N}")
        a(f"v_lshlrev_b32 v{T2}, 4, v{TID}")
        a(f"v_add_u32 v{T2}, {LIST}, v{T2}")
        a(f"ds_write_b128 v{T2}, {vr(XOP, 4)}")
        a(f"ds_write_b128 v{T2}, {vr(XOP, 4)} offset:16384")
        nlast = LISTB // 16 - 2048
        a(f"v_cmp_gt_u32 vcc, {nlast}, v{TID}")
        a("s_and_saveexec_b64 s[32:33], vcc")
        a(f"ds_write_b128 v{T2}, {vr(XOP, 4)} offset:32768")
        a("s_mov_b64 exec, s[32:33]")
        a(f"v_mov_b32 v{VONE}, 1")
        a(f"v_mov_b32 v{VLB}, {LIST}")
        nd.stage_addr(NT, NT + 1, NT + 2)
        a(f"s_and_b32 s27, s{WAVE}, 3")
        a(f"s_lshr_b32 s26, s{WAVE}, 2")
        a("s_lshl_b32 s26, s26, 5")
        a(f"v_and_b32 v{T0}, 15, v{LANE}")
        a(f"v_lshrrev_b32 v{T1}, 4, v{LANE}")
        a(f"v_add_u32 v{T2}, s26, v{T0}")
        a(f"v_mul_u32_u24 v{VXA}, {XROW}, v{T2}")
        a(f"v_lshl_add_u32 v{VXA}, v{T1}, 4, v{VXA}")
        a(f"v_add_u32 v{VXA}, {XST}, v{VXA}")
        a(f"v_mul_u32_u24 v{VPA}, {ROW}, v{T2}")
        a(f"v_lshl_add_u32 v{VPA}, v{T1}, 4, v{VPA}")
        a("s_lshl_b32 s30, s27, 6")
        a(f"v_add_u32 v{VPA}, s30, v{VPA}")
        a(f"v_lshrrev_b32 v{T2}, 3, v{T0}")
        a(f"v_and_b32 v{T3}, 1, v{T1}")
        a(f"v_lshl_or_b32 v{T2}, v{T3}, 1, v{T2}")
        a(f"v_xor_b32 v{T2}, s27, v{T2}")
        a(f"v_lshlrev_b32 v{T2}, 5, v{T2}")
        a(f"v_lshrrev_b32 v{T3}, 2, v{T0}")
        a(f"v_lshl_add_u32 v{T3}, v{T1}, 3, v{T3}")
        a(f"v_lshl_add_u32 v{T2}, v{T3}, 7, v{T2}")
        a(f"v_and_b32 v{T3}, 3, v{T0}")
        a(f"v_lshl_add_u32 v{T2}, v{T3}, 3, v{T2}")
        a(f"v_add_u32 v{VWA}, {WST}, v{T2}")
        a(f"v_mov_b32 v{VSH}, {SHIFT_NEG:#x}")
        a(f"v_cmp_gt_u32 s[34:35], 4, v{T0}")
    a(f"v_lshrrev_b32 v{RB}, 2, v{TID}")
    a(f"v_mul_u32_u24 v{RB}, {EPC}, v{RB}")
    a(f"v_and_b32 v{T3}, 3, v{TID}")
    a(f"v_lshlrev_b32 v{T3}, 1, v{T3}")
    a(f"v_add_u32 v{RB}, v{RB}, v{T3}")
    a(f"v_lshlrev_b32 v{RB}, 3, v{RB}")
    a(f"v_add_u32 v{RB}, {REC_OFF}, v{RB}")
    a(f"v_cmp_gt_u32 vcc, {NC * 4}, v{TID}")
    a(f"s_waitcnt vmcnt({0 if 'wfirst' in OPT else 3})")
    stamp(a, 2)
    a(f"v_cndmask_b32 v{REM}, 0, v{REM}, vcc")
    a(f"v_and_b32 v{T2}, 0xffff, v{REM}")
    a(f"v_lshrrev_b32 v{REM}, 16, v{REM}")
    a(f"v_lshl_add_u32 v{RB}, v{T2}, 3, v{RB}")
    a(f"v_cmp_lt_u32 s[56:57], {8 * NRND}, v{REM}")
    a(f"v_sub_u32 v{REM}, v{REM}, v{T3}")
    for r in range(NRND):
        a(f"v_cmp_gt_i32 {sr(mask_s(2 * r))}, v{REM}, {8 * r}")
    a("s_nop 1")
    a("s_mov_b32 s58, 0")
    for r in range(NRND):
        m = mask_s(2 * r)
        a(f"s_mov_b64 exec, {sr(m)}")
        a("s_cbranch_execz L2_recs_done")
        a(f"global_load_dwordx4 {vr(rec_reg(r), 4)}, v{RB}, {sr(WS)} offset:{64 * r}")
        a(f"s_mov_b32 s58, {r + 1}")
    a.label("L2_recs_done")
    a("s_mov_b64 exec, -1")
    if "earlytouch" in OPT:
        a(f"s_cmp_lt_u32 s{WAVE}, {TOUCH0}")
        a("s_cbranch_scc1 L2_notouche")
        a(f"s_sub_u32 s25, s{WAVE}, {TOUCH0}")
        a(f"s_cmp_gt_u32 s25, {7 if 'touch64' in OPT else 3}")
        a("s_cbranch_scc1 L2_notouche")
        a("s_lshl_b32 s25, s25, 6")
        a(f"v_add_u32 v{T2}, s25, v{LANE}")
        a(f"v_min_u32 v{T2}, {(NPB * 4 if 'touch64' in OPT else NPB * 2) - 1}, v{T2}")
        a(f"v_lshlrev_b32 v{T2}, {6 if 'touch64' in OPT else 7}, v{T2}")
        a(f"s_mul_i32 s24, {'s23' if 'touchp' in OPT else 's2'}, {NPB * 256}")
        a(f"v_add_u32 v{T2}, s24, v{T2}")
        a(f"global_load_dword v126, v{T2}, {sr(WS)}")
        a("s_add_u32 s58, s58, 1")
        a.label("L2_notouche")
    for r in range(NRND):
        a(f"v_cmp_gt_i32 {sr(mask_s(2 * r + 1))}, v{REM}, {8 * r + 1}")
    if "constearly" not in OPT:
        for i in range(4):
            a(f"v_mov_b32 v{XOP + i}, {N}")
        a(f"v_lshlrev_b32 v{T2}, 4, v{TID}")
        a(f"v_add_u32 v{T2}, {LIST}, v{T2}")
        a(f"ds_write_b128 v{T2}, {vr(XOP, 4)}")
        a(f"ds_write_b128 v{T2}, {vr(XOP, 4)} offset:16384")
        nlast = LISTB // 16 - 2048
        a(f"v_cmp_gt_u32 vcc, {nlast}, v{TID}")
        a("s_and_saveexec_b64 s[32:33], vcc")
        a(f"ds_write_b128 v{T2}, {vr(XOP, 4)} offset:32768")
        a("s_mov_b64 exec, s[32:33]")
        a(f"v_and_b32 v{T0}, 15, v{LANE}")
        a(f"v_lshrrev_b32 v{T1}, 4, v{LANE}")
        a(f"v_lshlrev_b32 v{VG4}, 2, v{T1}")
        a(f"s_mul_i32 s24, s2, {NPB * 128}")
        a(f"v_lshrrev_b32 v{VZ}, 1, v{VJ}")
        a(f"v_add_u32 v{VZ}, s24, v{VZ}")
        a(f"v_mov_b32 v{VONE}, 1")
        a(f"v_mov_b32 v{VLB}, {LIST}")
        a(f"v_lshlrev_b32 v{VQ}, 2, v{LANE}")
        a(f"v_add_u32 v{VQ}, {SCR}, v{VQ}")
        a(f"v_cmp_eq_u32 vcc, 0, v{LANE}")
        a(f"v_mov_b32 v{T3}, {MISC + 8}")
        a(f"v_lshrrev_b32 v{T2}, 2, v{T0}")
        a(f"v_cndmask_b32 v{VQ}, v{VQ}, v{T3}, vcc")
        a(f"v_cmp_eq_u32 vcc, v{T2}, v{T1}")
        a(f"v_mov_b32 v{T3}, 0x3c00")
        a(f"v_and_b32 v{T2}, 3, v{T0}")
        a(f"v_cndmask_b32 v{T3}, 0, v{T3}, vcc")
        for q in range(4):
            a(f"v_cmp_eq_u32 vcc, {q}, v{T2}")
            a("s_nop 1")
            a(f"v_cndmask_b32 v{ASEL + q}, 0, v{T3}, vcc")
        a(f"s_mov_b32 s36, s{WS}")
        a(f"s_and_b32 s37, s{WS + 1}, 0xffff")
        a("s_or_b32 s37, s37, 0x1000000")
        a(f"s_mov_b32 s38, {N + 1}")
        a("s_mov_b32 s39, 0x20000")
        a(f"s_mov_b32 s66, {TINY:#x}")
        a(f"s_mov_b32 s67, {TINY:#x}")
        for k in range(4):
            a(f"v_mov_b32 v{76 + 4 * k + 1}, v{VJ}")
            a(f"v_mov_b32 v{76 + 4 * k + 3}, v{VJ}")
            a(f"v_mov_b32 v{92 + 2 * k}, 0")
            a(f"v_mov_b32 v{92 + 2 * k + 1}, 0")
        nd.stage_addr(NT, NT + 1, NT + 2)
        a(f"s_and_b32 s27, s{WAVE}, 3")
        a(f"s_lshr_b32 s26, s{WAVE}, 2")
        a("s_lshl_b32 s26, s26, 5")
        a(f"v_and_b32 v{T0}, 15, v{LANE}")
        a(f"v_lshrrev_b32 v{T1}, 4, v{LANE}")
        a(f"v_add_u32 v{T2}, s26, v{T0}")
        a(f"v_mul_u32_u24 v{VXA}, {XROW}, v{T2}")
        a(f"v_lshl_add_u32 v{VXA}, v{T1}, 4, v{VXA}")
        a(f"v_add_u32 v{VXA}, {XST}, v{VXA}")
        a(f"v_mul_u32_u24 v{VPA}, {ROW}, v{T2}")
        a(f"v_lshl_add_u32 v{VPA}, v{T1}, 4, v{VPA}")
        a("s_lshl_b32 s30, s27, 6")
        a(f"v_add_u32 v{VPA}, s30, v{VPA}")
        a(f"v_lshrrev_b32 v{T2}, 3, v{T0}")
        a(f"v_and_b32 v{T3}, 1, v{T1}")
        a(f"v_lshl_or_b32 v{T2}, v{T3}, 1, v{T2}")
        a(f"v_xor_b32 v{T2}, s27, v{T2}")
        a(f"v_lshlrev_b32 v{T2}, 5, v{T2}")
        a(f"v_lshrrev_b32 v{T3}, 2, v{T0}")
        a(f"v_lshl_add_u32 v{T3}, v{T1}, 3, v{T3}")
        a(f"v_lshl_add_u32 v{T2}, v{T3}, 7, v{T2}")
        a(f"v_and_b32 v{T3}, 3, v{T0}")
        a(f"v_lshl_add_u32 v{T2}, v{T3}, 3, v{T2}")
        a(f"v_add_u32 v{VWA}, {WST}, v{T2}")
        a(f"v_mov_b32 v{VSH}, {SHIFT_NEG:#x}")
        a(f"v_cmp_gt_u32 s[34:35], 4, v{T0}")
    for n in range(NRND + 1 if "earlytouch" in OPT else NRND, -1, -1) if "wfirst" not in OPT else ():
        if n:
            a(f"s_cmp_lg_u32 s58, {n}")
            a(f"s_cbranch_scc1 L2_wx{n}")
        a(f"s_waitcnt vmcnt({n})")
        if n:
            a("s_branch L2_wxdone")
            a.label(f"L2_wx{n}")
    a.label("L2_wxdone")
    stamp(a, 3)
    nd.stage_write(NT, NT + 1)
    a(f"s_mov_b32 s24, {LOG2E_NEG:#x}")
    a(f"v_lshlrev_b32 v{CV}, 16, v{CV + 2}")
    a(f"v_and_b32 v{CV + 1}, 0xffff0000, v{CV + 2}")
    a(f"v_lshlrev_b32 v{CV + 2}, 16, v{CV + 3}")
    a(f"v_and_b32 v{CV + 3}, 0xffff0000, v{CV + 3}")
    for i in range(4):
        a(f"v_mul_f32 v{CV + i}, s24, v{CV + i}")
    a("s_waitcnt lgkmcnt(0)")
    a("s_barrier")
    stamp(a, 4)
    a("s_cmp_eq_u64 s[56:57], 0")
    a("s_cbranch_scc1 L2_noflag")
    a(f"v_mov_b32 v{T2}, 0")
    a(f"ds_write_b32 v{T2}, v{VONE} offset:{MISC}")
    a.label("L2_noflag")
    A0, BA, BB_ = 32, 48, 56
    DP0, DU0 = 64, 68

    def pu_block(tag, two):
        a(f"ds_read_b128 {vr(BA, 4)}, v{VXA}")
        a(f"ds_read_b128 {vr(BA + 4, 4)}, v{VXA} offset:64")
        for m in range(2):
            for ks in range(2):
                for hh in range(2):
                    a(f"ds_read_b64_tr_b16 {vr(A0 + (m * 2 + ks) * 4 + hh * 2, 2)}, v{VWA} offset:{m * 8192 + ks * 4096 + hh * 512}")
        if two:
            a(f"ds_read_b128 {vr(BB_, 4)}, v{VXA} offset:{16 * XROW}")
            a(f"ds_read_b128 {vr(BB_ + 4, 4)}, v{VXA} offset:{16 * XROW + 64}")
        a(f"s_mov_b32 s24, {LOG2E_NEG:#x}")
        a(f"s_waitcnt lgkmcnt({2 if two else 0})")
        a(f"v_mfma_f32_16x16x32_bf16 {vr(DP0, 4)}, {vr(A0, 4)}, {vr(BA, 4)}, 0")
        a(f"v_mfma_f32_16x16x32_bf16 {vr(DU0, 4)}, {vr(A0 + 8, 4)}, {vr(BA, 4)}, 0")
        a(f"v_mfma_f32_16x16x32_bf16 {vr(DP0, 4)}, {vr(A0 + 4, 4)}, {vr(BA + 4, 4)}, {vr(DP0, 4)}")
        a(f"v_mfma_f32_16x16x32_bf16 {vr(DU0, 4)}, {vr(A0 + 12, 4)}, {vr(BA + 4, 4)}, {vr(DU0, 4)}")
        if two:
            a("s_waitcnt lgkmcnt(0)")
            a(f"v_mfma_f32_16x16x32_bf16 {vr(BA, 4)}, {vr(A0, 4)}, {vr(BB_, 4)}, 0")
            a(f"v_mfma_f32_16x16x32_bf16 {vr(BA + 4, 4)}, {vr(A0 + 8, 4)}, {vr(BB_, 4)}, 0")
            a(f"v_mfma_f32_16x16x32_bf16 {vr(BA, 4)}, {vr(A0 + 4, 4)}, {vr(BB_ + 4, 4)}, {vr(BA, 4)}")
            a(f"v_mfma_f32_16x16x32_bf16 {vr(BA + 4, 4)}, {vr(A0 + 12, 4)}, {vr(BB_ + 4, 4)}, {vr(BA + 4, 4)}")
            a("s_nop 3")
        else:
            a("s_mov_b64 exec, s[34:35]")
            a("s_nop 6")
        for i in range(4):
            a(f"v_fma_f32 v{DP0 + i}, v{DP0 + i}, s24, v{VSH}")
        a(f"ds_write_b128 v{VPA}, {vr(DP0, 4)} offset:{PL}")
        a(f"ds_write_b128 v{VPA}, {vr(DU0, 4)} offset:{PART0}")
        if two:
            for i in range(4):
                a(f"v_fma_f32 v{BA + i}, v{BA + i}, s24, v{VSH}")
            a(f"ds_write_b128 v{VPA}, {vr(BA, 4)} offset:{PL + 16 * ROW}")
            a(f"ds_write_b128 v{VPA}, {vr(BA + 4, 4)} offset:{PART0 + 16 * ROW}")
        else:
            a("s_mov_b64 exec, -1")

    a(f"s_cmp_gt_u32 s{WAVE}, 11")
    a("s_cbranch_scc1 L2_pu_last")
    pu_block("a", True)
    a("s_branch L2_pu_end")
    a.label("L2_pu_last")
    pu_block("b", False)
    a.label("L2_pu_end")
    if "constearly" in OPT:
        a(f"v_and_b32 v{T0}, 15, v{LANE}")
        a(f"v_lshrrev_b32 v{T1}, 4, v{LANE}")
        a(f"v_lshlrev_b32 v{VG4}, 2, v{T1}")
        a(f"s_mul_i32 s24, s2, {NPB * 128}")
        a(f"v_lshrrev_b32 v{VZ}, 1, v{VJ}")
        a(f"v_add_u32 v{VZ}, s24, v{VZ}")
        a(f"v_lshlrev_b32 v{VQ}, 2, v{LANE}")
        a(f"v_add_u32 v{VQ}, {SCR}, v{VQ}")
        a(f"v_cmp_eq_u32 vcc, 0, v{LANE}")
        a(f"v_mov_b32 v{T3}, {MISC + 8}")
        a(f"v_lshrrev_b32 v{T2}, 2, v{T0}")
        a(f"v_cndmask_b32 v{VQ}, v{VQ}, v{T3}, vcc")
        a(f"v_cmp_eq_u32 vcc, v{T2}, v{T1}")
        a(f"v_mov_b32 v{T3}, 0x3c00")
        a(f"v_and_b32 v{T2}, 3, v{T0}")
        a(f"v_cndmask_b32 v{T3}, 0, v{T3}, vcc")
        for q in range(4):
            a(f"v_cmp_eq_u32 vcc, {q}, v{T2}")
            a("s_nop 1")
            a(f"v_cndmask_b32 v{ASEL + q}, 0, v{T3}, vcc")
        a(f"s_mov_b32 s36, s{WS}")
        a(f"s_and_b32 s37, s{WS + 1}, 0xffff")
        a("s_or_b32 s37, s37, 0x1000000")
        a(f"s_mov_b32 s38, {N + 1}")
        a("s_mov_b32 s39, 0x20000")
        a(f"s_mov_b32 s66, {TINY:#x}")
        a(f"s_mov_b32 s67, {TINY:#x}")
        for k in range(4):
            a(f"v_mov_b32 v{76 + 4 * k + 1}, v{VJ}")
            a(f"v_mov_b32 v{76 + 4 * k + 3}, v{VJ}")
            a(f"v_mov_b32 v{92 + 2 * k}, 0")
            a(f"v_mov_b32 v{92 + 2 * k + 1}, 0")
    a(f"s_movk_i32 s59, {COL}")
    if "earlytouch" in OPT:
        a(f"s_sub_u32 s24, s{WAVE}, {TOUCH0}")
        a(f"s_cmp_lt_u32 s24, {8 if 'touch64' in OPT else 4}")
        a("s_cbranch_scc0 L2_wall")
        a("s_waitcnt vmcnt(1)")
        a("s_branch L2_wall2")
        a.label("L2_wall")
        a("s_waitcnt vmcnt(0)")
        a.label("L2_wall2")
    else:
        a("s_waitcnt vmcnt(0)")
    stamp(a, 5)
    if "ttouch" in OPT and "earlytouch" not in OPT:
        a(f"s_cmp_lt_u32 s{WAVE}, {TOUCH0}")
        a("s_cbranch_scc1 L2_notouch")
        a(f"s_sub_u32 s25, s{WAVE}, {TOUCH0}")
        a(f"s_cmp_gt_u32 s25, 3")
        a("s_cbranch_scc1 L2_notouch")
        a("s_lshl_b32 s25, s25, 6")
        a(f"v_add_u32 v{T2}, s25, v{LANE}")
        a(f"v_min_u32 v{T2}, {NPB * 2 - 1}, v{T2}")
        a(f"v_lshlrev_b32 v{T2}, 7, v{T2}")
        a(f"s_mul_i32 s24, s2, {NPB * 256}")
        a(f"v_add_u32 v{T2}, s24, v{T2}")
        a(f"global_load_dword v126, v{T2}, {sr(WS)}")
        a.label("L2_notouch")
    for r in range(NRND):
        if r >= 2:
            a(f"s_cmp_eq_u64 {sr(mask_s(2 * r))}, 0")
            a(f"s_cbranch_scc1 L2_hdone")
        for s_ in range(2):
            k = 2 * r + s_
            hi = rec_reg(r) + 2 * s_ + 1
            a(f"s_mov_b64 exec, {sr(mask_s(k))}")
            a(f"v_lshlrev_b32 v{T1}, 2, v{hi}")
            a(f"ds_add_rtn_u32 v{rank_reg(k)}, v{T1}, v{VONE} offset:{HIST}")
            a(f"v_mad_u32_u24 v{hi}, v{hi}, s59, v{VLB}")
    a.label("L2_hdone")
    a("s_mov_b64 exec, -1")
    a("s_waitcnt lgkmcnt(0)")
    for r in range(NRND):
        if r >= 2:
            a(f"s_cmp_eq_u64 {sr(mask_s(2 * r))}, 0")
            a(f"s_cbranch_scc1 L2_sdone")
        for s_ in range(2):
            k = 2 * r + s_
            lo = rec_reg(r) + 2 * s_
            hi = lo + 1
            a(f"s_mov_b64 exec, {sr(mask_s(k))}")
            a(f"v_min_u32 v{rank_reg(k)}, 63, v{rank_reg(k)}")
            a(f"v_lshl_add_u32 v{hi}, v{rank_reg(k)}, 2, v{hi}")
            a(f"ds_write_b32 v{hi}, v{lo}")
    a.label("L2_sdone")
    a("s_mov_b64 exec, -1")
    a("s_waitcnt lgkmcnt(0)")
    stamp(a, 6)
    a("s_barrier")
    a(f"s_cmp_eq_u32 s{WAVE}, 15")
    a("s_cbranch_scc0 L2_b2")

    a.label("L2_order")
    a("s_setprio 3")
    CN, BN, RK = 64, 68, 72
    S0 = 56
    a(f"v_lshlrev_b32 v{T0}, 4, v{LANE}")
    a(f"ds_read_b128 {vr(CN, 4)}, v{T0} offset:{HIST}")
    a(f"v_lshrrev_b32 v{T1}, 5, v{LANE}")
    a(f"v_and_b32 v{T2}, 31, v{LANE}")
    a(f"v_cmp_gt_u32 vcc, 25, v{T2}")
    a(f"v_lshlrev_b32 v{T3}, 8, v{T1}")
    a(f"v_add_u32 v{T3}, {63 * 4}, v{T3}")
    a(f"v_mov_b32 v{S0}, {(128 + 63) * 4}")
    a(f"v_cndmask_b32 v{T3}, v{S0}, v{T3}, vcc")
    a(f"v_lshlrev_b32 v{T2}, 2, v{T2}")
    a(f"v_mul_u32_u24 v{T1}, {4 * COL}, v{LANE}")
    a(f"v_lshl_or_b32 v{T1}, v{T1}, 16, v{T2}")
    a("s_waitcnt lgkmcnt(0)")
    a(f"v_max3_u32 v{S0 + 1}, v{CN}, v{CN + 1}, v{CN + 2}")
    a(f"v_max_u32 v{S0 + 1}, v{S0 + 1}, v{CN + 3}")
    for i in range(4):
        a(f"v_min_u32 v{BN + i}, 63, v{CN + i}")
        a(f"v_lshlrev_b32 v{BN + i}, 2, v{BN + i}")
        a(f"v_sub_u32 v{BN + i}, v{T3}, v{BN + i}")
        a(f"ds_add_rtn_u32 v{RK + i}, v{BN + i}, v{VONE} offset:{HIST2}")
    a(f"ds_read_b128 {vr(S0 + 4, 4)}, v{T0} offset:{HIST2}")
    a(f"v_cmp_lt_u32 vcc, {CAPK}, v{S0 + 1}")
    a("s_cbranch_vccz L2_nocap")
    a(f"v_mov_b32 v{S0}, 0")
    a(f"ds_write_b32 v{S0}, v{VONE} offset:{MISC}")
    a.label("L2_nocap")
    a("s_waitcnt lgkmcnt(0)")
    a(f"v_add_u32 v{S0 + 1}, v{S0 + 4}, v{S0 + 5}")
    a(f"v_add_u32 v{S0 + 2}, v{S0 + 1}, v{S0 + 6}")
    a(f"v_add_u32 v{S0 + 3}, v{S0 + 2}, v{S0 + 7}")
    a(f"v_mov_b32 v{S0}, v{S0 + 3}")
    wave_scan(a, S0)
    a(f"v_sub_u32 v{S0}, v{S0}, v{S0 + 3}")
    a(f"v_add_u32 v{S0 + 3}, v{S0}, v{S0 + 2}")
    a(f"v_add_u32 v{S0 + 2}, v{S0}, v{S0 + 1}")
    a(f"v_add_u32 v{S0 + 1}, v{S0}, v{S0 + 4}")
    a(f"ds_write_b128 v{T0}, {vr(S0, 4)} offset:{BASE2}")
    for i in range(4):
        a(f"ds_read_b32 v{S0 + 4 + i}, v{BN + i} offset:{BASE2}")
    a("s_waitcnt lgkmcnt(0)")
    for i in range(4):
        a(f"v_add_u32 v{RK + i}, v{RK + i}, v{S0 + 4 + i}")
        a(f"v_lshlrev_b32 v{RK + i}, 2, v{RK + i}")
        a(f"v_add_u32 v{S0}, {i * ((COL << 16) + 1)}, v{T1}")
        a(f"ds_write_b32 v{RK + i}, v{CN + i} offset:{WCNT}")
        a(f"ds_write_b32 v{RK + i}, v{S0} offset:{WKEY}")
    a("s_setprio 0")
    a.label("L2_b2")
    a("s_waitcnt lgkmcnt(0)")
    stamp(a, 7)
    a("s_barrier")
    stamp(a, 8)
    if "noprio" not in OPT:
        a("s_setprio 3")
    NP = 4
    RA = 4
    PR = 8
    ACC = 12
    UR = 16
    DN = 20
    NM = 24
    DA = 28
    VB = 44
    IX = 76
    EV = 92
    VL = 100
    VFL = 101
    VRN = 103
    VWL = 125
    SC, SNL, SI = 61, 62, 63
    STR = 64
    SP, SDONE = 58, 59
    SODD, SHALF = 69, 57
    VOC, VON = 104, 105
    a(f"s_movk_i32 s68, {ROW}")
    assert IX == 76 and EV == 92
    a(f"v_mov_b32 v{T0}, 0")
    a(f"ds_read_b32 v{T1}, v{T0} offset:{MISC}")
    a(f"v_lshlrev_b32 v{T2}, 4, v{LANE}")
    a(f"ds_read_b32 v{VWL}, v{T2} offset:{WCNT}")
    a(f"s_lshl_b32 s26, s{WAVE}, 4")
    a(f"v_add_u32 v{T2}, s26, v{VG4}")
    a(f"ds_read_b32 v{T3}, v{T2} offset:{WKEY}")
    a("s_waitcnt lgkmcnt(0)")
    a(f"v_readfirstlane_b32 s24, v{T1}")
    a(f"v_max_u32 v{VWL}, {2 * RA}, v{VWL}")
    a(f"v_lshrrev_b32 v{VL}, 16, v{T3}")
    a(f"v_add_u32 v{VL}, {LIST}, v{VL}")
    a("s_cmp_lg_u32 s24, 0")
    a("s_cbranch_scc1 L2_slow")
    for k in range(RA):
        a(f"ds_read_u16 v{IX + 4 * k}, v{VL} offset:{8 * k}")
        a(f"ds_read_u16 v{IX + 4 * k + 2}, v{VL} offset:{8 * k + 4}")
    a(f"v_and_b32 v{VRN}, 0xffff, v{T3}")
    a(f"v_mad_u32_u24 v{VRN}, v{VRN}, s68, v{VJ}")
    a(f"v_mov_b32 v{VFL}, v{VRN}")
    a(f"s_mov_b32 s{SP}, 0")
    a(f"s_mov_b32 s{SDONE}, 0")
    a(f"s_mov_b32 s28, {LOG2E_NEG:#x}")
    a(f"s_mov_b32 s29, {LOG2E_NEG:#x}")
    a("s_mov_b32 s30, 1.0")
    a("s_mov_b32 s31, 1.0")
    a(f"v_readlane_b32 s{SNL}, v{VWL}, s{WAVE}")
    a(f"s_mov_b32 s{STR}, {RA}")
    a(f"s_mov_b32 s{SI}, s{WAVE}")
    a(f"s_mov_b32 s{SHALF}, 0")
    a(f"s_and_b32 s{SODD}, s{SNL}, 1")
    a(f"s_add_u32 s{SC}, s{SNL}, 1")
    a(f"s_lshr_b32 s{SC}, s{SC}, 1")
    a("s_waitcnt lgkmcnt(0)")
    for k in range(RA - 1):
        for h in range(2):
            a(f"buffer_load_dwordx4 {vr(VB + 8 * k + 4 * h, 4)}, {vr(IX + 4 * k + 2 * h, 2)}, s[36:39], 0 idxen offen")
    for k in range(RA):
        a(f"ds_read_u16_d16_hi v{EV + 2 * k}, v{VL} offset:{8 * k + 2}")
        a(f"ds_read_u16_d16_hi v{EV + 2 * k + 1}, v{VL} offset:{8 * k + 6}")
    a(f"ds_read_b128 {vr(PR, 4)}, v{VRN} offset:{PL}")
    a(f"ds_read_b128 {vr(UR, 4)}, v{VRN} offset:{PART0}")
    for i in range(4):
        a(f"v_mov_b32 v{ACC + i}, 0")
    if "noprio" not in OPT:
        a("s_setprio 2")
    a("s_waitcnt lgkmcnt(0)")
    stamp(a, 9)

    def mfma1(k, h):
        d = DA + 8 * (k & 1)
        a(f"v_mfma_f32_16x16x32_f16 {vr(d + 4 * h, 4)}, {vr(ASEL, 4)}, {vr(VB + 8 * k + 4 * h, 4)}, {vr(PR, 4)}")

    def tail1(k):
        d = DA + 8 * (k & 1)
        vb = VB + 8 * k
        for h in range(2):
            a(f"v_pk_mul_f32 {vr(DN + 2 * h, 2)}, {vr(d + 2 * h, 2)}, {vr(d + 4 + 2 * h, 2)}")
        for h in range(2):
            a(f"v_pk_mul_f32 {vr(NM + 2 * h, 2)}, {vr(vb + 2 * h, 2)}, {vr(d + 4 + 2 * h, 2)}")
        for h in range(2):
            a(f"v_pk_fma_f32 {vr(NM + 2 * h, 2)}, {vr(vb + 4 + 2 * h, 2)}, {vr(d + 2 * h, 2)}, {vr(NM + 2 * h, 2)}")

    def rcp2(h):
        a(f"v_rcp_f32 v{DN + 2 * h}, v{DN + 2 * h}")
        a(f"v_rcp_f32 v{DN + 2 * h + 1}, v{DN + 2 * h + 1}")

    def tail2():
        a(f"v_pk_fma_f32 {vr(ACC, 2)}, {vr(NM, 2)}, {vr(DN, 2)}, {vr(ACC, 2)}")
        a(f"v_pk_fma_f32 {vr(ACC + 2, 2)}, {vr(NM + 2, 2)}, {vr(DN + 2, 2)}, {vr(ACC + 2, 2)}")

    def read_idx(k):
        a(f"ds_read_u16 v{IX + 4 * k}, v{VL} offset:{8 * (RA + k)}")
        a(f"ds_read_u16 v{IX + 4 * k + 2}, v{VL} offset:{8 * (RA + k) + 4}")

    def read_e(k):
        a(f"ds_read_u16_d16_hi v{EV + 2 * k}, v{VL} offset:{8 * (RA + k) + 2}")
        a(f"ds_read_u16_d16_hi v{EV + 2 * k + 1}, v{VL} offset:{8 * (RA + k) + 6}")

    def gather(k):
        p = (k - 1) % NP
        if "nogather" not in OPT:
            for h in range(2):
                a(f"buffer_load_dwordx4 {vr(VB + 8 * p + 4 * h, 4)}, {vr(IX + 4 * p + 2 * h, 2)}, s[36:39], 0 idxen offen")

    def front(k):
        d = DA + 8 * (k & 1)
        ep = EV + 2 * k
        for h in range(2):
            osel = "op_sel:[1,0,0] op_sel_hi:[1,1,1]" if h else "op_sel_hi:[0,1,1]"
            a(f"v_pk_fma_f32 {vr(d + 4 * h, 2)}, {vr(ep, 2)}, {vr(CV, 2)}, {vr(d + 4 * h, 2)} {osel}")
            a(f"v_pk_fma_f32 {vr(d + 4 * h + 2, 2)}, {vr(ep, 2)}, {vr(CV + 2, 2)}, {vr(d + 4 * h + 2, 2)} {osel}")
        read_e(k)
        for i in range(8):
            a(f"v_exp_f32_e64 v{d + i}, v{d + i} clamp")
            if i == 5:
                a(f"v_pk_add_f32 {vr(d, 2)}, {vr(d, 2)}, s[66:67]")
        a(f"v_pk_add_f32 {vr(d + 2, 2)}, {vr(d + 2, 2)}, s[66:67]")
        a(f"v_pk_add_f32 {vr(d + 4, 2)}, {vr(d + 4, 2)}, s[66:67]")
        a(f"v_pk_add_f32 {vr(d + 6, 2)}, {vr(d + 6, 2)}, s[66:67]")

    def flush(k):
        a(f"s_cmp_lg_u32 s{SP}, 0")
        a(f"s_cbranch_scc1 L2_fin{k}")
        a(f"v_pk_fma_f32 {vr(UR, 2)}, {vr(ACC, 2)}, s[66:67], {vr(UR, 2)}")
        a(f"v_pk_fma_f32 {vr(UR + 2, 2)}, {vr(ACC + 2, 2)}, s[66:67], {vr(UR + 2, 2)}")
        a(f"ds_write_b128 v{VFL}, {vr(UR, 4)} offset:{PART0}")
        a(f"ds_add_u32 v{VQ}, v{VONE} offset:4")
        a(f"s_branch L2_fld{k}")
        a.label(f"L2_fin{k}")
        a(f"s_cmp_lg_u32 s{SDONE}, 0")
        a(f"s_cbranch_scc1 L2_rdy{k}")
        a("s_mov_b32 s25, 0")
        a.label(f"L2_spin{k}")
        a(f"v_mov_b32 v{T2}, 0")
        a(f"ds_read_b32 v{T2}, v{T2} offset:{MISC + 12}")
        a("s_waitcnt lgkmcnt(0)")
        a(f"v_readfirstlane_b32 s24, v{T2}")
        a("s_nop 3")
        a(f"s_cmp_ge_u32 s24, {NWIN // 2}")
        a(f"s_cbranch_scc1 L2_seen{k}")
        a("s_sleep 2")
        a("s_add_u32 s25, s25, 1")
        a("s_cmp_lt_u32 s25, 0x400000")
        a(f"s_cbranch_scc1 L2_spin{k}")
        a.label(f"L2_seen{k}")
        a(f"s_mov_b32 s{SDONE}, 1")
        a.label(f"L2_rdy{k}")
        a(f"ds_read_b128 {vr(UR, 4)}, v{VFL} offset:{PART0}")
        a("s_waitcnt lgkmcnt(0)")
        a(f"v_pk_fma_f32 {vr(UR, 2)}, {vr(ACC, 2)}, s[66:67], {vr(UR, 2)}")
        a(f"v_pk_fma_f32 {vr(UR + 2, 2)}, {vr(ACC + 2, 2)}, s[66:67], {vr(UR + 2, 2)}")
        a(f"v_pk_mul_f32 {vr(DN, 2)}, {vr(UR, 2)}, s[28:29]")
        a(f"v_pk_mul_f32 {vr(DN + 2, 2)}, {vr(UR + 2, 2)}, s[28:29]")
        for i in range(4):
            a(f"v_exp_f32 v{DN + i}, v{DN + i}")
        a(f"v_pk_add_f32 {vr(DN, 2)}, {vr(DN, 2)}, s[30:31]")
        a(f"v_pk_add_f32 {vr(DN + 2, 2)}, {vr(DN + 2, 2)}, s[30:31]")
        for i in range(4):
            a(f"v_rcp_f32 v{DN + i}, v{DN + i}")
        a(f"v_pk_mul_f32 {vr(UR, 2)}, {vr(UR, 2)}, {vr(DN, 2)}")
        a(f"v_pk_mul_f32 {vr(UR + 2, 2)}, {vr(UR + 2, 2)}, {vr(DN + 2, 2)}")
        a(f"v_cvt_pk_bf16_f32 v{NM}, v{UR}, v{UR + 1}")
        a(f"v_cvt_pk_bf16_f32 v{NM + 1}, v{UR + 2}, v{UR + 3}")
        a(f"global_store_dwordx2 v{VOC}, {vr(NM, 2)}, {sr(OUT)}{STO}")
        a.label(f"L2_fld{k}")

    VW = 2 * (RA - 2)
    a(f"s_cmp_eq_u32 s{SC}, s{STR}")
    a("s_cbranch_scc1 L2_pop_first")
    a.label("L2_first_cont")
    if "nogather" not in OPT:
        a(f"s_waitcnt vmcnt({VW})")
    mfma1(0, 0)
    mfma1(0, 1)
    read_idx(0)
    a("s_nop 2")
    gather(0)
    a("s_branch L2_mid0")

    a.label("L2_loop")
    for k in range(NP):
        pk = (k - 1) % NP
        a.label(f"L2_top{k}")
        a(f"s_cmp_eq_u32 s{SC}, s{STR}")
        a(f"s_cbranch_scc1 L2_ev{k}")
        a.label(f"L2_cont{k}")
        tail1(pk)
        if "nogather" not in OPT:
            a(f"s_waitcnt vmcnt({VW})")
        mfma1(k, 0)
        rcp2(0)
        mfma1(k, 1)
        rcp2(1)
        read_idx(k)
        tail2()
        a("s_waitcnt lgkmcnt(4)")
        gather(k)
        a.label(f"L2_mid{k}")
        front(k)
        a(f"s_sub_u32 s{SC}, s{SC}, 1")
        if k == NP - 1:
            a(f"v_add_u32 v{VL}, {8 * NP}, v{VL}")
            a("s_branch L2_loop")

    def pop(k, cont):
        a(f"ds_add_rtn_u32 v{T2}, v{VQ}, v{VONE}")
        a(f"s_mov_b32 s{STR}, s{SODD}")
        a("s_waitcnt lgkmcnt(0)")
        a(f"v_readfirstlane_b32 s{SI}, v{T2}")
        a(f"s_mov_b32 s{SNL}, 0")
        a(f"v_mov_b32 v{VL}, {LIST + DUMMY_COL - 8 * (RA + k)}")
        a("s_nop 1")
        a(f"s_cmp_lt_u32 s{SI}, {NWIN}")
        a(f"s_cbranch_scc0 {cont}")
        a(f"s_lshl_b32 s26, s{SI}, 4")
        a(f"v_add_u32 v{T2}, s26, v{VG4}")
        a(f"ds_read_b32 v{T3}, v{T2} offset:{WKEY}")
        a(f"v_readlane_b32 s{SNL}, v{VWL}, s{SI}")
        a("s_waitcnt lgkmcnt(0)")
        a(f"v_and_b32 v{VRN}, 0xffff, v{T3}")
        a(f"v_lshrrev_b32 v{VL}, 16, v{T3}")
        a(f"v_lshl_add_u32 v{VON}, v{VRN}, 7, v{VZ}")
        a(f"v_mad_u32_u24 v{VRN}, v{VRN}, s68, v{VJ}")
        a(f"v_add_u32 v{VL}, {LIST - 8 * (RA + k)}, v{VL}")
        a(f"s_branch {cont}")

    a.label("L2_pop_first")
    pop(0, "L2_first_cont")
    for k in range(NP):
        pk = (k - 1) % NP
        a.label(f"L2_ev{k}")
        a(f"s_cmp_eq_u32 s{STR}, 0")
        a(f"s_cbranch_scc1 L2_sw{k}")
        a(f"s_cmp_eq_u32 s{STR}, 1")
        a(f"s_cbranch_scc1 L2_half{k}")
        pop(k, f"L2_cont{k}")
        a.label(f"L2_half{k}")
        tail1(pk)
        if "nogather" not in OPT:
            a(f"s_waitcnt vmcnt({VW})")
        mfma1(k, 0)
        rcp2(0)
        rcp2(1)
        read_idx(k)
        tail2()
        a("s_waitcnt lgkmcnt(4)")
        gather(k)
        d = DA + 8 * (k & 1)
        ep = EV + 2 * k
        a(f"v_pk_fma_f32 {vr(d, 2)}, {vr(ep, 2)}, {vr(CV, 2)}, {vr(d, 2)} op_sel_hi:[0,1,1]")
        a(f"v_pk_fma_f32 {vr(d + 2, 2)}, {vr(ep, 2)}, {vr(CV + 2, 2)}, {vr(d + 2, 2)} op_sel_hi:[0,1,1]")
        read_e(k)
        for i in range(4):
            a(f"v_exp_f32_e64 v{d + i}, v{d + i} clamp")
        a(f"v_pk_add_f32 {vr(d, 2)}, {vr(d, 2)}, s[66:67]")
        a(f"v_pk_add_f32 {vr(d + 2, 2)}, {vr(d + 2, 2)}, s[66:67]")
        a(f"s_mov_b32 s{SC}, 0")
        a(f"s_mov_b32 s{STR}, 0")
        a(f"s_mov_b32 s{SHALF}, 1")
        if k == NP - 1:
            a(f"v_add_u32 v{VL}, {8 * NP}, v{VL}")
        a(f"s_branch L2_top{(k + 1) % NP}")
        a.label(f"L2_sw{k}")
        a(f"s_cmp_lg_u32 s{SHALF}, 0")
        a(f"s_cbranch_scc1 L2_swh{k}")
        tail1(pk)
        rcp2(0)
        rcp2(1)
        a("s_nop 0")
        tail2()
        a(f"s_branch L2_swf{k}")
        a.label(f"L2_swh{k}")
        dp = DA + 8 * (pk & 1)
        vbp = VB + 8 * pk
        for i in range(4):
            a(f"v_rcp_f32 v{dp + i}, v{dp + i}")
        a(f"s_mov_b32 s{SHALF}, 0")
        a(f"v_pk_fma_f32 {vr(ACC, 2)}, {vr(dp, 2)}, {vr(vbp, 2)}, {vr(ACC, 2)}")
        a(f"v_pk_fma_f32 {vr(ACC + 2, 2)}, {vr(dp + 2, 2)}, {vr(vbp + 2, 2)}, {vr(ACC + 2, 2)}")
        a.label(f"L2_swf{k}")
        flush(k)
        a(f"s_cmp_eq_u32 s{SNL}, 0")
        a("s_cbranch_scc1 L2_exit")
        a(f"ds_read_b128 {vr(PR, 4)}, v{VRN} offset:{PL}")
        a(f"ds_read_b128 {vr(UR, 4)}, v{VRN} offset:{PART0}")
        for i in range(4):
            a(f"v_mov_b32 v{ACC + i}, 0")
        a(f"v_mov_b32 v{VFL}, v{VRN}")
        a(f"v_mov_b32 v{VOC}, v{VON}")
        a(f"s_cmp_ge_u32 s{SI}, {NWIN // 2}")
        a(f"s_cselect_b32 s{SP}, 1, 0")
        a(f"s_and_b32 s{SODD}, s{SNL}, 1")
        a(f"s_add_u32 s{SC}, s{SNL}, 1")
        a(f"s_lshr_b32 s{SC}, s{SC}, 1")
        a(f"s_mov_b32 s{STR}, {RA}")
        if "noprio" not in OPT:
            a(f"s_cmp_lt_u32 s{SI}, {PRIO_B}")
            a(f"s_cbranch_scc1 L2_p1_{k}")
            a("s_setprio 0")
            a(f"s_branch L2_pd_{k}")
            a.label(f"L2_p1_{k}")
            a(f"s_cmp_lt_u32 s{SI}, {PRIO_A}")
            a(f"s_cbranch_scc1 L2_pd_{k}")
            a("s_setprio 1")
            a.label(f"L2_pd_{k}")
        a(f"s_cmp_eq_u32 s{SC}, {RA}")
        a(f"s_cbranch_scc0 L2_sw2_{k}")
        pop(k, f"L2_sw2_{k}")
        a.label(f"L2_sw2_{k}")
        if "nogather" not in OPT:
            a(f"s_waitcnt vmcnt({VW}) lgkmcnt(0)")
        else:
            a("s_waitcnt lgkmcnt(0)")
        mfma1(k, 0)
        mfma1(k, 1)
        read_idx(k)
        a("s_nop 2")
        gather(k)
        a(f"s_branch L2_mid{k}")

    a.label("L2_exit")
    stamp(a, 10)
    stamp(a, 11)
    stamp(a, 12)
    if STAMPS or "dbgs" in OPT:
        a("s_waitcnt vmcnt(0)")
    stamp(a, 13)
    stamp(a, 21, True)
    stamp_flush(a, 1)
    a("s_endpgm")

    a.label("L2_slow")
    SSC, SCN, SRI = 61, 62, 63
    a(f"v_lshlrev_b32 v{T0}, 2, v{LANE}")
    a(f"v_lshlrev_b32 v{T1}, 1, v{LANE}")
    a(f"v_add_u32 v{T1}, {128 * 128}, v{T1}")
    a(f"global_load_ushort v{T2}, v{T1}, {sr(GW)}")
    a(f"s_mov_b32 s24, {LOG2E_NEG:#x}")
    a("s_waitcnt vmcnt(0) lgkmcnt(0)")
    a(f"v_lshlrev_b32 v{T2}, 16, v{T2}")
    a(f"v_mul_f32 v8, s24, v{T2}")
    a(f"s_mov_b32 s{SSC}, 0")
    a.label("L2_slow_seg")
    a(f"s_cmp_ge_u32 s{SSC}, {NC}")
    a("s_cbranch_scc1 L2_done")
    a(f"s_lshl_b32 s24, s{SSC}, 8")
    a("s_add_u32 s24, s24, s2")
    a("s_lshl_b32 s24, s24, 2")
    a(f"s_add_u32 s24, s24, {SEG_OFF}")
    a(f"v_mov_b32 v{T1}, s24")
    a(f"global_load_dword v{T2}, v{T1}, {sr(WS)}")
    a("s_waitcnt vmcnt(0)")
    a(f"v_readfirstlane_b32 s25, v{T2}")
    a("s_nop 3")
    a(f"s_lshr_b32 s{SCN}, s25, 16")
    a("s_and_b32 s25, s25, 0xffff")
    a(f"s_mul_i32 s26, s{SSC}, {EPC}")
    a("s_add_u32 s26, s26, s25")
    a("s_lshl_b32 s26, s26, 3")
    a(f"s_add_u32 s{SRI}, s26, {REC_OFF}")
    a.label("L2_slow_rec")
    a(f"s_cmp_eq_u32 s{SCN}, 0")
    a("s_cbranch_scc1 L2_slow_next")
    a(f"v_cmp_gt_u32 vcc, s{SCN}, v{LANE}")
    a(f"v_lshlrev_b32 v20, 3, v{LANE}")
    a(f"v_add_u32 v20, s{SRI}, v20")
    a("s_and_saveexec_b64 s[40:41], vcc")
    a(f"global_load_dwordx2 v[22:23], v20, {sr(WS)}")
    a("s_mov_b64 exec, s[40:41]")
    a("s_mov_b64 s[42:43], vcc")
    a(f"s_add_u32 s{SRI}, s{SRI}, 512")
    a(f"s_min_u32 s25, s{SCN}, 64")
    a(f"s_sub_u32 s{SCN}, s{SCN}, s25")
    a("s_waitcnt vmcnt(0)")
    a("v_and_b32 v21, 15, v23")
    a(f"v_cmp_eq_u32 vcc, s{WAVE}, v21")
    a("s_nop 1")
    a("s_and_b64 s[42:43], s[42:43], vcc")
    a.label("L2_slow_edge")
    a("s_cmp_eq_u64 s[42:43], 0")
    a("s_cbranch_scc1 L2_slow_rec")
    a("s_ff1_i32_b64 s24, s[42:43]")
    a("s_bitset0_b64 s[42:43], s24")
    a("v_readlane_b32 s25, v22, s24")
    a("v_readlane_b32 s26, v23, s24")
    a("s_nop 1")
    a("s_and_b32 s27, s25, 0xffff")
    a("s_and_b32 s25, s25, 0xffff0000")
    a("s_and_b32 s26, s26, 127")
    a(f"s_mul_i32 s26, s26, {ROW}")
    a("v_mov_b32 v18, s27")
    a(f"v_mov_b32 v19, v{T0}")
    a("buffer_load_dword v13, v[18:19], s[36:39], 0 idxen offen")
    a(f"v_add_u32 v14, s26, v{T0}")
    a(f"ds_read_b32 v15, v14 offset:{PL}")
    a(f"ds_read_b32 v17, v14 offset:{PART0}")
    a("s_waitcnt vmcnt(0) lgkmcnt(0)")
    a("v_cvt_f32_f16 v16, v13")
    a("v_add_f32 v16, v16, v15")
    a("v_fmac_f32 v16, s25, v8")
    a("v_exp_f32 v16, v16")
    a(f"s_mov_b32 s25, {TINY:#x}")
    a("v_add_f32 v16, s25, v16")
    a("v_rcp_f32 v16, v16")
    a("s_nop 0")
    a("v_mul_f32 v16, s25, v16")
    a("v_fmac_f32 v17, v16, v13")
    a(f"ds_write_b32 v14, v17 offset:{PART0}")
    a("s_waitcnt lgkmcnt(0)")
    a("s_branch L2_slow_edge")
    a.label("L2_slow_next")
    a(f"s_add_u32 s{SSC}, s{SSC}, 1")
    a("s_branch L2_slow_seg")

    a.label("L2_done")
    stamp(a, 10)
    a("s_setprio 0")
    a(f"v_lshrrev_b32 v{T0}, 4, v{TID}")
    a(f"v_and_b32 v{T1}, 15, v{TID}")
    a(f"v_mul_u32_u24 v{T2}, {ROW}, v{T0}")
    a(f"v_lshl_add_u32 v{T2}, v{T1}, 4, v{T2}")
    a(f"s_mul_i32 s24, s2, {NPB * 128}")
    a(f"v_lshlrev_b32 v{T3}, 7, v{T0}")
    a(f"v_lshl_add_u32 v{T3}, v{T1}, 3, v{T3}")
    a(f"v_add_u32 v{T3}, s24, v{T3}")
    a(f"v_add_u32 v7, {64 * ROW}, v{T2}")
    a(f"v_add_u32 v6, {64 * 128}, v{T3}")
    a(f"s_mov_b32 s24, {LOG2E_NEG:#x}")
    a(f"s_mov_b32 s25, {LOG2E_NEG:#x}")
    a("s_mov_b32 s26, 1.0")
    a("s_mov_b32 s27, 1.0")
    a("s_waitcnt vmcnt(0) lgkmcnt(0)")
    a("s_barrier")
    stamp(a, 11)

    def silu_store(src, off):
        a(f"v_pk_mul_f32 {vr(src + 4, 2)}, {vr(src, 2)}, s[24:25]")
        a(f"v_pk_mul_f32 {vr(src + 6, 2)}, {vr(src + 2, 2)}, s[24:25]")
        for i in range(4):
            a(f"v_exp_f32 v{src + 4 + i}, v{src + 4 + i}")
        a(f"v_pk_add_f32 {vr(src + 4, 2)}, {vr(src + 4, 2)}, s[26:27]")
        a(f"v_pk_add_f32 {vr(src + 6, 2)}, {vr(src + 6, 2)}, s[26:27]")
        for i in range(4):
            a(f"v_rcp_f32 v{src + 4 + i}, v{src + 4 + i}")
        a(f"v_pk_mul_f32 {vr(src, 2)}, {vr(src, 2)}, {vr(src + 4, 2)}")
        a(f"v_pk_mul_f32 {vr(src + 2, 2)}, {vr(src + 2, 2)}, {vr(src + 6, 2)}")
        a(f"v_cvt_pk_bf16_f32 v{src + 4}, v{src}, v{src + 1}")
        a(f"v_cvt_pk_bf16_f32 v{src + 5}, v{src + 2}, v{src + 3}")
        a(f"global_store_dwordx2 v{off}, {vr(src + 4, 2)}, {sr(OUT)}{STO}")

    a(f"ds_read_b128 v[8:11], v{T2} offset:{PART0}")
    a(f"s_cmp_lt_u32 s{WAVE}, 9")
    a("s_cbranch_scc0 L2_ep1")
    a(f"ds_read_b128 v[16:19], v7 offset:{PART0}")
    a("s_waitcnt lgkmcnt(0)")
    silu_store(16, 6)
    a.label("L2_ep1")
    a("s_waitcnt lgkmcnt(0)")
    silu_store(8, T3)
    if "dbgt" in OPT:
        a("s_waitcnt vmcnt(0)")
    dbg_time(a, 1, 3)
    stamp(a, 12)
    if STAMPS:
        a("s_waitcnt vmcnt(0)")
    stamp(a, 13)
    stamp(a, 21, True)
    stamp_flush(a, 1)
    a.label("L2_end")
    a("s_endpgm")
    return LDS, 128


def descriptor(a, name, vgprs, sgprs=80):
    a(f".amdhsa_kernel {name}")
    a(f"  .amdhsa_next_free_vgpr {vgprs}")
    a(f"  .amdhsa_next_free_sgpr {sgprs}")
    a(f"  .amdhsa_accum_offset {vgprs}")
    a("  .amdhsa_group_segment_fixed_size 0")
    a("  .amdhsa_kernarg_size 80")
    a("  .amdhsa_user_sgpr_count 2")
    a("  .amdhsa_user_sgpr_kernarg_segment_ptr 1")
    a("  .amdhsa_system_sgpr_workgroup_id_x 1")
    a("  .amdhsa_float_denorm_mode_32 3")
    a(".end_amdhsa_kernel")


def main():
    global STAMPS, ST, STT, STR_, STO
    if "--stamps" in sys.argv:
        STAMPS = True
        sys.argv.remove("--stamps")
    for o in OPT:
        if o.startswith("st="):
            ST = STT = STR_ = " " + o[3:].replace("+", " ")
        if o.startswith("stt="):
            STT = " " + o[4:].replace("+", " ")
        if o.startswith("sto="):
            STO = " " + o[4:].replace("+", " ")
        if o.startswith("str="):
            STR_ = " " + o[4:].replace("+", " ")
    body = Asm()
    body(".amdgcn_target \"amdgcn-amd-amdhsa--gfx950\"")
    body(".text")
    lds1, v1 = gen_k1(body)
    lds2, v2 = gen_k2(body)
    body(".section .rodata,\"a\"")
    body(".p2align 6")
    descriptor(body, K1, 128 if (STAMPS or 'dbgt' in OPT) else v1)
    body(".p2align 6")
    descriptor(body, K2, v2)
    head = [
        "; Edge-gated MPNN layer  out = silu(x U + sum_{e: dst(e)=i} sigmoid(x_i A + x_j B + e c) * (x_j V))",
        "; in two launches of 250 workgroups x 1024 threads (written with a hand-made generator script).",
        ";",
        "; launch 1 (egc_part_kernel): workgroup c",
        ";   - builds 100 rows of the source table T[n][ch] (one dword per channel): low half = f16(-log2e * (x B)),",
        ";     the dword read as f32 = x V rounded to the nearest value with that low half (half an ulp of bf16, like the",
        ";     reference's bf16 rounding of x V); row N is all zero (padding target)",
        ";   - sorts its 3200 edges by destination bucket (100 nodes) in LDS and writes (e | src, key) records",
        ";     plus a (start, count) word per bucket; key = local node | source half << 7",
        "; launch 2 (..._graph_kernel): workgroup b owns nodes 100b .. 100b+99",
        ";   - gathers its records, bins them per key in LDS, orders the keys by count and forms windows of 4 keys",
        ";     (one per 16-lane group; lane = 4 channels); P = -log2e * (x A) - 60 and U = x U come from MFMAs",
        ";   - per edge quad: t = P + Q' + e c' (an MFMA with a 0/1 matrix unpacks the f16 halves and adds P),",
        ";     D = min(2^t, 1) + 2^-60 = 2^-60 (1 + exp(-z)), and two edges share one reciprocal:",
        ";     hv_a/D_a + hv_b/D_b = (hv_a D_b + hv_b D_a) / (D_a D_b); the 2^-60 is removed when a window is flushed",
        ";   - sources are visited in two passes (bit 12 of the source id) so that the gathered table half stays in L2",
        ";   - a bucket whose lists do not fit the LDS layout takes a slow generic path",
        ";",
        "; workspace: T at 0, records at 0x700000, (start,count) words at 0xE00000",
        f"; @launch kernel={K1} grid=({NC},1,1) block=(1024,1,1) lds={lds1}",
        f"; @launch kernel={K2} grid=({NB},1,1) block=(1024,1,1) lds={lds2}",
    ]
    out = "\n".join(head) + "\n" + body.text()
    path = sys.argv[1] if len(sys.argv) > 1 else "standalone__edge_featured_mpnn_egc__graph.s"
    open(path, "w").write(out)
    print("wrote", path, "lds", lds1, lds2)


if __name__ == "__main__":
    main()
```
